```python
import torch

def _softmax(x, axis=-1):
    return torch.softmax(x, dim=axis)
def _gelu(x):
    return torch.nn.functional.gelu(x, approximate="tanh")
def _silu(x):
    return torch.nn.functional.silu(x)
def _sigmoid(x):
    return torch.sigmoid(x)
def _layernorm(x, axis=-1, eps=1e-5):
    m = x.mean(dim=axis, keepdim=True)
    v = x.var(dim=axis, keepdim=True, unbiased=False)
    return (x - m) / torch.sqrt(v + eps)
def _scatter_add(tgt, idx, src, axis=0):
    return tgt.clone().index_add_(axis, idx, src)
def _segment_sum(src, seg, n):
    out = torch.zeros((n,) + src.shape[1:], dtype=src.dtype)
    return out.index_add_(0, seg, src)
def _pad(x, pw):
    flat = tuple(v for pair in reversed(pw) for v in pair)
    return torch.nn.functional.pad(x, flat)

kernel_name = 'gated_mix__sliding_block_cached__swiglu_ffn__decode'

def setup_inputs():

    _w = (lambda a: (lambda t: t.to(torch.bfloat16) if t.is_floating_point() else t)(torch.as_tensor(a)))
    def _A_setup():
        B, Sq, D = 2, 1, 512
        Hq, Hkv, Sk, Dh = 32, 8, 32768, 128
        assert Hq % Hkv == 0, (Hq, Hkv)
        return {
            "x": _w((lambda *s: torch.randn(*s, dtype=torch.bfloat16) * 0.05)(B, Sq, D)),
            "k_cache": _w((lambda *s: torch.randn(*s, dtype=torch.bfloat16) * 6.4)(B, Hkv, Sk, Dh)),
            "v_cache": _w((lambda *s: torch.randn(*s, dtype=torch.bfloat16) * 0.2)(B, Hkv, Sk, Dh)),
            "wq": _w((lambda *s: torch.randn(*s, dtype=torch.bfloat16) * 6.4)(D, Hq * Dh) * (D ** -0.5)),
            "wo": _w((lambda *s: torch.randn(*s, dtype=torch.bfloat16) * 0.2)(Hq * Dh, D) * ((Hq * Dh) ** -0.5)),
        }
    _A_in = _A_setup()

    def _B_setup():
        B, S, D, F = 2, 1, 512, 1792
        return {
            "x": _w((lambda *s: torch.randn(*s, dtype=torch.bfloat16) * 0.05)(B, S, D)),
            "w_gate": _w((lambda *s: torch.randn(*s, dtype=torch.bfloat16) * 0.05)(D, F)),
            "w_up": _w((lambda *s: torch.randn(*s, dtype=torch.bfloat16) * 0.05)(D, F)),
            "w_down": _w((lambda *s: torch.randn(*s, dtype=torch.bfloat16) * 0.05)(F, D)),
        }
    _B_in = _B_setup()

    return {
        "A_x": _A_in["x"],
        "A_k_cache": _A_in["k_cache"],
        "A_v_cache": _A_in["v_cache"],
        "A_wq": _A_in["wq"],
        "A_wo": _A_in["wo"],
        "B_x": _B_in["x"],
        "B_w_gate": _B_in["w_gate"],
        "B_w_up": _B_in["w_up"],
        "B_w_down": _B_in["w_down"],
        "gate_w": _w((lambda *s: torch.randn(*s, dtype=torch.bfloat16) * 0.05)(512) * 16.0),
    }

def reference(A_x, A_k_cache, A_v_cache, A_wq, A_wo, B_x, B_w_gate, B_w_up, B_w_down, gate_w):
    def _A_ref(x, k_cache, v_cache, wq, wo):
        B, Sq, D = x.shape
        Hq, Dh = 32, 128
        Hkv, Sk = k_cache.shape[1], k_cache.shape[2]
        W = min(4096, max(256, Sk // 4))
        rep = Hq // Hkv
        q = (lambda x, *d: x.permute(*d))((x @ wq).reshape(B, Sq, Hq, Dh), 0, 2, 1, 3)
        k = (lambda x, n, axis: torch.repeat_interleave(x, n, dim=axis))(k_cache[:, :, Sk - W:, :], rep, axis=1)
        v = (lambda x, n, axis: torch.repeat_interleave(x, n, dim=axis))(v_cache[:, :, Sk - W:, :], rep, axis=1)
        scores = torch.einsum("bhqd,bhkd->bhqk", q, k) * (Dh ** -0.5)
        p = _softmax(scores, axis=-1)
        o = torch.einsum("bhqk,bhkd->bhqd", p, v)
        return (lambda x, *d: x.permute(*d))(o, 0, 2, 1, 3).reshape(B, Sq, Hq * Dh) @ wo

    def _B_ref(x, w_gate, w_up, w_down):
        g = _silu(x @ w_gate)
        u = x @ w_up
        return (g * u) @ w_down

    x = A_x
    g = _sigmoid((x * gate_w).sum(-1, keepdims=True))
    a = _A_ref(x, A_k_cache, A_v_cache, A_wq, A_wo)
    b = _B_ref(x, B_w_gate, B_w_up, B_w_down)
    return g * a + (1 - g) * b
```

```python
import sys

OPT = dict(ts=0, kv_fl="nt", w_fl="nt", ka=6, vb=2, spin=400000, pst=2, dry=1, slp=1, pre=0)
out = sys.argv[1]
for a in sys.argv[2:]:
    k, v = a.split("=")
    OPT[k] = int(v) if v.lstrip("-").isdigit() else v.replace("+", " ").replace("none", "")
TS = OPT["ts"]

NAME = "gated_mix__sliding_block_cached__swiglu_ffn__decode_kernel"
HEADER = open("gated_mix__sliding_block_cached__swiglu_ffn__decode.s.ref").read().split("; Override launch")[0]

L = []
def A(s):
    for l in s.split("\n"):
        L.append("    " + l.strip())
def LB(s):
    L.append(s + ":")
def C(s):
    L.append("    ; " + s)

WQI = 0
GI = 16384
UI = 24576
WOI = 32768
WDI = 49152
OW = 57344
MLW = 73728
QS = 73984
OV = 75008
HS = 75520
QT = 75776
GT = 76288
CNT = 76304
CNTQ, CNTO, CNTV, STAGE = CNT, CNT + 4, CNT + 8, CNT + 12
FLH = 76320
LDS_BYTES = 76800
QX = 0x10000
HX = 0x80000
H1 = 0x100000
OBS = OPT.get('obs', 2176)
H2 = 0x400000
TSB = 0x800000

SCALE = 0x3DB504F3
LOG2E = 0x3FB8AA3B
NLOG2E = 0xBFB8AA3B
WF = OPT["w_fl"]

def srd(d, p, nbytes):
    A(f"s_mov_b32 s{d}, s{p}\ns_and_b32 s{d+1}, s{p+1}, 0xffff\ns_mov_b32 s{d+2}, {hex(nbytes)}\ns_mov_b32 s{d+3}, 0x20000")

ts_n = [0]
def ts_reset():
    ts_n[0] = 1 if TS else 0
def ts():
    if not TS: return
    k = ts_n[0]; ts_n[0] += 1
    assert k < 16
    A(f"s_memrealtime s[72:73]\ns_waitcnt lgkmcnt(0)\nv_writelane_b32 v127, s72, {k}")
def ts_dump():
    if not TS: return
    A("s_mov_b64 exec, -1")
    A("s_mul_i32 s60, s2, 12\ns_add_u32 s60, s60, s30\ns_lshl_b32 s60, s60, 6")
    A(f"s_add_u32 s60, s60, {hex(TSB)}")
    A("v_lshlrev_b32 v3, 2, v0")
    A("s_mov_b32 exec_lo, 0xffff\ns_mov_b32 exec_hi, 0")
    A("buffer_store_dword v127, v3, s[44:47], s60 offen")

def tags():
    A("s_add_u32 s58, s56, 0x01010101\ns_add_u32 s59, s57, 0x9e3779b9")
    A("s_and_b32 s88, s58, 0xffff\ns_and_b32 s89, s58, 0xffff0000")

def tagcheck(bases, acc, t0, t1):
    first = True
    for b in bases:
        A(f"v_xor_b32 v{t0}, s58, v{b+1}")
        A(f"v_xor_b32 v{t1}, s59, v{b+3}")
        if first:
            A(f"v_or_b32 v{acc}, v{t0}, v{t1}"); first = False
        else:
            A(f"v_or3_b32 v{acc}, v{acc}, v{t0}, v{t1}")

def tagcheck_dense(bases, acc, t0, t1):
    first = True
    for b in bases:
        A(f"v_perm_b32 v{t0}, v{b+1}, v{b}, s92")
        A(f"v_perm_b32 v{t1}, v{b+3}, v{b+2}, s93")
        A(f"v_xor_b32 v{t0}, s88, v{t0}")
        A(f"v_xor_b32 v{t1}, s89, v{t1}")
        if first:
            A(f"v_or_b32 v{acc}, v{t0}, v{t1}"); first = False
        else:
            A(f"v_or3_b32 v{acc}, v{acc}, v{t0}, v{t1}")

def tagcheck_16(bases, acc, t0, t1):
    for i in range(0, len(bases), 2):
        b0 = bases[i]
        A(f"v_perm_b32 v{t0}, v{b0+1}, v{b0}, s92")
        A(f"v_xor_b32 v{t0}, s88, v{t0}")
        if i + 1 < len(bases):
            b1 = bases[i + 1]
            A(f"v_perm_b32 v{t1}, v{b1+1}, v{b1}, s92")
            A(f"v_xor_b32 v{t1}, s88, v{t1}")
            if i == 0: A(f"v_or_b32 v{acc}, v{t0}, v{t1}")
            else: A(f"v_or3_b32 v{acc}, v{acc}, v{t0}, v{t1}")
        else:
            if i == 0: A(f"v_mov_b32 v{acc}, v{t0}")
            else: A(f"v_or_b32 v{acc}, v{acc}, v{t0}")

def stamp(dst, srcs, tagv):
    for i in range(4):
        A(f"v_perm_b32 v{dst+i}, v{srcs[i]}, v{tagv}, s{94+i}")

def consts():
    A("s_mov_b32 s92, 0x0c0c0400\ns_mov_b32 s93, 0x04000c0c")
    A("s_mov_b32 s94, 0x07060500\ns_mov_b32 s95, 0x07060501\ns_mov_b32 s96, 0x07060502\ns_mov_b32 s97, 0x07060503")

def exec_mask(lo, hi):
    A(f"s_and_b32 exec_lo, s90, {hex(lo)}" if lo != 0xffffffff else "s_mov_b32 exec_lo, s90")
    if hi is not None:
        A(f"s_and_b32 exec_hi, s91, {hex(hi)}" if hi else "s_mov_b32 exec_hi, 0")
def exec_all():
    A("s_mov_b64 exec, s[90:91]")
skip_n = [0]
def memgrp(fn):
    skip_n[0] += 1
    lb = f"L_sk{skip_n[0]}"
    A(f"s_cbranch_execz {lb}")
    fn()
    LB(lb)
def dry_end():
    A("s_cbranch_execz L_end")

def poll_check(label, bases, tmp, reissue, chk=tagcheck, grp=1):
    LB(label)
    chk(bases, tmp, tmp + 1, tmp + 2)
    if grp >= 4:
        A(f"s_nop 1\nv_or_b32_dpp v{tmp}, v{tmp}, v{tmp} quad_perm:[1,0,3,2] row_mask:0xf bank_mask:0xf")
        A(f"s_nop 1\nv_or_b32_dpp v{tmp}, v{tmp}, v{tmp} quad_perm:[2,3,0,1] row_mask:0xf bank_mask:0xf")
    if grp >= 8:
        A(f"s_nop 1\nv_or_b32_dpp v{tmp}, v{tmp}, v{tmp} row_half_mirror row_mask:0xf bank_mask:0xf")
    A(f"v_cmp_ne_u32 vcc, 0, v{tmp}")
    A("s_nop 1")
    A(f"s_cbranch_vccz {label}_ok")
    A(f"s_sub_u32 s67, s67, 1\ns_cbranch_scc1 {label}_ok")
    A("s_mov_b64 exec, vcc")
    if OPT["slp"]: A(f"s_sleep {OPT['slp']}")
    reissue()
    A("s_waitcnt vmcnt(0)")
    A(f"s_branch {label}")
    LB(label + "_ok")
    exec_all()

def xrow_multi(op, vs, ts_, steps=("v_permlane16_swap_b32", "v_permlane32_swap_b32")):
    for sw in steps:
        for v, t in zip(vs, ts_):
            A(f"v_mov_b32 v{t}, v{v}")
        if len(vs) < 2: A("s_nop 1")
        elif len(vs) < 3: A("s_nop 0")
        for v, t in zip(vs, ts_):
            A(f"{sw} v{v}, v{t}")
        A("s_nop 0")
        for v, t in zip(vs, ts_):
            A(f"{op} v{v}, v{v}, v{t}")

def transpose8(raw, dst, pairs=(0, 1, 2, 3)):
    for v in pairs:
        for w in range(4):
            a = raw + 4 * (2 * v) + w
            b = raw + 4 * (2 * v + 1) + w
            A(f"v_perm_b32 v{dst + 4*(2*w) + v}, v{b}, v{a}, s64")
            A(f"v_perm_b32 v{dst + 4*(2*w+1) + v}, v{b}, v{a}, s65")

def bf16_round_pairs(vs, tmp):
    n = len(vs) // 2
    for i in range(n):
        A(f"v_cvt_pk_bf16_f32 v{tmp[i]}, v{vs[2*i]}, v{vs[2*i+1]}")
    for i in range(n):
        A(f"v_lshlrev_b32 v{vs[2*i]}, 16, v{tmp[i]}")
        A(f"v_and_b32 v{vs[2*i+1]}, 0xffff0000, v{tmp[i]}")

def lds_spin(label, addr_v, off, val):
    A(f"s_cbranch_execz {label}_x")
    LB(label)
    A(f"ds_read_b32 v15, v{addr_v} offset:{off}")
    A("s_waitcnt lgkmcnt(0)")
    A("v_readfirstlane_b32 s66, v15")
    A("s_sub_u32 s67, s67, 1")
    A(f"s_cbranch_scc1 {label}_x")
    A(f"s_cmp_lt_u32 s66, {val}")
    A(f"s_cbranch_scc1 {label}")
    LB(label + "_x")

def rowsum(vs, shifts=(8, 4, 2, 1)):
    for sh in shifts:
        if len(vs) < 3: A("s_nop 1")
        for v in vs:
            A(f"v_add_f32_dpp v{v}, v{v}, v{v} row_ror:{sh} row_mask:0xf bank_mask:0xf")

def dma_voff(dst, stride_sreg_or_shift, t0, t1):
    A(f"v_bfe_u32 v{t0}, v0, 1, 2\nv_bfe_u32 v{t1}, v0, 4, 2\nv_xor_b32 v{t0}, v{t0}, v{t1}")
    A(f"v_and_b32 v{t1}, 1, v0\nv_lshl_add_u32 v{t0}, v{t0}, 1, v{t1}\nv_lshlrev_b32 v{t0}, 4, v{t0}")
    A(f"v_lshrrev_b32 v{t1}, 3, v0")
    if isinstance(stride_sreg_or_shift, int):
        A(f"v_lshl_add_u32 v{dst}, v{t1}, {stride_sreg_or_shift}, v{t0}")
    else:
        A(f"v_mul_lo_u32 v{t1}, v{t1}, {stride_sreg_or_shift}\nv_add_u32 v{dst}, v{t1}, v{t0}")

def tr_addr(dst, q4, t0, t1):
    A(f"v_bfe_u32 v{t0}, v0, 3, 2")
    A(f"v_xor_b32 v{t0}, {q4}, v{t0}")
    A(f"v_lshlrev_b32 v{t0}, 5, v{t0}")
    A(f"v_and_b32 v{t1}, 3, v0\nv_lshl_add_u32 v{t0}, v{t1}, 3, v{t0}")
    A(f"v_lshrrev_b32 v{t1}, 2, v0\nv_lshl_add_u32 v{dst}, v{t1}, 7, v{t0}")

def tr_read(dst, addr_v, base, t):
    A(f"ds_read_b64_tr_b16 v[{dst}:{dst+1}], v{addr_v} offset:{base + 4096*t}")
    A(f"ds_read_b64_tr_b16 v[{dst+2}:{dst+3}], v{addr_v} offset:{base + 4096*t + 2048}")

def mfma(d, a, b, c):
    cs = "0" if c is None else f"v[{c}:{c+3}]"
    A(f"v_mfma_f32_16x16x32_bf16 v[{d}:{d+3}], v[{a}:{a+3}], v[{b}:{b+3}], {cs}")

def select4(xs):
    A(f"v_permlane16_swap_b32 v{xs[0]}, v{xs[1]}")
    A(f"v_permlane16_swap_b32 v{xs[2]}, v{xs[3]}")

NWAVES = 16 if OPT["dry"] else 12
L.append(HEADER.rstrip())
L.append(f"; @launch grid=(256,1,1) block=({NWAVES*64},1,1) lds={LDS_BYTES}")
L.append('.amdgcn_target "amdgcn-amd-amdhsa--gfx950"')
L.append(".text")
L.append(f".globl {NAME}\n.p2align 8\n.type {NAME},@function\n{NAME}:")
A("s_cmp_ge_u32 s2, 256\ns_cbranch_scc1 L_end")
A("s_load_dwordx16 s[4:19], s[0:1], 0")
A("s_load_dwordx8 s[20:27], s[0:1], 64")
A("s_load_dwordx2 s[28:29], s[0:1], 96")
if TS: A("s_memrealtime s[72:73]")
A("v_lshrrev_b32 v1, 6, v0")
A("v_and_b32 v0, 63, v0")
A("s_and_b32 s31, s2, 7")
A("v_readfirstlane_b32 s30, v1")
A("s_lshr_b32 s32, s2, 3")
A("s_lshr_b32 s33, s32, 4")
A("s_and_b32 s34, s32, 15")
A(f"s_mov_b32 s67, {OPT['spin']}")
A("s_mov_b64 s[90:91], -1")
A("v_and_b32 v2, 15, v0")
A("v_lshrrev_b32 v3, 4, v0")
A("s_lshr_b32 s52, s32, 3")
A("s_and_b32 s53, s32, 7")
A("s_lshl_b32 s54, s31, 2\ns_add_u32 s54, s54, s52")
A("s_cmp_lt_u32 s30, 4\ns_cbranch_scc1 L_special")
if OPT["dry"]: A("s_cmp_ge_u32 s30, 12\ns_cbranch_scc1 L_helper")

def fconsts():
    A(f"s_mov_b32 s68, {hex(SCALE)}\ns_mov_b32 s69, {hex(LOG2E)}\ns_mov_b32 s70, {hex(NLOG2E)}")
    A("s_mov_b32 s64, 0x05040100\ns_mov_b32 s65, 0x07060302")
def ts0():
    if TS: A("v_writelane_b32 v127, s72, 0")

C("================= K/V waves =================")
ts_reset()
A("s_sub_u32 s35, s30, 4")
A("s_lshl_b32 s60, s33, 3\ns_add_u32 s60, s60, s31")
A("s_lshl_b32 s60, s60, 23")
A("s_lshl_b32 s61, s34, 16\ns_add_u32 s60, s60, s61")
A("s_add_u32 s60, s60, 0x700000")
A("s_mul_i32 s62, s32, 5\ns_add_u32 s62, s62, s31\ns_add_u32 s62, s62, s35")
A("s_add_u32 s63, s62, 8\ns_and_b32 s62, s62, 15\ns_and_b32 s63, s63, 15")
A("s_lshl_b32 s62, s62, 12\ns_lshl_b32 s63, s63, 12")
A("s_add_u32 s61, s60, s63\ns_add_u32 s60, s60, s62")
A("s_lshl_b32 s62, s31, 1\ns_add_u32 s62, s62, s33\ns_lshl_b32 s62, s62, 13")
A("s_lshl_b32 s63, s35, 8\ns_add_u32 s62, s62, s63")
A(f"s_add_u32 s62, s62, {hex(QX)}")
A("v_lshlrev_b32 v4, 8, v2\nv_lshl_add_u32 v4, v3, 4, v4")
A("v_lshlrev_b32 v5, 10, v3\nv_lshl_add_u32 v5, v2, 4, v5")
A("v_lshlrev_b32 v6, 11, v3\nv_lshl_add_u32 v6, v2, 4, v6")
A("s_waitcnt lgkmcnt(0)")
ts0()
srd(36, 6, 0x8000000)
srd(40, 8, 0x8000000)
srd(44, 28, 0x20000000)
A("s_load_dwordx2 s[56:57], s[28:29], 0")
KR, VR, QR = 16, 48, 80
KVF = OPT["kv_fl"]
def kload(i):
    t, j = i // 4, i % 4
    A(f"buffer_load_dwordx4 v[{KR+4*i}:{KR+4*i+3}], v4, s[36:39], s{60+t} offen offset:{j*64} {KVF}")
def vload(e):
    t, r = e // 4, e % 4
    A(f"buffer_load_dwordx4 v[{VR+4*e}:{VR+4*e+3}], v5, s[40:43], s{60+t} offen offset:{r*256} {KVF}")
def qgather():
    A(f"buffer_load_dwordx4 v[{QR}:{QR+3}], v6, s[44:47], s62 offen sc1")
KA, VB = OPT["ka"], OPT["vb"]
A("s_barrier")
for i in range(KA): kload(i)
fconsts(); consts()
A(f"v_mov_b32 v12, {CNT}\nv_mov_b32 v13, 1")
A("s_lshl_b32 s71, s35, 7")
A(f"s_add_u32 s71, s71, {QS}")
A("v_lshl_add_u32 v10, v2, 3, s71")
A(f"v_and_b32 v11, 3, v2\nv_lshlrev_b32 v11, 8, v11\nv_lshl_add_u32 v11, v3, 4, v11\nv_add_u32 v11, {QS}, v11")
A("s_lshl_b32 s63, s35, 3")
A(f"s_add_u32 s63, s63, {MLW}")
A("v_lshl_add_u32 v9, v2, 6, s63")
A("s_lshl_b32 s63, s35, 11")
A(f"s_add_u32 s63, s63, {OW}")
A("v_lshl_add_u32 v7, v2, 4, s63")
A("s_waitcnt lgkmcnt(0)")
tags()
A("s_barrier")
ts()
for i in range(KA, 8): kload(i)
for e in range(VB): vload(e)
A("s_barrier")
ts()
qgather()
A("s_barrier")
for e in range(VB, 8): vload(e)
A("s_barrier")
ts()
LB("L_d0")
A(f"s_waitcnt vmcnt({8-VB})")
poll_check("L_qchk", [QR], 88, qgather, tagcheck_dense, 4)
ts()
xrow_multi("v_add_f32", [QR, QR + 1, QR + 2, QR + 3], [QR + 4, QR + 5, QR + 6, QR + 7])
A(f"v_cvt_pk_bf16_f32 v{QR}, v{QR}, v{QR+1}\nv_cvt_pk_bf16_f32 v{QR+1}, v{QR+2}, v{QR+3}")
exec_mask(0xffff, 0)
A(f"ds_write_b64 v10, v[{QR}:{QR+1}]")
exec_mask(1, None)
A("ds_add_u32 v12, v13")
exec_all()
lds_spin("L_qspin", 12, 0, 8)
for j in range(4):
    A(f"ds_read_b128 v[{QR+4*j}:{QR+4*j+3}], v11 offset:{64*j}")
for j in range(4):
    A(f"s_waitcnt lgkmcnt({3-j})")
    for t in range(2):
        k = KR + 4 * (4 * t + j)
        mfma(96 + 4 * t, k, QR + 4 * j, None if j == 0 else 96 + 4 * t)
A("s_nop 7\ns_nop 1")
S = list(range(96, 104))
bf16_round_pairs(S, [112, 113, 114, 115])
for v in S: A(f"v_mul_f32 v{v}, s68, v{v}")
bf16_round_pairs(S, [112, 113, 114, 115])
A("v_max3_f32 v116, v96, v97, v98\nv_max3_f32 v116, v116, v99, v100\nv_max3_f32 v116, v116, v101, v102\nv_max_f32 v116, v116, v103")
xrow_multi("v_max_f32", [116], [117])
A("v_mul_f32 v117, s70, v116")
for v in S: A(f"v_fma_f32 v{v}, v{v}, s69, v117")
for v in S: A(f"v_exp_f32 v{v}, v{v}")
A("s_nop 0")
A("v_add_f32 v117, v96, v97\nv_add_f32 v118, v98, v99\nv_add_f32 v119, v100, v101\nv_add_f32 v120, v102, v103")
for i in range(4): A(f"v_cvt_pk_bf16_f32 v{112+i}, v{96+2*i}, v{97+2*i}")
A("v_add_f32 v117, v117, v118\nv_add_f32 v119, v119, v120\nv_add_f32 v117, v117, v119")
xrow_multi("v_add_f32", [117], [118])
exec_mask(0xf, 0)
A("ds_write_b64 v9, v[116:117]")
exec_all()
A("s_lshl_b32 s60, s31, 5")
A("s_cmp_ge_u32 s35, 4\ns_cbranch_scc1 L_setup_g")
A("s_and_b32 s48, s35, 1\ns_lshr_b32 s49, s35, 1")
A("s_lshl_b32 s63, s48, 10\ns_lshl_b32 s71, s49, 3\ns_add_u32 s63, s63, s71")
A(f"s_add_u32 s63, s63, {OW}")
A("v_and_b32 v14, 1, v3\nv_lshrrev_b32 v8, 5, v0\nv_lshlrev_b32 v8, 13, v8\nv_lshl_add_u32 v8, v2, 4, v8\nv_lshl_add_u32 v8, v14, 2, v8\nv_add_u32 v8, s63, v8")
A("s_lshl_b32 s63, s49, 7")
A(f"s_add_u32 s63, s63, {MLW}")
A("v_lshl_add_u32 v9, v14, 6, s63")
A("v_lshlrev_b32 v10, 9, v14\nv_lshl_add_u32 v10, v2, 4, v10")
A(f"s_add_u32 s61, s60, s32\ns_mul_i32 s61, s61, {OBS}")
A(f"s_add_u32 s61, s61, {hex(H1)}")
A("s_lshl_b32 s63, s49, 10\ns_add_u32 s62, s61, s63\ns_lshl_b32 s63, s48, 8\ns_add_u32 s62, s62, s63")
A("s_branch L_setup_x")
LB("L_setup_g")
A("s_sub_u32 s48, s35, 4")
A(f"v_lshrrev_b32 v4, 3, v2\nv_lshl_add_u32 v4, v4, 4, v3\nv_mul_u32_u24 v4, {OBS}, v4")
A("v_and_b32 v14, 7, v2\nv_lshl_add_u32 v5, v14, 4, v4")
A(f"s_mul_i32 s60, s60, {OBS}")
A(f"s_add_u32 s60, s60, {hex(H1)}")
A("s_lshl_b32 s63, s52, 9\ns_add_u32 s60, s60, s63\ns_lshl_b32 s63, s48, 7\ns_add_u32 s60, s60, s63")
for i in range(1, 4): A(f"s_add_u32 s{60+i}, s60, {i*4*OBS}")
A("s_and_b32 s49, s48, 1\ns_lshl_b32 s49, s49, 7\ns_lshr_b32 s71, s48, 1\ns_lshl_b32 s71, s71, 3\ns_add_u32 s49, s49, s71")
A(f"s_add_u32 s49, s49, {OV}")
A("v_lshrrev_b32 v6, 3, v2\nv_lshlrev_b32 v6, 8, v6\nv_lshl_add_u32 v6, v14, 4, v6\nv_add_u32 v6, s49, v6")
LB("L_setup_x")
ts()
dry_end()
LB("L_d1")
done = VB // 2
transpose8(VR, KR, pairs=tuple(range(done)))
for p in range(done, 4):
    A(f"s_waitcnt vmcnt({6-2*p})")
    if p == 3: ts()
    transpose8(VR, KR, pairs=(p,))
A("s_nop 1")
OA = 80
for j in range(8):
    mfma(OA + 4 * j, 112, KR + 4 * j, None)
exec_mask(0xffff, 0)
A("s_nop 1")
for j in range(8):
    A(f"ds_write_b128 v7, v[{OA+4*j}:{OA+4*j+3}] offset:{j*256}")
exec_mask(1, None)
A("ds_add_u32 v12, v13 offset:4")
exec_all()
A("s_cmp_ge_u32 s35, 4\ns_cbranch_scc1 L_kv_gather")
lds_spin("L_ospin", 12, 4, 8)
for k in range(4):
    A(f"ds_read_b128 v[{16+4*k}:{19+4*k}], v9 offset:{16*k}")
for w in range(4):
    for jp in range(2):
        r = 32 + 4 * w + 2 * jp
        A(f"ds_read2st64_b32 v[{r}:{r+1}], v8 offset0:{8*w+2*jp} offset1:{8*w+2*jp+1}")
A("s_waitcnt lgkmcnt(8)")
A("v_max3_f32 v52, v16, v18, v20\nv_max3_f32 v52, v52, v22, v24\nv_max3_f32 v52, v52, v26, v28\nv_max_f32 v52, v52, v30")
A("v_mul_f32 v14, s70, v52")
for w in range(8): A(f"v_fma_f32 v{16+2*w}, v{16+2*w}, s69, v14")
for w in range(8): A(f"v_exp_f32 v{16+2*w}, v{16+2*w}")
A("v_or_b32 v53, s88, v52")
A("v_mul_f32 v54, v16, v17")
for w in range(1, 8): A(f"v_fmac_f32 v54, v{16+2*w}, v{17+2*w}")
A("s_mov_b32 exec_lo, 0")
for w in range(4): A(f"v_mov_b32 v{16+2*w}, v{24+2*w}")
exec_all()
A("s_waitcnt lgkmcnt(0)")
for c in range(4): A(f"v_mul_f32 v{48+c}, v16, v{32+c}")
for w in range(1, 4):
    for c in range(4): A(f"v_fmac_f32 v{48+c}, v{16+2*w}, v{32+4*w+c}")
xrow_multi("v_add_f32", [48, 49, 50, 51], [56, 57, 58, 59], steps=("v_permlane32_swap_b32",))
stamp(48, [48, 49, 50, 51], 53)
A("s_mov_b32 exec_hi, 0")
memgrp(lambda: A("buffer_store_dwordx4 v[48:51], v10, s[44:47], s62 offen sc1"))
A("s_cmp_eq_u32 s48, 0\ns_cbranch_scc1 L_lrec")
exec_mask(1, None)
A("ds_add_u32 v12, v13 offset:20")
A("s_branch L_kv_done")
LB("L_lrec")
A("v_mov_b32 v56, v54\nv_mov_b32 v57, s58\nv_mov_b32 v58, v52\nv_mov_b32 v59, s59")
A("v_and_b32 v14, 1, v3\nv_lshlrev_b32 v11, 5, v14\nv_lshl_add_u32 v11, v2, 4, v11")
A("s_lshl_b32 s63, s49, 6\ns_add_u32 s61, s61, s63\ns_add_u32 s61, s61, 2048")
exec_mask(0x00030003, None)
memgrp(lambda: A("buffer_store_dwordx4 v[56:59], v11, s[44:47], s61 offen sc1"))
exec_mask(1, None)
A("ds_add_u32 v12, v13 offset:20")
dry_end()
A("s_branch L_kv_done")
LB("L_kv_gather")
LB("L_d2")
ts()
lds_spin("L_pspin0", 12, 20, 4)
if OPT["pst"]: lds_spin("L_pspin", 12, 12, OPT["pst"])
GR = 80
def h1gather():
    for i in range(4):
        A(f"buffer_load_dwordx4 v[{GR+4*i}:{GR+4*i+3}], v5, s[44:47], s{60+i} offen sc1")
ts()
memgrp(h1gather)
A("s_waitcnt vmcnt(0)")
ts()
poll_check("L_h1chk", [GR + 4 * i for i in range(4)], 116, h1gather, tagcheck_16, 8)
ts()
for i in range(4): A(f"v_perm_b32 v{100+i}, v{GR+4*i+3}, v{GR+4*i+2}, s93")
A("v_max3_f32 v116, v100, v101, v102\nv_max_f32 v116, v116, v103")
xrow_multi("v_max_f32", [116], [117])
A("v_mul_f32 v117, s70, v116")
for i in range(4): A(f"v_fma_f32 v{100+i}, v{100+i}, s69, v117")
for i in range(4): A(f"v_exp_f32 v{100+i}, v{100+i}")
A("s_nop 0")
for c in range(4): A(f"v_mul_f32 v{104+c}, v100, v{GR+c}")
for i in range(1, 4):
    for c in range(4): A(f"v_fmac_f32 v{104+c}, v{100+i}, v{GR+4*i+c}")
xrow_multi("v_add_f32", [104, 105, 106, 107], [108, 109, 110, 111])
A("v_cvt_pk_bf16_f32 v104, v104, v105\nv_cvt_pk_bf16_f32 v105, v106, v107")
exec_mask(0xffff, 0)
A("ds_write_b64 v6, v[104:105]")
exec_mask(1, None)
A("ds_add_u32 v12, v13 offset:8")
exec_all()
ts()
A("s_cmp_lg_u32 s35, 7\ns_cbranch_scc1 L_kv_done")
A("s_cmp_ge_u32 s2, 128\ns_cbranch_scc1 L_kv_done")
srd(48, 24, 2048)
A("s_lshl_b32 s60, s2, 11")
A(f"s_add_u32 s60, s60, {hex(H2)}")
A("v_lshlrev_b32 v5, 4, v0")
def h2gather():
    A("buffer_load_dwordx4 v[16:19], v5, s[44:47], s60 offen sc1")
    A("buffer_load_dwordx4 v[20:23], v5, s[44:47], s60 offen offset:1024 sc1")
A("v_mov_b32 v8, 0")
A("s_lshl_b32 s62, s2, 3")
memgrp(h2gather)
A("s_waitcnt vmcnt(0)")
poll_check("L_h2chk", [16, 20], 24, h2gather)
ts()
A("v_add_f32 v16, v16, v20\nv_add_f32 v18, v18, v22")
rowsum([16, 18], shifts=(8, 4))
xrow_multi("v_add_f32", [16, 18], [17, 19])
A("s_nop 0")
for i, qp in enumerate(("[1,1,1,1]", "[2,2,2,2]", "[3,3,3,3]")):
    A(f"v_mov_b32_dpp v{24+i}, v16 quad_perm:{qp} row_mask:0xf bank_mask:0xf")
    A(f"v_mov_b32_dpp v{28+i}, v18 quad_perm:{qp} row_mask:0xf bank_mask:0xf")
A("v_cvt_pk_bf16_f32 v32, v16, v24\nv_cvt_pk_bf16_f32 v33, v25, v26")
A("v_cvt_pk_bf16_f32 v34, v18, v28\nv_cvt_pk_bf16_f32 v35, v29, v30")
exec_mask(1, 0)
dry_end()
A("buffer_store_dwordx2 v[32:33], v8, s[48:51], s62 offen")
A("buffer_store_dwordx2 v[34:35], v8, s[48:51], s62 offen offset:1024")
A("s_cmp_lg_u32 s2, 0\ns_cbranch_scc1 L_kv_done")
A("v_mov_b32 v36, s58\nv_mov_b32 v37, s59")
A("buffer_store_dwordx2 v[36:37], v8, s[44:47], 0 offen sc1")
LB("L_kv_done")
if TS:
    A("s_memrealtime s[72:73]\ns_waitcnt lgkmcnt(0)\nv_writelane_b32 v127, s72, 15")
    A("s_waitcnt vmcnt(0)\ns_memrealtime s[72:73]\ns_waitcnt lgkmcnt(0)\nv_writelane_b32 v127, s72, 14")
    A("v_writelane_b32 v127, s67, 13")
ts_dump()
A("s_endpgm")

if OPT["dry"]:
    LB("L_helper")
    C("================= dry-run helpers: warm the instruction cache =================")
    A("s_barrier")
    for v in range(4, 16): A(f"v_mov_b32 v{v}, 0")
    A("s_waitcnt lgkmcnt(0)")
    srd(44, 28, 0x20000000)
    srd(48, 24, 2048)
    A("s_mov_b64 s[90:91], 0\ns_mov_b64 exec, 0")
    A("s_mov_b32 s35, 0\ns_mov_b32 s48, 0\ns_mov_b32 s49, 1\ns_mov_b32 s60, 0\ns_mov_b32 s61, 0\ns_mov_b32 s62, 0\ns_mov_b32 s63, 0")
    A("s_cmp_eq_u32 s30, 12\ns_cbranch_scc1 L_d0")
    A("s_cmp_eq_u32 s30, 13\ns_cbranch_scc1 L_d1")
    A("s_cmp_eq_u32 s30, 15\ns_cbranch_scc1 L_d3")
    A("s_mov_b32 s35, 7\ns_mov_b32 s2, 0")
    A("s_branch L_d2")

LB("L_special")
C("================= special waves =================")
ts_reset()
A("s_and_b32 s49, s54, 7\ns_cmp_lg_u32 s49, 7\ns_cselect_b32 s49, 1, 0")
A("s_lshr_b32 s55, s54, 3\ns_sub_u32 s55, s54, s55")
A("v_and_b32 v6, 1, v2\nv_lshlrev_b32 v6, 10, v6\nv_lshl_add_u32 v6, v3, 3, v6")
A("s_cmp_eq_u32 s30, 0\ns_cbranch_scc1 L_w0")
A("s_cmp_eq_u32 s30, 1\ns_cbranch_scc1 L_w1")
A("s_cmp_eq_u32 s30, 3\ns_cbranch_scc1 L_w3")
LB("L_w_idle")
A("s_waitcnt lgkmcnt(0)")
ts0()
srd(44, 28, 0x20000000)
A("s_load_dwordx2 s[56:57], s[28:29], 0")
if OPT["pre"]:
    A("s_cmp_lg_u32 s30, 2\ns_cbranch_scc1 L_nopre")
    A("v_lshlrev_b32 v5, 4, v0")
    A(f"s_lshl_b32 s60, s31, 5\ns_add_u32 s60, s60, s32\ns_mul_i32 s60, s60, {OBS}\ns_add_u32 s60, s60, {hex(H1)}")
    A(f"s_lshl_b32 s61, s2, 11\ns_add_u32 s61, s61, {hex(H2)}")
    A("buffer_load_dwordx4 v[16:19], v5, s[44:47], s60 offen sc1")
    A("buffer_load_dwordx4 v[20:23], v5, s[44:47], s60 offen offset:1024 sc1")
    A("buffer_load_dwordx4 v[24:27], v5, s[44:47], s61 offen sc1")
    A("buffer_load_dwordx4 v[28:31], v5, s[44:47], s61 offen offset:1024 sc1")
    A("s_mov_b32 exec_lo, 0xff\ns_mov_b32 exec_hi, 0")
    A("buffer_load_dwordx4 v[32:35], v5, s[44:47], s60 offen offset:2048 sc1")
    A("s_mov_b64 exec, -1")
    LB("L_nopre")
A("s_barrier")
fconsts(); consts()
A("s_waitcnt lgkmcnt(0)")
tags()
A("s_barrier\ns_barrier\ns_barrier\ns_barrier")
A("s_branch L_final")

LB("L_w3")
A("v_lshlrev_b32 v5, 4, v0")
A(f"v_mov_b32 v4, {CNT}\nv_mov_b32 v8, 0\nv_mov_b32 v9, 0\nv_mov_b32 v10, 0\nv_mov_b32 v11, 0")
A("ds_write_b128 v4, v[8:11]")
A("ds_write_b128 v4, v[8:11] offset:16")
A("s_waitcnt lgkmcnt(0)")
ts0()
srd(36, 4, 2048)
srd(40, 22, 1024)
A("buffer_load_dwordx4 v[16:19], v5, s[36:39], 0 offen")
A("buffer_load_dwordx4 v[20:23], v5, s[36:39], 0 offen offset:1024")
A("buffer_load_dwordx4 v[24:27], v5, s[40:43], 0 offen")
A("s_barrier")
srd(44, 28, 0x20000000)
A("s_load_dwordx2 s[56:57], s[28:29], 0")
fconsts(); consts()
A("s_waitcnt vmcnt(0)")
for src, dst in ((24, 32), (16, 40), (20, 48)):
    for w in range(4):
        A(f"v_lshlrev_b32 v{dst+2*w}, 16, v{src+w}\nv_and_b32 v{dst+2*w+1}, 0xffff0000, v{src+w}")
for b in range(2):
    for e in range(8):
        A(f"v_mul_f32 v{40+8*b+e}, v{40+8*b+e}, v{32+e}")
bf16_round_pairs(list(range(40, 56)), list(range(16, 24)))
for b in range(2):
    o = 40 + 8 * b
    A(f"v_add_f32 v{o}, v{o}, v{o+1}\nv_add_f32 v{o+2}, v{o+2}, v{o+3}\nv_add_f32 v{o+4}, v{o+4}, v{o+5}\nv_add_f32 v{o+6}, v{o+6}, v{o+7}")
    A(f"v_add_f32 v{o}, v{o}, v{o+2}\nv_add_f32 v{o+4}, v{o+4}, v{o+6}\nv_add_f32 v{o}, v{o}, v{o+4}")
rowsum([40, 48])
xrow_multi("v_add_f32", [40, 48], [41, 49])
A("v_mov_b32 v41, v48")
bf16_round_pairs([40, 41], [16])
A("v_mul_f32 v40, s70, v40\nv_mul_f32 v41, s70, v41")
A("v_exp_f32 v40, v40\nv_exp_f32 v41, v41")
A("s_nop 0")
A("v_add_f32 v40, 1.0, v40\nv_add_f32 v41, 1.0, v41")
A("v_rcp_f32 v40, v40\nv_rcp_f32 v41, v41")
A("s_nop 0")
bf16_round_pairs([40, 41], [16])
A("v_sub_f32 v42, 1.0, v40\nv_sub_f32 v43, 1.0, v41")
bf16_round_pairs([42, 43], [16])
A(f"v_mov_b32 v4, {GT}")
A("ds_write_b128 v4, v[40:43]")
A("s_waitcnt lgkmcnt(0)")
tags()
A("s_barrier\ns_barrier\ns_barrier\ns_barrier")
A("s_branch L_final")

LB("L_w0")
dma_voff(4, 13, 8, 9)
A("s_lshl_b32 s60, s52, 20\ns_lshl_b32 s61, s31, 10\ns_add_u32 s60, s60, s61\ns_lshl_b32 s61, s53, 7\ns_add_u32 s60, s60, s61")
A("s_lshl_b32 s61, s52, 8")
A("s_waitcnt lgkmcnt(0)")
ts0()
srd(40, 10, 0x400000)
for i in range(16):
    A(f"s_mov_b32 m0, {WQI+1024*i}")
    if i: A(f"s_add_u32 s60, s60, {8*8192}")
    else: A("s_nop 0")
    A(f"buffer_load_dwordx4 v4, s[40:43], s60 offen {WF} lds")
srd(36, 4, 2048)
XA, BB, AC = 16, 32, 96
for t in range(4):
    A(f"buffer_load_dwordx2 v[{XA+4*t}:{XA+4*t+1}], v6, s[36:39], s61 offen offset:{64*t}")
    A(f"buffer_load_dwordx2 v[{XA+4*t+2}:{XA+4*t+3}], v6, s[36:39], s61 offen offset:{64*t+32}")
A("s_barrier")
srd(44, 28, 0x20000000)
A("s_load_dwordx2 s[56:57], s[28:29], 0")
fconsts(); consts()
for q4 in range(4): tr_addr(8 + q4, q4, 12, 13)
A(f"v_lshlrev_b32 v12, 2, v0\nv_add_u32 v12, {QT}, v12\nv_and_b32 v13, 31, v0\nv_lshlrev_b32 v13, 4, v13\nv_add_u32 v13, {QT}, v13")
A("v_and_b32 v14, 1, v3\nv_lshlrev_b32 v14, 13, v14\nv_lshl_add_u32 v14, v2, 4, v14")
A("s_lshl_b32 s62, s31, 14\ns_lshl_b32 s63, s52, 11\ns_add_u32 s62, s62, s63\ns_lshl_b32 s63, s53, 8\ns_add_u32 s62, s62, s63")
A(f"s_add_u32 s62, s62, {hex(QX)}")
A("s_waitcnt lgkmcnt(0)")
tags()
A("v_mov_b32 v5, s58")
A("s_waitcnt vmcnt(0)")
ts()
seq = [(q4, t) for q4 in range(4) for t in range(4)]
D = 6
def issue(k):
    q4, t = seq[k]; tr_read(BB + 4 * k, 8 + q4, WQI, t)
for k in range(D): issue(k)
for k in range(16):
    q4, t = seq[k]
    A(f"s_waitcnt lgkmcnt({2*(min(16,k+D)-k)-2})")
    mfma(AC + 4 * q4, XA + 4 * t, BB + 4 * k, None if t == 0 else AC + 4 * q4)
    if k + D < 16: issue(k + D)
A("s_nop 7\ns_nop 1")
for r in range(2): select4([AC + 4 * q + r for q in range(4)])
A("s_nop 0")
for r in range(2): A(f"v_permlane32_swap_b32 v{AC+r}, v{AC+8+r}")
A("s_nop 0")
A(f"ds_write_b32 v12, v{AC}\nds_write_b32 v12, v{AC+1} offset:256")
A("ds_read_b128 v[116:119], v13")
A("s_waitcnt lgkmcnt(0)")
stamp(112, [116, 117, 118, 119], 5)
A("s_mov_b32 exec_hi, 0")
A("buffer_store_dwordx4 v[112:115], v14, s[44:47], s62 offen sc1")
A("s_mov_b64 exec, -1")
ts()
A("s_barrier")
srd(36, 12, 0x400000)
srd(40, 20, 1792 * 1024)
dma_voff(4, 10, 8, 9)
A("s_lshl_b32 s60, s54, 17\ns_lshl_b32 s63, s53, 7\ns_add_u32 s60, s60, s63")
A("s_lshl_b32 s61, s55, 16\ns_add_u32 s61, s61, s63")
A(f"v_mov_b32 v12, {CNT}\nv_mov_b32 v8, 1\nv_mov_b32 v9, 2\nv_mov_b32 v10, 3")
A("s_barrier\ns_barrier\ns_barrier")
ts()
A("s_cmp_eq_u32 s49, 0\ns_cbranch_scc1 L_w0_nowd")
for i in range(8):
    A(f"s_mov_b32 m0, {WDI+1024*i}")
    if i: A(f"s_add_u32 s61, s61, {8*1024}")
    else: A("s_nop 0")
    A(f"buffer_load_dwordx4 v4, s[40:43], s61 offen {WF} lds")
LB("L_w0_nowd")
for i in range(16):
    A(f"s_mov_b32 m0, {WOI+1024*i}")
    if i: A(f"s_add_u32 s60, s60, {8*1024}")
    else: A("s_nop 0")
    A(f"buffer_load_dwordx4 v4, s[36:39], s60 offen {WF} lds")
ts()
A("s_waitcnt vmcnt(16)")
A("ds_write_b32 v12, v8 offset:12")
ts()
A("s_waitcnt vmcnt(8)")
A("ds_write_b32 v12, v9 offset:12")
ts()
A("s_waitcnt vmcnt(0)")
A("ds_write_b32 v12, v10 offset:12")
ts()
A("s_branch L_final")

LB("L_w1")
ts_reset()
A("s_cmp_eq_u32 s49, 0\ns_cbranch_scc1 L_w_idle")
A("s_movk_i32 s60, 3584")
dma_voff(4, "s60", 8, 9)
A("s_mul_i32 s60, s53, 64*3584\ns_lshl_b32 s61, s55, 7\ns_add_u32 s60, s60, s61")
A("s_lshl_b32 s61, s53, 7")
A("s_waitcnt lgkmcnt(0)")
ts0()
srd(36, 16, 512 * 3584)
srd(40, 18, 512 * 3584)
for i in range(8):
    A(f"s_mov_b32 m0, {GI+1024*i}")
    if i: A(f"s_add_u32 s60, s60, {8*3584}")
    else: A("s_nop 0")
    A(f"buffer_load_dwordx4 v4, s[36:39], s60 offen {WF} lds")
    A(f"s_mov_b32 m0, {UI+1024*i}\ns_nop 0")
    A(f"buffer_load_dwordx4 v4, s[40:43], s60 offen {WF} lds")
srd(76, 4, 2048)
for t in range(2):
    A(f"buffer_load_dwordx2 v[{XA+4*t}:{XA+4*t+1}], v6, s[76:79], s61 offen offset:{64*t}")
    A(f"buffer_load_dwordx2 v[{XA+4*t+2}:{XA+4*t+3}], v6, s[76:79], s61 offen offset:{64*t+32}")
A("s_barrier")
srd(44, 28, 0x20000000)
A("s_load_dwordx2 s[56:57], s[28:29], 0")
fconsts(); consts()
for q4 in range(4): tr_addr(8 + q4, q4, 12, 13)
A("v_lshlrev_b32 v5, 4, v0")
A("s_lshl_b32 s62, s55, 13")
A(f"s_add_u32 s62, s62, {hex(HX)}")
A("s_lshl_b32 s63, s53, 10\ns_add_u32 s63, s63, s62")
A("s_add_u32 s61, s62, 4096")
A(f"v_lshlrev_b32 v12, 1, v0\nv_add_u32 v12, {HS}, v12")
A(f"v_mov_b32 v13, {FLH}\nv_mov_b32 v14, 1")
A("s_waitcnt lgkmcnt(0)")
tags()
A("v_mov_b32 v4, s58")
A("s_waitcnt vmcnt(0)")
ts()
seq = [(mat, q4, t) for mat in range(2) for q4 in range(4) for t in range(2)]
BB1 = 24
AC1 = 88
def issue(k):
    mat, q4, t = seq[k]; tr_read(BB1 + 4 * k, 8 + q4, UI if mat else GI, t)
for k in range(D): issue(k)
for k in range(16):
    mat, q4, t = seq[k]
    A(f"s_waitcnt lgkmcnt({2*(min(16,k+D)-k)-2})")
    acc = AC1 + 16 * mat + 4 * q4
    mfma(acc, XA + 4 * t, BB1 + 4 * k, None if t == 0 else acc)
    if k + D < 16: issue(k + D)
A("s_nop 7\ns_nop 1")
for mat in range(2):
    for r in range(2): select4([AC1 + 16 * mat + 4 * q + r for q in range(4)])
A("s_nop 0")
for mat in range(2):
    for r in range(2): A(f"v_permlane32_swap_b32 v{AC1+16*mat+r}, v{AC1+16*mat+8+r}")
A("s_nop 0")
stamp(120, [AC1, AC1 + 1, AC1 + 16, AC1 + 17], 4)
A("buffer_store_dwordx4 v[120:123], v5, s[44:47], s63 offen sc1")
ts()
A("s_barrier\ns_barrier")
HG = 16
def hgather():
    for rb in range(8):
        r = HG + 4 * rb
        A(f"buffer_load_dwordx4 v[{r}:{r+3}], v5, s[44:47], s{62 - rb//4} offen offset:{(rb%4)*1024} sc1")
hgather()
A("s_barrier\ns_barrier")
ts()
LB("L_d3")
A("s_waitcnt vmcnt(0)")
poll_check("L_hchk", [HG + 4 * i for i in range(8)], 96, hgather, tagcheck_dense, 4)
ts()
for step in (16, 8, 4):
    for base in range(HG, HG + step, 4):
        for o in range(4):
            A(f"v_add_f32 v{base+o}, v{base+o}, v{base+step+o}")
bf16_round_pairs([16, 17, 18, 19], [24, 25])
A("v_mul_f32 v24, s70, v16\nv_mul_f32 v25, s70, v17")
A("v_exp_f32 v24, v24\nv_exp_f32 v25, v25")
A("s_nop 0")
A("v_add_f32 v24, 1.0, v24\nv_add_f32 v25, 1.0, v25")
A("v_rcp_f32 v24, v24\nv_rcp_f32 v25, v25")
A("s_nop 0")
A("v_mul_f32 v16, v16, v24\nv_mul_f32 v17, v17, v25")
bf16_round_pairs([16, 17], [24])
A("v_mul_f32 v16, v16, v18\nv_mul_f32 v17, v17, v19")
A("v_cvt_pk_bf16_f32 v24, v16, v17")
A("ds_write_b16 v12, v24")
A("ds_write_b16_d16_hi v12, v24 offset:128")
A("ds_write_b32 v13, v14")
ts()

LB("L_final")
if TS: ts_n[0] = 8
tr_addr(8, "s30", 12, 13)
A(f"v_mov_b32 v12, {CNT}")
A(f"v_and_b32 v9, 1, v2\nv_lshlrev_b32 v10, 7, v9\nv_lshl_add_u32 v10, v3, 3, v10\nv_add_u32 v10, {HS}, v10")
A(f"v_lshlrev_b32 v9, 8, v9\nv_lshl_add_u32 v9, v3, 3, v9\nv_add_u32 v9, {OV}, v9")
A("v_lshrrev_b32 v11, 2, v2\nv_lshlrev_b32 v11, 11, v11\nv_and_b32 v13, 3, v2\nv_lshl_add_u32 v11, v13, 4, v11")
A("s_lshl_b32 s60, s53, 15\ns_lshl_b32 s61, s30, 13\ns_add_u32 s60, s60, s61\ns_lshl_b32 s61, s54, 6\ns_add_u32 s60, s60, s61")
A(f"s_add_u32 s60, s60, {hex(H2)}")
A(f"v_and_b32 v7, 31, v0\nv_mul_u32_u24 v7, {OBS}, v7")
A(f"s_mul_i32 s61, s31, {32*OBS}\ns_lshl_b32 s62, s52, 5\ns_add_u32 s61, s61, s62")
A(f"s_add_u32 s61, s61, {hex(H1+2048)}")
A(f"v_mov_b32 v13, {GT}")
A("ds_read_b128 v[60:63], v13")
A("v_mov_b32 v65, s58\nv_mov_b32 v67, s59")
A("v_mov_b32 v56, 0\nv_mov_b32 v57, 0")
A("s_cmp_eq_u32 s49, 0\ns_cbranch_scc1 L_f_nofb")
lds_spin("L_fs1", 12, 12, 1)
for t in range(2): tr_read(16 + 4 * t, 8, WDI, t)
lds_spin("L_fs2", 12, 16, 1)
for t in range(2):
    A(f"ds_read2_b64 v[{24+4*t}:{27+4*t}], v10 offset0:{8*t} offset1:{8*t+4}")
A("s_waitcnt lgkmcnt(0)")
mfma(56, 24, 16, None)
mfma(56, 28, 20, 56)
A("s_nop 7\ns_nop 1")
A("v_mul_f32 v56, v56, v62\nv_mul_f32 v57, v57, v63")
LB("L_f_nofb")
ts()
lds_spin("L_fs6", 12, 20, 4)
if OPT["pst"]: lds_spin("L_fs5", 12, 12, OPT["pst"])
def lgather():
    A("buffer_load_dwordx4 v[68:71], v7, s[44:47], s61 offen sc1")
memgrp(lgather)
lds_spin("L_fs3", 12, 12, 3)
for t in range(4): tr_read(16 + 4 * t, 8, WOI, t)
ts()
A("s_waitcnt vmcnt(0)")
poll_check("L_lchk", [68], 72, lgather)
A("v_mov_b32 v72, v70")
A("v_mov_b32 v73, v70")
for sh in (8, 4, 2, 1):
    A("s_nop 1")
    A(f"v_max_f32_dpp v73, v73, v73 row_ror:{sh} row_mask:0xf bank_mask:0xf")
A("v_sub_f32 v72, v72, v73\nv_mul_f32 v72, s69, v72\nv_exp_f32 v72, v72\ns_nop 0\nv_mul_f32 v72, v72, v68")
rowsum([72])
A("v_rcp_f32 v72, v72")
A("s_nop 1")
A("v_readlane_b32 s62, v72, 0\nv_readlane_b32 s63, v72, 16")
A("s_nop 1")
A("v_mul_f32 v60, s62, v60\nv_mul_f32 v61, s63, v61")
ts()
lds_spin("L_fs4", 12, 8, 4)
for t in range(4):
    A(f"ds_read2_b64 v[{32+4*t}:{35+4*t}], v9 offset0:{8*t} offset1:{8*t+4}")
for t in range(4):
    A(f"s_waitcnt lgkmcnt({3-t})")
    mfma(48, 32 + 4 * t, 16 + 4 * t, None if t == 0 else 48)
exec_mask(0xffff, 0)
A("s_nop 6")
A("v_fma_f32 v64, v48, v60, v56\nv_fma_f32 v66, v49, v61, v57")
dry_end()
A("buffer_store_dwordx4 v[64:67], v11, s[44:47], s60 offen sc1")
ts()
ts_dump()
LB("L_end")
A("s_endpgm")

L.append(f""".section .rodata,"a"
.p2align 6
.amdhsa_kernel {NAME}
  .amdhsa_next_free_vgpr 128
  .amdhsa_next_free_sgpr 102
  .amdhsa_accum_offset 128
  .amdhsa_group_segment_fixed_size 0
  .amdhsa_kernarg_size 104
  .amdhsa_user_sgpr_count 2
  .amdhsa_user_sgpr_kernarg_segment_ptr 1
  .amdhsa_system_sgpr_workgroup_id_x 1
.end_amdhsa_kernel""")
open(out, "w").write("\n".join(L) + "\n")
```

```python
import sys

OPT = dict(ts=0, kv_fl="nt", w_fl="nt", ka=6, vb=2, spin=400000, pst=2, dry=1, slp=1, pre=0)
out = sys.argv[1]
for a in sys.argv[2:]:
    k, v = a.split("=")
    OPT[k] = int(v) if v.lstrip("-").isdigit() else v.replace("+", " ").replace("none", "")
TS = OPT["ts"]

NAME = "gated_mix__sliding_block_cached__swiglu_ffn__decode_kernel"
HEADER = open("gated_mix__sliding_block_cached__swiglu_ffn__decode.s.ref").read().split("; Override launch")[0]

L = []
def A(s):
    for l in s.split("\n"):
        L.append("    " + l.strip())
def LB(s):
    L.append(s + ":")
def C(s):
    L.append("    ; " + s)

WQI = 0
GI = 16384
UI = 24576
WOI = 32768
WDI = 49152
OW = 57344
MLW = 73728
QS = 73984
OV = 75008
HS = 75520
QT = 75776
GT = 76288
CNT = 76304
CNTQ, CNTO, CNTV, STAGE = CNT, CNT + 4, CNT + 8, CNT + 12
FLH = 76320
LDS_BYTES = 76800
QX = 0x10000
HX = 0x80000
H1 = 0x100000
OBS = OPT.get('obs', 2176)
H2 = 0x400000
TSB = 0x800000

SCALE = 0x3DB504F3
LOG2E = 0x3FB8AA3B
NLOG2E = 0xBFB8AA3B
WF = OPT["w_fl"]

def srd(d, p, nbytes):
    A(f"s_mov_b32 s{d}, s{p}\ns_and_b32 s{d+1}, s{p+1}, 0xffff\ns_mov_b32 s{d+2}, {hex(nbytes)}\ns_mov_b32 s{d+3}, 0x20000")

ts_n = [0]
skip_n = [0]
def ts_reset():
    ts_n[0] = 1 if TS else 0
def ts():
    if not TS: return
    k = ts_n[0]; ts_n[0] += 1
    assert k < 16
    A(f"s_memrealtime s[72:73]\ns_waitcnt lgkmcnt(0)\nv_writelane_b32 v127, s72, {k}")
def ts_dump():
    if not TS: return
    A("s_mov_b64 exec, -1")
    if TS == 2:
        skip_n[0] += 1
        lb = f"L_sk{skip_n[0]}"
        A(f"s_cmp_lg_u32 s2, {OPT.get('dbgwg', 0)}\ns_cbranch_scc1 {lb}")
        A(f"s_cmp_lg_u32 s30, {OPT.get('dbgwave', 11)}\ns_cbranch_scc1 {lb}")
        srd(76, 26, 256)
        A("v_readlane_b32 s60, v127, 0\ns_nop 1\nv_subrev_u32 v127, s60, v127")
        A("v_lshlrev_b32 v3, 2, v0")
        A("s_mov_b32 exec_lo, 0xffff\ns_mov_b32 exec_hi, 0")
        A("buffer_store_dword v127, v3, s[76:79], 0 offen")
        LB(lb)
        return
    A("s_mul_i32 s60, s2, 12\ns_add_u32 s60, s60, s30\ns_lshl_b32 s60, s60, 6")
    A(f"s_add_u32 s60, s60, {hex(TSB)}")
    A("v_lshlrev_b32 v3, 2, v0")
    A("s_mov_b32 exec_lo, 0xffff\ns_mov_b32 exec_hi, 0")
    A("buffer_store_dword v127, v3, s[44:47], s60 offen")

def tags():
    A("s_add_u32 s58, s56, 0x01010101\ns_add_u32 s59, s57, 0x9e3779b9")
    A("s_and_b32 s88, s58, 0xffff\ns_and_b32 s89, s58, 0xffff0000")

def tagcheck(bases, acc, t0, t1):
    first = True
    for b in bases:
        A(f"v_xor_b32 v{t0}, s58, v{b+1}")
        A(f"v_xor_b32 v{t1}, s59, v{b+3}")
        if first:
            A(f"v_or_b32 v{acc}, v{t0}, v{t1}"); first = False
        else:
            A(f"v_or3_b32 v{acc}, v{acc}, v{t0}, v{t1}")

def tagcheck_dense(bases, acc, t0, t1):
    first = True
    for b in bases:
        A(f"v_perm_b32 v{t0}, v{b+1}, v{b}, s92")
        A(f"v_perm_b32 v{t1}, v{b+3}, v{b+2}, s93")
        A(f"v_xor_b32 v{t0}, s88, v{t0}")
        A(f"v_xor_b32 v{t1}, s89, v{t1}")
        if first:
            A(f"v_or_b32 v{acc}, v{t0}, v{t1}"); first = False
        else:
            A(f"v_or3_b32 v{acc}, v{acc}, v{t0}, v{t1}")

def tagcheck_16(bases, acc, t0, t1):
    for i in range(0, len(bases), 2):
        b0 = bases[i]
        A(f"v_perm_b32 v{t0}, v{b0+1}, v{b0}, s92")
        A(f"v_xor_b32 v{t0}, s88, v{t0}")
        if i + 1 < len(bases):
            b1 = bases[i + 1]
            A(f"v_perm_b32 v{t1}, v{b1+1}, v{b1}, s92")
            A(f"v_xor_b32 v{t1}, s88, v{t1}")
            if i == 0: A(f"v_or_b32 v{acc}, v{t0}, v{t1}")
            else: A(f"v_or3_b32 v{acc}, v{acc}, v{t0}, v{t1}")
        else:
            if i == 0: A(f"v_mov_b32 v{acc}, v{t0}")
            else: A(f"v_or_b32 v{acc}, v{acc}, v{t0}")

def stamp(dst, srcs, tagv):
    for i in range(4):
        A(f"v_perm_b32 v{dst+i}, v{srcs[i]}, v{tagv}, s{94+i}")

def consts():
    A("s_mov_b32 s92, 0x0c0c0400\ns_mov_b32 s93, 0x04000c0c")
    A("s_mov_b32 s94, 0x07060500\ns_mov_b32 s95, 0x07060501\ns_mov_b32 s96, 0x07060502\ns_mov_b32 s97, 0x07060503")

def exec_mask(lo, hi):
    A(f"s_and_b32 exec_lo, s90, {hex(lo)}" if lo != 0xffffffff else "s_mov_b32 exec_lo, s90")
    if hi is not None:
        A(f"s_and_b32 exec_hi, s91, {hex(hi)}" if hi else "s_mov_b32 exec_hi, 0")
def exec_all():
    A("s_mov_b64 exec, s[90:91]")
def memgrp(fn):
    skip_n[0] += 1
    lb = f"L_sk{skip_n[0]}"
    A(f"s_cbranch_execz {lb}")
    fn()
    LB(lb)
def dry_end():
    A("s_cbranch_execz L_end")

def poll_check(label, bases, tmp, reissue, chk=tagcheck, grp=1):
    LB(label)
    chk(bases, tmp, tmp + 1, tmp + 2)
    if grp >= 4:
        A(f"s_nop 1\nv_or_b32_dpp v{tmp}, v{tmp}, v{tmp} quad_perm:[1,0,3,2] row_mask:0xf bank_mask:0xf")
        A(f"s_nop 1\nv_or_b32_dpp v{tmp}, v{tmp}, v{tmp} quad_perm:[2,3,0,1] row_mask:0xf bank_mask:0xf")
    if grp >= 8:
        A(f"s_nop 1\nv_or_b32_dpp v{tmp}, v{tmp}, v{tmp} row_half_mirror row_mask:0xf bank_mask:0xf")
    A(f"v_cmp_ne_u32 vcc, 0, v{tmp}")
    A("s_nop 1")
    A(f"s_cbranch_vccz {label}_ok")
    A(f"s_sub_u32 s67, s67, 1\ns_cbranch_scc1 {label}_ok")
    A("s_mov_b64 exec, vcc")
    if OPT["slp"]: A(f"s_sleep {OPT['slp']}")
    reissue()
    A("s_waitcnt vmcnt(0)")
    A(f"s_branch {label}")
    LB(label + "_ok")
    exec_all()

def xrow_multi(op, vs, ts_, steps=("v_permlane16_swap_b32", "v_permlane32_swap_b32")):
    for sw in steps:
        for v, t in zip(vs, ts_):
            A(f"v_mov_b32 v{t}, v{v}")
        if len(vs) < 2: A("s_nop 1")
        elif len(vs) < 3: A("s_nop 0")
        for v, t in zip(vs, ts_):
            A(f"{sw} v{v}, v{t}")
        A("s_nop 0")
        for v, t in zip(vs, ts_):
            A(f"{op} v{v}, v{v}, v{t}")

def transpose8(raw, dst, pairs=(0, 1, 2, 3)):
    for v in pairs:
        for w in range(4):
            a = raw + 4 * (2 * v) + w
            b = raw + 4 * (2 * v + 1) + w
            A(f"v_perm_b32 v{dst + 4*(2*w) + v}, v{b}, v{a}, s64")
            A(f"v_perm_b32 v{dst + 4*(2*w+1) + v}, v{b}, v{a}, s65")

def bf16_round_pairs(vs, tmp):
    n = len(vs) // 2
    for i in range(n):
        A(f"v_cvt_pk_bf16_f32 v{tmp[i]}, v{vs[2*i]}, v{vs[2*i+1]}")
    for i in range(n):
        A(f"v_lshlrev_b32 v{vs[2*i]}, 16, v{tmp[i]}")
        A(f"v_and_b32 v{vs[2*i+1]}, 0xffff0000, v{tmp[i]}")

def lds_spin(label, addr_v, off, val):
    A(f"s_cbranch_execz {label}_x")
    LB(label)
    A(f"ds_read_b32 v15, v{addr_v} offset:{off}")
    A("s_waitcnt lgkmcnt(0)")
    A("v_readfirstlane_b32 s66, v15")
    A("s_sub_u32 s67, s67, 1")
    A(f"s_cbranch_scc1 {label}_x")
    A(f"s_cmp_lt_u32 s66, {val}")
    A(f"s_cbranch_scc1 {label}")
    LB(label + "_x")

def rowsum(vs, shifts=(8, 4, 2, 1)):
    for sh in shifts:
        if len(vs) < 3: A("s_nop 1")
        for v in vs:
            A(f"v_add_f32_dpp v{v}, v{v}, v{v} row_ror:{sh} row_mask:0xf bank_mask:0xf")

def dma_voff(dst, stride_sreg_or_shift, t0, t1):
    A(f"v_bfe_u32 v{t0}, v0, 1, 2\nv_bfe_u32 v{t1}, v0, 4, 2\nv_xor_b32 v{t0}, v{t0}, v{t1}")
    A(f"v_and_b32 v{t1}, 1, v0\nv_lshl_add_u32 v{t0}, v{t0}, 1, v{t1}\nv_lshlrev_b32 v{t0}, 4, v{t0}")
    A(f"v_lshrrev_b32 v{t1}, 3, v0")
    if isinstance(stride_sreg_or_shift, int):
        A(f"v_lshl_add_u32 v{dst}, v{t1}, {stride_sreg_or_shift}, v{t0}")
    else:
        A(f"v_mul_lo_u32 v{t1}, v{t1}, {stride_sreg_or_shift}\nv_add_u32 v{dst}, v{t1}, v{t0}")

def tr_addr(dst, q4, t0, t1):
    A(f"v_bfe_u32 v{t0}, v0, 3, 2")
    A(f"v_xor_b32 v{t0}, {q4}, v{t0}")
    A(f"v_lshlrev_b32 v{t0}, 5, v{t0}")
    A(f"v_and_b32 v{t1}, 3, v0\nv_lshl_add_u32 v{t0}, v{t1}, 3, v{t0}")
    A(f"v_lshrrev_b32 v{t1}, 2, v0\nv_lshl_add_u32 v{dst}, v{t1}, 7, v{t0}")

def tr_read(dst, addr_v, base, t):
    A(f"ds_read_b64_tr_b16 v[{dst}:{dst+1}], v{addr_v} offset:{base + 4096*t}")
    A(f"ds_read_b64_tr_b16 v[{dst+2}:{dst+3}], v{addr_v} offset:{base + 4096*t + 2048}")

def mfma(d, a, b, c):
    cs = "0" if c is None else f"v[{c}:{c+3}]"
    A(f"v_mfma_f32_16x16x32_bf16 v[{d}:{d+3}], v[{a}:{a+3}], v[{b}:{b+3}], {cs}")

def select4(xs):
    A(f"v_permlane16_swap_b32 v{xs[0]}, v{xs[1]}")
    A(f"v_permlane16_swap_b32 v{xs[2]}, v{xs[3]}")

NWAVES = 16 if OPT["dry"] else 12
L.append(HEADER.rstrip())
L.append(f"; @launch grid=(256,1,1) block=({NWAVES*64},1,1) lds={LDS_BYTES}")
L.append('.amdgcn_target "amdgcn-amd-amdhsa--gfx950"')
L.append(".text")
L.append(f".globl {NAME}\n.p2align 8\n.type {NAME},@function\n{NAME}:")
A("s_cmp_ge_u32 s2, 256\ns_cbranch_scc1 L_end")
A("s_load_dwordx16 s[4:19], s[0:1], 0")
A("s_load_dwordx8 s[20:27], s[0:1], 64")
A("s_load_dwordx2 s[28:29], s[0:1], 96")
if TS: A("s_memrealtime s[72:73]")
A("v_lshrrev_b32 v1, 6, v0")
A("v_and_b32 v0, 63, v0")
A("s_and_b32 s31, s2, 7")
A("v_readfirstlane_b32 s30, v1")
A("s_lshr_b32 s32, s2, 3")
A("s_lshr_b32 s33, s32, 4")
A("s_and_b32 s34, s32, 15")
A(f"s_mov_b32 s67, {OPT['spin']}")
A("s_mov_b64 s[90:91], -1")
A("v_and_b32 v2, 15, v0")
A("v_lshrrev_b32 v3, 4, v0")
A("s_lshr_b32 s52, s32, 3")
A("s_and_b32 s53, s32, 7")
A("s_lshl_b32 s54, s31, 2\ns_add_u32 s54, s54, s52")
A("s_cmp_lt_u32 s30, 4\ns_cbranch_scc1 L_special")
if OPT["dry"]: A("s_cmp_ge_u32 s30, 12\ns_cbranch_scc1 L_helper")

def fconsts():
    A(f"s_mov_b32 s68, {hex(SCALE)}\ns_mov_b32 s69, {hex(LOG2E)}\ns_mov_b32 s70, {hex(NLOG2E)}")
    A("s_mov_b32 s64, 0x05040100\ns_mov_b32 s65, 0x07060302")
def ts0():
    if TS: A("v_writelane_b32 v127, s72, 0")

C("================= K/V waves =================")
ts_reset()
A("s_sub_u32 s35, s30, 4")
A("s_lshl_b32 s60, s33, 3\ns_add_u32 s60, s60, s31")
A("s_lshl_b32 s60, s60, 23")
A("s_lshl_b32 s61, s34, 16\ns_add_u32 s60, s60, s61")
A("s_add_u32 s60, s60, 0x700000")
A("s_mul_i32 s62, s32, 5\ns_add_u32 s62, s62, s31\ns_add_u32 s62, s62, s35")
A("s_add_u32 s63, s62, 8\ns_and_b32 s62, s62, 15\ns_and_b32 s63, s63, 15")
A("s_lshl_b32 s62, s62, 12\ns_lshl_b32 s63, s63, 12")
A("s_add_u32 s61, s60, s63\ns_add_u32 s60, s60, s62")
A("s_lshl_b32 s62, s31, 1\ns_add_u32 s62, s62, s33\ns_lshl_b32 s62, s62, 13")
A("s_lshl_b32 s63, s35, 8\ns_add_u32 s62, s62, s63")
A(f"s_add_u32 s62, s62, {hex(QX)}")
A("v_lshlrev_b32 v4, 8, v2\nv_lshl_add_u32 v4, v3, 4, v4")
A("v_lshlrev_b32 v5, 10, v3\nv_lshl_add_u32 v5, v2, 4, v5")
A("v_lshlrev_b32 v6, 11, v3\nv_lshl_add_u32 v6, v2, 4, v6")
A("s_waitcnt lgkmcnt(0)")
ts0()
srd(36, 6, 0x8000000)
srd(40, 8, 0x8000000)
srd(44, 28, 0x20000000)
A("s_load_dwordx2 s[56:57], s[28:29], 0")
KR, VR, QR = 16, 48, 80
KVF = OPT["kv_fl"]
def kload(i):
    t, j = i // 4, i % 4
    A(f"buffer_load_dwordx4 v[{KR+4*i}:{KR+4*i+3}], v4, s[36:39], s{60+t} offen offset:{j*64} {KVF}")
def vload(e):
    t, r = e // 4, e % 4
    A(f"buffer_load_dwordx4 v[{VR+4*e}:{VR+4*e+3}], v5, s[40:43], s{60+t} offen offset:{r*256} {KVF}")
def qgather():
    A(f"buffer_load_dwordx4 v[{QR}:{QR+3}], v6, s[44:47], s62 offen sc1")
KA, VB = OPT["ka"], OPT["vb"]
A("s_barrier")
for i in range(KA): kload(i)
fconsts(); consts()
A(f"v_mov_b32 v12, {CNT}\nv_mov_b32 v13, 1")
A("s_lshl_b32 s71, s35, 7")
A(f"s_add_u32 s71, s71, {QS}")
A("v_lshl_add_u32 v10, v2, 3, s71")
A(f"v_and_b32 v11, 3, v2\nv_lshlrev_b32 v11, 8, v11\nv_lshl_add_u32 v11, v3, 4, v11\nv_add_u32 v11, {QS}, v11")
A("s_lshl_b32 s63, s35, 3")
A(f"s_add_u32 s63, s63, {MLW}")
A("v_lshl_add_u32 v9, v2, 6, s63")
A("s_lshl_b32 s63, s35, 11")
A(f"s_add_u32 s63, s63, {OW}")
A("v_lshl_add_u32 v7, v2, 4, s63")
A("s_waitcnt lgkmcnt(0)")
tags()
A("s_barrier")
ts()
for i in range(KA, 8): kload(i)
for e in range(VB): vload(e)
A("s_barrier")
ts()
qgather()
A("s_barrier")
for e in range(VB, 8): vload(e)
A("s_barrier")
ts()
LB("L_d0")
A(f"s_waitcnt vmcnt({8-VB})")
poll_check("L_qchk", [QR], 88, qgather, tagcheck_dense, 4)
ts()
xrow_multi("v_add_f32", [QR, QR + 1, QR + 2, QR + 3], [QR + 4, QR + 5, QR + 6, QR + 7])
A(f"v_cvt_pk_bf16_f32 v{QR}, v{QR}, v{QR+1}\nv_cvt_pk_bf16_f32 v{QR+1}, v{QR+2}, v{QR+3}")
exec_mask(0xffff, 0)
A(f"ds_write_b64 v10, v[{QR}:{QR+1}]")
exec_mask(1, None)
A("ds_add_u32 v12, v13")
exec_all()
lds_spin("L_qspin", 12, 0, 8)
for j in range(4):
    A(f"ds_read_b128 v[{QR+4*j}:{QR+4*j+3}], v11 offset:{64*j}")
for j in range(4):
    A(f"s_waitcnt lgkmcnt({3-j})")
    for t in range(2):
        k = KR + 4 * (4 * t + j)
        mfma(96 + 4 * t, k, QR + 4 * j, None if j == 0 else 96 + 4 * t)
A("s_nop 7\ns_nop 1")
S = list(range(96, 104))
bf16_round_pairs(S, [112, 113, 114, 115])
for v in S: A(f"v_mul_f32 v{v}, s68, v{v}")
bf16_round_pairs(S, [112, 113, 114, 115])
A("v_max3_f32 v116, v96, v97, v98\nv_max3_f32 v116, v116, v99, v100\nv_max3_f32 v116, v116, v101, v102\nv_max_f32 v116, v116, v103")
xrow_multi("v_max_f32", [116], [117])
A("v_mul_f32 v117, s70, v116")
for v in S: A(f"v_fma_f32 v{v}, v{v}, s69, v117")
for v in S: A(f"v_exp_f32 v{v}, v{v}")
A("s_nop 0")
A("v_add_f32 v117, v96, v97\nv_add_f32 v118, v98, v99\nv_add_f32 v119, v100, v101\nv_add_f32 v120, v102, v103")
for i in range(4): A(f"v_cvt_pk_bf16_f32 v{112+i}, v{96+2*i}, v{97+2*i}")
A("v_add_f32 v117, v117, v118\nv_add_f32 v119, v119, v120\nv_add_f32 v117, v117, v119")
xrow_multi("v_add_f32", [117], [118])
exec_mask(0xf, 0)
A("ds_write_b64 v9, v[116:117]")
exec_all()
A("s_lshl_b32 s60, s31, 5")
A("s_cmp_ge_u32 s35, 4\ns_cbranch_scc1 L_setup_g")
A("s_and_b32 s48, s35, 1\ns_lshr_b32 s49, s35, 1")
A("s_lshl_b32 s63, s48, 10\ns_lshl_b32 s71, s49, 3\ns_add_u32 s63, s63, s71")
A(f"s_add_u32 s63, s63, {OW}")
A("v_and_b32 v14, 1, v3\nv_lshrrev_b32 v8, 5, v0\nv_lshlrev_b32 v8, 13, v8\nv_lshl_add_u32 v8, v2, 4, v8\nv_lshl_add_u32 v8, v14, 2, v8\nv_add_u32 v8, s63, v8")
A("s_lshl_b32 s63, s49, 7")
A(f"s_add_u32 s63, s63, {MLW}")
A("v_lshl_add_u32 v9, v14, 6, s63")
A("v_lshlrev_b32 v10, 9, v14\nv_lshl_add_u32 v10, v2, 4, v10")
A(f"s_add_u32 s61, s60, s32\ns_mul_i32 s61, s61, {OBS}")
A(f"s_add_u32 s61, s61, {hex(H1)}")
A("s_lshl_b32 s63, s49, 10\ns_add_u32 s62, s61, s63\ns_lshl_b32 s63, s48, 8\ns_add_u32 s62, s62, s63")
A("s_branch L_setup_x")
LB("L_setup_g")
A("s_sub_u32 s48, s35, 4")
A(f"v_lshrrev_b32 v4, 3, v2\nv_lshl_add_u32 v4, v4, 4, v3\nv_mul_u32_u24 v4, {OBS}, v4")
A("v_and_b32 v14, 7, v2\nv_lshl_add_u32 v5, v14, 4, v4")
A(f"s_mul_i32 s60, s60, {OBS}")
A(f"s_add_u32 s60, s60, {hex(H1)}")
A("s_lshl_b32 s63, s52, 9\ns_add_u32 s60, s60, s63\ns_lshl_b32 s63, s48, 7\ns_add_u32 s60, s60, s63")
for i in range(1, 4): A(f"s_add_u32 s{60+i}, s60, {i*4*OBS}")
A("s_and_b32 s49, s48, 1\ns_lshl_b32 s49, s49, 7\ns_lshr_b32 s71, s48, 1\ns_lshl_b32 s71, s71, 3\ns_add_u32 s49, s49, s71")
A(f"s_add_u32 s49, s49, {OV}")
A("v_lshrrev_b32 v6, 3, v2\nv_lshlrev_b32 v6, 8, v6\nv_lshl_add_u32 v6, v14, 4, v6\nv_add_u32 v6, s49, v6")
LB("L_setup_x")
ts()
dry_end()
LB("L_d1")
done = VB // 2
transpose8(VR, KR, pairs=tuple(range(done)))
for p in range(done, 4):
    A(f"s_waitcnt vmcnt({6-2*p})")
    if p == 3: ts()
    transpose8(VR, KR, pairs=(p,))
A("s_nop 1")
OA = 80
for j in range(8):
    mfma(OA + 4 * j, 112, KR + 4 * j, None)
exec_mask(0xffff, 0)
A("s_nop 1")
for j in range(8):
    A(f"ds_write_b128 v7, v[{OA+4*j}:{OA+4*j+3}] offset:{j*256}")
exec_mask(1, None)
A("ds_add_u32 v12, v13 offset:4")
exec_all()
A("s_cmp_ge_u32 s35, 4\ns_cbranch_scc1 L_kv_gather")
lds_spin("L_ospin", 12, 4, 8)
for k in range(4):
    A(f"ds_read_b128 v[{16+4*k}:{19+4*k}], v9 offset:{16*k}")
for w in range(4):
    for jp in range(2):
        r = 32 + 4 * w + 2 * jp
        A(f"ds_read2st64_b32 v[{r}:{r+1}], v8 offset0:{8*w+2*jp} offset1:{8*w+2*jp+1}")
A("s_waitcnt lgkmcnt(8)")
A("v_max3_f32 v52, v16, v18, v20\nv_max3_f32 v52, v52, v22, v24\nv_max3_f32 v52, v52, v26, v28\nv_max_f32 v52, v52, v30")
A("v_mul_f32 v14, s70, v52")
for w in range(8): A(f"v_fma_f32 v{16+2*w}, v{16+2*w}, s69, v14")
for w in range(8): A(f"v_exp_f32 v{16+2*w}, v{16+2*w}")
A("v_or_b32 v53, s88, v52")
A("v_mul_f32 v54, v16, v17")
for w in range(1, 8): A(f"v_fmac_f32 v54, v{16+2*w}, v{17+2*w}")
A("s_mov_b32 exec_lo, 0")
for w in range(4): A(f"v_mov_b32 v{16+2*w}, v{24+2*w}")
exec_all()
A("s_waitcnt lgkmcnt(0)")
for c in range(4): A(f"v_mul_f32 v{48+c}, v16, v{32+c}")
for w in range(1, 4):
    for c in range(4): A(f"v_fmac_f32 v{48+c}, v{16+2*w}, v{32+4*w+c}")
xrow_multi("v_add_f32", [48, 49, 50, 51], [56, 57, 58, 59], steps=("v_permlane32_swap_b32",))
stamp(48, [48, 49, 50, 51], 53)
A("s_mov_b32 exec_hi, 0")
memgrp(lambda: A("buffer_store_dwordx4 v[48:51], v10, s[44:47], s62 offen sc1"))
A("s_cmp_eq_u32 s48, 0\ns_cbranch_scc1 L_lrec")
exec_mask(1, None)
A("ds_add_u32 v12, v13 offset:20")
A("s_branch L_kv_done")
LB("L_lrec")
A("v_mov_b32 v56, v54\nv_mov_b32 v57, s58\nv_mov_b32 v58, v52\nv_mov_b32 v59, s59")
A("v_and_b32 v14, 1, v3\nv_lshlrev_b32 v11, 5, v14\nv_lshl_add_u32 v11, v2, 4, v11")
A("s_lshl_b32 s63, s49, 6\ns_add_u32 s61, s61, s63\ns_add_u32 s61, s61, 2048")
exec_mask(0x00030003, None)
memgrp(lambda: A("buffer_store_dwordx4 v[56:59], v11, s[44:47], s61 offen sc1"))
exec_mask(1, None)
A("ds_add_u32 v12, v13 offset:20")
dry_end()
A("s_branch L_kv_done")
LB("L_kv_gather")
LB("L_d2")
ts()
lds_spin("L_pspin0", 12, 20, 4)
if OPT["pst"]: lds_spin("L_pspin", 12, 12, OPT["pst"])
GR = 80
def h1gather():
    for i in range(4):
        A(f"buffer_load_dwordx4 v[{GR+4*i}:{GR+4*i+3}], v5, s[44:47], s{60+i} offen sc1")
ts()
memgrp(h1gather)
A("s_waitcnt vmcnt(0)")
ts()
poll_check("L_h1chk", [GR + 4 * i for i in range(4)], 116, h1gather, tagcheck_16, 8)
ts()
for i in range(4): A(f"v_perm_b32 v{100+i}, v{GR+4*i+3}, v{GR+4*i+2}, s93")
A("v_max3_f32 v116, v100, v101, v102\nv_max_f32 v116, v116, v103")
xrow_multi("v_max_f32", [116], [117])
A("v_mul_f32 v117, s70, v116")
for i in range(4): A(f"v_fma_f32 v{100+i}, v{100+i}, s69, v117")
for i in range(4): A(f"v_exp_f32 v{100+i}, v{100+i}")
A("s_nop 0")
for c in range(4): A(f"v_mul_f32 v{104+c}, v100, v{GR+c}")
for i in range(1, 4):
    for c in range(4): A(f"v_fmac_f32 v{104+c}, v{100+i}, v{GR+4*i+c}")
xrow_multi("v_add_f32", [104, 105, 106, 107], [108, 109, 110, 111])
A("v_cvt_pk_bf16_f32 v104, v104, v105\nv_cvt_pk_bf16_f32 v105, v106, v107")
exec_mask(0xffff, 0)
A("ds_write_b64 v6, v[104:105]")
exec_mask(1, None)
A("ds_add_u32 v12, v13 offset:8")
exec_all()
ts()
A("s_cmp_lg_u32 s35, 7\ns_cbranch_scc1 L_kv_done")
A("s_cmp_ge_u32 s2, 128\ns_cbranch_scc1 L_kv_done")
srd(48, 24, 2048)
A("s_lshl_b32 s60, s2, 11")
A(f"s_add_u32 s60, s60, {hex(H2)}")
A("v_lshlrev_b32 v5, 4, v0")
def h2gather():
    A("buffer_load_dwordx4 v[16:19], v5, s[44:47], s60 offen sc1")
    A("buffer_load_dwordx4 v[20:23], v5, s[44:47], s60 offen offset:1024 sc1")
A("v_mov_b32 v8, 0")
A("s_lshl_b32 s62, s2, 3")
memgrp(h2gather)
A("s_waitcnt vmcnt(0)")
poll_check("L_h2chk", [16, 20], 24, h2gather)
ts()
A("v_add_f32 v16, v16, v20\nv_add_f32 v18, v18, v22")
rowsum([16, 18], shifts=(8, 4))
xrow_multi("v_add_f32", [16, 18], [17, 19])
A("s_nop 0")
for i, qp in enumerate(("[1,1,1,1]", "[2,2,2,2]", "[3,3,3,3]")):
    A(f"v_mov_b32_dpp v{24+i}, v16 quad_perm:{qp} row_mask:0xf bank_mask:0xf")
    A(f"v_mov_b32_dpp v{28+i}, v18 quad_perm:{qp} row_mask:0xf bank_mask:0xf")
A("v_cvt_pk_bf16_f32 v32, v16, v24\nv_cvt_pk_bf16_f32 v33, v25, v26")
A("v_cvt_pk_bf16_f32 v34, v18, v28\nv_cvt_pk_bf16_f32 v35, v29, v30")
exec_mask(1, 0)
dry_end()
A("buffer_store_dwordx2 v[32:33], v8, s[48:51], s62 offen")
A("buffer_store_dwordx2 v[34:35], v8, s[48:51], s62 offen offset:1024")
A("s_cmp_lg_u32 s2, 0\ns_cbranch_scc1 L_kv_done")
A("v_mov_b32 v36, s58\nv_mov_b32 v37, s59")
A("buffer_store_dwordx2 v[36:37], v8, s[44:47], 0 offen sc1")
LB("L_kv_done")
if TS:
    A("s_memrealtime s[72:73]\ns_waitcnt lgkmcnt(0)\nv_writelane_b32 v127, s72, 15")
    A("s_waitcnt vmcnt(0)\ns_memrealtime s[72:73]\ns_waitcnt lgkmcnt(0)\nv_writelane_b32 v127, s72, 14")
    A("v_writelane_b32 v127, s67, 13")
ts_dump()
A("s_endpgm")

if OPT["dry"]:
    LB("L_helper")
    C("================= dry-run helpers: warm the instruction cache =================")
    A("s_barrier")
    for v in range(4, 16): A(f"v_mov_b32 v{v}, 0")
    A("s_waitcnt lgkmcnt(0)")
    srd(44, 28, 0x20000000)
    srd(48, 24, 2048)
    A("s_mov_b64 s[90:91], 0\ns_mov_b64 exec, 0")
    A("s_mov_b32 s35, 0\ns_mov_b32 s48, 0\ns_mov_b32 s49, 1\ns_mov_b32 s60, 0\ns_mov_b32 s61, 0\ns_mov_b32 s62, 0\ns_mov_b32 s63, 0")
    A("s_cmp_eq_u32 s30, 12\ns_cbranch_scc1 L_d0")
    A("s_cmp_eq_u32 s30, 13\ns_cbranch_scc1 L_d1")
    A("s_cmp_eq_u32 s30, 15\ns_cbranch_scc1 L_d3")
    A("s_mov_b32 s35, 7\ns_mov_b32 s2, 0")
    A("s_branch L_d2")

LB("L_special")
C("================= special waves =================")
ts_reset()
A("s_and_b32 s49, s54, 7\ns_cmp_lg_u32 s49, 7\ns_cselect_b32 s49, 1, 0")
A("s_lshr_b32 s55, s54, 3\ns_sub_u32 s55, s54, s55")
A("v_and_b32 v6, 1, v2\nv_lshlrev_b32 v6, 10, v6\nv_lshl_add_u32 v6, v3, 3, v6")
A("s_cmp_eq_u32 s30, 0\ns_cbranch_scc1 L_w0")
A("s_cmp_eq_u32 s30, 1\ns_cbranch_scc1 L_w1")
A("s_cmp_eq_u32 s30, 3\ns_cbranch_scc1 L_w3")
LB("L_w_idle")
A("s_waitcnt lgkmcnt(0)")
ts0()
srd(44, 28, 0x20000000)
A("s_load_dwordx2 s[56:57], s[28:29], 0")
if OPT["pre"]:
    A("s_cmp_lg_u32 s30, 2\ns_cbranch_scc1 L_nopre")
    A("v_lshlrev_b32 v5, 4, v0")
    A(f"s_lshl_b32 s60, s31, 5\ns_add_u32 s60, s60, s32\ns_mul_i32 s60, s60, {OBS}\ns_add_u32 s60, s60, {hex(H1)}")
    A(f"s_lshl_b32 s61, s2, 11\ns_add_u32 s61, s61, {hex(H2)}")
    A("buffer_load_dwordx4 v[16:19], v5, s[44:47], s60 offen sc1")
    A("buffer_load_dwordx4 v[20:23], v5, s[44:47], s60 offen offset:1024 sc1")
    A("buffer_load_dwordx4 v[24:27], v5, s[44:47], s61 offen sc1")
    A("buffer_load_dwordx4 v[28:31], v5, s[44:47], s61 offen offset:1024 sc1")
    A("s_mov_b32 exec_lo, 0xff\ns_mov_b32 exec_hi, 0")
    A("buffer_load_dwordx4 v[32:35], v5, s[44:47], s60 offen offset:2048 sc1")
    A("s_mov_b64 exec, -1")
    LB("L_nopre")
A("s_barrier")
fconsts(); consts()
A("s_waitcnt lgkmcnt(0)")
tags()
A("s_barrier\ns_barrier\ns_barrier\ns_barrier")
A("s_branch L_final")

LB("L_w3")
A("v_lshlrev_b32 v5, 4, v0")
A(f"v_mov_b32 v4, {CNT}\nv_mov_b32 v8, 0\nv_mov_b32 v9, 0\nv_mov_b32 v10, 0\nv_mov_b32 v11, 0")
A("ds_write_b128 v4, v[8:11]")
A("ds_write_b128 v4, v[8:11] offset:16")
A("s_waitcnt lgkmcnt(0)")
ts0()
srd(36, 4, 2048)
srd(40, 22, 1024)
A("buffer_load_dwordx4 v[16:19], v5, s[36:39], 0 offen")
A("buffer_load_dwordx4 v[20:23], v5, s[36:39], 0 offen offset:1024")
A("buffer_load_dwordx4 v[24:27], v5, s[40:43], 0 offen")
A("s_barrier")
srd(44, 28, 0x20000000)
A("s_load_dwordx2 s[56:57], s[28:29], 0")
fconsts(); consts()
A("s_waitcnt vmcnt(0)")
for src, dst in ((24, 32), (16, 40), (20, 48)):
    for w in range(4):
        A(f"v_lshlrev_b32 v{dst+2*w}, 16, v{src+w}\nv_and_b32 v{dst+2*w+1}, 0xffff0000, v{src+w}")
for b in range(2):
    for e in range(8):
        A(f"v_mul_f32 v{40+8*b+e}, v{40+8*b+e}, v{32+e}")
bf16_round_pairs(list(range(40, 56)), list(range(16, 24)))
for b in range(2):
    o = 40 + 8 * b
    A(f"v_add_f32 v{o}, v{o}, v{o+1}\nv_add_f32 v{o+2}, v{o+2}, v{o+3}\nv_add_f32 v{o+4}, v{o+4}, v{o+5}\nv_add_f32 v{o+6}, v{o+6}, v{o+7}")
    A(f"v_add_f32 v{o}, v{o}, v{o+2}\nv_add_f32 v{o+4}, v{o+4}, v{o+6}\nv_add_f32 v{o}, v{o}, v{o+4}")
rowsum([40, 48])
xrow_multi("v_add_f32", [40, 48], [41, 49])
A("v_mov_b32 v41, v48")
bf16_round_pairs([40, 41], [16])
A("v_mul_f32 v40, s70, v40\nv_mul_f32 v41, s70, v41")
A("v_exp_f32 v40, v40\nv_exp_f32 v41, v41")
A("s_nop 0")
A("v_add_f32 v40, 1.0, v40\nv_add_f32 v41, 1.0, v41")
A("v_rcp_f32 v40, v40\nv_rcp_f32 v41, v41")
A("s_nop 0")
bf16_round_pairs([40, 41], [16])
A("v_sub_f32 v42, 1.0, v40\nv_sub_f32 v43, 1.0, v41")
bf16_round_pairs([42, 43], [16])
A(f"v_mov_b32 v4, {GT}")
A("ds_write_b128 v4, v[40:43]")
A("s_waitcnt lgkmcnt(0)")
tags()
A("s_barrier\ns_barrier\ns_barrier\ns_barrier")
A("s_branch L_final")

LB("L_w0")
dma_voff(4, 13, 8, 9)
A("s_lshl_b32 s60, s52, 20\ns_lshl_b32 s61, s31, 10\ns_add_u32 s60, s60, s61\ns_lshl_b32 s61, s53, 7\ns_add_u32 s60, s60, s61")
A("s_lshl_b32 s61, s52, 8")
A("s_waitcnt lgkmcnt(0)")
ts0()
srd(40, 10, 0x400000)
for i in range(16):
    A(f"s_mov_b32 m0, {WQI+1024*i}")
    if i: A(f"s_add_u32 s60, s60, {8*8192}")
    else: A("s_nop 0")
    A(f"buffer_load_dwordx4 v4, s[40:43], s60 offen {WF} lds")
srd(36, 4, 2048)
XA, BB, AC = 16, 32, 96
for t in range(4):
    A(f"buffer_load_dwordx2 v[{XA+4*t}:{XA+4*t+1}], v6, s[36:39], s61 offen offset:{64*t}")
    A(f"buffer_load_dwordx2 v[{XA+4*t+2}:{XA+4*t+3}], v6, s[36:39], s61 offen offset:{64*t+32}")
A("s_barrier")
srd(44, 28, 0x20000000)
A("s_load_dwordx2 s[56:57], s[28:29], 0")
fconsts(); consts()
for q4 in range(4): tr_addr(8 + q4, q4, 12, 13)
A(f"v_lshlrev_b32 v12, 2, v0\nv_add_u32 v12, {QT}, v12\nv_and_b32 v13, 31, v0\nv_lshlrev_b32 v13, 4, v13\nv_add_u32 v13, {QT}, v13")
A("v_and_b32 v14, 1, v3\nv_lshlrev_b32 v14, 13, v14\nv_lshl_add_u32 v14, v2, 4, v14")
A("s_lshl_b32 s62, s31, 14\ns_lshl_b32 s63, s52, 11\ns_add_u32 s62, s62, s63\ns_lshl_b32 s63, s53, 8\ns_add_u32 s62, s62, s63")
A(f"s_add_u32 s62, s62, {hex(QX)}")
A("s_waitcnt lgkmcnt(0)")
tags()
A("v_mov_b32 v5, s58")
A("s_waitcnt vmcnt(0)")
ts()
seq = [(q4, t) for q4 in range(4) for t in range(4)]
D = 6
def issue(k):
    q4, t = seq[k]; tr_read(BB + 4 * k, 8 + q4, WQI, t)
for k in range(D): issue(k)
for k in range(16):
    q4, t = seq[k]
    A(f"s_waitcnt lgkmcnt({2*(min(16,k+D)-k)-2})")
    mfma(AC + 4 * q4, XA + 4 * t, BB + 4 * k, None if t == 0 else AC + 4 * q4)
    if k + D < 16: issue(k + D)
A("s_nop 7\ns_nop 1")
for r in range(2): select4([AC + 4 * q + r for q in range(4)])
A("s_nop 0")
for r in range(2): A(f"v_permlane32_swap_b32 v{AC+r}, v{AC+8+r}")
A("s_nop 0")
A(f"ds_write_b32 v12, v{AC}\nds_write_b32 v12, v{AC+1} offset:256")
A("ds_read_b128 v[116:119], v13")
A("s_waitcnt lgkmcnt(0)")
stamp(112, [116, 117, 118, 119], 5)
A("s_mov_b32 exec_hi, 0")
A("buffer_store_dwordx4 v[112:115], v14, s[44:47], s62 offen sc1")
A("s_mov_b64 exec, -1")
ts()
A("s_barrier")
srd(36, 12, 0x400000)
srd(40, 20, 1792 * 1024)
dma_voff(4, 10, 8, 9)
A("s_lshl_b32 s60, s54, 17\ns_lshl_b32 s63, s53, 7\ns_add_u32 s60, s60, s63")
A("s_lshl_b32 s61, s55, 16\ns_add_u32 s61, s61, s63")
A(f"v_mov_b32 v12, {CNT}\nv_mov_b32 v8, 1\nv_mov_b32 v9, 2\nv_mov_b32 v10, 3")
A("s_barrier\ns_barrier\ns_barrier")
ts()
A("s_cmp_eq_u32 s49, 0\ns_cbranch_scc1 L_w0_nowd")
for i in range(8):
    A(f"s_mov_b32 m0, {WDI+1024*i}")
    if i: A(f"s_add_u32 s61, s61, {8*1024}")
    else: A("s_nop 0")
    A(f"buffer_load_dwordx4 v4, s[40:43], s61 offen {WF} lds")
LB("L_w0_nowd")
for i in range(16):
    A(f"s_mov_b32 m0, {WOI+1024*i}")
    if i: A(f"s_add_u32 s60, s60, {8*1024}")
    else: A("s_nop 0")
    A(f"buffer_load_dwordx4 v4, s[36:39], s60 offen {WF} lds")
ts()
A("s_waitcnt vmcnt(16)")
A("ds_write_b32 v12, v8 offset:12")
ts()
A("s_waitcnt vmcnt(8)")
A("ds_write_b32 v12, v9 offset:12")
ts()
A("s_waitcnt vmcnt(0)")
A("ds_write_b32 v12, v10 offset:12")
ts()
A("s_branch L_final")

LB("L_w1")
ts_reset()
A("s_cmp_eq_u32 s49, 0\ns_cbranch_scc1 L_w_idle")
A("s_movk_i32 s60, 3584")
dma_voff(4, "s60", 8, 9)
A("s_mul_i32 s60, s53, 64*3584\ns_lshl_b32 s61, s55, 7\ns_add_u32 s60, s60, s61")
A("s_lshl_b32 s61, s53, 7")
A("s_waitcnt lgkmcnt(0)")
ts0()
srd(36, 16, 512 * 3584)
srd(40, 18, 512 * 3584)
for i in range(8):
    A(f"s_mov_b32 m0, {GI+1024*i}")
    if i: A(f"s_add_u32 s60, s60, {8*3584}")
    else: A("s_nop 0")
    A(f"buffer_load_dwordx4 v4, s[36:39], s60 offen {WF} lds")
    A(f"s_mov_b32 m0, {UI+1024*i}\ns_nop 0")
    A(f"buffer_load_dwordx4 v4, s[40:43], s60 offen {WF} lds")
srd(76, 4, 2048)
for t in range(2):
    A(f"buffer_load_dwordx2 v[{XA+4*t}:{XA+4*t+1}], v6, s[76:79], s61 offen offset:{64*t}")
    A(f"buffer_load_dwordx2 v[{XA+4*t+2}:{XA+4*t+3}], v6, s[76:79], s61 offen offset:{64*t+32}")
A("s_barrier")
srd(44, 28, 0x20000000)
A("s_load_dwordx2 s[56:57], s[28:29], 0")
fconsts(); consts()
for q4 in range(4): tr_addr(8 + q4, q4, 12, 13)
A("v_lshlrev_b32 v5, 4, v0")
A("s_lshl_b32 s62, s55, 13")
A(f"s_add_u32 s62, s62, {hex(HX)}")
A("s_lshl_b32 s63, s53, 10\ns_add_u32 s63, s63, s62")
A("s_add_u32 s61, s62, 4096")
A(f"v_lshlrev_b32 v12, 1, v0\nv_add_u32 v12, {HS}, v12")
A(f"v_mov_b32 v13, {FLH}\nv_mov_b32 v14, 1")
A("s_waitcnt lgkmcnt(0)")
tags()
A("v_mov_b32 v4, s58")
A("s_waitcnt vmcnt(0)")
ts()
seq = [(mat, q4, t) for mat in range(2) for q4 in range(4) for t in range(2)]
BB1 = 24
AC1 = 88
def issue(k):
    mat, q4, t = seq[k]; tr_read(BB1 + 4 * k, 8 + q4, UI if mat else GI, t)
for k in range(D): issue(k)
for k in range(16):
    mat, q4, t = seq[k]
    A(f"s_waitcnt lgkmcnt({2*(min(16,k+D)-k)-2})")
    acc = AC1 + 16 * mat + 4 * q4
    mfma(acc, XA + 4 * t, BB1 + 4 * k, None if t == 0 else acc)
    if k + D < 16: issue(k + D)
A("s_nop 7\ns_nop 1")
for mat in range(2):
    for r in range(2): select4([AC1 + 16 * mat + 4 * q + r for q in range(4)])
A("s_nop 0")
for mat in range(2):
    for r in range(2): A(f"v_permlane32_swap_b32 v{AC1+16*mat+r}, v{AC1+16*mat+8+r}")
A("s_nop 0")
stamp(120, [AC1, AC1 + 1, AC1 + 16, AC1 + 17], 4)
A("buffer_store_dwordx4 v[120:123], v5, s[44:47], s63 offen sc1")
ts()
A("s_barrier\ns_barrier")
HG = 16
def hgather():
    for rb in range(8):
        r = HG + 4 * rb
        A(f"buffer_load_dwordx4 v[{r}:{r+3}], v5, s[44:47], s{62 - rb//4} offen offset:{(rb%4)*1024} sc1")
hgather()
A("s_barrier\ns_barrier")
ts()
LB("L_d3")
A("s_waitcnt vmcnt(0)")
poll_check("L_hchk", [HG + 4 * i for i in range(8)], 96, hgather, tagcheck_dense, 4)
ts()
for step in (16, 8, 4):
    for base in range(HG, HG + step, 4):
        for o in range(4):
            A(f"v_add_f32 v{base+o}, v{base+o}, v{base+step+o}")
bf16_round_pairs([16, 17, 18, 19], [24, 25])
A("v_mul_f32 v24, s70, v16\nv_mul_f32 v25, s70, v17")
A("v_exp_f32 v24, v24\nv_exp_f32 v25, v25")
A("s_nop 0")
A("v_add_f32 v24, 1.0, v24\nv_add_f32 v25, 1.0, v25")
A("v_rcp_f32 v24, v24\nv_rcp_f32 v25, v25")
A("s_nop 0")
A("v_mul_f32 v16, v16, v24\nv_mul_f32 v17, v17, v25")
bf16_round_pairs([16, 17], [24])
A("v_mul_f32 v16, v16, v18\nv_mul_f32 v17, v17, v19")
A("v_cvt_pk_bf16_f32 v24, v16, v17")
A("ds_write_b16 v12, v24")
A("ds_write_b16_d16_hi v12, v24 offset:128")
A("ds_write_b32 v13, v14")
ts()

LB("L_final")
if TS: ts_n[0] = 8
tr_addr(8, "s30", 12, 13)
A(f"v_mov_b32 v12, {CNT}")
A(f"v_and_b32 v9, 1, v2\nv_lshlrev_b32 v10, 7, v9\nv_lshl_add_u32 v10, v3, 3, v10\nv_add_u32 v10, {HS}, v10")
A(f"v_lshlrev_b32 v9, 8, v9\nv_lshl_add_u32 v9, v3, 3, v9\nv_add_u32 v9, {OV}, v9")
A("v_lshrrev_b32 v11, 2, v2\nv_lshlrev_b32 v11, 11, v11\nv_and_b32 v13, 3, v2\nv_lshl_add_u32 v11, v13, 4, v11")
A("s_lshl_b32 s60, s53, 15\ns_lshl_b32 s61, s30, 13\ns_add_u32 s60, s60, s61\ns_lshl_b32 s61, s54, 6\ns_add_u32 s60, s60, s61")
A(f"s_add_u32 s60, s60, {hex(H2)}")
A(f"v_and_b32 v7, 31, v0\nv_mul_u32_u24 v7, {OBS}, v7")
A(f"s_mul_i32 s61, s31, {32*OBS}\ns_lshl_b32 s62, s52, 5\ns_add_u32 s61, s61, s62")
A(f"s_add_u32 s61, s61, {hex(H1+2048)}")
A(f"v_mov_b32 v13, {GT}")
A("ds_read_b128 v[60:63], v13")
A("v_mov_b32 v65, s58\nv_mov_b32 v67, s59")
A("v_mov_b32 v56, 0\nv_mov_b32 v57, 0")
A("s_cmp_eq_u32 s49, 0\ns_cbranch_scc1 L_f_nofb")
lds_spin("L_fs1", 12, 12, 1)
for t in range(2): tr_read(16 + 4 * t, 8, WDI, t)
lds_spin("L_fs2", 12, 16, 1)
for t in range(2):
    A(f"ds_read2_b64 v[{24+4*t}:{27+4*t}], v10 offset0:{8*t} offset1:{8*t+4}")
A("s_waitcnt lgkmcnt(0)")
mfma(56, 24, 16, None)
mfma(56, 28, 20, 56)
A("s_nop 7\ns_nop 1")
A("v_mul_f32 v56, v56, v62\nv_mul_f32 v57, v57, v63")
LB("L_f_nofb")
ts()
lds_spin("L_fs6", 12, 20, 4)
if OPT["pst"]: lds_spin("L_fs5", 12, 12, OPT["pst"])
def lgather():
    A("buffer_load_dwordx4 v[68:71], v7, s[44:47], s61 offen sc1")
memgrp(lgather)
lds_spin("L_fs3", 12, 12, 3)
for t in range(4): tr_read(16 + 4 * t, 8, WOI, t)
ts()
A("s_waitcnt vmcnt(0)")
poll_check("L_lchk", [68], 72, lgather)
A("v_mov_b32 v72, v70")
A("v_mov_b32 v73, v70")
for sh in (8, 4, 2, 1):
    A("s_nop 1")
    A(f"v_max_f32_dpp v73, v73, v73 row_ror:{sh} row_mask:0xf bank_mask:0xf")
A("v_sub_f32 v72, v72, v73\nv_mul_f32 v72, s69, v72\nv_exp_f32 v72, v72\ns_nop 0\nv_mul_f32 v72, v72, v68")
rowsum([72])
A("v_rcp_f32 v72, v72")
A("s_nop 1")
A("v_readlane_b32 s62, v72, 0\nv_readlane_b32 s63, v72, 16")
A("s_nop 1")
A("v_mul_f32 v60, s62, v60\nv_mul_f32 v61, s63, v61")
ts()
lds_spin("L_fs4", 12, 8, 4)
for t in range(4):
    A(f"ds_read2_b64 v[{32+4*t}:{35+4*t}], v9 offset0:{8*t} offset1:{8*t+4}")
for t in range(4):
    A(f"s_waitcnt lgkmcnt({3-t})")
    mfma(48, 32 + 4 * t, 16 + 4 * t, None if t == 0 else 48)
exec_mask(0xffff, 0)
A("s_nop 6")
A("v_fma_f32 v64, v48, v60, v56\nv_fma_f32 v66, v49, v61, v57")
dry_end()
A("buffer_store_dwordx4 v[64:67], v11, s[44:47], s60 offen sc1")
ts()
ts_dump()
LB("L_end")
A("s_endpgm")

L.append(f""".section .rodata,"a"
.p2align 6
.amdhsa_kernel {NAME}
  .amdhsa_next_free_vgpr 128
  .amdhsa_next_free_sgpr 102
  .amdhsa_accum_offset 128
  .amdhsa_group_segment_fixed_size 0
  .amdhsa_kernarg_size 104
  .amdhsa_user_sgpr_count 2
  .amdhsa_user_sgpr_kernarg_segment_ptr 1
  .amdhsa_system_sgpr_workgroup_id_x 1
.end_amdhsa_kernel""")
open(out, "w").write("\n".join(L) + "\n")
```

```python
import sys

OPT = dict(ts=0, kv_fl="nt", w_fl="nt", ka=4, vb=1, spin=400000, pst=0, dry=1, slp=1, pre=0, prew=0, dual=1, bper=8, spre=0)
out = sys.argv[1]
for a in sys.argv[2:]:
    k, v = a.split("=")
    OPT[k] = int(v) if v.lstrip("-").isdigit() else v.replace("+", " ").replace("none", "")
TS = OPT["ts"]

NAME = "gated_mix__sliding_block_cached__swiglu_ffn__decode_kernel"
HEADER = open("gated_mix__sliding_block_cached__swiglu_ffn__decode.s.ref").read().split("; Override launch")[0]

L = []
def A(s):
    for l in s.split("\n"):
        L.append("    " + l.strip())
def LB(s):
    L.append(s + ":")
def C(s):
    L.append("    ; " + s)

VI = 0
WQI = 65536
GI = 81920
UI = 90112
WOI = 98304
WDI = 114688
PS = 122880
QS = 124928
OV = 125952
HS = 126464
QT = 126720
MX = 127232
LS = 127360
GT = 127488
CNT = 127504
O_Q, O_M, O_P, O_STAGE, O_H, O_PUB, O_V, O_I, O_VL = 0, 4, 8, 12, 16, 20, 24, 28, 32
LDS_BYTES = 127744
WB = OPT.get('wb', 0) << 20
QX = WB + 0x10000
HX = WB + 0x80000
H1 = WB + 0x100000
OBS = OPT.get('obs', 2176)
H2 = WB + 0x400000
TSB = 0x800000

SCALE = 0x3DB504F3
LOG2E = 0x3FB8AA3B
NLOG2E = 0xBFB8AA3B
WF = OPT["w_fl"]

def srd(d, p, nbytes):
    A(f"s_mov_b32 s{d}, s{p}\ns_and_b32 s{d+1}, s{p+1}, 0xffff\ns_mov_b32 s{d+2}, {hex(nbytes)}\ns_mov_b32 s{d+3}, 0x20000")

ts_n = [0]
skip_n = [0]
def ts_reset():
    ts_n[0] = 1 if TS else 0
def ts():
    if not TS: return
    k = ts_n[0]; ts_n[0] += 1
    assert k < 16
    A(f"s_memrealtime s[72:73]\ns_waitcnt lgkmcnt(0)\nv_writelane_b32 v127, s72, {k}")
def ts_dump():
    if not TS: return
    A("s_mov_b64 exec, -1")
    if TS == 2:
        skip_n[0] += 1
        lb = f"L_sk{skip_n[0]}"
        A(f"s_cmp_lg_u32 s2, {OPT.get('dbgwg', 0)}\ns_cbranch_scc1 {lb}")
        A(f"s_cmp_lg_u32 s30, {OPT.get('dbgwave', 11)}\ns_cbranch_scc1 {lb}")
        srd(76, 26, 256)
        A("v_readlane_b32 s60, v127, 0\ns_nop 1\nv_subrev_u32 v127, s60, v127")
        A("v_lshlrev_b32 v3, 2, v0")
        A("s_mov_b32 exec_lo, 0xffff\ns_mov_b32 exec_hi, 0")
        A("buffer_store_dword v127, v3, s[76:79], 0 offen")
        LB(lb)
        return
    A("s_mul_i32 s60, s2, 12\ns_add_u32 s60, s60, s30\ns_lshl_b32 s60, s60, 6")
    A(f"s_add_u32 s60, s60, {hex(TSB)}")
    A("v_lshlrev_b32 v3, 2, v0")
    A("s_mov_b32 exec_lo, 0xffff\ns_mov_b32 exec_hi, 0")
    A("buffer_store_dword v127, v3, s[44:47], s60 offen")

def tags():
    A("s_add_u32 s58, s56, 0x01010101\ns_add_u32 s59, s57, 0x9e3779b9")
    A("s_and_b32 s88, s58, 0xffff\ns_and_b32 s89, s58, 0xffff0000")

def tagcheck(bases, acc, t0, t1):
    first = True
    for b in bases:
        A(f"v_xor_b32 v{t0}, s58, v{b+1}")
        A(f"v_xor_b32 v{t1}, s59, v{b+3}")
        if first:
            A(f"v_or_b32 v{acc}, v{t0}, v{t1}"); first = False
        else:
            A(f"v_or3_b32 v{acc}, v{acc}, v{t0}, v{t1}")

def tagcheck_dense(bases, acc, t0, t1):
    first = True
    for b in bases:
        A(f"v_perm_b32 v{t0}, v{b+1}, v{b}, s92")
        A(f"v_perm_b32 v{t1}, v{b+3}, v{b+2}, s93")
        A(f"v_xor_b32 v{t0}, s88, v{t0}")
        A(f"v_xor_b32 v{t1}, s89, v{t1}")
        if first:
            A(f"v_or_b32 v{acc}, v{t0}, v{t1}"); first = False
        else:
            A(f"v_or3_b32 v{acc}, v{acc}, v{t0}, v{t1}")

def tagcheck_16(bases, acc, t0, t1):
    for i in range(0, len(bases), 2):
        b0 = bases[i]
        A(f"v_perm_b32 v{t0}, v{b0+1}, v{b0}, s92")
        A(f"v_xor_b32 v{t0}, s88, v{t0}")
        if i + 1 < len(bases):
            b1 = bases[i + 1]
            A(f"v_perm_b32 v{t1}, v{b1+1}, v{b1}, s92")
            A(f"v_xor_b32 v{t1}, s88, v{t1}")
            if i == 0: A(f"v_or_b32 v{acc}, v{t0}, v{t1}")
            else: A(f"v_or3_b32 v{acc}, v{acc}, v{t0}, v{t1}")
        else:
            if i == 0: A(f"v_mov_b32 v{acc}, v{t0}")
            else: A(f"v_or_b32 v{acc}, v{acc}, v{t0}")

def stamp(dst, srcs, tagv):
    for i in range(4):
        A(f"v_perm_b32 v{dst+i}, v{srcs[i]}, v{tagv}, s{94+i}")

def consts():
    A("s_mov_b32 s92, 0x0c0c0400\ns_mov_b32 s93, 0x04000c0c")
    A("s_mov_b32 s94, 0x07060500\ns_mov_b32 s95, 0x07060501\ns_mov_b32 s96, 0x07060502\ns_mov_b32 s97, 0x07060503")

def exec_mask(lo, hi):
    A(f"s_and_b32 exec_lo, s90, {hex(lo)}" if lo != 0xffffffff else "s_mov_b32 exec_lo, s90")
    if hi is not None:
        A(f"s_and_b32 exec_hi, s91, {hex(hi)}" if hi else "s_mov_b32 exec_hi, 0")
def exec_all():
    A("s_mov_b64 exec, s[90:91]")
def memgrp(fn):
    skip_n[0] += 1
    lb = f"L_sk{skip_n[0]}"
    A(f"s_cbranch_execz {lb}")
    fn()
    LB(lb)
def dry_end():
    A("s_cbranch_execz L_end")

MIR = 0x800000 if OPT.get('wb', 0) else 0x1000000
def ws_srds():
    srd(44, 28, 0x20000000)
    A(f"s_add_u32 s80, s28, {hex(MIR)}\ns_addc_u32 s81, s29, 0\ns_and_b32 s81, s81, 0xffff\ns_mov_b32 s82, {hex(0x20000000-MIR)}\ns_mov_b32 s83, 0x20000")
    A("s_mov_b32 s74, 0")

def publish(data, voff, soff, off=0, dual=True):
    o = f" offset:{off}" if off else ""
    if dual and OPT["dual"]:
        A(f"buffer_store_dwordx4 v[{data}:{data+3}], v{voff}, s[44:47], {soff} offen{o}")
    A(f"buffer_store_dwordx4 v[{data}:{data+3}], v{voff}, s[80:83], {soff} offen{o} sc1")

def poll_check(label, bases, tmp, reissue, chk=tagcheck, grp=1, dual=True):
    dual = dual and OPT["dual"]
    LB(label)
    chk(bases, tmp, tmp + 1, tmp + 2)
    if grp >= 4:
        A(f"s_nop 1\nv_or_b32_dpp v{tmp}, v{tmp}, v{tmp} quad_perm:[1,0,3,2] row_mask:0xf bank_mask:0xf")
        A(f"s_nop 1\nv_or_b32_dpp v{tmp}, v{tmp}, v{tmp} quad_perm:[2,3,0,1] row_mask:0xf bank_mask:0xf")
    if grp >= 8:
        A(f"s_nop 1\nv_or_b32_dpp v{tmp}, v{tmp}, v{tmp} row_half_mirror row_mask:0xf bank_mask:0xf")
    A(f"v_cmp_ne_u32 vcc, 0, v{tmp}")
    A("s_nop 1")
    A(f"s_cbranch_vccz {label}_ok")
    if OPT.get("nopoll"): A(f"s_branch {label}_ok")
    A(f"s_sub_u32 s67, s67, 1\ns_cbranch_scc1 {label}_ok")
    A("s_mov_b64 exec, vcc")
    if OPT["slp"]: A(f"s_sleep {OPT['slp']}")
    if dual:
        A(f"s_add_u32 s74, s74, 1\ns_and_b32 s75, s74, {OPT['bper']-1}\ns_cbranch_scc0 {label}_b")
        reissue("s[44:47]")
        A("s_waitcnt vmcnt(0)")
        A(f"s_branch {label}")
        LB(label + "_b")
    reissue("s[80:83]")
    A("s_waitcnt vmcnt(0)")
    A(f"s_branch {label}")
    LB(label + "_ok")
    exec_all()

def xrow_multi(op, vs, ts_, steps=("v_permlane16_swap_b32", "v_permlane32_swap_b32")):
    for sw in steps:
        for v, t in zip(vs, ts_):
            A(f"v_mov_b32 v{t}, v{v}")
        if len(vs) < 2: A("s_nop 1")
        elif len(vs) < 3: A("s_nop 0")
        for v, t in zip(vs, ts_):
            A(f"{sw} v{v}, v{t}")
        A("s_nop 0")
        for v, t in zip(vs, ts_):
            A(f"{op} v{v}, v{v}, v{t}")

def transpose8(raw, dst, pairs=(0, 1, 2, 3)):
    for v in pairs:
        for w in range(4):
            a = raw + 4 * (2 * v) + w
            b = raw + 4 * (2 * v + 1) + w
            A(f"v_perm_b32 v{dst + 4*(2*w) + v}, v{b}, v{a}, s64")
            A(f"v_perm_b32 v{dst + 4*(2*w+1) + v}, v{b}, v{a}, s65")

def bf16_round_pairs(vs, tmp):
    n = len(vs) // 2
    for i in range(n):
        A(f"v_cvt_pk_bf16_f32 v{tmp[i]}, v{vs[2*i]}, v{vs[2*i+1]}")
    for i in range(n):
        A(f"v_lshlrev_b32 v{vs[2*i]}, 16, v{tmp[i]}")
        A(f"v_and_b32 v{vs[2*i+1]}, 0xffff0000, v{tmp[i]}")

def lds_spin(label, addr_v, off, val):
    A(f"s_cbranch_execz {label}_x")
    LB(label)
    A(f"ds_read_b32 v15, v{addr_v} offset:{off}")
    A("s_waitcnt lgkmcnt(0)")
    A("v_readfirstlane_b32 s66, v15")
    A("s_sub_u32 s67, s67, 1")
    A(f"s_cbranch_scc1 {label}_x")
    A(f"s_cmp_lt_u32 s66, {val}")
    A(f"s_cbranch_scc1 {label}")
    LB(label + "_x")

def rowsum(vs, shifts=(8, 4, 2, 1)):
    for sh in shifts:
        if len(vs) < 3: A("s_nop 1")
        for v in vs:
            A(f"v_add_f32_dpp v{v}, v{v}, v{v} row_ror:{sh} row_mask:0xf bank_mask:0xf")

def dma_voff(dst, stride_sreg_or_shift, t0, t1):
    A(f"v_bfe_u32 v{t0}, v0, 1, 2\nv_bfe_u32 v{t1}, v0, 4, 2\nv_xor_b32 v{t0}, v{t0}, v{t1}")
    A(f"v_and_b32 v{t1}, 1, v0\nv_lshl_add_u32 v{t0}, v{t0}, 1, v{t1}\nv_lshlrev_b32 v{t0}, 4, v{t0}")
    A(f"v_lshrrev_b32 v{t1}, 3, v0")
    if isinstance(stride_sreg_or_shift, int):
        A(f"v_lshl_add_u32 v{dst}, v{t1}, {stride_sreg_or_shift}, v{t0}")
    else:
        A(f"v_mul_lo_u32 v{t1}, v{t1}, {stride_sreg_or_shift}\nv_add_u32 v{dst}, v{t1}, v{t0}")

def tr_addr(dst, q4, t0, t1, base):
    A(f"v_bfe_u32 v{t0}, v0, 3, 2")
    A(f"v_xor_b32 v{t0}, {q4}, v{t0}")
    A(f"v_lshlrev_b32 v{t0}, 5, v{t0}")
    A(f"v_and_b32 v{t1}, 3, v0\nv_lshl_add_u32 v{t0}, v{t1}, 3, v{t0}")
    A(f"v_lshrrev_b32 v{t1}, 2, v0\nv_lshl_add_u32 v{dst}, v{t1}, 7, v{t0}")
    A(f"v_add_u32 v{dst}, {base}, v{dst}")

def tr_read(dst, addr_v, off, t):
    A(f"ds_read_b64_tr_b16 v[{dst}:{dst+1}], v{addr_v} offset:{off + 4096*t}")
    A(f"ds_read_b64_tr_b16 v[{dst+2}:{dst+3}], v{addr_v} offset:{off + 4096*t + 2048}")

def lds_spin2(label, addr_v, off, val):
    A(f"s_cbranch_execz {label}_x")
    LB(label)
    A(f"ds_read_b64 v[14:15], v{addr_v} offset:{off}")
    A("s_waitcnt lgkmcnt(0)")
    A("v_min_u32 v15, v14, v15")
    A("s_sub_u32 s67, s67, 1")
    A("v_readfirstlane_b32 s66, v15")
    A(f"s_cbranch_scc1 {label}_x")
    A(f"s_cmp_lt_u32 s66, {val}")
    A(f"s_cbranch_scc1 {label}")
    LB(label + "_x")

def bump(off):
    exec_mask(1, 0)
    A(f"ds_add_u32 v12, v13 offset:{off}")
    exec_all()

def mfma(d, a, b, c):
    cs = "0" if c is None else f"v[{c}:{c+3}]"
    A(f"v_mfma_f32_16x16x32_bf16 v[{d}:{d+3}], v[{a}:{a+3}], v[{b}:{b+3}], {cs}")

def select4(xs):
    A(f"v_permlane16_swap_b32 v{xs[0]}, v{xs[1]}")
    A(f"v_permlane16_swap_b32 v{xs[2]}, v{xs[3]}")

NWAVES = 16 if OPT["dry"] else 12
L.append(HEADER.rstrip())
L.append(f"; @launch grid=(256,1,1) block=({NWAVES*64},1,1) lds={LDS_BYTES}")
L.append('.amdgcn_target "amdgcn-amd-amdhsa--gfx950"')
L.append(".text")
L.append(f".globl {NAME}\n.p2align 8\n.type {NAME},@function\n{NAME}:")
A("s_cmp_ge_u32 s2, 256\ns_cbranch_scc1 L_end")
if OPT.get("xorwg"): A(f"s_xor_b32 s2, s2, {OPT['xorwg']}")
A("s_load_dwordx16 s[4:19], s[0:1], 0")
A("s_load_dwordx8 s[20:27], s[0:1], 64")
A("s_load_dwordx2 s[28:29], s[0:1], 96")
if TS: A("s_memrealtime s[72:73]")
A("v_lshrrev_b32 v1, 6, v0")
A("v_and_b32 v0, 63, v0")
A("s_and_b32 s31, s2, 7")
A("v_readfirstlane_b32 s30, v1")
A("s_lshr_b32 s32, s2, 3")
A("s_lshr_b32 s33, s32, 4")
A("s_and_b32 s34, s32, 15")
A(f"s_mov_b32 s67, {OPT['spin']}")
A("s_mov_b64 s[90:91], -1")
A("v_and_b32 v2, 15, v0")
A("v_lshrrev_b32 v3, 4, v0")
A("s_lshr_b32 s52, s32, 3")
A("s_and_b32 s53, s32, 7")
A("s_lshl_b32 s54, s31, 2\ns_add_u32 s54, s54, s52")
A("s_lshl_b32 s50, s33, 3\ns_add_u32 s50, s50, s31\ns_lshl_b32 s50, s50, 23")
A("s_lshl_b32 s51, s34, 16\ns_add_u32 s50, s50, s51\ns_add_u32 s50, s50, 0x700000")
A(f"s_mul_i32 s51, s32, {OPT.get('rotm', 5)}\ns_add_u32 s51, s51, s31")
A("s_cmp_lt_u32 s30, 4\ns_cbranch_scc1 L_special")
if OPT["dry"]: A("s_cmp_ge_u32 s30, 12\ns_cbranch_scc1 L_helper")

def fconsts():
    A(f"s_mov_b32 s68, {hex(SCALE)}\ns_mov_b32 s69, {hex(LOG2E)}\ns_mov_b32 s70, {hex(NLOG2E)}")
def ts0():
    if TS: A("v_writelane_b32 v127, s72, 0")

C("================= K / attention waves =================")
ts_reset()
A("s_sub_u32 s35, s30, 4")
A("s_lshl_b32 s62, s35, 1\ns_add_u32 s62, s62, s51")
A("s_add_u32 s63, s62, 1\ns_and_b32 s62, s62, 15\ns_and_b32 s63, s63, 15")
A("s_lshl_b32 s62, s62, 12\ns_lshl_b32 s63, s63, 12")
A("s_add_u32 s61, s50, s63\ns_add_u32 s60, s50, s62")
A("v_lshlrev_b32 v4, 8, v2\nv_lshl_add_u32 v4, v3, 4, v4")
A("s_waitcnt lgkmcnt(0)")
ts0()
srd(36, 6, 0x8000000)
KR, QR = 16, 80
KVF = OPT["kv_fl"]
def kload(i):
    t, j = i // 4, i % 4
    A(f"buffer_load_dwordx4 v[{KR+4*i}:{KR+4*i+3}], v4, s[36:39], s{60+t} offen offset:{j*64} {KVF}")
FA = "s[44:47]" if OPT["dual"] else "s[80:83]"
def qgather(sr=FA):
    A(f"buffer_load_dwordx4 v[{QR}:{QR+3}], v6, {sr}, s62 offen sc1")
KA, VB = OPT["ka"], OPT["vb"]
A("s_barrier")
for i in range(KA): kload(i)
ws_srds()
A("s_load_dwordx2 s[56:57], s[28:29], 0")
fconsts(); consts()
A("s_lshl_b32 s62, s31, 1\ns_add_u32 s62, s62, s33\ns_lshl_b32 s62, s62, 13")
A("s_lshl_b32 s63, s35, 8\ns_add_u32 s62, s62, s63")
A(f"s_add_u32 s62, s62, {hex(QX)}")
A("v_lshlrev_b32 v6, 11, v3\nv_lshl_add_u32 v6, v2, 4, v6")
A(f"v_mov_b32 v12, {CNT}\nv_mov_b32 v13, 1")
A("v_and_b32 v14, 3, v2")
A(f"s_lshl_b32 s71, s35, 7\ns_add_u32 s71, s71, {QS}")
A("v_lshl_add_u32 v10, v2, 3, s71")
A(f"v_lshlrev_b32 v11, 8, v14\nv_lshl_add_u32 v11, v3, 4, v11\nv_add_u32 v11, {QS}, v11")
A(f"v_lshlrev_b32 v8, 5, v14\nv_add_u32 v8, {MX}, v8")
A("s_lshl_b32 s71, s35, 2\nv_add_u32 v9, s71, v8")
A(f"v_lshl_add_u32 v7, v3, 2, v14\nv_lshlrev_b32 v7, 4, v7\nv_add_u32 v7, {PS}, v7")
A("s_lshl_b32 s71, s35, 8\nv_add_u32 v5, s71, v7")
A("v_bfe_u32 v120, v0, 2, 3\nv_xor_b32 v120, s35, v120\nv_lshlrev_b32 v120, 5, v120")
A("v_and_b32 v121, 3, v0\nv_lshl_add_u32 v120, v121, 3, v120\nv_lshrrev_b32 v121, 2, v0\nv_lshl_add_u32 v120, v121, 8, v120")
A("v_lshlrev_b32 v121, 9, v14\nv_lshl_add_u32 v121, v3, 4, v121")
A(f"s_lshl_b32 s76, s31, 5\ns_add_u32 s49, s76, s32\ns_mul_i32 s49, s49, {OBS}\ns_add_u32 s49, s49, {hex(H1)}")
A("s_lshl_b32 s71, s35, 6\ns_add_u32 s48, s49, s71")
A(f"v_lshrrev_b32 v122, 3, v2\nv_lshl_add_u32 v122, v122, 4, v3\nv_mul_u32_u24 v122, {OBS}, v122")
A("v_and_b32 v123, 7, v2\nv_lshl_add_u32 v122, v123, 4, v122")
A(f"s_mul_i32 s76, s76, {OBS}\ns_add_u32 s76, s76, {hex(H1)}")
A("s_lshl_b32 s71, s52, 9\ns_add_u32 s76, s76, s71\ns_lshl_b32 s71, s35, 7\ns_add_u32 s76, s76, s71")
for i in range(1, 4): A(f"s_add_u32 s{76+i}, s76, {i*4*OBS}")
A(f"s_lshl_b32 s71, s35, 6\ns_add_u32 s71, s71, {OV}")
A("v_lshrrev_b32 v124, 3, v2\nv_lshlrev_b32 v124, 8, v124\nv_lshl_add_u32 v124, v123, 3, v124\nv_add_u32 v124, s71, v124")
A("s_waitcnt lgkmcnt(0)")
tags()
A("s_barrier")
ts()
for i in range(KA, 8): kload(i)
if OPT["prew"]:
    A("s_not_b32 s71, s58")
    A("v_mov_b32 v100, s71\nv_mov_b32 v101, s71\nv_mov_b32 v102, s71\nv_mov_b32 v103, s71")
    A("v_lshrrev_b32 v101, 8, v101")
    A("s_mov_b32 exec_lo, 0x000f000f\ns_mov_b32 exec_hi, 0x000f000f")
    A(f"buffer_store_dwordx4 v[100:103], v121, {FA}, s48 offen" + ("" if OPT["dual"] else " sc1"))
    A("s_cmp_lg_u32 s35, 7\ns_cbranch_scc1 L_pw1")
    A("v_lshlrev_b32 v104, 4, v2")
    A("s_mov_b32 exec_lo, 0xff\ns_mov_b32 exec_hi, 0")
    A(f"buffer_store_dwordx4 v[100:103], v104, {FA}, s49 offen offset:2048" + ("" if OPT["dual"] else " sc1"))
    LB("L_pw1")
    A("s_mov_b64 exec, -1")
A("s_barrier")
A("s_barrier")
ts()
if not OPT.get("nog"): qgather()
A("s_barrier")
ts()
LB("L_d0")
A("s_waitcnt vmcnt(0)")
poll_check("L_qchk", [QR], 88, qgather, tagcheck_dense, 4)
ts()
for c in range(4): A(f"v_and_b32 v{QR+c}, 0xffffff00, v{QR+c}")
xrow_multi("v_add_f32", [QR, QR + 1, QR + 2, QR + 3], [QR + 4, QR + 5, QR + 6, QR + 7])
A(f"v_cvt_pk_bf16_f32 v{QR}, v{QR}, v{QR+1}\nv_cvt_pk_bf16_f32 v{QR+1}, v{QR+2}, v{QR+3}")
exec_mask(0xffff, 0)
A(f"ds_write_b64 v10, v[{QR}:{QR+1}]")
bump(O_Q)
lds_spin("L_qspin", 12, O_Q, 8)
for j in range(4):
    A(f"ds_read_b128 v[{QR+4*j}:{QR+4*j+3}], v11 offset:{64*j}")
for j in range(4):
    A(f"s_waitcnt lgkmcnt({3-j})")
    for t in range(2):
        k = KR + 4 * (4 * t + j)
        mfma(96 + 4 * t, k, QR + 4 * j, None if j == 0 else 96 + 4 * t)
A("s_nop 7\ns_nop 1")
S = list(range(96, 104))
bf16_round_pairs(S, [112, 113, 114, 115])
for v in S: A(f"v_mul_f32 v{v}, s68, v{v}")
bf16_round_pairs(S, [112, 113, 114, 115])
A("v_max3_f32 v116, v96, v97, v98\nv_max3_f32 v116, v116, v99, v100\nv_max3_f32 v116, v116, v101, v102\nv_max_f32 v116, v116, v103")
xrow_multi("v_max_f32", [116], [117])
exec_mask(0xf, 0)
A("ds_write_b32 v9, v116")
bump(O_M)
lds_spin("L_mspin", 12, O_M, 8)
A("ds_read_b128 v[104:107], v8\nds_read_b128 v[108:111], v8 offset:16")
A("s_waitcnt lgkmcnt(0)")
A("v_max3_f32 v116, v104, v105, v106\nv_max3_f32 v116, v116, v107, v108\nv_max3_f32 v116, v116, v109, v110\nv_max_f32 v116, v116, v111")
A("v_mul_f32 v117, s70, v116")
for v in S: A(f"v_fma_f32 v{v}, v{v}, s69, v117")
for v in S: A(f"v_exp_f32 v{v}, v{v}")
A("v_or_b32 v125, s88, v116")
for i in range(4): A(f"v_cvt_pk_bf16_f32 v{112+i}, v{96+2*i}, v{97+2*i}")
A("v_add_f32 v117, v96, v97\nv_add_f32 v118, v98, v99\nv_add_f32 v119, v100, v101\nv_add_f32 v104, v102, v103")
A("v_add_f32 v117, v117, v118\nv_add_f32 v119, v119, v104\nv_add_f32 v117, v117, v119")
exec_mask(0x000f000f, 0x000f000f)
A("ds_write_b128 v5, v[112:115]")
exec_all()
xrow_multi("v_add_f32", [117], [118])
exec_mask(0xf, 0)
A("ds_write_b32 v9, v117 offset:128")
bump(O_P)
lds_spin("L_pspin1", 12, O_P, 8)
PR, VO = 16, 48
for k in range(8):
    A(f"ds_read_b128 v[{PR+4*k}:{PR+4*k+3}], v7 offset:{256*k}")
A("s_cmp_lg_u32 s35, 7\ns_cbranch_scc1 L_nol")
A("ds_read_b128 v[104:107], v8 offset:128\nds_read_b128 v[108:111], v8 offset:144")
A("v_lshlrev_b32 v10, 4, v2")
A("v_mov_b32 v97, s58\nv_mov_b32 v98, v116\nv_mov_b32 v99, s59")
A("s_waitcnt lgkmcnt(0)")
A("v_add_f32 v104, v104, v105\nv_add_f32 v106, v106, v107\nv_add_f32 v108, v108, v109\nv_add_f32 v110, v110, v111")
A("v_add_f32 v104, v104, v106\nv_add_f32 v108, v108, v110\nv_add_f32 v96, v104, v108")
exec_mask(0xf, 0)
memgrp(lambda: publish(96, 10, "s49", 2048))
exec_all()
LB("L_nol")
ts()
dry_end()
LB("L_d1")
def vstep(ks, first):
    for k in ks:
        A(f"ds_read_b64_tr_b16 v[{VO+4*k}:{VO+4*k+1}], v120 offset:{VI + 8192*k}")
        A(f"ds_read_b64_tr_b16 v[{VO+4*k+2}:{VO+4*k+3}], v120 offset:{VI + 8192*k + 4096}")
    for i, k in enumerate(ks):
        A(f"s_waitcnt lgkmcnt({2*(len(ks)-1-i)})")
        mfma(80, VO + 4 * k, PR + 4 * k, None if (first and i == 0) else 80)
lds_spin2("L_v1", 12, O_VL, 4)
vstep([0, 1, 2, 3], True)
lds_spin2("L_v2", 12, O_VL, 6)
vstep([4, 5], False)
lds_spin2("L_v3", 12, O_VL, 8)
ts()
vstep([6, 7], False)
exec_mask(0x000f000f, 0x000f000f)
A("s_nop 5")
stamp(84, [80, 81, 82, 83], 125)
memgrp(lambda: publish(84, 121, "s48"))
bump(O_PUB)
ts()
A("s_cmp_ge_u32 s35, 4\ns_cbranch_scc1 L_kv_h2")
lds_spin("L_pspin0", 12, O_PUB, 8)
if OPT["pst"]: lds_spin("L_pspin", 12, O_STAGE, OPT["pst"])
GR = 80
def h1gather(sr=FA):
    for i in range(4):
        A(f"buffer_load_dwordx4 v[{GR+4*i}:{GR+4*i+3}], v122, {sr}, s{76+i} offen sc1")
ts()
memgrp(h1gather)
A("s_waitcnt vmcnt(0)")
ts()
poll_check("L_h1chk", [GR + 4 * i for i in range(4)], 116, h1gather, tagcheck_16, 8)
ts()
for i in range(4): A(f"v_perm_b32 v{100+i}, v{GR+4*i+3}, v{GR+4*i+2}, s93")
A("v_max3_f32 v116, v100, v101, v102\nv_max_f32 v116, v116, v103")
xrow_multi("v_max_f32", [116], [117])
A("v_mul_f32 v117, s70, v116")
for i in range(4): A(f"v_fma_f32 v{100+i}, v{100+i}, s69, v117")
for i in range(4): A(f"v_exp_f32 v{100+i}, v{100+i}")
for c in range(16): A(f"v_and_b32 v{GR+c}, 0xffffff00, v{GR+c}")
for c in range(4): A(f"v_mul_f32 v{104+c}, v100, v{GR+c}")
for i in range(1, 4):
    for c in range(4): A(f"v_fmac_f32 v{104+c}, v{100+i}, v{GR+4*i+c}")
xrow_multi("v_add_f32", [104, 105, 106, 107], [108, 109, 110, 111])
A("v_cvt_pk_bf16_f32 v104, v104, v105\nv_cvt_pk_bf16_f32 v105, v106, v107")
exec_mask(0xffff, 0)
A("ds_write_b64 v124, v[104:105]")
bump(O_V)
ts()
dry_end()
A("s_branch L_kv_done")
LB("L_kv_h2")
A("s_cmp_lg_u32 s35, 7\ns_cbranch_scc1 L_kv_done")
A("s_cmp_ge_u32 s2, 128\ns_cbranch_scc1 L_kv_done")
LB("L_d2")
if TS: ts_n[0] = 12
srd(48, 24, 2048)
A("s_lshl_b32 s60, s2, 11")
A(f"s_add_u32 s60, s60, {hex(H2)}")
A("v_lshlrev_b32 v5, 4, v0")
def h2gather(sr="s[80:83]"):
    A(f"buffer_load_dwordx4 v[16:19], v5, {sr}, s60 offen sc1")
    A(f"buffer_load_dwordx4 v[20:23], v5, {sr}, s60 offen offset:1024 sc1")
A("v_mov_b32 v8, 0")
A("s_lshl_b32 s62, s2, 3")
lds_spin("L_h2w", 12, O_V, 4)
memgrp(h2gather)
A("s_waitcnt vmcnt(0)")
poll_check("L_h2chk", [16, 20], 24, h2gather, dual=False)
ts()
A("v_add_f32 v16, v16, v20\nv_add_f32 v18, v18, v22")
rowsum([16, 18], shifts=(8, 4))
xrow_multi("v_add_f32", [16, 18], [17, 19])
A("s_nop 0")
for i, qp in enumerate(("[1,1,1,1]", "[2,2,2,2]", "[3,3,3,3]")):
    A(f"v_mov_b32_dpp v{24+i}, v16 quad_perm:{qp} row_mask:0xf bank_mask:0xf")
    A(f"v_mov_b32_dpp v{28+i}, v18 quad_perm:{qp} row_mask:0xf bank_mask:0xf")
A("v_cvt_pk_bf16_f32 v32, v16, v24\nv_cvt_pk_bf16_f32 v33, v25, v26")
A("v_cvt_pk_bf16_f32 v34, v18, v28\nv_cvt_pk_bf16_f32 v35, v29, v30")
exec_mask(1, 0)
if OPT["dry"]: A("s_cbranch_execz L_spre")
A("buffer_store_dwordx2 v[32:33], v8, s[48:51], s62 offen")
A("buffer_store_dwordx2 v[34:35], v8, s[48:51], s62 offen offset:1024")
A("s_cmp_lg_u32 s2, 0\ns_cbranch_scc1 L_kv_done")
A("v_mov_b32 v36, s58\nv_mov_b32 v37, s59")
A("buffer_store_dwordx2 v[36:37], v8, s[44:47], 0 offen sc1")
LB("L_kv_done")
if TS:
    A("s_memrealtime s[72:73]\ns_waitcnt lgkmcnt(0)\nv_writelane_b32 v127, s72, 15")
ts_dump()
A("s_endpgm")

if OPT["dry"]:
    LB("L_helper")
    C("================= dry-run helpers: warm the instruction cache =================")
    A("s_barrier")
    for v in list(range(4, 16)) + [120, 121, 122, 123, 124]: A(f"v_mov_b32 v{v}, 0")
    A("s_waitcnt lgkmcnt(0)")
    ws_srds()
    A("s_mov_b64 s[90:91], 0\ns_mov_b64 exec, 0")
    A("s_mov_b32 s35, 7\ns_mov_b32 s48, 0\ns_mov_b32 s49, 1\ns_mov_b32 s60, 0\ns_mov_b32 s61, 0\ns_mov_b32 s62, 0\ns_mov_b32 s63, 0")
    A("s_cmp_eq_u32 s30, 12\ns_cbranch_scc1 L_d0")
    A("s_cmp_eq_u32 s30, 14\ns_cbranch_scc1 L_d2")
    A("s_cmp_eq_u32 s30, 15\ns_cbranch_scc1 L_d3")
    A("s_mov_b32 s35, 0")
    A("s_branch L_d1")
    LB("L_spre")
    if OPT["spre"]:
        A(f"s_lshl_b32 s60, s31, 5\ns_add_u32 s60, s60, s32\ns_mul_i32 s60, s60, {OBS}\ns_add_u32 s60, s60, {hex(H1)}")
        A("s_add_u32 s62, s28, s60\ns_addc_u32 s63, s29, 0")
        if OPT["spre"] & 1:
            for i in range(17): A(f"s_load_dword s{4+(i%8)}, s[62:63], {128*i}")
        A(f"s_lshl_b32 s60, s2, 11\ns_add_u32 s60, s60, {hex(H2+MIR)}")
        A("s_add_u32 s62, s28, s60\ns_addc_u32 s63, s29, 0")
        if OPT["spre"] & 2:
            A("s_cmp_ge_u32 s2, 128\ns_cbranch_scc1 L_end")
            for i in range(16): A(f"s_load_dword s{4+(i%8)}, s[62:63], {128*i}")
    A("s_endpgm")

LB("L_special")
C("================= special waves =================")
ts_reset()
A("s_and_b32 s49, s54, 7\ns_cmp_lg_u32 s49, 7\ns_cselect_b32 s49, 1, 0")
A("s_lshr_b32 s55, s54, 3\ns_sub_u32 s55, s54, s55")
A("v_and_b32 v6, 1, v2\nv_lshlrev_b32 v6, 10, v6\nv_lshl_add_u32 v6, v3, 3, v6")
A("s_cmp_eq_u32 s30, 0\ns_cbranch_scc1 L_w0")
A("s_cmp_eq_u32 s30, 1\ns_cbranch_scc1 L_w1")
A("s_cmp_eq_u32 s30, 3\ns_cbranch_scc1 L_w3")
A("s_waitcnt lgkmcnt(0)")
ts0()
ws_srds()
A("s_load_dwordx2 s[56:57], s[28:29], 0")
A("s_barrier")
fconsts(); consts()
A("s_waitcnt lgkmcnt(0)")
tags()
A("s_branch L_vload")

LB("L_w3")
A("v_lshlrev_b32 v5, 4, v0")
A(f"v_mov_b32 v4, {CNT}\nv_mov_b32 v8, 0\nv_mov_b32 v9, 0\nv_mov_b32 v10, 0\nv_mov_b32 v11, 0")
A("ds_write_b128 v4, v[8:11]")
A("ds_write_b128 v4, v[8:11] offset:16")
A("ds_write_b128 v4, v[8:11] offset:32")
A("s_waitcnt lgkmcnt(0)")
ts0()
srd(36, 4, 2048)
srd(40, 22, 1024)
A("buffer_load_dwordx4 v[16:19], v5, s[36:39], 0 offen")
A("buffer_load_dwordx4 v[20:23], v5, s[36:39], 0 offen offset:1024")
A("buffer_load_dwordx4 v[24:27], v5, s[40:43], 0 offen")
A("s_barrier")
ws_srds()
A("s_load_dwordx2 s[56:57], s[28:29], 0")
fconsts(); consts()
A("s_waitcnt vmcnt(0)")
for src, dst in ((24, 32), (16, 40), (20, 48)):
    for w in range(4):
        A(f"v_lshlrev_b32 v{dst+2*w}, 16, v{src+w}\nv_and_b32 v{dst+2*w+1}, 0xffff0000, v{src+w}")
for b in range(2):
    for e in range(8):
        A(f"v_mul_f32 v{40+8*b+e}, v{40+8*b+e}, v{32+e}")
bf16_round_pairs(list(range(40, 56)), list(range(16, 24)))
for b in range(2):
    o = 40 + 8 * b
    A(f"v_add_f32 v{o}, v{o}, v{o+1}\nv_add_f32 v{o+2}, v{o+2}, v{o+3}\nv_add_f32 v{o+4}, v{o+4}, v{o+5}\nv_add_f32 v{o+6}, v{o+6}, v{o+7}")
    A(f"v_add_f32 v{o}, v{o}, v{o+2}\nv_add_f32 v{o+4}, v{o+4}, v{o+6}\nv_add_f32 v{o}, v{o}, v{o+4}")
rowsum([40, 48])
xrow_multi("v_add_f32", [40, 48], [41, 49])
A("v_mov_b32 v41, v48")
bf16_round_pairs([40, 41], [16])
A("v_mul_f32 v40, s70, v40\nv_mul_f32 v41, s70, v41")
A("v_exp_f32 v40, v40\nv_exp_f32 v41, v41")
A("s_nop 0")
A("v_add_f32 v40, 1.0, v40\nv_add_f32 v41, 1.0, v41")
A("v_rcp_f32 v40, v40\nv_rcp_f32 v41, v41")
A("s_nop 0")
bf16_round_pairs([40, 41], [16])
A("v_sub_f32 v42, 1.0, v40\nv_sub_f32 v43, 1.0, v41")
bf16_round_pairs([42, 43], [16])
A(f"v_mov_b32 v4, {GT}")
A("ds_write_b128 v4, v[40:43]")
A("s_waitcnt lgkmcnt(0)")
tags()

LB("L_vload")
srd(40, 8, 0x8000000)
A("s_sub_u32 s35, s30, 2")
A("s_lshl_b32 s60, s35, 2\nv_add_u32 v4, s60, v3\nv_lshrrev_b32 v5, 1, v2\nv_xor_b32 v4, v4, v5")
A("v_and_b32 v5, 1, v2\nv_lshl_add_u32 v4, v4, 1, v5\nv_lshlrev_b32 v4, 4, v4\nv_lshl_add_u32 v4, v3, 8, v4")
A("s_lshl_b32 s61, s35, 10\ns_add_u32 s62, s50, s61")
A("s_and_b32 s60, s51, 15\ns_lshl_b32 s60, s60, 12")
A(f"v_mov_b32 v12, {CNT}\nv_mov_b32 v13, 1")
A(f"s_lshl_b32 s63, s35, 2\ns_add_u32 s63, s63, {CNT+O_VL}\nv_mov_b32 v11, s63")
A("v_mov_b32 v8, 4\nv_mov_b32 v9, 6\nv_mov_b32 v10, 8")
def vblk(i):
    A(f"s_add_u32 s63, s62, s60\ns_add_u32 m0, s61, {VI + 4096*i}")
    A("s_add_u32 s60, s60, 4096\ns_and_b32 s60, s60, 0xffff")
    A(f"buffer_load_dwordx4 v4, s[40:43], s63 offen {KVF} lds")
    A(f"buffer_load_dwordx4 v4, s[40:43], s63 offen offset:2048 {KVF} lds")
A("s_barrier\ns_barrier")
for i in range(2 * VB): vblk(i)
A("s_barrier\ns_barrier")
IB = OPT.get("ib", 16)
for i in range(2 * VB, 17):
    if i == max(IB, 2 * VB):
        A("s_mov_b32 exec_lo, 1\ns_mov_b32 exec_hi, 0")
        A(f"ds_add_u32 v12, v13 offset:{O_I}")
        A("s_mov_b64 exec, -1")
    if i < 16: vblk(i)
A("s_mov_b32 exec_lo, 1\ns_mov_b32 exec_hi, 0")
ts()
A("s_waitcnt vmcnt(16)")
A("ds_write_b32 v11, v8")
ts()
A("s_waitcnt vmcnt(8)")
A("ds_write_b32 v11, v9")
A("s_waitcnt vmcnt(0)")
A("ds_write_b32 v11, v10")
A("s_mov_b64 exec, -1")
ts()
A("s_branch L_final")

LB("L_w0")
ts_reset()
dma_voff(4, 13, 8, 9)
A("s_lshl_b32 s60, s52, 20\ns_lshl_b32 s61, s31, 10\ns_add_u32 s60, s60, s61\ns_lshl_b32 s61, s53, 7\ns_add_u32 s60, s60, s61")
A("s_lshl_b32 s61, s52, 8")
A("s_waitcnt lgkmcnt(0)")
ts0()
srd(40, 10, 0x400000)
for i in range(16):
    A(f"s_mov_b32 m0, {WQI+1024*i}")
    if i: A(f"s_add_u32 s60, s60, {8*8192}")
    else: A("s_nop 0")
    A(f"buffer_load_dwordx4 v4, s[40:43], s60 offen {WF} lds")
srd(36, 4, 2048)
XA, BB, AC = 16, 32, 96
for t in range(4):
    A(f"buffer_load_dwordx2 v[{XA+4*t}:{XA+4*t+1}], v6, s[36:39], s61 offen offset:{64*t}")
    A(f"buffer_load_dwordx2 v[{XA+4*t+2}:{XA+4*t+3}], v6, s[36:39], s61 offen offset:{64*t+32}")
A("s_barrier")
ws_srds()
A("s_load_dwordx2 s[56:57], s[28:29], 0")
fconsts(); consts()
for q4 in range(4): tr_addr(8 + q4, q4, 12, 13, WQI)
A(f"v_lshlrev_b32 v12, 2, v0\nv_add_u32 v12, {QT}, v12\nv_and_b32 v13, 31, v0\nv_lshlrev_b32 v13, 4, v13\nv_add_u32 v13, {QT}, v13")
A("v_and_b32 v14, 1, v3\nv_lshlrev_b32 v14, 13, v14\nv_lshl_add_u32 v14, v2, 4, v14")
A("s_lshl_b32 s62, s31, 14\ns_lshl_b32 s63, s52, 11\ns_add_u32 s62, s62, s63\ns_lshl_b32 s63, s53, 8\ns_add_u32 s62, s62, s63")
A(f"s_add_u32 s62, s62, {hex(QX)}")
A("s_waitcnt lgkmcnt(0)")
tags()
A("v_mov_b32 v5, s58")
A("s_waitcnt vmcnt(0)")
ts()
seq = [(q4, t) for q4 in range(4) for t in range(4)]
D = 6
def issue(k):
    q4, t = seq[k]; tr_read(BB + 4 * k, 8 + q4, 0, t)
for k in range(D): issue(k)
for k in range(16):
    q4, t = seq[k]
    A(f"s_waitcnt lgkmcnt({2*(min(16,k+D)-k)-2})")
    mfma(AC + 4 * q4, XA + 4 * t, BB + 4 * k, None if t == 0 else AC + 4 * q4)
    if k + D < 16: issue(k + D)
A("s_nop 7\ns_nop 1")
for r in range(2): select4([AC + 4 * q + r for q in range(4)])
A("s_nop 0")
for r in range(2): A(f"v_permlane32_swap_b32 v{AC+r}, v{AC+8+r}")
A("s_nop 0")
A(f"ds_write_b32 v12, v{AC}\nds_write_b32 v12, v{AC+1} offset:256")
A("ds_read_b128 v[116:119], v13")
A("s_waitcnt lgkmcnt(0)")
stamp(112, [116, 117, 118, 119], 5)
A("s_mov_b32 exec_hi, 0")
if not OPT.get("nos"): publish(112, 14, "s62")
A("s_mov_b64 exec, -1")
ts()
A("s_barrier")
srd(36, 12, 0x400000)
srd(40, 20, 1792 * 1024)
dma_voff(4, 10, 8, 9)
if OPT.get("cshift"):
    A(f"s_add_u32 s63, s53, {OPT['cshift']}\ns_and_b32 s63, s63, 7\ns_lshl_b32 s63, s63, 7\ns_lshl_b32 s60, s54, 17\ns_add_u32 s60, s60, s63")
else:
  A("s_lshl_b32 s60, s54, 17\ns_lshl_b32 s63, s53, 7\ns_add_u32 s60, s60, s63")
A("s_lshl_b32 s61, s55, 16\ns_add_u32 s61, s61, s63")
A(f"v_mov_b32 v12, {CNT}\nv_mov_b32 v8, 1\nv_mov_b32 v9, 2\nv_mov_b32 v10, 3")
A("s_barrier\ns_barrier\ns_barrier")
lds_spin("L_ispin", 12, O_I, 2)
ts()
A("s_cmp_eq_u32 s49, 0\ns_cbranch_scc1 L_w0_nowd")
for i in range(8):
    A(f"s_mov_b32 m0, {WDI+1024*i}")
    if i: A(f"s_add_u32 s61, s61, {8*1024}")
    else: A("s_nop 0")
    A(f"buffer_load_dwordx4 v4, s[40:43], s61 offen {WF} lds")
LB("L_w0_nowd")
for i in range(16):
    A(f"s_mov_b32 m0, {WOI+1024*i}")
    if i: A(f"s_add_u32 s60, s60, {8*1024}")
    else: A("s_nop 0")
    A(f"buffer_load_dwordx4 v4, s[36:39], s60 offen {WF} lds")
ts()
A("s_waitcnt vmcnt(16)")
A(f"ds_write_b32 v12, v8 offset:{O_STAGE}")
ts()
A("s_waitcnt vmcnt(8)")
A(f"ds_write_b32 v12, v9 offset:{O_STAGE}")
ts()
A("s_waitcnt vmcnt(0)")
A(f"ds_write_b32 v12, v10 offset:{O_STAGE}")
ts()
A("s_branch L_final")

LB("L_w1_idle")
A("s_waitcnt lgkmcnt(0)")
ts0()
ws_srds()
A("s_load_dwordx2 s[56:57], s[28:29], 0")
A("s_barrier")
fconsts(); consts()
A("s_waitcnt lgkmcnt(0)")
tags()
A("s_barrier\ns_barrier\ns_barrier\ns_barrier")
A("s_branch L_final")
LB("L_w1")
ts_reset()
A("s_cmp_eq_u32 s49, 0\ns_cbranch_scc1 L_w1_idle")
A("s_movk_i32 s60, 3584")
dma_voff(4, "s60", 8, 9)
A("s_mul_i32 s60, s53, 64*3584\ns_lshl_b32 s61, s55, 7\ns_add_u32 s60, s60, s61")
A("s_lshl_b32 s61, s53, 7")
A("s_waitcnt lgkmcnt(0)")
ts0()
srd(36, 16, 512 * 3584)
srd(40, 18, 512 * 3584)
for i in range(8):
    A(f"s_mov_b32 m0, {GI+1024*i}")
    if i: A(f"s_add_u32 s60, s60, {8*3584}")
    else: A("s_nop 0")
    A(f"buffer_load_dwordx4 v4, s[36:39], s60 offen {WF} lds")
    A(f"s_mov_b32 m0, {UI+1024*i}\ns_nop 0")
    A(f"buffer_load_dwordx4 v4, s[40:43], s60 offen {WF} lds")
srd(76, 4, 2048)
for t in range(2):
    A(f"buffer_load_dwordx2 v[{XA+4*t}:{XA+4*t+1}], v6, s[76:79], s61 offen offset:{64*t}")
    A(f"buffer_load_dwordx2 v[{XA+4*t+2}:{XA+4*t+3}], v6, s[76:79], s61 offen offset:{64*t+32}")
A("s_barrier")
ws_srds()
A("s_load_dwordx2 s[56:57], s[28:29], 0")
fconsts(); consts()
for q4 in range(4): tr_addr(8 + q4, q4, 12, 13, GI)
A("v_lshlrev_b32 v5, 4, v0")
A("s_lshl_b32 s62, s55, 13")
A(f"s_add_u32 s62, s62, {hex(HX)}")
A("s_lshl_b32 s63, s53, 10\ns_add_u32 s63, s63, s62")
A("s_add_u32 s61, s62, 4096")
A(f"v_lshlrev_b32 v12, 1, v0\nv_add_u32 v12, {HS}, v12")
A(f"v_mov_b32 v13, {CNT+O_H}\nv_mov_b32 v14, 1")
A("s_waitcnt lgkmcnt(0)")
tags()
A("v_mov_b32 v4, s58")
A("s_waitcnt vmcnt(0)")
ts()
seq = [(mat, q4, t) for mat in range(2) for q4 in range(4) for t in range(2)]
BB1 = 24
AC1 = 88
def issue(k):
    mat, q4, t = seq[k]; tr_read(BB1 + 4 * k, 8 + q4, (UI - GI) if mat else 0, t)
for k in range(D): issue(k)
for k in range(16):
    mat, q4, t = seq[k]
    A(f"s_waitcnt lgkmcnt({2*(min(16,k+D)-k)-2})")
    acc = AC1 + 16 * mat + 4 * q4
    mfma(acc, XA + 4 * t, BB1 + 4 * k, None if t == 0 else acc)
    if k + D < 16: issue(k + D)
A("s_nop 7\ns_nop 1")
for mat in range(2):
    for r in range(2): select4([AC1 + 16 * mat + 4 * q + r for q in range(4)])
A("s_nop 0")
for mat in range(2):
    for r in range(2): A(f"v_permlane32_swap_b32 v{AC1+16*mat+r}, v{AC1+16*mat+8+r}")
A("s_nop 0")
stamp(120, [AC1, AC1 + 1, AC1 + 16, AC1 + 17], 4)
if not OPT.get("nos"): publish(120, 5, "s63")
ts()
A("s_barrier\ns_barrier\ns_barrier")
HG = 16
def hgather(sr=FA):
    for rb in range(8):
        r = HG + 4 * rb
        A(f"buffer_load_dwordx4 v[{r}:{r+3}], v5, {sr}, s{62 - rb//4} offen offset:{(rb%4)*1024} sc1")
if not OPT.get("nog"): hgather()
A("s_barrier")
ts()
LB("L_d3")
A("s_waitcnt vmcnt(0)")
poll_check("L_hchk", [HG + 4 * i for i in range(8)], 96, hgather, tagcheck_dense, 4)
ts()
for c in range(32): A(f"v_and_b32 v{HG+c}, 0xffffff00, v{HG+c}")
for step in (16, 8, 4):
    for base in range(HG, HG + step, 4):
        for o in range(4):
            A(f"v_add_f32 v{base+o}, v{base+o}, v{base+step+o}")
bf16_round_pairs([16, 17, 18, 19], [24, 25])
A("v_mul_f32 v24, s70, v16\nv_mul_f32 v25, s70, v17")
A("v_exp_f32 v24, v24\nv_exp_f32 v25, v25")
A("s_nop 0")
A("v_add_f32 v24, 1.0, v24\nv_add_f32 v25, 1.0, v25")
A("v_rcp_f32 v24, v24\nv_rcp_f32 v25, v25")
A("s_nop 0")
A("v_mul_f32 v16, v16, v24\nv_mul_f32 v17, v17, v25")
bf16_round_pairs([16, 17], [24])
A("v_mul_f32 v16, v16, v18\nv_mul_f32 v17, v17, v19")
A("v_cvt_pk_bf16_f32 v24, v16, v17")
A("ds_write_b16 v12, v24")
A("ds_write_b16_d16_hi v12, v24 offset:128")
A("ds_write_b32 v13, v14")
ts()

LB("L_final")
if TS: ts_n[0] = 8
tr_addr(8, "s30", 12, 13, WOI)
A(f"v_mov_b32 v12, {CNT}")
A(f"v_and_b32 v9, 1, v2\nv_lshlrev_b32 v10, 7, v9\nv_lshl_add_u32 v10, v3, 3, v10\nv_add_u32 v10, {HS}, v10")
A(f"v_lshlrev_b32 v9, 8, v9\nv_lshl_add_u32 v9, v3, 3, v9\nv_add_u32 v9, {OV}, v9")
A("v_lshrrev_b32 v11, 2, v2\nv_lshlrev_b32 v11, 11, v11\nv_and_b32 v13, 3, v2\nv_lshl_add_u32 v11, v13, 4, v11")
A("s_lshl_b32 s60, s53, 15\ns_lshl_b32 s61, s30, 13\ns_add_u32 s60, s60, s61\ns_lshl_b32 s61, s54, 6\ns_add_u32 s60, s60, s61")
A(f"s_add_u32 s60, s60, {hex(H2)}")
A(f"v_and_b32 v7, 31, v0\nv_mul_u32_u24 v7, {OBS}, v7")
A(f"s_mul_i32 s61, s31, {32*OBS}\ns_lshl_b32 s62, s52, 4\ns_add_u32 s61, s61, s62")
A(f"s_add_u32 s61, s61, {hex(H1+2048)}")
A(f"v_mov_b32 v13, {GT}")
A("ds_read_b128 v[60:63], v13")
A("v_mov_b32 v65, s58\nv_mov_b32 v67, s59")
A("v_mov_b32 v56, 0\nv_mov_b32 v57, 0")
lds_spin("L_fs6", 12, O_PUB, 8)
def lgather(sr=FA):
    A(f"buffer_load_dwordx4 v[68:71], v7, {sr}, s61 offen sc1")
memgrp(lgather)
A("s_cmp_eq_u32 s49, 0\ns_cbranch_scc1 L_f_nofb")
lds_spin("L_fs1", 12, O_STAGE, 1)
for t in range(2): tr_read(16 + 4 * t, 8, WDI - WOI, t)
lds_spin("L_fs2", 12, O_H, 1)
for t in range(2):
    A(f"ds_read2_b64 v[{24+4*t}:{27+4*t}], v10 offset0:{8*t} offset1:{8*t+4}")
A("s_waitcnt lgkmcnt(0)")
mfma(56, 24, 16, None)
mfma(56, 28, 20, 56)
A("s_nop 7\ns_nop 1")
A("v_mul_f32 v56, v56, v62\nv_mul_f32 v57, v57, v63")
LB("L_f_nofb")
ts()
lds_spin("L_fs3", 12, O_STAGE, 3)
for t in range(4): tr_read(16 + 4 * t, 8, 0, t)
ts()
A("s_waitcnt vmcnt(0)")
poll_check("L_lchk", [68], 72, lgather)
A("v_mov_b32 v72, v70")
A("v_mov_b32 v73, v70")
for sh in (8, 4, 2, 1):
    A("s_nop 1")
    A(f"v_max_f32_dpp v73, v73, v73 row_ror:{sh} row_mask:0xf bank_mask:0xf")
A("v_sub_f32 v72, v72, v73\nv_mul_f32 v72, s69, v72\nv_exp_f32 v72, v72\ns_nop 0\nv_mul_f32 v72, v72, v68")
rowsum([72])
A("v_rcp_f32 v72, v72")
A("s_nop 1")
A("v_readlane_b32 s62, v72, 0\nv_readlane_b32 s63, v72, 16")
A("s_nop 1")
A("v_mul_f32 v60, s62, v60\nv_mul_f32 v61, s63, v61")
ts()
lds_spin("L_fs4", 12, O_V, 4)
for t in range(4):
    A(f"ds_read2_b64 v[{32+4*t}:{35+4*t}], v9 offset0:{8*t} offset1:{8*t+4}")
for t in range(4):
    A(f"s_waitcnt lgkmcnt({3-t})")
    mfma(48, 32 + 4 * t, 16 + 4 * t, None if t == 0 else 48)
exec_mask(0xffff, 0)
A("s_nop 6")
A("v_fma_f32 v64, v48, v60, v56\nv_fma_f32 v66, v49, v61, v57")
dry_end()
publish(64, 11, "s60", dual=False)
ts()
ts_dump()
LB("L_end")
A("s_endpgm")

L.append(f""".section .rodata,"a"
.p2align 6
.amdhsa_kernel {NAME}
  .amdhsa_next_free_vgpr 128
  .amdhsa_next_free_sgpr 102
  .amdhsa_accum_offset 128
  .amdhsa_group_segment_fixed_size 0
  .amdhsa_kernarg_size 104
  .amdhsa_user_sgpr_count 2
  .amdhsa_user_sgpr_kernarg_segment_ptr 1
  .amdhsa_system_sgpr_workgroup_id_x 1
.end_amdhsa_kernel""")
open(out, "w").write("\n".join(L) + "\n")
```

```python
import sys

OPT = dict(ts=0, kv_fl="nt", w_fl="nt", ka=4, vb=1, spin=400000, pst=0, dry=1, slp=1, pre=0, prew=0, dual=1, bper=8, spre=0)
out = sys.argv[1]
for a in sys.argv[2:]:
    k, v = a.split("=")
    OPT[k] = int(v) if v.lstrip("-").isdigit() else v.replace("+", " ").replace("none", "")
TS = OPT["ts"]

NAME = "gated_mix__sliding_block_cached__swiglu_ffn__decode_kernel"
HEADER = open("gated_mix__sliding_block_cached__swiglu_ffn__decode.s.ref").read().split("; Override launch")[0]

L = []
def A(s):
    for l in s.split("\n"):
        L.append("    " + l.strip())
def LB(s):
    L.append(s + ":")
def C(s):
    L.append("    ; " + s)

VI = 0
WQI = 65536
GI = 81920
UI = 90112
WOI = 98304
WDI = 114688
PS = 122880
QS = 124928
OV = 125952
HS = 126464
QT = 126720
MX = 127232
LS = 127360
GT = 127488
CNT = 127504
O_Q, O_M, O_P, O_STAGE, O_H, O_PUB, O_V, O_I, O_VL = 0, 4, 8, 12, 16, 20, 24, 28, 32
LDS_BYTES = 127744
WB = OPT.get('wb', 0) << 20
QX = WB + 0x10000
HX = WB + 0x80000
H1 = WB + 0x100000
OBS = OPT.get('obs', 2176)
H2 = WB + 0x400000
TSB = 0x800000

SCALE = 0x3DB504F3
LOG2E = 0x3FB8AA3B
NLOG2E = 0xBFB8AA3B
WF = OPT["w_fl"]

def srd(d, p, nbytes):
    A(f"s_mov_b32 s{d}, s{p}\ns_and_b32 s{d+1}, s{p+1}, 0xffff\ns_mov_b32 s{d+2}, {hex(nbytes)}\ns_mov_b32 s{d+3}, 0x20000")

ts_n = [0]
skip_n = [0]
def ts_reset():
    ts_n[0] = 1 if TS else 0
def ts():
    if not TS: return
    k = ts_n[0]; ts_n[0] += 1
    assert k < 16
    A(f"s_memrealtime s[72:73]\ns_waitcnt lgkmcnt(0)\nv_writelane_b32 v127, s72, {k}")
def ts_dump():
    if not TS: return
    A("s_mov_b64 exec, -1")
    if TS == 2:
        skip_n[0] += 1
        lb = f"L_sk{skip_n[0]}"
        A(f"s_cmp_lg_u32 s2, {OPT.get('dbgwg', 0)}\ns_cbranch_scc1 {lb}")
        A(f"s_cmp_lg_u32 s30, {OPT.get('dbgwave', 11)}\ns_cbranch_scc1 {lb}")
        srd(76, 26, 256)
        A("v_readlane_b32 s60, v127, 0\ns_nop 1\nv_subrev_u32 v127, s60, v127")
        A("v_lshlrev_b32 v3, 2, v0")
        A("s_mov_b32 exec_lo, 0xffff\ns_mov_b32 exec_hi, 0")
        A("buffer_store_dword v127, v3, s[76:79], 0 offen")
        LB(lb)
        return
    A("s_mul_i32 s60, s2, 12\ns_add_u32 s60, s60, s30\ns_lshl_b32 s60, s60, 6")
    A(f"s_add_u32 s60, s60, {hex(TSB)}")
    A("v_lshlrev_b32 v3, 2, v0")
    A("s_mov_b32 exec_lo, 0xffff\ns_mov_b32 exec_hi, 0")
    A("buffer_store_dword v127, v3, s[44:47], s60 offen")

def tags():
    A("s_add_u32 s58, s56, 0x01010101\ns_add_u32 s59, s57, 0x9e3779b9")
    A("s_and_b32 s88, s58, 0xffff\ns_and_b32 s89, s58, 0xffff0000")

def tagcheck(bases, acc, t0, t1):
    first = True
    for b in bases:
        A(f"v_xor_b32 v{t0}, s58, v{b+1}")
        A(f"v_xor_b32 v{t1}, s59, v{b+3}")
        if first:
            A(f"v_or_b32 v{acc}, v{t0}, v{t1}"); first = False
        else:
            A(f"v_or3_b32 v{acc}, v{acc}, v{t0}, v{t1}")

def tagcheck_dense(bases, acc, t0, t1):
    first = True
    for b in bases:
        A(f"v_perm_b32 v{t0}, v{b+1}, v{b}, s92")
        A(f"v_perm_b32 v{t1}, v{b+3}, v{b+2}, s93")
        A(f"v_xor_b32 v{t0}, s88, v{t0}")
        A(f"v_xor_b32 v{t1}, s89, v{t1}")
        if first:
            A(f"v_or_b32 v{acc}, v{t0}, v{t1}"); first = False
        else:
            A(f"v_or3_b32 v{acc}, v{acc}, v{t0}, v{t1}")

def tagcheck_16(bases, acc, t0, t1):
    for i in range(0, len(bases), 2):
        b0 = bases[i]
        A(f"v_perm_b32 v{t0}, v{b0+1}, v{b0}, s92")
        A(f"v_xor_b32 v{t0}, s88, v{t0}")
        if i + 1 < len(bases):
            b1 = bases[i + 1]
            A(f"v_perm_b32 v{t1}, v{b1+1}, v{b1}, s92")
            A(f"v_xor_b32 v{t1}, s88, v{t1}")
            if i == 0: A(f"v_or_b32 v{acc}, v{t0}, v{t1}")
            else: A(f"v_or3_b32 v{acc}, v{acc}, v{t0}, v{t1}")
        else:
            if i == 0: A(f"v_mov_b32 v{acc}, v{t0}")
            else: A(f"v_or_b32 v{acc}, v{acc}, v{t0}")

def stamp(dst, srcs, tagv):
    for i in range(4):
        A(f"v_perm_b32 v{dst+i}, v{srcs[i]}, v{tagv}, s{94+i}")

def consts():
    A("s_mov_b32 s92, 0x0c0c0400\ns_mov_b32 s93, 0x04000c0c")
    A("s_mov_b32 s94, 0x07060500\ns_mov_b32 s95, 0x07060501\ns_mov_b32 s96, 0x07060502\ns_mov_b32 s97, 0x07060503")

def exec_mask(lo, hi):
    A(f"s_and_b32 exec_lo, s90, {hex(lo)}" if lo != 0xffffffff else "s_mov_b32 exec_lo, s90")
    if hi is not None:
        A(f"s_and_b32 exec_hi, s91, {hex(hi)}" if hi else "s_mov_b32 exec_hi, 0")
def exec_all():
    A("s_mov_b64 exec, s[90:91]")
def memgrp(fn):
    skip_n[0] += 1
    lb = f"L_sk{skip_n[0]}"
    A(f"s_cbranch_execz {lb}")
    fn()
    LB(lb)
def dry_end():
    A("s_cbranch_execz L_end")

MIR = 0x800000 if OPT.get('wb', 0) else 0x1000000
def ws_srds():
    srd(44, 28, 0x20000000)
    A(f"s_add_u32 s80, s28, {hex(MIR)}\ns_addc_u32 s81, s29, 0\ns_and_b32 s81, s81, 0xffff\ns_mov_b32 s82, {hex(0x20000000-MIR)}\ns_mov_b32 s83, 0x20000")
    A("s_mov_b32 s74, 0")

def publish(data, voff, soff, off=0, dual=True):
    o = f" offset:{off}" if off else ""
    if dual and OPT["dual"]:
        A(f"buffer_store_dwordx4 v[{data}:{data+3}], v{voff}, s[44:47], {soff} offen{o}")
    A(f"buffer_store_dwordx4 v[{data}:{data+3}], v{voff}, s[80:83], {soff} offen{o} sc1")

def poll_check(label, bases, tmp, reissue, chk=tagcheck, grp=1, dual=True):
    dual = dual and OPT["dual"]
    LB(label)
    chk(bases, tmp, tmp + 1, tmp + 2)
    if grp >= 4:
        A(f"s_nop 1\nv_or_b32_dpp v{tmp}, v{tmp}, v{tmp} quad_perm:[1,0,3,2] row_mask:0xf bank_mask:0xf")
        A(f"s_nop 1\nv_or_b32_dpp v{tmp}, v{tmp}, v{tmp} quad_perm:[2,3,0,1] row_mask:0xf bank_mask:0xf")
    if grp >= 8:
        A(f"s_nop 1\nv_or_b32_dpp v{tmp}, v{tmp}, v{tmp} row_half_mirror row_mask:0xf bank_mask:0xf")
    A(f"v_cmp_ne_u32 vcc, 0, v{tmp}")
    A("s_nop 1")
    A(f"s_cbranch_vccz {label}_ok")
    if OPT.get("nopoll"): A(f"s_branch {label}_ok")
    A(f"s_sub_u32 s67, s67, 1\ns_cbranch_scc1 {label}_ok")
    A("s_mov_b64 exec, vcc")
    if OPT["slp"]: A(f"s_sleep {OPT['slp']}")
    if dual:
        A(f"s_add_u32 s74, s74, 1\ns_and_b32 s75, s74, {OPT['bper']-1}\ns_cbranch_scc0 {label}_b")
        reissue("s[44:47]")
        A("s_waitcnt vmcnt(0)")
        A(f"s_branch {label}")
        LB(label + "_b")
    reissue("s[80:83]")
    A("s_waitcnt vmcnt(0)")
    A(f"s_branch {label}")
    LB(label + "_ok")
    exec_all()

def xrow_multi(op, vs, ts_, steps=("v_permlane16_swap_b32", "v_permlane32_swap_b32")):
    for sw in steps:
        for v, t in zip(vs, ts_):
            A(f"v_mov_b32 v{t}, v{v}")
        if len(vs) < 2: A("s_nop 1")
        elif len(vs) < 3: A("s_nop 0")
        for v, t in zip(vs, ts_):
            A(f"{sw} v{v}, v{t}")
        A("s_nop 0")
        for v, t in zip(vs, ts_):
            A(f"{op} v{v}, v{v}, v{t}")

def transpose8(raw, dst, pairs=(0, 1, 2, 3)):
    for v in pairs:
        for w in range(4):
            a = raw + 4 * (2 * v) + w
            b = raw + 4 * (2 * v + 1) + w
            A(f"v_perm_b32 v{dst + 4*(2*w) + v}, v{b}, v{a}, s64")
            A(f"v_perm_b32 v{dst + 4*(2*w+1) + v}, v{b}, v{a}, s65")

def bf16_round_pairs(vs, tmp):
    n = len(vs) // 2
    for i in range(n):
        A(f"v_cvt_pk_bf16_f32 v{tmp[i]}, v{vs[2*i]}, v{vs[2*i+1]}")
    for i in range(n):
        A(f"v_lshlrev_b32 v{vs[2*i]}, 16, v{tmp[i]}")
        A(f"v_and_b32 v{vs[2*i+1]}, 0xffff0000, v{tmp[i]}")

def lds_spin(label, addr_v, off, val):
    A(f"s_cbranch_execz {label}_x")
    LB(label)
    A(f"ds_read_b32 v15, v{addr_v} offset:{off}")
    A("s_waitcnt lgkmcnt(0)")
    A("v_readfirstlane_b32 s66, v15")
    A("s_sub_u32 s67, s67, 1")
    A(f"s_cbranch_scc1 {label}_x")
    A(f"s_cmp_lt_u32 s66, {val}")
    A(f"s_cbranch_scc1 {label}")
    LB(label + "_x")

def rowsum(vs, shifts=(8, 4, 2, 1)):
    for sh in shifts:
        if len(vs) < 3: A("s_nop 1")
        for v in vs:
            A(f"v_add_f32_dpp v{v}, v{v}, v{v} row_ror:{sh} row_mask:0xf bank_mask:0xf")

def dma_voff(dst, stride_sreg_or_shift, t0, t1):
    A(f"v_bfe_u32 v{t0}, v0, 1, 2\nv_bfe_u32 v{t1}, v0, 4, 2\nv_xor_b32 v{t0}, v{t0}, v{t1}")
    A(f"v_and_b32 v{t1}, 1, v0\nv_lshl_add_u32 v{t0}, v{t0}, 1, v{t1}\nv_lshlrev_b32 v{t0}, 4, v{t0}")
    A(f"v_lshrrev_b32 v{t1}, 3, v0")
    if isinstance(stride_sreg_or_shift, int):
        A(f"v_lshl_add_u32 v{dst}, v{t1}, {stride_sreg_or_shift}, v{t0}")
    else:
        A(f"v_mul_lo_u32 v{t1}, v{t1}, {stride_sreg_or_shift}\nv_add_u32 v{dst}, v{t1}, v{t0}")

def tr_addr(dst, q4, t0, t1, base):
    A(f"v_bfe_u32 v{t0}, v0, 3, 2")
    A(f"v_xor_b32 v{t0}, {q4}, v{t0}")
    A(f"v_lshlrev_b32 v{t0}, 5, v{t0}")
    A(f"v_and_b32 v{t1}, 3, v0\nv_lshl_add_u32 v{t0}, v{t1}, 3, v{t0}")
    A(f"v_lshrrev_b32 v{t1}, 2, v0\nv_lshl_add_u32 v{dst}, v{t1}, 7, v{t0}")
    A(f"v_add_u32 v{dst}, {base}, v{dst}")

def tr_read(dst, addr_v, off, t):
    A(f"ds_read_b64_tr_b16 v[{dst}:{dst+1}], v{addr_v} offset:{off + 4096*t}")
    A(f"ds_read_b64_tr_b16 v[{dst+2}:{dst+3}], v{addr_v} offset:{off + 4096*t + 2048}")

def lds_spin2(label, addr_v, off, val):
    A(f"s_cbranch_execz {label}_x")
    LB(label)
    A(f"ds_read_b64 v[14:15], v{addr_v} offset:{off}")
    A("s_waitcnt lgkmcnt(0)")
    A("v_min_u32 v15, v14, v15")
    A("s_sub_u32 s67, s67, 1")
    A("v_readfirstlane_b32 s66, v15")
    A(f"s_cbranch_scc1 {label}_x")
    A(f"s_cmp_lt_u32 s66, {val}")
    A(f"s_cbranch_scc1 {label}")
    LB(label + "_x")

def bump(off):
    exec_mask(1, 0)
    A(f"ds_add_u32 v12, v13 offset:{off}")
    exec_all()

def mfma(d, a, b, c):
    cs = "0" if c is None else f"v[{c}:{c+3}]"
    A(f"v_mfma_f32_16x16x32_bf16 v[{d}:{d+3}], v[{a}:{a+3}], v[{b}:{b+3}], {cs}")

def select4(xs):
    A(f"v_permlane16_swap_b32 v{xs[0]}, v{xs[1]}")
    A(f"v_permlane16_swap_b32 v{xs[2]}, v{xs[3]}")

NWAVES = 16 if OPT["dry"] else 12
L.append(HEADER.rstrip())
L.append(f"; @launch grid=(256,1,1) block=({NWAVES*64},1,1) lds={LDS_BYTES}")
L.append('.amdgcn_target "amdgcn-amd-amdhsa--gfx950"')
L.append(".text")
L.append(f".globl {NAME}\n.p2align 8\n.type {NAME},@function\n{NAME}:")
A("s_cmp_ge_u32 s2, 256\ns_cbranch_scc1 L_end")
if OPT.get("xorwg"): A(f"s_xor_b32 s2, s2, {OPT['xorwg']}")
A("s_load_dwordx16 s[4:19], s[0:1], 0")
A("s_load_dwordx8 s[20:27], s[0:1], 64")
A("s_load_dwordx2 s[28:29], s[0:1], 96")
if TS: A("s_memrealtime s[72:73]")
A("v_lshrrev_b32 v1, 6, v0")
A("v_and_b32 v0, 63, v0")
A("s_and_b32 s31, s2, 7")
A("v_readfirstlane_b32 s30, v1")
A("s_lshr_b32 s32, s2, 3")
A("s_lshr_b32 s33, s32, 4")
A("s_and_b32 s34, s32, 15")
A(f"s_mov_b32 s67, {OPT['spin']}")
A("s_mov_b64 s[90:91], -1")
A("v_and_b32 v2, 15, v0")
A("v_lshrrev_b32 v3, 4, v0")
A("s_lshr_b32 s52, s32, 3")
A("s_and_b32 s53, s32, 7")
A("s_lshl_b32 s54, s31, 2\ns_add_u32 s54, s54, s52")
A("s_lshl_b32 s50, s33, 3\ns_add_u32 s50, s50, s31\ns_lshl_b32 s50, s50, 23")
A("s_lshl_b32 s51, s34, 16\ns_add_u32 s50, s50, s51\ns_add_u32 s50, s50, 0x700000")
A(f"s_mul_i32 s51, s32, {OPT.get('rotm', 5)}\ns_add_u32 s51, s51, s31")
A("s_cmp_lt_u32 s30, 4\ns_cbranch_scc1 L_special")
if OPT["dry"]: A("s_cmp_ge_u32 s30, 12\ns_cbranch_scc1 L_helper")

def fconsts():
    A(f"s_mov_b32 s68, {hex(SCALE)}\ns_mov_b32 s69, {hex(LOG2E)}\ns_mov_b32 s70, {hex(NLOG2E)}")
def ts0():
    if TS: A("v_writelane_b32 v127, s72, 0")

C("================= K / attention waves =================")
ts_reset()
A("s_sub_u32 s35, s30, 4")
A("s_lshl_b32 s62, s35, 1\ns_add_u32 s62, s62, s51")
A("s_add_u32 s63, s62, 1\ns_and_b32 s62, s62, 15\ns_and_b32 s63, s63, 15")
A("s_lshl_b32 s62, s62, 12\ns_lshl_b32 s63, s63, 12")
A("s_add_u32 s61, s50, s63\ns_add_u32 s60, s50, s62")
A("v_lshlrev_b32 v4, 8, v2\nv_lshl_add_u32 v4, v3, 4, v4")
A("s_waitcnt lgkmcnt(0)")
ts0()
srd(36, 6, 0x8000000)
KR, QR = 16, 80
KVF = OPT["kv_fl"]
def kload(i):
    t, j = i // 4, i % 4
    A(f"buffer_load_dwordx4 v[{KR+4*i}:{KR+4*i+3}], v4, s[36:39], s{60+t} offen offset:{j*64} {KVF}")
FA = "s[44:47]" if OPT["dual"] else "s[80:83]"
def qgather(sr=FA):
    A(f"buffer_load_dwordx4 v[{QR}:{QR+3}], v6, {sr}, s62 offen sc1")
KA, VB = OPT["ka"], OPT["vb"]
A("s_barrier")
for i in range(KA): kload(i)
ws_srds()
A("s_load_dwordx2 s[56:57], s[28:29], 0")
fconsts(); consts()
A("s_lshl_b32 s62, s31, 1\ns_add_u32 s62, s62, s33\ns_lshl_b32 s62, s62, 13")
A("s_lshl_b32 s63, s35, 8\ns_add_u32 s62, s62, s63")
A(f"s_add_u32 s62, s62, {hex(QX)}")
A("v_lshlrev_b32 v6, 11, v3\nv_lshl_add_u32 v6, v2, 4, v6")
A(f"v_mov_b32 v12, {CNT}\nv_mov_b32 v13, 1")
A("v_and_b32 v14, 3, v2")
A(f"s_lshl_b32 s71, s35, 7\ns_add_u32 s71, s71, {QS}")
A("v_lshl_add_u32 v10, v2, 3, s71")
A(f"v_lshlrev_b32 v11, 8, v14\nv_lshl_add_u32 v11, v3, 4, v11\nv_add_u32 v11, {QS}, v11")
A(f"v_lshlrev_b32 v8, 5, v14\nv_add_u32 v8, {MX}, v8")
A("s_lshl_b32 s71, s35, 2\nv_add_u32 v9, s71, v8")
A(f"v_lshl_add_u32 v7, v3, 2, v14\nv_lshlrev_b32 v7, 4, v7\nv_add_u32 v7, {PS}, v7")
A("s_lshl_b32 s71, s35, 8\nv_add_u32 v5, s71, v7")
A("v_bfe_u32 v120, v0, 2, 3\nv_xor_b32 v120, s35, v120\nv_lshlrev_b32 v120, 5, v120")
A("v_and_b32 v121, 3, v0\nv_lshl_add_u32 v120, v121, 3, v120\nv_lshrrev_b32 v121, 2, v0\nv_lshl_add_u32 v120, v121, 8, v120")
A("v_lshlrev_b32 v121, 9, v14\nv_lshl_add_u32 v121, v3, 4, v121")
A(f"s_lshl_b32 s76, s31, 5\ns_add_u32 s49, s76, s32\ns_mul_i32 s49, s49, {OBS}\ns_add_u32 s49, s49, {hex(H1)}")
A("s_lshl_b32 s71, s35, 6\ns_add_u32 s48, s49, s71")
A(f"v_lshrrev_b32 v122, 3, v2\nv_lshl_add_u32 v122, v122, 4, v3\nv_mul_u32_u24 v122, {OBS}, v122")
A("v_and_b32 v123, 7, v2\nv_lshl_add_u32 v122, v123, 4, v122")
A(f"s_mul_i32 s76, s76, {OBS}\ns_add_u32 s76, s76, {hex(H1)}")
A("s_lshl_b32 s71, s52, 9\ns_add_u32 s76, s76, s71\ns_lshl_b32 s71, s35, 7\ns_add_u32 s76, s76, s71")
for i in range(1, 4): A(f"s_add_u32 s{76+i}, s76, {i*4*OBS}")
A(f"s_lshl_b32 s71, s35, 6\ns_add_u32 s71, s71, {OV}")
A("v_lshrrev_b32 v124, 3, v2\nv_lshlrev_b32 v124, 8, v124\nv_lshl_add_u32 v124, v123, 3, v124\nv_add_u32 v124, s71, v124")
A("s_waitcnt lgkmcnt(0)")
tags()
A("s_barrier")
ts()
for i in range(KA, 8): kload(i)
if OPT["prew"]:
    A("s_not_b32 s71, s58")
    A("v_mov_b32 v100, s71\nv_mov_b32 v101, s71\nv_mov_b32 v102, s71\nv_mov_b32 v103, s71")
    A("v_lshrrev_b32 v101, 8, v101")
    A("s_mov_b32 exec_lo, 0x000f000f\ns_mov_b32 exec_hi, 0x000f000f")
    A(f"buffer_store_dwordx4 v[100:103], v121, {FA}, s48 offen" + ("" if OPT["dual"] else " sc1"))
    A("s_cmp_lg_u32 s35, 7\ns_cbranch_scc1 L_pw1")
    A("v_lshlrev_b32 v104, 4, v2")
    A("s_mov_b32 exec_lo, 0xff\ns_mov_b32 exec_hi, 0")
    A(f"buffer_store_dwordx4 v[100:103], v104, {FA}, s49 offen offset:2048" + ("" if OPT["dual"] else " sc1"))
    LB("L_pw1")
    A("s_mov_b64 exec, -1")
A("s_barrier")
A("s_barrier")
ts()
if not OPT.get("nog"): qgather()
A("s_barrier")
ts()
LB("L_d0")
A("s_waitcnt vmcnt(0)")
poll_check("L_qchk", [QR], 88, qgather, tagcheck_dense, 4)
ts()
for c in range(4): A(f"v_and_b32 v{QR+c}, 0xffffff00, v{QR+c}")
xrow_multi("v_add_f32", [QR, QR + 1, QR + 2, QR + 3], [QR + 4, QR + 5, QR + 6, QR + 7])
A(f"v_cvt_pk_bf16_f32 v{QR}, v{QR}, v{QR+1}\nv_cvt_pk_bf16_f32 v{QR+1}, v{QR+2}, v{QR+3}")
exec_mask(0xffff, 0)
A(f"ds_write_b64 v10, v[{QR}:{QR+1}]")
bump(O_Q)
lds_spin("L_qspin", 12, O_Q, 8)
for j in range(4):
    A(f"ds_read_b128 v[{QR+4*j}:{QR+4*j+3}], v11 offset:{64*j}")
for j in range(4):
    A(f"s_waitcnt lgkmcnt({3-j})")
    for t in range(2):
        k = KR + 4 * (4 * t + j)
        mfma(96 + 4 * t, k, QR + 4 * j, None if j == 0 else 96 + 4 * t)
A("s_nop 7\ns_nop 1")
S = list(range(96, 104))
bf16_round_pairs(S, [112, 113, 114, 115])
for v in S: A(f"v_mul_f32 v{v}, s68, v{v}")
bf16_round_pairs(S, [112, 113, 114, 115])
A("v_max3_f32 v116, v96, v97, v98\nv_max3_f32 v116, v116, v99, v100\nv_max3_f32 v116, v116, v101, v102\nv_max_f32 v116, v116, v103")
xrow_multi("v_max_f32", [116], [117])
exec_mask(0xf, 0)
A("ds_write_b32 v9, v116")
bump(O_M)
lds_spin("L_mspin", 12, O_M, 8)
A("ds_read_b128 v[104:107], v8\nds_read_b128 v[108:111], v8 offset:16")
A("s_waitcnt lgkmcnt(0)")
A("v_max3_f32 v116, v104, v105, v106\nv_max3_f32 v116, v116, v107, v108\nv_max3_f32 v116, v116, v109, v110\nv_max_f32 v116, v116, v111")
A("v_mul_f32 v117, s70, v116")
for v in S: A(f"v_fma_f32 v{v}, v{v}, s69, v117")
for v in S: A(f"v_exp_f32 v{v}, v{v}")
A("v_or_b32 v125, s88, v116")
for i in range(4): A(f"v_cvt_pk_bf16_f32 v{112+i}, v{96+2*i}, v{97+2*i}")
A("v_add_f32 v117, v96, v97\nv_add_f32 v118, v98, v99\nv_add_f32 v119, v100, v101\nv_add_f32 v104, v102, v103")
A("v_add_f32 v117, v117, v118\nv_add_f32 v119, v119, v104\nv_add_f32 v117, v117, v119")
exec_mask(0x000f000f, 0x000f000f)
A("ds_write_b128 v5, v[112:115]")
exec_all()
xrow_multi("v_add_f32", [117], [118])
exec_mask(0xf, 0)
A("ds_write_b32 v9, v117 offset:128")
bump(O_P)
lds_spin("L_pspin1", 12, O_P, 8)
PR, VO = 16, 48
for k in range(8):
    A(f"ds_read_b128 v[{PR+4*k}:{PR+4*k+3}], v7 offset:{256*k}")
A("s_cmp_lg_u32 s35, 7\ns_cbranch_scc1 L_nol")
A("ds_read_b128 v[104:107], v8 offset:128\nds_read_b128 v[108:111], v8 offset:144")
A("v_lshlrev_b32 v10, 4, v2")
A("v_mov_b32 v97, s58\nv_mov_b32 v98, v116\nv_mov_b32 v99, s59")
A("s_waitcnt lgkmcnt(0)")
A("v_add_f32 v104, v104, v105\nv_add_f32 v106, v106, v107\nv_add_f32 v108, v108, v109\nv_add_f32 v110, v110, v111")
A("v_add_f32 v104, v104, v106\nv_add_f32 v108, v108, v110\nv_add_f32 v96, v104, v108")
exec_mask(0xf, 0)
memgrp(lambda: publish(96, 10, "s49", 2048))
exec_all()
LB("L_nol")
ts()
dry_end()
LB("L_d1")
def vstep(ks, first):
    for k in ks:
        A(f"ds_read_b64_tr_b16 v[{VO+4*k}:{VO+4*k+1}], v120 offset:{VI + 8192*k}")
        A(f"ds_read_b64_tr_b16 v[{VO+4*k+2}:{VO+4*k+3}], v120 offset:{VI + 8192*k + 4096}")
    for i, k in enumerate(ks):
        A(f"s_waitcnt lgkmcnt({2*(len(ks)-1-i)})")
        mfma(80, VO + 4 * k, PR + 4 * k, None if (first and i == 0) else 80)
lds_spin2("L_v1", 12, O_VL, 4)
vstep([0, 1, 2, 3], True)
lds_spin2("L_v2", 12, O_VL, 6)
vstep([4, 5], False)
lds_spin2("L_v3", 12, O_VL, 8)
ts()
vstep([6, 7], False)
exec_mask(0x000f000f, 0x000f000f)
A("s_nop 5")
stamp(84, [80, 81, 82, 83], 125)
memgrp(lambda: publish(84, 121, "s48"))
bump(O_PUB)
ts()
A("s_cmp_ge_u32 s35, 4\ns_cbranch_scc1 L_kv_h2")
lds_spin("L_pspin0", 12, O_PUB, 8)
if OPT["pst"]: lds_spin("L_pspin", 12, O_STAGE, OPT["pst"])
GR = 80
def h1gather(sr=FA):
    for i in range(4):
        A(f"buffer_load_dwordx4 v[{GR+4*i}:{GR+4*i+3}], v122, {sr}, s{76+i} offen sc1")
ts()
memgrp(h1gather)
A("s_waitcnt vmcnt(0)")
ts()
poll_check("L_h1chk", [GR + 4 * i for i in range(4)], 116, h1gather, tagcheck_16, 8)
ts()
for i in range(4): A(f"v_perm_b32 v{100+i}, v{GR+4*i+3}, v{GR+4*i+2}, s93")
A("v_max3_f32 v116, v100, v101, v102\nv_max_f32 v116, v116, v103")
xrow_multi("v_max_f32", [116], [117])
A("v_mul_f32 v117, s70, v116")
for i in range(4): A(f"v_fma_f32 v{100+i}, v{100+i}, s69, v117")
for i in range(4): A(f"v_exp_f32 v{100+i}, v{100+i}")
for c in range(16): A(f"v_and_b32 v{GR+c}, 0xffffff00, v{GR+c}")
for c in range(4): A(f"v_mul_f32 v{104+c}, v100, v{GR+c}")
for i in range(1, 4):
    for c in range(4): A(f"v_fmac_f32 v{104+c}, v{100+i}, v{GR+4*i+c}")
xrow_multi("v_add_f32", [104, 105, 106, 107], [108, 109, 110, 111])
A("v_cvt_pk_bf16_f32 v104, v104, v105\nv_cvt_pk_bf16_f32 v105, v106, v107")
exec_mask(0xffff, 0)
A("ds_write_b64 v124, v[104:105]")
bump(O_V)
ts()
dry_end()
A("s_branch L_kv_done")
LB("L_kv_h2")
A("s_cmp_lg_u32 s35, 7\ns_cbranch_scc1 L_kv_done")
A("s_cmp_ge_u32 s2, 128\ns_cbranch_scc1 L_kv_done")
LB("L_d2")
if TS: ts_n[0] = 12
srd(48, 24, 2048)
A("s_lshl_b32 s60, s2, 11")
A(f"s_add_u32 s60, s60, {hex(H2)}")
A("v_lshlrev_b32 v5, 4, v0")
def h2gather(sr="s[80:83]"):
    A(f"buffer_load_dwordx4 v[16:19], v5, {sr}, s60 offen sc1")
    A(f"buffer_load_dwordx4 v[20:23], v5, {sr}, s60 offen offset:1024 sc1")
A("v_mov_b32 v8, 0")
A("s_lshl_b32 s62, s2, 3")
lds_spin("L_h2w", 12, O_V, 4)
memgrp(h2gather)
A("s_waitcnt vmcnt(0)")
poll_check("L_h2chk", [16, 20], 24, h2gather, dual=False)
ts()
A("v_add_f32 v16, v16, v20\nv_add_f32 v18, v18, v22")
rowsum([16, 18], shifts=(8, 4))
xrow_multi("v_add_f32", [16, 18], [17, 19])
A("s_nop 0")
for i, qp in enumerate(("[1,1,1,1]", "[2,2,2,2]", "[3,3,3,3]")):
    A(f"v_mov_b32_dpp v{24+i}, v16 quad_perm:{qp} row_mask:0xf bank_mask:0xf")
    A(f"v_mov_b32_dpp v{28+i}, v18 quad_perm:{qp} row_mask:0xf bank_mask:0xf")
A("v_cvt_pk_bf16_f32 v32, v16, v24\nv_cvt_pk_bf16_f32 v33, v25, v26")
A("v_cvt_pk_bf16_f32 v34, v18, v28\nv_cvt_pk_bf16_f32 v35, v29, v30")
exec_mask(1, 0)
if OPT["dry"]: A("s_cbranch_execz L_spre")
A("buffer_store_dwordx2 v[32:33], v8, s[48:51], s62 offen")
A("buffer_store_dwordx2 v[34:35], v8, s[48:51], s62 offen offset:1024")
A("s_cmp_lg_u32 s2, 0\ns_cbranch_scc1 L_kv_done")
A("v_mov_b32 v36, s58\nv_mov_b32 v37, s59")
A("buffer_store_dwordx2 v[36:37], v8, s[44:47], 0 offen sc1")
LB("L_kv_done")
if TS:
    A("s_memrealtime s[72:73]\ns_waitcnt lgkmcnt(0)\nv_writelane_b32 v127, s72, 15")
ts_dump()
A("s_endpgm")

if OPT["dry"]:
    LB("L_helper")
    C("================= dry-run helpers: warm the instruction cache =================")
    if OPT.get("cpf"):
        A("s_getpc_b64 s[60:61]")
        LB("L_pc")
        A(f"s_sub_u32 s60, s60, L_pc-{NAME}\ns_subb_u32 s61, s61, 0")
        A(f"s_sub_u32 s62, s30, 12\ns_mul_i32 s62, s62, {OPT['cpf']*128}\ns_add_u32 s60, s60, s62\ns_addc_u32 s61, s61, 0")
        for i in range(OPT["cpf"]): A(f"s_load_dword s{36+(i%8)}, s[60:61], {128*i}")
    A("s_barrier")
    for v in list(range(4, 16)) + [120, 121, 122, 123, 124]: A(f"v_mov_b32 v{v}, 0")
    A("s_waitcnt lgkmcnt(0)")
    ws_srds()
    A("s_mov_b64 s[90:91], 0\ns_mov_b64 exec, 0")
    A("s_mov_b32 s35, 7\ns_mov_b32 s48, 0\ns_mov_b32 s49, 1\ns_mov_b32 s60, 0\ns_mov_b32 s61, 0\ns_mov_b32 s62, 0\ns_mov_b32 s63, 0")
    A("s_cmp_eq_u32 s30, 12\ns_cbranch_scc1 L_d0")
    A("s_cmp_eq_u32 s30, 14\ns_cbranch_scc1 L_d2")
    A("s_cmp_eq_u32 s30, 15\ns_cbranch_scc1 L_d3")
    A("s_mov_b32 s35, 0")
    A("s_branch L_d1")
    LB("L_spre")
    if OPT["spre"]:
        A(f"s_lshl_b32 s60, s31, 5\ns_add_u32 s60, s60, s32\ns_mul_i32 s60, s60, {OBS}\ns_add_u32 s60, s60, {hex(H1)}")
        A("s_add_u32 s62, s28, s60\ns_addc_u32 s63, s29, 0")
        if OPT["spre"] & 1:
            for i in range(17): A(f"s_load_dword s{4+(i%8)}, s[62:63], {128*i}")
        A(f"s_lshl_b32 s60, s2, 11\ns_add_u32 s60, s60, {hex(H2+MIR)}")
        A("s_add_u32 s62, s28, s60\ns_addc_u32 s63, s29, 0")
        if OPT["spre"] & 2:
            A("s_cmp_ge_u32 s2, 128\ns_cbranch_scc1 L_end")
            for i in range(16): A(f"s_load_dword s{4+(i%8)}, s[62:63], {128*i}")
    A("s_endpgm")

LB("L_special")
C("================= special waves =================")
ts_reset()
A("s_and_b32 s49, s54, 7\ns_cmp_lg_u32 s49, 7\ns_cselect_b32 s49, 1, 0")
A("s_lshr_b32 s55, s54, 3\ns_sub_u32 s55, s54, s55")
A("v_and_b32 v6, 1, v2\nv_lshlrev_b32 v6, 10, v6\nv_lshl_add_u32 v6, v3, 3, v6")
A("s_cmp_eq_u32 s30, 0\ns_cbranch_scc1 L_w0")
A("s_cmp_eq_u32 s30, 1\ns_cbranch_scc1 L_w1")
A("s_cmp_eq_u32 s30, 3\ns_cbranch_scc1 L_w3")
A("s_waitcnt lgkmcnt(0)")
ts0()
ws_srds()
A("s_load_dwordx2 s[56:57], s[28:29], 0")
A("s_barrier")
fconsts(); consts()
A("s_waitcnt lgkmcnt(0)")
tags()
A("s_branch L_vload")

LB("L_w3")
A("v_lshlrev_b32 v5, 4, v0")
A(f"v_mov_b32 v4, {CNT}\nv_mov_b32 v8, 0\nv_mov_b32 v9, 0\nv_mov_b32 v10, 0\nv_mov_b32 v11, 0")
A("ds_write_b128 v4, v[8:11]")
A("ds_write_b128 v4, v[8:11] offset:16")
A("ds_write_b128 v4, v[8:11] offset:32")
A("s_waitcnt lgkmcnt(0)")
ts0()
srd(36, 4, 2048)
srd(40, 22, 1024)
A("buffer_load_dwordx4 v[16:19], v5, s[36:39], 0 offen")
A("buffer_load_dwordx4 v[20:23], v5, s[36:39], 0 offen offset:1024")
A("buffer_load_dwordx4 v[24:27], v5, s[40:43], 0 offen")
A("s_barrier")
ws_srds()
A("s_load_dwordx2 s[56:57], s[28:29], 0")
fconsts(); consts()
A("s_waitcnt vmcnt(0)")
for src, dst in ((24, 32), (16, 40), (20, 48)):
    for w in range(4):
        A(f"v_lshlrev_b32 v{dst+2*w}, 16, v{src+w}\nv_and_b32 v{dst+2*w+1}, 0xffff0000, v{src+w}")
for b in range(2):
    for e in range(8):
        A(f"v_mul_f32 v{40+8*b+e}, v{40+8*b+e}, v{32+e}")
bf16_round_pairs(list(range(40, 56)), list(range(16, 24)))
for b in range(2):
    o = 40 + 8 * b
    A(f"v_add_f32 v{o}, v{o}, v{o+1}\nv_add_f32 v{o+2}, v{o+2}, v{o+3}\nv_add_f32 v{o+4}, v{o+4}, v{o+5}\nv_add_f32 v{o+6}, v{o+6}, v{o+7}")
    A(f"v_add_f32 v{o}, v{o}, v{o+2}\nv_add_f32 v{o+4}, v{o+4}, v{o+6}\nv_add_f32 v{o}, v{o}, v{o+4}")
rowsum([40, 48])
xrow_multi("v_add_f32", [40, 48], [41, 49])
A("v_mov_b32 v41, v48")
bf16_round_pairs([40, 41], [16])
A("v_mul_f32 v40, s70, v40\nv_mul_f32 v41, s70, v41")
A("v_exp_f32 v40, v40\nv_exp_f32 v41, v41")
A("s_nop 0")
A("v_add_f32 v40, 1.0, v40\nv_add_f32 v41, 1.0, v41")
A("v_rcp_f32 v40, v40\nv_rcp_f32 v41, v41")
A("s_nop 0")
bf16_round_pairs([40, 41], [16])
A("v_sub_f32 v42, 1.0, v40\nv_sub_f32 v43, 1.0, v41")
bf16_round_pairs([42, 43], [16])
A(f"v_mov_b32 v4, {GT}")
A("ds_write_b128 v4, v[40:43]")
A("s_waitcnt lgkmcnt(0)")
tags()

LB("L_vload")
srd(40, 8, 0x8000000)
A("s_sub_u32 s35, s30, 2")
A("s_lshl_b32 s60, s35, 2\nv_add_u32 v4, s60, v3\nv_lshrrev_b32 v5, 1, v2\nv_xor_b32 v4, v4, v5")
A("v_and_b32 v5, 1, v2\nv_lshl_add_u32 v4, v4, 1, v5\nv_lshlrev_b32 v4, 4, v4\nv_lshl_add_u32 v4, v3, 8, v4")
A("s_lshl_b32 s61, s35, 10\ns_add_u32 s62, s50, s61")
A("s_and_b32 s60, s51, 15\ns_lshl_b32 s60, s60, 12")
A(f"v_mov_b32 v12, {CNT}\nv_mov_b32 v13, 1")
A(f"s_lshl_b32 s63, s35, 2\ns_add_u32 s63, s63, {CNT+O_VL}\nv_mov_b32 v11, s63")
A("v_mov_b32 v8, 4\nv_mov_b32 v9, 6\nv_mov_b32 v10, 8")
def vblk(i):
    A(f"s_add_u32 s63, s62, s60\ns_add_u32 m0, s61, {VI + 4096*i}")
    A("s_add_u32 s60, s60, 4096\ns_and_b32 s60, s60, 0xffff")
    A(f"buffer_load_dwordx4 v4, s[40:43], s63 offen {KVF} lds")
    A(f"buffer_load_dwordx4 v4, s[40:43], s63 offen offset:2048 {KVF} lds")
A("s_barrier\ns_barrier")
for i in range(2 * VB): vblk(i)
A("s_barrier\ns_barrier")
IB = OPT.get("ib", 16)
for i in range(2 * VB, 17):
    if i == max(IB, 2 * VB):
        A("s_mov_b32 exec_lo, 1\ns_mov_b32 exec_hi, 0")
        A(f"ds_add_u32 v12, v13 offset:{O_I}")
        A("s_mov_b64 exec, -1")
    if i < 16: vblk(i)
A("s_mov_b32 exec_lo, 1\ns_mov_b32 exec_hi, 0")
ts()
A("s_waitcnt vmcnt(16)")
A("ds_write_b32 v11, v8")
ts()
A("s_waitcnt vmcnt(8)")
A("ds_write_b32 v11, v9")
A("s_waitcnt vmcnt(0)")
A("ds_write_b32 v11, v10")
A("s_mov_b64 exec, -1")
ts()
A("s_branch L_final")

LB("L_w0")
ts_reset()
dma_voff(4, 13, 8, 9)
A("s_lshl_b32 s60, s52, 20\ns_lshl_b32 s61, s31, 10\ns_add_u32 s60, s60, s61\ns_lshl_b32 s61, s53, 7\ns_add_u32 s60, s60, s61")
A("s_lshl_b32 s61, s52, 8")
A("s_waitcnt lgkmcnt(0)")
ts0()
srd(40, 10, 0x400000)
for i in range(16):
    A(f"s_mov_b32 m0, {WQI+1024*i}")
    if i: A(f"s_add_u32 s60, s60, {8*8192}")
    else: A("s_nop 0")
    A(f"buffer_load_dwordx4 v4, s[40:43], s60 offen {WF} lds")
srd(36, 4, 2048)
XA, BB, AC = 16, 32, 96
for t in range(4):
    A(f"buffer_load_dwordx2 v[{XA+4*t}:{XA+4*t+1}], v6, s[36:39], s61 offen offset:{64*t}")
    A(f"buffer_load_dwordx2 v[{XA+4*t+2}:{XA+4*t+3}], v6, s[36:39], s61 offen offset:{64*t+32}")
A("s_barrier")
ws_srds()
A("s_load_dwordx2 s[56:57], s[28:29], 0")
fconsts(); consts()
for q4 in range(4): tr_addr(8 + q4, q4, 12, 13, WQI)
A(f"v_lshlrev_b32 v12, 2, v0\nv_add_u32 v12, {QT}, v12\nv_and_b32 v13, 31, v0\nv_lshlrev_b32 v13, 4, v13\nv_add_u32 v13, {QT}, v13")
A("v_and_b32 v14, 1, v3\nv_lshlrev_b32 v14, 13, v14\nv_lshl_add_u32 v14, v2, 4, v14")
A("s_lshl_b32 s62, s31, 14\ns_lshl_b32 s63, s52, 11\ns_add_u32 s62, s62, s63\ns_lshl_b32 s63, s53, 8\ns_add_u32 s62, s62, s63")
A(f"s_add_u32 s62, s62, {hex(QX)}")
A("s_waitcnt lgkmcnt(0)")
tags()
A("v_mov_b32 v5, s58")
A("s_waitcnt vmcnt(0)")
ts()
seq = [(q4, t) for q4 in range(4) for t in range(4)]
D = 6
def issue(k):
    q4, t = seq[k]; tr_read(BB + 4 * k, 8 + q4, 0, t)
for k in range(D): issue(k)
for k in range(16):
    q4, t = seq[k]
    A(f"s_waitcnt lgkmcnt({2*(min(16,k+D)-k)-2})")
    mfma(AC + 4 * q4, XA + 4 * t, BB + 4 * k, None if t == 0 else AC + 4 * q4)
    if k + D < 16: issue(k + D)
A("s_nop 7\ns_nop 1")
for r in range(2): select4([AC + 4 * q + r for q in range(4)])
A("s_nop 0")
for r in range(2): A(f"v_permlane32_swap_b32 v{AC+r}, v{AC+8+r}")
A("s_nop 0")
A(f"ds_write_b32 v12, v{AC}\nds_write_b32 v12, v{AC+1} offset:256")
A("ds_read_b128 v[116:119], v13")
A("s_waitcnt lgkmcnt(0)")
stamp(112, [116, 117, 118, 119], 5)
A("s_mov_b32 exec_hi, 0")
if not OPT.get("nos"): publish(112, 14, "s62")
A("s_mov_b64 exec, -1")
ts()
A("s_barrier")
srd(36, 12, 0x400000)
srd(40, 20, 1792 * 1024)
dma_voff(4, 10, 8, 9)
if OPT.get("cshift"):
    A(f"s_add_u32 s63, s53, {OPT['cshift']}\ns_and_b32 s63, s63, 7\ns_lshl_b32 s63, s63, 7\ns_lshl_b32 s60, s54, 17\ns_add_u32 s60, s60, s63")
else:
  A("s_lshl_b32 s60, s54, 17\ns_lshl_b32 s63, s53, 7\ns_add_u32 s60, s60, s63")
A("s_lshl_b32 s61, s55, 16\ns_add_u32 s61, s61, s63")
A(f"v_mov_b32 v12, {CNT}\nv_mov_b32 v8, 1\nv_mov_b32 v9, 2\nv_mov_b32 v10, 3")
A("s_barrier\ns_barrier\ns_barrier")
lds_spin("L_ispin", 12, O_I, 2)
ts()
A("s_cmp_eq_u32 s49, 0\ns_cbranch_scc1 L_w0_nowd")
for i in range(8):
    A(f"s_mov_b32 m0, {WDI+1024*i}")
    if i: A(f"s_add_u32 s61, s61, {8*1024}")
    else: A("s_nop 0")
    A(f"buffer_load_dwordx4 v4, s[40:43], s61 offen {WF} lds")
LB("L_w0_nowd")
for i in range(16):
    A(f"s_mov_b32 m0, {WOI+1024*i}")
    if i: A(f"s_add_u32 s60, s60, {8*1024}")
    else: A("s_nop 0")
    A(f"buffer_load_dwordx4 v4, s[36:39], s60 offen {WF} lds")
ts()
A("s_waitcnt vmcnt(16)")
A(f"ds_write_b32 v12, v8 offset:{O_STAGE}")
ts()
A("s_waitcnt vmcnt(8)")
A(f"ds_write_b32 v12, v9 offset:{O_STAGE}")
ts()
A("s_waitcnt vmcnt(0)")
A(f"ds_write_b32 v12, v10 offset:{O_STAGE}")
ts()
A("s_branch L_final")

LB("L_w1_idle")
A("s_waitcnt lgkmcnt(0)")
ts0()
ws_srds()
A("s_load_dwordx2 s[56:57], s[28:29], 0")
A("s_barrier")
fconsts(); consts()
A("s_waitcnt lgkmcnt(0)")
tags()
A("s_barrier\ns_barrier\ns_barrier\ns_barrier")
A("s_branch L_final")
LB("L_w1")
ts_reset()
A("s_cmp_eq_u32 s49, 0\ns_cbranch_scc1 L_w1_idle")
A("s_movk_i32 s60, 3584")
dma_voff(4, "s60", 8, 9)
A("s_mul_i32 s60, s53, 64*3584\ns_lshl_b32 s61, s55, 7\ns_add_u32 s60, s60, s61")
A("s_lshl_b32 s61, s53, 7")
A("s_waitcnt lgkmcnt(0)")
ts0()
srd(36, 16, 512 * 3584)
srd(40, 18, 512 * 3584)
for i in range(8):
    A(f"s_mov_b32 m0, {GI+1024*i}")
    if i: A(f"s_add_u32 s60, s60, {8*3584}")
    else: A("s_nop 0")
    A(f"buffer_load_dwordx4 v4, s[36:39], s60 offen {WF} lds")
    A(f"s_mov_b32 m0, {UI+1024*i}\ns_nop 0")
    A(f"buffer_load_dwordx4 v4, s[40:43], s60 offen {WF} lds")
srd(76, 4, 2048)
for t in range(2):
    A(f"buffer_load_dwordx2 v[{XA+4*t}:{XA+4*t+1}], v6, s[76:79], s61 offen offset:{64*t}")
    A(f"buffer_load_dwordx2 v[{XA+4*t+2}:{XA+4*t+3}], v6, s[76:79], s61 offen offset:{64*t+32}")
A("s_barrier")
ws_srds()
A("s_load_dwordx2 s[56:57], s[28:29], 0")
fconsts(); consts()
for q4 in range(4): tr_addr(8 + q4, q4, 12, 13, GI)
A("v_lshlrev_b32 v5, 4, v0")
A("s_lshl_b32 s62, s55, 13")
A(f"s_add_u32 s62, s62, {hex(HX)}")
A("s_lshl_b32 s63, s53, 10\ns_add_u32 s63, s63, s62")
A("s_add_u32 s61, s62, 4096")
A(f"v_lshlrev_b32 v12, 1, v0\nv_add_u32 v12, {HS}, v12")
A(f"v_mov_b32 v13, {CNT+O_H}\nv_mov_b32 v14, 1")
A("s_waitcnt lgkmcnt(0)")
tags()
A("v_mov_b32 v4, s58")
A("s_waitcnt vmcnt(0)")
ts()
seq = [(mat, q4, t) for mat in range(2) for q4 in range(4) for t in range(2)]
BB1 = 24
AC1 = 88
def issue(k):
    mat, q4, t = seq[k]; tr_read(BB1 + 4 * k, 8 + q4, (UI - GI) if mat else 0, t)
for k in range(D): issue(k)
for k in range(16):
    mat, q4, t = seq[k]
    A(f"s_waitcnt lgkmcnt({2*(min(16,k+D)-k)-2})")
    acc = AC1 + 16 * mat + 4 * q4
    mfma(acc, XA + 4 * t, BB1 + 4 * k, None if t == 0 else acc)
    if k + D < 16: issue(k + D)
A("s_nop 7\ns_nop 1")
for mat in range(2):
    for r in range(2): select4([AC1 + 16 * mat + 4 * q + r for q in range(4)])
A("s_nop 0")
for mat in range(2):
    for r in range(2): A(f"v_permlane32_swap_b32 v{AC1+16*mat+r}, v{AC1+16*mat+8+r}")
A("s_nop 0")
stamp(120, [AC1, AC1 + 1, AC1 + 16, AC1 + 17], 4)
if not OPT.get("nos"): publish(120, 5, "s63")
ts()
A("s_barrier\ns_barrier\ns_barrier")
HG = 16
def hgather(sr=FA):
    for rb in range(8):
        r = HG + 4 * rb
        A(f"buffer_load_dwordx4 v[{r}:{r+3}], v5, {sr}, s{62 - rb//4} offen offset:{(rb%4)*1024} sc1")
if not OPT.get("nog"): hgather()
A("s_barrier")
ts()
LB("L_d3")
A("s_waitcnt vmcnt(0)")
poll_check("L_hchk", [HG + 4 * i for i in range(8)], 96, hgather, tagcheck_dense, 4)
ts()
for c in range(32): A(f"v_and_b32 v{HG+c}, 0xffffff00, v{HG+c}")
for step in (16, 8, 4):
    for base in range(HG, HG + step, 4):
        for o in range(4):
            A(f"v_add_f32 v{base+o}, v{base+o}, v{base+step+o}")
bf16_round_pairs([16, 17, 18, 19], [24, 25])
A("v_mul_f32 v24, s70, v16\nv_mul_f32 v25, s70, v17")
A("v_exp_f32 v24, v24\nv_exp_f32 v25, v25")
A("s_nop 0")
A("v_add_f32 v24, 1.0, v24\nv_add_f32 v25, 1.0, v25")
A("v_rcp_f32 v24, v24\nv_rcp_f32 v25, v25")
A("s_nop 0")
A("v_mul_f32 v16, v16, v24\nv_mul_f32 v17, v17, v25")
bf16_round_pairs([16, 17], [24])
A("v_mul_f32 v16, v16, v18\nv_mul_f32 v17, v17, v19")
A("v_cvt_pk_bf16_f32 v24, v16, v17")
A("ds_write_b16 v12, v24")
A("ds_write_b16_d16_hi v12, v24 offset:128")
A("ds_write_b32 v13, v14")
ts()

LB("L_final")
if TS: ts_n[0] = 8
tr_addr(8, "s30", 12, 13, WOI)
A(f"v_mov_b32 v12, {CNT}")
A(f"v_and_b32 v9, 1, v2\nv_lshlrev_b32 v10, 7, v9\nv_lshl_add_u32 v10, v3, 3, v10\nv_add_u32 v10, {HS}, v10")
A(f"v_lshlrev_b32 v9, 8, v9\nv_lshl_add_u32 v9, v3, 3, v9\nv_add_u32 v9, {OV}, v9")
A("v_lshrrev_b32 v11, 2, v2\nv_lshlrev_b32 v11, 11, v11\nv_and_b32 v13, 3, v2\nv_lshl_add_u32 v11, v13, 4, v11")
A("s_lshl_b32 s60, s53, 15\ns_lshl_b32 s61, s30, 13\ns_add_u32 s60, s60, s61\ns_lshl_b32 s61, s54, 6\ns_add_u32 s60, s60, s61")
A(f"s_add_u32 s60, s60, {hex(H2)}")
A(f"v_and_b32 v7, 31, v0\nv_mul_u32_u24 v7, {OBS}, v7")
A(f"s_mul_i32 s61, s31, {32*OBS}\ns_lshl_b32 s62, s52, 4\ns_add_u32 s61, s61, s62")
A(f"s_add_u32 s61, s61, {hex(H1+2048)}")
A(f"v_mov_b32 v13, {GT}")
A("ds_read_b128 v[60:63], v13")
A("v_mov_b32 v65, s58\nv_mov_b32 v67, s59")
A("v_mov_b32 v56, 0\nv_mov_b32 v57, 0")
lds_spin("L_fs6", 12, O_PUB, 8)
def lgather(sr=FA):
    A(f"buffer_load_dwordx4 v[68:71], v7, {sr}, s61 offen sc1")
memgrp(lgather)
A("s_cmp_eq_u32 s49, 0\ns_cbranch_scc1 L_f_nofb")
lds_spin("L_fs1", 12, O_STAGE, 1)
for t in range(2): tr_read(16 + 4 * t, 8, WDI - WOI, t)
lds_spin("L_fs2", 12, O_H, 1)
for t in range(2):
    A(f"ds_read2_b64 v[{24+4*t}:{27+4*t}], v10 offset0:{8*t} offset1:{8*t+4}")
A("s_waitcnt lgkmcnt(0)")
mfma(56, 24, 16, None)
mfma(56, 28, 20, 56)
A("s_nop 7\ns_nop 1")
A("v_mul_f32 v56, v56, v62\nv_mul_f32 v57, v57, v63")
LB("L_f_nofb")
ts()
lds_spin("L_fs3", 12, O_STAGE, 3)
for t in range(4): tr_read(16 + 4 * t, 8, 0, t)
ts()
A("s_waitcnt vmcnt(0)")
poll_check("L_lchk", [68], 72, lgather)
A("v_mov_b32 v72, v70")
A("v_mov_b32 v73, v70")
for sh in (8, 4, 2, 1):
    A("s_nop 1")
    A(f"v_max_f32_dpp v73, v73, v73 row_ror:{sh} row_mask:0xf bank_mask:0xf")
A("v_sub_f32 v72, v72, v73\nv_mul_f32 v72, s69, v72\nv_exp_f32 v72, v72\ns_nop 0\nv_mul_f32 v72, v72, v68")
rowsum([72])
A("v_rcp_f32 v72, v72")
A("s_nop 1")
A("v_readlane_b32 s62, v72, 0\nv_readlane_b32 s63, v72, 16")
A("s_nop 1")
A("v_mul_f32 v60, s62, v60\nv_mul_f32 v61, s63, v61")
ts()
lds_spin("L_fs4", 12, O_V, 4)
for t in range(4):
    A(f"ds_read2_b64 v[{32+4*t}:{35+4*t}], v9 offset0:{8*t} offset1:{8*t+4}")
for t in range(4):
    A(f"s_waitcnt lgkmcnt({3-t})")
    mfma(48, 32 + 4 * t, 16 + 4 * t, None if t == 0 else 48)
exec_mask(0xffff, 0)
A("s_nop 6")
A("v_fma_f32 v64, v48, v60, v56\nv_fma_f32 v66, v49, v61, v57")
dry_end()
publish(64, 11, "s60", dual=False)
ts()
ts_dump()
LB("L_end")
A("s_endpgm")

L.append(f""".section .rodata,"a"
.p2align 6
.amdhsa_kernel {NAME}
  .amdhsa_next_free_vgpr 128
  .amdhsa_next_free_sgpr 102
  .amdhsa_accum_offset 128
  .amdhsa_group_segment_fixed_size 0
  .amdhsa_kernarg_size 104
  .amdhsa_user_sgpr_count 2
  .amdhsa_user_sgpr_kernarg_segment_ptr 1
  .amdhsa_system_sgpr_workgroup_id_x 1
.end_amdhsa_kernel""")
open(out, "w").write("\n".join(L) + "\n")
```

```python
import sys

OPT = dict(ts=0, kv_fl="nt", w_fl="nt", ka=6, vb=1, spin=400000, pst=0, dry=1, slp=0, pre=0, prew=0, dual=1, bper=8, spre=0)
out = sys.argv[1]
for a in sys.argv[2:]:
    k, v = a.split("=")
    OPT[k] = int(v) if v.lstrip("-").isdigit() else v.replace("+", " ").replace("none", "")
TS = OPT["ts"]

NAME = "gated_mix__sliding_block_cached__swiglu_ffn__decode_kernel"
HEADER = open("gated_mix__sliding_block_cached__swiglu_ffn__decode.s.ref").read().split("; Override launch")[0]

L = []
def A(s):
    for l in s.split("\n"):
        L.append("    " + l.strip())
def LB(s):
    L.append(s + ":")
def C(s):
    L.append("    ; " + s)

VI = 0
WQI = 65536
GI = 81920
UI = 90112
WOI = 98304
WDI = 114688
PS = 122880
QS = 124928
OV = 125952
HS = 126464
QT = 126720
MX = 127232
LS = 127360
GT = 127488
CNT = 127504
O_Q, O_M, O_P, O_STAGE, O_H, O_PUB, O_V, O_I, O_VL = 0, 4, 8, 12, 16, 20, 24, 28, 32
LDS_BYTES = 127744
WB = OPT.get('wb', 496) << 20
QX = WB + 0x10000
HX = WB + 0x80000
H1 = WB + 0x100000
OBS = OPT.get('obs', 2176)
H2 = WB + 0x400000
TSB = 0x800000

SCALE = 0x3DB504F3
LOG2E = 0x3FB8AA3B
NLOG2E = 0xBFB8AA3B
WF = OPT["w_fl"]

def srd(d, p, nbytes):
    A(f"s_mov_b32 s{d}, s{p}\ns_and_b32 s{d+1}, s{p+1}, 0xffff\ns_mov_b32 s{d+2}, {hex(nbytes)}\ns_mov_b32 s{d+3}, 0x20000")

ts_n = [0]
skip_n = [0]
def ts_reset():
    ts_n[0] = 1 if TS else 0
def ts():
    if not TS: return
    k = ts_n[0]; ts_n[0] += 1
    assert k < 16
    if TS == 3: return
    A(f"s_memrealtime s[72:73]\ns_waitcnt lgkmcnt(0)\nv_writelane_b32 v127, s72, {k}")
def ts_dump():
    if not TS: return
    A("s_mov_b64 exec, -1")
    if TS == 2:
        skip_n[0] += 1
        lb = f"L_sk{skip_n[0]}"
        A(f"s_cmp_lg_u32 s2, {OPT.get('dbgwg', 0)}\ns_cbranch_scc1 {lb}")
        A(f"s_cmp_lg_u32 s30, {OPT.get('dbgwave', 11)}\ns_cbranch_scc1 {lb}")
        srd(76, 26, 256)
        A("v_readlane_b32 s60, v127, 0\ns_nop 1\nv_subrev_u32 v127, s60, v127")
        A("v_lshlrev_b32 v3, 2, v0")
        A("s_mov_b32 exec_lo, 0xffff\ns_mov_b32 exec_hi, 0")
        A("buffer_store_dword v127, v3, s[76:79], 0 offen")
        LB(lb)
        return
    A("s_mul_i32 s60, s2, 12\ns_add_u32 s60, s60, s30\ns_lshl_b32 s60, s60, 6")
    A(f"s_add_u32 s60, s60, {hex(TSB)}")
    A("v_lshlrev_b32 v3, 2, v0")
    A("s_mov_b32 exec_lo, 0xffff\ns_mov_b32 exec_hi, 0")
    A("buffer_store_dword v127, v3, s[44:47], s60 offen")

def tags():
    A("s_add_u32 s58, s56, 0x01010101\ns_add_u32 s59, s57, 0x9e3779b9")
    A("s_and_b32 s88, s58, 0xffff\ns_and_b32 s89, s58, 0xffff0000")

def tagcheck(bases, acc, t0, t1):
    first = True
    for b in bases:
        A(f"v_xor_b32 v{t0}, s58, v{b+1}")
        A(f"v_xor_b32 v{t1}, s59, v{b+3}")
        if first:
            A(f"v_or_b32 v{acc}, v{t0}, v{t1}"); first = False
        else:
            A(f"v_or3_b32 v{acc}, v{acc}, v{t0}, v{t1}")

def tagcheck_dense(bases, acc, t0, t1):
    first = True
    for b in bases:
        A(f"v_perm_b32 v{t0}, v{b+1}, v{b}, s92")
        A(f"v_perm_b32 v{t1}, v{b+3}, v{b+2}, s93")
        A(f"v_xor_b32 v{t0}, s88, v{t0}")
        A(f"v_xor_b32 v{t1}, s89, v{t1}")
        if first:
            A(f"v_or_b32 v{acc}, v{t0}, v{t1}"); first = False
        else:
            A(f"v_or3_b32 v{acc}, v{acc}, v{t0}, v{t1}")

def tagcheck_16(bases, acc, t0, t1):
    for i in range(0, len(bases), 2):
        b0 = bases[i]
        A(f"v_perm_b32 v{t0}, v{b0+1}, v{b0}, s92")
        A(f"v_xor_b32 v{t0}, s88, v{t0}")
        if i + 1 < len(bases):
            b1 = bases[i + 1]
            A(f"v_perm_b32 v{t1}, v{b1+1}, v{b1}, s92")
            A(f"v_xor_b32 v{t1}, s88, v{t1}")
            if i == 0: A(f"v_or_b32 v{acc}, v{t0}, v{t1}")
            else: A(f"v_or3_b32 v{acc}, v{acc}, v{t0}, v{t1}")
        else:
            if i == 0: A(f"v_mov_b32 v{acc}, v{t0}")
            else: A(f"v_or_b32 v{acc}, v{acc}, v{t0}")

def stamp(dst, srcs, tagv):
    for i in range(4):
        A(f"v_perm_b32 v{dst+i}, v{srcs[i]}, v{tagv}, s{94+i}")

def consts():
    A("s_mov_b32 s92, 0x0c0c0400\ns_mov_b32 s93, 0x04000c0c")
    A("s_mov_b32 s94, 0x07060500\ns_mov_b32 s95, 0x07060501\ns_mov_b32 s96, 0x07060502\ns_mov_b32 s97, 0x07060503")

def exec_mask(lo, hi):
    A(f"s_and_b32 exec_lo, s90, {hex(lo)}" if lo != 0xffffffff else "s_mov_b32 exec_lo, s90")
    if hi is not None:
        A(f"s_and_b32 exec_hi, s91, {hex(hi)}" if hi else "s_mov_b32 exec_hi, 0")
def exec_all():
    A("s_mov_b64 exec, s[90:91]")
def memgrp(fn):
    skip_n[0] += 1
    lb = f"L_sk{skip_n[0]}"
    A(f"s_cbranch_execz {lb}")
    fn()
    LB(lb)
def dry_end():
    A("s_cbranch_execz L_end")

MIR = 0x800000 if OPT.get('wb', 496) else 0x1000000
def ws_srds():
    srd(44, 28, 0x20000000)
    A(f"s_add_u32 s80, s28, {hex(MIR)}\ns_addc_u32 s81, s29, 0\ns_and_b32 s81, s81, 0xffff\ns_mov_b32 s82, {hex(0x20000000-MIR)}\ns_mov_b32 s83, 0x20000")
    A("s_mov_b32 s74, 0")

def publish(data, voff, soff, off=0, dual=True):
    o = f" offset:{off}" if off else ""
    if dual and OPT["dual"]:
        A(f"buffer_store_dwordx4 v[{data}:{data+3}], v{voff}, s[44:47], {soff} offen{o}")
    A(f"buffer_store_dwordx4 v[{data}:{data+3}], v{voff}, s[80:83], {soff} offen{o} sc1")

def poll_check(label, bases, tmp, reissue, chk=tagcheck, grp=1, dual=True):
    dual = dual and OPT["dual"]
    LB(label)
    chk(bases, tmp, tmp + 1, tmp + 2)
    if grp >= 4:
        A(f"s_nop 1\nv_or_b32_dpp v{tmp}, v{tmp}, v{tmp} quad_perm:[1,0,3,2] row_mask:0xf bank_mask:0xf")
        A(f"s_nop 1\nv_or_b32_dpp v{tmp}, v{tmp}, v{tmp} quad_perm:[2,3,0,1] row_mask:0xf bank_mask:0xf")
    if grp >= 8:
        A(f"s_nop 1\nv_or_b32_dpp v{tmp}, v{tmp}, v{tmp} row_half_mirror row_mask:0xf bank_mask:0xf")
    A(f"v_cmp_ne_u32 vcc, 0, v{tmp}")
    A("s_nop 1")
    A(f"s_cbranch_vccz {label}_ok")
    if OPT.get("nopoll"): A(f"s_branch {label}_ok")
    A(f"s_sub_u32 s67, s67, 1\ns_cbranch_scc1 {label}_ok")
    A("s_mov_b64 exec, vcc")
    if OPT["slp"]: A(f"s_sleep {OPT['slp']}")
    if dual:
        A(f"s_add_u32 s74, s74, 1\ns_and_b32 s75, s74, {OPT['bper']-1}\ns_cbranch_scc0 {label}_b")
        reissue("s[44:47]")
        A("s_waitcnt vmcnt(0)")
        A(f"s_branch {label}")
        LB(label + "_b")
    reissue("s[80:83]")
    A("s_waitcnt vmcnt(0)")
    A(f"s_branch {label}")
    LB(label + "_ok")
    exec_all()

def xrow_multi(op, vs, ts_, steps=("v_permlane16_swap_b32", "v_permlane32_swap_b32")):
    for sw in steps:
        for v, t in zip(vs, ts_):
            A(f"v_mov_b32 v{t}, v{v}")
        if len(vs) < 2: A("s_nop 1")
        elif len(vs) < 3: A("s_nop 0")
        for v, t in zip(vs, ts_):
            A(f"{sw} v{v}, v{t}")
        A("s_nop 0")
        for v, t in zip(vs, ts_):
            A(f"{op} v{v}, v{v}, v{t}")

def xrow_t4(v):
    A(f"v_permlane16_swap_b32 v{v}, v{v+1}")
    A(f"v_permlane16_swap_b32 v{v+2}, v{v+3}")
    A("s_nop 0")
    A(f"v_add_f32 v{v}, v{v}, v{v+1}")
    A(f"v_add_f32 v{v+2}, v{v+2}, v{v+3}")
    A("s_nop 1")
    A(f"v_permlane32_swap_b32 v{v}, v{v+2}")
    A("s_nop 0")
    A(f"v_add_f32 v{v}, v{v}, v{v+2}")

def transpose8(raw, dst, pairs=(0, 1, 2, 3)):
    for v in pairs:
        for w in range(4):
            a = raw + 4 * (2 * v) + w
            b = raw + 4 * (2 * v + 1) + w
            A(f"v_perm_b32 v{dst + 4*(2*w) + v}, v{b}, v{a}, s64")
            A(f"v_perm_b32 v{dst + 4*(2*w+1) + v}, v{b}, v{a}, s65")

def bf16_round_pairs(vs, tmp):
    n = len(vs) // 2
    for i in range(n):
        A(f"v_cvt_pk_bf16_f32 v{tmp[i]}, v{vs[2*i]}, v{vs[2*i+1]}")
    for i in range(n):
        A(f"v_lshlrev_b32 v{vs[2*i]}, 16, v{tmp[i]}")
        A(f"v_and_b32 v{vs[2*i+1]}, 0xffff0000, v{tmp[i]}")

def lds_spin(label, addr_v, off, val):
    A(f"s_cbranch_execz {label}_x")
    LB(label)
    A(f"ds_read_b32 v15, v{addr_v} offset:{off}")
    A("s_waitcnt lgkmcnt(0)")
    A("v_readfirstlane_b32 s66, v15")
    A("s_sub_u32 s67, s67, 1")
    A(f"s_cbranch_scc1 {label}_x")
    A(f"s_cmp_lt_u32 s66, {val}")
    A(f"s_cbranch_scc1 {label}")
    LB(label + "_x")

def rowsum(vs, shifts=(8, 4, 2, 1)):
    for sh in shifts:
        if len(vs) < 3: A("s_nop 1")
        for v in vs:
            A(f"v_add_f32_dpp v{v}, v{v}, v{v} row_ror:{sh} row_mask:0xf bank_mask:0xf")

def dma_voff(dst, stride_sreg_or_shift, t0, t1):
    A(f"v_bfe_u32 v{t0}, v0, 1, 2\nv_bfe_u32 v{t1}, v0, 4, 2\nv_xor_b32 v{t0}, v{t0}, v{t1}")
    A(f"v_and_b32 v{t1}, 1, v0\nv_lshl_add_u32 v{t0}, v{t0}, 1, v{t1}\nv_lshlrev_b32 v{t0}, 4, v{t0}")
    A(f"v_lshrrev_b32 v{t1}, 3, v0")
    if isinstance(stride_sreg_or_shift, int):
        A(f"v_lshl_add_u32 v{dst}, v{t1}, {stride_sreg_or_shift}, v{t0}")
    else:
        A(f"v_mul_lo_u32 v{t1}, v{t1}, {stride_sreg_or_shift}\nv_add_u32 v{dst}, v{t1}, v{t0}")

def tr_addr(dst, q4, t0, t1, base):
    A(f"v_bfe_u32 v{t0}, v0, 3, 2")
    A(f"v_xor_b32 v{t0}, {q4}, v{t0}")
    A(f"v_lshlrev_b32 v{t0}, 5, v{t0}")
    A(f"v_and_b32 v{t1}, 3, v0\nv_lshl_add_u32 v{t0}, v{t1}, 3, v{t0}")
    A(f"v_lshrrev_b32 v{t1}, 2, v0\nv_lshl_add_u32 v{dst}, v{t1}, 7, v{t0}")
    A(f"v_add_u32 v{dst}, {base}, v{dst}")

def tr_read(dst, addr_v, off, t):
    A(f"ds_read_b64_tr_b16 v[{dst}:{dst+1}], v{addr_v} offset:{off + 4096*t}")
    A(f"ds_read_b64_tr_b16 v[{dst+2}:{dst+3}], v{addr_v} offset:{off + 4096*t + 2048}")

def lds_spin2(label, addr_v, off, val):
    A(f"s_cbranch_execz {label}_x")
    LB(label)
    A(f"ds_read_b64 v[14:15], v{addr_v} offset:{off}")
    A("s_waitcnt lgkmcnt(0)")
    A("v_min_u32 v15, v14, v15")
    A("s_sub_u32 s67, s67, 1")
    A("v_readfirstlane_b32 s66, v15")
    A(f"s_cbranch_scc1 {label}_x")
    A(f"s_cmp_lt_u32 s66, {val}")
    A(f"s_cbranch_scc1 {label}")
    LB(label + "_x")

def bump(off):
    exec_mask(1, 0)
    A(f"ds_add_u32 v12, v13 offset:{off}")
    exec_all()

def mfma(d, a, b, c):
    cs = "0" if c is None else f"v[{c}:{c+3}]"
    A(f"v_mfma_f32_16x16x32_bf16 v[{d}:{d+3}], v[{a}:{a+3}], v[{b}:{b+3}], {cs}")

def select4(xs):
    A(f"v_permlane16_swap_b32 v{xs[0]}, v{xs[1]}")
    A(f"v_permlane16_swap_b32 v{xs[2]}, v{xs[3]}")

NWAVES = 16 if OPT["dry"] else 12
L.append(HEADER.rstrip())
L.append(f"; @launch grid=(256,1,1) block=({NWAVES*64},1,1) lds={LDS_BYTES}")
L.append('.amdgcn_target "amdgcn-amd-amdhsa--gfx950"')
L.append(".text")
L.append(f".globl {NAME}\n.p2align 8\n.type {NAME},@function\n{NAME}:")
A("s_cmp_ge_u32 s2, 256\ns_cbranch_scc1 L_end")
if OPT.get("xorwg"): A(f"s_xor_b32 s2, s2, {OPT['xorwg']}")
A("s_load_dwordx16 s[4:19], s[0:1], 0")
A("s_load_dwordx8 s[20:27], s[0:1], 64")
A("s_load_dwordx2 s[28:29], s[0:1], 96")
if TS: A("s_memrealtime s[72:73]")
A("v_lshrrev_b32 v1, 6, v0")
A("v_and_b32 v0, 63, v0")
A("s_and_b32 s31, s2, 7")
A("v_readfirstlane_b32 s30, v1")
A("s_lshr_b32 s32, s2, 3")
A("s_lshr_b32 s33, s32, 4")
A("s_and_b32 s34, s32, 15")
A(f"s_mov_b32 s67, {OPT['spin']}")
A("s_mov_b64 s[90:91], -1")
A("v_and_b32 v2, 15, v0")
A("v_lshrrev_b32 v3, 4, v0")
A("s_lshr_b32 s52, s32, 3")
A("s_and_b32 s53, s32, 7")
A("s_lshl_b32 s54, s31, 2\ns_add_u32 s54, s54, s52")
A("s_lshl_b32 s50, s33, 3\ns_add_u32 s50, s50, s31\ns_lshl_b32 s50, s50, 23")
A("s_lshl_b32 s51, s34, 16\ns_add_u32 s50, s50, s51\ns_add_u32 s50, s50, 0x700000")
A(f"s_mul_i32 s51, s32, {OPT.get('rotm', 5)}\ns_add_u32 s51, s51, s31")
A("s_cmp_lt_u32 s30, 4\ns_cbranch_scc1 L_special")
if OPT["dry"]: A("s_cmp_ge_u32 s30, 12\ns_cbranch_scc1 L_helper")

def fconsts():
    A(f"s_mov_b32 s68, {hex(SCALE)}\ns_mov_b32 s69, {hex(LOG2E)}\ns_mov_b32 s70, {hex(NLOG2E)}")
def ts0():
    if TS: A("v_writelane_b32 v127, s72, 0")

C("================= K / attention waves =================")
ts_reset()
A("s_sub_u32 s35, s30, 4")
A("s_lshl_b32 s62, s35, 1\ns_add_u32 s62, s62, s51")
A("s_add_u32 s63, s62, 1\ns_and_b32 s62, s62, 15\ns_and_b32 s63, s63, 15")
A("s_lshl_b32 s62, s62, 12\ns_lshl_b32 s63, s63, 12")
A("s_add_u32 s61, s50, s63\ns_add_u32 s60, s50, s62")
A("v_lshlrev_b32 v4, 8, v2\nv_lshl_add_u32 v4, v3, 4, v4")
A("s_waitcnt lgkmcnt(0)")
ts0()
srd(36, 6, 0x8000000)
KR, QR = 16, 80
KVF = OPT["kv_fl"]
def kload(i):
    t, j = i // 4, i % 4
    A(f"buffer_load_dwordx4 v[{KR+4*i}:{KR+4*i+3}], v4, s[36:39], s{60+t} offen offset:{j*64} {KVF}")
FA = "s[44:47]" if OPT["dual"] else "s[80:83]"
def qgather(sr=FA):
    A(f"buffer_load_dwordx4 v[{QR}:{QR+3}], v6, {sr}, s62 offen sc1")
KA, VB = OPT["ka"], OPT["vb"]
A("s_barrier")
for i in range(KA): kload(i)
ws_srds()
A("s_load_dwordx2 s[56:57], s[28:29], 0")
fconsts(); consts()
A("s_lshl_b32 s62, s31, 1\ns_add_u32 s62, s62, s33\ns_lshl_b32 s62, s62, 13")
A("s_lshl_b32 s63, s35, 8\ns_add_u32 s62, s62, s63")
A(f"s_add_u32 s62, s62, {hex(QX)}")
A("v_lshlrev_b32 v6, 11, v3\nv_lshl_add_u32 v6, v2, 4, v6")
A(f"v_mov_b32 v12, {CNT}\nv_mov_b32 v13, 1")
A("v_and_b32 v14, 3, v2")
A(f"s_lshl_b32 s71, s35, 7\ns_add_u32 s71, s71, {QS}")
A("v_lshl_add_u32 v10, v2, 3, s71\nv_lshl_add_u32 v10, v3, 1, v10")
A(f"v_lshlrev_b32 v11, 8, v14\nv_lshl_add_u32 v11, v3, 4, v11\nv_add_u32 v11, {QS}, v11")
A(f"v_lshlrev_b32 v8, 5, v14\nv_add_u32 v8, {MX}, v8")
A("s_lshl_b32 s71, s35, 2\nv_add_u32 v9, s71, v8")
A(f"v_lshl_add_u32 v7, v3, 2, v14\nv_lshlrev_b32 v7, 4, v7\nv_add_u32 v7, {PS}, v7")
A("s_lshl_b32 s71, s35, 8\nv_add_u32 v5, s71, v7")
A("v_bfe_u32 v120, v0, 2, 3\nv_xor_b32 v120, s35, v120\nv_lshlrev_b32 v120, 5, v120")
A("v_and_b32 v121, 3, v0\nv_lshl_add_u32 v120, v121, 3, v120\nv_lshrrev_b32 v121, 2, v0\nv_lshl_add_u32 v120, v121, 8, v120")
A("v_lshlrev_b32 v121, 9, v14\nv_lshl_add_u32 v121, v3, 4, v121")
A(f"s_lshl_b32 s76, s31, 5\ns_add_u32 s49, s76, s32\ns_mul_i32 s49, s49, {OBS}\ns_add_u32 s49, s49, {hex(H1)}")
A("s_lshl_b32 s71, s35, 6\ns_add_u32 s48, s49, s71")
A(f"v_lshrrev_b32 v122, 3, v2\nv_lshl_add_u32 v122, v122, 4, v3\nv_mul_u32_u24 v122, {OBS}, v122")
A("v_and_b32 v123, 7, v2\nv_lshl_add_u32 v122, v123, 4, v122")
A(f"s_mul_i32 s76, s76, {OBS}\ns_add_u32 s76, s76, {hex(H1)}")
A("s_lshl_b32 s71, s52, 9\ns_add_u32 s76, s76, s71\ns_lshl_b32 s71, s35, 7\ns_add_u32 s76, s76, s71")
for i in range(1, 4): A(f"s_add_u32 s{76+i}, s76, {i*4*OBS}")
A(f"s_lshl_b32 s71, s35, 6\ns_add_u32 s71, s71, {OV}")
A("v_lshrrev_b32 v124, 3, v2\nv_lshlrev_b32 v124, 8, v124\nv_lshl_add_u32 v124, v123, 3, v124\nv_lshl_add_u32 v124, v3, 1, v124\nv_add_u32 v124, s71, v124")
A("s_waitcnt lgkmcnt(0)")
tags()
A("s_barrier")
ts()
for i in range(KA, 8): kload(i)
if OPT["prew"]:
    A("s_not_b32 s71, s58")
    A("v_mov_b32 v100, s71\nv_mov_b32 v101, s71\nv_mov_b32 v102, s71\nv_mov_b32 v103, s71")
    A("v_lshrrev_b32 v101, 8, v101")
    A("s_mov_b32 exec_lo, 0x000f000f\ns_mov_b32 exec_hi, 0x000f000f")
    A(f"buffer_store_dwordx4 v[100:103], v121, {FA}, s48 offen" + ("" if OPT["dual"] else " sc1"))
    A("s_cmp_lg_u32 s35, 7\ns_cbranch_scc1 L_pw1")
    A("v_lshlrev_b32 v104, 4, v2")
    A("s_mov_b32 exec_lo, 0xff\ns_mov_b32 exec_hi, 0")
    A(f"buffer_store_dwordx4 v[100:103], v104, {FA}, s49 offen offset:2048" + ("" if OPT["dual"] else " sc1"))
    LB("L_pw1")
    A("s_mov_b64 exec, -1")
A("s_barrier")
A("s_barrier")
ts()
if not OPT.get("nog"): qgather()
A("s_barrier")
ts()
LB("L_d0")
A("s_waitcnt vmcnt(0)")
poll_check("L_qchk", [QR], 88, qgather, tagcheck_dense, 4)
if TS: A("v_writelane_b32 v127, s74, 13")
ts()
for c in range(4): A(f"v_and_b32 v{QR+c}, 0xffffff00, v{QR+c}")
A("s_nop 0")
xrow_t4(QR)
A(f"v_cvt_pk_bf16_f32 v{QR}, v{QR}, v{QR}")
A(f"ds_write_b16 v10, v{QR}")
bump(O_Q)
lds_spin("L_qspin", 12, O_Q, 8)
for j in range(4):
    A(f"ds_read_b128 v[{QR+4*j}:{QR+4*j+3}], v11 offset:{64*j}")
for j in range(4):
    A(f"s_waitcnt lgkmcnt({3-j})")
    for t in range(2):
        k = KR + 4 * (4 * t + j)
        mfma(96 + 4 * t, k, QR + 4 * j, None if j == 0 else 96 + 4 * t)
A("s_nop 7\ns_nop 1")
S = list(range(96, 104))
bf16_round_pairs(S, [112, 113, 114, 115])
for v in S: A(f"v_mul_f32 v{v}, s68, v{v}")
bf16_round_pairs(S, [112, 113, 114, 115])
A("v_max3_f32 v116, v96, v97, v98\nv_max3_f32 v116, v116, v99, v100\nv_max3_f32 v116, v116, v101, v102\nv_max_f32 v116, v116, v103")
xrow_multi("v_max_f32", [116], [117])
exec_mask(0xf, 0)
A("ds_write_b32 v9, v116")
bump(O_M)
lds_spin("L_mspin", 12, O_M, 8)
A("ds_read_b128 v[104:107], v8\nds_read_b128 v[108:111], v8 offset:16")
A("s_waitcnt lgkmcnt(0)")
A("v_max3_f32 v116, v104, v105, v106\nv_max3_f32 v116, v116, v107, v108\nv_max3_f32 v116, v116, v109, v110\nv_max_f32 v116, v116, v111")
A("v_mul_f32 v117, s70, v116")
for v in S: A(f"v_fma_f32 v{v}, v{v}, s69, v117")
for v in S: A(f"v_exp_f32 v{v}, v{v}")
A("v_or_b32 v125, s88, v116")
for i in range(4): A(f"v_cvt_pk_bf16_f32 v{112+i}, v{96+2*i}, v{97+2*i}")
A("v_add_f32 v117, v96, v97\nv_add_f32 v118, v98, v99\nv_add_f32 v119, v100, v101\nv_add_f32 v104, v102, v103")
A("v_add_f32 v117, v117, v118\nv_add_f32 v119, v119, v104\nv_add_f32 v117, v117, v119")
exec_mask(0x000f000f, 0x000f000f)
A("ds_write_b128 v5, v[112:115]")
exec_all()
xrow_multi("v_add_f32", [117], [118])
exec_mask(0xf, 0)
A("ds_write_b32 v9, v117 offset:128")
bump(O_P)
lds_spin("L_pspin1", 12, O_P, 8)
PR, VO = 16, 48
for k in range(8):
    A(f"ds_read_b128 v[{PR+4*k}:{PR+4*k+3}], v7 offset:{256*k}")
A("s_cmp_lg_u32 s35, 7\ns_cbranch_scc1 L_nol")
A("ds_read_b128 v[104:107], v8 offset:128\nds_read_b128 v[108:111], v8 offset:144")
A("v_lshlrev_b32 v10, 4, v2")
A("v_mov_b32 v97, s58\nv_mov_b32 v98, v116\nv_mov_b32 v99, s59")
A("s_waitcnt lgkmcnt(0)")
A("v_add_f32 v104, v104, v105\nv_add_f32 v106, v106, v107\nv_add_f32 v108, v108, v109\nv_add_f32 v110, v110, v111")
A("v_add_f32 v104, v104, v106\nv_add_f32 v108, v108, v110\nv_add_f32 v96, v104, v108")
exec_mask(0xf, 0)
memgrp(lambda: publish(96, 10, "s49", 2048))
exec_all()
LB("L_nol")
ts()
dry_end()
LB("L_d1")
def vstep(ks, first):
    for k in ks:
        A(f"ds_read_b64_tr_b16 v[{VO+4*k}:{VO+4*k+1}], v120 offset:{VI + 8192*k}")
        A(f"ds_read_b64_tr_b16 v[{VO+4*k+2}:{VO+4*k+3}], v120 offset:{VI + 8192*k + 4096}")
    for i, k in enumerate(ks):
        A(f"s_waitcnt lgkmcnt({2*(len(ks)-1-i)})")
        mfma(80, VO + 4 * k, PR + 4 * k, None if (first and i == 0) else 80)
lds_spin2("L_v1", 12, O_VL, 4)
vstep([0, 1, 2, 3], True)
lds_spin2("L_v2", 12, O_VL, 6)
vstep([4, 5], False)
lds_spin2("L_v3", 12, O_VL, 7)
vstep([6], False)
lds_spin2("L_v4", 12, O_VL, 8)
ts()
vstep([7], False)
exec_mask(0x000f000f, 0x000f000f)
A("s_nop 5")
stamp(84, [80, 81, 82, 83], 125)
memgrp(lambda: publish(84, 121, "s48"))
bump(O_PUB)
ts()
A("s_cmp_ge_u32 s35, 4\ns_cbranch_scc1 L_kv_h2")
lds_spin("L_pspin0", 12, O_PUB, 8)
if OPT["pst"]: lds_spin("L_pspin", 12, O_STAGE, OPT["pst"])
GR = 80
def h1gather(sr=FA):
    for i in range(4):
        A(f"buffer_load_dwordx4 v[{GR+4*i}:{GR+4*i+3}], v122, {sr}, s{76+i} offen sc1")
ts()
memgrp(h1gather)
A("s_waitcnt vmcnt(0)")
ts()
poll_check("L_h1chk", [GR + 4 * i for i in range(4)], 116, h1gather, tagcheck_16, 8)
ts()
for i in range(4): A(f"v_perm_b32 v{100+i}, v{GR+4*i+3}, v{GR+4*i+2}, s93")
A("v_max3_f32 v116, v100, v101, v102\nv_max_f32 v116, v116, v103")
xrow_multi("v_max_f32", [116], [117])
A("v_mul_f32 v117, s70, v116")
for i in range(4): A(f"v_fma_f32 v{100+i}, v{100+i}, s69, v117")
for i in range(4): A(f"v_exp_f32 v{100+i}, v{100+i}")
for c in range(16): A(f"v_and_b32 v{GR+c}, 0xffffff00, v{GR+c}")
for c in range(4): A(f"v_mul_f32 v{104+c}, v100, v{GR+c}")
for i in range(1, 4):
    for c in range(4): A(f"v_fmac_f32 v{104+c}, v{100+i}, v{GR+4*i+c}")
A("s_nop 0")
xrow_t4(104)
A("v_cvt_pk_bf16_f32 v104, v104, v104")
A("ds_write_b16 v124, v104")
bump(O_V)
ts()
dry_end()
A("s_branch L_kv_done")
LB("L_kv_h2")
A("s_cmp_lg_u32 s35, 7\ns_cbranch_scc1 L_kv_done")
A("s_cmp_ge_u32 s2, 128\ns_cbranch_scc1 L_kv_done")
LB("L_d2")
if TS: ts_n[0] = 12
srd(48, 24, 2048)
A("s_lshl_b32 s60, s2, 11")
A(f"s_add_u32 s60, s60, {hex(H2)}")
A("v_lshlrev_b32 v5, 4, v0")
def h2gather(sr="s[80:83]"):
    A(f"buffer_load_dwordx4 v[16:19], v5, {sr}, s60 offen sc1")
    A(f"buffer_load_dwordx4 v[20:23], v5, {sr}, s60 offen offset:1024 sc1")
A("v_mov_b32 v8, 0")
A("s_lshl_b32 s62, s2, 3")
lds_spin("L_h2w", 12, O_V, 4)
memgrp(h2gather)
A("s_waitcnt vmcnt(0)")
poll_check("L_h2chk", [16, 20], 24, h2gather, dual=False)
ts()
A("v_add_f32 v16, v16, v20\nv_add_f32 v18, v18, v22")
rowsum([16, 18], shifts=(8, 4))
xrow_multi("v_add_f32", [16, 18], [17, 19])
A("s_nop 0")
for i, qp in enumerate(("[1,1,1,1]", "[2,2,2,2]", "[3,3,3,3]")):
    A(f"v_mov_b32_dpp v{24+i}, v16 quad_perm:{qp} row_mask:0xf bank_mask:0xf")
    A(f"v_mov_b32_dpp v{28+i}, v18 quad_perm:{qp} row_mask:0xf bank_mask:0xf")
A("v_cvt_pk_bf16_f32 v32, v16, v24\nv_cvt_pk_bf16_f32 v33, v25, v26")
A("v_cvt_pk_bf16_f32 v34, v18, v28\nv_cvt_pk_bf16_f32 v35, v29, v30")
exec_mask(1, 0)
if OPT["dry"]: A("s_cbranch_execz L_spre")
A("buffer_store_dwordx2 v[32:33], v8, s[48:51], s62 offen")
A("buffer_store_dwordx2 v[34:35], v8, s[48:51], s62 offen offset:1024")
A("s_cmp_lg_u32 s2, 0\ns_cbranch_scc1 L_kv_done")
A("v_mov_b32 v36, s58\nv_mov_b32 v37, s59")
A("buffer_store_dwordx2 v[36:37], v8, s[44:47], 0 offen sc1")
LB("L_kv_done")
if TS:
    A("s_memrealtime s[72:73]\ns_waitcnt lgkmcnt(0)\nv_writelane_b32 v127, s72, 15")
ts_dump()
A("s_endpgm")

if OPT["dry"]:
    LB("L_helper")
    C("================= dry-run helpers: warm the instruction cache =================")
    if OPT.get("cpf"):
        A("s_getpc_b64 s[60:61]")
        LB("L_pc")
        A(f"s_sub_u32 s60, s60, L_pc-{NAME}\ns_subb_u32 s61, s61, 0")
        A(f"s_sub_u32 s62, s30, 12\ns_mul_i32 s62, s62, {OPT['cpf']*128}\ns_add_u32 s60, s60, s62\ns_addc_u32 s61, s61, 0")
        for i in range(OPT["cpf"]): A(f"s_load_dword s{36+(i%8)}, s[60:61], {128*i}")
    A("s_barrier")
    for v in list(range(4, 16)) + [120, 121, 122, 123, 124]: A(f"v_mov_b32 v{v}, 0")
    A("s_waitcnt lgkmcnt(0)")
    ws_srds()
    A("s_mov_b64 s[90:91], 0\ns_mov_b64 exec, 0")
    A("s_mov_b32 s35, 7\ns_mov_b32 s48, 0\ns_mov_b32 s49, 1\ns_mov_b32 s60, 0\ns_mov_b32 s61, 0\ns_mov_b32 s62, 0\ns_mov_b32 s63, 0")
    A("s_cmp_eq_u32 s30, 12\ns_cbranch_scc1 L_d0")
    A("s_cmp_eq_u32 s30, 14\ns_cbranch_scc1 L_d2")
    A("s_cmp_eq_u32 s30, 15\ns_cbranch_scc1 L_d3")
    A("s_mov_b32 s35, 0")
    A("s_branch L_d1")
    LB("L_spre")
    if OPT["spre"]:
        A(f"s_lshl_b32 s60, s31, 5\ns_add_u32 s60, s60, s32\ns_mul_i32 s60, s60, {OBS}\ns_add_u32 s60, s60, {hex(H1)}")
        A("s_add_u32 s62, s28, s60\ns_addc_u32 s63, s29, 0")
        if OPT["spre"] & 1:
            for i in range(17): A(f"s_load_dword s{4+(i%8)}, s[62:63], {128*i}")
        A(f"s_lshl_b32 s60, s2, 11\ns_add_u32 s60, s60, {hex(H2+MIR)}")
        A("s_add_u32 s62, s28, s60\ns_addc_u32 s63, s29, 0")
        if OPT["spre"] & 2:
            A("s_cmp_ge_u32 s2, 128\ns_cbranch_scc1 L_end")
            for i in range(16): A(f"s_load_dword s{4+(i%8)}, s[62:63], {128*i}")
    A("s_endpgm")

LB("L_special")
C("================= special waves =================")
ts_reset()
A("s_and_b32 s49, s54, 7\ns_cmp_lg_u32 s49, 7\ns_cselect_b32 s49, 1, 0")
A("s_lshr_b32 s55, s54, 3\ns_sub_u32 s55, s54, s55")
A("v_and_b32 v6, 1, v2\nv_lshlrev_b32 v6, 10, v6\nv_lshl_add_u32 v6, v3, 3, v6")
A("s_cmp_eq_u32 s30, 0\ns_cbranch_scc1 L_w0")
A("s_cmp_eq_u32 s30, 1\ns_cbranch_scc1 L_w1")
A("s_cmp_eq_u32 s30, 3\ns_cbranch_scc1 L_w3")
A("s_waitcnt lgkmcnt(0)")
ts0()
ws_srds()
A("s_load_dwordx2 s[56:57], s[28:29], 0")
A("s_barrier")
fconsts(); consts()
A("s_waitcnt lgkmcnt(0)")
tags()
A("s_branch L_vload")

LB("L_w3")
A("v_lshlrev_b32 v5, 4, v0")
A(f"v_mov_b32 v4, {CNT}\nv_mov_b32 v8, 0\nv_mov_b32 v9, 0\nv_mov_b32 v10, 0\nv_mov_b32 v11, 0")
A("ds_write_b128 v4, v[8:11]")
A("ds_write_b128 v4, v[8:11] offset:16")
A("ds_write_b128 v4, v[8:11] offset:32")
A("s_waitcnt lgkmcnt(0)")
ts0()
srd(36, 4, 2048)
srd(40, 22, 1024)
A("buffer_load_dwordx4 v[16:19], v5, s[36:39], 0 offen")
A("buffer_load_dwordx4 v[20:23], v5, s[36:39], 0 offen offset:1024")
A("buffer_load_dwordx4 v[24:27], v5, s[40:43], 0 offen")
A("s_barrier")
ws_srds()
A("s_load_dwordx2 s[56:57], s[28:29], 0")
fconsts(); consts()
A("s_waitcnt vmcnt(0)")
for src, dst in ((24, 32), (16, 40), (20, 48)):
    for w in range(4):
        A(f"v_lshlrev_b32 v{dst+2*w}, 16, v{src+w}\nv_and_b32 v{dst+2*w+1}, 0xffff0000, v{src+w}")
for b in range(2):
    for e in range(8):
        A(f"v_mul_f32 v{40+8*b+e}, v{40+8*b+e}, v{32+e}")
bf16_round_pairs(list(range(40, 56)), list(range(16, 24)))
for b in range(2):
    o = 40 + 8 * b
    A(f"v_add_f32 v{o}, v{o}, v{o+1}\nv_add_f32 v{o+2}, v{o+2}, v{o+3}\nv_add_f32 v{o+4}, v{o+4}, v{o+5}\nv_add_f32 v{o+6}, v{o+6}, v{o+7}")
    A(f"v_add_f32 v{o}, v{o}, v{o+2}\nv_add_f32 v{o+4}, v{o+4}, v{o+6}\nv_add_f32 v{o}, v{o}, v{o+4}")
rowsum([40, 48])
xrow_multi("v_add_f32", [40, 48], [41, 49])
A("v_mov_b32 v41, v48")
bf16_round_pairs([40, 41], [16])
A("v_mul_f32 v40, s70, v40\nv_mul_f32 v41, s70, v41")
A("v_exp_f32 v40, v40\nv_exp_f32 v41, v41")
A("s_nop 0")
A("v_add_f32 v40, 1.0, v40\nv_add_f32 v41, 1.0, v41")
A("v_rcp_f32 v40, v40\nv_rcp_f32 v41, v41")
A("s_nop 0")
bf16_round_pairs([40, 41], [16])
A("v_sub_f32 v42, 1.0, v40\nv_sub_f32 v43, 1.0, v41")
bf16_round_pairs([42, 43], [16])
A(f"v_mov_b32 v4, {GT}")
A("ds_write_b128 v4, v[40:43]")
A("s_waitcnt lgkmcnt(0)")
tags()

LB("L_vload")
srd(40, 8, 0x8000000)
A("s_sub_u32 s35, s30, 2")
A("s_lshl_b32 s60, s35, 2\nv_add_u32 v4, s60, v3\nv_lshrrev_b32 v5, 1, v2\nv_xor_b32 v4, v4, v5")
A("v_and_b32 v5, 1, v2\nv_lshl_add_u32 v4, v4, 1, v5\nv_lshlrev_b32 v4, 4, v4\nv_lshl_add_u32 v4, v3, 8, v4")
A("s_lshl_b32 s61, s35, 10\ns_add_u32 s62, s50, s61")
A("s_and_b32 s60, s51, 15\ns_lshl_b32 s60, s60, 12")
A(f"v_mov_b32 v12, {CNT}\nv_mov_b32 v13, 1")
A(f"s_lshl_b32 s63, s35, 2\ns_add_u32 s63, s63, {CNT+O_VL}\nv_mov_b32 v11, s63")
A("v_mov_b32 v8, 4\nv_mov_b32 v9, 6\nv_mov_b32 v10, 8\nv_mov_b32 v7, 7")
def vblk(i):
    A(f"s_add_u32 s63, s62, s60\ns_add_u32 m0, s61, {VI + 4096*i}")
    A("s_add_u32 s60, s60, 4096\ns_and_b32 s60, s60, 0xffff")
    A(f"buffer_load_dwordx4 v4, s[40:43], s63 offen {KVF} lds")
    A(f"buffer_load_dwordx4 v4, s[40:43], s63 offen offset:2048 {KVF} lds")
A("s_barrier\ns_barrier")
for i in range(2 * VB): vblk(i)
A("s_barrier\ns_barrier")
IB = OPT.get("ib", 16)
for i in range(2 * VB, 17):
    if i == max(IB, 2 * VB):
        A("s_mov_b32 exec_lo, 1\ns_mov_b32 exec_hi, 0")
        A(f"ds_add_u32 v12, v13 offset:{O_I}")
        A("s_mov_b64 exec, -1")
    if i < 16: vblk(i)
A("s_mov_b32 exec_lo, 1\ns_mov_b32 exec_hi, 0")
ts()
A("s_waitcnt vmcnt(16)")
A("ds_write_b32 v11, v8")
ts()
A("s_waitcnt vmcnt(8)")
A("ds_write_b32 v11, v9")
A("s_waitcnt vmcnt(4)")
A("ds_write_b32 v11, v7")
A("s_waitcnt vmcnt(0)")
A("ds_write_b32 v11, v10")
A("s_mov_b64 exec, -1")
ts()
A("s_branch L_final")

LB("L_w0")
ts_reset()
dma_voff(4, 13, 8, 9)
A("s_lshl_b32 s60, s52, 20\ns_lshl_b32 s61, s31, 10\ns_add_u32 s60, s60, s61\ns_lshl_b32 s61, s53, 7\ns_add_u32 s60, s60, s61")
A("s_lshl_b32 s61, s52, 8")
A("s_waitcnt lgkmcnt(0)")
ts0()
srd(40, 10, 0x400000)
for i in range(16):
    A(f"s_mov_b32 m0, {WQI+1024*i}")
    if i: A(f"s_add_u32 s60, s60, {8*8192}")
    else: A("s_nop 0")
    A(f"buffer_load_dwordx4 v4, s[40:43], s60 offen {WF} lds")
srd(36, 4, 2048)
XA, BB, AC = 16, 32, 96
for t in range(4):
    A(f"buffer_load_dwordx2 v[{XA+4*t}:{XA+4*t+1}], v6, s[36:39], s61 offen offset:{64*t}")
    A(f"buffer_load_dwordx2 v[{XA+4*t+2}:{XA+4*t+3}], v6, s[36:39], s61 offen offset:{64*t+32}")
A("s_barrier")
ws_srds()
A("s_load_dwordx2 s[56:57], s[28:29], 0")
fconsts(); consts()
for q4 in range(4): tr_addr(8 + q4, q4, 12, 13, WQI)
A(f"v_lshlrev_b32 v12, 2, v0\nv_add_u32 v12, {QT}, v12\nv_and_b32 v13, 31, v0\nv_lshlrev_b32 v13, 4, v13\nv_add_u32 v13, {QT}, v13")
A("v_and_b32 v14, 1, v3\nv_lshlrev_b32 v14, 13, v14\nv_lshl_add_u32 v14, v2, 4, v14")
A("s_lshl_b32 s62, s31, 14\ns_lshl_b32 s63, s52, 11\ns_add_u32 s62, s62, s63\ns_lshl_b32 s63, s53, 8\ns_add_u32 s62, s62, s63")
A(f"s_add_u32 s62, s62, {hex(QX)}")
A("s_waitcnt lgkmcnt(0)")
tags()
A("v_mov_b32 v5, s58")
A("s_waitcnt vmcnt(0)")
ts()
seq = [(q4, t) for q4 in range(4) for t in range(4)]
D = 6
def issue(k):
    q4, t = seq[k]; tr_read(BB + 4 * k, 8 + q4, 0, t)
for k in range(D): issue(k)
for k in range(16):
    q4, t = seq[k]
    A(f"s_waitcnt lgkmcnt({2*(min(16,k+D)-k)-2})")
    mfma(AC + 4 * q4, XA + 4 * t, BB + 4 * k, None if t == 0 else AC + 4 * q4)
    if k + D < 16: issue(k + D)
A("s_nop 7\ns_nop 1")
for r in range(2): select4([AC + 4 * q + r for q in range(4)])
A("s_nop 0")
for r in range(2): A(f"v_permlane32_swap_b32 v{AC+r}, v{AC+8+r}")
A("s_nop 0")
A(f"ds_write_b32 v12, v{AC}\nds_write_b32 v12, v{AC+1} offset:256")
A("ds_read_b128 v[116:119], v13")
A("s_waitcnt lgkmcnt(0)")
stamp(112, [116, 117, 118, 119], 5)
A("s_mov_b32 exec_hi, 0")
if not OPT.get("nos"): publish(112, 14, "s62")
A("s_mov_b64 exec, -1")
ts()
A("s_barrier")
srd(36, 12, 0x400000)
srd(40, 20, 1792 * 1024)
dma_voff(4, 10, 8, 9)
if OPT.get("cshift"):
    A(f"s_add_u32 s63, s53, {OPT['cshift']}\ns_and_b32 s63, s63, 7\ns_lshl_b32 s63, s63, 7\ns_lshl_b32 s60, s54, 17\ns_add_u32 s60, s60, s63")
else:
  A("s_lshl_b32 s60, s54, 17\ns_lshl_b32 s63, s53, 7\ns_add_u32 s60, s60, s63")
A("s_lshl_b32 s61, s55, 16\ns_add_u32 s61, s61, s63")
A(f"v_mov_b32 v12, {CNT}\nv_mov_b32 v8, 1\nv_mov_b32 v9, 2\nv_mov_b32 v10, 3")
A("s_barrier\ns_barrier\ns_barrier")
lds_spin("L_ispin", 12, O_I, 2)
ts()
A("s_cmp_eq_u32 s49, 0\ns_cbranch_scc1 L_w0_nowd")
for i in range(8):
    A(f"s_mov_b32 m0, {WDI+1024*i}")
    if i: A(f"s_add_u32 s61, s61, {8*1024}")
    else: A("s_nop 0")
    A(f"buffer_load_dwordx4 v4, s[40:43], s61 offen {WF} lds")
LB("L_w0_nowd")
for i in range(16):
    A(f"s_mov_b32 m0, {WOI+1024*i}")
    if i: A(f"s_add_u32 s60, s60, {8*1024}")
    else: A("s_nop 0")
    A(f"buffer_load_dwordx4 v4, s[36:39], s60 offen {WF} lds")
ts()
A("s_waitcnt vmcnt(16)")
A(f"ds_write_b32 v12, v8 offset:{O_STAGE}")
ts()
A("s_waitcnt vmcnt(8)")
A(f"ds_write_b32 v12, v9 offset:{O_STAGE}")
ts()
A("s_waitcnt vmcnt(0)")
A(f"ds_write_b32 v12, v10 offset:{O_STAGE}")
ts()
A("s_branch L_final")

LB("L_w1_idle")
A("s_waitcnt lgkmcnt(0)")
ts0()
ws_srds()
A("s_load_dwordx2 s[56:57], s[28:29], 0")
A("s_barrier")
fconsts(); consts()
A("s_waitcnt lgkmcnt(0)")
tags()
A("s_barrier\ns_barrier\ns_barrier\ns_barrier")
A("s_branch L_final")
LB("L_w1")
ts_reset()
A("s_cmp_eq_u32 s49, 0\ns_cbranch_scc1 L_w1_idle")
A("s_movk_i32 s60, 3584")
dma_voff(4, "s60", 8, 9)
A("s_mul_i32 s60, s53, 64*3584\ns_lshl_b32 s61, s55, 7\ns_add_u32 s60, s60, s61")
A("s_lshl_b32 s61, s53, 7")
A("s_waitcnt lgkmcnt(0)")
ts0()
srd(36, 16, 512 * 3584)
srd(40, 18, 512 * 3584)
for i in range(8):
    A(f"s_mov_b32 m0, {GI+1024*i}")
    if i: A(f"s_add_u32 s60, s60, {8*3584}")
    else: A("s_nop 0")
    A(f"buffer_load_dwordx4 v4, s[36:39], s60 offen {WF} lds")
    A(f"s_mov_b32 m0, {UI+1024*i}\ns_nop 0")
    A(f"buffer_load_dwordx4 v4, s[40:43], s60 offen {WF} lds")
srd(76, 4, 2048)
for t in range(2):
    A(f"buffer_load_dwordx2 v[{XA+4*t}:{XA+4*t+1}], v6, s[76:79], s61 offen offset:{64*t}")
    A(f"buffer_load_dwordx2 v[{XA+4*t+2}:{XA+4*t+3}], v6, s[76:79], s61 offen offset:{64*t+32}")
A("s_barrier")
ws_srds()
A("s_load_dwordx2 s[56:57], s[28:29], 0")
fconsts(); consts()
for q4 in range(4): tr_addr(8 + q4, q4, 12, 13, GI)
A("v_lshlrev_b32 v5, 4, v0")
A("s_lshl_b32 s62, s55, 13")
A(f"s_add_u32 s62, s62, {hex(HX)}")
A("s_lshl_b32 s63, s53, 10\ns_add_u32 s63, s63, s62")
A("s_add_u32 s61, s62, 4096")
A(f"v_lshlrev_b32 v12, 1, v0\nv_add_u32 v12, {HS}, v12")
A(f"v_mov_b32 v13, {CNT+O_H}\nv_mov_b32 v14, 1")
A("s_waitcnt lgkmcnt(0)")
tags()
A("v_mov_b32 v4, s58")
A("s_waitcnt vmcnt(0)")
ts()
seq = [(mat, q4, t) for mat in range(2) for q4 in range(4) for t in range(2)]
BB1 = 24
AC1 = 88
def issue(k):
    mat, q4, t = seq[k]; tr_read(BB1 + 4 * k, 8 + q4, (UI - GI) if mat else 0, t)
for k in range(D): issue(k)
for k in range(16):
    mat, q4, t = seq[k]
    A(f"s_waitcnt lgkmcnt({2*(min(16,k+D)-k)-2})")
    acc = AC1 + 16 * mat + 4 * q4
    mfma(acc, XA + 4 * t, BB1 + 4 * k, None if t == 0 else acc)
    if k + D < 16: issue(k + D)
A("s_nop 7\ns_nop 1")
for mat in range(2):
    for r in range(2): select4([AC1 + 16 * mat + 4 * q + r for q in range(4)])
A("s_nop 0")
for mat in range(2):
    for r in range(2): A(f"v_permlane32_swap_b32 v{AC1+16*mat+r}, v{AC1+16*mat+8+r}")
A("s_nop 0")
stamp(120, [AC1, AC1 + 1, AC1 + 16, AC1 + 17], 4)
if not OPT.get("nos"): publish(120, 5, "s63")
ts()
A("s_barrier\ns_barrier\ns_barrier")
HG = 16
def hgather(sr=FA):
    for rb in range(8):
        r = HG + 4 * rb
        A(f"buffer_load_dwordx4 v[{r}:{r+3}], v5, {sr}, s{62 - rb//4} offen offset:{(rb%4)*1024} sc1")
if not OPT.get("nog"): hgather()
A("s_barrier")
ts()
LB("L_d3")
A("s_waitcnt vmcnt(0)")
poll_check("L_hchk", [HG + 4 * i for i in range(8)], 96, hgather, tagcheck_dense, 4)
ts()
for c in range(32): A(f"v_and_b32 v{HG+c}, 0xffffff00, v{HG+c}")
for step in (16, 8, 4):
    for base in range(HG, HG + step, 4):
        for o in range(4):
            A(f"v_add_f32 v{base+o}, v{base+o}, v{base+step+o}")
bf16_round_pairs([16, 17, 18, 19], [24, 25])
A("v_mul_f32 v24, s70, v16\nv_mul_f32 v25, s70, v17")
A("v_exp_f32 v24, v24\nv_exp_f32 v25, v25")
A("s_nop 0")
A("v_add_f32 v24, 1.0, v24\nv_add_f32 v25, 1.0, v25")
A("v_rcp_f32 v24, v24\nv_rcp_f32 v25, v25")
A("s_nop 0")
A("v_mul_f32 v16, v16, v24\nv_mul_f32 v17, v17, v25")
bf16_round_pairs([16, 17], [24])
A("v_mul_f32 v16, v16, v18\nv_mul_f32 v17, v17, v19")
A("v_cvt_pk_bf16_f32 v24, v16, v17")
A("ds_write_b16 v12, v24")
A("ds_write_b16_d16_hi v12, v24 offset:128")
A("ds_write_b32 v13, v14")
ts()

LB("L_final")
if TS: ts_n[0] = 8
tr_addr(8, "s30", 12, 13, WOI)
A(f"v_mov_b32 v12, {CNT}")
A(f"v_and_b32 v9, 1, v2\nv_lshlrev_b32 v10, 7, v9\nv_lshl_add_u32 v10, v3, 3, v10\nv_add_u32 v10, {HS}, v10")
A(f"v_lshlrev_b32 v9, 8, v9\nv_lshl_add_u32 v9, v3, 3, v9\nv_add_u32 v9, {OV}, v9")
A("v_lshrrev_b32 v11, 2, v2\nv_lshlrev_b32 v11, 11, v11\nv_and_b32 v13, 3, v2\nv_lshl_add_u32 v11, v13, 4, v11")
A("s_lshl_b32 s60, s53, 15\ns_lshl_b32 s61, s30, 13\ns_add_u32 s60, s60, s61\ns_lshl_b32 s61, s54, 6\ns_add_u32 s60, s60, s61")
A(f"s_add_u32 s60, s60, {hex(H2)}")
A(f"v_and_b32 v7, 31, v0\nv_mul_u32_u24 v7, {OBS}, v7")
A(f"s_mul_i32 s61, s31, {32*OBS}\ns_lshl_b32 s62, s52, 4\ns_add_u32 s61, s61, s62")
A(f"s_add_u32 s61, s61, {hex(H1+2048)}")
A(f"v_mov_b32 v13, {GT}")
A("ds_read_b128 v[60:63], v13")
A("v_mov_b32 v65, s58\nv_mov_b32 v67, s59")
A("v_mov_b32 v56, 0\nv_mov_b32 v57, 0")
lds_spin("L_fs6", 12, O_PUB, 8)
def lgather(sr=FA):
    A(f"buffer_load_dwordx4 v[68:71], v7, {sr}, s61 offen sc1")
memgrp(lgather)
A("s_cmp_eq_u32 s49, 0\ns_cbranch_scc1 L_f_nofb")
lds_spin("L_fs1", 12, O_STAGE, 1)
for t in range(2): tr_read(16 + 4 * t, 8, WDI - WOI, t)
lds_spin("L_fs2", 12, O_H, 1)
for t in range(2):
    A(f"ds_read2_b64 v[{24+4*t}:{27+4*t}], v10 offset0:{8*t} offset1:{8*t+4}")
A("s_waitcnt lgkmcnt(0)")
mfma(56, 24, 16, None)
mfma(56, 28, 20, 56)
A("s_nop 7\ns_nop 1")
A("v_mul_f32 v56, v56, v62\nv_mul_f32 v57, v57, v63")
LB("L_f_nofb")
ts()
lds_spin("L_fs3", 12, O_STAGE, 3)
for t in range(4): tr_read(16 + 4 * t, 8, 0, t)
ts()
A("s_waitcnt vmcnt(0)")
poll_check("L_lchk", [68], 72, lgather)
A("v_mov_b32 v72, v70")
A("v_mov_b32 v73, v70")
for sh in (8, 4, 2, 1):
    A("s_nop 1")
    A(f"v_max_f32_dpp v73, v73, v73 row_ror:{sh} row_mask:0xf bank_mask:0xf")
A("v_sub_f32 v72, v72, v73\nv_mul_f32 v72, s69, v72\nv_exp_f32 v72, v72\ns_nop 0\nv_mul_f32 v72, v72, v68")
rowsum([72])
A("v_rcp_f32 v72, v72")
A("s_nop 1")
A("v_readlane_b32 s62, v72, 0\nv_readlane_b32 s63, v72, 16")
A("s_nop 1")
A("v_mul_f32 v60, s62, v60\nv_mul_f32 v61, s63, v61")
ts()
lds_spin("L_fs4", 12, O_V, 4)
for t in range(4):
    A(f"ds_read2_b64 v[{32+4*t}:{35+4*t}], v9 offset0:{8*t} offset1:{8*t+4}")
for t in range(4):
    A(f"s_waitcnt lgkmcnt({3-t})")
    mfma(48, 32 + 4 * t, 16 + 4 * t, None if t == 0 else 48)
exec_mask(0xffff, 0)
A("s_nop 6")
A("v_fma_f32 v64, v48, v60, v56\nv_fma_f32 v66, v49, v61, v57")
dry_end()
publish(64, 11, "s60", dual=False)
ts()
ts_dump()
LB("L_end")
A("s_endpgm")

L.append(f""".section .rodata,"a"
.p2align 6
.amdhsa_kernel {NAME}
  .amdhsa_next_free_vgpr 128
  .amdhsa_next_free_sgpr 102
  .amdhsa_accum_offset 128
  .amdhsa_group_segment_fixed_size 0
  .amdhsa_kernarg_size 104
  .amdhsa_user_sgpr_count 2
  .amdhsa_user_sgpr_kernarg_segment_ptr 1
  .amdhsa_system_sgpr_workgroup_id_x 1
.end_amdhsa_kernel""")
open(out, "w").write("\n".join(L) + "\n")
```

```python
import sys

OPT = dict(ts=0, kv_fl="nt", w_fl="nt", ka=6, vb=1, spin=400000, pst=0, dry=1, slp=0, pre=0, prew=0, dual=1, bper=8, spre=0)
out = sys.argv[1]
for a in sys.argv[2:]:
    k, v = a.split("=")
    OPT[k] = int(v) if v.lstrip("-").isdigit() else v.replace("+", " ").replace("none", "")
TS = OPT["ts"]

NAME = "gated_mix__sliding_block_cached__swiglu_ffn__decode_kernel"
HEADER = open("gated_mix__sliding_block_cached__swiglu_ffn__decode.s.ref").read().split("; Override launch")[0]

L = []
def A(s):
    for l in s.split("\n"):
        L.append("    " + l.strip())
def LB(s):
    L.append(s + ":")
def C(s):
    L.append("    ; " + s)

VI = 0
WQI = 65536
GI = 81920
UI = 90112
WOI = 98304
WDI = 114688
PS = 122880
QS = 124928
OV = 125952
HS = 126464
QT = 126720
MX = 127232
LS = 127360
GT = 127488
CNT = 127504
O_Q, O_M, O_P, O_STAGE, O_H, O_PUB, O_V, O_I, O_VL = 0, 4, 8, 12, 16, 20, 24, 28, 32
LDS_BYTES = 127744
WB = OPT.get('wb', 496) << 20
OBS = 2176
if OPT.get("compact", 1):
    QX = WB
    HX = WB + 0x20000
    H1 = WB + 0x58000
    MIR_ = 0xE0000
    H2 = WB + 0xE0000
    EPO = H1 + 2112
else:
    QX = WB + 0x10000
    HX = WB + 0x80000
    H1 = WB + 0x100000
    H2 = WB + 0x400000
    MIR_ = 0x800000
    EPO = 0
TSB = 0x800000

SCALE = 0x3DB504F3
LOG2E = 0x3FB8AA3B
NLOG2E = 0xBFB8AA3B
WF = OPT["w_fl"]

def srd(d, p, nbytes):
    A(f"s_mov_b32 s{d}, s{p}\ns_and_b32 s{d+1}, s{p+1}, 0xffff\ns_mov_b32 s{d+2}, {hex(nbytes)}\ns_mov_b32 s{d+3}, 0x20000")

ts_n = [0]
skip_n = [0]
def ts_reset():
    ts_n[0] = 1 if TS else 0
def ts():
    if not TS: return
    k = ts_n[0]; ts_n[0] += 1
    assert k < 16
    if TS == 3: return
    A(f"s_memrealtime s[72:73]\ns_waitcnt lgkmcnt(0)\nv_writelane_b32 v127, s72, {k}")
def ts_dump():
    if not TS: return
    A("s_mov_b64 exec, -1")
    if TS == 2:
        skip_n[0] += 1
        lb = f"L_sk{skip_n[0]}"
        A(f"s_cmp_lg_u32 s2, {OPT.get('dbgwg', 0)}\ns_cbranch_scc1 {lb}")
        A(f"s_cmp_lg_u32 s30, {OPT.get('dbgwave', 11)}\ns_cbranch_scc1 {lb}")
        srd(76, 26, 256)
        A("v_readlane_b32 s60, v127, 0\ns_nop 1\nv_subrev_u32 v127, s60, v127")
        A("v_lshlrev_b32 v3, 2, v0")
        A("s_mov_b32 exec_lo, 0xffff\ns_mov_b32 exec_hi, 0")
        A("buffer_store_dword v127, v3, s[76:79], 0 offen")
        LB(lb)
        return
    A("s_mul_i32 s60, s2, 12\ns_add_u32 s60, s60, s30\ns_lshl_b32 s60, s60, 6")
    A(f"s_add_u32 s60, s60, {hex(TSB)}")
    A("v_lshlrev_b32 v3, 2, v0")
    A("s_mov_b32 exec_lo, 0xffff\ns_mov_b32 exec_hi, 0")
    A("buffer_store_dword v127, v3, s[44:47], s60 offen")

def tags():
    A("s_add_u32 s58, s56, 0x01010101\ns_add_u32 s59, s57, 0x9e3779b9")
    A("s_and_b32 s88, s58, 0xffff\ns_and_b32 s89, s58, 0xffff0000")

def tagcheck(bases, acc, t0, t1):
    first = True
    for b in bases:
        A(f"v_xor_b32 v{t0}, s58, v{b+1}")
        A(f"v_xor_b32 v{t1}, s59, v{b+3}")
        if first:
            A(f"v_or_b32 v{acc}, v{t0}, v{t1}"); first = False
        else:
            A(f"v_or3_b32 v{acc}, v{acc}, v{t0}, v{t1}")

def tagcheck_dense(bases, acc, t0, t1):
    first = True
    for b in bases:
        A(f"v_perm_b32 v{t0}, v{b+1}, v{b}, s92")
        A(f"v_perm_b32 v{t1}, v{b+3}, v{b+2}, s93")
        A(f"v_xor_b32 v{t0}, s88, v{t0}")
        A(f"v_xor_b32 v{t1}, s89, v{t1}")
        if first:
            A(f"v_or_b32 v{acc}, v{t0}, v{t1}"); first = False
        else:
            A(f"v_or3_b32 v{acc}, v{acc}, v{t0}, v{t1}")

def tagcheck_16(bases, acc, t0, t1):
    for i in range(0, len(bases), 2):
        b0 = bases[i]
        A(f"v_perm_b32 v{t0}, v{b0+1}, v{b0}, s92")
        A(f"v_xor_b32 v{t0}, s88, v{t0}")
        if i + 1 < len(bases):
            b1 = bases[i + 1]
            A(f"v_perm_b32 v{t1}, v{b1+1}, v{b1}, s92")
            A(f"v_xor_b32 v{t1}, s88, v{t1}")
            if i == 0: A(f"v_or_b32 v{acc}, v{t0}, v{t1}")
            else: A(f"v_or3_b32 v{acc}, v{acc}, v{t0}, v{t1}")
        else:
            if i == 0: A(f"v_mov_b32 v{acc}, v{t0}")
            else: A(f"v_or_b32 v{acc}, v{acc}, v{t0}")

def stamp(dst, srcs, tagv):
    for i in range(4):
        A(f"v_perm_b32 v{dst+i}, v{srcs[i]}, v{tagv}, s{94+i}")

def consts():
    A("s_mov_b32 s92, 0x0c0c0400\ns_mov_b32 s93, 0x04000c0c")
    A("s_mov_b32 s94, 0x07060500\ns_mov_b32 s95, 0x07060501\ns_mov_b32 s96, 0x07060502\ns_mov_b32 s97, 0x07060503")

def exec_mask(lo, hi):
    A(f"s_and_b32 exec_lo, s90, {hex(lo)}" if lo != 0xffffffff else "s_mov_b32 exec_lo, s90")
    if hi is not None:
        A(f"s_and_b32 exec_hi, s91, {hex(hi)}" if hi else "s_mov_b32 exec_hi, 0")
def exec_all():
    A("s_mov_b64 exec, s[90:91]")
def memgrp(fn):
    skip_n[0] += 1
    lb = f"L_sk{skip_n[0]}"
    A(f"s_cbranch_execz {lb}")
    fn()
    LB(lb)
def dry_end():
    A("s_cbranch_execz L_end")

MIR = MIR_
def ws_srds():
    srd(44, 28, 0x20000000)
    A(f"s_add_u32 s80, s28, {hex(MIR)}\ns_addc_u32 s81, s29, 0\ns_and_b32 s81, s81, 0xffff\ns_mov_b32 s82, {hex(0x20000000-MIR)}\ns_mov_b32 s83, 0x20000")
    A("s_mov_b32 s74, 0")

def publish(data, voff, soff, off=0, dual=True):
    o = f" offset:{off}" if off else ""
    if dual and OPT["dual"]:
        A(f"buffer_store_dwordx4 v[{data}:{data+3}], v{voff}, s[44:47], {soff} offen{o}")
    A(f"buffer_store_dwordx4 v[{data}:{data+3}], v{voff}, s[80:83], {soff} offen{o} sc1")

def poll_check(label, bases, tmp, reissue, chk=tagcheck, grp=1, dual=True):
    dual = dual and OPT["dual"]
    LB(label)
    chk(bases, tmp, tmp + 1, tmp + 2)
    if grp >= 4:
        A(f"s_nop 1\nv_or_b32_dpp v{tmp}, v{tmp}, v{tmp} quad_perm:[1,0,3,2] row_mask:0xf bank_mask:0xf")
        A(f"s_nop 1\nv_or_b32_dpp v{tmp}, v{tmp}, v{tmp} quad_perm:[2,3,0,1] row_mask:0xf bank_mask:0xf")
    if grp >= 8:
        A(f"s_nop 1\nv_or_b32_dpp v{tmp}, v{tmp}, v{tmp} row_half_mirror row_mask:0xf bank_mask:0xf")
    A(f"v_cmp_ne_u32 vcc, 0, v{tmp}")
    A("s_nop 1")
    A(f"s_cbranch_vccz {label}_ok")
    if OPT.get("nopoll"): A(f"s_branch {label}_ok")
    A(f"s_sub_u32 s67, s67, 1\ns_cbranch_scc1 {label}_ok")
    A("s_mov_b64 exec, vcc")
    if OPT["slp"]: A(f"s_sleep {OPT['slp']}")
    if dual:
        A(f"s_add_u32 s74, s74, 1\ns_and_b32 s75, s74, {OPT['bper']-1}\ns_cbranch_scc0 {label}_b")
        reissue("s[44:47]")
        A("s_waitcnt vmcnt(0)")
        A(f"s_branch {label}")
        LB(label + "_b")
    reissue("s[80:83]")
    A("s_waitcnt vmcnt(0)")
    A(f"s_branch {label}")
    LB(label + "_ok")
    exec_all()

def xrow_multi(op, vs, ts_, steps=("v_permlane16_swap_b32", "v_permlane32_swap_b32")):
    for sw in steps:
        for v, t in zip(vs, ts_):
            A(f"v_mov_b32 v{t}, v{v}")
        if len(vs) < 2: A("s_nop 1")
        elif len(vs) < 3: A("s_nop 0")
        for v, t in zip(vs, ts_):
            A(f"{sw} v{v}, v{t}")
        A("s_nop 0")
        for v, t in zip(vs, ts_):
            A(f"{op} v{v}, v{v}, v{t}")

def xrow_t4(v):
    A(f"v_permlane16_swap_b32 v{v}, v{v+1}")
    A(f"v_permlane16_swap_b32 v{v+2}, v{v+3}")
    A("s_nop 0")
    A(f"v_add_f32 v{v}, v{v}, v{v+1}")
    A(f"v_add_f32 v{v+2}, v{v+2}, v{v+3}")
    A("s_nop 1")
    A(f"v_permlane32_swap_b32 v{v}, v{v+2}")
    A("s_nop 0")
    A(f"v_add_f32 v{v}, v{v}, v{v+2}")

def transpose8(raw, dst, pairs=(0, 1, 2, 3)):
    for v in pairs:
        for w in range(4):
            a = raw + 4 * (2 * v) + w
            b = raw + 4 * (2 * v + 1) + w
            A(f"v_perm_b32 v{dst + 4*(2*w) + v}, v{b}, v{a}, s64")
            A(f"v_perm_b32 v{dst + 4*(2*w+1) + v}, v{b}, v{a}, s65")

def bf16_round_pairs(vs, tmp):
    n = len(vs) // 2
    for i in range(n):
        A(f"v_cvt_pk_bf16_f32 v{tmp[i]}, v{vs[2*i]}, v{vs[2*i+1]}")
    for i in range(n):
        A(f"v_lshlrev_b32 v{vs[2*i]}, 16, v{tmp[i]}")
        A(f"v_and_b32 v{vs[2*i+1]}, 0xffff0000, v{tmp[i]}")

def lds_spin(label, addr_v, off, val):
    A(f"s_cbranch_execz {label}_x")
    LB(label)
    A(f"ds_read_b32 v15, v{addr_v} offset:{off}")
    A("s_waitcnt lgkmcnt(0)")
    A("v_readfirstlane_b32 s66, v15")
    A("s_sub_u32 s67, s67, 1")
    A(f"s_cbranch_scc1 {label}_x")
    A(f"s_cmp_lt_u32 s66, {val}")
    A(f"s_cbranch_scc1 {label}")
    LB(label + "_x")

def rowsum(vs, shifts=(8, 4, 2, 1)):
    for sh in shifts:
        if len(vs) < 3: A("s_nop 1")
        for v in vs:
            A(f"v_add_f32_dpp v{v}, v{v}, v{v} row_ror:{sh} row_mask:0xf bank_mask:0xf")

def dma_voff(dst, stride_sreg_or_shift, t0, t1):
    A(f"v_bfe_u32 v{t0}, v0, 1, 2\nv_bfe_u32 v{t1}, v0, 4, 2\nv_xor_b32 v{t0}, v{t0}, v{t1}")
    A(f"v_and_b32 v{t1}, 1, v0\nv_lshl_add_u32 v{t0}, v{t0}, 1, v{t1}\nv_lshlrev_b32 v{t0}, 4, v{t0}")
    A(f"v_lshrrev_b32 v{t1}, 3, v0")
    if isinstance(stride_sreg_or_shift, int):
        A(f"v_lshl_add_u32 v{dst}, v{t1}, {stride_sreg_or_shift}, v{t0}")
    else:
        A(f"v_mul_lo_u32 v{t1}, v{t1}, {stride_sreg_or_shift}\nv_add_u32 v{dst}, v{t1}, v{t0}")

def tr_addr(dst, q4, t0, t1, base):
    A(f"v_bfe_u32 v{t0}, v0, 3, 2")
    A(f"v_xor_b32 v{t0}, {q4}, v{t0}")
    A(f"v_lshlrev_b32 v{t0}, 5, v{t0}")
    A(f"v_and_b32 v{t1}, 3, v0\nv_lshl_add_u32 v{t0}, v{t1}, 3, v{t0}")
    A(f"v_lshrrev_b32 v{t1}, 2, v0\nv_lshl_add_u32 v{dst}, v{t1}, 7, v{t0}")
    A(f"v_add_u32 v{dst}, {base}, v{dst}")

def tr_read(dst, addr_v, off, t):
    A(f"ds_read_b64_tr_b16 v[{dst}:{dst+1}], v{addr_v} offset:{off + 4096*t}")
    A(f"ds_read_b64_tr_b16 v[{dst+2}:{dst+3}], v{addr_v} offset:{off + 4096*t + 2048}")

def lds_spin2(label, addr_v, off, val):
    A(f"s_cbranch_execz {label}_x")
    LB(label)
    A(f"ds_read_b64 v[14:15], v{addr_v} offset:{off}")
    A("s_waitcnt lgkmcnt(0)")
    A("v_min_u32 v15, v14, v15")
    A("s_sub_u32 s67, s67, 1")
    A("v_readfirstlane_b32 s66, v15")
    A(f"s_cbranch_scc1 {label}_x")
    A(f"s_cmp_lt_u32 s66, {val}")
    A(f"s_cbranch_scc1 {label}")
    LB(label + "_x")

def bump(off):
    exec_mask(1, 0)
    A(f"ds_add_u32 v12, v13 offset:{off}")
    exec_all()

def mfma(d, a, b, c):
    cs = "0" if c is None else f"v[{c}:{c+3}]"
    A(f"v_mfma_f32_16x16x32_bf16 v[{d}:{d+3}], v[{a}:{a+3}], v[{b}:{b+3}], {cs}")

def select4(xs):
    A(f"v_permlane16_swap_b32 v{xs[0]}, v{xs[1]}")
    A(f"v_permlane16_swap_b32 v{xs[2]}, v{xs[3]}")

NWAVES = 16 if OPT["dry"] else 12
L.append(HEADER.rstrip())
L.append(f"; @launch grid=(256,1,1) block=({NWAVES*64},1,1) lds={LDS_BYTES}")
L.append('.amdgcn_target "amdgcn-amd-amdhsa--gfx950"')
L.append(".text")
L.append(f".globl {NAME}\n.p2align 8\n.type {NAME},@function\n{NAME}:")
A("s_cmp_ge_u32 s2, 256\ns_cbranch_scc1 L_end")
if OPT.get("xorwg"): A(f"s_xor_b32 s2, s2, {OPT['xorwg']}")
A("s_load_dwordx16 s[4:19], s[0:1], 0")
A("s_load_dwordx8 s[20:27], s[0:1], 64")
A("s_load_dwordx2 s[28:29], s[0:1], 96")
if TS: A("s_memrealtime s[72:73]")
A("v_lshrrev_b32 v1, 6, v0")
A("v_and_b32 v0, 63, v0")
A("s_and_b32 s31, s2, 7")
A("v_readfirstlane_b32 s30, v1")
A("s_lshr_b32 s32, s2, 3")
A("s_lshr_b32 s33, s32, 4")
A("s_and_b32 s34, s32, 15")
A(f"s_mov_b32 s67, {OPT['spin']}")
A("s_mov_b64 s[90:91], -1")
A("v_and_b32 v2, 15, v0")
A("v_lshrrev_b32 v3, 4, v0")
A("s_lshr_b32 s52, s32, 3")
A("s_and_b32 s53, s32, 7")
A("s_lshl_b32 s54, s31, 2\ns_add_u32 s54, s54, s52")
A("s_lshl_b32 s50, s33, 3\ns_add_u32 s50, s50, s31\ns_lshl_b32 s50, s50, 23")
A("s_lshl_b32 s51, s34, 16\ns_add_u32 s50, s50, s51\ns_add_u32 s50, s50, 0x700000")
A(f"s_mul_i32 s51, s32, {OPT.get('rotm', 5)}\ns_add_u32 s51, s51, s31")
A("s_cmp_lt_u32 s30, 4\ns_cbranch_scc1 L_special")
if OPT["dry"]: A("s_cmp_ge_u32 s30, 12\ns_cbranch_scc1 L_helper")

def epoch_load():
    if EPO:
        A(f"s_mov_b32 s56, {hex(EPO)}\ns_load_dwordx2 s[56:57], s[28:29], s56")
    else:
        A("s_load_dwordx2 s[56:57], s[28:29], 0")
def fconsts():
    A(f"s_mov_b32 s68, {hex(SCALE)}\ns_mov_b32 s69, {hex(LOG2E)}\ns_mov_b32 s70, {hex(NLOG2E)}")
def ts0():
    if TS: A("v_writelane_b32 v127, s72, 0")

C("================= K / attention waves =================")
ts_reset()
A("s_sub_u32 s35, s30, 4")
A("s_lshl_b32 s62, s35, 1\ns_add_u32 s62, s62, s51")
A("s_add_u32 s63, s62, 1\ns_and_b32 s62, s62, 15\ns_and_b32 s63, s63, 15")
A("s_lshl_b32 s62, s62, 12\ns_lshl_b32 s63, s63, 12")
A("s_add_u32 s61, s50, s63\ns_add_u32 s60, s50, s62")
A("v_lshlrev_b32 v4, 8, v2\nv_lshl_add_u32 v4, v3, 4, v4")
A("s_waitcnt lgkmcnt(0)")
ts0()
srd(36, 6, 0x8000000)
KR, QR = 16, 80
KVF = OPT["kv_fl"]
def kload(i):
    t, j = i // 4, i % 4
    A(f"buffer_load_dwordx4 v[{KR+4*i}:{KR+4*i+3}], v4, s[36:39], s{60+t} offen offset:{j*64} {KVF}")
FA = "s[44:47]" if OPT["dual"] else "s[80:83]"
def qgather(sr=FA):
    A(f"buffer_load_dwordx4 v[{QR}:{QR+3}], v6, {sr}, s62 offen sc1")
KA, VB = OPT["ka"], OPT["vb"]
A("s_barrier")
for i in range(KA): kload(i)
ws_srds()
epoch_load()
fconsts(); consts()
A("s_lshl_b32 s62, s31, 1\ns_add_u32 s62, s62, s33\ns_lshl_b32 s62, s62, 13")
A("s_lshl_b32 s63, s35, 8\ns_add_u32 s62, s62, s63")
A(f"s_add_u32 s62, s62, {hex(QX)}")
A("v_lshlrev_b32 v6, 11, v3\nv_lshl_add_u32 v6, v2, 4, v6")
A(f"v_mov_b32 v12, {CNT}\nv_mov_b32 v13, 1")
A("v_and_b32 v14, 3, v2")
A(f"s_lshl_b32 s71, s35, 7\ns_add_u32 s71, s71, {QS}")
A("v_lshl_add_u32 v10, v2, 3, s71\nv_lshl_add_u32 v10, v3, 1, v10")
A(f"v_lshlrev_b32 v11, 8, v14\nv_lshl_add_u32 v11, v3, 4, v11\nv_add_u32 v11, {QS}, v11")
A(f"v_lshlrev_b32 v8, 5, v14\nv_add_u32 v8, {MX}, v8")
A("s_lshl_b32 s71, s35, 2\nv_add_u32 v9, s71, v8")
A(f"v_lshl_add_u32 v7, v3, 2, v14\nv_lshlrev_b32 v7, 4, v7\nv_add_u32 v7, {PS}, v7")
A("s_lshl_b32 s71, s35, 8\nv_add_u32 v5, s71, v7")
A("v_bfe_u32 v120, v0, 2, 3\nv_xor_b32 v120, s35, v120\nv_lshlrev_b32 v120, 5, v120")
A("v_and_b32 v121, 3, v0\nv_lshl_add_u32 v120, v121, 3, v120\nv_lshrrev_b32 v121, 2, v0\nv_lshl_add_u32 v120, v121, 8, v120")
A("v_lshlrev_b32 v121, 9, v14\nv_lshl_add_u32 v121, v3, 4, v121")
A(f"s_lshl_b32 s76, s31, 5\ns_add_u32 s49, s76, s32\ns_mul_i32 s49, s49, {OBS}\ns_add_u32 s49, s49, {hex(H1)}")
A("s_lshl_b32 s71, s35, 6\ns_add_u32 s48, s49, s71")
A(f"v_lshrrev_b32 v122, 3, v2\nv_lshl_add_u32 v122, v122, 4, v3\nv_mul_u32_u24 v122, {OBS}, v122")
A("v_and_b32 v123, 7, v2\nv_lshl_add_u32 v122, v123, 4, v122")
A(f"s_mul_i32 s76, s76, {OBS}\ns_add_u32 s76, s76, {hex(H1)}")
A("s_lshl_b32 s71, s52, 9\ns_add_u32 s76, s76, s71\ns_lshl_b32 s71, s35, 7\ns_add_u32 s76, s76, s71")
for i in range(1, 4): A(f"s_add_u32 s{76+i}, s76, {i*4*OBS}")
A(f"s_lshl_b32 s71, s35, 6\ns_add_u32 s71, s71, {OV}")
A("v_lshrrev_b32 v124, 3, v2\nv_lshlrev_b32 v124, 8, v124\nv_lshl_add_u32 v124, v123, 3, v124\nv_lshl_add_u32 v124, v3, 1, v124\nv_add_u32 v124, s71, v124")
A("s_waitcnt lgkmcnt(0)")
tags()
A("s_barrier")
ts()
for i in range(KA, 8): kload(i)
if OPT["prew"]:
    A("s_not_b32 s71, s58")
    A("v_mov_b32 v100, s71\nv_mov_b32 v101, s71\nv_mov_b32 v102, s71\nv_mov_b32 v103, s71")
    A("v_lshrrev_b32 v101, 8, v101")
    A("s_mov_b32 exec_lo, 0x000f000f\ns_mov_b32 exec_hi, 0x000f000f")
    A(f"buffer_store_dwordx4 v[100:103], v121, {FA}, s48 offen" + ("" if OPT["dual"] else " sc1"))
    A("s_cmp_lg_u32 s35, 7\ns_cbranch_scc1 L_pw1")
    A("v_lshlrev_b32 v104, 4, v2")
    A("s_mov_b32 exec_lo, 0xff\ns_mov_b32 exec_hi, 0")
    A(f"buffer_store_dwordx4 v[100:103], v104, {FA}, s49 offen offset:2048" + ("" if OPT["dual"] else " sc1"))
    LB("L_pw1")
    A("s_mov_b64 exec, -1")
A("s_barrier")
A("s_barrier")
ts()
if not OPT.get("nog"): qgather()
A("s_barrier")
ts()
LB("L_d0")
A("s_waitcnt vmcnt(0)")
poll_check("L_qchk", [QR], 88, qgather, tagcheck_dense, 4)
if TS: A("v_writelane_b32 v127, s74, 13")
ts()
for c in range(4): A(f"v_and_b32 v{QR+c}, 0xffffff00, v{QR+c}")
A("s_nop 0")
xrow_t4(QR)
A(f"v_cvt_pk_bf16_f32 v{QR}, v{QR}, v{QR}")
A(f"ds_write_b16 v10, v{QR}")
bump(O_Q)
lds_spin("L_qspin", 12, O_Q, 8)
for j in range(4):
    A(f"ds_read_b128 v[{QR+4*j}:{QR+4*j+3}], v11 offset:{64*j}")
for j in range(4):
    A(f"s_waitcnt lgkmcnt({3-j})")
    for t in range(2):
        k = KR + 4 * (4 * t + j)
        mfma(96 + 4 * t, k, QR + 4 * j, None if j == 0 else 96 + 4 * t)
A("s_nop 7\ns_nop 1")
S = list(range(96, 104))
bf16_round_pairs(S, [112, 113, 114, 115])
for v in S: A(f"v_mul_f32 v{v}, s68, v{v}")
bf16_round_pairs(S, [112, 113, 114, 115])
A("v_max3_f32 v116, v96, v97, v98\nv_max3_f32 v116, v116, v99, v100\nv_max3_f32 v116, v116, v101, v102\nv_max_f32 v116, v116, v103")
xrow_multi("v_max_f32", [116], [117])
exec_mask(0xf, 0)
A("ds_write_b32 v9, v116")
bump(O_M)
lds_spin("L_mspin", 12, O_M, 8)
A("ds_read_b128 v[104:107], v8\nds_read_b128 v[108:111], v8 offset:16")
A("s_waitcnt lgkmcnt(0)")
A("v_max3_f32 v116, v104, v105, v106\nv_max3_f32 v116, v116, v107, v108\nv_max3_f32 v116, v116, v109, v110\nv_max_f32 v116, v116, v111")
A("v_mul_f32 v117, s70, v116")
for v in S: A(f"v_fma_f32 v{v}, v{v}, s69, v117")
for v in S: A(f"v_exp_f32 v{v}, v{v}")
A("v_or_b32 v125, s88, v116")
for i in range(4): A(f"v_cvt_pk_bf16_f32 v{112+i}, v{96+2*i}, v{97+2*i}")
A("v_add_f32 v117, v96, v97\nv_add_f32 v118, v98, v99\nv_add_f32 v119, v100, v101\nv_add_f32 v104, v102, v103")
A("v_add_f32 v117, v117, v118\nv_add_f32 v119, v119, v104\nv_add_f32 v117, v117, v119")
exec_mask(0x000f000f, 0x000f000f)
A("ds_write_b128 v5, v[112:115]")
exec_all()
xrow_multi("v_add_f32", [117], [118])
exec_mask(0xf, 0)
A("ds_write_b32 v9, v117 offset:128")
bump(O_P)
lds_spin("L_pspin1", 12, O_P, 8)
PR, VO = 16, 48
for k in range(8):
    A(f"ds_read_b128 v[{PR+4*k}:{PR+4*k+3}], v7 offset:{256*k}")
A("s_cmp_lg_u32 s35, 7\ns_cbranch_scc1 L_nol")
A("ds_read_b128 v[104:107], v8 offset:128\nds_read_b128 v[108:111], v8 offset:144")
A("v_lshlrev_b32 v10, 4, v2")
A("v_mov_b32 v97, s58\nv_mov_b32 v98, v116\nv_mov_b32 v99, s59")
A("s_waitcnt lgkmcnt(0)")
A("v_add_f32 v104, v104, v105\nv_add_f32 v106, v106, v107\nv_add_f32 v108, v108, v109\nv_add_f32 v110, v110, v111")
A("v_add_f32 v104, v104, v106\nv_add_f32 v108, v108, v110\nv_add_f32 v96, v104, v108")
exec_mask(0xf, 0)
memgrp(lambda: publish(96, 10, "s49", 2048))
exec_all()
LB("L_nol")
ts()
dry_end()
LB("L_d1")
def vstep(ks, first):
    for k in ks:
        A(f"ds_read_b64_tr_b16 v[{VO+4*k}:{VO+4*k+1}], v120 offset:{VI + 8192*k}")
        A(f"ds_read_b64_tr_b16 v[{VO+4*k+2}:{VO+4*k+3}], v120 offset:{VI + 8192*k + 4096}")
    for i, k in enumerate(ks):
        A(f"s_waitcnt lgkmcnt({2*(len(ks)-1-i)})")
        mfma(80, VO + 4 * k, PR + 4 * k, None if (first and i == 0) else 80)
lds_spin2("L_v1", 12, O_VL, 4)
vstep([0, 1, 2, 3], True)
lds_spin2("L_v2", 12, O_VL, 6)
vstep([4, 5], False)
lds_spin2("L_v3", 12, O_VL, 7)
vstep([6], False)
lds_spin2("L_v4", 12, O_VL, 8)
ts()
vstep([7], False)
exec_mask(0x000f000f, 0x000f000f)
A("s_nop 5")
stamp(84, [80, 81, 82, 83], 125)
memgrp(lambda: publish(84, 121, "s48"))
bump(O_PUB)
ts()
A("s_cmp_ge_u32 s35, 4\ns_cbranch_scc1 L_kv_h2")
lds_spin("L_pspin0", 12, O_PUB, 8)
if OPT["pst"]: lds_spin("L_pspin", 12, O_STAGE, OPT["pst"])
GR = 80
def h1gather(sr=FA):
    for i in range(4):
        A(f"buffer_load_dwordx4 v[{GR+4*i}:{GR+4*i+3}], v122, {sr}, s{76+i} offen sc1")
ts()
memgrp(h1gather)
A("s_waitcnt vmcnt(0)")
ts()
poll_check("L_h1chk", [GR + 4 * i for i in range(4)], 116, h1gather, tagcheck_16, 8)
ts()
for i in range(4): A(f"v_perm_b32 v{100+i}, v{GR+4*i+3}, v{GR+4*i+2}, s93")
A("v_max3_f32 v116, v100, v101, v102\nv_max_f32 v116, v116, v103")
xrow_multi("v_max_f32", [116], [117])
A("v_mul_f32 v117, s70, v116")
for i in range(4): A(f"v_fma_f32 v{100+i}, v{100+i}, s69, v117")
for i in range(4): A(f"v_exp_f32 v{100+i}, v{100+i}")
for c in range(16): A(f"v_and_b32 v{GR+c}, 0xffffff00, v{GR+c}")
for c in range(4): A(f"v_mul_f32 v{104+c}, v100, v{GR+c}")
for i in range(1, 4):
    for c in range(4): A(f"v_fmac_f32 v{104+c}, v{100+i}, v{GR+4*i+c}")
A("s_nop 0")
xrow_t4(104)
A("v_cvt_pk_bf16_f32 v104, v104, v104")
A("ds_write_b16 v124, v104")
bump(O_V)
ts()
dry_end()
A("s_branch L_kv_done")
LB("L_kv_h2")
A("s_cmp_lg_u32 s35, 7\ns_cbranch_scc1 L_kv_done")
A("s_cmp_ge_u32 s2, 128\ns_cbranch_scc1 L_kv_done")
LB("L_d2")
if TS: ts_n[0] = 12
srd(48, 24, 2048)
A("s_lshl_b32 s60, s2, 11")
A(f"s_add_u32 s60, s60, {hex(H2)}")
A("v_lshlrev_b32 v5, 4, v0")
def h2gather(sr="s[80:83]"):
    A(f"buffer_load_dwordx4 v[16:19], v5, {sr}, s60 offen sc1")
    A(f"buffer_load_dwordx4 v[20:23], v5, {sr}, s60 offen offset:1024 sc1")
A("v_mov_b32 v8, 0")
A("s_lshl_b32 s62, s2, 3")
lds_spin("L_h2w", 12, O_V, 4)
memgrp(h2gather)
A("s_waitcnt vmcnt(0)")
poll_check("L_h2chk", [16, 20], 24, h2gather, dual=False)
ts()
A("v_add_f32 v16, v16, v20\nv_add_f32 v18, v18, v22")
rowsum([16, 18], shifts=(8, 4))
xrow_multi("v_add_f32", [16, 18], [17, 19])
A("s_nop 0")
for i, qp in enumerate(("[1,1,1,1]", "[2,2,2,2]", "[3,3,3,3]")):
    A(f"v_mov_b32_dpp v{24+i}, v16 quad_perm:{qp} row_mask:0xf bank_mask:0xf")
    A(f"v_mov_b32_dpp v{28+i}, v18 quad_perm:{qp} row_mask:0xf bank_mask:0xf")
A("v_cvt_pk_bf16_f32 v32, v16, v24\nv_cvt_pk_bf16_f32 v33, v25, v26")
A("v_cvt_pk_bf16_f32 v34, v18, v28\nv_cvt_pk_bf16_f32 v35, v29, v30")
exec_mask(1, 0)
if OPT["dry"]: A("s_cbranch_execz L_spre")
A("buffer_store_dwordx2 v[32:33], v8, s[48:51], s62 offen")
A("buffer_store_dwordx2 v[34:35], v8, s[48:51], s62 offen offset:1024")
A("s_cmp_lg_u32 s2, 0\ns_cbranch_scc1 L_kv_done")
A("v_mov_b32 v36, s58\nv_mov_b32 v37, s59")
A(f"s_mov_b32 s62, {hex(EPO)}")
A("buffer_store_dwordx2 v[36:37], v8, s[44:47], s62 offen sc1")
LB("L_kv_done")
if TS:
    A("s_memrealtime s[72:73]\ns_waitcnt lgkmcnt(0)\nv_writelane_b32 v127, s72, 15")
ts_dump()
A("s_endpgm")

if OPT["dry"]:
    LB("L_helper")
    C("================= dry-run helpers: warm the instruction cache =================")
    if OPT.get("cpf"):
        A("s_getpc_b64 s[60:61]")
        LB("L_pc")
        A(f"s_sub_u32 s60, s60, L_pc-{NAME}\ns_subb_u32 s61, s61, 0")
        A(f"s_sub_u32 s62, s30, 12\ns_mul_i32 s62, s62, {OPT['cpf']*128}\ns_add_u32 s60, s60, s62\ns_addc_u32 s61, s61, 0")
        for i in range(OPT["cpf"]): A(f"s_load_dword s{36+(i%8)}, s[60:61], {128*i}")
    A("s_barrier")
    for v in list(range(4, 16)) + [120, 121, 122, 123, 124]: A(f"v_mov_b32 v{v}, 0")
    A("s_waitcnt lgkmcnt(0)")
    ws_srds()
    A("s_mov_b64 s[90:91], 0\ns_mov_b64 exec, 0")
    A("s_mov_b32 s35, 7\ns_mov_b32 s48, 0\ns_mov_b32 s49, 1\ns_mov_b32 s60, 0\ns_mov_b32 s61, 0\ns_mov_b32 s62, 0\ns_mov_b32 s63, 0")
    A("s_cmp_eq_u32 s30, 12\ns_cbranch_scc1 L_d0")
    A("s_cmp_eq_u32 s30, 14\ns_cbranch_scc1 L_d2")
    A("s_cmp_eq_u32 s30, 15\ns_cbranch_scc1 L_d3")
    A("s_mov_b32 s35, 0")
    A("s_branch L_d1")
    LB("L_spre")
    if OPT["spre"]:
        A(f"s_lshl_b32 s60, s31, 5\ns_add_u32 s60, s60, s32\ns_mul_i32 s60, s60, {OBS}\ns_add_u32 s60, s60, {hex(H1)}")
        A("s_add_u32 s62, s28, s60\ns_addc_u32 s63, s29, 0")
        if OPT["spre"] & 1:
            for i in range(17): A(f"s_load_dword s{4+(i%8)}, s[62:63], {128*i}")
        A(f"s_lshl_b32 s60, s2, 11\ns_add_u32 s60, s60, {hex(H2+MIR)}")
        A("s_add_u32 s62, s28, s60\ns_addc_u32 s63, s29, 0")
        if OPT["spre"] & 2:
            A("s_cmp_ge_u32 s2, 128\ns_cbranch_scc1 L_end")
            for i in range(16): A(f"s_load_dword s{4+(i%8)}, s[62:63], {128*i}")
    A("s_endpgm")

LB("L_special")
C("================= special waves =================")
ts_reset()
A("s_and_b32 s49, s54, 7\ns_cmp_lg_u32 s49, 7\ns_cselect_b32 s49, 1, 0")
A("s_lshr_b32 s55, s54, 3\ns_sub_u32 s55, s54, s55")
A("v_and_b32 v6, 1, v2\nv_lshlrev_b32 v6, 10, v6\nv_lshl_add_u32 v6, v3, 3, v6")
A("s_cmp_eq_u32 s30, 0\ns_cbranch_scc1 L_w0")
A("s_cmp_eq_u32 s30, 1\ns_cbranch_scc1 L_w1")
A("s_cmp_eq_u32 s30, 3\ns_cbranch_scc1 L_w3")
A("s_waitcnt lgkmcnt(0)")
ts0()
ws_srds()
epoch_load()
if OPT.get("tlbw", 1):
    A("v_mov_b32 v4, 0")
    A("s_mov_b32 exec_lo, 1\ns_mov_b32 exec_hi, 0")
    srd(36, 24, 2048)
    A("buffer_load_dword v16, v4, s[36:39], 0 offen")
    srd(40, 8, 0x8000000)
    A(f"buffer_load_dword v17, v4, s[40:43], s50 offen {KVF}")
    srd(76, 12, 0x400000)
    A("s_lshl_b32 s60, s54, 17")
    A(f"buffer_load_dword v18, v4, s[76:79], s60 offen {WF}")
    srd(84, 20, 1792 * 1024)
    A("s_lshl_b32 s60, s55, 16")
    A(f"buffer_load_dword v19, v4, s[84:87], s60 offen {WF}")
    A("s_mov_b64 exec, -1")
A("s_barrier")
fconsts(); consts()
A("s_waitcnt lgkmcnt(0)")
tags()
A("s_branch L_vload")

LB("L_w3")
A("v_lshlrev_b32 v5, 4, v0")
A(f"v_mov_b32 v4, {CNT}\nv_mov_b32 v8, 0\nv_mov_b32 v9, 0\nv_mov_b32 v10, 0\nv_mov_b32 v11, 0")
A("ds_write_b128 v4, v[8:11]")
A("ds_write_b128 v4, v[8:11] offset:16")
A("ds_write_b128 v4, v[8:11] offset:32")
A("s_waitcnt lgkmcnt(0)")
ts0()
srd(36, 4, 2048)
srd(40, 22, 1024)
A("buffer_load_dwordx4 v[16:19], v5, s[36:39], 0 offen")
A("buffer_load_dwordx4 v[20:23], v5, s[36:39], 0 offen offset:1024")
A("buffer_load_dwordx4 v[24:27], v5, s[40:43], 0 offen")
A("s_barrier")
ws_srds()
epoch_load()
fconsts(); consts()
A("s_waitcnt vmcnt(0)")
for src, dst in ((24, 32), (16, 40), (20, 48)):
    for w in range(4):
        A(f"v_lshlrev_b32 v{dst+2*w}, 16, v{src+w}\nv_and_b32 v{dst+2*w+1}, 0xffff0000, v{src+w}")
for b in range(2):
    for e in range(8):
        A(f"v_mul_f32 v{40+8*b+e}, v{40+8*b+e}, v{32+e}")
bf16_round_pairs(list(range(40, 56)), list(range(16, 24)))
for b in range(2):
    o = 40 + 8 * b
    A(f"v_add_f32 v{o}, v{o}, v{o+1}\nv_add_f32 v{o+2}, v{o+2}, v{o+3}\nv_add_f32 v{o+4}, v{o+4}, v{o+5}\nv_add_f32 v{o+6}, v{o+6}, v{o+7}")
    A(f"v_add_f32 v{o}, v{o}, v{o+2}\nv_add_f32 v{o+4}, v{o+4}, v{o+6}\nv_add_f32 v{o}, v{o}, v{o+4}")
rowsum([40, 48])
xrow_multi("v_add_f32", [40, 48], [41, 49])
A("v_mov_b32 v41, v48")
bf16_round_pairs([40, 41], [16])
A("v_mul_f32 v40, s70, v40\nv_mul_f32 v41, s70, v41")
A("v_exp_f32 v40, v40\nv_exp_f32 v41, v41")
A("s_nop 0")
A("v_add_f32 v40, 1.0, v40\nv_add_f32 v41, 1.0, v41")
A("v_rcp_f32 v40, v40\nv_rcp_f32 v41, v41")
A("s_nop 0")
bf16_round_pairs([40, 41], [16])
A("v_sub_f32 v42, 1.0, v40\nv_sub_f32 v43, 1.0, v41")
bf16_round_pairs([42, 43], [16])
A(f"v_mov_b32 v4, {GT}")
A("ds_write_b128 v4, v[40:43]")
A("s_waitcnt lgkmcnt(0)")
tags()

LB("L_vload")
srd(40, 8, 0x8000000)
A("s_sub_u32 s35, s30, 2")
A("s_lshl_b32 s60, s35, 2\nv_add_u32 v4, s60, v3\nv_lshrrev_b32 v5, 1, v2\nv_xor_b32 v4, v4, v5")
A("v_and_b32 v5, 1, v2\nv_lshl_add_u32 v4, v4, 1, v5\nv_lshlrev_b32 v4, 4, v4\nv_lshl_add_u32 v4, v3, 8, v4")
A("s_lshl_b32 s61, s35, 10\ns_add_u32 s62, s50, s61")
A("s_and_b32 s60, s51, 15\ns_lshl_b32 s60, s60, 12")
A(f"v_mov_b32 v12, {CNT}\nv_mov_b32 v13, 1")
A(f"s_lshl_b32 s63, s35, 2\ns_add_u32 s63, s63, {CNT+O_VL}\nv_mov_b32 v11, s63")
A("v_mov_b32 v8, 4\nv_mov_b32 v9, 6\nv_mov_b32 v10, 8\nv_mov_b32 v7, 7")
def vblk(i):
    A(f"s_add_u32 s63, s62, s60\ns_add_u32 m0, s61, {VI + 4096*i}")
    A("s_add_u32 s60, s60, 4096\ns_and_b32 s60, s60, 0xffff")
    A(f"buffer_load_dwordx4 v4, s[40:43], s63 offen {KVF} lds")
    A(f"buffer_load_dwordx4 v4, s[40:43], s63 offen offset:2048 {KVF} lds")
A("s_barrier\ns_barrier")
for i in range(2 * VB): vblk(i)
A("s_barrier\ns_barrier")
IB = OPT.get("ib", 16)
for i in range(2 * VB, 17):
    if i == max(IB, 2 * VB):
        A("s_mov_b32 exec_lo, 1\ns_mov_b32 exec_hi, 0")
        A(f"ds_add_u32 v12, v13 offset:{O_I}")
        A("s_mov_b64 exec, -1")
    if i < 16: vblk(i)
A("s_mov_b32 exec_lo, 1\ns_mov_b32 exec_hi, 0")
ts()
A("s_waitcnt vmcnt(16)")
A("ds_write_b32 v11, v8")
ts()
A("s_waitcnt vmcnt(8)")
A("ds_write_b32 v11, v9")
A("s_waitcnt vmcnt(4)")
A("ds_write_b32 v11, v7")
A("s_waitcnt vmcnt(0)")
A("ds_write_b32 v11, v10")
A("s_mov_b64 exec, -1")
ts()
A("s_branch L_final")

LB("L_w0")
ts_reset()
dma_voff(4, 13, 8, 9)
A("s_lshl_b32 s60, s52, 20\ns_lshl_b32 s61, s31, 10\ns_add_u32 s60, s60, s61\ns_lshl_b32 s61, s53, 7\ns_add_u32 s60, s60, s61")
A("s_lshl_b32 s61, s52, 8")
A("s_waitcnt lgkmcnt(0)")
ts0()
srd(40, 10, 0x400000)
for i in range(16):
    A(f"s_mov_b32 m0, {WQI+1024*i}")
    if i: A(f"s_add_u32 s60, s60, {8*8192}")
    else: A("s_nop 0")
    A(f"buffer_load_dwordx4 v4, s[40:43], s60 offen {WF} lds")
srd(36, 4, 2048)
XA, BB, AC = 16, 32, 96
for t in range(4):
    A(f"buffer_load_dwordx2 v[{XA+4*t}:{XA+4*t+1}], v6, s[36:39], s61 offen offset:{64*t}")
    A(f"buffer_load_dwordx2 v[{XA+4*t+2}:{XA+4*t+3}], v6, s[36:39], s61 offen offset:{64*t+32}")
A("s_barrier")
ws_srds()
epoch_load()
fconsts(); consts()
for q4 in range(4): tr_addr(8 + q4, q4, 12, 13, WQI)
A(f"v_lshlrev_b32 v12, 2, v0\nv_add_u32 v12, {QT}, v12\nv_and_b32 v13, 31, v0\nv_lshlrev_b32 v13, 4, v13\nv_add_u32 v13, {QT}, v13")
A("v_and_b32 v14, 1, v3\nv_lshlrev_b32 v14, 13, v14\nv_lshl_add_u32 v14, v2, 4, v14")
A("s_lshl_b32 s62, s31, 14\ns_lshl_b32 s63, s52, 11\ns_add_u32 s62, s62, s63\ns_lshl_b32 s63, s53, 8\ns_add_u32 s62, s62, s63")
A(f"s_add_u32 s62, s62, {hex(QX)}")
A("s_waitcnt lgkmcnt(0)")
tags()
A("v_mov_b32 v5, s58")
A("s_waitcnt vmcnt(0)")
ts()
seq = [(q4, t) for q4 in range(4) for t in range(4)]
D = 6
def issue(k):
    q4, t = seq[k]; tr_read(BB + 4 * k, 8 + q4, 0, t)
for k in range(D): issue(k)
for k in range(16):
    q4, t = seq[k]
    A(f"s_waitcnt lgkmcnt({2*(min(16,k+D)-k)-2})")
    mfma(AC + 4 * q4, XA + 4 * t, BB + 4 * k, None if t == 0 else AC + 4 * q4)
    if k + D < 16: issue(k + D)
A("s_nop 7\ns_nop 1")
for r in range(2): select4([AC + 4 * q + r for q in range(4)])
A("s_nop 0")
for r in range(2): A(f"v_permlane32_swap_b32 v{AC+r}, v{AC+8+r}")
A("s_nop 0")
A(f"ds_write_b32 v12, v{AC}\nds_write_b32 v12, v{AC+1} offset:256")
A("ds_read_b128 v[116:119], v13")
A("s_waitcnt lgkmcnt(0)")
stamp(112, [116, 117, 118, 119], 5)
A("s_mov_b32 exec_hi, 0")
if not OPT.get("nos"): publish(112, 14, "s62")
A("s_mov_b64 exec, -1")
ts()
A("s_barrier")
srd(36, 12, 0x400000)
srd(40, 20, 1792 * 1024)
dma_voff(4, 10, 8, 9)
if OPT.get("cshift"):
    A(f"s_add_u32 s63, s53, {OPT['cshift']}\ns_and_b32 s63, s63, 7\ns_lshl_b32 s63, s63, 7\ns_lshl_b32 s60, s54, 17\ns_add_u32 s60, s60, s63")
else:
  A("s_lshl_b32 s60, s54, 17\ns_lshl_b32 s63, s53, 7\ns_add_u32 s60, s60, s63")
A("s_lshl_b32 s61, s55, 16\ns_add_u32 s61, s61, s63")
A(f"v_mov_b32 v12, {CNT}\nv_mov_b32 v8, 1\nv_mov_b32 v9, 2\nv_mov_b32 v10, 3")
A("s_barrier\ns_barrier\ns_barrier")
lds_spin("L_ispin", 12, O_I, 2)
ts()
A("s_cmp_eq_u32 s49, 0\ns_cbranch_scc1 L_w0_nowd")
for i in range(8):
    A(f"s_mov_b32 m0, {WDI+1024*i}")
    if i: A(f"s_add_u32 s61, s61, {8*1024}")
    else: A("s_nop 0")
    A(f"buffer_load_dwordx4 v4, s[40:43], s61 offen {WF} lds")
LB("L_w0_nowd")
for i in range(16):
    A(f"s_mov_b32 m0, {WOI+1024*i}")
    if i: A(f"s_add_u32 s60, s60, {8*1024}")
    else: A("s_nop 0")
    A(f"buffer_load_dwordx4 v4, s[36:39], s60 offen {WF} lds")
ts()
A("s_waitcnt vmcnt(16)")
A(f"ds_write_b32 v12, v8 offset:{O_STAGE}")
ts()
A("s_waitcnt vmcnt(8)")
A(f"ds_write_b32 v12, v9 offset:{O_STAGE}")
ts()
A("s_waitcnt vmcnt(0)")
A(f"ds_write_b32 v12, v10 offset:{O_STAGE}")
ts()
A("s_branch L_final")

LB("L_w1_idle")
A("s_waitcnt lgkmcnt(0)")
ts0()
ws_srds()
epoch_load()
A("s_barrier")
fconsts(); consts()
A("s_waitcnt lgkmcnt(0)")
tags()
A("s_barrier\ns_barrier\ns_barrier\ns_barrier")
A("s_branch L_final")
LB("L_w1")
ts_reset()
A("s_cmp_eq_u32 s49, 0\ns_cbranch_scc1 L_w1_idle")
A("s_movk_i32 s60, 3584")
dma_voff(4, "s60", 8, 9)
A("s_mul_i32 s60, s53, 64*3584\ns_lshl_b32 s61, s55, 7\ns_add_u32 s60, s60, s61")
A("s_lshl_b32 s61, s53, 7")
A("s_waitcnt lgkmcnt(0)")
ts0()
srd(36, 16, 512 * 3584)
srd(40, 18, 512 * 3584)
for i in range(8):
    A(f"s_mov_b32 m0, {GI+1024*i}")
    if i: A(f"s_add_u32 s60, s60, {8*3584}")
    else: A("s_nop 0")
    A(f"buffer_load_dwordx4 v4, s[36:39], s60 offen {WF} lds")
    A(f"s_mov_b32 m0, {UI+1024*i}\ns_nop 0")
    A(f"buffer_load_dwordx4 v4, s[40:43], s60 offen {WF} lds")
srd(76, 4, 2048)
for t in range(2):
    A(f"buffer_load_dwordx2 v[{XA+4*t}:{XA+4*t+1}], v6, s[76:79], s61 offen offset:{64*t}")
    A(f"buffer_load_dwordx2 v[{XA+4*t+2}:{XA+4*t+3}], v6, s[76:79], s61 offen offset:{64*t+32}")
A("s_barrier")
ws_srds()
epoch_load()
fconsts(); consts()
for q4 in range(4): tr_addr(8 + q4, q4, 12, 13, GI)
A("v_lshlrev_b32 v5, 4, v0")
A("s_lshl_b32 s62, s55, 13")
A(f"s_add_u32 s62, s62, {hex(HX)}")
A("s_lshl_b32 s63, s53, 10\ns_add_u32 s63, s63, s62")
A("s_add_u32 s61, s62, 4096")
A(f"v_lshlrev_b32 v12, 1, v0\nv_add_u32 v12, {HS}, v12")
A(f"v_mov_b32 v13, {CNT+O_H}\nv_mov_b32 v14, 1")
A("s_waitcnt lgkmcnt(0)")
tags()
A("v_mov_b32 v4, s58")
A("s_waitcnt vmcnt(0)")
ts()
seq = [(mat, q4, t) for mat in range(2) for q4 in range(4) for t in range(2)]
BB1 = 24
AC1 = 88
def issue(k):
    mat, q4, t = seq[k]; tr_read(BB1 + 4 * k, 8 + q4, (UI - GI) if mat else 0, t)
for k in range(D): issue(k)
for k in range(16):
    mat, q4, t = seq[k]
    A(f"s_waitcnt lgkmcnt({2*(min(16,k+D)-k)-2})")
    acc = AC1 + 16 * mat + 4 * q4
    mfma(acc, XA + 4 * t, BB1 + 4 * k, None if t == 0 else acc)
    if k + D < 16: issue(k + D)
A("s_nop 7\ns_nop 1")
for mat in range(2):
    for r in range(2): select4([AC1 + 16 * mat + 4 * q + r for q in range(4)])
A("s_nop 0")
for mat in range(2):
    for r in range(2): A(f"v_permlane32_swap_b32 v{AC1+16*mat+r}, v{AC1+16*mat+8+r}")
A("s_nop 0")
stamp(120, [AC1, AC1 + 1, AC1 + 16, AC1 + 17], 4)
if not OPT.get("nos"): publish(120, 5, "s63")
ts()
A("s_barrier\ns_barrier\ns_barrier")
HG = 16
def hgather(sr=FA):
    for rb in range(8):
        r = HG + 4 * rb
        A(f"buffer_load_dwordx4 v[{r}:{r+3}], v5, {sr}, s{62 - rb//4} offen offset:{(rb%4)*1024} sc1")
if not OPT.get("nog"): hgather()
A("s_barrier")
ts()
LB("L_d3")
A("s_waitcnt vmcnt(0)")
poll_check("L_hchk", [HG + 4 * i for i in range(8)], 96, hgather, tagcheck_dense, 4)
ts()
for c in range(32): A(f"v_and_b32 v{HG+c}, 0xffffff00, v{HG+c}")
for step in (16, 8, 4):
    for base in range(HG, HG + step, 4):
        for o in range(4):
            A(f"v_add_f32 v{base+o}, v{base+o}, v{base+step+o}")
bf16_round_pairs([16, 17, 18, 19], [24, 25])
A("v_mul_f32 v24, s70, v16\nv_mul_f32 v25, s70, v17")
A("v_exp_f32 v24, v24\nv_exp_f32 v25, v25")
A("s_nop 0")
A("v_add_f32 v24, 1.0, v24\nv_add_f32 v25, 1.0, v25")
A("v_rcp_f32 v24, v24\nv_rcp_f32 v25, v25")
A("s_nop 0")
A("v_mul_f32 v16, v16, v24\nv_mul_f32 v17, v17, v25")
bf16_round_pairs([16, 17], [24])
A("v_mul_f32 v16, v16, v18\nv_mul_f32 v17, v17, v19")
A("v_cvt_pk_bf16_f32 v24, v16, v17")
A("ds_write_b16 v12, v24")
A("ds_write_b16_d16_hi v12, v24 offset:128")
A("ds_write_b32 v13, v14")
ts()

LB("L_final")
if TS: ts_n[0] = 8
tr_addr(8, "s30", 12, 13, WOI)
A(f"v_mov_b32 v12, {CNT}")
A(f"v_and_b32 v9, 1, v2\nv_lshlrev_b32 v10, 7, v9\nv_lshl_add_u32 v10, v3, 3, v10\nv_add_u32 v10, {HS}, v10")
A(f"v_lshlrev_b32 v9, 8, v9\nv_lshl_add_u32 v9, v3, 3, v9\nv_add_u32 v9, {OV}, v9")
A("v_lshrrev_b32 v11, 2, v2\nv_lshlrev_b32 v11, 11, v11\nv_and_b32 v13, 3, v2\nv_lshl_add_u32 v11, v13, 4, v11")
A("s_lshl_b32 s60, s53, 15\ns_lshl_b32 s61, s30, 13\ns_add_u32 s60, s60, s61\ns_lshl_b32 s61, s54, 6\ns_add_u32 s60, s60, s61")
A(f"s_add_u32 s60, s60, {hex(H2)}")
A(f"v_and_b32 v7, 31, v0\nv_mul_u32_u24 v7, {OBS}, v7")
A(f"s_mul_i32 s61, s31, {32*OBS}\ns_lshl_b32 s62, s52, 4\ns_add_u32 s61, s61, s62")
A(f"s_add_u32 s61, s61, {hex(H1+2048)}")
A(f"v_mov_b32 v13, {GT}")
A("ds_read_b128 v[60:63], v13")
A("v_mov_b32 v65, s58\nv_mov_b32 v67, s59")
A("v_mov_b32 v56, 0\nv_mov_b32 v57, 0")
lds_spin("L_fs6", 12, O_PUB, 8)
def lgather(sr=FA):
    A(f"buffer_load_dwordx4 v[68:71], v7, {sr}, s61 offen sc1")
memgrp(lgather)
A("s_cmp_eq_u32 s49, 0\ns_cbranch_scc1 L_f_nofb")
lds_spin("L_fs1", 12, O_STAGE, 1)
for t in range(2): tr_read(16 + 4 * t, 8, WDI - WOI, t)
lds_spin("L_fs2", 12, O_H, 1)
for t in range(2):
    A(f"ds_read2_b64 v[{24+4*t}:{27+4*t}], v10 offset0:{8*t} offset1:{8*t+4}")
A("s_waitcnt lgkmcnt(0)")
mfma(56, 24, 16, None)
mfma(56, 28, 20, 56)
A("s_nop 7\ns_nop 1")
A("v_mul_f32 v56, v56, v62\nv_mul_f32 v57, v57, v63")
LB("L_f_nofb")
ts()
lds_spin("L_fs3", 12, O_STAGE, 3)
for t in range(4): tr_read(16 + 4 * t, 8, 0, t)
ts()
A("s_waitcnt vmcnt(0)")
poll_check("L_lchk", [68], 72, lgather)
A("v_mov_b32 v72, v70")
A("v_mov_b32 v73, v70")
for sh in (8, 4, 2, 1):
    A("s_nop 1")
    A(f"v_max_f32_dpp v73, v73, v73 row_ror:{sh} row_mask:0xf bank_mask:0xf")
A("v_sub_f32 v72, v72, v73\nv_mul_f32 v72, s69, v72\nv_exp_f32 v72, v72\ns_nop 0\nv_mul_f32 v72, v72, v68")
rowsum([72])
A("v_rcp_f32 v72, v72")
A("s_nop 1")
A("v_readlane_b32 s62, v72, 0\nv_readlane_b32 s63, v72, 16")
A("s_nop 1")
A("v_mul_f32 v60, s62, v60\nv_mul_f32 v61, s63, v61")
ts()
lds_spin("L_fs4", 12, O_V, 4)
for t in range(4):
    A(f"ds_read2_b64 v[{32+4*t}:{35+4*t}], v9 offset0:{8*t} offset1:{8*t+4}")
for t in range(4):
    A(f"s_waitcnt lgkmcnt({3-t})")
    mfma(48, 32 + 4 * t, 16 + 4 * t, None if t == 0 else 48)
exec_mask(0xffff, 0)
A("s_nop 6")
A("v_fma_f32 v64, v48, v60, v56\nv_fma_f32 v66, v49, v61, v57")
dry_end()
publish(64, 11, "s60", dual=False)
ts()
ts_dump()
LB("L_end")
A("s_endpgm")

L.append(f""".section .rodata,"a"
.p2align 6
.amdhsa_kernel {NAME}
  .amdhsa_next_free_vgpr 128
  .amdhsa_next_free_sgpr 102
  .amdhsa_accum_offset 128
  .amdhsa_group_segment_fixed_size 0
  .amdhsa_kernarg_size 104
  .amdhsa_user_sgpr_count 2
  .amdhsa_user_sgpr_kernarg_segment_ptr 1
  .amdhsa_system_sgpr_workgroup_id_x 1
.end_amdhsa_kernel""")
open(out, "w").write("\n".join(L) + "\n")
```

```python
import sys

OPT = dict(ts=0, kv_fl="nt", w_fl="nt", ka=6, vb=1, spin=400000, pst=0, dry=1, slp=0, pre=0, prew=0, dual=1, bper=8, spre=0)
out = sys.argv[1]
for a in sys.argv[2:]:
    k, v = a.split("=")
    OPT[k] = int(v) if v.lstrip("-").isdigit() else v.replace("+", " ").replace("none", "")
TS = OPT["ts"]

NAME = "gated_mix__sliding_block_cached__swiglu_ffn__decode_kernel"
HEADER = open("gated_mix__sliding_block_cached__swiglu_ffn__decode.s.ref").read().split("; Override launch")[0]

L = []
def A(s):
    for l in s.split("\n"):
        L.append("    " + l.strip())
def LB(s):
    L.append(s + ":")
def C(s):
    L.append("    ; " + s)

VI = 0
WQI = 65536
GI = 81920
UI = 90112
WOI = 98304
WDI = 114688
PS = 122880
QS = 124928
OV = 125952
HS = 126464
QT = 126720
MX = 127232
LS = 127360
GT = 127488
CNT = 127504
O_Q, O_M, O_P, O_STAGE, O_H, O_PUB, O_V, O_I, O_VL = 0, 4, 8, 12, 16, 20, 24, 28, 32
LDS_BYTES = 127744
WB = OPT.get('wb', 496) << 20
OBS = 2176
if OPT.get("compact", 1):
    QX = WB
    HX = WB + 0x20000
    H1 = WB + 0x58000
    MIR_ = 0xE0000
    H2 = WB + 0xE0000
    EPO = H1 + 2112
else:
    QX = WB + 0x10000
    HX = WB + 0x80000
    H1 = WB + 0x100000
    H2 = WB + 0x400000
    MIR_ = 0x800000
    EPO = 0
TSB = 0x800000

SCALE = 0x3DB504F3
LOG2E = 0x3FB8AA3B
NLOG2E = 0xBFB8AA3B
WF = OPT["w_fl"]

def srd(d, p, nbytes):
    A(f"s_mov_b32 s{d}, s{p}\ns_and_b32 s{d+1}, s{p+1}, 0xffff\ns_mov_b32 s{d+2}, {hex(nbytes)}\ns_mov_b32 s{d+3}, 0x20000")

ts_n = [0]
skip_n = [0]
def ts_reset():
    ts_n[0] = 1 if TS else 0
def ts():
    if not TS: return
    k = ts_n[0]; ts_n[0] += 1
    assert k < 16
    if TS == 3: return
    A(f"s_memrealtime s[72:73]\ns_waitcnt lgkmcnt(0)\nv_writelane_b32 v127, s72, {k}")
def ts_dump():
    if not TS: return
    A("s_mov_b64 exec, -1")
    if TS == 2:
        skip_n[0] += 1
        lb = f"L_sk{skip_n[0]}"
        A(f"s_cmp_lg_u32 s2, {OPT.get('dbgwg', 0)}\ns_cbranch_scc1 {lb}")
        A(f"s_cmp_lg_u32 s30, {OPT.get('dbgwave', 11)}\ns_cbranch_scc1 {lb}")
        srd(76, 26, 256)
        A("v_readlane_b32 s60, v127, 0\ns_nop 1\nv_subrev_u32 v127, s60, v127")
        A("v_lshlrev_b32 v3, 2, v0")
        A("s_mov_b32 exec_lo, 0xffff\ns_mov_b32 exec_hi, 0")
        A("buffer_store_dword v127, v3, s[76:79], 0 offen")
        LB(lb)
        return
    A("s_mul_i32 s60, s2, 12\ns_add_u32 s60, s60, s30\ns_lshl_b32 s60, s60, 6")
    A(f"s_add_u32 s60, s60, {hex(TSB)}")
    A("v_lshlrev_b32 v3, 2, v0")
    A("s_mov_b32 exec_lo, 0xffff\ns_mov_b32 exec_hi, 0")
    A("buffer_store_dword v127, v3, s[44:47], s60 offen")

def tags():
    A("s_add_u32 s58, s56, 0x01010101\ns_add_u32 s59, s57, 0x9e3779b9")
    A("s_and_b32 s88, s58, 0xffff\ns_and_b32 s89, s58, 0xffff0000")

def tagcheck(bases, acc, t0, t1):
    first = True
    for b in bases:
        A(f"v_xor_b32 v{t0}, s58, v{b+1}")
        A(f"v_xor_b32 v{t1}, s59, v{b+3}")
        if first:
            A(f"v_or_b32 v{acc}, v{t0}, v{t1}"); first = False
        else:
            A(f"v_or3_b32 v{acc}, v{acc}, v{t0}, v{t1}")

def tagcheck_dense(bases, acc, t0, t1):
    first = True
    for b in bases:
        A(f"v_perm_b32 v{t0}, v{b+1}, v{b}, s92")
        A(f"v_perm_b32 v{t1}, v{b+3}, v{b+2}, s93")
        A(f"v_xor_b32 v{t0}, s88, v{t0}")
        A(f"v_xor_b32 v{t1}, s89, v{t1}")
        if first:
            A(f"v_or_b32 v{acc}, v{t0}, v{t1}"); first = False
        else:
            A(f"v_or3_b32 v{acc}, v{acc}, v{t0}, v{t1}")

def tagcheck_16(bases, acc, t0, t1):
    for i in range(0, len(bases), 2):
        b0 = bases[i]
        A(f"v_perm_b32 v{t0}, v{b0+1}, v{b0}, s92")
        A(f"v_xor_b32 v{t0}, s88, v{t0}")
        if i + 1 < len(bases):
            b1 = bases[i + 1]
            A(f"v_perm_b32 v{t1}, v{b1+1}, v{b1}, s92")
            A(f"v_xor_b32 v{t1}, s88, v{t1}")
            if i == 0: A(f"v_or_b32 v{acc}, v{t0}, v{t1}")
            else: A(f"v_or3_b32 v{acc}, v{acc}, v{t0}, v{t1}")
        else:
            if i == 0: A(f"v_mov_b32 v{acc}, v{t0}")
            else: A(f"v_or_b32 v{acc}, v{acc}, v{t0}")

def stamp(dst, srcs, tagv):
    for i in range(4):
        A(f"v_perm_b32 v{dst+i}, v{srcs[i]}, v{tagv}, s{94+i}")

def consts():
    A("s_mov_b32 s92, 0x0c0c0400\ns_mov_b32 s93, 0x04000c0c")
    A("s_mov_b32 s94, 0x07060500\ns_mov_b32 s95, 0x07060501\ns_mov_b32 s96, 0x07060502\ns_mov_b32 s97, 0x07060503")

def exec_mask(lo, hi):
    A(f"s_and_b32 exec_lo, s90, {hex(lo)}" if lo != 0xffffffff else "s_mov_b32 exec_lo, s90")
    if hi is not None:
        A(f"s_and_b32 exec_hi, s91, {hex(hi)}" if hi else "s_mov_b32 exec_hi, 0")
def exec_all():
    A("s_mov_b64 exec, s[90:91]")
def memgrp(fn):
    skip_n[0] += 1
    lb = f"L_sk{skip_n[0]}"
    A(f"s_cbranch_execz {lb}")
    fn()
    LB(lb)
def hbar():
    memgrp(lambda: A("s_barrier"))
def dry_end():
    A("s_cbranch_execz L_end")

MIR = MIR_
def ws_srds():
    srd(44, 28, 0x20000000)
    A(f"s_add_u32 s80, s28, {hex(MIR)}\ns_addc_u32 s81, s29, 0\ns_and_b32 s81, s81, 0xffff\ns_mov_b32 s82, {hex(0x20000000-MIR)}\ns_mov_b32 s83, 0x20000")
    A("s_mov_b32 s74, 0")

def publish(data, voff, soff, off=0, dual=True):
    o = f" offset:{off}" if off else ""
    if dual and OPT["dual"]:
        A(f"buffer_store_dwordx4 v[{data}:{data+3}], v{voff}, s[44:47], {soff} offen{o}")
    A(f"buffer_store_dwordx4 v[{data}:{data+3}], v{voff}, s[80:83], {soff} offen{o} sc1")

def poll_check(label, bases, tmp, reissue, chk=tagcheck, grp=1, dual=True):
    dual = dual and OPT["dual"]
    LB(label)
    chk(bases, tmp, tmp + 1, tmp + 2)
    if grp >= 4:
        A(f"s_nop 1\nv_or_b32_dpp v{tmp}, v{tmp}, v{tmp} quad_perm:[1,0,3,2] row_mask:0xf bank_mask:0xf")
        A(f"s_nop 1\nv_or_b32_dpp v{tmp}, v{tmp}, v{tmp} quad_perm:[2,3,0,1] row_mask:0xf bank_mask:0xf")
    if grp >= 8:
        A(f"s_nop 1\nv_or_b32_dpp v{tmp}, v{tmp}, v{tmp} row_half_mirror row_mask:0xf bank_mask:0xf")
    A(f"v_cmp_ne_u32 vcc, 0, v{tmp}")
    A("s_nop 1")
    A(f"s_cbranch_vccz {label}_ok")
    if OPT.get("nopoll"): A(f"s_branch {label}_ok")
    A(f"s_sub_u32 s67, s67, 1\ns_cbranch_scc1 {label}_ok")
    A("s_mov_b64 exec, vcc")
    if OPT["slp"]: A(f"s_sleep {OPT['slp']}")
    if dual:
        A(f"s_add_u32 s74, s74, 1\ns_and_b32 s75, s74, {OPT['bper']-1}\ns_cbranch_scc0 {label}_b")
        reissue("s[44:47]")
        A("s_waitcnt vmcnt(0)")
        A(f"s_branch {label}")
        LB(label + "_b")
    reissue("s[80:83]")
    A("s_waitcnt vmcnt(0)")
    A(f"s_branch {label}")
    LB(label + "_ok")
    exec_all()

def xrow_multi(op, vs, ts_, steps=("v_permlane16_swap_b32", "v_permlane32_swap_b32")):
    for sw in steps:
        for v, t in zip(vs, ts_):
            A(f"v_mov_b32 v{t}, v{v}")
        if len(vs) < 2: A("s_nop 1")
        elif len(vs) < 3: A("s_nop 0")
        for v, t in zip(vs, ts_):
            A(f"{sw} v{v}, v{t}")
        A("s_nop 0")
        for v, t in zip(vs, ts_):
            A(f"{op} v{v}, v{v}, v{t}")

def xrow_t4(v):
    A(f"v_permlane16_swap_b32 v{v}, v{v+1}")
    A(f"v_permlane16_swap_b32 v{v+2}, v{v+3}")
    A("s_nop 0")
    A(f"v_add_f32 v{v}, v{v}, v{v+1}")
    A(f"v_add_f32 v{v+2}, v{v+2}, v{v+3}")
    A("s_nop 1")
    A(f"v_permlane32_swap_b32 v{v}, v{v+2}")
    A("s_nop 0")
    A(f"v_add_f32 v{v}, v{v}, v{v+2}")

def transpose8(raw, dst, pairs=(0, 1, 2, 3)):
    for v in pairs:
        for w in range(4):
            a = raw + 4 * (2 * v) + w
            b = raw + 4 * (2 * v + 1) + w
            A(f"v_perm_b32 v{dst + 4*(2*w) + v}, v{b}, v{a}, s64")
            A(f"v_perm_b32 v{dst + 4*(2*w+1) + v}, v{b}, v{a}, s65")

def bf16_round_pairs(vs, tmp):
    n = len(vs) // 2
    for i in range(n):
        A(f"v_cvt_pk_bf16_f32 v{tmp[i]}, v{vs[2*i]}, v{vs[2*i+1]}")
    for i in range(n):
        A(f"v_lshlrev_b32 v{vs[2*i]}, 16, v{tmp[i]}")
        A(f"v_and_b32 v{vs[2*i+1]}, 0xffff0000, v{tmp[i]}")

def lds_spin(label, addr_v, off, val):
    A(f"s_cbranch_execz {label}_x")
    LB(label)
    A(f"ds_read_b32 v15, v{addr_v} offset:{off}")
    A("s_waitcnt lgkmcnt(0)")
    A("v_readfirstlane_b32 s66, v15")
    A("s_sub_u32 s67, s67, 1")
    A(f"s_cbranch_scc1 {label}_x")
    A(f"s_cmp_lt_u32 s66, {val}")
    A(f"s_cbranch_scc1 {label}")
    LB(label + "_x")

def rowsum(vs, shifts=(8, 4, 2, 1)):
    for sh in shifts:
        if len(vs) < 3: A("s_nop 1")
        for v in vs:
            A(f"v_add_f32_dpp v{v}, v{v}, v{v} row_ror:{sh} row_mask:0xf bank_mask:0xf")

def dma_voff(dst, stride_sreg_or_shift, t0, t1):
    A(f"v_bfe_u32 v{t0}, v0, 1, 2\nv_bfe_u32 v{t1}, v0, 4, 2\nv_xor_b32 v{t0}, v{t0}, v{t1}")
    A(f"v_and_b32 v{t1}, 1, v0\nv_lshl_add_u32 v{t0}, v{t0}, 1, v{t1}\nv_lshlrev_b32 v{t0}, 4, v{t0}")
    A(f"v_lshrrev_b32 v{t1}, 3, v0")
    if isinstance(stride_sreg_or_shift, int):
        A(f"v_lshl_add_u32 v{dst}, v{t1}, {stride_sreg_or_shift}, v{t0}")
    else:
        A(f"v_mul_lo_u32 v{t1}, v{t1}, {stride_sreg_or_shift}\nv_add_u32 v{dst}, v{t1}, v{t0}")

def tr_addr(dst, q4, t0, t1, base):
    A(f"v_bfe_u32 v{t0}, v0, 3, 2")
    A(f"v_xor_b32 v{t0}, {q4}, v{t0}")
    A(f"v_lshlrev_b32 v{t0}, 5, v{t0}")
    A(f"v_and_b32 v{t1}, 3, v0\nv_lshl_add_u32 v{t0}, v{t1}, 3, v{t0}")
    A(f"v_lshrrev_b32 v{t1}, 2, v0\nv_lshl_add_u32 v{dst}, v{t1}, 7, v{t0}")
    A(f"v_add_u32 v{dst}, {base}, v{dst}")

def tr_read(dst, addr_v, off, t):
    A(f"ds_read_b64_tr_b16 v[{dst}:{dst+1}], v{addr_v} offset:{off + 4096*t}")
    A(f"ds_read_b64_tr_b16 v[{dst+2}:{dst+3}], v{addr_v} offset:{off + 4096*t + 2048}")

def lds_spin2(label, addr_v, off, val):
    A(f"s_cbranch_execz {label}_x")
    LB(label)
    A(f"ds_read_b64 v[14:15], v{addr_v} offset:{off}")
    A("s_waitcnt lgkmcnt(0)")
    A("v_min_u32 v15, v14, v15")
    A("s_sub_u32 s67, s67, 1")
    A("v_readfirstlane_b32 s66, v15")
    A(f"s_cbranch_scc1 {label}_x")
    A(f"s_cmp_lt_u32 s66, {val}")
    A(f"s_cbranch_scc1 {label}")
    LB(label + "_x")

def bump(off):
    exec_mask(1, 0)
    A(f"ds_add_u32 v12, v13 offset:{off}")
    exec_all()

def mfma(d, a, b, c):
    cs = "0" if c is None else f"v[{c}:{c+3}]"
    A(f"v_mfma_f32_16x16x32_bf16 v[{d}:{d+3}], v[{a}:{a+3}], v[{b}:{b+3}], {cs}")

def select4(xs):
    A(f"v_permlane16_swap_b32 v{xs[0]}, v{xs[1]}")
    A(f"v_permlane16_swap_b32 v{xs[2]}, v{xs[3]}")

NWAVES = 16 if OPT["dry"] else 12
L.append(HEADER.rstrip())
L.append(f"; @launch grid=(256,1,1) block=({NWAVES*64},1,1) lds={LDS_BYTES}")
L.append('.amdgcn_target "amdgcn-amd-amdhsa--gfx950"')
L.append(".text")
L.append(f".globl {NAME}\n.p2align 8\n.type {NAME},@function\n{NAME}:")
A("s_cmp_ge_u32 s2, 256\ns_cbranch_scc1 L_end")
if OPT.get("xorwg"): A(f"s_xor_b32 s2, s2, {OPT['xorwg']}")
A("s_load_dwordx16 s[4:19], s[0:1], 0")
A("s_load_dwordx8 s[20:27], s[0:1], 64")
A("s_load_dwordx2 s[28:29], s[0:1], 96")
if TS or OPT.get("diag"): A("s_memrealtime s[72:73]")
A("v_lshrrev_b32 v1, 6, v0")
A("v_and_b32 v0, 63, v0")
A("s_and_b32 s31, s2, 7")
A("v_readfirstlane_b32 s30, v1")
A("s_lshr_b32 s32, s2, 3")
A("s_lshr_b32 s33, s32, 4")
A("s_and_b32 s34, s32, 15")
A(f"s_mov_b32 s67, {OPT['spin']}")
A("s_mov_b64 s[90:91], -1")
A("v_and_b32 v2, 15, v0")
A("v_lshrrev_b32 v3, 4, v0")
A("s_lshr_b32 s52, s32, 3")
A("s_and_b32 s53, s32, 7")
A("s_lshl_b32 s54, s31, 2\ns_add_u32 s54, s54, s52")
A("s_lshl_b32 s50, s33, 3\ns_add_u32 s50, s50, s31\ns_lshl_b32 s50, s50, 23")
A("s_lshl_b32 s51, s34, 16\ns_add_u32 s50, s50, s51\ns_add_u32 s50, s50, 0x700000")
A(f"s_mul_i32 s51, s32, {OPT.get('rotm', 5)}\ns_add_u32 s51, s51, s31")
A("s_cmp_lt_u32 s30, 4\ns_cbranch_scc1 L_special")
if OPT["dry"]: A("s_cmp_ge_u32 s30, 12\ns_cbranch_scc1 L_helper")

def epoch_load():
    if EPO:
        A(f"s_mov_b32 s56, {hex(EPO)}\ns_load_dwordx2 s[56:57], s[28:29], s56")
    else:
        A("s_load_dwordx2 s[56:57], s[28:29], 0")
def fconsts():
    A(f"s_mov_b32 s68, {hex(SCALE)}\ns_mov_b32 s69, {hex(LOG2E)}\ns_mov_b32 s70, {hex(NLOG2E)}")
def ts0():
    if TS: A("v_writelane_b32 v127, s72, 0")

C("================= K / attention waves =================")
ts_reset()
A("s_sub_u32 s35, s30, 4")
A("s_lshl_b32 s62, s35, 1\ns_add_u32 s62, s62, s51")
A("s_add_u32 s63, s62, 1\ns_and_b32 s62, s62, 15\ns_and_b32 s63, s63, 15")
A("s_lshl_b32 s62, s62, 12\ns_lshl_b32 s63, s63, 12")
A("s_add_u32 s61, s50, s63\ns_add_u32 s60, s50, s62")
A("v_lshlrev_b32 v4, 8, v2\nv_lshl_add_u32 v4, v3, 4, v4")
A("s_waitcnt lgkmcnt(0)")
ts0()
srd(36, 6, 0x8000000)
KR, QR = 16, 80
KVF = OPT["kv_fl"]
def kload(i):
    t, j = i // 4, i % 4
    A(f"buffer_load_dwordx4 v[{KR+4*i}:{KR+4*i+3}], v4, s[36:39], s{60+t} offen offset:{j*64} {KVF}")
FA = "s[44:47]" if OPT["dual"] else "s[80:83]"
def qgather(sr=FA):
    A(f"buffer_load_dwordx4 v[{QR}:{QR+3}], v6, {sr}, s62 offen sc1")
KA, VB = OPT["ka"], OPT["vb"]
A("s_barrier")
for i in range(KA): kload(i)
ws_srds()
epoch_load()
fconsts(); consts()
A("s_lshl_b32 s62, s31, 1\ns_add_u32 s62, s62, s33\ns_lshl_b32 s62, s62, 13")
A("s_lshl_b32 s63, s35, 8\ns_add_u32 s62, s62, s63")
A(f"s_add_u32 s62, s62, {hex(QX)}")
A("v_lshlrev_b32 v6, 11, v3\nv_lshl_add_u32 v6, v2, 4, v6")
A(f"v_mov_b32 v12, {CNT}\nv_mov_b32 v13, 1")
A("v_and_b32 v14, 3, v2")
A(f"s_lshl_b32 s71, s35, 7\ns_add_u32 s71, s71, {QS}")
A("v_lshl_add_u32 v10, v2, 3, s71\nv_lshl_add_u32 v10, v3, 1, v10")
A(f"v_lshlrev_b32 v11, 8, v14\nv_lshl_add_u32 v11, v3, 4, v11\nv_add_u32 v11, {QS}, v11")
A(f"v_lshlrev_b32 v8, 5, v14\nv_add_u32 v8, {MX}, v8")
A("s_lshl_b32 s71, s35, 2\nv_add_u32 v9, s71, v8")
A(f"v_lshl_add_u32 v7, v3, 2, v14\nv_lshlrev_b32 v7, 4, v7\nv_add_u32 v7, {PS}, v7")
A("s_lshl_b32 s71, s35, 8\nv_add_u32 v5, s71, v7")
A("v_bfe_u32 v120, v0, 2, 3\nv_xor_b32 v120, s35, v120\nv_lshlrev_b32 v120, 5, v120")
A("v_and_b32 v121, 3, v0\nv_lshl_add_u32 v120, v121, 3, v120\nv_lshrrev_b32 v121, 2, v0\nv_lshl_add_u32 v120, v121, 8, v120")
A("v_lshlrev_b32 v121, 9, v14\nv_lshl_add_u32 v121, v3, 4, v121")
A(f"s_lshl_b32 s76, s31, 5\ns_add_u32 s49, s76, s32\ns_mul_i32 s49, s49, {OBS}\ns_add_u32 s49, s49, {hex(H1)}")
A("s_lshl_b32 s71, s35, 6\ns_add_u32 s48, s49, s71")
A(f"v_lshrrev_b32 v122, 3, v2\nv_lshl_add_u32 v122, v122, 4, v3\nv_mul_u32_u24 v122, {OBS}, v122")
A("v_and_b32 v123, 7, v2\nv_lshl_add_u32 v122, v123, 4, v122")
A(f"s_mul_i32 s76, s76, {OBS}\ns_add_u32 s76, s76, {hex(H1)}")
A("s_lshl_b32 s71, s52, 9\ns_add_u32 s76, s76, s71\ns_lshl_b32 s71, s35, 7\ns_add_u32 s76, s76, s71")
for i in range(1, 4): A(f"s_add_u32 s{76+i}, s76, {i*4*OBS}")
A(f"s_lshl_b32 s71, s35, 6\ns_add_u32 s71, s71, {OV}")
A("v_lshrrev_b32 v124, 3, v2\nv_lshlrev_b32 v124, 8, v124\nv_lshl_add_u32 v124, v123, 3, v124\nv_lshl_add_u32 v124, v3, 1, v124\nv_add_u32 v124, s71, v124")
A("s_waitcnt lgkmcnt(0)")
tags()
A("s_barrier")
ts()
for i in range(KA, 8): kload(i)
if OPT["prew"]:
    A("s_not_b32 s71, s58")
    A("v_mov_b32 v100, s71\nv_mov_b32 v101, s71\nv_mov_b32 v102, s71\nv_mov_b32 v103, s71")
    A("v_lshrrev_b32 v101, 8, v101")
    A("s_mov_b32 exec_lo, 0x000f000f\ns_mov_b32 exec_hi, 0x000f000f")
    A(f"buffer_store_dwordx4 v[100:103], v121, {FA}, s48 offen" + ("" if OPT["dual"] else " sc1"))
    A("s_cmp_lg_u32 s35, 7\ns_cbranch_scc1 L_pw1")
    A("v_lshlrev_b32 v104, 4, v2")
    A("s_mov_b32 exec_lo, 0xff\ns_mov_b32 exec_hi, 0")
    A(f"buffer_store_dwordx4 v[100:103], v104, {FA}, s49 offen offset:2048" + ("" if OPT["dual"] else " sc1"))
    LB("L_pw1")
    A("s_mov_b64 exec, -1")
A("s_barrier")
A("s_barrier")
ts()
if not OPT.get("nog"): qgather()
A("s_barrier")
ts()
LB("L_d0")
A("s_waitcnt vmcnt(0)")
poll_check("L_qchk", [QR], 88, qgather, tagcheck_dense, 4)
if TS: A("v_writelane_b32 v127, s74, 13")
ts()
for c in range(4): A(f"v_and_b32 v{QR+c}, 0xffffff00, v{QR+c}")
A("s_nop 0")
xrow_t4(QR)
A(f"v_cvt_pk_bf16_f32 v{QR}, v{QR}, v{QR}")
A(f"ds_write_b16 v10, v{QR}")
bump(O_Q)
lds_spin("L_qspin", 12, O_Q, 8)
for j in range(4):
    A(f"ds_read_b128 v[{QR+4*j}:{QR+4*j+3}], v11 offset:{64*j}")
for j in range(4):
    A(f"s_waitcnt lgkmcnt({3-j})")
    for t in range(2):
        k = KR + 4 * (4 * t + j)
        mfma(96 + 4 * t, k, QR + 4 * j, None if j == 0 else 96 + 4 * t)
A("s_nop 7\ns_nop 1")
S = list(range(96, 104))
bf16_round_pairs(S, [112, 113, 114, 115])
for v in S: A(f"v_mul_f32 v{v}, s68, v{v}")
bf16_round_pairs(S, [112, 113, 114, 115])
A("v_max3_f32 v116, v96, v97, v98\nv_max3_f32 v116, v116, v99, v100\nv_max3_f32 v116, v116, v101, v102\nv_max_f32 v116, v116, v103")
xrow_multi("v_max_f32", [116], [117])
exec_mask(0xf, 0)
A("ds_write_b32 v9, v116")
bump(O_M)
lds_spin("L_mspin", 12, O_M, 8)
A("ds_read_b128 v[104:107], v8\nds_read_b128 v[108:111], v8 offset:16")
A("s_waitcnt lgkmcnt(0)")
A("v_max3_f32 v116, v104, v105, v106\nv_max3_f32 v116, v116, v107, v108\nv_max3_f32 v116, v116, v109, v110\nv_max_f32 v116, v116, v111")
A("v_mul_f32 v117, s70, v116")
for v in S: A(f"v_fma_f32 v{v}, v{v}, s69, v117")
for v in S: A(f"v_exp_f32 v{v}, v{v}")
A("v_or_b32 v125, s88, v116")
for i in range(4): A(f"v_cvt_pk_bf16_f32 v{112+i}, v{96+2*i}, v{97+2*i}")
A("v_add_f32 v117, v96, v97\nv_add_f32 v118, v98, v99\nv_add_f32 v119, v100, v101\nv_add_f32 v104, v102, v103")
A("v_add_f32 v117, v117, v118\nv_add_f32 v119, v119, v104\nv_add_f32 v117, v117, v119")
exec_mask(0x000f000f, 0x000f000f)
A("ds_write_b128 v5, v[112:115]")
exec_all()
xrow_multi("v_add_f32", [117], [118])
exec_mask(0xf, 0)
A("ds_write_b32 v9, v117 offset:128")
bump(O_P)
lds_spin("L_pspin1", 12, O_P, 8)
PR, VO = 16, 48
for k in range(8):
    A(f"ds_read_b128 v[{PR+4*k}:{PR+4*k+3}], v7 offset:{256*k}")
A("s_cmp_lg_u32 s35, 7\ns_cbranch_scc1 L_nol")
A("ds_read_b128 v[104:107], v8 offset:128\nds_read_b128 v[108:111], v8 offset:144")
A("v_lshlrev_b32 v10, 4, v2")
A("v_mov_b32 v97, s58\nv_mov_b32 v98, v116\nv_mov_b32 v99, s59")
A("s_waitcnt lgkmcnt(0)")
A("v_add_f32 v104, v104, v105\nv_add_f32 v106, v106, v107\nv_add_f32 v108, v108, v109\nv_add_f32 v110, v110, v111")
A("v_add_f32 v104, v104, v106\nv_add_f32 v108, v108, v110\nv_add_f32 v96, v104, v108")
exec_mask(0xf, 0)
memgrp(lambda: publish(96, 10, "s49", 2048))
exec_all()
LB("L_nol")
ts()
dry_end()
LB("L_d1")
def vstep(ks, first):
    for k in ks:
        A(f"ds_read_b64_tr_b16 v[{VO+4*k}:{VO+4*k+1}], v120 offset:{VI + 8192*k}")
        A(f"ds_read_b64_tr_b16 v[{VO+4*k+2}:{VO+4*k+3}], v120 offset:{VI + 8192*k + 4096}")
    for i, k in enumerate(ks):
        A(f"s_waitcnt lgkmcnt({2*(len(ks)-1-i)})")
        mfma(80, VO + 4 * k, PR + 4 * k, None if (first and i == 0) else 80)
lds_spin2("L_v1", 12, O_VL, 4)
vstep([0, 1, 2, 3], True)
lds_spin2("L_v2", 12, O_VL, 6)
vstep([4, 5], False)
lds_spin2("L_v3", 12, O_VL, 7)
vstep([6], False)
hbar()
ts()
vstep([7], False)
exec_mask(0x000f000f, 0x000f000f)
A("s_nop 5")
stamp(84, [80, 81, 82, 83], 125)
memgrp(lambda: publish(84, 121, "s48"))
exec_all()
hbar()
ts()
A("s_cmp_ge_u32 s35, 4\ns_cbranch_scc1 L_kv_h2")
GR = 80
def h1gather(sr=FA):
    for i in range(4):
        A(f"buffer_load_dwordx4 v[{GR+4*i}:{GR+4*i+3}], v122, {sr}, s{76+i} offen sc1")
ts()
memgrp(h1gather)
A("s_waitcnt vmcnt(0)")
ts()
poll_check("L_h1chk", [GR + 4 * i for i in range(4)], 116, h1gather, tagcheck_16, 8)
ts()
for i in range(4): A(f"v_perm_b32 v{100+i}, v{GR+4*i+3}, v{GR+4*i+2}, s93")
A("v_max3_f32 v116, v100, v101, v102\nv_max_f32 v116, v116, v103")
xrow_multi("v_max_f32", [116], [117])
A("v_mul_f32 v117, s70, v116")
for i in range(4): A(f"v_fma_f32 v{100+i}, v{100+i}, s69, v117")
for i in range(4): A(f"v_exp_f32 v{100+i}, v{100+i}")
for c in range(16): A(f"v_and_b32 v{GR+c}, 0xffffff00, v{GR+c}")
for c in range(4): A(f"v_mul_f32 v{104+c}, v100, v{GR+c}")
for i in range(1, 4):
    for c in range(4): A(f"v_fmac_f32 v{104+c}, v{100+i}, v{GR+4*i+c}")
A("s_nop 0")
xrow_t4(104)
A("v_cvt_pk_bf16_f32 v104, v104, v104")
A("ds_write_b16 v124, v104")
A("s_waitcnt lgkmcnt(0)")
hbar()
ts()
dry_end()
A("s_branch L_kv_done")
LB("L_kv_h2")
A("s_cmp_lg_u32 s35, 7\ns_cbranch_scc1 L_kv_bo")
A("s_cmp_ge_u32 s2, 128\ns_cbranch_scc1 L_kv_bo")
LB("L_d2")
if TS: ts_n[0] = 12
srd(48, 24, 2048)
A("s_lshl_b32 s60, s2, 11")
A(f"s_add_u32 s60, s60, {hex(H2)}")
A("v_lshlrev_b32 v5, 4, v0")
def h2gather(sr="s[80:83]"):
    A(f"buffer_load_dwordx4 v[16:19], v5, {sr}, s60 offen sc1")
    A(f"buffer_load_dwordx4 v[20:23], v5, {sr}, s60 offen offset:1024 sc1")
A("v_mov_b32 v8, 0")
A("s_lshl_b32 s62, s2, 3")
hbar()
memgrp(h2gather)
A("s_waitcnt vmcnt(0)")
poll_check("L_h2chk", [16, 20], 24, h2gather, dual=False)
ts()
A("v_add_f32 v16, v16, v20\nv_add_f32 v18, v18, v22")
rowsum([16, 18], shifts=(8, 4))
xrow_multi("v_add_f32", [16, 18], [17, 19])
A("s_nop 0")
for i, qp in enumerate(("[1,1,1,1]", "[2,2,2,2]", "[3,3,3,3]")):
    A(f"v_mov_b32_dpp v{24+i}, v16 quad_perm:{qp} row_mask:0xf bank_mask:0xf")
    A(f"v_mov_b32_dpp v{28+i}, v18 quad_perm:{qp} row_mask:0xf bank_mask:0xf")
A("v_cvt_pk_bf16_f32 v32, v16, v24\nv_cvt_pk_bf16_f32 v33, v25, v26")
A("v_cvt_pk_bf16_f32 v34, v18, v28\nv_cvt_pk_bf16_f32 v35, v29, v30")
exec_mask(1, 0)
if OPT["dry"]: A("s_cbranch_execz L_spre")
A("buffer_store_dwordx2 v[32:33], v8, s[48:51], s62 offen")
A("buffer_store_dwordx2 v[34:35], v8, s[48:51], s62 offen offset:1024")
if OPT.get("diag"):
    A("s_memrealtime s[98:99]\ns_waitcnt lgkmcnt(0)")
    A(f"s_sub_u32 s73, s98, s72\ns_mul_i32 s73, s73, {OPT['diag']}\ns_add_u32 s73, s73, s98")
    LB("L_diag")
    A("s_memrealtime s[98:99]\ns_waitcnt lgkmcnt(0)\ns_sub_u32 s99, s98, s73\ns_cmp_lt_i32 s99, 0\ns_cbranch_scc1 L_diag")
A("s_cmp_lg_u32 s2, 0\ns_cbranch_scc1 L_kv_done")
A("v_mov_b32 v36, s58\nv_mov_b32 v37, s59")
A(f"s_mov_b32 s62, {hex(EPO)}")
A("buffer_store_dwordx2 v[36:37], v8, s[44:47], s62 offen sc1")
A("s_branch L_kv_done")
LB("L_kv_bo")
A("s_barrier")
LB("L_kv_done")
if TS:
    A("s_memrealtime s[72:73]\ns_waitcnt lgkmcnt(0)\nv_writelane_b32 v127, s72, 15")
ts_dump()
A("s_endpgm")

if OPT["dry"]:
    LB("L_helper")
    C("================= dry-run helpers: warm the instruction cache =================")
    if OPT.get("cpf"):
        A("s_getpc_b64 s[60:61]")
        LB("L_pc")
        A(f"s_sub_u32 s60, s60, L_pc-{NAME}\ns_subb_u32 s61, s61, 0")
        A(f"s_sub_u32 s62, s30, 12\ns_mul_i32 s62, s62, {OPT['cpf']*128}\ns_add_u32 s60, s60, s62\ns_addc_u32 s61, s61, 0")
        for i in range(OPT["cpf"]): A(f"s_load_dword s{36+(i%8)}, s[60:61], {128*i}")
    A("s_barrier")
    for v in list(range(4, 16)) + [120, 121, 122, 123, 124]: A(f"v_mov_b32 v{v}, 0")
    A("s_waitcnt lgkmcnt(0)")
    ws_srds()
    A("s_mov_b64 s[90:91], 0\ns_mov_b64 exec, 0")
    A("s_mov_b32 s35, 7\ns_mov_b32 s48, 0\ns_mov_b32 s49, 1\ns_mov_b32 s60, 0\ns_mov_b32 s61, 0\ns_mov_b32 s62, 0\ns_mov_b32 s63, 0")
    A("s_cmp_eq_u32 s30, 12\ns_cbranch_scc1 L_d0")
    A("s_cmp_eq_u32 s30, 14\ns_cbranch_scc1 L_d2")
    A("s_cmp_eq_u32 s30, 15\ns_cbranch_scc1 L_d3")
    A("s_mov_b32 s35, 0")
    A("s_branch L_d1")
    LB("L_spre")
    if OPT["spre"]:
        A(f"s_lshl_b32 s60, s31, 5\ns_add_u32 s60, s60, s32\ns_mul_i32 s60, s60, {OBS}\ns_add_u32 s60, s60, {hex(H1)}")
        A("s_add_u32 s62, s28, s60\ns_addc_u32 s63, s29, 0")
        if OPT["spre"] & 1:
            for i in range(17): A(f"s_load_dword s{4+(i%8)}, s[62:63], {128*i}")
        A(f"s_lshl_b32 s60, s2, 11\ns_add_u32 s60, s60, {hex(H2+MIR)}")
        A("s_add_u32 s62, s28, s60\ns_addc_u32 s63, s29, 0")
        if OPT["spre"] & 2:
            A("s_cmp_ge_u32 s2, 128\ns_cbranch_scc1 L_end")
            for i in range(16): A(f"s_load_dword s{4+(i%8)}, s[62:63], {128*i}")
    A("s_endpgm")

LB("L_special")
C("================= special waves =================")
ts_reset()
A("s_and_b32 s49, s54, 7\ns_cmp_lg_u32 s49, 7\ns_cselect_b32 s49, 1, 0")
A("s_lshr_b32 s55, s54, 3\ns_sub_u32 s55, s54, s55")
A("v_and_b32 v6, 1, v2\nv_lshlrev_b32 v6, 10, v6\nv_lshl_add_u32 v6, v3, 3, v6")
A("s_cmp_eq_u32 s30, 0\ns_cbranch_scc1 L_w0")
A("s_cmp_eq_u32 s30, 1\ns_cbranch_scc1 L_w1")
A("s_cmp_eq_u32 s30, 3\ns_cbranch_scc1 L_w3")
A("s_waitcnt lgkmcnt(0)")
ts0()
ws_srds()
epoch_load()
if OPT.get("tlbw", 1):
    A("v_mov_b32 v4, 0")
    A("s_mov_b32 exec_lo, 1\ns_mov_b32 exec_hi, 0")
    srd(36, 24, 2048)
    A("buffer_load_dword v16, v4, s[36:39], 0 offen")
    srd(40, 8, 0x8000000)
    A(f"buffer_load_dword v17, v4, s[40:43], s50 offen {KVF}")
    srd(76, 12, 0x400000)
    A("s_lshl_b32 s60, s54, 17")
    A(f"buffer_load_dword v18, v4, s[76:79], s60 offen {WF}")
    srd(84, 20, 1792 * 1024)
    A("s_lshl_b32 s60, s55, 16")
    A(f"buffer_load_dword v19, v4, s[84:87], s60 offen {WF}")
    A("s_mov_b64 exec, -1")
A("s_barrier")
fconsts(); consts()
A("s_waitcnt lgkmcnt(0)")
tags()
A("s_branch L_vload")

LB("L_w3")
A("v_lshlrev_b32 v5, 4, v0")
A(f"v_mov_b32 v4, {CNT}\nv_mov_b32 v8, 0\nv_mov_b32 v9, 0\nv_mov_b32 v10, 0\nv_mov_b32 v11, 0")
A("ds_write_b128 v4, v[8:11]")
A("ds_write_b128 v4, v[8:11] offset:16")
A("ds_write_b128 v4, v[8:11] offset:32")
A("s_waitcnt lgkmcnt(0)")
ts0()
srd(36, 4, 2048)
srd(40, 22, 1024)
A("buffer_load_dwordx4 v[16:19], v5, s[36:39], 0 offen")
A("buffer_load_dwordx4 v[20:23], v5, s[36:39], 0 offen offset:1024")
A("buffer_load_dwordx4 v[24:27], v5, s[40:43], 0 offen")
A("s_barrier")
ws_srds()
epoch_load()
fconsts(); consts()
A("s_waitcnt vmcnt(0)")
for src, dst in ((24, 32), (16, 40), (20, 48)):
    for w in range(4):
        A(f"v_lshlrev_b32 v{dst+2*w}, 16, v{src+w}\nv_and_b32 v{dst+2*w+1}, 0xffff0000, v{src+w}")
for b in range(2):
    for e in range(8):
        A(f"v_mul_f32 v{40+8*b+e}, v{40+8*b+e}, v{32+e}")
bf16_round_pairs(list(range(40, 56)), list(range(16, 24)))
for b in range(2):
    o = 40 + 8 * b
    A(f"v_add_f32 v{o}, v{o}, v{o+1}\nv_add_f32 v{o+2}, v{o+2}, v{o+3}\nv_add_f32 v{o+4}, v{o+4}, v{o+5}\nv_add_f32 v{o+6}, v{o+6}, v{o+7}")
    A(f"v_add_f32 v{o}, v{o}, v{o+2}\nv_add_f32 v{o+4}, v{o+4}, v{o+6}\nv_add_f32 v{o}, v{o}, v{o+4}")
rowsum([40, 48])
xrow_multi("v_add_f32", [40, 48], [41, 49])
A("v_mov_b32 v41, v48")
bf16_round_pairs([40, 41], [16])
A("v_mul_f32 v40, s70, v40\nv_mul_f32 v41, s70, v41")
A("v_exp_f32 v40, v40\nv_exp_f32 v41, v41")
A("s_nop 0")
A("v_add_f32 v40, 1.0, v40\nv_add_f32 v41, 1.0, v41")
A("v_rcp_f32 v40, v40\nv_rcp_f32 v41, v41")
A("s_nop 0")
bf16_round_pairs([40, 41], [16])
A("v_sub_f32 v42, 1.0, v40\nv_sub_f32 v43, 1.0, v41")
bf16_round_pairs([42, 43], [16])
A(f"v_mov_b32 v4, {GT}")
A("ds_write_b128 v4, v[40:43]")
A("s_waitcnt lgkmcnt(0)")
tags()

LB("L_vload")
srd(40, 8, 0x8000000)
A("s_sub_u32 s35, s30, 2")
A("s_lshl_b32 s60, s35, 2\nv_add_u32 v4, s60, v3\nv_lshrrev_b32 v5, 1, v2\nv_xor_b32 v4, v4, v5")
A("v_and_b32 v5, 1, v2\nv_lshl_add_u32 v4, v4, 1, v5\nv_lshlrev_b32 v4, 4, v4\nv_lshl_add_u32 v4, v3, 8, v4")
A("s_lshl_b32 s61, s35, 10\ns_add_u32 s62, s50, s61")
A("s_and_b32 s60, s51, 15\ns_lshl_b32 s60, s60, 12")
A(f"v_mov_b32 v12, {CNT}\nv_mov_b32 v13, 1")
A(f"s_lshl_b32 s63, s35, 2\ns_add_u32 s63, s63, {CNT+O_VL}\nv_mov_b32 v11, s63")
A("v_mov_b32 v8, 4\nv_mov_b32 v9, 6\nv_mov_b32 v10, 8\nv_mov_b32 v7, 7")
def vblk(i):
    A(f"s_add_u32 s63, s62, s60\ns_add_u32 m0, s61, {VI + 4096*i}")
    A("s_add_u32 s60, s60, 4096\ns_and_b32 s60, s60, 0xffff")
    A(f"buffer_load_dwordx4 v4, s[40:43], s63 offen {KVF} lds")
    A(f"buffer_load_dwordx4 v4, s[40:43], s63 offen offset:2048 {KVF} lds")
A("s_barrier\ns_barrier")
for i in range(2 * VB): vblk(i)
A("s_barrier\ns_barrier")
IB = OPT.get("ib", 16)
for i in range(2 * VB, 17):
    if i == max(IB, 2 * VB):
        A("s_mov_b32 exec_lo, 1\ns_mov_b32 exec_hi, 0")
        A(f"ds_add_u32 v12, v13 offset:{O_I}")
        A("s_mov_b64 exec, -1")
    if i < 16: vblk(i)
A("s_mov_b32 exec_lo, 1\ns_mov_b32 exec_hi, 0")
ts()
A("s_waitcnt vmcnt(16)")
A("ds_write_b32 v11, v8")
ts()
A("s_waitcnt vmcnt(8)")
A("ds_write_b32 v11, v9")
A("s_waitcnt vmcnt(4)")
A("ds_write_b32 v11, v7")
A("s_mov_b64 exec, -1")
A("s_waitcnt vmcnt(0)")
A("s_barrier")
ts()
A("s_branch L_final")

LB("L_w0")
ts_reset()
dma_voff(4, 13, 8, 9)
A("s_lshl_b32 s60, s52, 20\ns_lshl_b32 s61, s31, 10\ns_add_u32 s60, s60, s61\ns_lshl_b32 s61, s53, 7\ns_add_u32 s60, s60, s61")
A("s_lshl_b32 s61, s52, 8")
A("s_waitcnt lgkmcnt(0)")
ts0()
srd(40, 10, 0x400000)
for i in range(16):
    A(f"s_mov_b32 m0, {WQI+1024*i}")
    if i: A(f"s_add_u32 s60, s60, {8*8192}")
    else: A("s_nop 0")
    A(f"buffer_load_dwordx4 v4, s[40:43], s60 offen {WF} lds")
srd(36, 4, 2048)
XA, BB, AC = 16, 32, 96
for t in range(4):
    A(f"buffer_load_dwordx2 v[{XA+4*t}:{XA+4*t+1}], v6, s[36:39], s61 offen offset:{64*t}")
    A(f"buffer_load_dwordx2 v[{XA+4*t+2}:{XA+4*t+3}], v6, s[36:39], s61 offen offset:{64*t+32}")
A("s_barrier")
ws_srds()
epoch_load()
fconsts(); consts()
for q4 in range(4): tr_addr(8 + q4, q4, 12, 13, WQI)
A(f"v_lshlrev_b32 v12, 2, v0\nv_add_u32 v12, {QT}, v12\nv_and_b32 v13, 31, v0\nv_lshlrev_b32 v13, 4, v13\nv_add_u32 v13, {QT}, v13")
A("v_and_b32 v14, 1, v3\nv_lshlrev_b32 v14, 13, v14\nv_lshl_add_u32 v14, v2, 4, v14")
A("s_lshl_b32 s62, s31, 14\ns_lshl_b32 s63, s52, 11\ns_add_u32 s62, s62, s63\ns_lshl_b32 s63, s53, 8\ns_add_u32 s62, s62, s63")
A(f"s_add_u32 s62, s62, {hex(QX)}")
A("s_waitcnt lgkmcnt(0)")
tags()
A("v_mov_b32 v5, s58")
A("s_waitcnt vmcnt(0)")
ts()
seq = [(q4, t) for q4 in range(4) for t in range(4)]
D = 6
def issue(k):
    q4, t = seq[k]; tr_read(BB + 4 * k, 8 + q4, 0, t)
for k in range(D): issue(k)
for k in range(16):
    q4, t = seq[k]
    A(f"s_waitcnt lgkmcnt({2*(min(16,k+D)-k)-2})")
    mfma(AC + 4 * q4, XA + 4 * t, BB + 4 * k, None if t == 0 else AC + 4 * q4)
    if k + D < 16: issue(k + D)
A("s_nop 7\ns_nop 1")
for r in range(2): select4([AC + 4 * q + r for q in range(4)])
A("s_nop 0")
for r in range(2): A(f"v_permlane32_swap_b32 v{AC+r}, v{AC+8+r}")
A("s_nop 0")
A(f"ds_write_b32 v12, v{AC}\nds_write_b32 v12, v{AC+1} offset:256")
A("ds_read_b128 v[116:119], v13")
A("s_waitcnt lgkmcnt(0)")
stamp(112, [116, 117, 118, 119], 5)
A("s_mov_b32 exec_hi, 0")
if not OPT.get("nos"): publish(112, 14, "s62")
A("s_mov_b64 exec, -1")
ts()
A("s_barrier")
srd(36, 12, 0x400000)
srd(40, 20, 1792 * 1024)
dma_voff(4, 10, 8, 9)
if OPT.get("cshift"):
    A(f"s_add_u32 s63, s53, {OPT['cshift']}\ns_and_b32 s63, s63, 7\ns_lshl_b32 s63, s63, 7\ns_lshl_b32 s60, s54, 17\ns_add_u32 s60, s60, s63")
else:
  A("s_lshl_b32 s60, s54, 17\ns_lshl_b32 s63, s53, 7\ns_add_u32 s60, s60, s63")
A("s_lshl_b32 s61, s55, 16\ns_add_u32 s61, s61, s63")
A(f"v_mov_b32 v12, {CNT}\nv_mov_b32 v8, 1\nv_mov_b32 v9, 2\nv_mov_b32 v10, 3")
A("s_barrier\ns_barrier\ns_barrier")
lds_spin("L_ispin", 12, O_I, 2)
ts()
A("s_cmp_eq_u32 s49, 0\ns_cbranch_scc1 L_w0_nowd")
for i in range(8):
    A(f"s_mov_b32 m0, {WDI+1024*i}")
    if i: A(f"s_add_u32 s61, s61, {8*1024}")
    else: A("s_nop 0")
    A(f"buffer_load_dwordx4 v4, s[40:43], s61 offen {WF} lds")
LB("L_w0_nowd")
for i in range(16):
    A(f"s_mov_b32 m0, {WOI+1024*i}")
    if i: A(f"s_add_u32 s60, s60, {8*1024}")
    else: A("s_nop 0")
    A(f"buffer_load_dwordx4 v4, s[36:39], s60 offen {WF} lds")
ts()
A("s_barrier\ns_barrier")
A("s_waitcnt vmcnt(16)")
A(f"ds_write_b32 v12, v8 offset:{O_STAGE}")
ts()
A("s_waitcnt vmcnt(8)")
A(f"ds_write_b32 v12, v9 offset:{O_STAGE}")
ts()
A("s_waitcnt vmcnt(0)")
A(f"ds_write_b32 v12, v10 offset:{O_STAGE}")
ts()
A("s_mov_b32 s75, 1")
A("s_branch L_final0")

LB("L_w1_idle")
A("s_waitcnt lgkmcnt(0)")
ts0()
ws_srds()
epoch_load()
A("s_barrier")
fconsts(); consts()
A("s_waitcnt lgkmcnt(0)")
tags()
A("s_barrier\ns_barrier\ns_barrier\ns_barrier")
A("s_barrier")
A("s_branch L_final")
LB("L_w1")
ts_reset()
A("s_cmp_eq_u32 s49, 0\ns_cbranch_scc1 L_w1_idle")
A("s_movk_i32 s60, 3584")
dma_voff(4, "s60", 8, 9)
A("s_mul_i32 s60, s53, 64*3584\ns_lshl_b32 s61, s55, 7\ns_add_u32 s60, s60, s61")
A("s_lshl_b32 s61, s53, 7")
A("s_waitcnt lgkmcnt(0)")
ts0()
srd(36, 16, 512 * 3584)
srd(40, 18, 512 * 3584)
for i in range(8):
    A(f"s_mov_b32 m0, {GI+1024*i}")
    if i: A(f"s_add_u32 s60, s60, {8*3584}")
    else: A("s_nop 0")
    A(f"buffer_load_dwordx4 v4, s[36:39], s60 offen {WF} lds")
    A(f"s_mov_b32 m0, {UI+1024*i}\ns_nop 0")
    A(f"buffer_load_dwordx4 v4, s[40:43], s60 offen {WF} lds")
srd(76, 4, 2048)
for t in range(2):
    A(f"buffer_load_dwordx2 v[{XA+4*t}:{XA+4*t+1}], v6, s[76:79], s61 offen offset:{64*t}")
    A(f"buffer_load_dwordx2 v[{XA+4*t+2}:{XA+4*t+3}], v6, s[76:79], s61 offen offset:{64*t+32}")
A("s_barrier")
ws_srds()
epoch_load()
fconsts(); consts()
for q4 in range(4): tr_addr(8 + q4, q4, 12, 13, GI)
A("v_lshlrev_b32 v5, 4, v0")
A("s_lshl_b32 s62, s55, 13")
A(f"s_add_u32 s62, s62, {hex(HX)}")
A("s_lshl_b32 s63, s53, 10\ns_add_u32 s63, s63, s62")
A("s_add_u32 s61, s62, 4096")
A(f"v_lshlrev_b32 v12, 1, v0\nv_add_u32 v12, {HS}, v12")
A(f"v_mov_b32 v13, {CNT+O_H}\nv_mov_b32 v14, 1")
A("s_waitcnt lgkmcnt(0)")
tags()
A("v_mov_b32 v4, s58")
A("s_waitcnt vmcnt(0)")
ts()
seq = [(mat, q4, t) for mat in range(2) for q4 in range(4) for t in range(2)]
BB1 = 24
AC1 = 88
def issue(k):
    mat, q4, t = seq[k]; tr_read(BB1 + 4 * k, 8 + q4, (UI - GI) if mat else 0, t)
for k in range(D): issue(k)
for k in range(16):
    mat, q4, t = seq[k]
    A(f"s_waitcnt lgkmcnt({2*(min(16,k+D)-k)-2})")
    acc = AC1 + 16 * mat + 4 * q4
    mfma(acc, XA + 4 * t, BB1 + 4 * k, None if t == 0 else acc)
    if k + D < 16: issue(k + D)
A("s_nop 7\ns_nop 1")
for mat in range(2):
    for r in range(2): select4([AC1 + 16 * mat + 4 * q + r for q in range(4)])
A("s_nop 0")
for mat in range(2):
    for r in range(2): A(f"v_permlane32_swap_b32 v{AC1+16*mat+r}, v{AC1+16*mat+8+r}")
A("s_nop 0")
stamp(120, [AC1, AC1 + 1, AC1 + 16, AC1 + 17], 4)
if not OPT.get("nos"): publish(120, 5, "s63")
ts()
A("s_barrier\ns_barrier\ns_barrier")
HG = 16
def hgather(sr=FA):
    for rb in range(8):
        r = HG + 4 * rb
        A(f"buffer_load_dwordx4 v[{r}:{r+3}], v5, {sr}, s{62 - rb//4} offen offset:{(rb%4)*1024} sc1")
if not OPT.get("nog"): hgather()
A("s_barrier")
ts()
LB("L_d3")
A("s_waitcnt vmcnt(0)")
poll_check("L_hchk", [HG + 4 * i for i in range(8)], 96, hgather, tagcheck_dense, 4)
ts()
for c in range(32): A(f"v_and_b32 v{HG+c}, 0xffffff00, v{HG+c}")
for step in (16, 8, 4):
    for base in range(HG, HG + step, 4):
        for o in range(4):
            A(f"v_add_f32 v{base+o}, v{base+o}, v{base+step+o}")
bf16_round_pairs([16, 17, 18, 19], [24, 25])
A("v_mul_f32 v24, s70, v16\nv_mul_f32 v25, s70, v17")
A("v_exp_f32 v24, v24\nv_exp_f32 v25, v25")
A("s_nop 0")
A("v_add_f32 v24, 1.0, v24\nv_add_f32 v25, 1.0, v25")
A("v_rcp_f32 v24, v24\nv_rcp_f32 v25, v25")
A("s_nop 0")
A("v_mul_f32 v16, v16, v24\nv_mul_f32 v17, v17, v25")
bf16_round_pairs([16, 17], [24])
A("v_mul_f32 v16, v16, v18\nv_mul_f32 v17, v17, v19")
A("v_cvt_pk_bf16_f32 v24, v16, v17")
A("ds_write_b16 v12, v24")
A("ds_write_b16_d16_hi v12, v24 offset:128")
A("ds_write_b32 v13, v14")
ts()
hbar()

LB("L_final")
A("s_mov_b32 s75, 0")
LB("L_final0")
if TS: ts_n[0] = 8
tr_addr(8, "s30", 12, 13, WOI)
A(f"v_mov_b32 v12, {CNT}")
A(f"v_and_b32 v9, 1, v2\nv_lshlrev_b32 v10, 7, v9\nv_lshl_add_u32 v10, v3, 3, v10\nv_add_u32 v10, {HS}, v10")
A(f"v_lshlrev_b32 v9, 8, v9\nv_lshl_add_u32 v9, v3, 3, v9\nv_add_u32 v9, {OV}, v9")
A("v_lshrrev_b32 v11, 2, v2\nv_lshlrev_b32 v11, 11, v11\nv_and_b32 v13, 3, v2\nv_lshl_add_u32 v11, v13, 4, v11")
A("s_lshl_b32 s60, s53, 15\ns_lshl_b32 s61, s30, 13\ns_add_u32 s60, s60, s61\ns_lshl_b32 s61, s54, 6\ns_add_u32 s60, s60, s61")
A(f"s_add_u32 s60, s60, {hex(H2)}")
A(f"v_and_b32 v7, 31, v0\nv_mul_u32_u24 v7, {OBS}, v7")
A(f"s_mul_i32 s61, s31, {32*OBS}\ns_lshl_b32 s62, s52, 4\ns_add_u32 s61, s61, s62")
A(f"s_add_u32 s61, s61, {hex(H1+2048)}")
A(f"v_mov_b32 v13, {GT}")
A("ds_read_b128 v[60:63], v13")
A("v_mov_b32 v65, s58\nv_mov_b32 v67, s59")
A("v_mov_b32 v56, 0\nv_mov_b32 v57, 0")
A("s_cmp_eq_u32 s75, 1\ns_cbranch_scc1 L_nobp")
hbar()
LB("L_nobp")
def lgather(sr=FA):
    A(f"buffer_load_dwordx4 v[68:71], v7, {sr}, s61 offen sc1")
memgrp(lgather)
A("s_cmp_eq_u32 s49, 0\ns_cbranch_scc1 L_f_nofb")
lds_spin("L_fs1", 12, O_STAGE, 1)
for t in range(2): tr_read(16 + 4 * t, 8, WDI - WOI, t)
lds_spin("L_fs2", 12, O_H, 1)
for t in range(2):
    A(f"ds_read2_b64 v[{24+4*t}:{27+4*t}], v10 offset0:{8*t} offset1:{8*t+4}")
A("s_waitcnt lgkmcnt(0)")
mfma(56, 24, 16, None)
mfma(56, 28, 20, 56)
A("s_nop 7\ns_nop 1")
A("v_mul_f32 v56, v56, v62\nv_mul_f32 v57, v57, v63")
LB("L_f_nofb")
ts()
lds_spin("L_fs3", 12, O_STAGE, 3)
for t in range(4): tr_read(16 + 4 * t, 8, 0, t)
ts()
A("s_waitcnt vmcnt(0)")
poll_check("L_lchk", [68], 72, lgather)
A("v_mov_b32 v72, v70")
A("v_mov_b32 v73, v70")
for sh in (8, 4, 2, 1):
    A("s_nop 1")
    A(f"v_max_f32_dpp v73, v73, v73 row_ror:{sh} row_mask:0xf bank_mask:0xf")
A("v_sub_f32 v72, v72, v73\nv_mul_f32 v72, s69, v72\nv_exp_f32 v72, v72\ns_nop 0\nv_mul_f32 v72, v72, v68")
rowsum([72])
A("v_rcp_f32 v72, v72")
A("s_nop 1")
A("v_readlane_b32 s62, v72, 0\nv_readlane_b32 s63, v72, 16")
A("s_nop 1")
A("v_mul_f32 v60, s62, v60\nv_mul_f32 v61, s63, v61")
ts()
hbar()
for t in range(4):
    A(f"ds_read2_b64 v[{32+4*t}:{35+4*t}], v9 offset0:{8*t} offset1:{8*t+4}")
for t in range(4):
    A(f"s_waitcnt lgkmcnt({3-t})")
    mfma(48, 32 + 4 * t, 16 + 4 * t, None if t == 0 else 48)
exec_mask(0xffff, 0)
A("s_nop 6")
A("v_fma_f32 v64, v48, v60, v56\nv_fma_f32 v66, v49, v61, v57")
dry_end()
publish(64, 11, "s60", dual=False)
ts()
ts_dump()
LB("L_end")
A("s_endpgm")

L.append(f""".section .rodata,"a"
.p2align 6
.amdhsa_kernel {NAME}
  .amdhsa_next_free_vgpr 128
  .amdhsa_next_free_sgpr 102
  .amdhsa_accum_offset 128
  .amdhsa_group_segment_fixed_size 0
  .amdhsa_kernarg_size 104
  .amdhsa_user_sgpr_count 2
  .amdhsa_user_sgpr_kernarg_segment_ptr 1
  .amdhsa_system_sgpr_workgroup_id_x 1
.end_amdhsa_kernel""")
open(out, "w").write("\n".join(L) + "\n")
```

```python
import sys

OPT = dict(ts=0, kv_fl="nt", w_fl="nt", ka=6, vb=1, spin=400000, pst=0, dry=1, slp=0, pre=0, prew=0, dual=1, bper=8, spre=0)
out = sys.argv[1]
for a in sys.argv[2:]:
    k, v = a.split("=")
    OPT[k] = int(v) if v.lstrip("-").isdigit() else v.replace("+", " ").replace("none", "")
TS = OPT["ts"]

NAME = "gated_mix__sliding_block_cached__swiglu_ffn__decode_kernel"
HEADER = open("gated_mix__sliding_block_cached__swiglu_ffn__decode.s.ref").read().split("; Override launch")[0]

L = []
def A(s):
    for l in s.split("\n"):
        L.append("    " + l.strip())
def LB(s):
    L.append(s + ":")
def C(s):
    L.append("    ; " + s)

VI = 0
WQI = 65536
GI = 81920
UI = 90112
WOI = 98304
WDI = 114688
PS = 122880
QS = 124928
OV = 125952
HS = 126464
QT = 126720
MX = 127232
LS = 127360
GT = 127488
CNT = 127504
O_Q, O_M, O_P, O_STAGE, O_H, O_PUB, O_V, O_I, O_VL = 0, 4, 8, 12, 16, 20, 24, 28, 32
LDS_BYTES = 127744
WB = OPT.get('wb', 496) << 20
OBS = 2176
if OPT.get("compact", 1):
    QX = WB
    HX = WB + 0x20000
    H1 = WB + 0x58000
    MIR_ = 0xE0000
    H2 = WB + 0xE0000
    EPO = H1 + 2112
else:
    QX = WB + 0x10000
    HX = WB + 0x80000
    H1 = WB + 0x100000
    H2 = WB + 0x400000
    MIR_ = 0x800000
    EPO = 0
TSB = 0x800000

SCALE = 0x3DB504F3
LOG2E = 0x3FB8AA3B
NLOG2E = 0xBFB8AA3B
WF = OPT["w_fl"]

def srd(d, p, nbytes):
    A(f"s_mov_b32 s{d}, s{p}\ns_and_b32 s{d+1}, s{p+1}, 0xffff\ns_mov_b32 s{d+2}, {hex(nbytes)}\ns_mov_b32 s{d+3}, 0x20000")

ts_n = [0]
skip_n = [0]
def ts_reset():
    ts_n[0] = 1 if TS else 0
def ts():
    if not TS: return
    k = ts_n[0]; ts_n[0] += 1
    assert k < 16
    if TS == 3: return
    A(f"s_memrealtime s[72:73]\ns_waitcnt lgkmcnt(0)\nv_writelane_b32 v127, s72, {k}")
def ts_dump():
    if not TS: return
    A("s_mov_b64 exec, -1")
    if TS == 2:
        skip_n[0] += 1
        lb = f"L_sk{skip_n[0]}"
        A(f"s_cmp_lg_u32 s2, {OPT.get('dbgwg', 0)}\ns_cbranch_scc1 {lb}")
        A(f"s_cmp_lg_u32 s30, {OPT.get('dbgwave', 11)}\ns_cbranch_scc1 {lb}")
        srd(76, 26, 256)
        A("v_readlane_b32 s60, v127, 0\ns_nop 1\nv_subrev_u32 v127, s60, v127")
        A("v_lshlrev_b32 v3, 2, v0")
        A("s_mov_b32 exec_lo, 0xffff\ns_mov_b32 exec_hi, 0")
        A("buffer_store_dword v127, v3, s[76:79], 0 offen")
        LB(lb)
        return
    A("s_mul_i32 s60, s2, 12\ns_add_u32 s60, s60, s30\ns_lshl_b32 s60, s60, 6")
    A(f"s_add_u32 s60, s60, {hex(TSB)}")
    A("v_lshlrev_b32 v3, 2, v0")
    A("s_mov_b32 exec_lo, 0xffff\ns_mov_b32 exec_hi, 0")
    A("buffer_store_dword v127, v3, s[44:47], s60 offen")

def tags():
    A("s_add_u32 s58, s56, 0x01010101\ns_add_u32 s59, s57, 0x9e3779b9")
    A("s_and_b32 s88, s58, 0xffff\ns_and_b32 s89, s58, 0xffff0000")

def tagcheck(bases, acc, t0, t1):
    first = True
    for b in bases:
        A(f"v_xor_b32 v{t0}, s58, v{b+1}")
        A(f"v_xor_b32 v{t1}, s59, v{b+3}")
        if first:
            A(f"v_or_b32 v{acc}, v{t0}, v{t1}"); first = False
        else:
            A(f"v_or3_b32 v{acc}, v{acc}, v{t0}, v{t1}")

def tagcheck_dense(bases, acc, t0, t1):
    first = True
    for b in bases:
        A(f"v_perm_b32 v{t0}, v{b+1}, v{b}, s92")
        A(f"v_perm_b32 v{t1}, v{b+3}, v{b+2}, s93")
        A(f"v_xor_b32 v{t0}, s88, v{t0}")
        A(f"v_xor_b32 v{t1}, s89, v{t1}")
        if first:
            A(f"v_or_b32 v{acc}, v{t0}, v{t1}"); first = False
        else:
            A(f"v_or3_b32 v{acc}, v{acc}, v{t0}, v{t1}")

def tagcheck_16(bases, acc, t0, t1):
    for i in range(0, len(bases), 2):
        b0 = bases[i]
        A(f"v_perm_b32 v{t0}, v{b0+1}, v{b0}, s92")
        A(f"v_xor_b32 v{t0}, s88, v{t0}")
        if i + 1 < len(bases):
            b1 = bases[i + 1]
            A(f"v_perm_b32 v{t1}, v{b1+1}, v{b1}, s92")
            A(f"v_xor_b32 v{t1}, s88, v{t1}")
            if i == 0: A(f"v_or_b32 v{acc}, v{t0}, v{t1}")
            else: A(f"v_or3_b32 v{acc}, v{acc}, v{t0}, v{t1}")
        else:
            if i == 0: A(f"v_mov_b32 v{acc}, v{t0}")
            else: A(f"v_or_b32 v{acc}, v{acc}, v{t0}")

def stamp(dst, srcs, tagv):
    for i in range(4):
        A(f"v_perm_b32 v{dst+i}, v{srcs[i]}, v{tagv}, s{94+i}")

def consts():
    A("s_mov_b32 s92, 0x0c0c0400\ns_mov_b32 s93, 0x04000c0c")
    A("s_mov_b32 s94, 0x07060500\ns_mov_b32 s95, 0x07060501\ns_mov_b32 s96, 0x07060502\ns_mov_b32 s97, 0x07060503")

def exec_mask(lo, hi):
    A(f"s_and_b32 exec_lo, s90, {hex(lo)}" if lo != 0xffffffff else "s_mov_b32 exec_lo, s90")
    if hi is not None:
        A(f"s_and_b32 exec_hi, s91, {hex(hi)}" if hi else "s_mov_b32 exec_hi, 0")
def exec_all():
    A("s_mov_b64 exec, s[90:91]")
def memgrp(fn):
    skip_n[0] += 1
    lb = f"L_sk{skip_n[0]}"
    A(f"s_cbranch_execz {lb}")
    fn()
    LB(lb)
def hbar():
    memgrp(lambda: A("s_barrier"))
def dry_end():
    A("s_cbranch_execz L_end")

MIR = MIR_
def ws_srds():
    srd(44, 28, 0x20000000)
    A(f"s_add_u32 s80, s28, {hex(MIR)}\ns_addc_u32 s81, s29, 0\ns_and_b32 s81, s81, 0xffff\ns_mov_b32 s82, {hex(0x20000000-MIR)}\ns_mov_b32 s83, 0x20000")
    A("s_mov_b32 s74, 0")

def publish(data, voff, soff, off=0, dual=True):
    o = f" offset:{off}" if off else ""
    if dual and OPT["dual"]:
        A(f"buffer_store_dwordx4 v[{data}:{data+3}], v{voff}, s[44:47], {soff} offen{o}")
    A(f"buffer_store_dwordx4 v[{data}:{data+3}], v{voff}, s[80:83], {soff} offen{o} sc1")

def poll_check(label, bases, tmp, reissue, chk=tagcheck, grp=1, dual=True):
    dual = dual and OPT["dual"]
    LB(label)
    chk(bases, tmp, tmp + 1, tmp + 2)
    if grp >= 4:
        A(f"s_nop 1\nv_or_b32_dpp v{tmp}, v{tmp}, v{tmp} quad_perm:[1,0,3,2] row_mask:0xf bank_mask:0xf")
        A(f"s_nop 1\nv_or_b32_dpp v{tmp}, v{tmp}, v{tmp} quad_perm:[2,3,0,1] row_mask:0xf bank_mask:0xf")
    if grp >= 8:
        A(f"s_nop 1\nv_or_b32_dpp v{tmp}, v{tmp}, v{tmp} row_half_mirror row_mask:0xf bank_mask:0xf")
    A(f"v_cmp_ne_u32 vcc, 0, v{tmp}")
    A("s_nop 1")
    A(f"s_cbranch_vccz {label}_ok")
    if OPT.get("nopoll"): A(f"s_branch {label}_ok")
    A(f"s_sub_u32 s67, s67, 1\ns_cbranch_scc1 {label}_ok")
    A("s_mov_b64 exec, vcc")
    if OPT["slp"]: A(f"s_sleep {OPT['slp']}")
    if dual:
        A(f"s_add_u32 s74, s74, 1\ns_and_b32 s75, s74, {OPT['bper']-1}\ns_cbranch_scc0 {label}_b")
        reissue("s[44:47]")
        A("s_waitcnt vmcnt(0)")
        A(f"s_branch {label}")
        LB(label + "_b")
    reissue("s[80:83]")
    A("s_waitcnt vmcnt(0)")
    A(f"s_branch {label}")
    LB(label + "_ok")
    exec_all()

def xrow_multi(op, vs, ts_, steps=("v_permlane16_swap_b32", "v_permlane32_swap_b32")):
    for sw in steps:
        for v, t in zip(vs, ts_):
            A(f"v_mov_b32 v{t}, v{v}")
        if len(vs) < 2: A("s_nop 1")
        elif len(vs) < 3: A("s_nop 0")
        for v, t in zip(vs, ts_):
            A(f"{sw} v{v}, v{t}")
        A("s_nop 0")
        for v, t in zip(vs, ts_):
            A(f"{op} v{v}, v{v}, v{t}")

def xrow_t4(v):
    A(f"v_permlane16_swap_b32 v{v}, v{v+1}")
    A(f"v_permlane16_swap_b32 v{v+2}, v{v+3}")
    A("s_nop 0")
    A(f"v_add_f32 v{v}, v{v}, v{v+1}")
    A(f"v_add_f32 v{v+2}, v{v+2}, v{v+3}")
    A("s_nop 1")
    A(f"v_permlane32_swap_b32 v{v}, v{v+2}")
    A("s_nop 0")
    A(f"v_add_f32 v{v}, v{v}, v{v+2}")

def transpose8(raw, dst, pairs=(0, 1, 2, 3)):
    for v in pairs:
        for w in range(4):
            a = raw + 4 * (2 * v) + w
            b = raw + 4 * (2 * v + 1) + w
            A(f"v_perm_b32 v{dst + 4*(2*w) + v}, v{b}, v{a}, s64")
            A(f"v_perm_b32 v{dst + 4*(2*w+1) + v}, v{b}, v{a}, s65")

def bf16_round_pairs(vs, tmp):
    n = len(vs) // 2
    for i in range(n):
        A(f"v_cvt_pk_bf16_f32 v{tmp[i]}, v{vs[2*i]}, v{vs[2*i+1]}")
    for i in range(n):
        A(f"v_lshlrev_b32 v{vs[2*i]}, 16, v{tmp[i]}")
        A(f"v_and_b32 v{vs[2*i+1]}, 0xffff0000, v{tmp[i]}")

def lds_spin(label, addr_v, off, val):
    A(f"s_cbranch_execz {label}_x")
    LB(label)
    A(f"ds_read_b32 v15, v{addr_v} offset:{off}")
    A("s_waitcnt lgkmcnt(0)")
    A("v_readfirstlane_b32 s66, v15")
    A("s_sub_u32 s67, s67, 1")
    A(f"s_cbranch_scc1 {label}_x")
    A(f"s_cmp_lt_u32 s66, {val}")
    A(f"s_cbranch_scc1 {label}")
    LB(label + "_x")

def rowsum(vs, shifts=(8, 4, 2, 1)):
    for sh in shifts:
        if len(vs) < 3: A("s_nop 1")
        for v in vs:
            A(f"v_add_f32_dpp v{v}, v{v}, v{v} row_ror:{sh} row_mask:0xf bank_mask:0xf")

def dma_voff(dst, stride_sreg_or_shift, t0, t1):
    A(f"v_bfe_u32 v{t0}, v0, 1, 2\nv_bfe_u32 v{t1}, v0, 4, 2\nv_xor_b32 v{t0}, v{t0}, v{t1}")
    A(f"v_and_b32 v{t1}, 1, v0\nv_lshl_add_u32 v{t0}, v{t0}, 1, v{t1}\nv_lshlrev_b32 v{t0}, 4, v{t0}")
    A(f"v_lshrrev_b32 v{t1}, 3, v0")
    if isinstance(stride_sreg_or_shift, int):
        A(f"v_lshl_add_u32 v{dst}, v{t1}, {stride_sreg_or_shift}, v{t0}")
    else:
        A(f"v_mul_lo_u32 v{t1}, v{t1}, {stride_sreg_or_shift}\nv_add_u32 v{dst}, v{t1}, v{t0}")

def tr_addr(dst, q4, t0, t1, base):
    A(f"v_bfe_u32 v{t0}, v0, 3, 2")
    A(f"v_xor_b32 v{t0}, {q4}, v{t0}")
    A(f"v_lshlrev_b32 v{t0}, 5, v{t0}")
    A(f"v_and_b32 v{t1}, 3, v0\nv_lshl_add_u32 v{t0}, v{t1}, 3, v{t0}")
    A(f"v_lshrrev_b32 v{t1}, 2, v0\nv_lshl_add_u32 v{dst}, v{t1}, 7, v{t0}")
    A(f"v_add_u32 v{dst}, {base}, v{dst}")

def tr_read(dst, addr_v, off, t):
    A(f"ds_read_b64_tr_b16 v[{dst}:{dst+1}], v{addr_v} offset:{off + 4096*t}")
    A(f"ds_read_b64_tr_b16 v[{dst+2}:{dst+3}], v{addr_v} offset:{off + 4096*t + 2048}")

def lds_spin2(label, addr_v, off, val):
    A(f"s_cbranch_execz {label}_x")
    LB(label)
    A(f"ds_read_b64 v[14:15], v{addr_v} offset:{off}")
    A("s_waitcnt lgkmcnt(0)")
    A("v_min_u32 v15, v14, v15")
    A("s_sub_u32 s67, s67, 1")
    A("v_readfirstlane_b32 s66, v15")
    A(f"s_cbranch_scc1 {label}_x")
    A(f"s_cmp_lt_u32 s66, {val}")
    A(f"s_cbranch_scc1 {label}")
    LB(label + "_x")

def bump(off):
    exec_mask(1, 0)
    A(f"ds_add_u32 v12, v13 offset:{off}")
    exec_all()

def mfma(d, a, b, c):
    cs = "0" if c is None else f"v[{c}:{c+3}]"
    A(f"v_mfma_f32_16x16x32_bf16 v[{d}:{d+3}], v[{a}:{a+3}], v[{b}:{b+3}], {cs}")

def select4(xs):
    A(f"v_permlane16_swap_b32 v{xs[0]}, v{xs[1]}")
    A(f"v_permlane16_swap_b32 v{xs[2]}, v{xs[3]}")

NWAVES = 16 if OPT["dry"] else 12
L.append(HEADER.rstrip())
L.append(f"; @launch grid=(256,1,1) block=({NWAVES*64},1,1) lds={LDS_BYTES}")
L.append('.amdgcn_target "amdgcn-amd-amdhsa--gfx950"')
L.append(".text")
L.append(f".globl {NAME}\n.p2align 8\n.type {NAME},@function\n{NAME}:")
A("s_cmp_ge_u32 s2, 256\ns_cbranch_scc1 L_end")
if OPT.get("xorwg"): A(f"s_xor_b32 s2, s2, {OPT['xorwg']}")
A("s_load_dwordx16 s[4:19], s[0:1], 0")
A("s_load_dwordx8 s[20:27], s[0:1], 64")
A("s_load_dwordx2 s[28:29], s[0:1], 96")
if TS or OPT.get("diag"): A("s_memrealtime s[72:73]")
A("v_lshrrev_b32 v1, 6, v0")
A("v_and_b32 v0, 63, v0")
A("s_and_b32 s31, s2, 7")
A("v_readfirstlane_b32 s30, v1")
A("s_lshr_b32 s32, s2, 3")
A("s_lshr_b32 s33, s32, 4")
A("s_and_b32 s34, s32, 15")
A(f"s_mov_b32 s67, {OPT['spin']}")
A("s_mov_b64 s[90:91], -1")
A("v_and_b32 v2, 15, v0")
A("v_lshrrev_b32 v3, 4, v0")
A("s_lshr_b32 s52, s32, 3")
A("s_and_b32 s53, s32, 7")
A("s_lshl_b32 s54, s31, 2\ns_add_u32 s54, s54, s52")
A("s_lshl_b32 s50, s33, 3\ns_add_u32 s50, s50, s31\ns_lshl_b32 s50, s50, 23")
A("s_lshl_b32 s51, s34, 16\ns_add_u32 s50, s50, s51\ns_add_u32 s50, s50, 0x700000")
A(f"s_mul_i32 s51, s32, {OPT.get('rotm', 5)}\ns_add_u32 s51, s51, s31")
A("s_cmp_lt_u32 s30, 4\ns_cbranch_scc1 L_special")
if OPT["dry"]: A("s_cmp_ge_u32 s30, 12\ns_cbranch_scc1 L_helper")

def epoch_load():
    if EPO:
        A(f"s_mov_b32 s56, {hex(EPO)}\ns_load_dwordx2 s[56:57], s[28:29], s56")
    else:
        A("s_load_dwordx2 s[56:57], s[28:29], 0")
def fconsts():
    A(f"s_mov_b32 s68, {hex(SCALE)}\ns_mov_b32 s69, {hex(LOG2E)}\ns_mov_b32 s70, {hex(NLOG2E)}")
def ts0():
    if TS: A("v_writelane_b32 v127, s72, 0")

C("================= K / attention waves =================")
ts_reset()
A("s_sub_u32 s35, s30, 4")
A("s_lshl_b32 s62, s35, 1\ns_add_u32 s62, s62, s51")
A("s_add_u32 s63, s62, 1\ns_and_b32 s62, s62, 15\ns_and_b32 s63, s63, 15")
A("s_lshl_b32 s62, s62, 12\ns_lshl_b32 s63, s63, 12")
A("s_add_u32 s61, s50, s63\ns_add_u32 s60, s50, s62")
A("v_lshlrev_b32 v4, 8, v2\nv_lshl_add_u32 v4, v3, 4, v4")
A("s_waitcnt lgkmcnt(0)")
ts0()
srd(36, 6, 0x8000000)
KR, QR = 16, 80
KVF = OPT["kv_fl"]
def kload(i):
    t, j = i // 4, i % 4
    A(f"buffer_load_dwordx4 v[{KR+4*i}:{KR+4*i+3}], v4, s[36:39], s{60+t} offen offset:{j*64} {KVF}")
FA = "s[44:47]" if OPT["dual"] else "s[80:83]"
def qgather(sr=FA):
    A(f"buffer_load_dwordx4 v[{QR}:{QR+3}], v6, {sr}, s62 offen sc1")
KA, VB = OPT["ka"], OPT["vb"]
A("s_barrier")
for i in range(KA): kload(i)
ws_srds()
epoch_load()
fconsts(); consts()
A("s_lshl_b32 s62, s31, 1\ns_add_u32 s62, s62, s33\ns_lshl_b32 s62, s62, 13")
A("s_lshl_b32 s63, s35, 8\ns_add_u32 s62, s62, s63")
A(f"s_add_u32 s62, s62, {hex(QX)}")
A("v_lshlrev_b32 v6, 11, v3\nv_lshl_add_u32 v6, v2, 4, v6")
A(f"v_mov_b32 v12, {CNT}\nv_mov_b32 v13, 1")
A("v_and_b32 v14, 3, v2")
A(f"s_lshl_b32 s71, s35, 7\ns_add_u32 s71, s71, {QS}")
A("v_lshl_add_u32 v10, v2, 3, s71\nv_lshl_add_u32 v10, v3, 1, v10")
A(f"v_lshlrev_b32 v11, 8, v14\nv_lshl_add_u32 v11, v3, 4, v11\nv_add_u32 v11, {QS}, v11")
A(f"v_lshlrev_b32 v8, 5, v14\nv_add_u32 v8, {MX}, v8")
A("s_lshl_b32 s71, s35, 2\nv_add_u32 v9, s71, v8")
A(f"v_lshl_add_u32 v7, v3, 2, v14\nv_lshlrev_b32 v7, 4, v7\nv_add_u32 v7, {PS}, v7")
A("s_lshl_b32 s71, s35, 8\nv_add_u32 v5, s71, v7")
A("v_bfe_u32 v120, v0, 2, 3\nv_xor_b32 v120, s35, v120\nv_lshlrev_b32 v120, 5, v120")
A("v_and_b32 v121, 3, v0\nv_lshl_add_u32 v120, v121, 3, v120\nv_lshrrev_b32 v121, 2, v0\nv_lshl_add_u32 v120, v121, 8, v120")
A("v_lshlrev_b32 v121, 9, v14\nv_lshl_add_u32 v121, v3, 4, v121")
A(f"s_lshl_b32 s76, s31, 5\ns_add_u32 s49, s76, s32\ns_mul_i32 s49, s49, {OBS}\ns_add_u32 s49, s49, {hex(H1)}")
A("s_lshl_b32 s71, s35, 6\ns_add_u32 s48, s49, s71")
A(f"v_lshrrev_b32 v122, 3, v2\nv_lshl_add_u32 v122, v122, 4, v3\nv_mul_u32_u24 v122, {OBS}, v122")
A("v_and_b32 v123, 7, v2\nv_lshl_add_u32 v122, v123, 4, v122")
A(f"s_mul_i32 s76, s76, {OBS}\ns_add_u32 s76, s76, {hex(H1)}")
A("s_lshl_b32 s71, s52, 9\ns_add_u32 s76, s76, s71\ns_lshl_b32 s71, s35, 7\ns_add_u32 s76, s76, s71")
for i in range(1, 4): A(f"s_add_u32 s{76+i}, s76, {i*4*OBS}")
A(f"s_lshl_b32 s71, s35, 6\ns_add_u32 s71, s71, {OV}")
A("v_lshrrev_b32 v124, 3, v2\nv_lshlrev_b32 v124, 8, v124\nv_lshl_add_u32 v124, v123, 3, v124\nv_lshl_add_u32 v124, v3, 1, v124\nv_add_u32 v124, s71, v124")
A("s_waitcnt lgkmcnt(0)")
tags()
A("s_barrier")
ts()
for i in range(KA, 8): kload(i)
if OPT["prew"]:
    A("s_not_b32 s71, s58")
    A("v_mov_b32 v100, s71\nv_mov_b32 v101, s71\nv_mov_b32 v102, s71\nv_mov_b32 v103, s71")
    A("v_lshrrev_b32 v101, 8, v101")
    A("s_mov_b32 exec_lo, 0x000f000f\ns_mov_b32 exec_hi, 0x000f000f")
    A(f"buffer_store_dwordx4 v[100:103], v121, {FA}, s48 offen" + ("" if OPT["dual"] else " sc1"))
    A("s_cmp_lg_u32 s35, 7\ns_cbranch_scc1 L_pw1")
    A("v_lshlrev_b32 v104, 4, v2")
    A("s_mov_b32 exec_lo, 0xff\ns_mov_b32 exec_hi, 0")
    A(f"buffer_store_dwordx4 v[100:103], v104, {FA}, s49 offen offset:2048" + ("" if OPT["dual"] else " sc1"))
    LB("L_pw1")
    A("s_mov_b64 exec, -1")
A("s_barrier")
A("s_barrier")
ts()
if not OPT.get("nog"): qgather()
A("s_barrier")
VB2 = OPT.get("vb2", 0)
if VB2:
    A("s_barrier")
    A(f"buffer_load_dwordx4 v[{QR+4}:{QR+7}], v6, {FA}, s62 offen sc1")
    A("s_barrier")
ts()
LB("L_d0")
if VB2:
    A("s_waitcnt vmcnt(1)")
    tagcheck_dense([QR], 88, 89, 90)
    A("v_cmp_ne_u32 vcc, 0, v88\ns_nop 1\ns_cbranch_vccz L_qchk_ok")
    A("s_waitcnt vmcnt(0)")
    for c in range(4): A(f"v_mov_b32 v{QR+c}, v{QR+4+c}")
    if TS: A("s_mov_b32 s74, 0x100")
else:
    A("s_waitcnt vmcnt(0)")
poll_check("L_qchk", [QR], 88, qgather, tagcheck_dense, 4)
if TS: A("v_writelane_b32 v127, s74, 13")
ts()
for c in range(4): A(f"v_and_b32 v{QR+c}, 0xffffff00, v{QR+c}")
A("s_nop 0")
xrow_t4(QR)
A(f"v_cvt_pk_bf16_f32 v{QR}, v{QR}, v{QR}")
A(f"ds_write_b16 v10, v{QR}")
bump(O_Q)
lds_spin("L_qspin", 12, O_Q, 8)
for j in range(4):
    A(f"ds_read_b128 v[{QR+4*j}:{QR+4*j+3}], v11 offset:{64*j}")
for j in range(4):
    A(f"s_waitcnt lgkmcnt({3-j})")
    for t in range(2):
        k = KR + 4 * (4 * t + j)
        mfma(96 + 4 * t, k, QR + 4 * j, None if j == 0 else 96 + 4 * t)
A("s_nop 7\ns_nop 1")
S = list(range(96, 104))
bf16_round_pairs(S, [112, 113, 114, 115])
for v in S: A(f"v_mul_f32 v{v}, s68, v{v}")
bf16_round_pairs(S, [112, 113, 114, 115])
A("v_max3_f32 v116, v96, v97, v98\nv_max3_f32 v116, v116, v99, v100\nv_max3_f32 v116, v116, v101, v102\nv_max_f32 v116, v116, v103")
xrow_multi("v_max_f32", [116], [117])
exec_mask(0xf, 0)
A("ds_write_b32 v9, v116")
bump(O_M)
lds_spin("L_mspin", 12, O_M, 8)
A("ds_read_b128 v[104:107], v8\nds_read_b128 v[108:111], v8 offset:16")
A("s_waitcnt lgkmcnt(0)")
A("v_max3_f32 v116, v104, v105, v106\nv_max3_f32 v116, v116, v107, v108\nv_max3_f32 v116, v116, v109, v110\nv_max_f32 v116, v116, v111")
A("v_mul_f32 v117, s70, v116")
for v in S: A(f"v_fma_f32 v{v}, v{v}, s69, v117")
for v in S: A(f"v_exp_f32 v{v}, v{v}")
A("v_or_b32 v125, s88, v116")
for i in range(4): A(f"v_cvt_pk_bf16_f32 v{112+i}, v{96+2*i}, v{97+2*i}")
A("v_add_f32 v117, v96, v97\nv_add_f32 v118, v98, v99\nv_add_f32 v119, v100, v101\nv_add_f32 v104, v102, v103")
A("v_add_f32 v117, v117, v118\nv_add_f32 v119, v119, v104\nv_add_f32 v117, v117, v119")
exec_mask(0x000f000f, 0x000f000f)
A("ds_write_b128 v5, v[112:115]")
exec_all()
xrow_multi("v_add_f32", [117], [118])
exec_mask(0xf, 0)
A("ds_write_b32 v9, v117 offset:128")
bump(O_P)
lds_spin("L_pspin1", 12, O_P, 8)
PR, VO = 16, 48
for k in range(8):
    A(f"ds_read_b128 v[{PR+4*k}:{PR+4*k+3}], v7 offset:{256*k}")
A("s_cmp_lg_u32 s35, 7\ns_cbranch_scc1 L_nol")
A("ds_read_b128 v[104:107], v8 offset:128\nds_read_b128 v[108:111], v8 offset:144")
A("v_lshlrev_b32 v10, 4, v2")
A("v_mov_b32 v97, s58\nv_mov_b32 v98, v116\nv_mov_b32 v99, s59")
A("s_waitcnt lgkmcnt(0)")
A("v_add_f32 v104, v104, v105\nv_add_f32 v106, v106, v107\nv_add_f32 v108, v108, v109\nv_add_f32 v110, v110, v111")
A("v_add_f32 v104, v104, v106\nv_add_f32 v108, v108, v110\nv_add_f32 v96, v104, v108")
exec_mask(0xf, 0)
memgrp(lambda: publish(96, 10, "s49", 2048))
exec_all()
LB("L_nol")
ts()
dry_end()
LB("L_d1")
def vstep(ks, first):
    for k in ks:
        A(f"ds_read_b64_tr_b16 v[{VO+4*k}:{VO+4*k+1}], v120 offset:{VI + 8192*k}")
        A(f"ds_read_b64_tr_b16 v[{VO+4*k+2}:{VO+4*k+3}], v120 offset:{VI + 8192*k + 4096}")
    for i, k in enumerate(ks):
        A(f"s_waitcnt lgkmcnt({2*(len(ks)-1-i)})")
        mfma(80, VO + 4 * k, PR + 4 * k, None if (first and i == 0) else 80)
lds_spin2("L_v1", 12, O_VL, 4)
vstep([0, 1, 2, 3], True)
lds_spin2("L_v2", 12, O_VL, 6)
vstep([4, 5], False)
lds_spin2("L_v3", 12, O_VL, 7)
vstep([6], False)
hbar()
ts()
vstep([7], False)
exec_mask(0x000f000f, 0x000f000f)
A("s_nop 5")
stamp(84, [80, 81, 82, 83], 125)
memgrp(lambda: publish(84, 121, "s48"))
exec_all()
hbar()
ts()
A("s_cmp_ge_u32 s35, 4\ns_cbranch_scc1 L_kv_h2")
GR = 80
def h1gather(sr=FA):
    for i in range(4):
        A(f"buffer_load_dwordx4 v[{GR+4*i}:{GR+4*i+3}], v122, {sr}, s{76+i} offen sc1")
ts()
memgrp(h1gather)
A("s_waitcnt vmcnt(0)")
ts()
poll_check("L_h1chk", [GR + 4 * i for i in range(4)], 116, h1gather, tagcheck_16, 8)
ts()
for i in range(4): A(f"v_perm_b32 v{100+i}, v{GR+4*i+3}, v{GR+4*i+2}, s93")
A("v_max3_f32 v116, v100, v101, v102\nv_max_f32 v116, v116, v103")
xrow_multi("v_max_f32", [116], [117])
A("v_mul_f32 v117, s70, v116")
for i in range(4): A(f"v_fma_f32 v{100+i}, v{100+i}, s69, v117")
for i in range(4): A(f"v_exp_f32 v{100+i}, v{100+i}")
for c in range(16): A(f"v_and_b32 v{GR+c}, 0xffffff00, v{GR+c}")
for c in range(4): A(f"v_mul_f32 v{104+c}, v100, v{GR+c}")
for i in range(1, 4):
    for c in range(4): A(f"v_fmac_f32 v{104+c}, v{100+i}, v{GR+4*i+c}")
A("s_nop 0")
xrow_t4(104)
A("v_cvt_pk_bf16_f32 v104, v104, v104")
A("ds_write_b16 v124, v104")
A("s_waitcnt lgkmcnt(0)")
hbar()
ts()
dry_end()
A("s_branch L_kv_done")
LB("L_kv_h2")
A("s_cmp_lg_u32 s35, 7\ns_cbranch_scc1 L_kv_bo")
A("s_cmp_ge_u32 s2, 128\ns_cbranch_scc1 L_kv_bo")
LB("L_d2")
if TS: ts_n[0] = 12
srd(48, 24, 2048)
A("s_lshl_b32 s60, s2, 11")
A(f"s_add_u32 s60, s60, {hex(H2)}")
A("v_lshlrev_b32 v5, 4, v0")
def h2gather(sr="s[80:83]"):
    A(f"buffer_load_dwordx4 v[16:19], v5, {sr}, s60 offen sc1")
    A(f"buffer_load_dwordx4 v[20:23], v5, {sr}, s60 offen offset:1024 sc1")
A("v_mov_b32 v8, 0")
A("s_lshl_b32 s62, s2, 3")
hbar()
memgrp(h2gather)
A("s_waitcnt vmcnt(0)")
poll_check("L_h2chk", [16, 20], 24, h2gather, dual=False)
ts()
A("v_add_f32 v16, v16, v20\nv_add_f32 v18, v18, v22")
rowsum([16, 18], shifts=(8, 4))
xrow_multi("v_add_f32", [16, 18], [17, 19])
A("s_nop 0")
for i, qp in enumerate(("[1,1,1,1]", "[2,2,2,2]", "[3,3,3,3]")):
    A(f"v_mov_b32_dpp v{24+i}, v16 quad_perm:{qp} row_mask:0xf bank_mask:0xf")
    A(f"v_mov_b32_dpp v{28+i}, v18 quad_perm:{qp} row_mask:0xf bank_mask:0xf")
A("v_cvt_pk_bf16_f32 v32, v16, v24\nv_cvt_pk_bf16_f32 v33, v25, v26")
A("v_cvt_pk_bf16_f32 v34, v18, v28\nv_cvt_pk_bf16_f32 v35, v29, v30")
exec_mask(1, 0)
if OPT["dry"]: A("s_cbranch_execz L_spre")
A("buffer_store_dwordx2 v[32:33], v8, s[48:51], s62 offen")
A("buffer_store_dwordx2 v[34:35], v8, s[48:51], s62 offen offset:1024")
if OPT.get("diag"):
    A("s_memrealtime s[98:99]\ns_waitcnt lgkmcnt(0)")
    A(f"s_sub_u32 s73, s98, s72\ns_mul_i32 s73, s73, {OPT['diag']}\ns_add_u32 s73, s73, s98")
    LB("L_diag")
    A("s_memrealtime s[98:99]\ns_waitcnt lgkmcnt(0)\ns_sub_u32 s99, s98, s73\ns_cmp_lt_i32 s99, 0\ns_cbranch_scc1 L_diag")
A("s_cmp_lg_u32 s2, 0\ns_cbranch_scc1 L_kv_done")
A("v_mov_b32 v36, s58\nv_mov_b32 v37, s59")
A(f"s_mov_b32 s62, {hex(EPO)}")
A("buffer_store_dwordx2 v[36:37], v8, s[44:47], s62 offen sc1")
A("s_branch L_kv_done")
LB("L_kv_bo")
A("s_barrier")
LB("L_kv_done")
if TS:
    A("s_memrealtime s[72:73]\ns_waitcnt lgkmcnt(0)\nv_writelane_b32 v127, s72, 15")
ts_dump()
A("s_endpgm")

if OPT["dry"]:
    LB("L_helper")
    C("================= dry-run helpers: warm the instruction cache =================")
    if OPT.get("cpf"):
        A("s_getpc_b64 s[60:61]")
        LB("L_pc")
        A(f"s_sub_u32 s60, s60, L_pc-{NAME}\ns_subb_u32 s61, s61, 0")
        A(f"s_sub_u32 s62, s30, 12\ns_mul_i32 s62, s62, {OPT['cpf']*128}\ns_add_u32 s60, s60, s62\ns_addc_u32 s61, s61, 0")
        for i in range(OPT["cpf"]): A(f"s_load_dword s{36+(i%8)}, s[60:61], {128*i}")
    A("s_barrier")
    for v in list(range(4, 16)) + [120, 121, 122, 123, 124]: A(f"v_mov_b32 v{v}, 0")
    A("s_waitcnt lgkmcnt(0)")
    ws_srds()
    A("s_mov_b64 s[90:91], 0\ns_mov_b64 exec, 0")
    A("s_mov_b32 s35, 7\ns_mov_b32 s48, 0\ns_mov_b32 s49, 1\ns_mov_b32 s60, 0\ns_mov_b32 s61, 0\ns_mov_b32 s62, 0\ns_mov_b32 s63, 0")
    A("s_cmp_eq_u32 s30, 12\ns_cbranch_scc1 L_d0")
    A("s_cmp_eq_u32 s30, 14\ns_cbranch_scc1 L_d2")
    A("s_cmp_eq_u32 s30, 15\ns_cbranch_scc1 L_d3")
    A("s_mov_b32 s35, 0")
    A("s_branch L_d1")
    LB("L_spre")
    if OPT["spre"]:
        A(f"s_lshl_b32 s60, s31, 5\ns_add_u32 s60, s60, s32\ns_mul_i32 s60, s60, {OBS}\ns_add_u32 s60, s60, {hex(H1)}")
        A("s_add_u32 s62, s28, s60\ns_addc_u32 s63, s29, 0")
        if OPT["spre"] & 1:
            for i in range(17): A(f"s_load_dword s{4+(i%8)}, s[62:63], {128*i}")
        A(f"s_lshl_b32 s60, s2, 11\ns_add_u32 s60, s60, {hex(H2+MIR)}")
        A("s_add_u32 s62, s28, s60\ns_addc_u32 s63, s29, 0")
        if OPT["spre"] & 2:
            A("s_cmp_ge_u32 s2, 128\ns_cbranch_scc1 L_end")
            for i in range(16): A(f"s_load_dword s{4+(i%8)}, s[62:63], {128*i}")
    A("s_endpgm")

LB("L_special")
C("================= special waves =================")
ts_reset()
A("s_and_b32 s49, s54, 7\ns_cmp_lg_u32 s49, 7\ns_cselect_b32 s49, 1, 0")
A("s_lshr_b32 s55, s54, 3\ns_sub_u32 s55, s54, s55")
A("v_and_b32 v6, 1, v2\nv_lshlrev_b32 v6, 10, v6\nv_lshl_add_u32 v6, v3, 3, v6")
A("s_cmp_eq_u32 s30, 0\ns_cbranch_scc1 L_w0")
A("s_cmp_eq_u32 s30, 1\ns_cbranch_scc1 L_w1")
A("s_cmp_eq_u32 s30, 3\ns_cbranch_scc1 L_w3")
A("s_waitcnt lgkmcnt(0)")
ts0()
ws_srds()
epoch_load()
if OPT.get("tlbw", 0):
    A("v_mov_b32 v4, 0")
    A("s_mov_b32 exec_lo, 1\ns_mov_b32 exec_hi, 0")
    srd(36, 24, 2048)
    A("buffer_load_dword v16, v4, s[36:39], 0 offen")
    srd(40, 8, 0x8000000)
    A(f"buffer_load_dword v17, v4, s[40:43], s50 offen {KVF}")
    srd(76, 12, 0x400000)
    A("s_lshl_b32 s60, s54, 17")
    A(f"buffer_load_dword v18, v4, s[76:79], s60 offen {WF}")
    srd(84, 20, 1792 * 1024)
    A("s_lshl_b32 s60, s55, 16")
    A(f"buffer_load_dword v19, v4, s[84:87], s60 offen {WF}")
    A("s_mov_b64 exec, -1")
A("s_barrier")
fconsts(); consts()
A("s_waitcnt lgkmcnt(0)")
tags()
A("s_branch L_vload")

LB("L_w3")
A("v_lshlrev_b32 v5, 4, v0")
A(f"v_mov_b32 v4, {CNT}\nv_mov_b32 v8, 0\nv_mov_b32 v9, 0\nv_mov_b32 v10, 0\nv_mov_b32 v11, 0")
A("ds_write_b128 v4, v[8:11]")
A("ds_write_b128 v4, v[8:11] offset:16")
A("ds_write_b128 v4, v[8:11] offset:32")
A("s_waitcnt lgkmcnt(0)")
ts0()
srd(36, 4, 2048)
srd(40, 22, 1024)
A("buffer_load_dwordx4 v[16:19], v5, s[36:39], 0 offen")
A("buffer_load_dwordx4 v[20:23], v5, s[36:39], 0 offen offset:1024")
A("buffer_load_dwordx4 v[24:27], v5, s[40:43], 0 offen")
A("s_barrier")
ws_srds()
epoch_load()
fconsts(); consts()
A("s_waitcnt vmcnt(0)")
for src, dst in ((24, 32), (16, 40), (20, 48)):
    for w in range(4):
        A(f"v_lshlrev_b32 v{dst+2*w}, 16, v{src+w}\nv_and_b32 v{dst+2*w+1}, 0xffff0000, v{src+w}")
for b in range(2):
    for e in range(8):
        A(f"v_mul_f32 v{40+8*b+e}, v{40+8*b+e}, v{32+e}")
bf16_round_pairs(list(range(40, 56)), list(range(16, 24)))
for b in range(2):
    o = 40 + 8 * b
    A(f"v_add_f32 v{o}, v{o}, v{o+1}\nv_add_f32 v{o+2}, v{o+2}, v{o+3}\nv_add_f32 v{o+4}, v{o+4}, v{o+5}\nv_add_f32 v{o+6}, v{o+6}, v{o+7}")
    A(f"v_add_f32 v{o}, v{o}, v{o+2}\nv_add_f32 v{o+4}, v{o+4}, v{o+6}\nv_add_f32 v{o}, v{o}, v{o+4}")
rowsum([40, 48])
xrow_multi("v_add_f32", [40, 48], [41, 49])
A("v_mov_b32 v41, v48")
bf16_round_pairs([40, 41], [16])
A("v_mul_f32 v40, s70, v40\nv_mul_f32 v41, s70, v41")
A("v_exp_f32 v40, v40\nv_exp_f32 v41, v41")
A("s_nop 0")
A("v_add_f32 v40, 1.0, v40\nv_add_f32 v41, 1.0, v41")
A("v_rcp_f32 v40, v40\nv_rcp_f32 v41, v41")
A("s_nop 0")
bf16_round_pairs([40, 41], [16])
A("v_sub_f32 v42, 1.0, v40\nv_sub_f32 v43, 1.0, v41")
bf16_round_pairs([42, 43], [16])
A(f"v_mov_b32 v4, {GT}")
A("ds_write_b128 v4, v[40:43]")
A("s_waitcnt lgkmcnt(0)")
tags()

LB("L_vload")
srd(40, 8, 0x8000000)
A("s_sub_u32 s35, s30, 2")
A("s_lshl_b32 s60, s35, 2\nv_add_u32 v4, s60, v3\nv_lshrrev_b32 v5, 1, v2\nv_xor_b32 v4, v4, v5")
A("v_and_b32 v5, 1, v2\nv_lshl_add_u32 v4, v4, 1, v5\nv_lshlrev_b32 v4, 4, v4\nv_lshl_add_u32 v4, v3, 8, v4")
A("s_lshl_b32 s61, s35, 10\ns_add_u32 s62, s50, s61")
A("s_and_b32 s60, s51, 15\ns_lshl_b32 s60, s60, 12")
A(f"v_mov_b32 v12, {CNT}\nv_mov_b32 v13, 1")
A(f"s_lshl_b32 s63, s35, 2\ns_add_u32 s63, s63, {CNT+O_VL}\nv_mov_b32 v11, s63")
A("v_mov_b32 v8, 4\nv_mov_b32 v9, 6\nv_mov_b32 v10, 8\nv_mov_b32 v7, 7")
def vblk(i):
    A(f"s_add_u32 s63, s62, s60\ns_add_u32 m0, s61, {VI + 4096*i}")
    A("s_add_u32 s60, s60, 4096\ns_and_b32 s60, s60, 0xffff")
    A(f"buffer_load_dwordx4 v4, s[40:43], s63 offen {KVF} lds")
    A(f"buffer_load_dwordx4 v4, s[40:43], s63 offen offset:2048 {KVF} lds")
if OPT.get("vearly"):
    A("s_barrier")
    for i in range(2 * VB): vblk(i)
    A("s_barrier\ns_barrier\ns_barrier")
else:
    A("s_barrier\ns_barrier")
    for i in range(2 * VB): vblk(i)
    A("s_barrier\ns_barrier")
IB = OPT.get("ib", 16)
for i in range(2 * VB, 17):
    if VB2 and i == 2 * VB + VB2: A("s_barrier\ns_barrier")
    if i == max(IB, 2 * VB):
        A("s_mov_b32 exec_lo, 1\ns_mov_b32 exec_hi, 0")
        A(f"ds_add_u32 v12, v13 offset:{O_I}")
        A("s_mov_b64 exec, -1")
    if i < 16: vblk(i)
A("s_mov_b32 exec_lo, 1\ns_mov_b32 exec_hi, 0")
ts()
A("s_waitcnt vmcnt(16)")
A("ds_write_b32 v11, v8")
ts()
A("s_waitcnt vmcnt(8)")
A("ds_write_b32 v11, v9")
A("s_waitcnt vmcnt(4)")
A("ds_write_b32 v11, v7")
A("s_mov_b64 exec, -1")
A("s_waitcnt vmcnt(0)")
A("s_barrier")
ts()
A("s_branch L_final")

LB("L_w0")
ts_reset()
dma_voff(4, 13, 8, 9)
A("s_lshl_b32 s60, s52, 20\ns_lshl_b32 s61, s31, 10\ns_add_u32 s60, s60, s61\ns_lshl_b32 s61, s53, 7\ns_add_u32 s60, s60, s61")
A("s_lshl_b32 s61, s52, 8")
A("s_waitcnt lgkmcnt(0)")
ts0()
srd(40, 10, 0x400000)
for i in range(16):
    A(f"s_mov_b32 m0, {WQI+1024*i}")
    if i: A(f"s_add_u32 s60, s60, {8*8192}")
    else: A("s_nop 0")
    A(f"buffer_load_dwordx4 v4, s[40:43], s60 offen {WF} lds")
srd(36, 4, 2048)
XA, BB, AC = 16, 32, 96
for t in range(4):
    A(f"buffer_load_dwordx2 v[{XA+4*t}:{XA+4*t+1}], v6, s[36:39], s61 offen offset:{64*t}")
    A(f"buffer_load_dwordx2 v[{XA+4*t+2}:{XA+4*t+3}], v6, s[36:39], s61 offen offset:{64*t+32}")
A("s_barrier")
ws_srds()
epoch_load()
fconsts(); consts()
for q4 in range(4): tr_addr(8 + q4, q4, 12, 13, WQI)
A(f"v_lshlrev_b32 v12, 2, v0\nv_add_u32 v12, {QT}, v12\nv_and_b32 v13, 31, v0\nv_lshlrev_b32 v13, 4, v13\nv_add_u32 v13, {QT}, v13")
A("v_and_b32 v14, 1, v3\nv_lshlrev_b32 v14, 13, v14\nv_lshl_add_u32 v14, v2, 4, v14")
A("s_lshl_b32 s62, s31, 14\ns_lshl_b32 s63, s52, 11\ns_add_u32 s62, s62, s63\ns_lshl_b32 s63, s53, 8\ns_add_u32 s62, s62, s63")
A(f"s_add_u32 s62, s62, {hex(QX)}")
A("s_waitcnt lgkmcnt(0)")
tags()
A("v_mov_b32 v5, s58")
A("s_waitcnt vmcnt(0)")
ts()
seq = [(q4, t) for q4 in range(4) for t in range(4)]
D = 6
def issue(k):
    q4, t = seq[k]; tr_read(BB + 4 * k, 8 + q4, 0, t)
for k in range(D): issue(k)
for k in range(16):
    q4, t = seq[k]
    A(f"s_waitcnt lgkmcnt({2*(min(16,k+D)-k)-2})")
    mfma(AC + 4 * q4, XA + 4 * t, BB + 4 * k, None if t == 0 else AC + 4 * q4)
    if k + D < 16: issue(k + D)
A("s_nop 7\ns_nop 1")
for r in range(2): select4([AC + 4 * q + r for q in range(4)])
A("s_nop 0")
for r in range(2): A(f"v_permlane32_swap_b32 v{AC+r}, v{AC+8+r}")
A("s_nop 0")
A(f"ds_write_b32 v12, v{AC}\nds_write_b32 v12, v{AC+1} offset:256")
A("ds_read_b128 v[116:119], v13")
A("s_waitcnt lgkmcnt(0)")
stamp(112, [116, 117, 118, 119], 5)
A("s_mov_b32 exec_hi, 0")
if not OPT.get("nos"): publish(112, 14, "s62")
A("s_mov_b64 exec, -1")
ts()
A("s_barrier")
srd(36, 12, 0x400000)
srd(40, 20, 1792 * 1024)
dma_voff(4, 10, 8, 9)
if OPT.get("cshift"):
    A(f"s_add_u32 s63, s53, {OPT['cshift']}\ns_and_b32 s63, s63, 7\ns_lshl_b32 s63, s63, 7\ns_lshl_b32 s60, s54, 17\ns_add_u32 s60, s60, s63")
else:
  A("s_lshl_b32 s60, s54, 17\ns_lshl_b32 s63, s53, 7\ns_add_u32 s60, s60, s63")
A("s_lshl_b32 s61, s55, 16\ns_add_u32 s61, s61, s63")
A(f"v_mov_b32 v12, {CNT}\nv_mov_b32 v8, 1\nv_mov_b32 v9, 2\nv_mov_b32 v10, 3")
A("s_barrier\ns_barrier\ns_barrier")
if VB2: A("s_barrier\ns_barrier")
lds_spin("L_ispin", 12, O_I, 2)
ts()
A("s_cmp_eq_u32 s49, 0\ns_cbranch_scc1 L_w0_nowd")
for i in range(8):
    A(f"s_mov_b32 m0, {WDI+1024*i}")
    if i: A(f"s_add_u32 s61, s61, {8*1024}")
    else: A("s_nop 0")
    A(f"buffer_load_dwordx4 v4, s[40:43], s61 offen {WF} lds")
LB("L_w0_nowd")
for i in range(16):
    A(f"s_mov_b32 m0, {WOI+1024*i}")
    if i: A(f"s_add_u32 s60, s60, {8*1024}")
    else: A("s_nop 0")
    A(f"buffer_load_dwordx4 v4, s[36:39], s60 offen {WF} lds")
ts()
A("s_barrier\ns_barrier")
A("s_waitcnt vmcnt(16)")
A(f"ds_write_b32 v12, v8 offset:{O_STAGE}")
ts()
A("s_waitcnt vmcnt(8)")
A(f"ds_write_b32 v12, v9 offset:{O_STAGE}")
ts()
A("s_waitcnt vmcnt(0)")
A(f"ds_write_b32 v12, v10 offset:{O_STAGE}")
ts()
A("s_mov_b32 s75, 1")
A("s_branch L_final0")

LB("L_w1_idle")
A("s_waitcnt lgkmcnt(0)")
ts0()
ws_srds()
epoch_load()
A("s_barrier")
fconsts(); consts()
A("s_waitcnt lgkmcnt(0)")
tags()
A("s_barrier\ns_barrier\ns_barrier\ns_barrier")
if VB2: A("s_barrier\ns_barrier")
A("s_barrier")
A("s_branch L_final")
LB("L_w1")
ts_reset()
A("s_cmp_eq_u32 s49, 0\ns_cbranch_scc1 L_w1_idle")
A("s_movk_i32 s60, 3584")
dma_voff(4, "s60", 8, 9)
A("s_mul_i32 s60, s53, 64*3584\ns_lshl_b32 s61, s55, 7\ns_add_u32 s60, s60, s61")
A("s_lshl_b32 s61, s53, 7")
A("s_waitcnt lgkmcnt(0)")
ts0()
srd(36, 16, 512 * 3584)
srd(40, 18, 512 * 3584)
for i in range(8):
    A(f"s_mov_b32 m0, {GI+1024*i}")
    if i: A(f"s_add_u32 s60, s60, {8*3584}")
    else: A("s_nop 0")
    A(f"buffer_load_dwordx4 v4, s[36:39], s60 offen {WF} lds")
    A(f"s_mov_b32 m0, {UI+1024*i}\ns_nop 0")
    A(f"buffer_load_dwordx4 v4, s[40:43], s60 offen {WF} lds")
srd(76, 4, 2048)
for t in range(2):
    A(f"buffer_load_dwordx2 v[{XA+4*t}:{XA+4*t+1}], v6, s[76:79], s61 offen offset:{64*t}")
    A(f"buffer_load_dwordx2 v[{XA+4*t+2}:{XA+4*t+3}], v6, s[76:79], s61 offen offset:{64*t+32}")
A("s_barrier")
ws_srds()
epoch_load()
fconsts(); consts()
for q4 in range(4): tr_addr(8 + q4, q4, 12, 13, GI)
A("v_lshlrev_b32 v5, 4, v0")
A("s_lshl_b32 s62, s55, 13")
A(f"s_add_u32 s62, s62, {hex(HX)}")
A("s_lshl_b32 s63, s53, 10\ns_add_u32 s63, s63, s62")
A("s_add_u32 s61, s62, 4096")
A(f"v_lshlrev_b32 v12, 1, v0\nv_add_u32 v12, {HS}, v12")
A(f"v_mov_b32 v13, {CNT+O_H}\nv_mov_b32 v14, 1")
A("s_waitcnt lgkmcnt(0)")
tags()
A("v_mov_b32 v4, s58")
A("s_waitcnt vmcnt(0)")
ts()
seq = [(mat, q4, t) for mat in range(2) for q4 in range(4) for t in range(2)]
BB1 = 24
AC1 = 88
def issue(k):
    mat, q4, t = seq[k]; tr_read(BB1 + 4 * k, 8 + q4, (UI - GI) if mat else 0, t)
for k in range(D): issue(k)
for k in range(16):
    mat, q4, t = seq[k]
    A(f"s_waitcnt lgkmcnt({2*(min(16,k+D)-k)-2})")
    acc = AC1 + 16 * mat + 4 * q4
    mfma(acc, XA + 4 * t, BB1 + 4 * k, None if t == 0 else acc)
    if k + D < 16: issue(k + D)
A("s_nop 7\ns_nop 1")
for mat in range(2):
    for r in range(2): select4([AC1 + 16 * mat + 4 * q + r for q in range(4)])
A("s_nop 0")
for mat in range(2):
    for r in range(2): A(f"v_permlane32_swap_b32 v{AC1+16*mat+r}, v{AC1+16*mat+8+r}")
A("s_nop 0")
stamp(120, [AC1, AC1 + 1, AC1 + 16, AC1 + 17], 4)
if not OPT.get("nos"): publish(120, 5, "s63")
ts()
A("s_barrier\ns_barrier\ns_barrier")
HG = 16
def hgather(sr=FA):
    for rb in range(8):
        r = HG + 4 * rb
        A(f"buffer_load_dwordx4 v[{r}:{r+3}], v5, {sr}, s{62 - rb//4} offen offset:{(rb%4)*1024} sc1")
if VB2: A("s_barrier\ns_barrier")
if not OPT.get("nog"): hgather()
A("s_barrier")
ts()
LB("L_d3")
A("s_waitcnt vmcnt(0)")
poll_check("L_hchk", [HG + 4 * i for i in range(8)], 96, hgather, tagcheck_dense, 4)
ts()
for c in range(32): A(f"v_and_b32 v{HG+c}, 0xffffff00, v{HG+c}")
for step in (16, 8, 4):
    for base in range(HG, HG + step, 4):
        for o in range(4):
            A(f"v_add_f32 v{base+o}, v{base+o}, v{base+step+o}")
bf16_round_pairs([16, 17, 18, 19], [24, 25])
A("v_mul_f32 v24, s70, v16\nv_mul_f32 v25, s70, v17")
A("v_exp_f32 v24, v24\nv_exp_f32 v25, v25")
A("s_nop 0")
A("v_add_f32 v24, 1.0, v24\nv_add_f32 v25, 1.0, v25")
A("v_rcp_f32 v24, v24\nv_rcp_f32 v25, v25")
A("s_nop 0")
A("v_mul_f32 v16, v16, v24\nv_mul_f32 v17, v17, v25")
bf16_round_pairs([16, 17], [24])
A("v_mul_f32 v16, v16, v18\nv_mul_f32 v17, v17, v19")
A("v_cvt_pk_bf16_f32 v24, v16, v17")
A("ds_write_b16 v12, v24")
A("ds_write_b16_d16_hi v12, v24 offset:128")
A("ds_write_b32 v13, v14")
ts()
hbar()

LB("L_final")
A("s_mov_b32 s75, 0")
LB("L_final0")
if TS: ts_n[0] = 8
tr_addr(8, "s30", 12, 13, WOI)
A(f"v_mov_b32 v12, {CNT}")
A(f"v_and_b32 v9, 1, v2\nv_lshlrev_b32 v10, 7, v9\nv_lshl_add_u32 v10, v3, 3, v10\nv_add_u32 v10, {HS}, v10")
A(f"v_lshlrev_b32 v9, 8, v9\nv_lshl_add_u32 v9, v3, 3, v9\nv_add_u32 v9, {OV}, v9")
A("v_lshrrev_b32 v11, 2, v2\nv_lshlrev_b32 v11, 11, v11\nv_and_b32 v13, 3, v2\nv_lshl_add_u32 v11, v13, 4, v11")
A("s_lshl_b32 s60, s53, 15\ns_lshl_b32 s61, s30, 13\ns_add_u32 s60, s60, s61\ns_lshl_b32 s61, s54, 6\ns_add_u32 s60, s60, s61")
A(f"s_add_u32 s60, s60, {hex(H2)}")
A(f"v_and_b32 v7, 31, v0\nv_mul_u32_u24 v7, {OBS}, v7")
A(f"s_mul_i32 s61, s31, {32*OBS}\ns_lshl_b32 s62, s52, 4\ns_add_u32 s61, s61, s62")
A(f"s_add_u32 s61, s61, {hex(H1+2048)}")
A(f"v_mov_b32 v13, {GT}")
A("ds_read_b128 v[60:63], v13")
A("v_mov_b32 v65, s58\nv_mov_b32 v67, s59")
A("v_mov_b32 v56, 0\nv_mov_b32 v57, 0")
A("s_cmp_eq_u32 s75, 1\ns_cbranch_scc1 L_nobp")
hbar()
LB("L_nobp")
def lgather(sr=FA):
    A(f"buffer_load_dwordx4 v[68:71], v7, {sr}, s61 offen sc1")
memgrp(lgather)
A("s_cmp_eq_u32 s49, 0\ns_cbranch_scc1 L_f_nofb")
lds_spin("L_fs1", 12, O_STAGE, 1)
for t in range(2): tr_read(16 + 4 * t, 8, WDI - WOI, t)
lds_spin("L_fs2", 12, O_H, 1)
for t in range(2):
    A(f"ds_read2_b64 v[{24+4*t}:{27+4*t}], v10 offset0:{8*t} offset1:{8*t+4}")
A("s_waitcnt lgkmcnt(0)")
mfma(56, 24, 16, None)
mfma(56, 28, 20, 56)
A("s_nop 7\ns_nop 1")
A("v_mul_f32 v56, v56, v62\nv_mul_f32 v57, v57, v63")
LB("L_f_nofb")
ts()
lds_spin("L_fs3", 12, O_STAGE, 3)
for t in range(4): tr_read(16 + 4 * t, 8, 0, t)
ts()
A("s_waitcnt vmcnt(0)")
poll_check("L_lchk", [68], 72, lgather)
A("v_mov_b32 v72, v70")
A("v_mov_b32 v73, v70")
for sh in (8, 4, 2, 1):
    A("s_nop 1")
    A(f"v_max_f32_dpp v73, v73, v73 row_ror:{sh} row_mask:0xf bank_mask:0xf")
A("v_sub_f32 v72, v72, v73\nv_mul_f32 v72, s69, v72\nv_exp_f32 v72, v72\ns_nop 0\nv_mul_f32 v72, v72, v68")
rowsum([72])
A("v_rcp_f32 v72, v72")
A("s_nop 1")
A("v_readlane_b32 s62, v72, 0\nv_readlane_b32 s63, v72, 16")
A("s_nop 1")
A("v_mul_f32 v60, s62, v60\nv_mul_f32 v61, s63, v61")
ts()
hbar()
for t in range(4):
    A(f"ds_read2_b64 v[{32+4*t}:{35+4*t}], v9 offset0:{8*t} offset1:{8*t+4}")
for t in range(4):
    A(f"s_waitcnt lgkmcnt({3-t})")
    mfma(48, 32 + 4 * t, 16 + 4 * t, None if t == 0 else 48)
exec_mask(0xffff, 0)
A("s_nop 6")
A("v_fma_f32 v64, v48, v60, v56\nv_fma_f32 v66, v49, v61, v57")
dry_end()
publish(64, 11, "s60", dual=False)
ts()
ts_dump()
LB("L_end")
A("s_endpgm")

L.append(f""".section .rodata,"a"
.p2align 6
.amdhsa_kernel {NAME}
  .amdhsa_next_free_vgpr 128
  .amdhsa_next_free_sgpr 102
  .amdhsa_accum_offset 128
  .amdhsa_group_segment_fixed_size 0
  .amdhsa_kernarg_size 104
  .amdhsa_user_sgpr_count 2
  .amdhsa_user_sgpr_kernarg_segment_ptr 1
  .amdhsa_system_sgpr_workgroup_id_x 1
.end_amdhsa_kernel""")
open(out, "w").write("\n".join(L) + "\n")
```

```python
import sys

OPT = dict(ts=0, kv_fl="nt", w_fl="nt", ka=3, w1e=1, w0p=1, vb=0, spin=400000, pst=0, dry=1, slp=0, pre=0, prew=0, dual=1, bper=8, prio=3, lsl=2, spre=0)
out = sys.argv[1]
for a in sys.argv[2:]:
    k, v = a.split("=")
    OPT[k] = int(v) if v.lstrip("-").isdigit() else v.replace("+", " ").replace("none", "")
TS = OPT["ts"]

NAME = "gated_mix__sliding_block_cached__swiglu_ffn__decode_kernel"
HEADER = open("gated_mix__sliding_block_cached__swiglu_ffn__decode.s.ref").read().split("; Override launch")[0]

L = []
def A(s):
    for l in s.split("\n"):
        L.append("    " + l.strip())
def LB(s):
    L.append(s + ":")
def C(s):
    L.append("    ; " + s)

VI = 0
WQI = 65536
GI = 81920
UI = 90112
WOI = 65536
WDI = 81920
KI = 98304
SM = 155648
PS = SM
QS = SM + 2048
OV = SM + 3072
HS = SM + 3584
QT = SM + 3840
MX = SM + 4352
LS = SM + 4480
GT = SM + 4608
CNT = SM + 4624
O_Q, O_M, O_P, O_STAGE, O_H, O_K7, O_V, O_I, O_VL = 0, 4, 8, 12, 16, 20, 24, 28, 32
LDS_BYTES = SM + 4864
WB = OPT.get('wb', 496) << 20
OBS = 2176
if OPT.get("compact", 1):
    QX = WB
    HX = WB + 0x20000
    H1 = WB + 0x58000
    MIR_ = 0xE0000
    H2 = WB + 0xE0000
    EPO = H1 + 2112
else:
    QX = WB + 0x10000
    HX = WB + 0x80000
    H1 = WB + 0x100000
    H2 = WB + 0x400000
    MIR_ = 0x800000
    EPO = 0
TSB = 0x800000

SCALE = 0x3DB504F3
LOG2E = 0x3FB8AA3B
NLOG2E = 0xBFB8AA3B
WF = OPT["w_fl"]

def srd(d, p, nbytes):
    A(f"s_mov_b32 s{d}, s{p}\ns_and_b32 s{d+1}, s{p+1}, 0xffff\ns_mov_b32 s{d+2}, {hex(nbytes)}\ns_mov_b32 s{d+3}, 0x20000")

ts_n = [0]
skip_n = [0]
def ts_reset():
    ts_n[0] = 1 if TS else 0
def ts():
    if not TS: return
    k = ts_n[0]; ts_n[0] += 1
    assert k < 16
    if TS == 3: return
    A(f"s_memrealtime s[72:73]\ns_waitcnt lgkmcnt(0)\nv_writelane_b32 v127, s72, {k}")
def ts_dump():
    if not TS: return
    A("s_mov_b64 exec, -1")
    if TS == 2:
        skip_n[0] += 1
        lb = f"L_sk{skip_n[0]}"
        A(f"s_cmp_lg_u32 s2, {OPT.get('dbgwg', 0)}\ns_cbranch_scc1 {lb}")
        A(f"s_cmp_lg_u32 s30, {OPT.get('dbgwave', 11)}\ns_cbranch_scc1 {lb}")
        srd(76, 26, 256)
        A("v_readlane_b32 s60, v127, 0\ns_nop 1\nv_subrev_u32 v127, s60, v127")
        A("v_lshlrev_b32 v3, 2, v0")
        A("s_mov_b32 exec_lo, 0xffff\ns_mov_b32 exec_hi, 0")
        A("buffer_store_dword v127, v3, s[76:79], 0 offen")
        LB(lb)
        return
    A("s_mul_i32 s60, s2, 12\ns_add_u32 s60, s60, s30\ns_lshl_b32 s60, s60, 6")
    A(f"s_add_u32 s60, s60, {hex(TSB)}")
    A("v_lshlrev_b32 v3, 2, v0")
    A("s_mov_b32 exec_lo, 0xffff\ns_mov_b32 exec_hi, 0")
    A("buffer_store_dword v127, v3, s[44:47], s60 offen")

def tags():
    A("s_add_u32 s58, s56, 0x01010101\ns_add_u32 s59, s57, 0x9e3779b9")
    A("s_and_b32 s88, s58, 0xffff\ns_and_b32 s89, s58, 0xffff0000")

def tagcheck(bases, acc, t0, t1):
    first = True
    for b in bases:
        A(f"v_xor_b32 v{t0}, s58, v{b+1}")
        A(f"v_xor_b32 v{t1}, s59, v{b+3}")
        if first:
            A(f"v_or_b32 v{acc}, v{t0}, v{t1}"); first = False
        else:
            A(f"v_or3_b32 v{acc}, v{acc}, v{t0}, v{t1}")

def tagcheck_dense(bases, acc, t0, t1):
    first = True
    for b in bases:
        A(f"v_perm_b32 v{t0}, v{b+1}, v{b}, s92")
        A(f"v_perm_b32 v{t1}, v{b+3}, v{b+2}, s93")
        A(f"v_xor_b32 v{t0}, s88, v{t0}")
        A(f"v_xor_b32 v{t1}, s89, v{t1}")
        if first:
            A(f"v_or_b32 v{acc}, v{t0}, v{t1}"); first = False
        else:
            A(f"v_or3_b32 v{acc}, v{acc}, v{t0}, v{t1}")

def tagcheck_16(bases, acc, t0, t1):
    for i in range(0, len(bases), 2):
        b0 = bases[i]
        A(f"v_perm_b32 v{t0}, v{b0+1}, v{b0}, s92")
        A(f"v_xor_b32 v{t0}, s88, v{t0}")
        if i + 1 < len(bases):
            b1 = bases[i + 1]
            A(f"v_perm_b32 v{t1}, v{b1+1}, v{b1}, s92")
            A(f"v_xor_b32 v{t1}, s88, v{t1}")
            if i == 0: A(f"v_or_b32 v{acc}, v{t0}, v{t1}")
            else: A(f"v_or3_b32 v{acc}, v{acc}, v{t0}, v{t1}")
        else:
            if i == 0: A(f"v_mov_b32 v{acc}, v{t0}")
            else: A(f"v_or_b32 v{acc}, v{acc}, v{t0}")

def stamp(dst, srcs, tagv):
    for i in range(4):
        A(f"v_perm_b32 v{dst+i}, v{srcs[i]}, v{tagv}, s{94+i}")

def consts():
    A("s_mov_b32 s92, 0x0c0c0400\ns_mov_b32 s93, 0x04000c0c")
    A("s_mov_b32 s94, 0x07060500\ns_mov_b32 s95, 0x07060501\ns_mov_b32 s96, 0x07060502\ns_mov_b32 s97, 0x07060503")

def exec_mask(lo, hi):
    A(f"s_and_b32 exec_lo, s90, {hex(lo)}" if lo != 0xffffffff else "s_mov_b32 exec_lo, s90")
    if hi is not None:
        A(f"s_and_b32 exec_hi, s91, {hex(hi)}" if hi else "s_mov_b32 exec_hi, 0")
def exec_all():
    A("s_mov_b64 exec, s[90:91]")
def memgrp(fn):
    skip_n[0] += 1
    lb = f"L_sk{skip_n[0]}"
    A(f"s_cbranch_execz {lb}")
    fn()
    LB(lb)
def hbar():
    memgrp(lambda: A("s_barrier"))
def dry_end():
    A("s_cbranch_execz L_end")

MIR = MIR_
def ws_srds():
    srd(44, 28, 0x20000000)
    A(f"s_add_u32 s80, s28, {hex(MIR)}\ns_addc_u32 s81, s29, 0\ns_and_b32 s81, s81, 0xffff\ns_mov_b32 s82, {hex(0x20000000-MIR)}\ns_mov_b32 s83, 0x20000")
    A("s_mov_b32 s74, 0")

def publish(data, voff, soff, off=0, dual=True):
    o = f" offset:{off}" if off else ""
    if dual and OPT["dual"]:
        A(f"buffer_store_dwordx4 v[{data}:{data+3}], v{voff}, s[44:47], {soff} offen{o}")
    A(f"buffer_store_dwordx4 v[{data}:{data+3}], v{voff}, s[80:83], {soff} offen{o} sc1")

def poll_check(label, bases, tmp, reissue, chk=tagcheck, grp=1, dual=True):
    dual = dual and OPT["dual"]
    LB(label)
    chk(bases, tmp, tmp + 1, tmp + 2)
    if grp >= 4:
        A(f"s_nop 1\nv_or_b32_dpp v{tmp}, v{tmp}, v{tmp} quad_perm:[1,0,3,2] row_mask:0xf bank_mask:0xf")
        A(f"s_nop 1\nv_or_b32_dpp v{tmp}, v{tmp}, v{tmp} quad_perm:[2,3,0,1] row_mask:0xf bank_mask:0xf")
    if grp >= 8:
        A(f"s_nop 1\nv_or_b32_dpp v{tmp}, v{tmp}, v{tmp} row_half_mirror row_mask:0xf bank_mask:0xf")
    A(f"v_cmp_ne_u32 vcc, 0, v{tmp}")
    A("s_nop 1")
    A(f"s_cbranch_vccz {label}_ok")
    if OPT.get("nopoll"): A(f"s_branch {label}_ok")
    A(f"s_sub_u32 s67, s67, 1\ns_cbranch_scc1 {label}_ok")
    A("s_mov_b64 exec, vcc")
    if OPT["slp"]: A(f"s_sleep {OPT['slp']}")
    if dual:
        A(f"s_add_u32 s74, s74, 1\ns_and_b32 s75, s74, {OPT['bper']-1}\ns_cbranch_scc0 {label}_b")
        reissue("s[44:47]")
        A("s_waitcnt vmcnt(0)")
        A(f"s_branch {label}")
        LB(label + "_b")
    reissue("s[80:83]")
    A("s_waitcnt vmcnt(0)")
    A(f"s_branch {label}")
    LB(label + "_ok")
    exec_all()

def xrow_multi(op, vs, ts_, steps=("v_permlane16_swap_b32", "v_permlane32_swap_b32")):
    for sw in steps:
        for v, t in zip(vs, ts_):
            A(f"v_mov_b32 v{t}, v{v}")
        if len(vs) < 2: A("s_nop 1")
        elif len(vs) < 3: A("s_nop 0")
        for v, t in zip(vs, ts_):
            A(f"{sw} v{v}, v{t}")
        A("s_nop 0")
        for v, t in zip(vs, ts_):
            A(f"{op} v{v}, v{v}, v{t}")

def xrow_t4(v):
    A(f"v_permlane16_swap_b32 v{v}, v{v+1}")
    A(f"v_permlane16_swap_b32 v{v+2}, v{v+3}")
    A("s_nop 0")
    A(f"v_add_f32 v{v}, v{v}, v{v+1}")
    A(f"v_add_f32 v{v+2}, v{v+2}, v{v+3}")
    A("s_nop 1")
    A(f"v_permlane32_swap_b32 v{v}, v{v+2}")
    A("s_nop 0")
    A(f"v_add_f32 v{v}, v{v}, v{v+2}")

def transpose8(raw, dst, pairs=(0, 1, 2, 3)):
    for v in pairs:
        for w in range(4):
            a = raw + 4 * (2 * v) + w
            b = raw + 4 * (2 * v + 1) + w
            A(f"v_perm_b32 v{dst + 4*(2*w) + v}, v{b}, v{a}, s64")
            A(f"v_perm_b32 v{dst + 4*(2*w+1) + v}, v{b}, v{a}, s65")

def bf16_round_pairs(vs, tmp):
    n = len(vs) // 2
    for i in range(n):
        A(f"v_cvt_pk_bf16_f32 v{tmp[i]}, v{vs[2*i]}, v{vs[2*i+1]}")
    for i in range(n):
        A(f"v_lshlrev_b32 v{vs[2*i]}, 16, v{tmp[i]}")
        A(f"v_and_b32 v{vs[2*i+1]}, 0xffff0000, v{tmp[i]}")

def lds_spin(label, addr_v, off, val):
    A(f"s_cbranch_execz {label}_x")
    LB(label)
    A(f"ds_read_b32 v15, v{addr_v} offset:{off}")
    A("s_waitcnt lgkmcnt(0)")
    A("v_readfirstlane_b32 s66, v15")
    A("s_sub_u32 s67, s67, 1")
    A(f"s_cbranch_scc1 {label}_x")
    if OPT.get("lsl") and label in ("L_ispin",): A(f"s_sleep {OPT['lsl']}")
    if OPT.get("ksl") and label in ("L_qspin", "L_mspin", "L_pspin1"):
        A(f"s_cmp_ge_u32 s66, {val}\ns_cbranch_scc1 {label}_x\ns_sleep {OPT['ksl']}")
    A(f"s_cmp_lt_u32 s66, {val}")
    A(f"s_cbranch_scc1 {label}")
    LB(label + "_x")

def lds_spin_data(label, off, val, reads):
    lds_spin(label, 12, off, val)
    reads()
    A("s_waitcnt lgkmcnt(0)")

def rowsum(vs, shifts=(8, 4, 2, 1)):
    for sh in shifts:
        if len(vs) < 3: A("s_nop 1")
        for v in vs:
            A(f"v_add_f32_dpp v{v}, v{v}, v{v} row_ror:{sh} row_mask:0xf bank_mask:0xf")

def dma_voff(dst, stride_sreg_or_shift, t0, t1):
    A(f"v_bfe_u32 v{t0}, v0, 1, 2\nv_bfe_u32 v{t1}, v0, 4, 2\nv_xor_b32 v{t0}, v{t0}, v{t1}")
    A(f"v_and_b32 v{t1}, 1, v0\nv_lshl_add_u32 v{t0}, v{t0}, 1, v{t1}\nv_lshlrev_b32 v{t0}, 4, v{t0}")
    A(f"v_lshrrev_b32 v{t1}, 3, v0")
    if isinstance(stride_sreg_or_shift, int):
        A(f"v_lshl_add_u32 v{dst}, v{t1}, {stride_sreg_or_shift}, v{t0}")
    else:
        A(f"v_mul_lo_u32 v{t1}, v{t1}, {stride_sreg_or_shift}\nv_add_u32 v{dst}, v{t1}, v{t0}")

def tr_addr(dst, q4, t0, t1, base):
    A(f"v_bfe_u32 v{t0}, v0, 3, 2")
    A(f"v_xor_b32 v{t0}, {q4}, v{t0}")
    A(f"v_lshlrev_b32 v{t0}, 5, v{t0}")
    A(f"v_and_b32 v{t1}, 3, v0\nv_lshl_add_u32 v{t0}, v{t1}, 3, v{t0}")
    A(f"v_lshrrev_b32 v{t1}, 2, v0\nv_lshl_add_u32 v{dst}, v{t1}, 7, v{t0}")
    A(f"v_add_u32 v{dst}, {base}, v{dst}")

def tr_read(dst, addr_v, off, t):
    A(f"ds_read_b64_tr_b16 v[{dst}:{dst+1}], v{addr_v} offset:{off + 4096*t}")
    A(f"ds_read_b64_tr_b16 v[{dst+2}:{dst+3}], v{addr_v} offset:{off + 4096*t + 2048}")

def lds_spin2(label, addr_v, off, val):
    A(f"s_cbranch_execz {label}_x")
    LB(label)
    A(f"ds_read_b64 v[14:15], v{addr_v} offset:{off}")
    A("s_waitcnt lgkmcnt(0)")
    A("v_min_u32 v15, v14, v15")
    A("s_sub_u32 s67, s67, 1")
    A("v_readfirstlane_b32 s66, v15")
    A(f"s_cbranch_scc1 {label}_x")
    A(f"s_cmp_lt_u32 s66, {val}")
    A(f"s_cbranch_scc1 {label}")
    LB(label + "_x")

def bump(off):
    exec_mask(1, 0)
    A(f"ds_add_u32 v12, v13 offset:{off}")
    exec_all()

def mfma(d, a, b, c):
    cs = "0" if c is None else f"v[{c}:{c+3}]"
    A(f"v_mfma_f32_16x16x32_bf16 v[{d}:{d+3}], v[{a}:{a+3}], v[{b}:{b+3}], {cs}")

def select4(xs):
    A(f"v_permlane16_swap_b32 v{xs[0]}, v{xs[1]}")
    A(f"v_permlane16_swap_b32 v{xs[2]}, v{xs[3]}")

NWAVES = 16 if OPT["dry"] else 12
L.append(HEADER.rstrip())
L.append(f"; @launch grid=(256,1,1) block=({NWAVES*64},1,1) lds={LDS_BYTES}")
L.append('.amdgcn_target "amdgcn-amd-amdhsa--gfx950"')
L.append(".text")
L.append(f".globl {NAME}\n.p2align 8\n.type {NAME},@function\n{NAME}:")
A("s_cmp_ge_u32 s2, 256\ns_cbranch_scc1 L_end")
if OPT.get("xorwg"): A(f"s_xor_b32 s2, s2, {OPT['xorwg']}")
A("s_load_dwordx16 s[4:19], s[0:1], 0")
A("s_load_dwordx8 s[20:27], s[0:1], 64")
A("s_load_dwordx2 s[28:29], s[0:1], 96")
if TS or OPT.get("diag"): A("s_memrealtime s[72:73]")
A("v_lshrrev_b32 v1, 6, v0")
A("v_and_b32 v0, 63, v0")
A("s_and_b32 s31, s2, 7")
A("v_readfirstlane_b32 s30, v1")
A("s_lshr_b32 s32, s2, 3")
A("s_lshr_b32 s33, s32, 4")
A("s_and_b32 s34, s32, 15")
A(f"s_mov_b32 s67, {OPT['spin']}")
A("s_mov_b64 s[90:91], -1")
A("v_and_b32 v2, 15, v0")
A("v_lshrrev_b32 v3, 4, v0")
A("s_lshr_b32 s52, s32, 3")
A("s_and_b32 s53, s32, 7")
A("s_lshl_b32 s54, s31, 2\ns_add_u32 s54, s54, s52")
A("s_lshl_b32 s50, s33, 3\ns_add_u32 s50, s50, s31\ns_lshl_b32 s50, s50, 23")
A("s_lshl_b32 s51, s34, 16\ns_add_u32 s50, s50, s51\ns_add_u32 s50, s50, 0x700000")
A(f"s_mul_i32 s51, s32, {OPT.get('rotm', 5)}\ns_add_u32 s51, s51, s31")
A("s_cmp_lt_u32 s30, 4\ns_cbranch_scc1 L_special")
if OPT["dry"]: A("s_cmp_ge_u32 s30, 12\ns_cbranch_scc1 L_helper")

def epoch_load():
    if EPO:
        A(f"s_mov_b32 s56, {hex(EPO)}\ns_load_dwordx2 s[56:57], s[28:29], s56")
    else:
        A("s_load_dwordx2 s[56:57], s[28:29], 0")
def fconsts():
    A(f"s_mov_b32 s68, {hex(SCALE)}\ns_mov_b32 s69, {hex(LOG2E)}\ns_mov_b32 s70, {hex(NLOG2E)}")
def ts0():
    if TS: A("v_writelane_b32 v127, s72, 0")

C("================= K / attention waves =================")
ts_reset()
A("s_sub_u32 s35, s30, 4")
A("s_lshl_b32 s62, s35, 1\ns_add_u32 s62, s62, s51")
A("s_add_u32 s63, s62, 1\ns_and_b32 s62, s62, 15\ns_and_b32 s63, s63, 15")
A("s_lshl_b32 s62, s62, 12\ns_lshl_b32 s63, s63, 12")
A("s_add_u32 s61, s50, s63\ns_add_u32 s60, s50, s62")
for u in range(4):
    A(f"v_add_u32 v{104+u}, {4*u}, v3\nv_xor_b32 v{104+u}, v{104+u}, v2\nv_lshlrev_b32 v{104+u}, 4, v{104+u}\nv_lshl_add_u32 v{104+u}, v3, 8, v{104+u}")
A(f"s_lshl_b32 s84, s35, 13\ns_add_u32 s84, s84, {KI}\ns_cmp_eq_u32 s35, 7\ns_cselect_b32 s84, {VI+57344}, s84")
A("s_add_u32 s85, s84, 4096")
A("s_waitcnt lgkmcnt(0)")
ts0()
srd(36, 6, 0x8000000)
KR, QR = 16, 80
KVF = OPT["kv_fl"]
def kload(i):
    t, u = i // 4, i % 4
    if u == 0 or i == OPT["ka"]: A(f"s_mov_b32 m0, s{84+t}\ns_nop 0")
    A(f"buffer_load_dwordx4 v{104+u}, s[36:39], s{60+t} offen offset:{u*1024} {KVF} lds")
def kread(t):
    for j in range(4):
        i = 4 * t + j
        A(f"ds_read_b128 v[{KR+4*i}:{KR+4*i+3}], v{108+j} offset:{4096*t}")
FA = "s[44:47]" if OPT["dual"] else "s[80:83]"
def qgather(sr=FA):
    A(f"buffer_load_dwordx4 v[{QR}:{QR+3}], v6, {sr}, s62 offen sc1")
KA, VB = OPT["ka"], OPT["vb"]
A("s_barrier")
for i in range(KA): kload(i)
ws_srds()
epoch_load()
fconsts(); consts()
A("s_lshl_b32 s62, s31, 1\ns_add_u32 s62, s62, s33\ns_lshl_b32 s62, s62, 13")
A("s_lshl_b32 s63, s35, 8\ns_add_u32 s62, s62, s63")
A(f"s_add_u32 s62, s62, {hex(QX)}")
A("v_lshlrev_b32 v6, 11, v3\nv_lshl_add_u32 v6, v2, 4, v6")
A(f"v_mov_b32 v12, {CNT}\nv_mov_b32 v13, 1")
for j in range(4):
    A(f"v_add_u32 v{108+j}, {4*j}, v3\nv_xor_b32 v{108+j}, v{108+j}, v2\nv_lshlrev_b32 v{108+j}, 4, v{108+j}\nv_lshl_add_u32 v{108+j}, v2, 8, v{108+j}\nv_add_u32 v{108+j}, s84, v{108+j}")
A("v_and_b32 v14, 3, v2")
A(f"s_lshl_b32 s71, s35, 7\ns_add_u32 s71, s71, {QS}")
A("v_lshl_add_u32 v10, v2, 3, s71\nv_lshl_add_u32 v10, v3, 1, v10")
A(f"v_lshlrev_b32 v11, 8, v14\nv_lshl_add_u32 v11, v3, 4, v11\nv_add_u32 v11, {QS}, v11")
A(f"v_lshlrev_b32 v8, 5, v14\nv_add_u32 v8, {MX}, v8")
A("s_lshl_b32 s71, s35, 2\nv_add_u32 v9, s71, v8")
A(f"v_lshl_add_u32 v7, v3, 2, v14\nv_lshlrev_b32 v7, 4, v7\nv_add_u32 v7, {PS}, v7")
A("s_lshl_b32 s71, s35, 8\nv_add_u32 v5, s71, v7")
A("v_bfe_u32 v120, v0, 2, 3\nv_xor_b32 v120, s35, v120\nv_lshlrev_b32 v120, 5, v120")
A("v_and_b32 v121, 3, v0\nv_lshl_add_u32 v120, v121, 3, v120\nv_lshrrev_b32 v121, 2, v0\nv_lshl_add_u32 v120, v121, 8, v120")
A("v_lshlrev_b32 v121, 9, v14\nv_lshl_add_u32 v121, v3, 4, v121")
A(f"s_lshl_b32 s76, s31, 5\ns_add_u32 s49, s76, s32\ns_mul_i32 s49, s49, {OBS}\ns_add_u32 s49, s49, {hex(H1)}")
A("s_lshl_b32 s71, s35, 6\ns_add_u32 s48, s49, s71")
A(f"v_lshrrev_b32 v122, 3, v2\nv_lshl_add_u32 v122, v122, 4, v3\nv_mul_u32_u24 v122, {OBS}, v122")
A("v_and_b32 v123, 7, v2\nv_lshl_add_u32 v122, v123, 4, v122")
A(f"s_mul_i32 s76, s76, {OBS}\ns_add_u32 s76, s76, {hex(H1)}")
A("s_lshl_b32 s71, s52, 9\ns_add_u32 s76, s76, s71\ns_lshl_b32 s71, s35, 7\ns_add_u32 s76, s76, s71")
for i in range(1, 4): A(f"s_add_u32 s{76+i}, s76, {i*4*OBS}")
A(f"s_lshl_b32 s71, s35, 6\ns_add_u32 s71, s71, {OV}")
A("v_lshrrev_b32 v124, 3, v2\nv_lshlrev_b32 v124, 8, v124\nv_lshl_add_u32 v124, v123, 3, v124\nv_lshl_add_u32 v124, v3, 1, v124\nv_add_u32 v124, s71, v124")
A("s_waitcnt lgkmcnt(0)")
tags()
if OPT.get("qw") is not None:
    A(f"s_cmp_lg_u32 s35, {OPT.get('qwave', 0)}\ns_cbranch_scc1 L_noqw")
    A(f"s_waitcnt vmcnt({OPT['qw']})")
    LB("L_noqw")
A("s_barrier")
ts()
for i in range(KA, 8): kload(i)
if OPT["prew"]:
    A("s_not_b32 s71, s58")
    A("v_mov_b32 v100, s71\nv_mov_b32 v101, s71\nv_mov_b32 v102, s71\nv_mov_b32 v103, s71")
    A("v_lshrrev_b32 v101, 8, v101")
    A("s_mov_b32 exec_lo, 0x000f000f\ns_mov_b32 exec_hi, 0x000f000f")
    A(f"buffer_store_dwordx4 v[100:103], v121, {FA}, s48 offen" + ("" if OPT["dual"] else " sc1"))
    A("s_cmp_lg_u32 s35, 7\ns_cbranch_scc1 L_pw1")
    A("v_lshlrev_b32 v104, 4, v2")
    A("s_mov_b32 exec_lo, 0xff\ns_mov_b32 exec_hi, 0")
    A(f"buffer_store_dwordx4 v[100:103], v104, {FA}, s49 offen offset:2048" + ("" if OPT["dual"] else " sc1"))
    LB("L_pw1")
    A("s_mov_b64 exec, -1")
A("s_barrier")
A("s_barrier")
ts()
if not OPT.get("nog"): qgather()
A("s_barrier")
VB2 = OPT.get("vb2", 0)
if VB2:
    A("s_barrier")
    A(f"buffer_load_dwordx4 v[{QR+4}:{QR+7}], v6, {FA}, s62 offen sc1")
    A("s_barrier")
ts()
if OPT.get("prio"): A(f"s_setprio {OPT['prio']}")
LB("L_d0")
if VB2:
    A("s_waitcnt vmcnt(1)")
    tagcheck_dense([QR], 88, 89, 90)
    A("v_cmp_ne_u32 vcc, 0, v88\ns_nop 1\ns_cbranch_vccz L_qchk_ok")
    A("s_waitcnt vmcnt(0)")
    for c in range(4): A(f"v_mov_b32 v{QR+c}, v{QR+4+c}")
    if TS: A("s_mov_b32 s74, 0x100")
else:
    A("s_waitcnt vmcnt(5)")
    kread(0)
    A("s_waitcnt vmcnt(1)")
    kread(1)
    A("s_cmp_lg_u32 s35, 7\ns_cbranch_scc1 L_nok7")
    A("s_waitcnt lgkmcnt(0)")
    bump(O_K7)
    LB("L_nok7")
    A("s_waitcnt vmcnt(0)")
poll_check("L_qchk", [QR], 88, qgather, tagcheck_dense, 4)
if TS: A("v_writelane_b32 v127, s74, 13")
ts()
for c in range(4): A(f"v_and_b32 v{QR+c}, 0xffffff00, v{QR+c}")
A("s_nop 0")
xrow_t4(QR)
A(f"v_cvt_pk_bf16_f32 v{QR}, v{QR}, v{QR}")
A(f"ds_write_b16 v10, v{QR}")
bump(O_Q)
def qreads():
    for j in range(4):
        A(f"ds_read_b128 v[{QR+4*j}:{QR+4*j+3}], v11 offset:{64*j}")
lds_spin_data("L_qspin", O_Q, 8, qreads)
for j in range(4):
    for t in range(2):
        k = KR + 4 * (4 * t + j)
        mfma(96 + 4 * t, k, QR + 4 * j, None if j == 0 else 96 + 4 * t)
A("s_nop 7\ns_nop 1")
S = list(range(96, 104))
bf16_round_pairs(S, [112, 113, 114, 115])
for v in S: A(f"v_mul_f32 v{v}, s68, v{v}")
bf16_round_pairs(S, [112, 113, 114, 115])
A("v_max3_f32 v116, v96, v97, v98\nv_max3_f32 v116, v116, v99, v100\nv_max3_f32 v116, v116, v101, v102\nv_max_f32 v116, v116, v103")
xrow_multi("v_max_f32", [116], [117])
exec_mask(0xf, 0)
A("ds_write_b32 v9, v116")
bump(O_M)
lds_spin_data("L_mspin", O_M, 8, lambda: A("ds_read_b128 v[104:107], v8\nds_read_b128 v[108:111], v8 offset:16"))
A("v_max3_f32 v116, v104, v105, v106\nv_max3_f32 v116, v116, v107, v108\nv_max3_f32 v116, v116, v109, v110\nv_max_f32 v116, v116, v111")
A("v_mul_f32 v117, s70, v116")
for v in S: A(f"v_fma_f32 v{v}, v{v}, s69, v117")
for v in S: A(f"v_exp_f32 v{v}, v{v}")
A("v_or_b32 v125, s88, v116")
for i in range(4): A(f"v_cvt_pk_bf16_f32 v{112+i}, v{96+2*i}, v{97+2*i}")
A("v_add_f32 v117, v96, v97\nv_add_f32 v118, v98, v99\nv_add_f32 v119, v100, v101\nv_add_f32 v104, v102, v103")
A("v_add_f32 v117, v117, v118\nv_add_f32 v119, v119, v104\nv_add_f32 v117, v117, v119")
exec_mask(0x000f000f, 0x000f000f)
A("ds_write_b128 v5, v[112:115]")
exec_all()
xrow_multi("v_add_f32", [117], [118])
exec_mask(0xf, 0)
A("ds_write_b32 v9, v117 offset:128")
bump(O_P)
PR, VO = 16, 48
def preads():
    A(f"ds_read_b64 v[118:119], v12 offset:{O_VL}")
    for k in range(8):
        A(f"ds_read_b128 v[{PR+4*k}:{PR+4*k+3}], v7 offset:{256*k}")
lds_spin_data("L_pspin1", O_P, 8, preads)
A("v_min_u32 v118, v118, v119")
A("s_nop 0")
A("v_readfirstlane_b32 s71, v118")
A("s_cmp_lg_u32 s35, 7\ns_cbranch_scc1 L_nol")
A("ds_read_b128 v[104:107], v8 offset:128\nds_read_b128 v[108:111], v8 offset:144")
A("v_lshlrev_b32 v10, 4, v2")
A("v_mov_b32 v97, s58\nv_mov_b32 v98, v116\nv_mov_b32 v99, s59")
A("s_waitcnt lgkmcnt(0)")
A("v_add_f32 v104, v104, v105\nv_add_f32 v106, v106, v107\nv_add_f32 v108, v108, v109\nv_add_f32 v110, v110, v111")
A("v_add_f32 v104, v104, v106\nv_add_f32 v108, v108, v110\nv_add_f32 v96, v104, v108")
exec_mask(0xf, 0)
memgrp(lambda: publish(96, 10, "s49", 2048))
exec_all()
LB("L_nol")
ts()
dry_end()
LB("L_d1")
def vstep(ks, first):
    for k in ks:
        A(f"ds_read_b64_tr_b16 v[{VO+4*k}:{VO+4*k+1}], v120 offset:{VI + 8192*k}")
        A(f"ds_read_b64_tr_b16 v[{VO+4*k+2}:{VO+4*k+3}], v120 offset:{VI + 8192*k + 4096}")
    for i, k in enumerate(ks):
        A(f"s_waitcnt lgkmcnt({2*(len(ks)-1-i)})")
        mfma(80, VO + 4 * k, PR + 4 * k, None if (first and i == 0) else 80)
A("s_cmp_lt_u32 s71, 7\ns_cbranch_scc1 L_vinc")
vstep([0, 1, 2, 3, 4, 5, 6], True)
A("s_cbranch_execnz L_vlast")
LB("L_vinc")
lds_spin2("L_v1", 12, O_VL, 4)
vstep([0, 1, 2, 3], True)
lds_spin2("L_v2", 12, O_VL, 6)
vstep([4, 5], False)
lds_spin2("L_v3", 12, O_VL, 7)
vstep([6], False)
LB("L_vlast")
hbar()
ts()
vstep([7], False)
exec_mask(0x000f000f, 0x000f000f)
A("s_nop 5")
stamp(84, [80, 81, 82, 83], 125)
memgrp(lambda: publish(84, 121, "s48"))
exec_all()
hbar()
ts()
A("s_cmp_ge_u32 s35, 4\ns_cbranch_scc1 L_kv_h2")
GR = 80
def h1gather(sr=FA):
    for i in range(4):
        A(f"buffer_load_dwordx4 v[{GR+4*i}:{GR+4*i+3}], v122, {sr}, s{76+i} offen sc1")
ts()
memgrp(h1gather)
A("s_waitcnt vmcnt(0)")
ts()
poll_check("L_h1chk", [GR + 4 * i for i in range(4)], 116, h1gather, tagcheck_16, 8)
ts()
for i in range(4): A(f"v_perm_b32 v{100+i}, v{GR+4*i+3}, v{GR+4*i+2}, s93")
A("v_max3_f32 v116, v100, v101, v102\nv_max_f32 v116, v116, v103")
xrow_multi("v_max_f32", [116], [117])
A("v_mul_f32 v117, s70, v116")
for i in range(4): A(f"v_fma_f32 v{100+i}, v{100+i}, s69, v117")
for i in range(4): A(f"v_exp_f32 v{100+i}, v{100+i}")
for c in range(16): A(f"v_and_b32 v{GR+c}, 0xffffff00, v{GR+c}")
for c in range(4): A(f"v_mul_f32 v{104+c}, v100, v{GR+c}")
for i in range(1, 4):
    for c in range(4): A(f"v_fmac_f32 v{104+c}, v{100+i}, v{GR+4*i+c}")
A("s_nop 0")
xrow_t4(104)
A("v_cvt_pk_bf16_f32 v104, v104, v104")
A("ds_write_b16 v124, v104")
A("s_waitcnt lgkmcnt(0)")
hbar()
ts()
dry_end()
A("s_branch L_kv_done")
LB("L_kv_h2")
A("s_cmp_lg_u32 s35, 7\ns_cbranch_scc1 L_kv_bo")
A("s_cmp_ge_u32 s2, 128\ns_cbranch_scc1 L_kv_bo")
LB("L_d2")
if TS: ts_n[0] = 12
srd(48, 24, 2048)
A("s_lshl_b32 s60, s2, 11")
A(f"s_add_u32 s60, s60, {hex(H2)}")
A("v_lshlrev_b32 v5, 4, v0")
def h2gather(sr="s[80:83]"):
    A(f"buffer_load_dwordx4 v[16:19], v5, {sr}, s60 offen sc1")
    A(f"buffer_load_dwordx4 v[20:23], v5, {sr}, s60 offen offset:1024 sc1")
A("v_mov_b32 v8, 0")
A("s_lshl_b32 s62, s2, 3")
hbar()
memgrp(h2gather)
A("s_waitcnt vmcnt(0)")
poll_check("L_h2chk", [16, 20], 24, h2gather, dual=False)
ts()
A("v_add_f32 v16, v16, v20\nv_add_f32 v18, v18, v22")
rowsum([16, 18], shifts=(8, 4))
xrow_multi("v_add_f32", [16, 18], [17, 19])
A("s_nop 0")
for i, qp in enumerate(("[1,1,1,1]", "[2,2,2,2]", "[3,3,3,3]")):
    A(f"v_mov_b32_dpp v{24+i}, v16 quad_perm:{qp} row_mask:0xf bank_mask:0xf")
    A(f"v_mov_b32_dpp v{28+i}, v18 quad_perm:{qp} row_mask:0xf bank_mask:0xf")
A("v_cvt_pk_bf16_f32 v32, v16, v24\nv_cvt_pk_bf16_f32 v33, v25, v26")
A("v_cvt_pk_bf16_f32 v34, v18, v28\nv_cvt_pk_bf16_f32 v35, v29, v30")
exec_mask(1, 0)
if OPT["dry"]: A("s_cbranch_execz L_spre")
A("buffer_store_dwordx2 v[32:33], v8, s[48:51], s62 offen")
A("buffer_store_dwordx2 v[34:35], v8, s[48:51], s62 offen offset:1024")
if OPT.get("diag"):
    A("s_memrealtime s[98:99]\ns_waitcnt lgkmcnt(0)")
    A(f"s_sub_u32 s73, s98, s72\ns_mul_i32 s73, s73, {OPT['diag']}\ns_add_u32 s73, s73, s98")
    LB("L_diag")
    A("s_memrealtime s[98:99]\ns_waitcnt lgkmcnt(0)\ns_sub_u32 s99, s98, s73\ns_cmp_lt_i32 s99, 0\ns_cbranch_scc1 L_diag")
A("s_cmp_lg_u32 s2, 0\ns_cbranch_scc1 L_kv_done")
A("v_mov_b32 v36, s58\nv_mov_b32 v37, s59")
A(f"s_mov_b32 s62, {hex(EPO)}")
A("buffer_store_dwordx2 v[36:37], v8, s[44:47], s62 offen sc1")
A("s_branch L_kv_done")
LB("L_kv_bo")
A("s_barrier")
LB("L_kv_done")
if TS:
    A("s_memrealtime s[72:73]\ns_waitcnt lgkmcnt(0)\nv_writelane_b32 v127, s72, 15")
ts_dump()
A("s_endpgm")

if OPT["dry"]:
    LB("L_helper")
    C("================= dry-run helpers: warm the instruction cache =================")
    if OPT.get("cpf"):
        A("s_getpc_b64 s[60:61]")
        LB("L_pc")
        A(f"s_sub_u32 s60, s60, L_pc-{NAME}\ns_subb_u32 s61, s61, 0")
        A(f"s_sub_u32 s62, s30, 12\ns_mul_i32 s62, s62, {OPT['cpf']*128}\ns_add_u32 s60, s60, s62\ns_addc_u32 s61, s61, 0")
        for i in range(OPT["cpf"]): A(f"s_load_dword s{36+(i%8)}, s[60:61], {128*i}")
    A("s_barrier")
    for v in list(range(4, 16)) + list(range(104, 112)) + [120, 121, 122, 123, 124]: A(f"v_mov_b32 v{v}, 0")
    A("s_waitcnt lgkmcnt(0)")
    ws_srds()
    A("s_mov_b64 s[90:91], 0\ns_mov_b64 exec, 0")
    A("s_mov_b32 s35, 7\ns_mov_b32 s48, 0\ns_mov_b32 s49, 1\ns_mov_b32 s60, 0\ns_mov_b32 s61, 0\ns_mov_b32 s62, 0\ns_mov_b32 s63, 0")
    A("s_cmp_eq_u32 s30, 12\ns_cbranch_scc1 L_d0")
    A("s_cmp_eq_u32 s30, 14\ns_cbranch_scc1 L_d2")
    A("s_cmp_eq_u32 s30, 15\ns_cbranch_scc1 L_d3")
    A("s_mov_b32 s35, 0\ns_mov_b32 s71, 8")
    A("s_branch L_d1")
    LB("L_spre")
    if OPT["spre"]:
        A(f"s_lshl_b32 s60, s31, 5\ns_add_u32 s60, s60, s32\ns_mul_i32 s60, s60, {OBS}\ns_add_u32 s60, s60, {hex(H1)}")
        A("s_add_u32 s62, s28, s60\ns_addc_u32 s63, s29, 0")
        if OPT["spre"] & 1:
            for i in range(17): A(f"s_load_dword s{4+(i%8)}, s[62:63], {128*i}")
        A(f"s_lshl_b32 s60, s2, 11\ns_add_u32 s60, s60, {hex(H2+MIR)}")
        A("s_add_u32 s62, s28, s60\ns_addc_u32 s63, s29, 0")
        if OPT["spre"] & 2:
            A("s_cmp_ge_u32 s2, 128\ns_cbranch_scc1 L_end")
            for i in range(16): A(f"s_load_dword s{4+(i%8)}, s[62:63], {128*i}")
    A("s_endpgm")

LB("L_special")
C("================= special waves =================")
ts_reset()
A("s_and_b32 s49, s54, 7\ns_cmp_lg_u32 s49, 7\ns_cselect_b32 s49, 1, 0")
A("s_lshr_b32 s55, s54, 3\ns_sub_u32 s55, s54, s55")
A("v_and_b32 v6, 1, v2\nv_lshlrev_b32 v6, 10, v6\nv_lshl_add_u32 v6, v3, 3, v6")
A("s_cmp_eq_u32 s30, 0\ns_cbranch_scc1 L_w0")
A("s_cmp_eq_u32 s30, 1\ns_cbranch_scc1 L_w1")
A("s_cmp_eq_u32 s30, 3\ns_cbranch_scc1 L_w3")
A("s_waitcnt lgkmcnt(0)")
ts0()
ws_srds()
epoch_load()
if OPT.get("tlbw", 0):
    A("v_mov_b32 v4, 0")
    A("s_mov_b32 exec_lo, 1\ns_mov_b32 exec_hi, 0")
    srd(36, 24, 2048)
    A("buffer_load_dword v16, v4, s[36:39], 0 offen")
    srd(40, 8, 0x8000000)
    A(f"buffer_load_dword v17, v4, s[40:43], s50 offen {KVF}")
    srd(76, 12, 0x400000)
    A("s_lshl_b32 s60, s54, 17")
    A(f"buffer_load_dword v18, v4, s[76:79], s60 offen {WF}")
    srd(84, 20, 1792 * 1024)
    A("s_lshl_b32 s60, s55, 16")
    A(f"buffer_load_dword v19, v4, s[84:87], s60 offen {WF}")
    A("s_mov_b64 exec, -1")
A("s_barrier")
fconsts(); consts()
A("s_waitcnt lgkmcnt(0)")
tags()
A("s_branch L_vload")

LB("L_w3")
A("v_lshlrev_b32 v5, 4, v0")
A(f"v_mov_b32 v4, {CNT}\nv_mov_b32 v8, 0\nv_mov_b32 v9, 0\nv_mov_b32 v10, 0\nv_mov_b32 v11, 0")
A("ds_write_b128 v4, v[8:11]")
A("ds_write_b128 v4, v[8:11] offset:16")
A("ds_write_b128 v4, v[8:11] offset:32")
A("s_waitcnt lgkmcnt(0)")
ts0()
srd(36, 4, 2048)
srd(40, 22, 1024)
A("buffer_load_dwordx4 v[16:19], v5, s[36:39], 0 offen")
A("buffer_load_dwordx4 v[20:23], v5, s[36:39], 0 offen offset:1024")
A("buffer_load_dwordx4 v[24:27], v5, s[40:43], 0 offen")
A("s_barrier")
ws_srds()
epoch_load()
fconsts(); consts()
A("s_waitcnt vmcnt(0)")
for src, dst in ((24, 32), (16, 40), (20, 48)):
    for w in range(4):
        A(f"v_lshlrev_b32 v{dst+2*w}, 16, v{src+w}\nv_and_b32 v{dst+2*w+1}, 0xffff0000, v{src+w}")
for b in range(2):
    for e in range(8):
        A(f"v_mul_f32 v{40+8*b+e}, v{40+8*b+e}, v{32+e}")
bf16_round_pairs(list(range(40, 56)), list(range(16, 24)))
for b in range(2):
    o = 40 + 8 * b
    A(f"v_add_f32 v{o}, v{o}, v{o+1}\nv_add_f32 v{o+2}, v{o+2}, v{o+3}\nv_add_f32 v{o+4}, v{o+4}, v{o+5}\nv_add_f32 v{o+6}, v{o+6}, v{o+7}")
    A(f"v_add_f32 v{o}, v{o}, v{o+2}\nv_add_f32 v{o+4}, v{o+4}, v{o+6}\nv_add_f32 v{o}, v{o}, v{o+4}")
rowsum([40, 48])
xrow_multi("v_add_f32", [40, 48], [41, 49])
A("v_mov_b32 v41, v48")
bf16_round_pairs([40, 41], [16])
A("v_mul_f32 v40, s70, v40\nv_mul_f32 v41, s70, v41")
A("v_exp_f32 v40, v40\nv_exp_f32 v41, v41")
A("s_nop 0")
A("v_add_f32 v40, 1.0, v40\nv_add_f32 v41, 1.0, v41")
A("v_rcp_f32 v40, v40\nv_rcp_f32 v41, v41")
A("s_nop 0")
bf16_round_pairs([40, 41], [16])
A("v_sub_f32 v42, 1.0, v40\nv_sub_f32 v43, 1.0, v41")
bf16_round_pairs([42, 43], [16])
A(f"v_mov_b32 v4, {GT}")
A("ds_write_b128 v4, v[40:43]")
A("s_waitcnt lgkmcnt(0)")
tags()

LB("L_vload")
srd(40, 8, 0x8000000)
A("s_sub_u32 s35, s30, 2")
A("s_lshl_b32 s60, s35, 2\nv_add_u32 v4, s60, v3\nv_lshrrev_b32 v5, 1, v2\nv_xor_b32 v4, v4, v5")
A("v_and_b32 v5, 1, v2\nv_lshl_add_u32 v4, v4, 1, v5\nv_lshlrev_b32 v4, 4, v4\nv_lshl_add_u32 v4, v3, 8, v4")
A("s_lshl_b32 s61, s35, 10\ns_add_u32 s62, s50, s61")
A("s_and_b32 s60, s51, 15\ns_lshl_b32 s60, s60, 12")
A(f"v_mov_b32 v12, {CNT}\nv_mov_b32 v13, 1")
A(f"s_lshl_b32 s63, s35, 2\ns_add_u32 s63, s63, {CNT+O_VL}\nv_mov_b32 v11, s63")
A("v_mov_b32 v8, 4\nv_mov_b32 v9, 6\nv_mov_b32 v10, 8\nv_mov_b32 v7, 7")
def vblk(i):
    A(f"s_add_u32 s63, s62, s60\ns_add_u32 m0, s61, {VI + 4096*i}")
    A("s_add_u32 s60, s60, 4096\ns_and_b32 s60, s60, 0xffff")
    A(f"buffer_load_dwordx4 v4, s[40:43], s63 offen {KVF} lds")
    A(f"buffer_load_dwordx4 v4, s[40:43], s63 offen offset:2048 {KVF} lds")
if OPT.get("vearly"):
    A("s_barrier")
    for i in range(2 * VB): vblk(i)
    A("s_barrier\ns_barrier\ns_barrier")
else:
    A("s_barrier\ns_barrier")
    for i in range(2 * VB): vblk(i)
    A("s_barrier\ns_barrier")
IB = OPT.get("ib", 16)
for i in range(2 * VB, 17):
    if VB2 and i == 2 * VB + VB2: A("s_barrier\ns_barrier")
    if i == max(IB, 2 * VB):
        A("s_mov_b32 exec_lo, 1\ns_mov_b32 exec_hi, 0")
        A(f"ds_add_u32 v12, v13 offset:{O_I}")
        A("s_mov_b64 exec, -1")
    if OPT.get("w1e") and i == OPT.get("hb", 6):
        A("s_mov_b32 exec_lo, 1\ns_mov_b32 exec_hi, 0")
        A(f"ds_add_u32 v12, v13 offset:{O_V}")
        A("s_mov_b64 exec, -1")
    if i == 14: lds_spin("L_k7spin", 12, O_K7, 1)
    if i < 16: vblk(i)
A("s_mov_b32 exec_lo, 1\ns_mov_b32 exec_hi, 0")
ts()
A("s_waitcnt vmcnt(16)")
A("ds_write_b32 v11, v8")
ts()
A("s_waitcnt vmcnt(8)")
A("ds_write_b32 v11, v9")
A("s_waitcnt vmcnt(4)")
A("ds_write_b32 v11, v7")
A("s_mov_b64 exec, -1")
A("s_waitcnt vmcnt(0)")
A("s_barrier")
ts()
A("s_branch L_final")

LB("L_w0")
ts_reset()
if OPT.get("w0p"): A("s_setprio 3")
dma_voff(4, 13, 8, 9)
A("s_lshl_b32 s60, s52, 20\ns_lshl_b32 s61, s31, 10\ns_add_u32 s60, s60, s61\ns_lshl_b32 s61, s53, 7\ns_add_u32 s60, s60, s61")
A("s_lshl_b32 s61, s52, 8")
A("s_waitcnt lgkmcnt(0)")
ts0()
srd(40, 10, 0x400000)
for i in range(16):
    A(f"s_mov_b32 m0, {WQI+1024*i}")
    if i: A(f"s_add_u32 s60, s60, {8*8192}")
    else: A("s_nop 0")
    A(f"buffer_load_dwordx4 v4, s[40:43], s60 offen {WF} lds")
srd(36, 4, 2048)
XA, BB, AC = 16, 32, 96
for t in range(4):
    A(f"buffer_load_dwordx2 v[{XA+4*t}:{XA+4*t+1}], v6, s[36:39], s61 offen offset:{64*t}")
    A(f"buffer_load_dwordx2 v[{XA+4*t+2}:{XA+4*t+3}], v6, s[36:39], s61 offen offset:{64*t+32}")
A("s_barrier")
ws_srds()
epoch_load()
fconsts(); consts()
for q4 in range(4): tr_addr(8 + q4, q4, 12, 13, WQI)
A(f"v_lshlrev_b32 v12, 2, v0\nv_add_u32 v12, {QT}, v12\nv_and_b32 v13, 31, v0\nv_lshlrev_b32 v13, 4, v13\nv_add_u32 v13, {QT}, v13")
A("v_and_b32 v14, 1, v3\nv_lshlrev_b32 v14, 13, v14\nv_lshl_add_u32 v14, v2, 4, v14")
A("s_lshl_b32 s62, s31, 14\ns_lshl_b32 s63, s52, 11\ns_add_u32 s62, s62, s63\ns_lshl_b32 s63, s53, 8\ns_add_u32 s62, s62, s63")
A(f"s_add_u32 s62, s62, {hex(QX)}")
A("s_waitcnt lgkmcnt(0)")
tags()
A("v_mov_b32 v5, s58")
A("s_waitcnt vmcnt(0)")
ts()
seq = [(q4, t) for q4 in range(4) for t in range(4)]
D = 6
def issue(k):
    q4, t = seq[k]; tr_read(BB + 4 * k, 8 + q4, 0, t)
for k in range(D): issue(k)
for k in range(16):
    q4, t = seq[k]
    A(f"s_waitcnt lgkmcnt({2*(min(16,k+D)-k)-2})")
    mfma(AC + 4 * q4, XA + 4 * t, BB + 4 * k, None if t == 0 else AC + 4 * q4)
    if k + D < 16: issue(k + D)
A("s_nop 7\ns_nop 1")
for r in range(2): select4([AC + 4 * q + r for q in range(4)])
A("s_nop 0")
for r in range(2): A(f"v_permlane32_swap_b32 v{AC+r}, v{AC+8+r}")
A("s_nop 0")
A(f"ds_write_b32 v12, v{AC}\nds_write_b32 v12, v{AC+1} offset:256")
A("ds_read_b128 v[116:119], v13")
A("s_waitcnt lgkmcnt(0)")
stamp(112, [116, 117, 118, 119], 5)
A("s_mov_b32 exec_hi, 0")
if not OPT.get("nos"): publish(112, 14, "s62")
A("s_mov_b64 exec, -1")
ts()
A("s_barrier")
srd(36, 12, 0x400000)
srd(40, 20, 1792 * 1024)
dma_voff(4, 10, 8, 9)
if OPT.get("cshift"):
    A(f"s_add_u32 s63, s53, {OPT['cshift']}\ns_and_b32 s63, s63, 7\ns_lshl_b32 s63, s63, 7\ns_lshl_b32 s60, s54, 17\ns_add_u32 s60, s60, s63")
else:
  A("s_lshl_b32 s60, s54, 17\ns_lshl_b32 s63, s53, 7\ns_add_u32 s60, s60, s63")
A("s_lshl_b32 s61, s55, 16\ns_add_u32 s61, s61, s63")
A(f"v_mov_b32 v12, {CNT}\nv_mov_b32 v8, 1\nv_mov_b32 v9, 2\nv_mov_b32 v10, 3")
A("s_barrier\ns_barrier\ns_barrier")
if VB2: A("s_barrier\ns_barrier")
lds_spin("L_ispin", 12, O_I, 2)
ts()
A("s_cmp_eq_u32 s49, 0\ns_cbranch_scc1 L_w0_nowd")
for i in range(8):
    A(f"s_mov_b32 m0, {WDI+1024*i}")
    if i: A(f"s_add_u32 s61, s61, {8*1024}")
    else: A("s_nop 0")
    A(f"buffer_load_dwordx4 v4, s[40:43], s61 offen {WF} lds")
LB("L_w0_nowd")
for i in range(16):
    A(f"s_mov_b32 m0, {WOI+1024*i}")
    if i: A(f"s_add_u32 s60, s60, {8*1024}")
    else: A("s_nop 0")
    A(f"buffer_load_dwordx4 v4, s[36:39], s60 offen {WF} lds")
ts()
A("s_barrier\ns_barrier")
A("s_waitcnt vmcnt(16)")
A(f"ds_write_b32 v12, v8 offset:{O_STAGE}")
ts()
A("s_waitcnt vmcnt(8)")
A(f"ds_write_b32 v12, v9 offset:{O_STAGE}")
ts()
A("s_waitcnt vmcnt(0)")
A(f"ds_write_b32 v12, v10 offset:{O_STAGE}")
ts()
A("s_mov_b32 s75, 1")
A("s_branch L_final0")

LB("L_w1_idle")
A("s_waitcnt lgkmcnt(0)")
ts0()
ws_srds()
epoch_load()
A("s_barrier")
fconsts(); consts()
A("s_waitcnt lgkmcnt(0)")
tags()
A("s_barrier\ns_barrier\ns_barrier\ns_barrier")
if VB2: A("s_barrier\ns_barrier")
A("s_barrier")
A("s_branch L_final")
LB("L_w1")
ts_reset()
A("s_cmp_eq_u32 s49, 0\ns_cbranch_scc1 L_w1_idle")
A("s_movk_i32 s60, 3584")
dma_voff(4, "s60", 8, 9)
A("s_mul_i32 s60, s53, 64*3584\ns_lshl_b32 s61, s55, 7\ns_add_u32 s60, s60, s61")
A("s_lshl_b32 s61, s53, 7")
A("s_waitcnt lgkmcnt(0)")
ts0()
srd(36, 16, 512 * 3584)
srd(40, 18, 512 * 3584)
for i in range(8):
    A(f"s_mov_b32 m0, {GI+1024*i}")
    if i: A(f"s_add_u32 s60, s60, {8*3584}")
    else: A("s_nop 0")
    A(f"buffer_load_dwordx4 v4, s[36:39], s60 offen {WF} lds")
    A(f"s_mov_b32 m0, {UI+1024*i}\ns_nop 0")
    A(f"buffer_load_dwordx4 v4, s[40:43], s60 offen {WF} lds")
srd(76, 4, 2048)
for t in range(2):
    A(f"buffer_load_dwordx2 v[{XA+4*t}:{XA+4*t+1}], v6, s[76:79], s61 offen offset:{64*t}")
    A(f"buffer_load_dwordx2 v[{XA+4*t+2}:{XA+4*t+3}], v6, s[76:79], s61 offen offset:{64*t+32}")
A("s_barrier")
ws_srds()
epoch_load()
fconsts(); consts()
for q4 in range(4): tr_addr(8 + q4, q4, 12, 13, GI)
A("v_lshlrev_b32 v5, 4, v0")
A("s_lshl_b32 s62, s55, 13")
A(f"s_add_u32 s62, s62, {hex(HX)}")
A("s_lshl_b32 s63, s53, 10\ns_add_u32 s63, s63, s62")
A("s_add_u32 s61, s62, 4096")
A(f"v_lshlrev_b32 v12, 1, v0\nv_add_u32 v12, {HS}, v12")
A(f"v_mov_b32 v13, {CNT+O_H}\nv_mov_b32 v14, 1")
A("s_waitcnt lgkmcnt(0)")
tags()
A("v_mov_b32 v4, s58")
if OPT.get("w1e"): A("s_barrier")
A("s_waitcnt vmcnt(0)")
ts()
seq = [(mat, q4, t) for mat in range(2) for q4 in range(4) for t in range(2)]
BB1 = 24
AC1 = 88
def issue(k):
    mat, q4, t = seq[k]; tr_read(BB1 + 4 * k, 8 + q4, (UI - GI) if mat else 0, t)
for k in range(D): issue(k)
for k in range(16):
    mat, q4, t = seq[k]
    A(f"s_waitcnt lgkmcnt({2*(min(16,k+D)-k)-2})")
    acc = AC1 + 16 * mat + 4 * q4
    mfma(acc, XA + 4 * t, BB1 + 4 * k, None if t == 0 else acc)
    if k + D < 16: issue(k + D)
A("s_nop 7\ns_nop 1")
for mat in range(2):
    for r in range(2): select4([AC1 + 16 * mat + 4 * q + r for q in range(4)])
A("s_nop 0")
for mat in range(2):
    for r in range(2): A(f"v_permlane32_swap_b32 v{AC1+16*mat+r}, v{AC1+16*mat+8+r}")
A("s_nop 0")
stamp(120, [AC1, AC1 + 1, AC1 + 16, AC1 + 17], 4)
if not OPT.get("nos"): publish(120, 5, "s63")
ts()
if OPT.get("w1e"): A("s_barrier\ns_barrier")
else: A("s_barrier\ns_barrier\ns_barrier")
HG = 16
def hgather(sr=FA):
    for rb in range(8):
        r = HG + 4 * rb
        A(f"buffer_load_dwordx4 v[{r}:{r+3}], v5, {sr}, s{62 - rb//4} offen offset:{(rb%4)*1024} sc1")
if VB2: A("s_barrier\ns_barrier")
if OPT.get("w1e"):
    A("s_barrier")
    A(f"v_mov_b32 v11, {CNT}")
    lds_spin("L_hw", 11, O_V, 2)
    hgather()
else:
    if not OPT.get("nog"): hgather()
    A("s_barrier")
ts()
LB("L_d3")
A("s_waitcnt vmcnt(0)")
poll_check("L_hchk", [HG + 4 * i for i in range(8)], 96, hgather, tagcheck_dense, 4)
ts()
for c in range(32): A(f"v_and_b32 v{HG+c}, 0xffffff00, v{HG+c}")
for step in (16, 8, 4):
    for base in range(HG, HG + step, 4):
        for o in range(4):
            A(f"v_add_f32 v{base+o}, v{base+o}, v{base+step+o}")
bf16_round_pairs([16, 17, 18, 19], [24, 25])
A("v_mul_f32 v24, s70, v16\nv_mul_f32 v25, s70, v17")
A("v_exp_f32 v24, v24\nv_exp_f32 v25, v25")
A("s_nop 0")
A("v_add_f32 v24, 1.0, v24\nv_add_f32 v25, 1.0, v25")
A("v_rcp_f32 v24, v24\nv_rcp_f32 v25, v25")
A("s_nop 0")
A("v_mul_f32 v16, v16, v24\nv_mul_f32 v17, v17, v25")
bf16_round_pairs([16, 17], [24])
A("v_mul_f32 v16, v16, v18\nv_mul_f32 v17, v17, v19")
A("v_cvt_pk_bf16_f32 v24, v16, v17")
A("ds_write_b16 v12, v24")
A("ds_write_b16_d16_hi v12, v24 offset:128")
A("ds_write_b32 v13, v14")
ts()
hbar()

LB("L_final")
A("s_mov_b32 s75, 0")
LB("L_final0")
if TS: ts_n[0] = 8
tr_addr(8, "s30", 12, 13, WOI)
A(f"v_mov_b32 v12, {CNT}")
A(f"v_and_b32 v9, 1, v2\nv_lshlrev_b32 v10, 7, v9\nv_lshl_add_u32 v10, v3, 3, v10\nv_add_u32 v10, {HS}, v10")
A(f"v_lshlrev_b32 v9, 8, v9\nv_lshl_add_u32 v9, v3, 3, v9\nv_add_u32 v9, {OV}, v9")
A("v_lshrrev_b32 v11, 2, v2\nv_lshlrev_b32 v11, 11, v11\nv_and_b32 v13, 3, v2\nv_lshl_add_u32 v11, v13, 4, v11")
A("s_lshl_b32 s60, s53, 15\ns_lshl_b32 s61, s30, 13\ns_add_u32 s60, s60, s61\ns_lshl_b32 s61, s54, 6\ns_add_u32 s60, s60, s61")
A(f"s_add_u32 s60, s60, {hex(H2)}")
A(f"v_and_b32 v7, 31, v0\nv_mul_u32_u24 v7, {OBS}, v7")
A(f"s_mul_i32 s61, s31, {32*OBS}\ns_lshl_b32 s62, s52, 4\ns_add_u32 s61, s61, s62")
A(f"s_add_u32 s61, s61, {hex(H1+2048)}")
A(f"v_mov_b32 v13, {GT}")
A("ds_read_b128 v[60:63], v13")
A("v_mov_b32 v65, s58\nv_mov_b32 v67, s59")
A("v_mov_b32 v56, 0\nv_mov_b32 v57, 0")
A("s_cmp_eq_u32 s75, 1\ns_cbranch_scc1 L_nobp")
hbar()
LB("L_nobp")
def lgather(sr=FA):
    A(f"buffer_load_dwordx4 v[68:71], v7, {sr}, s61 offen sc1")
memgrp(lgather)
A("s_cmp_eq_u32 s49, 0\ns_cbranch_scc1 L_f_nofb")
lds_spin("L_fs1", 12, O_STAGE, 1)
for t in range(2): tr_read(16 + 4 * t, 8, WDI - WOI, t)
lds_spin("L_fs2", 12, O_H, 1)
for t in range(2):
    A(f"ds_read2_b64 v[{24+4*t}:{27+4*t}], v10 offset0:{8*t} offset1:{8*t+4}")
A("s_waitcnt lgkmcnt(0)")
mfma(56, 24, 16, None)
mfma(56, 28, 20, 56)
A("s_nop 7\ns_nop 1")
A("v_mul_f32 v56, v56, v62\nv_mul_f32 v57, v57, v63")
LB("L_f_nofb")
ts()
lds_spin("L_fs3", 12, O_STAGE, 3)
for t in range(4): tr_read(16 + 4 * t, 8, 0, t)
ts()
A("s_waitcnt vmcnt(0)")
poll_check("L_lchk", [68], 72, lgather)
A("v_mov_b32 v72, v70")
A("v_mov_b32 v73, v70")
for sh in (8, 4, 2, 1):
    A("s_nop 1")
    A(f"v_max_f32_dpp v73, v73, v73 row_ror:{sh} row_mask:0xf bank_mask:0xf")
A("v_sub_f32 v72, v72, v73\nv_mul_f32 v72, s69, v72\nv_exp_f32 v72, v72\ns_nop 0\nv_mul_f32 v72, v72, v68")
rowsum([72])
A("v_rcp_f32 v72, v72")
A("s_nop 1")
A("v_readlane_b32 s62, v72, 0\nv_readlane_b32 s63, v72, 16")
A("s_nop 1")
A("v_mul_f32 v60, s62, v60\nv_mul_f32 v61, s63, v61")
ts()
hbar()
for t in range(4):
    A(f"ds_read2_b64 v[{32+4*t}:{35+4*t}], v9 offset0:{8*t} offset1:{8*t+4}")
for t in range(4):
    A(f"s_waitcnt lgkmcnt({3-t})")
    mfma(48, 32 + 4 * t, 16 + 4 * t, None if t == 0 else 48)
exec_mask(0xffff, 0)
A("s_nop 6")
A("v_fma_f32 v64, v48, v60, v56\nv_fma_f32 v66, v49, v61, v57")
dry_end()
publish(64, 11, "s60", dual=False)
ts()
ts_dump()
LB("L_end")
A("s_endpgm")

L.append(f""".section .rodata,"a"
.p2align 6
.amdhsa_kernel {NAME}
  .amdhsa_next_free_vgpr 128
  .amdhsa_next_free_sgpr 102
  .amdhsa_accum_offset 128
  .amdhsa_group_segment_fixed_size 0
  .amdhsa_kernarg_size 104
  .amdhsa_user_sgpr_count 2
  .amdhsa_user_sgpr_kernarg_segment_ptr 1
  .amdhsa_system_sgpr_workgroup_id_x 1
.end_amdhsa_kernel""")
open(out, "w").write("\n".join(L) + "\n")
```

```python
import sys

OPT = dict(ts=0, kv_fl="nt", w_fl="nt", ka=3, w1e=1, w0p=1, vb=0, spin=400000, pst=0, dry=1, slp=0, pre=0, prew=0, dual=1, bper=8, prio=3, lsl=2, spre=0)
out = sys.argv[1]
for a in sys.argv[2:]:
    k, v = a.split("=")
    OPT[k] = int(v) if v.lstrip("-").isdigit() else v.replace("+", " ").replace("none", "")
TS = OPT["ts"]

NAME = "gated_mix__sliding_block_cached__swiglu_ffn__decode_kernel"
HEADER = open("gated_mix__sliding_block_cached__swiglu_ffn__decode.s.ref").read().split("; Override launch")[0]

L = []
def A(s):
    for l in s.split("\n"):
        L.append("    " + l.strip())
def LB(s):
    L.append(s + ":")
def C(s):
    L.append("    ; " + s)

VI = 0
WQI = 65536
GI = 81920
UI = 90112
WOI = 65536
WDI = 81920
KI = 98304
SM = 155648
PS = SM
QS = SM + 2048
OV = SM + 3072
HS = SM + 3584
QT = SM + 3840
MX = SM + 4352
LS = SM + 4480
GT = SM + 4608
CNT = SM + 4624
O_Q, O_M, O_P, O_STAGE, O_H, O_K7, O_V, O_I, O_VL = 0, 4, 8, 12, 16, 20, 24, 28, 32
LDS_BYTES = SM + 4864
WB = OPT.get('wb', 496) << 20
OBS = 2176
if OPT.get("compact", 1):
    QX = WB
    HX = WB + 0x20000
    H1 = WB + 0x58000
    MIR_ = 0xE0000
    H2 = WB + 0xE0000
    EPO = H1 + 2112
else:
    QX = WB + 0x10000
    HX = WB + 0x80000
    H1 = WB + 0x100000
    H2 = WB + 0x400000
    MIR_ = 0x800000
    EPO = 0
TSB = 0x800000

SCALE = 0x3DB504F3
LOG2E = 0x3FB8AA3B
NLOG2E = 0xBFB8AA3B
WF = OPT["w_fl"]

def srd(d, p, nbytes):
    A(f"s_mov_b32 s{d}, s{p}\ns_and_b32 s{d+1}, s{p+1}, 0xffff\ns_mov_b32 s{d+2}, {hex(nbytes)}\ns_mov_b32 s{d+3}, 0x20000")

ts_n = [0]
skip_n = [0]
def ts_reset():
    ts_n[0] = 1 if TS else 0
def ts():
    if not TS: return
    k = ts_n[0]; ts_n[0] += 1
    assert k < 16
    if TS == 3: return
    A(f"s_memrealtime s[72:73]\ns_waitcnt lgkmcnt(0)\nv_writelane_b32 v127, s72, {k}")
def ts_dump():
    if not TS or TS == 5: return
    A("s_mov_b64 exec, -1")
    if TS == 2:
        skip_n[0] += 1
        lb = f"L_sk{skip_n[0]}"
        A(f"s_cmp_lg_u32 s2, {OPT.get('dbgwg', 0)}\ns_cbranch_scc1 {lb}")
        A(f"s_cmp_lg_u32 s30, {OPT.get('dbgwave', 11)}\ns_cbranch_scc1 {lb}")
        srd(76, 26, 256)
        A("v_readlane_b32 s60, v127, 0\ns_nop 1\nv_subrev_u32 v127, s60, v127")
        A("v_lshlrev_b32 v3, 2, v0")
        A("s_mov_b32 exec_lo, 0xffff\ns_mov_b32 exec_hi, 0")
        A("buffer_store_dword v127, v3, s[76:79], 0 offen")
        LB(lb)
        return
    A("s_mul_i32 s60, s2, 12\ns_add_u32 s60, s60, s30\ns_lshl_b32 s60, s60, 6")
    A(f"s_add_u32 s60, s60, {hex(TSB)}")
    A("v_lshlrev_b32 v3, 2, v0")
    A("s_mov_b32 exec_lo, 0xffff\ns_mov_b32 exec_hi, 0")
    A("buffer_store_dword v127, v3, s[44:47], s60 offen")

def tags():
    A("s_add_u32 s58, s56, 0x01010101\ns_add_u32 s59, s57, 0x9e3779b9")
    A("s_and_b32 s88, s58, 0xffff\ns_and_b32 s89, s58, 0xffff0000")

def tagcheck(bases, acc, t0, t1):
    first = True
    for b in bases:
        A(f"v_xor_b32 v{t0}, s58, v{b+1}")
        A(f"v_xor_b32 v{t1}, s59, v{b+3}")
        if first:
            A(f"v_or_b32 v{acc}, v{t0}, v{t1}"); first = False
        else:
            A(f"v_or3_b32 v{acc}, v{acc}, v{t0}, v{t1}")

def tagcheck_dense(bases, acc, t0, t1):
    first = True
    for b in bases:
        A(f"v_perm_b32 v{t0}, v{b+1}, v{b}, s92")
        A(f"v_perm_b32 v{t1}, v{b+3}, v{b+2}, s93")
        A(f"v_xor_b32 v{t0}, s88, v{t0}")
        A(f"v_xor_b32 v{t1}, s89, v{t1}")
        if first:
            A(f"v_or_b32 v{acc}, v{t0}, v{t1}"); first = False
        else:
            A(f"v_or3_b32 v{acc}, v{acc}, v{t0}, v{t1}")

def tagcheck_16(bases, acc, t0, t1):
    for i in range(0, len(bases), 2):
        b0 = bases[i]
        A(f"v_perm_b32 v{t0}, v{b0+1}, v{b0}, s92")
        A(f"v_xor_b32 v{t0}, s88, v{t0}")
        if i + 1 < len(bases):
            b1 = bases[i + 1]
            A(f"v_perm_b32 v{t1}, v{b1+1}, v{b1}, s92")
            A(f"v_xor_b32 v{t1}, s88, v{t1}")
            if i == 0: A(f"v_or_b32 v{acc}, v{t0}, v{t1}")
            else: A(f"v_or3_b32 v{acc}, v{acc}, v{t0}, v{t1}")
        else:
            if i == 0: A(f"v_mov_b32 v{acc}, v{t0}")
            else: A(f"v_or_b32 v{acc}, v{acc}, v{t0}")

def stamp(dst, srcs, tagv):
    for i in range(4):
        A(f"v_perm_b32 v{dst+i}, v{srcs[i]}, v{tagv}, s{94+i}")

def consts():
    A("s_mov_b32 s92, 0x0c0c0400\ns_mov_b32 s93, 0x04000c0c")
    A("s_mov_b32 s94, 0x07060500\ns_mov_b32 s95, 0x07060501\ns_mov_b32 s96, 0x07060502\ns_mov_b32 s97, 0x07060503")

def exec_mask(lo, hi):
    A(f"s_and_b32 exec_lo, s90, {hex(lo)}" if lo != 0xffffffff else "s_mov_b32 exec_lo, s90")
    if hi is not None:
        A(f"s_and_b32 exec_hi, s91, {hex(hi)}" if hi else "s_mov_b32 exec_hi, 0")
def exec_all():
    A("s_mov_b64 exec, s[90:91]")
def memgrp(fn):
    skip_n[0] += 1
    lb = f"L_sk{skip_n[0]}"
    A(f"s_cbranch_execz {lb}")
    fn()
    LB(lb)
def hbar():
    memgrp(lambda: A("s_barrier"))
def dry_end():
    A("s_cbranch_execz L_end")

MIR = MIR_
def ws_srds():
    srd(44, 28, 0x20000000)
    A(f"s_add_u32 s80, s28, {hex(MIR)}\ns_addc_u32 s81, s29, 0\ns_and_b32 s81, s81, 0xffff\ns_mov_b32 s82, {hex(0x20000000-MIR)}\ns_mov_b32 s83, 0x20000")
    A("s_mov_b32 s74, 0")

def publish(data, voff, soff, off=0, dual=True):
    o = f" offset:{off}" if off else ""
    if dual and OPT["dual"]:
        A(f"buffer_store_dwordx4 v[{data}:{data+3}], v{voff}, s[44:47], {soff} offen{o}")
    A(f"buffer_store_dwordx4 v[{data}:{data+3}], v{voff}, s[80:83], {soff} offen{o} sc1")

def poll_check(label, bases, tmp, reissue, chk=tagcheck, grp=1, dual=True):
    dual = dual and OPT["dual"]
    LB(label)
    chk(bases, tmp, tmp + 1, tmp + 2)
    if grp >= 4:
        A(f"s_nop 1\nv_or_b32_dpp v{tmp}, v{tmp}, v{tmp} quad_perm:[1,0,3,2] row_mask:0xf bank_mask:0xf")
        A(f"s_nop 1\nv_or_b32_dpp v{tmp}, v{tmp}, v{tmp} quad_perm:[2,3,0,1] row_mask:0xf bank_mask:0xf")
    if grp >= 8:
        A(f"s_nop 1\nv_or_b32_dpp v{tmp}, v{tmp}, v{tmp} row_half_mirror row_mask:0xf bank_mask:0xf")
    A(f"v_cmp_ne_u32 vcc, 0, v{tmp}")
    A("s_nop 1")
    A(f"s_cbranch_vccz {label}_ok")
    if OPT.get("nopoll"): A(f"s_branch {label}_ok")
    A(f"s_sub_u32 s67, s67, 1\ns_cbranch_scc1 {label}_ok")
    A("s_mov_b64 exec, vcc")
    if OPT["slp"]: A(f"s_sleep {OPT['slp']}")
    if dual:
        A(f"s_add_u32 s74, s74, 1\ns_and_b32 s75, s74, {OPT['bper']-1}\ns_cbranch_scc0 {label}_b")
        reissue("s[44:47]")
        A("s_waitcnt vmcnt(0)")
        A(f"s_branch {label}")
        LB(label + "_b")
    reissue("s[80:83]")
    A("s_waitcnt vmcnt(0)")
    A(f"s_branch {label}")
    LB(label + "_ok")
    exec_all()

def xrow_multi(op, vs, ts_, steps=("v_permlane16_swap_b32", "v_permlane32_swap_b32")):
    for sw in steps:
        for v, t in zip(vs, ts_):
            A(f"v_mov_b32 v{t}, v{v}")
        if len(vs) < 2: A("s_nop 1")
        elif len(vs) < 3: A("s_nop 0")
        for v, t in zip(vs, ts_):
            A(f"{sw} v{v}, v{t}")
        A("s_nop 0")
        for v, t in zip(vs, ts_):
            A(f"{op} v{v}, v{v}, v{t}")

def xrow_t4(v):
    A(f"v_permlane16_swap_b32 v{v}, v{v+1}")
    A(f"v_permlane16_swap_b32 v{v+2}, v{v+3}")
    A("s_nop 0")
    A(f"v_add_f32 v{v}, v{v}, v{v+1}")
    A(f"v_add_f32 v{v+2}, v{v+2}, v{v+3}")
    A("s_nop 1")
    A(f"v_permlane32_swap_b32 v{v}, v{v+2}")
    A("s_nop 0")
    A(f"v_add_f32 v{v}, v{v}, v{v+2}")

def transpose8(raw, dst, pairs=(0, 1, 2, 3)):
    for v in pairs:
        for w in range(4):
            a = raw + 4 * (2 * v) + w
            b = raw + 4 * (2 * v + 1) + w
            A(f"v_perm_b32 v{dst + 4*(2*w) + v}, v{b}, v{a}, s64")
            A(f"v_perm_b32 v{dst + 4*(2*w+1) + v}, v{b}, v{a}, s65")

def bf16_round_pairs(vs, tmp):
    n = len(vs) // 2
    for i in range(n):
        A(f"v_cvt_pk_bf16_f32 v{tmp[i]}, v{vs[2*i]}, v{vs[2*i+1]}")
    for i in range(n):
        A(f"v_lshlrev_b32 v{vs[2*i]}, 16, v{tmp[i]}")
        A(f"v_and_b32 v{vs[2*i+1]}, 0xffff0000, v{tmp[i]}")

def lds_spin(label, addr_v, off, val):
    A(f"s_cbranch_execz {label}_x")
    LB(label)
    A(f"ds_read_b32 v15, v{addr_v} offset:{off}")
    A("s_waitcnt lgkmcnt(0)")
    A("v_readfirstlane_b32 s66, v15")
    A("s_sub_u32 s67, s67, 1")
    A(f"s_cbranch_scc1 {label}_x")
    if OPT.get("lsl") and label in ("L_ispin",): A(f"s_sleep {OPT['lsl']}")
    if OPT.get("ksl") and label in ("L_qspin", "L_mspin", "L_pspin1"):
        A(f"s_cmp_ge_u32 s66, {val}\ns_cbranch_scc1 {label}_x\ns_sleep {OPT['ksl']}")
    A(f"s_cmp_lt_u32 s66, {val}")
    A(f"s_cbranch_scc1 {label}")
    LB(label + "_x")

def lds_spin_data(label, off, val, reads):
    lds_spin(label, 12, off, val)
    reads()
    A("s_waitcnt lgkmcnt(0)")

def rowsum(vs, shifts=(8, 4, 2, 1)):
    for sh in shifts:
        if len(vs) < 3: A("s_nop 1")
        for v in vs:
            A(f"v_add_f32_dpp v{v}, v{v}, v{v} row_ror:{sh} row_mask:0xf bank_mask:0xf")

def dma_voff(dst, stride_sreg_or_shift, t0, t1):
    A(f"v_bfe_u32 v{t0}, v0, 1, 2\nv_bfe_u32 v{t1}, v0, 4, 2\nv_xor_b32 v{t0}, v{t0}, v{t1}")
    A(f"v_and_b32 v{t1}, 1, v0\nv_lshl_add_u32 v{t0}, v{t0}, 1, v{t1}\nv_lshlrev_b32 v{t0}, 4, v{t0}")
    A(f"v_lshrrev_b32 v{t1}, 3, v0")
    if isinstance(stride_sreg_or_shift, int):
        A(f"v_lshl_add_u32 v{dst}, v{t1}, {stride_sreg_or_shift}, v{t0}")
    else:
        A(f"v_mul_lo_u32 v{t1}, v{t1}, {stride_sreg_or_shift}\nv_add_u32 v{dst}, v{t1}, v{t0}")

def tr_addr(dst, q4, t0, t1, base):
    A(f"v_bfe_u32 v{t0}, v0, 3, 2")
    A(f"v_xor_b32 v{t0}, {q4}, v{t0}")
    A(f"v_lshlrev_b32 v{t0}, 5, v{t0}")
    A(f"v_and_b32 v{t1}, 3, v0\nv_lshl_add_u32 v{t0}, v{t1}, 3, v{t0}")
    A(f"v_lshrrev_b32 v{t1}, 2, v0\nv_lshl_add_u32 v{dst}, v{t1}, 7, v{t0}")
    A(f"v_add_u32 v{dst}, {base}, v{dst}")

def tr_read(dst, addr_v, off, t):
    A(f"ds_read_b64_tr_b16 v[{dst}:{dst+1}], v{addr_v} offset:{off + 4096*t}")
    A(f"ds_read_b64_tr_b16 v[{dst+2}:{dst+3}], v{addr_v} offset:{off + 4096*t + 2048}")

def lds_spin2(label, addr_v, off, val):
    A(f"s_cbranch_execz {label}_x")
    LB(label)
    A(f"ds_read_b64 v[14:15], v{addr_v} offset:{off}")
    A("s_waitcnt lgkmcnt(0)")
    A("v_min_u32 v15, v14, v15")
    A("s_sub_u32 s67, s67, 1")
    A("v_readfirstlane_b32 s66, v15")
    A(f"s_cbranch_scc1 {label}_x")
    A(f"s_cmp_lt_u32 s66, {val}")
    A(f"s_cbranch_scc1 {label}")
    LB(label + "_x")

def bump(off):
    exec_mask(1, 0)
    A(f"ds_add_u32 v12, v13 offset:{off}")
    exec_all()

def mfma(d, a, b, c):
    cs = "0" if c is None else f"v[{c}:{c+3}]"
    A(f"v_mfma_f32_16x16x32_bf16 v[{d}:{d+3}], v[{a}:{a+3}], v[{b}:{b+3}], {cs}")

def select4(xs):
    A(f"v_permlane16_swap_b32 v{xs[0]}, v{xs[1]}")
    A(f"v_permlane16_swap_b32 v{xs[2]}, v{xs[3]}")

NWAVES = 16 if OPT["dry"] else 12
L.append(HEADER.rstrip())
L.append(f"; @launch grid=(256,1,1) block=({NWAVES*64},1,1) lds={LDS_BYTES}")
L.append('.amdgcn_target "amdgcn-amd-amdhsa--gfx950"')
L.append(".text")
L.append(f".globl {NAME}\n.p2align 8\n.type {NAME},@function\n{NAME}:")
A("s_cmp_ge_u32 s2, 256\ns_cbranch_scc1 L_end")
if OPT.get("xorwg"): A(f"s_xor_b32 s2, s2, {OPT['xorwg']}")
A("s_load_dwordx16 s[4:19], s[0:1], 0")
A("s_load_dwordx8 s[20:27], s[0:1], 64")
A("s_load_dwordx2 s[28:29], s[0:1], 96")
if TS or OPT.get("diag"): A("s_memrealtime s[72:73]")
A("v_lshrrev_b32 v1, 6, v0")
A("v_and_b32 v0, 63, v0")
A("s_and_b32 s31, s2, 7")
A("v_readfirstlane_b32 s30, v1")
A("s_lshr_b32 s32, s2, 3")
A("s_lshr_b32 s33, s32, 4")
A("s_and_b32 s34, s32, 15")
A(f"s_mov_b32 s67, {OPT['spin']}")
A("s_mov_b64 s[90:91], -1")
A("v_and_b32 v2, 15, v0")
A("v_lshrrev_b32 v3, 4, v0")
A("s_lshr_b32 s52, s32, 3")
A("s_and_b32 s53, s32, 7")
A("s_lshl_b32 s54, s31, 2\ns_add_u32 s54, s54, s52")
A("s_lshl_b32 s50, s33, 3\ns_add_u32 s50, s50, s31\ns_lshl_b32 s50, s50, 23")
A("s_lshl_b32 s51, s34, 16\ns_add_u32 s50, s50, s51\ns_add_u32 s50, s50, 0x700000")
A(f"s_mul_i32 s51, s32, {OPT.get('rotm', 5)}\ns_add_u32 s51, s51, s31")
A("s_cmp_lt_u32 s30, 4\ns_cbranch_scc1 L_special")
if OPT["dry"]: A("s_cmp_ge_u32 s30, 12\ns_cbranch_scc1 L_helper")

def epoch_load():
    if EPO:
        A(f"s_mov_b32 s56, {hex(EPO)}\ns_load_dwordx2 s[56:57], s[28:29], s56")
    else:
        A("s_load_dwordx2 s[56:57], s[28:29], 0")
def fconsts():
    A(f"s_mov_b32 s68, {hex(SCALE)}\ns_mov_b32 s69, {hex(LOG2E)}\ns_mov_b32 s70, {hex(NLOG2E)}")
def ts0():
    if TS: A("v_writelane_b32 v127, s72, 0")

C("================= K / attention waves =================")
ts_reset()
A("s_sub_u32 s35, s30, 4")
A("s_lshl_b32 s62, s35, 1\ns_add_u32 s62, s62, s51")
A("s_add_u32 s63, s62, 1\ns_and_b32 s62, s62, 15\ns_and_b32 s63, s63, 15")
A("s_lshl_b32 s62, s62, 12\ns_lshl_b32 s63, s63, 12")
A("s_add_u32 s61, s50, s63\ns_add_u32 s60, s50, s62")
for u in range(4):
    A(f"v_add_u32 v{104+u}, {4*u}, v3\nv_xor_b32 v{104+u}, v{104+u}, v2\nv_lshlrev_b32 v{104+u}, 4, v{104+u}\nv_lshl_add_u32 v{104+u}, v3, 8, v{104+u}")
A(f"s_lshl_b32 s84, s35, 13\ns_add_u32 s84, s84, {KI}\ns_cmp_eq_u32 s35, 7\ns_cselect_b32 s84, {VI+57344}, s84")
A("s_add_u32 s85, s84, 4096")
A("s_waitcnt lgkmcnt(0)")
ts0()
srd(36, 6, 0x8000000)
KR, QR = 16, 80
KVF = OPT["kv_fl"]
def kload(i):
    t, u = i // 4, i % 4
    if u == 0 or i == OPT["ka"]: A(f"s_mov_b32 m0, s{84+t}\ns_nop 0")
    A(f"buffer_load_dwordx4 v{104+u}, s[36:39], s{60+t} offen offset:{u*1024} {KVF} lds")
def kread(t):
    for j in range(4):
        i = 4 * t + j
        A(f"ds_read_b128 v[{KR+4*i}:{KR+4*i+3}], v{108+j} offset:{4096*t}")
FA = "s[44:47]" if OPT["dual"] else "s[80:83]"
def qgather(sr=FA):
    A(f"buffer_load_dwordx4 v[{QR}:{QR+3}], v6, {sr}, s62 offen sc1")
KA, VB = OPT["ka"], OPT["vb"]
A("s_barrier")
for i in range(KA): kload(i)
ws_srds()
epoch_load()
fconsts(); consts()
A("s_lshl_b32 s62, s31, 1\ns_add_u32 s62, s62, s33\ns_lshl_b32 s62, s62, 13")
A("s_lshl_b32 s63, s35, 8\ns_add_u32 s62, s62, s63")
A(f"s_add_u32 s62, s62, {hex(QX)}")
A("v_lshlrev_b32 v6, 11, v3\nv_lshl_add_u32 v6, v2, 4, v6")
A(f"v_mov_b32 v12, {CNT}\nv_mov_b32 v13, 1")
for j in range(4):
    A(f"v_add_u32 v{108+j}, {4*j}, v3\nv_xor_b32 v{108+j}, v{108+j}, v2\nv_lshlrev_b32 v{108+j}, 4, v{108+j}\nv_lshl_add_u32 v{108+j}, v2, 8, v{108+j}\nv_add_u32 v{108+j}, s84, v{108+j}")
A("v_and_b32 v14, 3, v2")
A(f"s_lshl_b32 s71, s35, 7\ns_add_u32 s71, s71, {QS}")
A("v_lshl_add_u32 v10, v2, 3, s71\nv_lshl_add_u32 v10, v3, 1, v10")
A(f"v_lshlrev_b32 v11, 8, v14\nv_lshl_add_u32 v11, v3, 4, v11\nv_add_u32 v11, {QS}, v11")
A(f"v_lshlrev_b32 v8, 5, v14\nv_add_u32 v8, {MX}, v8")
A("s_lshl_b32 s71, s35, 2\nv_add_u32 v9, s71, v8")
A(f"v_lshl_add_u32 v7, v3, 2, v14\nv_lshlrev_b32 v7, 4, v7\nv_add_u32 v7, {PS}, v7")
A("s_lshl_b32 s71, s35, 8\nv_add_u32 v5, s71, v7")
A("v_bfe_u32 v120, v0, 2, 3\nv_xor_b32 v120, s35, v120\nv_lshlrev_b32 v120, 5, v120")
A("v_and_b32 v121, 3, v0\nv_lshl_add_u32 v120, v121, 3, v120\nv_lshrrev_b32 v121, 2, v0\nv_lshl_add_u32 v120, v121, 8, v120")
A("v_lshlrev_b32 v121, 9, v14\nv_lshl_add_u32 v121, v3, 4, v121")
A(f"s_lshl_b32 s76, s31, 5\ns_add_u32 s49, s76, s32\ns_mul_i32 s49, s49, {OBS}\ns_add_u32 s49, s49, {hex(H1)}")
A("s_lshl_b32 s71, s35, 6\ns_add_u32 s48, s49, s71")
A(f"v_lshrrev_b32 v122, 3, v2\nv_lshl_add_u32 v122, v122, 4, v3\nv_mul_u32_u24 v122, {OBS}, v122")
A("v_and_b32 v123, 7, v2\nv_lshl_add_u32 v122, v123, 4, v122")
A(f"s_mul_i32 s76, s76, {OBS}\ns_add_u32 s76, s76, {hex(H1)}")
A("s_lshl_b32 s71, s52, 9\ns_add_u32 s76, s76, s71\ns_lshl_b32 s71, s35, 7\ns_add_u32 s76, s76, s71")
for i in range(1, 4): A(f"s_add_u32 s{76+i}, s76, {i*4*OBS}")
A(f"s_lshl_b32 s71, s35, 6\ns_add_u32 s71, s71, {OV}")
A("v_lshrrev_b32 v124, 3, v2\nv_lshlrev_b32 v124, 8, v124\nv_lshl_add_u32 v124, v123, 3, v124\nv_lshl_add_u32 v124, v3, 1, v124\nv_add_u32 v124, s71, v124")
A("s_waitcnt lgkmcnt(0)")
tags()
if OPT.get("qw") is not None:
    A(f"s_cmp_lg_u32 s35, {OPT.get('qwave', 0)}\ns_cbranch_scc1 L_noqw")
    A(f"s_waitcnt vmcnt({OPT['qw']})")
    LB("L_noqw")
A("s_barrier")
ts()
for i in range(KA, 8): kload(i)
if OPT["prew"]:
    A("s_not_b32 s71, s58")
    A("v_mov_b32 v100, s71\nv_mov_b32 v101, s71\nv_mov_b32 v102, s71\nv_mov_b32 v103, s71")
    A("v_lshrrev_b32 v101, 8, v101")
    A("s_mov_b32 exec_lo, 0x000f000f\ns_mov_b32 exec_hi, 0x000f000f")
    A(f"buffer_store_dwordx4 v[100:103], v121, {FA}, s48 offen" + ("" if OPT["dual"] else " sc1"))
    A("s_cmp_lg_u32 s35, 7\ns_cbranch_scc1 L_pw1")
    A("v_lshlrev_b32 v104, 4, v2")
    A("s_mov_b32 exec_lo, 0xff\ns_mov_b32 exec_hi, 0")
    A(f"buffer_store_dwordx4 v[100:103], v104, {FA}, s49 offen offset:2048" + ("" if OPT["dual"] else " sc1"))
    LB("L_pw1")
    A("s_mov_b64 exec, -1")
A("s_barrier")
A("s_barrier")
ts()
if not OPT.get("nog"): qgather()
A("s_barrier")
VB2 = OPT.get("vb2", 0)
if VB2:
    A("s_barrier")
    A(f"buffer_load_dwordx4 v[{QR+4}:{QR+7}], v6, {FA}, s62 offen sc1")
    A("s_barrier")
ts()
if OPT.get("prio"): A(f"s_setprio {OPT['prio']}")
LB("L_d0")
if VB2:
    A("s_waitcnt vmcnt(1)")
    tagcheck_dense([QR], 88, 89, 90)
    A("v_cmp_ne_u32 vcc, 0, v88\ns_nop 1\ns_cbranch_vccz L_qchk_ok")
    A("s_waitcnt vmcnt(0)")
    for c in range(4): A(f"v_mov_b32 v{QR+c}, v{QR+4+c}")
    if TS: A("s_mov_b32 s74, 0x100")
else:
    A("s_waitcnt vmcnt(5)")
    kread(0)
    A("s_waitcnt vmcnt(1)")
    kread(1)
    A("s_cmp_lg_u32 s35, 7\ns_cbranch_scc1 L_nok7")
    A("s_waitcnt lgkmcnt(0)")
    bump(O_K7)
    LB("L_nok7")
    A("s_waitcnt vmcnt(0)")
poll_check("L_qchk", [QR], 88, qgather, tagcheck_dense, 4)
if TS: A("v_writelane_b32 v127, s74, 13")
ts()
for c in range(4): A(f"v_and_b32 v{QR+c}, 0xffffff00, v{QR+c}")
A("s_nop 0")
xrow_t4(QR)
A(f"v_cvt_pk_bf16_f32 v{QR}, v{QR}, v{QR}")
A(f"ds_write_b16 v10, v{QR}")
bump(O_Q)
def qreads():
    for j in range(4):
        A(f"ds_read_b128 v[{QR+4*j}:{QR+4*j+3}], v11 offset:{64*j}")
lds_spin_data("L_qspin", O_Q, 8, qreads)
for j in range(4):
    for t in range(2):
        k = KR + 4 * (4 * t + j)
        mfma(96 + 4 * t, k, QR + 4 * j, None if j == 0 else 96 + 4 * t)
A("s_nop 7\ns_nop 1")
S = list(range(96, 104))
bf16_round_pairs(S, [112, 113, 114, 115])
for v in S: A(f"v_mul_f32 v{v}, s68, v{v}")
bf16_round_pairs(S, [112, 113, 114, 115])
A("v_max3_f32 v116, v96, v97, v98\nv_max3_f32 v116, v116, v99, v100\nv_max3_f32 v116, v116, v101, v102\nv_max_f32 v116, v116, v103")
xrow_multi("v_max_f32", [116], [117])
exec_mask(0xf, 0)
A("ds_write_b32 v9, v116")
bump(O_M)
lds_spin_data("L_mspin", O_M, 8, lambda: A("ds_read_b128 v[104:107], v8\nds_read_b128 v[108:111], v8 offset:16"))
A("v_max3_f32 v116, v104, v105, v106\nv_max3_f32 v116, v116, v107, v108\nv_max3_f32 v116, v116, v109, v110\nv_max_f32 v116, v116, v111")
A("v_mul_f32 v117, s70, v116")
for v in S: A(f"v_fma_f32 v{v}, v{v}, s69, v117")
for v in S: A(f"v_exp_f32 v{v}, v{v}")
A("v_or_b32 v125, s88, v116")
for i in range(4): A(f"v_cvt_pk_bf16_f32 v{112+i}, v{96+2*i}, v{97+2*i}")
A("v_add_f32 v117, v96, v97\nv_add_f32 v118, v98, v99\nv_add_f32 v119, v100, v101\nv_add_f32 v104, v102, v103")
A("v_add_f32 v117, v117, v118\nv_add_f32 v119, v119, v104\nv_add_f32 v117, v117, v119")
exec_mask(0x000f000f, 0x000f000f)
A("ds_write_b128 v5, v[112:115]")
exec_all()
xrow_multi("v_add_f32", [117], [118])
exec_mask(0xf, 0)
A("ds_write_b32 v9, v117 offset:128")
bump(O_P)
PR, VO = 16, 48
def preads():
    A(f"ds_read_b64 v[118:119], v12 offset:{O_VL}")
    for k in range(8):
        A(f"ds_read_b128 v[{PR+4*k}:{PR+4*k+3}], v7 offset:{256*k}")
lds_spin_data("L_pspin1", O_P, 8, preads)
A("v_min_u32 v118, v118, v119")
A("s_nop 0")
A("v_readfirstlane_b32 s71, v118")
A("s_cmp_lg_u32 s35, 7\ns_cbranch_scc1 L_nol")
A("ds_read_b128 v[104:107], v8 offset:128\nds_read_b128 v[108:111], v8 offset:144")
A("v_lshlrev_b32 v10, 4, v2")
A("v_mov_b32 v97, s58\nv_mov_b32 v98, v116\nv_mov_b32 v99, s59")
A("s_waitcnt lgkmcnt(0)")
A("v_add_f32 v104, v104, v105\nv_add_f32 v106, v106, v107\nv_add_f32 v108, v108, v109\nv_add_f32 v110, v110, v111")
A("v_add_f32 v104, v104, v106\nv_add_f32 v108, v108, v110\nv_add_f32 v96, v104, v108")
exec_mask(0xf, 0)
memgrp(lambda: publish(96, 10, "s49", 2048))
exec_all()
LB("L_nol")
ts()
dry_end()
LB("L_d1")
def vstep(ks, first):
    for k in ks:
        A(f"ds_read_b64_tr_b16 v[{VO+4*k}:{VO+4*k+1}], v120 offset:{VI + 8192*k}")
        A(f"ds_read_b64_tr_b16 v[{VO+4*k+2}:{VO+4*k+3}], v120 offset:{VI + 8192*k + 4096}")
    for i, k in enumerate(ks):
        A(f"s_waitcnt lgkmcnt({2*(len(ks)-1-i)})")
        mfma(80, VO + 4 * k, PR + 4 * k, None if (first and i == 0) else 80)
A("s_cmp_lt_u32 s71, 7\ns_cbranch_scc1 L_vinc")
vstep([0, 1, 2, 3, 4, 5, 6], True)
A("s_cbranch_execnz L_vlast")
LB("L_vinc")
lds_spin2("L_v1", 12, O_VL, 4)
vstep([0, 1, 2, 3], True)
lds_spin2("L_v2", 12, O_VL, 6)
vstep([4, 5], False)
lds_spin2("L_v3", 12, O_VL, 7)
vstep([6], False)
LB("L_vlast")
hbar()
ts()
vstep([7], False)
exec_mask(0x000f000f, 0x000f000f)
A("s_nop 5")
stamp(84, [80, 81, 82, 83], 125)
memgrp(lambda: publish(84, 121, "s48"))
exec_all()
hbar()
ts()
A("s_cmp_ge_u32 s35, 4\ns_cbranch_scc1 L_kv_h2")
GR = 80
def h1gather(sr=FA):
    for i in range(4):
        A(f"buffer_load_dwordx4 v[{GR+4*i}:{GR+4*i+3}], v122, {sr}, s{76+i} offen sc1")
ts()
memgrp(h1gather)
A("s_waitcnt vmcnt(0)")
ts()
poll_check("L_h1chk", [GR + 4 * i for i in range(4)], 116, h1gather, tagcheck_16, 8)
ts()
for i in range(4): A(f"v_perm_b32 v{100+i}, v{GR+4*i+3}, v{GR+4*i+2}, s93")
A("v_max3_f32 v116, v100, v101, v102\nv_max_f32 v116, v116, v103")
xrow_multi("v_max_f32", [116], [117])
A("v_mul_f32 v117, s70, v116")
for i in range(4): A(f"v_fma_f32 v{100+i}, v{100+i}, s69, v117")
for i in range(4): A(f"v_exp_f32 v{100+i}, v{100+i}")
for c in range(16): A(f"v_and_b32 v{GR+c}, 0xffffff00, v{GR+c}")
for c in range(4): A(f"v_mul_f32 v{104+c}, v100, v{GR+c}")
for i in range(1, 4):
    for c in range(4): A(f"v_fmac_f32 v{104+c}, v{100+i}, v{GR+4*i+c}")
A("s_nop 0")
xrow_t4(104)
A("v_cvt_pk_bf16_f32 v104, v104, v104")
A("ds_write_b16 v124, v104")
A("s_waitcnt lgkmcnt(0)")
hbar()
ts()
dry_end()
A("s_branch L_kv_done")
LB("L_kv_h2")
A("s_cmp_lg_u32 s35, 7\ns_cbranch_scc1 L_kv_bo")
A("s_cmp_ge_u32 s2, 128\ns_cbranch_scc1 L_kv_bo")
LB("L_d2")
if TS: ts_n[0] = 12
srd(48, 24, 2048)
A("s_lshl_b32 s60, s2, 11")
A(f"s_add_u32 s60, s60, {hex(H2)}")
A("v_lshlrev_b32 v5, 4, v0")
def h2gather(sr="s[80:83]"):
    A(f"buffer_load_dwordx4 v[16:19], v5, {sr}, s60 offen sc1")
    A(f"buffer_load_dwordx4 v[20:23], v5, {sr}, s60 offen offset:1024 sc1")
A("v_mov_b32 v8, 0")
A("s_lshl_b32 s62, s2, 3")
hbar()
memgrp(h2gather)
A("s_waitcnt vmcnt(0)")
poll_check("L_h2chk", [16, 20], 24, h2gather, dual=False)
ts()
A("v_add_f32 v16, v16, v20\nv_add_f32 v18, v18, v22")
rowsum([16, 18], shifts=(8, 4))
xrow_multi("v_add_f32", [16, 18], [17, 19])
A("s_nop 0")
for i, qp in enumerate(("[1,1,1,1]", "[2,2,2,2]", "[3,3,3,3]")):
    A(f"v_mov_b32_dpp v{24+i}, v16 quad_perm:{qp} row_mask:0xf bank_mask:0xf")
    A(f"v_mov_b32_dpp v{28+i}, v18 quad_perm:{qp} row_mask:0xf bank_mask:0xf")
A("v_cvt_pk_bf16_f32 v32, v16, v24\nv_cvt_pk_bf16_f32 v33, v25, v26")
A("v_cvt_pk_bf16_f32 v34, v18, v28\nv_cvt_pk_bf16_f32 v35, v29, v30")
exec_mask(1, 0)
if OPT["dry"]: A("s_cbranch_execz L_spre")
A("buffer_store_dwordx2 v[32:33], v8, s[48:51], s62 offen")
A("buffer_store_dwordx2 v[34:35], v8, s[48:51], s62 offen offset:1024")
if OPT.get("diag"):
    A(f"v_readlane_b32 s73, v127, {OPT['diag']}\nv_readlane_b32 s99, v127, {OPT.get('diag0', 0)}")
    A("s_memrealtime s[100:101]\ns_waitcnt lgkmcnt(0)")
    A(f"s_sub_u32 s73, s73, s99\ns_mul_i32 s73, s73, {OPT.get('diagm', 8)}\ns_add_u32 s73, s73, s100")
    LB("L_diag")
    A("s_memrealtime s[98:99]\ns_waitcnt lgkmcnt(0)\ns_sub_u32 s99, s98, s73\ns_cmp_lt_i32 s99, 0\ns_cbranch_scc1 L_diag")
A("s_cmp_lg_u32 s2, 0\ns_cbranch_scc1 L_kv_done")
A("v_mov_b32 v36, s58\nv_mov_b32 v37, s59")
A(f"s_mov_b32 s62, {hex(EPO)}")
A("buffer_store_dwordx2 v[36:37], v8, s[44:47], s62 offen sc1")
A("s_branch L_kv_done")
LB("L_kv_bo")
A("s_barrier")
LB("L_kv_done")
if TS:
    A("s_memrealtime s[72:73]\ns_waitcnt lgkmcnt(0)\nv_writelane_b32 v127, s72, 15")
ts_dump()
A("s_endpgm")

if OPT["dry"]:
    LB("L_helper")
    C("================= dry-run helpers: warm the instruction cache =================")
    if OPT.get("cpf"):
        A("s_getpc_b64 s[60:61]")
        LB("L_pc")
        A(f"s_sub_u32 s60, s60, L_pc-{NAME}\ns_subb_u32 s61, s61, 0")
        A(f"s_sub_u32 s62, s30, 12\ns_mul_i32 s62, s62, {OPT['cpf']*128}\ns_add_u32 s60, s60, s62\ns_addc_u32 s61, s61, 0")
        for i in range(OPT["cpf"]): A(f"s_load_dword s{36+(i%8)}, s[60:61], {128*i}")
    A("s_barrier")
    for v in list(range(4, 16)) + list(range(104, 112)) + [120, 121, 122, 123, 124]: A(f"v_mov_b32 v{v}, 0")
    A("s_waitcnt lgkmcnt(0)")
    ws_srds()
    A("s_mov_b64 s[90:91], 0\ns_mov_b64 exec, 0")
    A("s_mov_b32 s35, 7\ns_mov_b32 s48, 0\ns_mov_b32 s49, 1\ns_mov_b32 s60, 0\ns_mov_b32 s61, 0\ns_mov_b32 s62, 0\ns_mov_b32 s63, 0")
    A("s_cmp_eq_u32 s30, 12\ns_cbranch_scc1 L_d0")
    A("s_cmp_eq_u32 s30, 14\ns_cbranch_scc1 L_d2")
    A("s_cmp_eq_u32 s30, 15\ns_cbranch_scc1 L_d3")
    A("s_mov_b32 s35, 0\ns_mov_b32 s71, 8")
    A("s_branch L_d1")
    LB("L_spre")
    if OPT["spre"]:
        A(f"s_lshl_b32 s60, s31, 5\ns_add_u32 s60, s60, s32\ns_mul_i32 s60, s60, {OBS}\ns_add_u32 s60, s60, {hex(H1)}")
        A("s_add_u32 s62, s28, s60\ns_addc_u32 s63, s29, 0")
        if OPT["spre"] & 1:
            for i in range(17): A(f"s_load_dword s{4+(i%8)}, s[62:63], {128*i}")
        A(f"s_lshl_b32 s60, s2, 11\ns_add_u32 s60, s60, {hex(H2+MIR)}")
        A("s_add_u32 s62, s28, s60\ns_addc_u32 s63, s29, 0")
        if OPT["spre"] & 2:
            A("s_cmp_ge_u32 s2, 128\ns_cbranch_scc1 L_end")
            for i in range(16): A(f"s_load_dword s{4+(i%8)}, s[62:63], {128*i}")
    A("s_endpgm")

LB("L_special")
C("================= special waves =================")
ts_reset()
A("s_and_b32 s49, s54, 7\ns_cmp_lg_u32 s49, 7\ns_cselect_b32 s49, 1, 0")
A("s_lshr_b32 s55, s54, 3\ns_sub_u32 s55, s54, s55")
A("v_and_b32 v6, 1, v2\nv_lshlrev_b32 v6, 10, v6\nv_lshl_add_u32 v6, v3, 3, v6")
A("s_cmp_eq_u32 s30, 0\ns_cbranch_scc1 L_w0")
A("s_cmp_eq_u32 s30, 1\ns_cbranch_scc1 L_w1")
A("s_cmp_eq_u32 s30, 3\ns_cbranch_scc1 L_w3")
A("s_waitcnt lgkmcnt(0)")
ts0()
ws_srds()
epoch_load()
if OPT.get("tlbw", 0):
    A("v_mov_b32 v4, 0")
    A("s_mov_b32 exec_lo, 1\ns_mov_b32 exec_hi, 0")
    srd(36, 24, 2048)
    A("buffer_load_dword v16, v4, s[36:39], 0 offen")
    srd(40, 8, 0x8000000)
    A(f"buffer_load_dword v17, v4, s[40:43], s50 offen {KVF}")
    srd(76, 12, 0x400000)
    A("s_lshl_b32 s60, s54, 17")
    A(f"buffer_load_dword v18, v4, s[76:79], s60 offen {WF}")
    srd(84, 20, 1792 * 1024)
    A("s_lshl_b32 s60, s55, 16")
    A(f"buffer_load_dword v19, v4, s[84:87], s60 offen {WF}")
    A("s_mov_b64 exec, -1")
A("s_barrier")
fconsts(); consts()
A("s_waitcnt lgkmcnt(0)")
tags()
A("s_branch L_vload")

LB("L_w3")
A("v_lshlrev_b32 v5, 4, v0")
A(f"v_mov_b32 v4, {CNT}\nv_mov_b32 v8, 0\nv_mov_b32 v9, 0\nv_mov_b32 v10, 0\nv_mov_b32 v11, 0")
A("ds_write_b128 v4, v[8:11]")
A("ds_write_b128 v4, v[8:11] offset:16")
A("ds_write_b128 v4, v[8:11] offset:32")
A("s_waitcnt lgkmcnt(0)")
ts0()
srd(36, 4, 2048)
srd(40, 22, 1024)
A("buffer_load_dwordx4 v[16:19], v5, s[36:39], 0 offen")
A("buffer_load_dwordx4 v[20:23], v5, s[36:39], 0 offen offset:1024")
A("buffer_load_dwordx4 v[24:27], v5, s[40:43], 0 offen")
A("s_barrier")
ws_srds()
epoch_load()
fconsts(); consts()
A("s_waitcnt vmcnt(0)")
for src, dst in ((24, 32), (16, 40), (20, 48)):
    for w in range(4):
        A(f"v_lshlrev_b32 v{dst+2*w}, 16, v{src+w}\nv_and_b32 v{dst+2*w+1}, 0xffff0000, v{src+w}")
for b in range(2):
    for e in range(8):
        A(f"v_mul_f32 v{40+8*b+e}, v{40+8*b+e}, v{32+e}")
bf16_round_pairs(list(range(40, 56)), list(range(16, 24)))
for b in range(2):
    o = 40 + 8 * b
    A(f"v_add_f32 v{o}, v{o}, v{o+1}\nv_add_f32 v{o+2}, v{o+2}, v{o+3}\nv_add_f32 v{o+4}, v{o+4}, v{o+5}\nv_add_f32 v{o+6}, v{o+6}, v{o+7}")
    A(f"v_add_f32 v{o}, v{o}, v{o+2}\nv_add_f32 v{o+4}, v{o+4}, v{o+6}\nv_add_f32 v{o}, v{o}, v{o+4}")
rowsum([40, 48])
xrow_multi("v_add_f32", [40, 48], [41, 49])
A("v_mov_b32 v41, v48")
bf16_round_pairs([40, 41], [16])
A("v_mul_f32 v40, s70, v40\nv_mul_f32 v41, s70, v41")
A("v_exp_f32 v40, v40\nv_exp_f32 v41, v41")
A("s_nop 0")
A("v_add_f32 v40, 1.0, v40\nv_add_f32 v41, 1.0, v41")
A("v_rcp_f32 v40, v40\nv_rcp_f32 v41, v41")
A("s_nop 0")
bf16_round_pairs([40, 41], [16])
A("v_sub_f32 v42, 1.0, v40\nv_sub_f32 v43, 1.0, v41")
bf16_round_pairs([42, 43], [16])
A(f"v_mov_b32 v4, {GT}")
A("ds_write_b128 v4, v[40:43]")
A("s_waitcnt lgkmcnt(0)")
tags()

LB("L_vload")
srd(40, 8, 0x8000000)
A("s_sub_u32 s35, s30, 2")
A("s_lshl_b32 s60, s35, 2\nv_add_u32 v4, s60, v3\nv_lshrrev_b32 v5, 1, v2\nv_xor_b32 v4, v4, v5")
A("v_and_b32 v5, 1, v2\nv_lshl_add_u32 v4, v4, 1, v5\nv_lshlrev_b32 v4, 4, v4\nv_lshl_add_u32 v4, v3, 8, v4")
A("s_lshl_b32 s61, s35, 10\ns_add_u32 s62, s50, s61")
A("s_and_b32 s60, s51, 15\ns_lshl_b32 s60, s60, 12")
A(f"v_mov_b32 v12, {CNT}\nv_mov_b32 v13, 1")
A(f"s_lshl_b32 s63, s35, 2\ns_add_u32 s63, s63, {CNT+O_VL}\nv_mov_b32 v11, s63")
A("v_mov_b32 v8, 4\nv_mov_b32 v9, 6\nv_mov_b32 v10, 8\nv_mov_b32 v7, 7")
def vblk(i):
    A(f"s_add_u32 s63, s62, s60\ns_add_u32 m0, s61, {VI + 4096*i}")
    A("s_add_u32 s60, s60, 4096\ns_and_b32 s60, s60, 0xffff")
    A(f"buffer_load_dwordx4 v4, s[40:43], s63 offen {KVF} lds")
    A(f"buffer_load_dwordx4 v4, s[40:43], s63 offen offset:2048 {KVF} lds")
if OPT.get("vearly"):
    A("s_barrier")
    for i in range(2 * VB): vblk(i)
    A("s_barrier\ns_barrier\ns_barrier")
else:
    A("s_barrier\ns_barrier")
    for i in range(2 * VB): vblk(i)
    A("s_barrier\ns_barrier")
IB = OPT.get("ib", 16)
for i in range(2 * VB, 17):
    if VB2 and i == 2 * VB + VB2: A("s_barrier\ns_barrier")
    if i == max(IB, 2 * VB):
        A("s_mov_b32 exec_lo, 1\ns_mov_b32 exec_hi, 0")
        A(f"ds_add_u32 v12, v13 offset:{O_I}")
        A("s_mov_b64 exec, -1")
    if OPT.get("w1e") and i == OPT.get("hb", 6):
        A("s_mov_b32 exec_lo, 1\ns_mov_b32 exec_hi, 0")
        A(f"ds_add_u32 v12, v13 offset:{O_V}")
        A("s_mov_b64 exec, -1")
    if i == 14: lds_spin("L_k7spin", 12, O_K7, 1)
    if i < 16: vblk(i)
A("s_mov_b32 exec_lo, 1\ns_mov_b32 exec_hi, 0")
ts()
A("s_waitcnt vmcnt(16)")
A("ds_write_b32 v11, v8")
ts()
A("s_waitcnt vmcnt(8)")
A("ds_write_b32 v11, v9")
A("s_waitcnt vmcnt(4)")
A("ds_write_b32 v11, v7")
A("s_mov_b64 exec, -1")
A("s_waitcnt vmcnt(0)")
A("s_barrier")
ts()
A("s_branch L_final")

LB("L_w0")
ts_reset()
if OPT.get("w0p"): A("s_setprio 3")
dma_voff(4, 13, 8, 9)
A("s_lshl_b32 s60, s52, 20\ns_lshl_b32 s61, s31, 10\ns_add_u32 s60, s60, s61\ns_lshl_b32 s61, s53, 7\ns_add_u32 s60, s60, s61")
A("s_lshl_b32 s61, s52, 8")
A("s_waitcnt lgkmcnt(0)")
ts0()
srd(40, 10, 0x400000)
for i in range(16):
    A(f"s_mov_b32 m0, {WQI+1024*i}")
    if i: A(f"s_add_u32 s60, s60, {8*8192}")
    else: A("s_nop 0")
    A(f"buffer_load_dwordx4 v4, s[40:43], s60 offen {WF} lds")
srd(36, 4, 2048)
XA, BB, AC = 16, 32, 96
for t in range(4):
    A(f"buffer_load_dwordx2 v[{XA+4*t}:{XA+4*t+1}], v6, s[36:39], s61 offen offset:{64*t}")
    A(f"buffer_load_dwordx2 v[{XA+4*t+2}:{XA+4*t+3}], v6, s[36:39], s61 offen offset:{64*t+32}")
A("s_barrier")
ws_srds()
epoch_load()
fconsts(); consts()
for q4 in range(4): tr_addr(8 + q4, q4, 12, 13, WQI)
A(f"v_lshlrev_b32 v12, 2, v0\nv_add_u32 v12, {QT}, v12\nv_and_b32 v13, 31, v0\nv_lshlrev_b32 v13, 4, v13\nv_add_u32 v13, {QT}, v13")
A("v_and_b32 v14, 1, v3\nv_lshlrev_b32 v14, 13, v14\nv_lshl_add_u32 v14, v2, 4, v14")
A("s_lshl_b32 s62, s31, 14\ns_lshl_b32 s63, s52, 11\ns_add_u32 s62, s62, s63\ns_lshl_b32 s63, s53, 8\ns_add_u32 s62, s62, s63")
A(f"s_add_u32 s62, s62, {hex(QX)}")
A("s_waitcnt lgkmcnt(0)")
tags()
A("v_mov_b32 v5, s58")
A("s_waitcnt vmcnt(0)")
ts()
seq = [(q4, t) for q4 in range(4) for t in range(4)]
D = 6
def issue(k):
    q4, t = seq[k]; tr_read(BB + 4 * k, 8 + q4, 0, t)
for k in range(D): issue(k)
for k in range(16):
    q4, t = seq[k]
    A(f"s_waitcnt lgkmcnt({2*(min(16,k+D)-k)-2})")
    mfma(AC + 4 * q4, XA + 4 * t, BB + 4 * k, None if t == 0 else AC + 4 * q4)
    if k + D < 16: issue(k + D)
A("s_nop 7\ns_nop 1")
for r in range(2): select4([AC + 4 * q + r for q in range(4)])
A("s_nop 0")
for r in range(2): A(f"v_permlane32_swap_b32 v{AC+r}, v{AC+8+r}")
A("s_nop 0")
A(f"ds_write_b32 v12, v{AC}\nds_write_b32 v12, v{AC+1} offset:256")
A("ds_read_b128 v[116:119], v13")
A("s_waitcnt lgkmcnt(0)")
stamp(112, [116, 117, 118, 119], 5)
A("s_mov_b32 exec_hi, 0")
if not OPT.get("nos"): publish(112, 14, "s62")
A("s_mov_b64 exec, -1")
ts()
A("s_barrier")
srd(36, 12, 0x400000)
srd(40, 20, 1792 * 1024)
dma_voff(4, 10, 8, 9)
if OPT.get("cshift"):
    A(f"s_add_u32 s63, s53, {OPT['cshift']}\ns_and_b32 s63, s63, 7\ns_lshl_b32 s63, s63, 7\ns_lshl_b32 s60, s54, 17\ns_add_u32 s60, s60, s63")
else:
  A("s_lshl_b32 s60, s54, 17\ns_lshl_b32 s63, s53, 7\ns_add_u32 s60, s60, s63")
A("s_lshl_b32 s61, s55, 16\ns_add_u32 s61, s61, s63")
A(f"v_mov_b32 v12, {CNT}\nv_mov_b32 v8, 1\nv_mov_b32 v9, 2\nv_mov_b32 v10, 3")
A("s_barrier\ns_barrier\ns_barrier")
if VB2: A("s_barrier\ns_barrier")
lds_spin("L_ispin", 12, O_I, 2)
ts()
A("s_cmp_eq_u32 s49, 0\ns_cbranch_scc1 L_w0_nowd")
for i in range(8):
    A(f"s_mov_b32 m0, {WDI+1024*i}")
    if i: A(f"s_add_u32 s61, s61, {8*1024}")
    else: A("s_nop 0")
    A(f"buffer_load_dwordx4 v4, s[40:43], s61 offen {WF} lds")
LB("L_w0_nowd")
for i in range(16):
    A(f"s_mov_b32 m0, {WOI+1024*i}")
    if i: A(f"s_add_u32 s60, s60, {8*1024}")
    else: A("s_nop 0")
    A(f"buffer_load_dwordx4 v4, s[36:39], s60 offen {WF} lds")
ts()
A("s_barrier\ns_barrier")
A("s_waitcnt vmcnt(16)")
A(f"ds_write_b32 v12, v8 offset:{O_STAGE}")
ts()
A("s_waitcnt vmcnt(8)")
A(f"ds_write_b32 v12, v9 offset:{O_STAGE}")
ts()
A("s_waitcnt vmcnt(0)")
A(f"ds_write_b32 v12, v10 offset:{O_STAGE}")
ts()
A("s_mov_b32 s75, 1")
A("s_branch L_final0")

LB("L_w1_idle")
A("s_waitcnt lgkmcnt(0)")
ts0()
ws_srds()
epoch_load()
A("s_barrier")
fconsts(); consts()
A("s_waitcnt lgkmcnt(0)")
tags()
A("s_barrier\ns_barrier\ns_barrier\ns_barrier")
if VB2: A("s_barrier\ns_barrier")
A("s_barrier")
A("s_branch L_final")
LB("L_w1")
ts_reset()
A("s_cmp_eq_u32 s49, 0\ns_cbranch_scc1 L_w1_idle")
A("s_movk_i32 s60, 3584")
dma_voff(4, "s60", 8, 9)
A("s_mul_i32 s60, s53, 64*3584\ns_lshl_b32 s61, s55, 7\ns_add_u32 s60, s60, s61")
A("s_lshl_b32 s61, s53, 7")
A("s_waitcnt lgkmcnt(0)")
ts0()
srd(36, 16, 512 * 3584)
srd(40, 18, 512 * 3584)
for i in range(8):
    A(f"s_mov_b32 m0, {GI+1024*i}")
    if i: A(f"s_add_u32 s60, s60, {8*3584}")
    else: A("s_nop 0")
    A(f"buffer_load_dwordx4 v4, s[36:39], s60 offen {WF} lds")
    A(f"s_mov_b32 m0, {UI+1024*i}\ns_nop 0")
    A(f"buffer_load_dwordx4 v4, s[40:43], s60 offen {WF} lds")
srd(76, 4, 2048)
for t in range(2):
    A(f"buffer_load_dwordx2 v[{XA+4*t}:{XA+4*t+1}], v6, s[76:79], s61 offen offset:{64*t}")
    A(f"buffer_load_dwordx2 v[{XA+4*t+2}:{XA+4*t+3}], v6, s[76:79], s61 offen offset:{64*t+32}")
A("s_barrier")
ws_srds()
epoch_load()
fconsts(); consts()
for q4 in range(4): tr_addr(8 + q4, q4, 12, 13, GI)
A("v_lshlrev_b32 v5, 4, v0")
A("s_lshl_b32 s62, s55, 13")
A(f"s_add_u32 s62, s62, {hex(HX)}")
A("s_lshl_b32 s63, s53, 10\ns_add_u32 s63, s63, s62")
A("s_add_u32 s61, s62, 4096")
A(f"v_lshlrev_b32 v12, 1, v0\nv_add_u32 v12, {HS}, v12")
A(f"v_mov_b32 v13, {CNT+O_H}\nv_mov_b32 v14, 1")
A("s_waitcnt lgkmcnt(0)")
tags()
A("v_mov_b32 v4, s58")
if OPT.get("w1e"): A("s_barrier")
A("s_waitcnt vmcnt(0)")
ts()
seq = [(mat, q4, t) for mat in range(2) for q4 in range(4) for t in range(2)]
BB1 = 24
AC1 = 88
def issue(k):
    mat, q4, t = seq[k]; tr_read(BB1 + 4 * k, 8 + q4, (UI - GI) if mat else 0, t)
for k in range(D): issue(k)
for k in range(16):
    mat, q4, t = seq[k]
    A(f"s_waitcnt lgkmcnt({2*(min(16,k+D)-k)-2})")
    acc = AC1 + 16 * mat + 4 * q4
    mfma(acc, XA + 4 * t, BB1 + 4 * k, None if t == 0 else acc)
    if k + D < 16: issue(k + D)
A("s_nop 7\ns_nop 1")
for mat in range(2):
    for r in range(2): select4([AC1 + 16 * mat + 4 * q + r for q in range(4)])
A("s_nop 0")
for mat in range(2):
    for r in range(2): A(f"v_permlane32_swap_b32 v{AC1+16*mat+r}, v{AC1+16*mat+8+r}")
A("s_nop 0")
stamp(120, [AC1, AC1 + 1, AC1 + 16, AC1 + 17], 4)
if not OPT.get("nos"): publish(120, 5, "s63")
ts()
if OPT.get("w1e"): A("s_barrier\ns_barrier")
else: A("s_barrier\ns_barrier\ns_barrier")
HG = 16
def hgather(sr=FA):
    for rb in range(8):
        r = HG + 4 * rb
        A(f"buffer_load_dwordx4 v[{r}:{r+3}], v5, {sr}, s{62 - rb//4} offen offset:{(rb%4)*1024} sc1")
if VB2: A("s_barrier\ns_barrier")
if OPT.get("w1e"):
    A("s_barrier")
    A(f"v_mov_b32 v11, {CNT}")
    lds_spin("L_hw", 11, O_V, 2)
    hgather()
else:
    if not OPT.get("nog"): hgather()
    A("s_barrier")
ts()
LB("L_d3")
A("s_waitcnt vmcnt(0)")
poll_check("L_hchk", [HG + 4 * i for i in range(8)], 96, hgather, tagcheck_dense, 4)
ts()
for c in range(32): A(f"v_and_b32 v{HG+c}, 0xffffff00, v{HG+c}")
for step in (16, 8, 4):
    for base in range(HG, HG + step, 4):
        for o in range(4):
            A(f"v_add_f32 v{base+o}, v{base+o}, v{base+step+o}")
bf16_round_pairs([16, 17, 18, 19], [24, 25])
A("v_mul_f32 v24, s70, v16\nv_mul_f32 v25, s70, v17")
A("v_exp_f32 v24, v24\nv_exp_f32 v25, v25")
A("s_nop 0")
A("v_add_f32 v24, 1.0, v24\nv_add_f32 v25, 1.0, v25")
A("v_rcp_f32 v24, v24\nv_rcp_f32 v25, v25")
A("s_nop 0")
A("v_mul_f32 v16, v16, v24\nv_mul_f32 v17, v17, v25")
bf16_round_pairs([16, 17], [24])
A("v_mul_f32 v16, v16, v18\nv_mul_f32 v17, v17, v19")
A("v_cvt_pk_bf16_f32 v24, v16, v17")
A("ds_write_b16 v12, v24")
A("ds_write_b16_d16_hi v12, v24 offset:128")
A("ds_write_b32 v13, v14")
ts()
hbar()

LB("L_final")
A("s_mov_b32 s75, 0")
LB("L_final0")
if TS: ts_n[0] = 8
tr_addr(8, "s30", 12, 13, WOI)
A(f"v_mov_b32 v12, {CNT}")
A(f"v_and_b32 v9, 1, v2\nv_lshlrev_b32 v10, 7, v9\nv_lshl_add_u32 v10, v3, 3, v10\nv_add_u32 v10, {HS}, v10")
A(f"v_lshlrev_b32 v9, 8, v9\nv_lshl_add_u32 v9, v3, 3, v9\nv_add_u32 v9, {OV}, v9")
A("v_lshrrev_b32 v11, 2, v2\nv_lshlrev_b32 v11, 11, v11\nv_and_b32 v13, 3, v2\nv_lshl_add_u32 v11, v13, 4, v11")
A("s_lshl_b32 s60, s53, 15\ns_lshl_b32 s61, s30, 13\ns_add_u32 s60, s60, s61\ns_lshl_b32 s61, s54, 6\ns_add_u32 s60, s60, s61")
A(f"s_add_u32 s60, s60, {hex(H2)}")
A(f"v_and_b32 v7, 31, v0\nv_mul_u32_u24 v7, {OBS}, v7")
A(f"s_mul_i32 s61, s31, {32*OBS}\ns_lshl_b32 s62, s52, 4\ns_add_u32 s61, s61, s62")
A(f"s_add_u32 s61, s61, {hex(H1+2048)}")
A(f"v_mov_b32 v13, {GT}")
A("ds_read_b128 v[60:63], v13")
A("v_mov_b32 v65, s58\nv_mov_b32 v67, s59")
A("v_mov_b32 v56, 0\nv_mov_b32 v57, 0")
A("s_cmp_eq_u32 s75, 1\ns_cbranch_scc1 L_nobp")
hbar()
LB("L_nobp")
def lgather(sr=FA):
    A(f"buffer_load_dwordx4 v[68:71], v7, {sr}, s61 offen sc1")
memgrp(lgather)
A("s_cmp_eq_u32 s49, 0\ns_cbranch_scc1 L_f_nofb")
lds_spin("L_fs1", 12, O_STAGE, 1)
for t in range(2): tr_read(16 + 4 * t, 8, WDI - WOI, t)
lds_spin("L_fs2", 12, O_H, 1)
for t in range(2):
    A(f"ds_read2_b64 v[{24+4*t}:{27+4*t}], v10 offset0:{8*t} offset1:{8*t+4}")
A("s_waitcnt lgkmcnt(0)")
mfma(56, 24, 16, None)
mfma(56, 28, 20, 56)
A("s_nop 7\ns_nop 1")
A("v_mul_f32 v56, v56, v62\nv_mul_f32 v57, v57, v63")
LB("L_f_nofb")
ts()
lds_spin("L_fs3", 12, O_STAGE, 3)
for t in range(4): tr_read(16 + 4 * t, 8, 0, t)
ts()
A("s_waitcnt vmcnt(0)")
poll_check("L_lchk", [68], 72, lgather)
A("v_mov_b32 v72, v70")
A("v_mov_b32 v73, v70")
for sh in (8, 4, 2, 1):
    A("s_nop 1")
    A(f"v_max_f32_dpp v73, v73, v73 row_ror:{sh} row_mask:0xf bank_mask:0xf")
A("v_sub_f32 v72, v72, v73\nv_mul_f32 v72, s69, v72\nv_exp_f32 v72, v72\ns_nop 0\nv_mul_f32 v72, v72, v68")
rowsum([72])
A("v_rcp_f32 v72, v72")
A("s_nop 1")
A("v_readlane_b32 s62, v72, 0\nv_readlane_b32 s63, v72, 16")
A("s_nop 1")
A("v_mul_f32 v60, s62, v60\nv_mul_f32 v61, s63, v61")
ts()
hbar()
for t in range(4):
    A(f"ds_read2_b64 v[{32+4*t}:{35+4*t}], v9 offset0:{8*t} offset1:{8*t+4}")
for t in range(4):
    A(f"s_waitcnt lgkmcnt({3-t})")
    mfma(48, 32 + 4 * t, 16 + 4 * t, None if t == 0 else 48)
exec_mask(0xffff, 0)
A("s_nop 6")
A("v_fma_f32 v64, v48, v60, v56\nv_fma_f32 v66, v49, v61, v57")
dry_end()
publish(64, 11, "s60", dual=False)
ts()
ts_dump()
LB("L_end")
A("s_endpgm")

L.append(f""".section .rodata,"a"
.p2align 6
.amdhsa_kernel {NAME}
  .amdhsa_next_free_vgpr 128
  .amdhsa_next_free_sgpr 102
  .amdhsa_accum_offset 128
  .amdhsa_group_segment_fixed_size 0
  .amdhsa_kernarg_size 104
  .amdhsa_user_sgpr_count 2
  .amdhsa_user_sgpr_kernarg_segment_ptr 1
  .amdhsa_system_sgpr_workgroup_id_x 1
.end_amdhsa_kernel""")
open(out, "w").write("\n".join(L) + "\n")
```

```python
import sys

OPT = dict(ts=0, kv_fl="nt", w_fl="nt", ka=3, w1e=1, w0p=1, vb=0, spin=400000, pst=0, dry=1, slp=0, pre=0, prew=0, dual=1, bper=8, prio=3, lsl=2, spre=0)
out = sys.argv[1]
for a in sys.argv[2:]:
    k, v = a.split("=")
    OPT[k] = int(v) if v.lstrip("-").isdigit() else v.replace("+", " ").replace("none", "")
TS = OPT["ts"]

NAME = "gated_mix__sliding_block_cached__swiglu_ffn__decode_kernel"
HEADER = open("gated_mix__sliding_block_cached__swiglu_ffn__decode.s.ref").read().split("; Override launch")[0]

L = []
def A(s):
    for l in s.split("\n"):
        L.append("    " + l.strip())
def LB(s):
    L.append(s + ":")
def C(s):
    L.append("    ; " + s)

VI = 0
WQI = 65536
GI = 81920
UI = 90112
WOI = 65536
WDI = 81920
KI = 98304
SM = 155648
PS = SM
QS = SM + 2048
OV = SM + 3072
HS = SM + 3584
QT = SM + 3840
MX = SM + 4352
LS = SM + 4480
GT = SM + 4608
CNT = SM + 4624
O_Q, O_M, O_P, O_STAGE, O_H, O_K7, O_V, O_I, O_VL, O_B1, O_B2, O_B3 = 0, 4, 8, 12, 16, 20, 24, 28, 32, 40, 44, 48
LDS_BYTES = SM + 4864
WB = OPT.get('wb', 496) << 20
OBS = 2176
if OPT.get("compact", 1):
    QX = WB
    HX = WB + 0x20000
    H1 = WB + 0x58000
    MIR_ = 0xE0000
    H2 = WB + 0xE0000
    EPO = H1 + 2112
else:
    QX = WB + 0x10000
    HX = WB + 0x80000
    H1 = WB + 0x100000
    H2 = WB + 0x400000
    MIR_ = 0x800000
    EPO = 0
TSB = 0x800000

SCALE = 0x3DB504F3
LOG2E = 0x3FB8AA3B
NLOG2E = 0xBFB8AA3B
WF = OPT["w_fl"]

def srd(d, p, nbytes):
    A(f"s_mov_b32 s{d}, s{p}\ns_and_b32 s{d+1}, s{p+1}, 0xffff\ns_mov_b32 s{d+2}, {hex(nbytes)}\ns_mov_b32 s{d+3}, 0x20000")

ts_n = [0]
skip_n = [0]
def ts_reset():
    ts_n[0] = 1 if TS else 0
def ts():
    if not TS: return
    k = ts_n[0]; ts_n[0] += 1
    assert k < 16
    if TS == 3: return
    A(f"s_memrealtime s[72:73]\ns_waitcnt lgkmcnt(0)\nv_writelane_b32 v127, s72, {k}")
def ts_dump():
    if not TS or TS == 5: return
    A("s_mov_b64 exec, -1")
    if TS == 2:
        skip_n[0] += 1
        lb = f"L_sk{skip_n[0]}"
        A(f"s_cmp_lg_u32 s2, {OPT.get('dbgwg', 0)}\ns_cbranch_scc1 {lb}")
        A(f"s_cmp_lg_u32 s30, {OPT.get('dbgwave', 11)}\ns_cbranch_scc1 {lb}")
        srd(76, 26, 256)
        A("v_readlane_b32 s60, v127, 0\ns_nop 1\nv_subrev_u32 v127, s60, v127")
        A("v_lshlrev_b32 v3, 2, v0")
        A("s_mov_b32 exec_lo, 0xffff\ns_mov_b32 exec_hi, 0")
        A("buffer_store_dword v127, v3, s[76:79], 0 offen")
        LB(lb)
        return
    A("s_mul_i32 s60, s2, 12\ns_add_u32 s60, s60, s30\ns_lshl_b32 s60, s60, 6")
    A(f"s_add_u32 s60, s60, {hex(TSB)}")
    A("v_lshlrev_b32 v3, 2, v0")
    A("s_mov_b32 exec_lo, 0xffff\ns_mov_b32 exec_hi, 0")
    A("buffer_store_dword v127, v3, s[44:47], s60 offen")

def tags():
    A("s_add_u32 s58, s56, 0x01010101\ns_add_u32 s59, s57, 0x9e3779b9")
    A("s_and_b32 s88, s58, 0xffff\ns_and_b32 s89, s58, 0xffff0000")

def tagcheck(bases, acc, t0, t1):
    first = True
    for b in bases:
        A(f"v_xor_b32 v{t0}, s58, v{b+1}")
        A(f"v_xor_b32 v{t1}, s59, v{b+3}")
        if first:
            A(f"v_or_b32 v{acc}, v{t0}, v{t1}"); first = False
        else:
            A(f"v_or3_b32 v{acc}, v{acc}, v{t0}, v{t1}")

def tagcheck_dense(bases, acc, t0, t1):
    first = True
    for b in bases:
        A(f"v_perm_b32 v{t0}, v{b+1}, v{b}, s92")
        A(f"v_perm_b32 v{t1}, v{b+3}, v{b+2}, s93")
        A(f"v_xor_b32 v{t0}, s88, v{t0}")
        A(f"v_xor_b32 v{t1}, s89, v{t1}")
        if first:
            A(f"v_or_b32 v{acc}, v{t0}, v{t1}"); first = False
        else:
            A(f"v_or3_b32 v{acc}, v{acc}, v{t0}, v{t1}")

def tagcheck_16(bases, acc, t0, t1):
    for i in range(0, len(bases), 2):
        b0 = bases[i]
        A(f"v_perm_b32 v{t0}, v{b0+1}, v{b0}, s92")
        A(f"v_xor_b32 v{t0}, s88, v{t0}")
        if i + 1 < len(bases):
            b1 = bases[i + 1]
            A(f"v_perm_b32 v{t1}, v{b1+1}, v{b1}, s92")
            A(f"v_xor_b32 v{t1}, s88, v{t1}")
            if i == 0: A(f"v_or_b32 v{acc}, v{t0}, v{t1}")
            else: A(f"v_or3_b32 v{acc}, v{acc}, v{t0}, v{t1}")
        else:
            if i == 0: A(f"v_mov_b32 v{acc}, v{t0}")
            else: A(f"v_or_b32 v{acc}, v{acc}, v{t0}")

def stamp(dst, srcs, tagv):
    for i in range(4):
        A(f"v_perm_b32 v{dst+i}, v{srcs[i]}, v{tagv}, s{94+i}")

def consts():
    A("s_mov_b32 s92, 0x0c0c0400\ns_mov_b32 s93, 0x04000c0c")
    A("s_mov_b32 s94, 0x07060500\ns_mov_b32 s95, 0x07060501\ns_mov_b32 s96, 0x07060502\ns_mov_b32 s97, 0x07060503")

def exec_mask(lo, hi):
    A(f"s_and_b32 exec_lo, s90, {hex(lo)}" if lo != 0xffffffff else "s_mov_b32 exec_lo, s90")
    if hi is not None:
        A(f"s_and_b32 exec_hi, s91, {hex(hi)}" if hi else "s_mov_b32 exec_hi, 0")
def exec_all():
    A("s_mov_b64 exec, s[90:91]")
def memgrp(fn):
    skip_n[0] += 1
    lb = f"L_sk{skip_n[0]}"
    A(f"s_cbranch_execz {lb}")
    fn()
    LB(lb)
def hbar():
    memgrp(lambda: A("s_barrier"))
def dry_end():
    A("s_cbranch_execz L_end")

MIR = MIR_
def ws_srds():
    srd(44, 28, 0x20000000)
    A(f"s_add_u32 s80, s28, {hex(MIR)}\ns_addc_u32 s81, s29, 0\ns_and_b32 s81, s81, 0xffff\ns_mov_b32 s82, {hex(0x20000000-MIR)}\ns_mov_b32 s83, 0x20000")
    A("s_mov_b32 s74, 0")

def publish(data, voff, soff, off=0, dual=True):
    o = f" offset:{off}" if off else ""
    if dual and OPT["dual"]:
        A(f"buffer_store_dwordx4 v[{data}:{data+3}], v{voff}, s[44:47], {soff} offen{o}")
    A(f"buffer_store_dwordx4 v[{data}:{data+3}], v{voff}, s[80:83], {soff} offen{o} sc1")

def poll_check(label, bases, tmp, reissue, chk=tagcheck, grp=1, dual=True):
    dual = dual and OPT["dual"]
    LB(label)
    chk(bases, tmp, tmp + 1, tmp + 2)
    if grp >= 4:
        A(f"s_nop 1\nv_or_b32_dpp v{tmp}, v{tmp}, v{tmp} quad_perm:[1,0,3,2] row_mask:0xf bank_mask:0xf")
        A(f"s_nop 1\nv_or_b32_dpp v{tmp}, v{tmp}, v{tmp} quad_perm:[2,3,0,1] row_mask:0xf bank_mask:0xf")
    if grp >= 8:
        A(f"s_nop 1\nv_or_b32_dpp v{tmp}, v{tmp}, v{tmp} row_half_mirror row_mask:0xf bank_mask:0xf")
    A(f"v_cmp_ne_u32 vcc, 0, v{tmp}")
    A("s_nop 1")
    A(f"s_cbranch_vccz {label}_ok")
    if OPT.get("nopoll"): A(f"s_branch {label}_ok")
    A(f"s_sub_u32 s67, s67, 1\ns_cbranch_scc1 {label}_ok")
    A("s_mov_b64 exec, vcc")
    if OPT["slp"]: A(f"s_sleep {OPT['slp']}")
    if dual:
        A(f"s_add_u32 s74, s74, 1\ns_and_b32 s75, s74, {OPT['bper']-1}\ns_cbranch_scc0 {label}_b")
        reissue("s[44:47]")
        A("s_waitcnt vmcnt(0)")
        A(f"s_branch {label}")
        LB(label + "_b")
    reissue("s[80:83]")
    A("s_waitcnt vmcnt(0)")
    A(f"s_branch {label}")
    LB(label + "_ok")
    exec_all()

def xrow_multi(op, vs, ts_, steps=("v_permlane16_swap_b32", "v_permlane32_swap_b32")):
    for sw in steps:
        for v, t in zip(vs, ts_):
            A(f"v_mov_b32 v{t}, v{v}")
        if len(vs) < 2: A("s_nop 1")
        elif len(vs) < 3: A("s_nop 0")
        for v, t in zip(vs, ts_):
            A(f"{sw} v{v}, v{t}")
        A("s_nop 0")
        for v, t in zip(vs, ts_):
            A(f"{op} v{v}, v{v}, v{t}")

def xrow_t4(v):
    A(f"v_permlane16_swap_b32 v{v}, v{v+1}")
    A(f"v_permlane16_swap_b32 v{v+2}, v{v+3}")
    A("s_nop 0")
    A(f"v_add_f32 v{v}, v{v}, v{v+1}")
    A(f"v_add_f32 v{v+2}, v{v+2}, v{v+3}")
    A("s_nop 1")
    A(f"v_permlane32_swap_b32 v{v}, v{v+2}")
    A("s_nop 0")
    A(f"v_add_f32 v{v}, v{v}, v{v+2}")

def transpose8(raw, dst, pairs=(0, 1, 2, 3)):
    for v in pairs:
        for w in range(4):
            a = raw + 4 * (2 * v) + w
            b = raw + 4 * (2 * v + 1) + w
            A(f"v_perm_b32 v{dst + 4*(2*w) + v}, v{b}, v{a}, s64")
            A(f"v_perm_b32 v{dst + 4*(2*w+1) + v}, v{b}, v{a}, s65")

def bf16_round_pairs(vs, tmp):
    n = len(vs) // 2
    for i in range(n):
        A(f"v_cvt_pk_bf16_f32 v{tmp[i]}, v{vs[2*i]}, v{vs[2*i+1]}")
    for i in range(n):
        A(f"v_lshlrev_b32 v{vs[2*i]}, 16, v{tmp[i]}")
        A(f"v_and_b32 v{vs[2*i+1]}, 0xffff0000, v{tmp[i]}")

def lds_spin(label, addr_v, off, val):
    A(f"s_cbranch_execz {label}_x")
    LB(label)
    A(f"ds_read_b32 v15, v{addr_v} offset:{off}")
    A("s_waitcnt lgkmcnt(0)")
    A("v_readfirstlane_b32 s66, v15")
    A("s_sub_u32 s67, s67, 1")
    A(f"s_cbranch_scc1 {label}_x")
    if OPT.get("lsl") and label in ("L_ispin",): A(f"s_sleep {OPT['lsl']}")
    if OPT.get("ksl") and label in ("L_qspin", "L_mspin", "L_pspin1"):
        A(f"s_cmp_ge_u32 s66, {val}\ns_cbranch_scc1 {label}_x\ns_sleep {OPT['ksl']}")
    A(f"s_cmp_lt_u32 s66, {val}")
    A(f"s_cbranch_scc1 {label}")
    LB(label + "_x")

def lds_spin_data(label, off, val, reads):
    lds_spin(label, 12, off, val)
    reads()
    A("s_waitcnt lgkmcnt(0)")

def rowsum(vs, shifts=(8, 4, 2, 1)):
    for sh in shifts:
        if len(vs) < 3: A("s_nop 1")
        for v in vs:
            A(f"v_add_f32_dpp v{v}, v{v}, v{v} row_ror:{sh} row_mask:0xf bank_mask:0xf")

def dma_voff(dst, stride_sreg_or_shift, t0, t1):
    A(f"v_bfe_u32 v{t0}, v0, 1, 2\nv_bfe_u32 v{t1}, v0, 4, 2\nv_xor_b32 v{t0}, v{t0}, v{t1}")
    A(f"v_and_b32 v{t1}, 1, v0\nv_lshl_add_u32 v{t0}, v{t0}, 1, v{t1}\nv_lshlrev_b32 v{t0}, 4, v{t0}")
    A(f"v_lshrrev_b32 v{t1}, 3, v0")
    if isinstance(stride_sreg_or_shift, int):
        A(f"v_lshl_add_u32 v{dst}, v{t1}, {stride_sreg_or_shift}, v{t0}")
    else:
        A(f"v_mul_lo_u32 v{t1}, v{t1}, {stride_sreg_or_shift}\nv_add_u32 v{dst}, v{t1}, v{t0}")

def tr_addr(dst, q4, t0, t1, base):
    A(f"v_bfe_u32 v{t0}, v0, 3, 2")
    A(f"v_xor_b32 v{t0}, {q4}, v{t0}")
    A(f"v_lshlrev_b32 v{t0}, 5, v{t0}")
    A(f"v_and_b32 v{t1}, 3, v0\nv_lshl_add_u32 v{t0}, v{t1}, 3, v{t0}")
    A(f"v_lshrrev_b32 v{t1}, 2, v0\nv_lshl_add_u32 v{dst}, v{t1}, 7, v{t0}")
    A(f"v_add_u32 v{dst}, {base}, v{dst}")

def tr_read(dst, addr_v, off, t):
    A(f"ds_read_b64_tr_b16 v[{dst}:{dst+1}], v{addr_v} offset:{off + 4096*t}")
    A(f"ds_read_b64_tr_b16 v[{dst+2}:{dst+3}], v{addr_v} offset:{off + 4096*t + 2048}")

def lds_spin2(label, addr_v, off, val):
    A(f"s_cbranch_execz {label}_x")
    LB(label)
    A(f"ds_read_b64 v[14:15], v{addr_v} offset:{off}")
    A("s_waitcnt lgkmcnt(0)")
    A("v_min_u32 v15, v14, v15")
    A("s_sub_u32 s67, s67, 1")
    A("v_readfirstlane_b32 s66, v15")
    A(f"s_cbranch_scc1 {label}_x")
    A(f"s_cmp_lt_u32 s66, {val}")
    A(f"s_cbranch_scc1 {label}")
    LB(label + "_x")

def bump(off):
    exec_mask(1, 0)
    A(f"ds_add_u32 v12, v13 offset:{off}")
    exec_all()

def mfma(d, a, b, c):
    cs = "0" if c is None else f"v[{c}:{c+3}]"
    A(f"v_mfma_f32_16x16x32_bf16 v[{d}:{d+3}], v[{a}:{a+3}], v[{b}:{b+3}], {cs}")

def select4(xs):
    A(f"v_permlane16_swap_b32 v{xs[0]}, v{xs[1]}")
    A(f"v_permlane16_swap_b32 v{xs[2]}, v{xs[3]}")

NWAVES = 16 if OPT["dry"] else 12
L.append(HEADER.rstrip())
L.append(f"; @launch grid=(256,1,1) block=({NWAVES*64},1,1) lds={LDS_BYTES}")
L.append('.amdgcn_target "amdgcn-amd-amdhsa--gfx950"')
L.append(".text")
L.append(f".globl {NAME}\n.p2align 8\n.type {NAME},@function\n{NAME}:")
A("s_cmp_ge_u32 s2, 256\ns_cbranch_scc1 L_end")
if OPT.get("xorwg"): A(f"s_xor_b32 s2, s2, {OPT['xorwg']}")
A("s_load_dwordx16 s[4:19], s[0:1], 0")
A("s_load_dwordx8 s[20:27], s[0:1], 64")
A("s_load_dwordx2 s[28:29], s[0:1], 96")
if TS or OPT.get("diag"): A("s_memrealtime s[72:73]")
A("v_lshrrev_b32 v1, 6, v0")
A("v_and_b32 v0, 63, v0")
A("s_and_b32 s31, s2, 7")
A("v_readfirstlane_b32 s30, v1")
A("s_lshr_b32 s32, s2, 3")
A("s_lshr_b32 s33, s32, 4")
A("s_and_b32 s34, s32, 15")
A(f"s_mov_b32 s67, {OPT['spin']}")
A("s_mov_b64 s[90:91], -1")
A("v_and_b32 v2, 15, v0")
A("v_lshrrev_b32 v3, 4, v0")
A("s_lshr_b32 s52, s32, 3")
A("s_and_b32 s53, s32, 7")
A("s_lshl_b32 s54, s31, 2\ns_add_u32 s54, s54, s52")
A("s_lshl_b32 s50, s33, 3\ns_add_u32 s50, s50, s31\ns_lshl_b32 s50, s50, 23")
A("s_lshl_b32 s51, s34, 16\ns_add_u32 s50, s50, s51\ns_add_u32 s50, s50, 0x700000")
A(f"s_mul_i32 s51, s32, {OPT.get('rotm', 5)}\ns_add_u32 s51, s51, s31")
A("s_cmp_lt_u32 s30, 4\ns_cbranch_scc1 L_special")
if OPT["dry"]: A("s_cmp_ge_u32 s30, 12\ns_cbranch_scc1 L_helper")

def epoch_load():
    if EPO:
        A(f"s_mov_b32 s56, {hex(EPO)}\ns_load_dwordx2 s[56:57], s[28:29], s56")
    else:
        A("s_load_dwordx2 s[56:57], s[28:29], 0")
def fconsts():
    A(f"s_mov_b32 s68, {hex(SCALE)}\ns_mov_b32 s69, {hex(LOG2E)}\ns_mov_b32 s70, {hex(NLOG2E)}")
def ts0():
    if TS: A("v_writelane_b32 v127, s72, 0")

C("================= K / attention waves =================")
ts_reset()
A("s_sub_u32 s35, s30, 4")
A("s_lshl_b32 s62, s35, 1\ns_add_u32 s62, s62, s51")
A("s_add_u32 s63, s62, 1\ns_and_b32 s62, s62, 15\ns_and_b32 s63, s63, 15")
A("s_lshl_b32 s62, s62, 12\ns_lshl_b32 s63, s63, 12")
A("s_add_u32 s61, s50, s63\ns_add_u32 s60, s50, s62")
for u in range(4):
    A(f"v_add_u32 v{104+u}, {4*u}, v3\nv_xor_b32 v{104+u}, v{104+u}, v2\nv_lshlrev_b32 v{104+u}, 4, v{104+u}\nv_lshl_add_u32 v{104+u}, v3, 8, v{104+u}")
A(f"s_lshl_b32 s84, s35, 13\ns_add_u32 s84, s84, {KI}\ns_cmp_eq_u32 s35, 7\ns_cselect_b32 s84, {VI+57344}, s84")
A("s_add_u32 s85, s84, 4096")
A("s_waitcnt lgkmcnt(0)")
ts0()
srd(36, 6, 0x8000000)
KR, QR = 16, 80
KVF = OPT["kv_fl"]
def kload(i):
    t, u = i // 4, i % 4
    if u == 0 or i == OPT["ka"]: A(f"s_mov_b32 m0, s{84+t}\ns_nop 0")
    A(f"buffer_load_dwordx4 v{104+u}, s[36:39], s{60+t} offen offset:{u*1024} {KVF} lds")
def kread(t):
    for j in range(4):
        i = 4 * t + j
        A(f"ds_read_b128 v[{KR+4*i}:{KR+4*i+3}], v{108+j} offset:{4096*t}")
FA = "s[44:47]" if OPT["dual"] else "s[80:83]"
def qgather(sr=FA):
    A(f"buffer_load_dwordx4 v[{QR}:{QR+3}], v6, {sr}, s62 offen sc1")
KA, VB = OPT["ka"], OPT["vb"]
A("s_barrier")
for i in range(KA): kload(i)
ws_srds()
epoch_load()
fconsts(); consts()
A("s_lshl_b32 s62, s31, 1\ns_add_u32 s62, s62, s33\ns_lshl_b32 s62, s62, 13")
A("s_lshl_b32 s63, s35, 8\ns_add_u32 s62, s62, s63")
A(f"s_add_u32 s62, s62, {hex(QX)}")
A("v_lshlrev_b32 v6, 11, v3\nv_lshl_add_u32 v6, v2, 4, v6")
A(f"v_mov_b32 v12, {CNT}\nv_mov_b32 v13, 1")
for j in range(4):
    A(f"v_add_u32 v{108+j}, {4*j}, v3\nv_xor_b32 v{108+j}, v{108+j}, v2\nv_lshlrev_b32 v{108+j}, 4, v{108+j}\nv_lshl_add_u32 v{108+j}, v2, 8, v{108+j}\nv_add_u32 v{108+j}, s84, v{108+j}")
A("v_and_b32 v14, 3, v2")
A(f"s_lshl_b32 s71, s35, 7\ns_add_u32 s71, s71, {QS}")
A("v_lshl_add_u32 v10, v2, 3, s71\nv_lshl_add_u32 v10, v3, 1, v10")
A(f"v_lshlrev_b32 v11, 8, v14\nv_lshl_add_u32 v11, v3, 4, v11\nv_add_u32 v11, {QS}, v11")
A(f"v_lshlrev_b32 v8, 5, v14\nv_add_u32 v8, {MX}, v8")
A("s_lshl_b32 s71, s35, 2\nv_add_u32 v9, s71, v8")
A(f"v_lshl_add_u32 v7, v3, 2, v14\nv_lshlrev_b32 v7, 4, v7\nv_add_u32 v7, {PS}, v7")
A("s_lshl_b32 s71, s35, 8\nv_add_u32 v5, s71, v7")
A("v_bfe_u32 v120, v0, 2, 3\nv_xor_b32 v120, s35, v120\nv_lshlrev_b32 v120, 5, v120")
A("v_and_b32 v121, 3, v0\nv_lshl_add_u32 v120, v121, 3, v120\nv_lshrrev_b32 v121, 2, v0\nv_lshl_add_u32 v120, v121, 8, v120")
A("v_lshlrev_b32 v121, 9, v14\nv_lshl_add_u32 v121, v3, 4, v121")
A(f"s_lshl_b32 s76, s31, 5\ns_add_u32 s49, s76, s32\ns_mul_i32 s49, s49, {OBS}\ns_add_u32 s49, s49, {hex(H1)}")
A("s_lshl_b32 s71, s35, 6\ns_add_u32 s48, s49, s71")
A(f"v_lshrrev_b32 v122, 3, v2\nv_lshl_add_u32 v122, v122, 4, v3\nv_mul_u32_u24 v122, {OBS}, v122")
A("v_and_b32 v123, 7, v2\nv_lshl_add_u32 v122, v123, 4, v122")
A(f"s_mul_i32 s76, s76, {OBS}\ns_add_u32 s76, s76, {hex(H1)}")
A("s_lshl_b32 s71, s52, 9\ns_add_u32 s76, s76, s71\ns_lshl_b32 s71, s35, 7\ns_add_u32 s76, s76, s71")
for i in range(1, 4): A(f"s_add_u32 s{76+i}, s76, {i*4*OBS}")
A(f"s_lshl_b32 s71, s35, 6\ns_add_u32 s71, s71, {OV}")
A("v_lshrrev_b32 v124, 3, v2\nv_lshlrev_b32 v124, 8, v124\nv_lshl_add_u32 v124, v123, 3, v124\nv_lshl_add_u32 v124, v3, 1, v124\nv_add_u32 v124, s71, v124")
A("s_waitcnt lgkmcnt(0)")
tags()
lds_spin("L_b1", 12, O_B1, 1)
ts()
for i in range(KA, 8): kload(i)
bump(O_B3)
lds_spin("L_b3", 12, O_B3, 8)
ts()
qgather()
bump(O_B2)
VB2 = 0
ts()
if OPT.get("prio"): A(f"s_setprio {OPT['prio']}")
LB("L_d0")
if VB2:
    A("s_waitcnt vmcnt(1)")
    tagcheck_dense([QR], 88, 89, 90)
    A("v_cmp_ne_u32 vcc, 0, v88\ns_nop 1\ns_cbranch_vccz L_qchk_ok")
    A("s_waitcnt vmcnt(0)")
    for c in range(4): A(f"v_mov_b32 v{QR+c}, v{QR+4+c}")
    if TS: A("s_mov_b32 s74, 0x100")
else:
    A("s_waitcnt vmcnt(5)")
    kread(0)
    A("s_waitcnt vmcnt(1)")
    kread(1)
    A("s_cmp_lg_u32 s35, 7\ns_cbranch_scc1 L_nok7")
    A("s_waitcnt lgkmcnt(0)")
    bump(O_K7)
    LB("L_nok7")
    A("s_waitcnt vmcnt(0)")
poll_check("L_qchk", [QR], 88, qgather, tagcheck_dense, 4)
if TS: A("v_writelane_b32 v127, s74, 13")
ts()
for c in range(4): A(f"v_and_b32 v{QR+c}, 0xffffff00, v{QR+c}")
A("s_nop 0")
xrow_t4(QR)
A(f"v_cvt_pk_bf16_f32 v{QR}, v{QR}, v{QR}")
A(f"ds_write_b16 v10, v{QR}")
bump(O_Q)
def qreads():
    for j in range(4):
        A(f"ds_read_b128 v[{QR+4*j}:{QR+4*j+3}], v11 offset:{64*j}")
lds_spin_data("L_qspin", O_Q, 8, qreads)
for j in range(4):
    for t in range(2):
        k = KR + 4 * (4 * t + j)
        mfma(96 + 4 * t, k, QR + 4 * j, None if j == 0 else 96 + 4 * t)
A("s_nop 7\ns_nop 1")
S = list(range(96, 104))
bf16_round_pairs(S, [112, 113, 114, 115])
for v in S: A(f"v_mul_f32 v{v}, s68, v{v}")
bf16_round_pairs(S, [112, 113, 114, 115])
A("v_max3_f32 v116, v96, v97, v98\nv_max3_f32 v116, v116, v99, v100\nv_max3_f32 v116, v116, v101, v102\nv_max_f32 v116, v116, v103")
xrow_multi("v_max_f32", [116], [117])
exec_mask(0xf, 0)
A("ds_write_b32 v9, v116")
bump(O_M)
lds_spin_data("L_mspin", O_M, 8, lambda: A("ds_read_b128 v[104:107], v8\nds_read_b128 v[108:111], v8 offset:16"))
A("v_max3_f32 v116, v104, v105, v106\nv_max3_f32 v116, v116, v107, v108\nv_max3_f32 v116, v116, v109, v110\nv_max_f32 v116, v116, v111")
A("v_mul_f32 v117, s70, v116")
for v in S: A(f"v_fma_f32 v{v}, v{v}, s69, v117")
for v in S: A(f"v_exp_f32 v{v}, v{v}")
A("v_or_b32 v125, s88, v116")
for i in range(4): A(f"v_cvt_pk_bf16_f32 v{112+i}, v{96+2*i}, v{97+2*i}")
A("v_add_f32 v117, v96, v97\nv_add_f32 v118, v98, v99\nv_add_f32 v119, v100, v101\nv_add_f32 v104, v102, v103")
A("v_add_f32 v117, v117, v118\nv_add_f32 v119, v119, v104\nv_add_f32 v117, v117, v119")
exec_mask(0x000f000f, 0x000f000f)
A("ds_write_b128 v5, v[112:115]")
exec_all()
xrow_multi("v_add_f32", [117], [118])
exec_mask(0xf, 0)
A("ds_write_b32 v9, v117 offset:128")
bump(O_P)
PR, VO = 16, 48
def preads():
    A(f"ds_read_b64 v[118:119], v12 offset:{O_VL}")
    for k in range(8):
        A(f"ds_read_b128 v[{PR+4*k}:{PR+4*k+3}], v7 offset:{256*k}")
lds_spin_data("L_pspin1", O_P, 8, preads)
A("v_min_u32 v118, v118, v119")
A("s_nop 0")
A("v_readfirstlane_b32 s71, v118")
A("s_cmp_lg_u32 s35, 7\ns_cbranch_scc1 L_nol")
A("ds_read_b128 v[104:107], v8 offset:128\nds_read_b128 v[108:111], v8 offset:144")
A("v_lshlrev_b32 v10, 4, v2")
A("v_mov_b32 v97, s58\nv_mov_b32 v98, v116\nv_mov_b32 v99, s59")
A("s_waitcnt lgkmcnt(0)")
A("v_add_f32 v104, v104, v105\nv_add_f32 v106, v106, v107\nv_add_f32 v108, v108, v109\nv_add_f32 v110, v110, v111")
A("v_add_f32 v104, v104, v106\nv_add_f32 v108, v108, v110\nv_add_f32 v96, v104, v108")
exec_mask(0xf, 0)
memgrp(lambda: publish(96, 10, "s49", 2048))
exec_all()
LB("L_nol")
ts()
dry_end()
LB("L_d1")
def vstep(ks, first):
    for k in ks:
        A(f"ds_read_b64_tr_b16 v[{VO+4*k}:{VO+4*k+1}], v120 offset:{VI + 8192*k}")
        A(f"ds_read_b64_tr_b16 v[{VO+4*k+2}:{VO+4*k+3}], v120 offset:{VI + 8192*k + 4096}")
    for i, k in enumerate(ks):
        A(f"s_waitcnt lgkmcnt({2*(len(ks)-1-i)})")
        mfma(80, VO + 4 * k, PR + 4 * k, None if (first and i == 0) else 80)
A("s_cmp_lt_u32 s71, 7\ns_cbranch_scc1 L_vinc")
vstep([0, 1, 2, 3, 4, 5, 6], True)
A("s_cbranch_execnz L_vlast")
LB("L_vinc")
lds_spin2("L_v1", 12, O_VL, 4)
vstep([0, 1, 2, 3], True)
lds_spin2("L_v2", 12, O_VL, 6)
vstep([4, 5], False)
lds_spin2("L_v3", 12, O_VL, 7)
vstep([6], False)
LB("L_vlast")
hbar()
ts()
vstep([7], False)
exec_mask(0x000f000f, 0x000f000f)
A("s_nop 5")
stamp(84, [80, 81, 82, 83], 125)
memgrp(lambda: publish(84, 121, "s48"))
exec_all()
hbar()
ts()
A("s_cmp_ge_u32 s35, 4\ns_cbranch_scc1 L_kv_h2")
GR = 80
def h1gather(sr=FA):
    for i in range(4):
        A(f"buffer_load_dwordx4 v[{GR+4*i}:{GR+4*i+3}], v122, {sr}, s{76+i} offen sc1")
ts()
memgrp(h1gather)
A("s_waitcnt vmcnt(0)")
ts()
poll_check("L_h1chk", [GR + 4 * i for i in range(4)], 116, h1gather, tagcheck_16, 8)
ts()
for i in range(4): A(f"v_perm_b32 v{100+i}, v{GR+4*i+3}, v{GR+4*i+2}, s93")
A("v_max3_f32 v116, v100, v101, v102\nv_max_f32 v116, v116, v103")
xrow_multi("v_max_f32", [116], [117])
A("v_mul_f32 v117, s70, v116")
for i in range(4): A(f"v_fma_f32 v{100+i}, v{100+i}, s69, v117")
for i in range(4): A(f"v_exp_f32 v{100+i}, v{100+i}")
for c in range(16): A(f"v_and_b32 v{GR+c}, 0xffffff00, v{GR+c}")
for c in range(4): A(f"v_mul_f32 v{104+c}, v100, v{GR+c}")
for i in range(1, 4):
    for c in range(4): A(f"v_fmac_f32 v{104+c}, v{100+i}, v{GR+4*i+c}")
A("s_nop 0")
xrow_t4(104)
A("v_cvt_pk_bf16_f32 v104, v104, v104")
A("ds_write_b16 v124, v104")
A("s_waitcnt lgkmcnt(0)")
hbar()
ts()
if OPT["dry"]: A("s_cbranch_execz L_d2")
A("s_branch L_kv_done")
LB("L_kv_h2")
A("s_cmp_lg_u32 s35, 7\ns_cbranch_scc1 L_kv_bo")
A("s_cmp_ge_u32 s2, 128\ns_cbranch_scc1 L_kv_bo")
LB("L_d2")
if TS: ts_n[0] = 12
srd(48, 24, 2048)
A("s_lshl_b32 s60, s2, 11")
A(f"s_add_u32 s60, s60, {hex(H2)}")
A("v_lshlrev_b32 v5, 4, v0")
def h2gather(sr="s[80:83]"):
    A(f"buffer_load_dwordx4 v[16:19], v5, {sr}, s60 offen sc1")
    A(f"buffer_load_dwordx4 v[20:23], v5, {sr}, s60 offen offset:1024 sc1")
A("v_mov_b32 v8, 0")
A("s_lshl_b32 s62, s2, 3")
hbar()
memgrp(h2gather)
A("s_waitcnt vmcnt(0)")
poll_check("L_h2chk", [16, 20], 24, h2gather, dual=False)
ts()
A("v_add_f32 v16, v16, v20\nv_add_f32 v18, v18, v22")
rowsum([16, 18], shifts=(8, 4))
xrow_multi("v_add_f32", [16, 18], [17, 19])
A("s_nop 0")
for i, qp in enumerate(("[1,1,1,1]", "[2,2,2,2]", "[3,3,3,3]")):
    A(f"v_mov_b32_dpp v{24+i}, v16 quad_perm:{qp} row_mask:0xf bank_mask:0xf")
    A(f"v_mov_b32_dpp v{28+i}, v18 quad_perm:{qp} row_mask:0xf bank_mask:0xf")
A("v_cvt_pk_bf16_f32 v32, v16, v24\nv_cvt_pk_bf16_f32 v33, v25, v26")
A("v_cvt_pk_bf16_f32 v34, v18, v28\nv_cvt_pk_bf16_f32 v35, v29, v30")
exec_mask(1, 0)
if OPT["dry"]: A("s_cbranch_execz L_spre")
A("buffer_store_dwordx2 v[32:33], v8, s[48:51], s62 offen")
A("buffer_store_dwordx2 v[34:35], v8, s[48:51], s62 offen offset:1024")
if OPT.get("diag"):
    A(f"v_readlane_b32 s73, v127, {OPT['diag']}\nv_readlane_b32 s99, v127, {OPT.get('diag0', 0)}")
    A("s_memrealtime s[100:101]\ns_waitcnt lgkmcnt(0)")
    A(f"s_sub_u32 s73, s73, s99\ns_mul_i32 s73, s73, {OPT.get('diagm', 8)}\ns_add_u32 s73, s73, s100")
    LB("L_diag")
    A("s_memrealtime s[98:99]\ns_waitcnt lgkmcnt(0)\ns_sub_u32 s99, s98, s73\ns_cmp_lt_i32 s99, 0\ns_cbranch_scc1 L_diag")
A("s_cmp_lg_u32 s2, 0\ns_cbranch_scc1 L_kv_done")
A("v_mov_b32 v36, s58\nv_mov_b32 v37, s59")
A(f"s_mov_b32 s62, {hex(EPO)}")
A("buffer_store_dwordx2 v[36:37], v8, s[44:47], s62 offen sc1")
A("s_branch L_kv_done")
LB("L_kv_bo")
A("s_barrier")
LB("L_kv_done")
if TS:
    A("s_memrealtime s[72:73]\ns_waitcnt lgkmcnt(0)\nv_writelane_b32 v127, s72, 15")
ts_dump()
A("s_endpgm")

if OPT["dry"]:
    LB("L_helper")
    C("================= dry-run helpers: warm the instruction cache =================")
    if OPT.get("cpf"):
        A("s_getpc_b64 s[60:61]")
        LB("L_pc")
        A(f"s_sub_u32 s60, s60, L_pc-{NAME}\ns_subb_u32 s61, s61, 0")
        A(f"s_sub_u32 s62, s30, 12\ns_mul_i32 s62, s62, {OPT['cpf']*128}\ns_add_u32 s60, s60, s62\ns_addc_u32 s61, s61, 0")
        for i in range(OPT["cpf"]): A(f"s_load_dword s{36+(i%8)}, s[60:61], {128*i}")
    A("s_barrier")
    for v in list(range(4, 16)) + list(range(104, 112)) + [120, 121, 122, 123, 124]: A(f"v_mov_b32 v{v}, 0")
    A("s_waitcnt lgkmcnt(0)")
    ws_srds()
    A("s_mov_b64 s[90:91], 0\ns_mov_b64 exec, 0")
    A("s_mov_b32 s35, 7\ns_mov_b32 s48, 0\ns_mov_b32 s49, 1\ns_mov_b32 s60, 0\ns_mov_b32 s61, 0\ns_mov_b32 s62, 0\ns_mov_b32 s63, 0")
    A("s_cmp_eq_u32 s30, 12\ns_cbranch_scc1 L_d0")
    A("s_cmp_eq_u32 s30, 14\ns_cbranch_scc1 L_d5")
    A("s_cmp_eq_u32 s30, 15\ns_cbranch_scc1 L_d3")
    A("s_mov_b32 s35, 0\ns_mov_b32 s71, 8")
    A("s_branch L_d1")
    LB("L_spre")
    if OPT["spre"]:
        A(f"s_lshl_b32 s60, s31, 5\ns_add_u32 s60, s60, s32\ns_mul_i32 s60, s60, {OBS}\ns_add_u32 s60, s60, {hex(H1)}")
        A("s_add_u32 s62, s28, s60\ns_addc_u32 s63, s29, 0")
        if OPT["spre"] & 1:
            for i in range(17): A(f"s_load_dword s{4+(i%8)}, s[62:63], {128*i}")
        A(f"s_lshl_b32 s60, s2, 11\ns_add_u32 s60, s60, {hex(H2+MIR)}")
        A("s_add_u32 s62, s28, s60\ns_addc_u32 s63, s29, 0")
        if OPT["spre"] & 2:
            A("s_cmp_ge_u32 s2, 128\ns_cbranch_scc1 L_end")
            for i in range(16): A(f"s_load_dword s{4+(i%8)}, s[62:63], {128*i}")
    A("s_endpgm")

LB("L_special")
C("================= special waves =================")
ts_reset()
A("s_and_b32 s49, s54, 7\ns_cmp_lg_u32 s49, 7\ns_cselect_b32 s49, 1, 0")
A("s_lshr_b32 s55, s54, 3\ns_sub_u32 s55, s54, s55")
A("v_and_b32 v6, 1, v2\nv_lshlrev_b32 v6, 10, v6\nv_lshl_add_u32 v6, v3, 3, v6")
A("s_cmp_eq_u32 s30, 0\ns_cbranch_scc1 L_w0")
A("s_cmp_eq_u32 s30, 1\ns_cbranch_scc1 L_w1")
A("s_cmp_eq_u32 s30, 3\ns_cbranch_scc1 L_w3")
A("s_waitcnt lgkmcnt(0)")
ts0()
ws_srds()
epoch_load()
if OPT.get("tlbw", 0):
    A("v_mov_b32 v4, 0")
    A("s_mov_b32 exec_lo, 1\ns_mov_b32 exec_hi, 0")
    srd(36, 24, 2048)
    A("buffer_load_dword v16, v4, s[36:39], 0 offen")
    srd(40, 8, 0x8000000)
    A(f"buffer_load_dword v17, v4, s[40:43], s50 offen {KVF}")
    srd(76, 12, 0x400000)
    A("s_lshl_b32 s60, s54, 17")
    A(f"buffer_load_dword v18, v4, s[76:79], s60 offen {WF}")
    srd(84, 20, 1792 * 1024)
    A("s_lshl_b32 s60, s55, 16")
    A(f"buffer_load_dword v19, v4, s[84:87], s60 offen {WF}")
    A("s_mov_b64 exec, -1")
A("s_barrier")
if OPT["dry"]:
    for v in range(4, 16): A(f"v_mov_b32 v{v}, 0")
    A("s_mov_b64 exec, 0")
    A("s_branch L_d4")
LB("L_w2ret")
A("s_mov_b64 exec, -1")
fconsts(); consts()
A("s_waitcnt lgkmcnt(0)")
tags()
A("s_branch L_vload")

LB("L_w3")
A("v_lshlrev_b32 v5, 4, v0")
A(f"v_mov_b32 v4, {CNT}\nv_mov_b32 v8, 0\nv_mov_b32 v9, 0\nv_mov_b32 v10, 0\nv_mov_b32 v11, 0")
A("ds_write_b128 v4, v[8:11]")
A("ds_write_b128 v4, v[8:11] offset:16")
A("ds_write_b128 v4, v[8:11] offset:32")
A("ds_write_b128 v4, v[8:11] offset:48")
A("s_waitcnt lgkmcnt(0)")
ts0()
srd(36, 4, 2048)
srd(40, 22, 1024)
A("buffer_load_dwordx4 v[16:19], v5, s[36:39], 0 offen")
A("buffer_load_dwordx4 v[20:23], v5, s[36:39], 0 offen offset:1024")
A("buffer_load_dwordx4 v[24:27], v5, s[40:43], 0 offen")
A("s_barrier")
ws_srds()
epoch_load()
fconsts(); consts()
A("s_waitcnt vmcnt(0)")
for src, dst in ((24, 32), (16, 40), (20, 48)):
    for w in range(4):
        A(f"v_lshlrev_b32 v{dst+2*w}, 16, v{src+w}\nv_and_b32 v{dst+2*w+1}, 0xffff0000, v{src+w}")
for b in range(2):
    for e in range(8):
        A(f"v_mul_f32 v{40+8*b+e}, v{40+8*b+e}, v{32+e}")
bf16_round_pairs(list(range(40, 56)), list(range(16, 24)))
for b in range(2):
    o = 40 + 8 * b
    A(f"v_add_f32 v{o}, v{o}, v{o+1}\nv_add_f32 v{o+2}, v{o+2}, v{o+3}\nv_add_f32 v{o+4}, v{o+4}, v{o+5}\nv_add_f32 v{o+6}, v{o+6}, v{o+7}")
    A(f"v_add_f32 v{o}, v{o}, v{o+2}\nv_add_f32 v{o+4}, v{o+4}, v{o+6}\nv_add_f32 v{o}, v{o}, v{o+4}")
rowsum([40, 48])
xrow_multi("v_add_f32", [40, 48], [41, 49])
A("v_mov_b32 v41, v48")
bf16_round_pairs([40, 41], [16])
A("v_mul_f32 v40, s70, v40\nv_mul_f32 v41, s70, v41")
A("v_exp_f32 v40, v40\nv_exp_f32 v41, v41")
A("s_nop 0")
A("v_add_f32 v40, 1.0, v40\nv_add_f32 v41, 1.0, v41")
A("v_rcp_f32 v40, v40\nv_rcp_f32 v41, v41")
A("s_nop 0")
bf16_round_pairs([40, 41], [16])
A("v_sub_f32 v42, 1.0, v40\nv_sub_f32 v43, 1.0, v41")
bf16_round_pairs([42, 43], [16])
A(f"v_mov_b32 v4, {GT}")
A("ds_write_b128 v4, v[40:43]")
A("s_waitcnt lgkmcnt(0)")
tags()

LB("L_vload")
srd(40, 8, 0x8000000)
A("s_sub_u32 s35, s30, 2")
A("s_lshl_b32 s60, s35, 2\nv_add_u32 v4, s60, v3\nv_lshrrev_b32 v5, 1, v2\nv_xor_b32 v4, v4, v5")
A("v_and_b32 v5, 1, v2\nv_lshl_add_u32 v4, v4, 1, v5\nv_lshlrev_b32 v4, 4, v4\nv_lshl_add_u32 v4, v3, 8, v4")
A("s_lshl_b32 s61, s35, 10\ns_add_u32 s62, s50, s61")
A("s_and_b32 s60, s51, 15\ns_lshl_b32 s60, s60, 12")
A(f"v_mov_b32 v12, {CNT}\nv_mov_b32 v13, 1")
A(f"s_lshl_b32 s63, s35, 2\ns_add_u32 s63, s63, {CNT+O_VL}\nv_mov_b32 v11, s63")
A("v_mov_b32 v8, 4\nv_mov_b32 v9, 6\nv_mov_b32 v10, 8\nv_mov_b32 v7, 7")
def vblk(i):
    A(f"s_add_u32 s63, s62, s60\ns_add_u32 m0, s61, {VI + 4096*i}")
    A("s_add_u32 s60, s60, 4096\ns_and_b32 s60, s60, 0xffff")
    A(f"buffer_load_dwordx4 v4, s[40:43], s63 offen {KVF} lds")
    A(f"buffer_load_dwordx4 v4, s[40:43], s63 offen offset:2048 {KVF} lds")
lds_spin("L_b2", 12, O_B2, 8)
VB = 0
IB = OPT.get("ib", 16)
for i in range(2 * VB, 17):
    if VB2 and i == 2 * VB + VB2: A("s_barrier\ns_barrier")
    if i == max(IB, 2 * VB):
        A("s_mov_b32 exec_lo, 1\ns_mov_b32 exec_hi, 0")
        A(f"ds_add_u32 v12, v13 offset:{O_I}")
        A("s_mov_b64 exec, -1")
    if OPT.get("w1e") and i == OPT.get("hb", 6):
        A("s_mov_b32 exec_lo, 1\ns_mov_b32 exec_hi, 0")
        A(f"ds_add_u32 v12, v13 offset:{O_V}")
        A("s_mov_b64 exec, -1")
    if i == 14: lds_spin("L_k7spin", 12, O_K7, 1)
    if i < 16: vblk(i)
A("s_mov_b32 exec_lo, 1\ns_mov_b32 exec_hi, 0")
ts()
A("s_waitcnt vmcnt(16)")
A("ds_write_b32 v11, v8")
ts()
A("s_waitcnt vmcnt(8)")
A("ds_write_b32 v11, v9")
A("s_waitcnt vmcnt(4)")
A("ds_write_b32 v11, v7")
A("s_mov_b64 exec, -1")
A("s_waitcnt vmcnt(0)")
A("s_barrier")
ts()
A("s_branch L_final")

LB("L_w0")
ts_reset()
if OPT.get("w0p"): A("s_setprio 3")
dma_voff(4, 13, 8, 9)
A("s_lshl_b32 s60, s52, 20\ns_lshl_b32 s61, s31, 10\ns_add_u32 s60, s60, s61\ns_lshl_b32 s61, s53, 7\ns_add_u32 s60, s60, s61")
A("s_lshl_b32 s61, s52, 8")
A("s_waitcnt lgkmcnt(0)")
ts0()
srd(40, 10, 0x400000)
for i in range(16):
    A(f"s_mov_b32 m0, {WQI+1024*i}")
    if i: A(f"s_add_u32 s60, s60, {8*8192}")
    else: A("s_nop 0")
    A(f"buffer_load_dwordx4 v4, s[40:43], s60 offen {WF} lds")
srd(36, 4, 2048)
XA, BB, AC = 16, 32, 96
for t in range(4):
    A(f"buffer_load_dwordx2 v[{XA+4*t}:{XA+4*t+1}], v6, s[36:39], s61 offen offset:{64*t}")
    A(f"buffer_load_dwordx2 v[{XA+4*t+2}:{XA+4*t+3}], v6, s[36:39], s61 offen offset:{64*t+32}")
A("s_barrier")
ws_srds()
epoch_load()
fconsts(); consts()
for q4 in range(4): tr_addr(8 + q4, q4, 12, 13, WQI)
A(f"v_lshlrev_b32 v12, 2, v0\nv_add_u32 v12, {QT}, v12\nv_and_b32 v13, 31, v0\nv_lshlrev_b32 v13, 4, v13\nv_add_u32 v13, {QT}, v13")
A("v_and_b32 v14, 1, v3\nv_lshlrev_b32 v14, 13, v14\nv_lshl_add_u32 v14, v2, 4, v14")
A("s_lshl_b32 s62, s31, 14\ns_lshl_b32 s63, s52, 11\ns_add_u32 s62, s62, s63\ns_lshl_b32 s63, s53, 8\ns_add_u32 s62, s62, s63")
A(f"s_add_u32 s62, s62, {hex(QX)}")
A("s_waitcnt lgkmcnt(0)")
tags()
A("v_mov_b32 v5, s58")
A("s_waitcnt vmcnt(0)")
ts()
LB("L_d4")
seq = [(q4, t) for q4 in range(4) for t in range(4)]
D = 6
def issue(k):
    q4, t = seq[k]; tr_read(BB + 4 * k, 8 + q4, 0, t)
for k in range(D): issue(k)
for k in range(16):
    q4, t = seq[k]
    A(f"s_waitcnt lgkmcnt({2*(min(16,k+D)-k)-2})")
    mfma(AC + 4 * q4, XA + 4 * t, BB + 4 * k, None if t == 0 else AC + 4 * q4)
    if k + D < 16: issue(k + D)
A("s_nop 7\ns_nop 1")
for r in range(2): select4([AC + 4 * q + r for q in range(4)])
A("s_nop 0")
for r in range(2): A(f"v_permlane32_swap_b32 v{AC+r}, v{AC+8+r}")
A("s_nop 0")
A(f"ds_write_b32 v12, v{AC}\nds_write_b32 v12, v{AC+1} offset:256")
A("ds_read_b128 v[116:119], v13")
A("s_waitcnt lgkmcnt(0)")
stamp(112, [116, 117, 118, 119], 5)
A("s_mov_b32 exec_hi, 0")
A("s_cbranch_execz L_w2ret")
publish(112, 14, "s62")
A(f"v_mov_b32 v12, {CNT}\nv_mov_b32 v8, 1")
A(f"ds_write_b32 v12, v8 offset:{O_B1}")
A("s_mov_b64 exec, -1")
ts()
srd(36, 12, 0x400000)
srd(40, 20, 1792 * 1024)
dma_voff(4, 10, 8, 9)
if OPT.get("cshift"):
    A(f"s_add_u32 s63, s53, {OPT['cshift']}\ns_and_b32 s63, s63, 7\ns_lshl_b32 s63, s63, 7\ns_lshl_b32 s60, s54, 17\ns_add_u32 s60, s60, s63")
else:
  A("s_lshl_b32 s60, s54, 17\ns_lshl_b32 s63, s53, 7\ns_add_u32 s60, s60, s63")
A("s_lshl_b32 s61, s55, 16\ns_add_u32 s61, s61, s63")
A(f"v_mov_b32 v12, {CNT}\nv_mov_b32 v8, 1\nv_mov_b32 v9, 2\nv_mov_b32 v10, 3")
lds_spin("L_ispin", 12, O_I, 3)
ts()
A("s_cmp_eq_u32 s49, 0\ns_cbranch_scc1 L_w0_nowd")
for i in range(8):
    A(f"s_mov_b32 m0, {WDI+1024*i}")
    if i: A(f"s_add_u32 s61, s61, {8*1024}")
    else: A("s_nop 0")
    A(f"buffer_load_dwordx4 v4, s[40:43], s61 offen {WF} lds")
LB("L_w0_nowd")
for i in range(16):
    A(f"s_mov_b32 m0, {WOI+1024*i}")
    if i: A(f"s_add_u32 s60, s60, {8*1024}")
    else: A("s_nop 0")
    A(f"buffer_load_dwordx4 v4, s[36:39], s60 offen {WF} lds")
ts()
A("s_barrier\ns_barrier")
A("s_waitcnt vmcnt(16)")
A(f"ds_write_b32 v12, v8 offset:{O_STAGE}")
ts()
A("s_waitcnt vmcnt(8)")
A(f"ds_write_b32 v12, v9 offset:{O_STAGE}")
ts()
A("s_waitcnt vmcnt(0)")
A(f"ds_write_b32 v12, v10 offset:{O_STAGE}")
ts()
A("s_mov_b32 s75, 1")
A("s_branch L_final0")

LB("L_w1_idle")
A("s_waitcnt lgkmcnt(0)")
ts0()
ws_srds()
epoch_load()
A("s_barrier")
fconsts(); consts()
A("s_waitcnt lgkmcnt(0)")
tags()
A(f"v_mov_b32 v11, {CNT}\nv_mov_b32 v14, 1")
A("s_mov_b32 exec_lo, 1\ns_mov_b32 exec_hi, 0")
A(f"ds_add_u32 v11, v14 offset:{O_I}")
A("s_mov_b64 exec, -1")
A("s_barrier")
A("s_branch L_final")
LB("L_w1")
ts_reset()
A("s_cmp_eq_u32 s49, 0\ns_cbranch_scc1 L_w1_idle")
A("s_movk_i32 s60, 3584")
dma_voff(4, "s60", 8, 9)
A("s_mul_i32 s60, s53, 64*3584\ns_lshl_b32 s61, s55, 7\ns_add_u32 s60, s60, s61")
A("s_lshl_b32 s61, s53, 7")
A("s_waitcnt lgkmcnt(0)")
ts0()
srd(36, 16, 512 * 3584)
srd(40, 18, 512 * 3584)
for i in range(8):
    A(f"s_mov_b32 m0, {GI+1024*i}")
    if i: A(f"s_add_u32 s60, s60, {8*3584}")
    else: A("s_nop 0")
    A(f"buffer_load_dwordx4 v4, s[36:39], s60 offen {WF} lds")
    A(f"s_mov_b32 m0, {UI+1024*i}\ns_nop 0")
    A(f"buffer_load_dwordx4 v4, s[40:43], s60 offen {WF} lds")
srd(76, 4, 2048)
for t in range(2):
    A(f"buffer_load_dwordx2 v[{XA+4*t}:{XA+4*t+1}], v6, s[76:79], s61 offen offset:{64*t}")
    A(f"buffer_load_dwordx2 v[{XA+4*t+2}:{XA+4*t+3}], v6, s[76:79], s61 offen offset:{64*t+32}")
A("s_barrier")
ws_srds()
epoch_load()
fconsts(); consts()
for q4 in range(4): tr_addr(8 + q4, q4, 12, 13, GI)
A("v_lshlrev_b32 v5, 4, v0")
A("s_lshl_b32 s62, s55, 13")
A(f"s_add_u32 s62, s62, {hex(HX)}")
A("s_lshl_b32 s63, s53, 10\ns_add_u32 s63, s63, s62")
A("s_add_u32 s61, s62, 4096")
A(f"v_lshlrev_b32 v12, 1, v0\nv_add_u32 v12, {HS}, v12")
A(f"v_mov_b32 v13, {CNT+O_H}\nv_mov_b32 v14, 1")
A("s_waitcnt lgkmcnt(0)")
tags()
A("v_mov_b32 v4, s58")
A("s_waitcnt vmcnt(0)")
ts()
LB("L_d5")
seq = [(mat, q4, t) for mat in range(2) for q4 in range(4) for t in range(2)]
BB1 = 24
AC1 = 88
def issue(k):
    mat, q4, t = seq[k]; tr_read(BB1 + 4 * k, 8 + q4, (UI - GI) if mat else 0, t)
for k in range(D): issue(k)
for k in range(16):
    mat, q4, t = seq[k]
    A(f"s_waitcnt lgkmcnt({2*(min(16,k+D)-k)-2})")
    acc = AC1 + 16 * mat + 4 * q4
    mfma(acc, XA + 4 * t, BB1 + 4 * k, None if t == 0 else acc)
    if k + D < 16: issue(k + D)
A("s_nop 7\ns_nop 1")
for mat in range(2):
    for r in range(2): select4([AC1 + 16 * mat + 4 * q + r for q in range(4)])
A("s_nop 0")
for mat in range(2):
    for r in range(2): A(f"v_permlane32_swap_b32 v{AC1+16*mat+r}, v{AC1+16*mat+8+r}")
A("s_nop 0")
stamp(120, [AC1, AC1 + 1, AC1 + 16, AC1 + 17], 4)
dry_end()
publish(120, 5, "s63")
ts()
HG = 16
def hgather(sr=FA):
    for rb in range(8):
        r = HG + 4 * rb
        A(f"buffer_load_dwordx4 v[{r}:{r+3}], v5, {sr}, s{62 - rb//4} offen offset:{(rb%4)*1024} sc1")
A(f"v_mov_b32 v11, {CNT}")
A("s_mov_b32 exec_lo, 1\ns_mov_b32 exec_hi, 0")
A(f"ds_add_u32 v11, v14 offset:{O_I}")
A("s_mov_b64 exec, -1")
lds_spin("L_hw", 11, O_V, 2)
hgather()
ts()
LB("L_d3")
A("s_waitcnt vmcnt(0)")
poll_check("L_hchk", [HG + 4 * i for i in range(8)], 96, hgather, tagcheck_dense, 4)
ts()
for c in range(32): A(f"v_and_b32 v{HG+c}, 0xffffff00, v{HG+c}")
for step in (16, 8, 4):
    for base in range(HG, HG + step, 4):
        for o in range(4):
            A(f"v_add_f32 v{base+o}, v{base+o}, v{base+step+o}")
bf16_round_pairs([16, 17, 18, 19], [24, 25])
A("v_mul_f32 v24, s70, v16\nv_mul_f32 v25, s70, v17")
A("v_exp_f32 v24, v24\nv_exp_f32 v25, v25")
A("s_nop 0")
A("v_add_f32 v24, 1.0, v24\nv_add_f32 v25, 1.0, v25")
A("v_rcp_f32 v24, v24\nv_rcp_f32 v25, v25")
A("s_nop 0")
A("v_mul_f32 v16, v16, v24\nv_mul_f32 v17, v17, v25")
bf16_round_pairs([16, 17], [24])
A("v_mul_f32 v16, v16, v18\nv_mul_f32 v17, v17, v19")
A("v_cvt_pk_bf16_f32 v24, v16, v17")
A("ds_write_b16 v12, v24")
A("ds_write_b16_d16_hi v12, v24 offset:128")
A("ds_write_b32 v13, v14")
ts()
hbar()

LB("L_final")
A("s_mov_b32 s75, 0")
LB("L_final0")
if TS: ts_n[0] = 8
tr_addr(8, "s30", 12, 13, WOI)
A(f"v_mov_b32 v12, {CNT}")
A(f"v_and_b32 v9, 1, v2\nv_lshlrev_b32 v10, 7, v9\nv_lshl_add_u32 v10, v3, 3, v10\nv_add_u32 v10, {HS}, v10")
A(f"v_lshlrev_b32 v9, 8, v9\nv_lshl_add_u32 v9, v3, 3, v9\nv_add_u32 v9, {OV}, v9")
A("v_lshrrev_b32 v11, 2, v2\nv_lshlrev_b32 v11, 11, v11\nv_and_b32 v13, 3, v2\nv_lshl_add_u32 v11, v13, 4, v11")
A("s_lshl_b32 s60, s53, 15\ns_lshl_b32 s61, s30, 13\ns_add_u32 s60, s60, s61\ns_lshl_b32 s61, s54, 6\ns_add_u32 s60, s60, s61")
A(f"s_add_u32 s60, s60, {hex(H2)}")
A(f"v_and_b32 v7, 31, v0\nv_mul_u32_u24 v7, {OBS}, v7")
A(f"s_mul_i32 s61, s31, {32*OBS}\ns_lshl_b32 s62, s52, 4\ns_add_u32 s61, s61, s62")
A(f"s_add_u32 s61, s61, {hex(H1+2048)}")
A(f"v_mov_b32 v13, {GT}")
A("ds_read_b128 v[60:63], v13")
A("v_mov_b32 v65, s58\nv_mov_b32 v67, s59")
A("v_mov_b32 v56, 0\nv_mov_b32 v57, 0")
A("s_cmp_eq_u32 s75, 1\ns_cbranch_scc1 L_nobp")
hbar()
LB("L_nobp")
def lgather(sr=FA):
    A(f"buffer_load_dwordx4 v[68:71], v7, {sr}, s61 offen sc1")
memgrp(lgather)
A("s_cmp_eq_u32 s49, 0\ns_cbranch_scc1 L_f_nofb")
lds_spin("L_fs1", 12, O_STAGE, 1)
for t in range(2): tr_read(16 + 4 * t, 8, WDI - WOI, t)
lds_spin("L_fs2", 12, O_H, 1)
for t in range(2):
    A(f"ds_read2_b64 v[{24+4*t}:{27+4*t}], v10 offset0:{8*t} offset1:{8*t+4}")
A("s_waitcnt lgkmcnt(0)")
mfma(56, 24, 16, None)
mfma(56, 28, 20, 56)
A("s_nop 7\ns_nop 1")
A("v_mul_f32 v56, v56, v62\nv_mul_f32 v57, v57, v63")
LB("L_f_nofb")
ts()
lds_spin("L_fs3", 12, O_STAGE, 3)
for t in range(4): tr_read(16 + 4 * t, 8, 0, t)
ts()
A("s_waitcnt vmcnt(0)")
poll_check("L_lchk", [68], 72, lgather)
A("v_mov_b32 v72, v70")
A("v_mov_b32 v73, v70")
for sh in (8, 4, 2, 1):
    A("s_nop 1")
    A(f"v_max_f32_dpp v73, v73, v73 row_ror:{sh} row_mask:0xf bank_mask:0xf")
A("v_sub_f32 v72, v72, v73\nv_mul_f32 v72, s69, v72\nv_exp_f32 v72, v72\ns_nop 0\nv_mul_f32 v72, v72, v68")
rowsum([72])
A("v_rcp_f32 v72, v72")
A("s_nop 1")
A("v_readlane_b32 s62, v72, 0\nv_readlane_b32 s63, v72, 16")
A("s_nop 1")
A("v_mul_f32 v60, s62, v60\nv_mul_f32 v61, s63, v61")
ts()
hbar()
for t in range(4):
    A(f"ds_read2_b64 v[{32+4*t}:{35+4*t}], v9 offset0:{8*t} offset1:{8*t+4}")
for t in range(4):
    A(f"s_waitcnt lgkmcnt({3-t})")
    mfma(48, 32 + 4 * t, 16 + 4 * t, None if t == 0 else 48)
exec_mask(0xffff, 0)
A("s_nop 6")
A("v_fma_f32 v64, v48, v60, v56\nv_fma_f32 v66, v49, v61, v57")
dry_end()
publish(64, 11, "s60", dual=False)
ts()
ts_dump()
LB("L_end")
A("s_endpgm")

L.append(f""".section .rodata,"a"
.p2align 6
.amdhsa_kernel {NAME}
  .amdhsa_next_free_vgpr 128
  .amdhsa_next_free_sgpr 102
  .amdhsa_accum_offset 128
  .amdhsa_group_segment_fixed_size 0
  .amdhsa_kernarg_size 104
  .amdhsa_user_sgpr_count 2
  .amdhsa_user_sgpr_kernarg_segment_ptr 1
  .amdhsa_system_sgpr_workgroup_id_x 1
.end_amdhsa_kernel""")
open(out, "w").write("\n".join(L) + "\n")
```

```python
import sys

OPT = dict(ts=0, kv_fl="nt", w_fl="nt", ka=4, w1e=1, w0p=1, vb=0, spin=400000, pst=0, dry=1, slp=0, pre=0, prew=0, dual=1, bper=8, prio=3, lsl=2, spre=0)
out = sys.argv[1]
for a in sys.argv[2:]:
    k, v = a.split("=")
    OPT[k] = int(v) if v.lstrip("-").isdigit() else v.replace("+", " ").replace("none", "")
TS = OPT["ts"]

NAME = "gated_mix__sliding_block_cached__swiglu_ffn__decode_kernel"
HEADER = open("gated_mix__sliding_block_cached__swiglu_ffn__decode.s.ref").read().split("; Override launch")[0]

L = []
def A(s):
    for l in s.split("\n"):
        L.append("    " + l.strip())
def LB(s):
    L.append(s + ":")
def C(s):
    L.append("    ; " + s)

VI = 0
WQI = 65536
GI = 81920
UI = 90112
WOI = 65536
WDI = 81920
KI = 98304
SM = 155648
PS = SM
QS = SM + 2048
OV = SM + 3072
HS = SM + 3584
QT = SM + 3840
MX = SM + 4352
LS = SM + 4480
GT = SM + 4608
CNT = SM + 4624
O_Q, O_M, O_P, O_STAGE, O_H, O_K7, O_V, O_I, O_VL, O_B1, O_B2, O_B3 = 0, 4, 8, 12, 16, 20, 24, 28, 32, 40, 44, 48
LDS_BYTES = SM + 4864
WB = OPT.get('wb', 496) << 20
OBS = 2176
if OPT.get("compact", 1):
    QX = WB
    HX = WB + 0x20000
    H1 = WB + 0x58000
    MIR_ = 0xE0000
    H2 = WB + 0xE0000
    EPO = H1 + 2112
else:
    QX = WB + 0x10000
    HX = WB + 0x80000
    H1 = WB + 0x100000
    H2 = WB + 0x400000
    MIR_ = 0x800000
    EPO = 0
TSB = 0x800000

SCALE = 0x3DB504F3
LOG2E = 0x3FB8AA3B
NLOG2E = 0xBFB8AA3B
WF = OPT["w_fl"]

def srd(d, p, nbytes):
    A(f"s_mov_b32 s{d}, s{p}\ns_and_b32 s{d+1}, s{p+1}, 0xffff\ns_mov_b32 s{d+2}, {hex(nbytes)}\ns_mov_b32 s{d+3}, 0x20000")

ts_n = [0]
skip_n = [0]
def ts_reset():
    ts_n[0] = 1 if TS else 0
def ts():
    if not TS: return
    k = ts_n[0]; ts_n[0] += 1
    assert k < 16
    if TS == 3: return
    A(f"s_memrealtime s[72:73]\ns_waitcnt lgkmcnt(0)\nv_writelane_b32 v127, s72, {k}")
def ts_dump():
    if not TS or TS == 5: return
    A("s_mov_b64 exec, -1")
    if TS == 2:
        skip_n[0] += 1
        lb = f"L_sk{skip_n[0]}"
        A(f"s_cmp_lg_u32 s2, {OPT.get('dbgwg', 0)}\ns_cbranch_scc1 {lb}")
        A(f"s_cmp_lg_u32 s30, {OPT.get('dbgwave', 11)}\ns_cbranch_scc1 {lb}")
        srd(76, 26, 256)
        A("v_readlane_b32 s60, v127, 0\ns_nop 1\nv_subrev_u32 v127, s60, v127")
        A("v_lshlrev_b32 v3, 2, v0")
        A("s_mov_b32 exec_lo, 0xffff\ns_mov_b32 exec_hi, 0")
        A("buffer_store_dword v127, v3, s[76:79], 0 offen")
        LB(lb)
        return
    A("s_mul_i32 s60, s2, 12\ns_add_u32 s60, s60, s30\ns_lshl_b32 s60, s60, 6")
    A(f"s_add_u32 s60, s60, {hex(TSB)}")
    A("v_lshlrev_b32 v3, 2, v0")
    A("s_mov_b32 exec_lo, 0xffff\ns_mov_b32 exec_hi, 0")
    A("buffer_store_dword v127, v3, s[44:47], s60 offen")

def tags():
    A("s_add_u32 s58, s56, 0x01010101\ns_add_u32 s59, s57, 0x9e3779b9")
    A("s_and_b32 s88, s58, 0xffff\ns_and_b32 s89, s58, 0xffff0000")

def tagcheck(bases, acc, t0, t1):
    first = True
    for b in bases:
        A(f"v_xor_b32 v{t0}, s58, v{b+1}")
        A(f"v_xor_b32 v{t1}, s59, v{b+3}")
        if first:
            A(f"v_or_b32 v{acc}, v{t0}, v{t1}"); first = False
        else:
            A(f"v_or3_b32 v{acc}, v{acc}, v{t0}, v{t1}")

def tagcheck_dense(bases, acc, t0, t1):
    first = True
    for b in bases:
        A(f"v_perm_b32 v{t0}, v{b+1}, v{b}, s92")
        A(f"v_perm_b32 v{t1}, v{b+3}, v{b+2}, s93")
        A(f"v_xor_b32 v{t0}, s88, v{t0}")
        A(f"v_xor_b32 v{t1}, s89, v{t1}")
        if first:
            A(f"v_or_b32 v{acc}, v{t0}, v{t1}"); first = False
        else:
            A(f"v_or3_b32 v{acc}, v{acc}, v{t0}, v{t1}")

def tagcheck_16(bases, acc, t0, t1):
    for i in range(0, len(bases), 2):
        b0 = bases[i]
        A(f"v_perm_b32 v{t0}, v{b0+1}, v{b0}, s92")
        A(f"v_xor_b32 v{t0}, s88, v{t0}")
        if i + 1 < len(bases):
            b1 = bases[i + 1]
            A(f"v_perm_b32 v{t1}, v{b1+1}, v{b1}, s92")
            A(f"v_xor_b32 v{t1}, s88, v{t1}")
            if i == 0: A(f"v_or_b32 v{acc}, v{t0}, v{t1}")
            else: A(f"v_or3_b32 v{acc}, v{acc}, v{t0}, v{t1}")
        else:
            if i == 0: A(f"v_mov_b32 v{acc}, v{t0}")
            else: A(f"v_or_b32 v{acc}, v{acc}, v{t0}")

def stamp(dst, srcs, tagv):
    for i in range(4):
        A(f"v_perm_b32 v{dst+i}, v{srcs[i]}, v{tagv}, s{94+i}")

def consts():
    A("s_mov_b32 s92, 0x0c0c0400\ns_mov_b32 s93, 0x04000c0c")
    A("s_mov_b32 s94, 0x07060500\ns_mov_b32 s95, 0x07060501\ns_mov_b32 s96, 0x07060502\ns_mov_b32 s97, 0x07060503")

def exec_mask(lo, hi):
    A(f"s_and_b32 exec_lo, s90, {hex(lo)}" if lo != 0xffffffff else "s_mov_b32 exec_lo, s90")
    if hi is not None:
        A(f"s_and_b32 exec_hi, s91, {hex(hi)}" if hi else "s_mov_b32 exec_hi, 0")
def exec_all():
    A("s_mov_b64 exec, s[90:91]")
def memgrp(fn):
    skip_n[0] += 1
    lb = f"L_sk{skip_n[0]}"
    A(f"s_cbranch_execz {lb}")
    fn()
    LB(lb)
def hbar():
    memgrp(lambda: A("s_barrier"))
def dry_end():
    A("s_cbranch_execz L_end")

MIR = MIR_
def ws_srds():
    srd(44, 28, 0x20000000)
    A(f"s_add_u32 s80, s28, {hex(MIR)}\ns_addc_u32 s81, s29, 0\ns_and_b32 s81, s81, 0xffff\ns_mov_b32 s82, {hex(0x20000000-MIR)}\ns_mov_b32 s83, 0x20000")
    A("s_mov_b32 s74, 0")

def publish(data, voff, soff, off=0, dual=True):
    o = f" offset:{off}" if off else ""
    if dual and OPT["dual"]:
        A(f"buffer_store_dwordx4 v[{data}:{data+3}], v{voff}, s[44:47], {soff} offen{o}")
    A(f"buffer_store_dwordx4 v[{data}:{data+3}], v{voff}, s[80:83], {soff} offen{o} sc1")

def poll_check(label, bases, tmp, reissue, chk=tagcheck, grp=1, dual=True):
    dual = dual and OPT["dual"]
    LB(label)
    chk(bases, tmp, tmp + 1, tmp + 2)
    if grp >= 4:
        A(f"s_nop 1\nv_or_b32_dpp v{tmp}, v{tmp}, v{tmp} quad_perm:[1,0,3,2] row_mask:0xf bank_mask:0xf")
        A(f"s_nop 1\nv_or_b32_dpp v{tmp}, v{tmp}, v{tmp} quad_perm:[2,3,0,1] row_mask:0xf bank_mask:0xf")
    if grp >= 8:
        A(f"s_nop 1\nv_or_b32_dpp v{tmp}, v{tmp}, v{tmp} row_half_mirror row_mask:0xf bank_mask:0xf")
    A(f"v_cmp_ne_u32 vcc, 0, v{tmp}")
    A("s_nop 1")
    A(f"s_cbranch_vccz {label}_ok")
    if OPT.get("nopoll"): A(f"s_branch {label}_ok")
    A(f"s_sub_u32 s67, s67, 1\ns_cbranch_scc1 {label}_ok")
    A("s_mov_b64 exec, vcc")
    if OPT["slp"]: A(f"s_sleep {OPT['slp']}")
    if dual:
        A(f"s_add_u32 s74, s74, 1\ns_and_b32 s75, s74, {OPT['bper']-1}\ns_cbranch_scc0 {label}_b")
        reissue("s[44:47]")
        A("s_waitcnt vmcnt(0)")
        A(f"s_branch {label}")
        LB(label + "_b")
    reissue("s[80:83]")
    A("s_waitcnt vmcnt(0)")
    A(f"s_branch {label}")
    LB(label + "_ok")
    exec_all()

def xrow_multi(op, vs, ts_, steps=("v_permlane16_swap_b32", "v_permlane32_swap_b32")):
    for sw in steps:
        for v, t in zip(vs, ts_):
            A(f"v_mov_b32 v{t}, v{v}")
        if len(vs) < 2: A("s_nop 1")
        elif len(vs) < 3: A("s_nop 0")
        for v, t in zip(vs, ts_):
            A(f"{sw} v{v}, v{t}")
        A("s_nop 0")
        for v, t in zip(vs, ts_):
            A(f"{op} v{v}, v{v}, v{t}")

def xrow_t4(v):
    A(f"v_permlane16_swap_b32 v{v}, v{v+1}")
    A(f"v_permlane16_swap_b32 v{v+2}, v{v+3}")
    A("s_nop 0")
    A(f"v_add_f32 v{v}, v{v}, v{v+1}")
    A(f"v_add_f32 v{v+2}, v{v+2}, v{v+3}")
    A("s_nop 1")
    A(f"v_permlane32_swap_b32 v{v}, v{v+2}")
    A("s_nop 0")
    A(f"v_add_f32 v{v}, v{v}, v{v+2}")

def transpose8(raw, dst, pairs=(0, 1, 2, 3)):
    for v in pairs:
        for w in range(4):
            a = raw + 4 * (2 * v) + w
            b = raw + 4 * (2 * v + 1) + w
            A(f"v_perm_b32 v{dst + 4*(2*w) + v}, v{b}, v{a}, s64")
            A(f"v_perm_b32 v{dst + 4*(2*w+1) + v}, v{b}, v{a}, s65")

def bf16_round_pairs(vs, tmp):
    n = len(vs) // 2
    for i in range(n):
        A(f"v_cvt_pk_bf16_f32 v{tmp[i]}, v{vs[2*i]}, v{vs[2*i+1]}")
    for i in range(n):
        A(f"v_lshlrev_b32 v{vs[2*i]}, 16, v{tmp[i]}")
        A(f"v_and_b32 v{vs[2*i+1]}, 0xffff0000, v{tmp[i]}")

def lds_spin(label, addr_v, off, val):
    A(f"s_cbranch_execz {label}_x")
    LB(label)
    A(f"ds_read_b32 v15, v{addr_v} offset:{off}")
    A("s_waitcnt lgkmcnt(0)")
    A("v_readfirstlane_b32 s66, v15")
    A("s_sub_u32 s67, s67, 1")
    A(f"s_cbranch_scc1 {label}_x")
    if OPT.get("lsl") and label in ("L_ispin",): A(f"s_sleep {OPT['lsl']}")
    if OPT.get("ksl") and label in ("L_qspin", "L_mspin", "L_pspin1"):
        A(f"s_cmp_ge_u32 s66, {val}\ns_cbranch_scc1 {label}_x\ns_sleep {OPT['ksl']}")
    A(f"s_cmp_lt_u32 s66, {val}")
    A(f"s_cbranch_scc1 {label}")
    LB(label + "_x")

def lds_spin_data(label, off, val, reads):
    lds_spin(label, 12, off, val)
    reads()
    A("s_waitcnt lgkmcnt(0)")

def rowsum(vs, shifts=(8, 4, 2, 1)):
    for sh in shifts:
        if len(vs) < 3: A("s_nop 1")
        for v in vs:
            A(f"v_add_f32_dpp v{v}, v{v}, v{v} row_ror:{sh} row_mask:0xf bank_mask:0xf")

def dma_voff(dst, stride_sreg_or_shift, t0, t1):
    A(f"v_bfe_u32 v{t0}, v0, 1, 2\nv_bfe_u32 v{t1}, v0, 4, 2\nv_xor_b32 v{t0}, v{t0}, v{t1}")
    A(f"v_and_b32 v{t1}, 1, v0\nv_lshl_add_u32 v{t0}, v{t0}, 1, v{t1}\nv_lshlrev_b32 v{t0}, 4, v{t0}")
    A(f"v_lshrrev_b32 v{t1}, 3, v0")
    if isinstance(stride_sreg_or_shift, int):
        A(f"v_lshl_add_u32 v{dst}, v{t1}, {stride_sreg_or_shift}, v{t0}")
    else:
        A(f"v_mul_lo_u32 v{t1}, v{t1}, {stride_sreg_or_shift}\nv_add_u32 v{dst}, v{t1}, v{t0}")

def tr_addr(dst, q4, t0, t1, base):
    A(f"v_bfe_u32 v{t0}, v0, 3, 2")
    A(f"v_xor_b32 v{t0}, {q4}, v{t0}")
    A(f"v_lshlrev_b32 v{t0}, 5, v{t0}")
    A(f"v_and_b32 v{t1}, 3, v0\nv_lshl_add_u32 v{t0}, v{t1}, 3, v{t0}")
    A(f"v_lshrrev_b32 v{t1}, 2, v0\nv_lshl_add_u32 v{dst}, v{t1}, 7, v{t0}")
    A(f"v_add_u32 v{dst}, {base}, v{dst}")

def tr_read(dst, addr_v, off, t):
    A(f"ds_read_b64_tr_b16 v[{dst}:{dst+1}], v{addr_v} offset:{off + 4096*t}")
    A(f"ds_read_b64_tr_b16 v[{dst+2}:{dst+3}], v{addr_v} offset:{off + 4096*t + 2048}")

def lds_spin2(label, addr_v, off, val):
    A(f"s_cbranch_execz {label}_x")
    LB(label)
    A(f"ds_read_b64 v[14:15], v{addr_v} offset:{off}")
    A("s_waitcnt lgkmcnt(0)")
    A("v_min_u32 v15, v14, v15")
    A("s_sub_u32 s67, s67, 1")
    A("v_readfirstlane_b32 s66, v15")
    A(f"s_cbranch_scc1 {label}_x")
    A(f"s_cmp_lt_u32 s66, {val}")
    A(f"s_cbranch_scc1 {label}")
    LB(label + "_x")

def bump(off):
    exec_mask(1, 0)
    A(f"ds_add_u32 v12, v13 offset:{off}")
    exec_all()

def mfma(d, a, b, c):
    cs = "0" if c is None else f"v[{c}:{c+3}]"
    A(f"v_mfma_f32_16x16x32_bf16 v[{d}:{d+3}], v[{a}:{a+3}], v[{b}:{b+3}], {cs}")

def select4(xs):
    A(f"v_permlane16_swap_b32 v{xs[0]}, v{xs[1]}")
    A(f"v_permlane16_swap_b32 v{xs[2]}, v{xs[3]}")

NWAVES = 16 if OPT["dry"] else 12
L.append(HEADER.rstrip())
L.append(f"; @launch grid=(256,1,1) block=({NWAVES*64},1,1) lds={LDS_BYTES}")
L.append('.amdgcn_target "amdgcn-amd-amdhsa--gfx950"')
L.append(".text")
L.append(f".globl {NAME}\n.p2align 8\n.type {NAME},@function\n{NAME}:")
A("s_cmp_ge_u32 s2, 256\ns_cbranch_scc1 L_end")
if OPT.get("xorwg"): A(f"s_xor_b32 s2, s2, {OPT['xorwg']}")
A("s_load_dwordx16 s[4:19], s[0:1], 0")
A("s_load_dwordx8 s[20:27], s[0:1], 64")
A("s_load_dwordx2 s[28:29], s[0:1], 96")
if TS or OPT.get("diag"): A("s_memrealtime s[72:73]")
A("v_lshrrev_b32 v1, 6, v0")
A("v_and_b32 v0, 63, v0")
A("s_and_b32 s31, s2, 7")
A("v_readfirstlane_b32 s30, v1")
A("s_lshr_b32 s32, s2, 3")
A("s_lshr_b32 s33, s32, 4")
A("s_and_b32 s34, s32, 15")
A(f"s_mov_b32 s67, {OPT['spin']}")
A("s_mov_b64 s[90:91], -1")
A("v_and_b32 v2, 15, v0")
A("v_lshrrev_b32 v3, 4, v0")
A("s_lshr_b32 s52, s32, 3")
A("s_and_b32 s53, s32, 7")
A("s_lshl_b32 s54, s31, 2\ns_add_u32 s54, s54, s52")
A("s_lshl_b32 s50, s33, 3\ns_add_u32 s50, s50, s31\ns_lshl_b32 s50, s50, 23")
A("s_lshl_b32 s51, s34, 16\ns_add_u32 s50, s50, s51\ns_add_u32 s50, s50, 0x700000")
A(f"s_mul_i32 s51, s32, {OPT.get('rotm', 5)}\ns_add_u32 s51, s51, s31")
A("s_cmp_lt_u32 s30, 4\ns_cbranch_scc1 L_special")
if OPT["dry"]: A("s_cmp_ge_u32 s30, 12\ns_cbranch_scc1 L_helper")

def epoch_load():
    if EPO:
        A(f"s_mov_b32 s56, {hex(EPO)}\ns_load_dwordx2 s[56:57], s[28:29], s56")
    else:
        A("s_load_dwordx2 s[56:57], s[28:29], 0")
def fconsts():
    A(f"s_mov_b32 s68, {hex(SCALE)}\ns_mov_b32 s69, {hex(LOG2E)}\ns_mov_b32 s70, {hex(NLOG2E)}")
def ts0():
    if TS: A("v_writelane_b32 v127, s72, 0")

C("================= K / attention waves =================")
ts_reset()
A("s_sub_u32 s35, s30, 4")
A("s_lshl_b32 s62, s35, 1\ns_add_u32 s62, s62, s51")
A("s_add_u32 s63, s62, 1\ns_and_b32 s62, s62, 15\ns_and_b32 s63, s63, 15")
A("s_lshl_b32 s62, s62, 12\ns_lshl_b32 s63, s63, 12")
A("s_add_u32 s61, s50, s63\ns_add_u32 s60, s50, s62")
for u in range(4):
    A(f"v_add_u32 v{104+u}, {4*u}, v3\nv_xor_b32 v{104+u}, v{104+u}, v2\nv_lshlrev_b32 v{104+u}, 4, v{104+u}\nv_lshl_add_u32 v{104+u}, v3, 8, v{104+u}")
A(f"s_lshl_b32 s84, s35, 13\ns_add_u32 s84, s84, {KI}\ns_cmp_eq_u32 s35, 7\ns_cselect_b32 s84, {VI+57344}, s84")
A("s_add_u32 s85, s84, 4096")
A("s_waitcnt lgkmcnt(0)")
ts0()
if TS == 5: A("s_memrealtime s[72:73]\ns_waitcnt lgkmcnt(0)\nv_writelane_b32 v127, s72, 8")
srd(36, 6, 0x8000000)
KR, QR = 16, 80
KVF = OPT["kv_fl"]
def kload(i):
    t, u = i // 4, i % 4
    if u == 0 or i == OPT["ka"]: A(f"s_mov_b32 m0, s{84+t}\ns_nop 0")
    A(f"buffer_load_dwordx4 v{104+u}, s[36:39], s{60+t} offen offset:{u*1024} {KVF} lds")
def kread(t):
    for j in range(4):
        i = 4 * t + j
        A(f"ds_read_b128 v[{KR+4*i}:{KR+4*i+3}], v{108+j} offset:{4096*t}")
FA = "s[44:47]" if OPT["dual"] else "s[80:83]"
def qgather(sr=FA):
    A(f"buffer_load_dwordx4 v[{QR}:{QR+3}], v6, {sr}, s62 offen sc1")
KA, VB = OPT["ka"], OPT["vb"]
A("s_barrier")
if TS == 5: A("s_memrealtime s[72:73]\ns_waitcnt lgkmcnt(0)\nv_writelane_b32 v127, s72, 9")
for i in range(KA): kload(i)
if TS == 5: A("s_waitcnt vmcnt(0)\ns_memrealtime s[72:73]\ns_waitcnt lgkmcnt(0)\nv_writelane_b32 v127, s72, 10" if OPT.get("diag") == 10 else "s_nop 0")
ws_srds()
epoch_load()
fconsts(); consts()
A("s_lshl_b32 s62, s31, 1\ns_add_u32 s62, s62, s33\ns_lshl_b32 s62, s62, 13")
A("s_lshl_b32 s63, s35, 8\ns_add_u32 s62, s62, s63")
A(f"s_add_u32 s62, s62, {hex(QX)}")
A("v_lshlrev_b32 v6, 11, v3\nv_lshl_add_u32 v6, v2, 4, v6")
A(f"v_mov_b32 v12, {CNT}\nv_mov_b32 v13, 1")
for j in range(4):
    A(f"v_add_u32 v{108+j}, {4*j}, v3\nv_xor_b32 v{108+j}, v{108+j}, v2\nv_lshlrev_b32 v{108+j}, 4, v{108+j}\nv_lshl_add_u32 v{108+j}, v2, 8, v{108+j}\nv_add_u32 v{108+j}, s84, v{108+j}")
A("v_and_b32 v14, 3, v2")
A(f"s_lshl_b32 s71, s35, 7\ns_add_u32 s71, s71, {QS}")
A("v_lshl_add_u32 v10, v2, 3, s71\nv_lshl_add_u32 v10, v3, 1, v10")
A(f"v_lshlrev_b32 v11, 8, v14\nv_lshl_add_u32 v11, v3, 4, v11\nv_add_u32 v11, {QS}, v11")
A(f"v_lshlrev_b32 v8, 5, v14\nv_add_u32 v8, {MX}, v8")
A("s_lshl_b32 s71, s35, 2\nv_add_u32 v9, s71, v8")
A(f"v_lshl_add_u32 v7, v3, 2, v14\nv_lshlrev_b32 v7, 4, v7\nv_add_u32 v7, {PS}, v7")
A("s_lshl_b32 s71, s35, 8\nv_add_u32 v5, s71, v7")
A("v_bfe_u32 v120, v0, 2, 3\nv_xor_b32 v120, s35, v120\nv_lshlrev_b32 v120, 5, v120")
A("v_and_b32 v121, 3, v0\nv_lshl_add_u32 v120, v121, 3, v120\nv_lshrrev_b32 v121, 2, v0\nv_lshl_add_u32 v120, v121, 8, v120")
A("v_lshlrev_b32 v121, 9, v14\nv_lshl_add_u32 v121, v3, 4, v121")
A(f"s_lshl_b32 s76, s31, 5\ns_add_u32 s49, s76, s32\ns_mul_i32 s49, s49, {OBS}\ns_add_u32 s49, s49, {hex(H1)}")
A("s_lshl_b32 s71, s35, 6\ns_add_u32 s48, s49, s71")
A(f"v_lshrrev_b32 v122, 3, v2\nv_lshl_add_u32 v122, v122, 4, v3\nv_mul_u32_u24 v122, {OBS}, v122")
A("v_and_b32 v123, 7, v2\nv_lshl_add_u32 v122, v123, 4, v122")
A(f"s_mul_i32 s76, s76, {OBS}\ns_add_u32 s76, s76, {hex(H1)}")
A("s_lshl_b32 s71, s52, 9\ns_add_u32 s76, s76, s71\ns_lshl_b32 s71, s35, 7\ns_add_u32 s76, s76, s71")
for i in range(1, 4): A(f"s_add_u32 s{76+i}, s76, {i*4*OBS}")
A(f"s_lshl_b32 s71, s35, 6\ns_add_u32 s71, s71, {OV}")
A("v_lshrrev_b32 v124, 3, v2\nv_lshlrev_b32 v124, 8, v124\nv_lshl_add_u32 v124, v123, 3, v124\nv_lshl_add_u32 v124, v3, 1, v124\nv_add_u32 v124, s71, v124")
A("s_waitcnt lgkmcnt(0)")
tags()
lds_spin("L_b1", 12, O_B1, 1)
ts()
for i in range(KA, 8): kload(i)
bump(O_B3)
lds_spin("L_b3", 12, O_B3, 8)
ts()
qgather()
bump(O_B2)
VB2 = 0
ts()
if OPT.get("prio"): A(f"s_setprio {OPT['prio']}")
LB("L_d0")
if VB2:
    A("s_waitcnt vmcnt(1)")
    tagcheck_dense([QR], 88, 89, 90)
    A("v_cmp_ne_u32 vcc, 0, v88\ns_nop 1\ns_cbranch_vccz L_qchk_ok")
    A("s_waitcnt vmcnt(0)")
    for c in range(4): A(f"v_mov_b32 v{QR+c}, v{QR+4+c}")
    if TS: A("s_mov_b32 s74, 0x100")
else:
    A("s_waitcnt vmcnt(5)")
    kread(0)
    A("s_waitcnt vmcnt(1)")
    kread(1)
    A("s_cmp_lg_u32 s35, 7\ns_cbranch_scc1 L_nok7")
    A("s_waitcnt lgkmcnt(0)")
    bump(O_K7)
    LB("L_nok7")
    A("s_waitcnt vmcnt(0)")
poll_check("L_qchk", [QR], 88, qgather, tagcheck_dense, 4)
if TS: A("v_writelane_b32 v127, s74, 13")
ts()
for c in range(4): A(f"v_and_b32 v{QR+c}, 0xffffff00, v{QR+c}")
A("s_nop 0")
xrow_t4(QR)
A(f"v_cvt_pk_bf16_f32 v{QR}, v{QR}, v{QR}")
A(f"ds_write_b16 v10, v{QR}")
bump(O_Q)
def qreads():
    for j in range(4):
        A(f"ds_read_b128 v[{QR+4*j}:{QR+4*j+3}], v11 offset:{64*j}")
lds_spin_data("L_qspin", O_Q, 8, qreads)
for j in range(4):
    for t in range(2):
        k = KR + 4 * (4 * t + j)
        mfma(96 + 4 * t, k, QR + 4 * j, None if j == 0 else 96 + 4 * t)
A("s_nop 7\ns_nop 1")
S = list(range(96, 104))
bf16_round_pairs(S, [112, 113, 114, 115])
for v in S: A(f"v_mul_f32 v{v}, s68, v{v}")
bf16_round_pairs(S, [112, 113, 114, 115])
A("v_max3_f32 v116, v96, v97, v98\nv_max3_f32 v116, v116, v99, v100\nv_max3_f32 v116, v116, v101, v102\nv_max_f32 v116, v116, v103")
xrow_multi("v_max_f32", [116], [117])
exec_mask(0xf, 0)
A("ds_write_b32 v9, v116")
bump(O_M)
lds_spin_data("L_mspin", O_M, 8, lambda: A("ds_read_b128 v[104:107], v8\nds_read_b128 v[108:111], v8 offset:16"))
A("v_max3_f32 v116, v104, v105, v106\nv_max3_f32 v116, v116, v107, v108\nv_max3_f32 v116, v116, v109, v110\nv_max_f32 v116, v116, v111")
A("v_mul_f32 v117, s70, v116")
for v in S: A(f"v_fma_f32 v{v}, v{v}, s69, v117")
for v in S: A(f"v_exp_f32 v{v}, v{v}")
A("v_or_b32 v125, s88, v116")
for i in range(4): A(f"v_cvt_pk_bf16_f32 v{112+i}, v{96+2*i}, v{97+2*i}")
A("v_add_f32 v117, v96, v97\nv_add_f32 v118, v98, v99\nv_add_f32 v119, v100, v101\nv_add_f32 v104, v102, v103")
A("v_add_f32 v117, v117, v118\nv_add_f32 v119, v119, v104\nv_add_f32 v117, v117, v119")
exec_mask(0x000f000f, 0x000f000f)
A("ds_write_b128 v5, v[112:115]")
exec_all()
xrow_multi("v_add_f32", [117], [118])
exec_mask(0xf, 0)
A("ds_write_b32 v9, v117 offset:128")
bump(O_P)
PR, VO = 16, 48
def preads():
    A(f"ds_read_b64 v[118:119], v12 offset:{O_VL}")
    for k in range(8):
        A(f"ds_read_b128 v[{PR+4*k}:{PR+4*k+3}], v7 offset:{256*k}")
lds_spin_data("L_pspin1", O_P, 8, preads)
A("v_min_u32 v118, v118, v119")
A("s_nop 0")
A("v_readfirstlane_b32 s71, v118")
A("s_cmp_lg_u32 s35, 7\ns_cbranch_scc1 L_nol")
A("ds_read_b128 v[104:107], v8 offset:128\nds_read_b128 v[108:111], v8 offset:144")
A("v_lshlrev_b32 v10, 4, v2")
A("v_mov_b32 v97, s58\nv_mov_b32 v98, v116\nv_mov_b32 v99, s59")
A("s_waitcnt lgkmcnt(0)")
A("v_add_f32 v104, v104, v105\nv_add_f32 v106, v106, v107\nv_add_f32 v108, v108, v109\nv_add_f32 v110, v110, v111")
A("v_add_f32 v104, v104, v106\nv_add_f32 v108, v108, v110\nv_add_f32 v96, v104, v108")
exec_mask(0xf, 0)
memgrp(lambda: publish(96, 10, "s49", 2048))
exec_all()
LB("L_nol")
ts()
dry_end()
LB("L_d1")
def vstep(ks, first):
    for k in ks:
        A(f"ds_read_b64_tr_b16 v[{VO+4*k}:{VO+4*k+1}], v120 offset:{VI + 8192*k}")
        A(f"ds_read_b64_tr_b16 v[{VO+4*k+2}:{VO+4*k+3}], v120 offset:{VI + 8192*k + 4096}")
    for i, k in enumerate(ks):
        A(f"s_waitcnt lgkmcnt({2*(len(ks)-1-i)})")
        mfma(80, VO + 4 * k, PR + 4 * k, None if (first and i == 0) else 80)
A("s_cmp_lt_u32 s71, 7\ns_cbranch_scc1 L_vinc")
vstep([0, 1, 2, 3, 4, 5, 6], True)
A("s_cbranch_execnz L_vlast")
LB("L_vinc")
lds_spin2("L_v1", 12, O_VL, 4)
vstep([0, 1, 2, 3], True)
lds_spin2("L_v2", 12, O_VL, 6)
vstep([4, 5], False)
lds_spin2("L_v3", 12, O_VL, 7)
vstep([6], False)
LB("L_vlast")
hbar()
ts()
vstep([7], False)
exec_mask(0x000f000f, 0x000f000f)
A("s_nop 5")
stamp(84, [80, 81, 82, 83], 125)
memgrp(lambda: publish(84, 121, "s48"))
exec_all()
hbar()
ts()
A("s_cmp_ge_u32 s35, 4\ns_cbranch_scc1 L_kv_h2")
GR = 80
def h1gather(sr=FA):
    for i in range(4):
        A(f"buffer_load_dwordx4 v[{GR+4*i}:{GR+4*i+3}], v122, {sr}, s{76+i} offen sc1")
ts()
memgrp(h1gather)
A("s_waitcnt vmcnt(0)")
ts()
poll_check("L_h1chk", [GR + 4 * i for i in range(4)], 116, h1gather, tagcheck_16, 8)
ts()
for i in range(4): A(f"v_perm_b32 v{100+i}, v{GR+4*i+3}, v{GR+4*i+2}, s93")
A("v_max3_f32 v116, v100, v101, v102\nv_max_f32 v116, v116, v103")
xrow_multi("v_max_f32", [116], [117])
A("v_mul_f32 v117, s70, v116")
for i in range(4): A(f"v_fma_f32 v{100+i}, v{100+i}, s69, v117")
for i in range(4): A(f"v_exp_f32 v{100+i}, v{100+i}")
for c in range(16): A(f"v_and_b32 v{GR+c}, 0xffffff00, v{GR+c}")
for c in range(4): A(f"v_mul_f32 v{104+c}, v100, v{GR+c}")
for i in range(1, 4):
    for c in range(4): A(f"v_fmac_f32 v{104+c}, v{100+i}, v{GR+4*i+c}")
A("s_nop 0")
xrow_t4(104)
A("v_cvt_pk_bf16_f32 v104, v104, v104")
A("ds_write_b16 v124, v104")
A("s_waitcnt lgkmcnt(0)")
hbar()
ts()
if OPT["dry"]: A("s_cbranch_execz L_d2")
A("s_branch L_kv_done")
LB("L_kv_h2")
A("s_cmp_lg_u32 s35, 7\ns_cbranch_scc1 L_kv_bo")
A("s_cmp_ge_u32 s2, 128\ns_cbranch_scc1 L_kv_bo")
LB("L_d2")
if TS: ts_n[0] = 12
srd(48, 24, 2048)
A("s_lshl_b32 s60, s2, 11")
A(f"s_add_u32 s60, s60, {hex(H2)}")
A("v_lshlrev_b32 v5, 4, v0")
def h2gather(sr="s[80:83]"):
    A(f"buffer_load_dwordx4 v[16:19], v5, {sr}, s60 offen sc1")
    A(f"buffer_load_dwordx4 v[20:23], v5, {sr}, s60 offen offset:1024 sc1")
A("v_mov_b32 v8, 0")
A("s_lshl_b32 s62, s2, 3")
hbar()
if TS == 5: A("s_memrealtime s[72:73]\ns_waitcnt lgkmcnt(0)\nv_writelane_b32 v127, s72, 11")
memgrp(h2gather)
A("s_waitcnt vmcnt(0)")
poll_check("L_h2chk", [16, 20], 24, h2gather, dual=False)
ts()
A("v_add_f32 v16, v16, v20\nv_add_f32 v18, v18, v22")
rowsum([16, 18], shifts=(8, 4))
xrow_multi("v_add_f32", [16, 18], [17, 19])
A("s_nop 0")
for i, qp in enumerate(("[1,1,1,1]", "[2,2,2,2]", "[3,3,3,3]")):
    A(f"v_mov_b32_dpp v{24+i}, v16 quad_perm:{qp} row_mask:0xf bank_mask:0xf")
    A(f"v_mov_b32_dpp v{28+i}, v18 quad_perm:{qp} row_mask:0xf bank_mask:0xf")
A("v_cvt_pk_bf16_f32 v32, v16, v24\nv_cvt_pk_bf16_f32 v33, v25, v26")
A("v_cvt_pk_bf16_f32 v34, v18, v28\nv_cvt_pk_bf16_f32 v35, v29, v30")
exec_mask(1, 0)
if OPT["dry"]: A("s_cbranch_execz L_spre")
A("buffer_store_dwordx2 v[32:33], v8, s[48:51], s62 offen")
A("buffer_store_dwordx2 v[34:35], v8, s[48:51], s62 offen offset:1024")
if OPT.get("diag"):
    A(f"v_readlane_b32 s73, v127, {OPT['diag']}\nv_readlane_b32 s99, v127, {OPT.get('diag0', 0)}")
    A("s_memrealtime s[100:101]\ns_waitcnt lgkmcnt(0)")
    A(f"s_sub_u32 s73, s73, s99\ns_mul_i32 s73, s73, {OPT.get('diagm', 8)}\ns_add_u32 s73, s73, s100")
    LB("L_diag")
    A("s_memrealtime s[98:99]\ns_waitcnt lgkmcnt(0)\ns_sub_u32 s99, s98, s73\ns_cmp_lt_i32 s99, 0\ns_cbranch_scc1 L_diag")
A("s_cmp_lg_u32 s2, 0\ns_cbranch_scc1 L_kv_done")
A("v_mov_b32 v36, s58\nv_mov_b32 v37, s59")
A(f"s_mov_b32 s62, {hex(EPO)}")
A("buffer_store_dwordx2 v[36:37], v8, s[44:47], s62 offen sc1")
A("s_branch L_kv_done")
LB("L_kv_bo")
A("s_barrier")
LB("L_kv_done")
if TS:
    A("s_memrealtime s[72:73]\ns_waitcnt lgkmcnt(0)\nv_writelane_b32 v127, s72, 15")
ts_dump()
A("s_endpgm")

if OPT["dry"]:
    LB("L_helper")
    C("================= dry-run helpers: warm the instruction cache =================")
    if OPT.get("cpf"):
        A("s_getpc_b64 s[60:61]")
        LB("L_pc")
        A(f"s_sub_u32 s60, s60, L_pc-{NAME}\ns_subb_u32 s61, s61, 0")
        A(f"s_sub_u32 s62, s30, 12\ns_mul_i32 s62, s62, {OPT['cpf']*128}\ns_add_u32 s60, s60, s62\ns_addc_u32 s61, s61, 0")
        for i in range(OPT["cpf"]): A(f"s_load_dword s{36+(i%8)}, s[60:61], {128*i}")
    A("s_barrier")
    for v in list(range(4, 16)) + list(range(104, 112)) + [120, 121, 122, 123, 124]: A(f"v_mov_b32 v{v}, 0")
    A("s_waitcnt lgkmcnt(0)")
    ws_srds()
    A("s_mov_b64 s[90:91], 0\ns_mov_b64 exec, 0")
    A("s_mov_b32 s35, 7\ns_mov_b32 s48, 0\ns_mov_b32 s49, 1\ns_mov_b32 s60, 0\ns_mov_b32 s61, 0\ns_mov_b32 s62, 0\ns_mov_b32 s63, 0")
    A("s_cmp_eq_u32 s30, 12\ns_cbranch_scc1 L_d0")
    A("s_cmp_eq_u32 s30, 14\ns_cbranch_scc1 L_d5")
    A("s_cmp_eq_u32 s30, 15\ns_cbranch_scc1 L_d3")
    A("s_mov_b32 s35, 0\ns_mov_b32 s71, 8")
    A("s_branch L_d1")
    LB("L_spre")
    if OPT["spre"]:
        A(f"s_lshl_b32 s60, s31, 5\ns_add_u32 s60, s60, s32\ns_mul_i32 s60, s60, {OBS}\ns_add_u32 s60, s60, {hex(H1)}")
        A("s_add_u32 s62, s28, s60\ns_addc_u32 s63, s29, 0")
        if OPT["spre"] & 1:
            for i in range(17): A(f"s_load_dword s{4+(i%8)}, s[62:63], {128*i}")
        A(f"s_lshl_b32 s60, s2, 11\ns_add_u32 s60, s60, {hex(H2+MIR)}")
        A("s_add_u32 s62, s28, s60\ns_addc_u32 s63, s29, 0")
        if OPT["spre"] & 2:
            A("s_cmp_ge_u32 s2, 128\ns_cbranch_scc1 L_end")
            for i in range(16): A(f"s_load_dword s{4+(i%8)}, s[62:63], {128*i}")
    A("s_endpgm")

LB("L_special")
C("================= special waves =================")
ts_reset()
A("s_and_b32 s49, s54, 7\ns_cmp_lg_u32 s49, 7\ns_cselect_b32 s49, 1, 0")
A("s_lshr_b32 s55, s54, 3\ns_sub_u32 s55, s54, s55")
A("v_and_b32 v6, 1, v2\nv_lshlrev_b32 v6, 10, v6\nv_lshl_add_u32 v6, v3, 3, v6")
A("s_cmp_eq_u32 s30, 0\ns_cbranch_scc1 L_w0")
A("s_cmp_eq_u32 s30, 1\ns_cbranch_scc1 L_w1")
A("s_cmp_eq_u32 s30, 3\ns_cbranch_scc1 L_w3")
A("s_waitcnt lgkmcnt(0)")
ts0()
ws_srds()
epoch_load()
if OPT.get("tlbw", 0):
    A("v_mov_b32 v4, 0")
    A("s_mov_b32 exec_lo, 1\ns_mov_b32 exec_hi, 0")
    srd(36, 24, 2048)
    A("buffer_load_dword v16, v4, s[36:39], 0 offen")
    srd(40, 8, 0x8000000)
    A(f"buffer_load_dword v17, v4, s[40:43], s50 offen {KVF}")
    srd(76, 12, 0x400000)
    A("s_lshl_b32 s60, s54, 17")
    A(f"buffer_load_dword v18, v4, s[76:79], s60 offen {WF}")
    srd(84, 20, 1792 * 1024)
    A("s_lshl_b32 s60, s55, 16")
    A(f"buffer_load_dword v19, v4, s[84:87], s60 offen {WF}")
    A("s_mov_b64 exec, -1")
A("s_barrier")
if OPT["dry"]:
    for v in range(4, 16): A(f"v_mov_b32 v{v}, 0")
    A("s_mov_b64 exec, 0")
    A("s_branch L_d4")
LB("L_w2ret")
A("s_mov_b64 exec, -1")
fconsts(); consts()
A("s_waitcnt lgkmcnt(0)")
tags()
A("s_branch L_vload")

LB("L_w3")
A("v_lshlrev_b32 v5, 4, v0")
A(f"v_mov_b32 v4, {CNT}\nv_mov_b32 v8, 0\nv_mov_b32 v9, 0\nv_mov_b32 v10, 0\nv_mov_b32 v11, 0")
A("ds_write_b128 v4, v[8:11]")
A("ds_write_b128 v4, v[8:11] offset:16")
A("ds_write_b128 v4, v[8:11] offset:32")
A("ds_write_b128 v4, v[8:11] offset:48")
A("s_waitcnt lgkmcnt(0)")
ts0()
srd(36, 4, 2048)
srd(40, 22, 1024)
A("buffer_load_dwordx4 v[16:19], v5, s[36:39], 0 offen")
A("buffer_load_dwordx4 v[20:23], v5, s[36:39], 0 offen offset:1024")
A("buffer_load_dwordx4 v[24:27], v5, s[40:43], 0 offen")
A("s_barrier")
ws_srds()
epoch_load()
fconsts(); consts()
A("s_waitcnt vmcnt(0)")
for src, dst in ((24, 32), (16, 40), (20, 48)):
    for w in range(4):
        A(f"v_lshlrev_b32 v{dst+2*w}, 16, v{src+w}\nv_and_b32 v{dst+2*w+1}, 0xffff0000, v{src+w}")
for b in range(2):
    for e in range(8):
        A(f"v_mul_f32 v{40+8*b+e}, v{40+8*b+e}, v{32+e}")
bf16_round_pairs(list(range(40, 56)), list(range(16, 24)))
for b in range(2):
    o = 40 + 8 * b
    A(f"v_add_f32 v{o}, v{o}, v{o+1}\nv_add_f32 v{o+2}, v{o+2}, v{o+3}\nv_add_f32 v{o+4}, v{o+4}, v{o+5}\nv_add_f32 v{o+6}, v{o+6}, v{o+7}")
    A(f"v_add_f32 v{o}, v{o}, v{o+2}\nv_add_f32 v{o+4}, v{o+4}, v{o+6}\nv_add_f32 v{o}, v{o}, v{o+4}")
rowsum([40, 48])
xrow_multi("v_add_f32", [40, 48], [41, 49])
A("v_mov_b32 v41, v48")
bf16_round_pairs([40, 41], [16])
A("v_mul_f32 v40, s70, v40\nv_mul_f32 v41, s70, v41")
A("v_exp_f32 v40, v40\nv_exp_f32 v41, v41")
A("s_nop 0")
A("v_add_f32 v40, 1.0, v40\nv_add_f32 v41, 1.0, v41")
A("v_rcp_f32 v40, v40\nv_rcp_f32 v41, v41")
A("s_nop 0")
bf16_round_pairs([40, 41], [16])
A("v_sub_f32 v42, 1.0, v40\nv_sub_f32 v43, 1.0, v41")
bf16_round_pairs([42, 43], [16])
A(f"v_mov_b32 v4, {GT}")
A("ds_write_b128 v4, v[40:43]")
A("s_waitcnt lgkmcnt(0)")
tags()

LB("L_vload")
srd(40, 8, 0x8000000)
A("s_sub_u32 s35, s30, 2")
A("s_lshl_b32 s60, s35, 2\nv_add_u32 v4, s60, v3\nv_lshrrev_b32 v5, 1, v2\nv_xor_b32 v4, v4, v5")
A("v_and_b32 v5, 1, v2\nv_lshl_add_u32 v4, v4, 1, v5\nv_lshlrev_b32 v4, 4, v4\nv_lshl_add_u32 v4, v3, 8, v4")
A("s_lshl_b32 s61, s35, 10\ns_add_u32 s62, s50, s61")
A("s_and_b32 s60, s51, 15\ns_lshl_b32 s60, s60, 12")
A(f"v_mov_b32 v12, {CNT}\nv_mov_b32 v13, 1")
A(f"s_lshl_b32 s63, s35, 2\ns_add_u32 s63, s63, {CNT+O_VL}\nv_mov_b32 v11, s63")
A("v_mov_b32 v8, 4\nv_mov_b32 v9, 6\nv_mov_b32 v10, 8\nv_mov_b32 v7, 7")
def vblk(i):
    A(f"s_add_u32 s63, s62, s60\ns_add_u32 m0, s61, {VI + 4096*i}")
    A("s_add_u32 s60, s60, 4096\ns_and_b32 s60, s60, 0xffff")
    A(f"buffer_load_dwordx4 v4, s[40:43], s63 offen {KVF} lds")
    A(f"buffer_load_dwordx4 v4, s[40:43], s63 offen offset:2048 {KVF} lds")
lds_spin("L_b2", 12, O_B2, 8)
VB = 0
IB = OPT.get("ib", 16)
for i in range(2 * VB, 17):
    if VB2 and i == 2 * VB + VB2: A("s_barrier\ns_barrier")
    if i == max(IB, 2 * VB):
        A("s_mov_b32 exec_lo, 1\ns_mov_b32 exec_hi, 0")
        A(f"ds_add_u32 v12, v13 offset:{O_I}")
        A("s_mov_b64 exec, -1")
    if OPT.get("w1e") and i == OPT.get("hb", 6):
        A("s_mov_b32 exec_lo, 1\ns_mov_b32 exec_hi, 0")
        A(f"ds_add_u32 v12, v13 offset:{O_V}")
        A("s_mov_b64 exec, -1")
    if i == 14: lds_spin("L_k7spin", 12, O_K7, 1)
    if i < 16: vblk(i)
A("s_mov_b32 exec_lo, 1\ns_mov_b32 exec_hi, 0")
ts()
A("s_waitcnt vmcnt(16)")
A("ds_write_b32 v11, v8")
ts()
A("s_waitcnt vmcnt(8)")
A("ds_write_b32 v11, v9")
A("s_waitcnt vmcnt(4)")
A("ds_write_b32 v11, v7")
A("s_mov_b64 exec, -1")
A("s_waitcnt vmcnt(0)")
A("s_barrier")
ts()
A("s_branch L_final")

LB("L_w0")
ts_reset()
if OPT.get("w0p"): A("s_setprio 3")
dma_voff(4, 13, 8, 9)
A("s_lshl_b32 s60, s52, 20\ns_lshl_b32 s61, s31, 10\ns_add_u32 s60, s60, s61\ns_lshl_b32 s61, s53, 7\ns_add_u32 s60, s60, s61")
A("s_lshl_b32 s61, s52, 8")
A("s_waitcnt lgkmcnt(0)")
ts0()
srd(40, 10, 0x400000)
for i in range(16):
    A(f"s_mov_b32 m0, {WQI+1024*i}")
    if i: A(f"s_add_u32 s60, s60, {8*8192}")
    else: A("s_nop 0")
    A(f"buffer_load_dwordx4 v4, s[40:43], s60 offen {WF} lds")
srd(36, 4, 2048)
XA, BB, AC = 16, 32, 96
for t in range(4):
    A(f"buffer_load_dwordx2 v[{XA+4*t}:{XA+4*t+1}], v6, s[36:39], s61 offen offset:{64*t}")
    A(f"buffer_load_dwordx2 v[{XA+4*t+2}:{XA+4*t+3}], v6, s[36:39], s61 offen offset:{64*t+32}")
A("s_barrier")
ws_srds()
epoch_load()
fconsts(); consts()
for q4 in range(4): tr_addr(8 + q4, q4, 12, 13, WQI)
A(f"v_lshlrev_b32 v12, 2, v0\nv_add_u32 v12, {QT}, v12\nv_and_b32 v13, 31, v0\nv_lshlrev_b32 v13, 4, v13\nv_add_u32 v13, {QT}, v13")
A("v_and_b32 v14, 1, v3\nv_lshlrev_b32 v14, 13, v14\nv_lshl_add_u32 v14, v2, 4, v14")
A("s_lshl_b32 s62, s31, 14\ns_lshl_b32 s63, s52, 11\ns_add_u32 s62, s62, s63\ns_lshl_b32 s63, s53, 8\ns_add_u32 s62, s62, s63")
A(f"s_add_u32 s62, s62, {hex(QX)}")
A("s_waitcnt lgkmcnt(0)")
tags()
A("v_mov_b32 v5, s58")
A("s_waitcnt vmcnt(0)")
ts()
LB("L_d4")
seq = [(q4, t) for q4 in range(4) for t in range(4)]
D = 6
def issue(k):
    q4, t = seq[k]; tr_read(BB + 4 * k, 8 + q4, 0, t)
for k in range(D): issue(k)
for k in range(16):
    q4, t = seq[k]
    A(f"s_waitcnt lgkmcnt({2*(min(16,k+D)-k)-2})")
    mfma(AC + 4 * q4, XA + 4 * t, BB + 4 * k, None if t == 0 else AC + 4 * q4)
    if k + D < 16: issue(k + D)
A("s_nop 7\ns_nop 1")
for r in range(2): select4([AC + 4 * q + r for q in range(4)])
A("s_nop 0")
for r in range(2): A(f"v_permlane32_swap_b32 v{AC+r}, v{AC+8+r}")
A("s_nop 0")
A(f"ds_write_b32 v12, v{AC}\nds_write_b32 v12, v{AC+1} offset:256")
A("ds_read_b128 v[116:119], v13")
A("s_waitcnt lgkmcnt(0)")
stamp(112, [116, 117, 118, 119], 5)
A("s_mov_b32 exec_hi, 0")
A("s_cbranch_execz L_w2ret")
publish(112, 14, "s62")
A(f"v_mov_b32 v12, {CNT}\nv_mov_b32 v8, 1")
A(f"ds_write_b32 v12, v8 offset:{O_B1}")
A("s_mov_b64 exec, -1")
ts()
srd(36, 12, 0x400000)
srd(40, 20, 1792 * 1024)
dma_voff(4, 10, 8, 9)
if OPT.get("cshift"):
    A(f"s_add_u32 s63, s53, {OPT['cshift']}\ns_and_b32 s63, s63, 7\ns_lshl_b32 s63, s63, 7\ns_lshl_b32 s60, s54, 17\ns_add_u32 s60, s60, s63")
else:
  A("s_lshl_b32 s60, s54, 17\ns_lshl_b32 s63, s53, 7\ns_add_u32 s60, s60, s63")
A("s_lshl_b32 s61, s55, 16\ns_add_u32 s61, s61, s63")
A(f"v_mov_b32 v12, {CNT}\nv_mov_b32 v8, 1\nv_mov_b32 v9, 2\nv_mov_b32 v10, 3")
lds_spin("L_ispin", 12, O_I, 3)
ts()
A("s_cmp_eq_u32 s49, 0\ns_cbranch_scc1 L_w0_nowd")
for i in range(8):
    A(f"s_mov_b32 m0, {WDI+1024*i}")
    if i: A(f"s_add_u32 s61, s61, {8*1024}")
    else: A("s_nop 0")
    A(f"buffer_load_dwordx4 v4, s[40:43], s61 offen {WF} lds")
LB("L_w0_nowd")
for i in range(16):
    A(f"s_mov_b32 m0, {WOI+1024*i}")
    if i: A(f"s_add_u32 s60, s60, {8*1024}")
    else: A("s_nop 0")
    A(f"buffer_load_dwordx4 v4, s[36:39], s60 offen {WF} lds")
ts()
A("s_barrier\ns_barrier")
A("s_waitcnt vmcnt(16)")
A(f"ds_write_b32 v12, v8 offset:{O_STAGE}")
ts()
A("s_waitcnt vmcnt(8)")
A(f"ds_write_b32 v12, v9 offset:{O_STAGE}")
ts()
A("s_waitcnt vmcnt(0)")
A(f"ds_write_b32 v12, v10 offset:{O_STAGE}")
ts()
A("s_mov_b32 s75, 1")
A("s_branch L_final0")

LB("L_w1_idle")
A("s_waitcnt lgkmcnt(0)")
ts0()
ws_srds()
epoch_load()
A("s_barrier")
fconsts(); consts()
A("s_waitcnt lgkmcnt(0)")
tags()
A(f"v_mov_b32 v11, {CNT}\nv_mov_b32 v14, 1")
A("s_mov_b32 exec_lo, 1\ns_mov_b32 exec_hi, 0")
A(f"ds_add_u32 v11, v14 offset:{O_I}")
A("s_mov_b64 exec, -1")
A("s_barrier")
A("s_branch L_final")
LB("L_w1")
ts_reset()
A("s_cmp_eq_u32 s49, 0\ns_cbranch_scc1 L_w1_idle")
A("s_movk_i32 s60, 3584")
dma_voff(4, "s60", 8, 9)
A("s_mul_i32 s60, s53, 64*3584\ns_lshl_b32 s61, s55, 7\ns_add_u32 s60, s60, s61")
A("s_lshl_b32 s61, s53, 7")
A("s_waitcnt lgkmcnt(0)")
ts0()
srd(36, 16, 512 * 3584)
srd(40, 18, 512 * 3584)
for i in range(8):
    A(f"s_mov_b32 m0, {GI+1024*i}")
    if i: A(f"s_add_u32 s60, s60, {8*3584}")
    else: A("s_nop 0")
    A(f"buffer_load_dwordx4 v4, s[36:39], s60 offen {WF} lds")
    A(f"s_mov_b32 m0, {UI+1024*i}\ns_nop 0")
    A(f"buffer_load_dwordx4 v4, s[40:43], s60 offen {WF} lds")
srd(76, 4, 2048)
for t in range(2):
    A(f"buffer_load_dwordx2 v[{XA+4*t}:{XA+4*t+1}], v6, s[76:79], s61 offen offset:{64*t}")
    A(f"buffer_load_dwordx2 v[{XA+4*t+2}:{XA+4*t+3}], v6, s[76:79], s61 offen offset:{64*t+32}")
A("s_barrier")
ws_srds()
epoch_load()
fconsts(); consts()
for q4 in range(4): tr_addr(8 + q4, q4, 12, 13, GI)
A("v_lshlrev_b32 v5, 4, v0")
A("s_lshl_b32 s62, s55, 13")
A(f"s_add_u32 s62, s62, {hex(HX)}")
A("s_lshl_b32 s63, s53, 10\ns_add_u32 s63, s63, s62")
A("s_add_u32 s61, s62, 4096")
A(f"v_lshlrev_b32 v12, 1, v0\nv_add_u32 v12, {HS}, v12")
A(f"v_mov_b32 v13, {CNT+O_H}\nv_mov_b32 v14, 1")
A("s_waitcnt lgkmcnt(0)")
tags()
A("v_mov_b32 v4, s58")
A("s_waitcnt vmcnt(0)")
ts()
LB("L_d5")
seq = [(mat, q4, t) for mat in range(2) for q4 in range(4) for t in range(2)]
BB1 = 24
AC1 = 88
def issue(k):
    mat, q4, t = seq[k]; tr_read(BB1 + 4 * k, 8 + q4, (UI - GI) if mat else 0, t)
for k in range(D): issue(k)
for k in range(16):
    mat, q4, t = seq[k]
    A(f"s_waitcnt lgkmcnt({2*(min(16,k+D)-k)-2})")
    acc = AC1 + 16 * mat + 4 * q4
    mfma(acc, XA + 4 * t, BB1 + 4 * k, None if t == 0 else acc)
    if k + D < 16: issue(k + D)
A("s_nop 7\ns_nop 1")
for mat in range(2):
    for r in range(2): select4([AC1 + 16 * mat + 4 * q + r for q in range(4)])
A("s_nop 0")
for mat in range(2):
    for r in range(2): A(f"v_permlane32_swap_b32 v{AC1+16*mat+r}, v{AC1+16*mat+8+r}")
A("s_nop 0")
stamp(120, [AC1, AC1 + 1, AC1 + 16, AC1 + 17], 4)
dry_end()
publish(120, 5, "s63")
ts()
HG = 16
def hgather(sr=FA):
    for rb in range(8):
        r = HG + 4 * rb
        A(f"buffer_load_dwordx4 v[{r}:{r+3}], v5, {sr}, s{62 - rb//4} offen offset:{(rb%4)*1024} sc1")
A(f"v_mov_b32 v11, {CNT}")
A("s_mov_b32 exec_lo, 1\ns_mov_b32 exec_hi, 0")
A(f"ds_add_u32 v11, v14 offset:{O_I}")
A("s_mov_b64 exec, -1")
lds_spin("L_hw", 11, O_V, 2)
hgather()
ts()
LB("L_d3")
A("s_waitcnt vmcnt(0)")
poll_check("L_hchk", [HG + 4 * i for i in range(8)], 96, hgather, tagcheck_dense, 4)
ts()
for c in range(32): A(f"v_and_b32 v{HG+c}, 0xffffff00, v{HG+c}")
for step in (16, 8, 4):
    for base in range(HG, HG + step, 4):
        for o in range(4):
            A(f"v_add_f32 v{base+o}, v{base+o}, v{base+step+o}")
bf16_round_pairs([16, 17, 18, 19], [24, 25])
A("v_mul_f32 v24, s70, v16\nv_mul_f32 v25, s70, v17")
A("v_exp_f32 v24, v24\nv_exp_f32 v25, v25")
A("s_nop 0")
A("v_add_f32 v24, 1.0, v24\nv_add_f32 v25, 1.0, v25")
A("v_rcp_f32 v24, v24\nv_rcp_f32 v25, v25")
A("s_nop 0")
A("v_mul_f32 v16, v16, v24\nv_mul_f32 v17, v17, v25")
bf16_round_pairs([16, 17], [24])
A("v_mul_f32 v16, v16, v18\nv_mul_f32 v17, v17, v19")
A("v_cvt_pk_bf16_f32 v24, v16, v17")
A("ds_write_b16 v12, v24")
A("ds_write_b16_d16_hi v12, v24 offset:128")
A("ds_write_b32 v13, v14")
ts()
hbar()

LB("L_final")
A("s_mov_b32 s75, 0")
LB("L_final0")
if TS: ts_n[0] = 8
tr_addr(8, "s30", 12, 13, WOI)
A(f"v_mov_b32 v12, {CNT}")
A(f"v_and_b32 v9, 1, v2\nv_lshlrev_b32 v10, 7, v9\nv_lshl_add_u32 v10, v3, 3, v10\nv_add_u32 v10, {HS}, v10")
A(f"v_lshlrev_b32 v9, 8, v9\nv_lshl_add_u32 v9, v3, 3, v9\nv_add_u32 v9, {OV}, v9")
A("v_lshrrev_b32 v11, 2, v2\nv_lshlrev_b32 v11, 11, v11\nv_and_b32 v13, 3, v2\nv_lshl_add_u32 v11, v13, 4, v11")
A("s_lshl_b32 s60, s53, 15\ns_lshl_b32 s61, s30, 13\ns_add_u32 s60, s60, s61\ns_lshl_b32 s61, s54, 6\ns_add_u32 s60, s60, s61")
A(f"s_add_u32 s60, s60, {hex(H2)}")
A(f"v_and_b32 v7, 31, v0\nv_mul_u32_u24 v7, {OBS}, v7")
A(f"s_mul_i32 s61, s31, {32*OBS}\ns_lshl_b32 s62, s52, 4\ns_add_u32 s61, s61, s62")
A(f"s_add_u32 s61, s61, {hex(H1+2048)}")
A(f"v_mov_b32 v13, {GT}")
A("ds_read_b128 v[60:63], v13")
A("v_mov_b32 v65, s58\nv_mov_b32 v67, s59")
A("v_mov_b32 v56, 0\nv_mov_b32 v57, 0")
A("s_cmp_eq_u32 s75, 1\ns_cbranch_scc1 L_nobp")
hbar()
LB("L_nobp")
def lgather(sr=FA):
    A(f"buffer_load_dwordx4 v[68:71], v7, {sr}, s61 offen sc1")
memgrp(lgather)
A("s_cmp_eq_u32 s49, 0\ns_cbranch_scc1 L_f_nofb")
lds_spin("L_fs1", 12, O_STAGE, 1)
for t in range(2): tr_read(16 + 4 * t, 8, WDI - WOI, t)
lds_spin("L_fs2", 12, O_H, 1)
for t in range(2):
    A(f"ds_read2_b64 v[{24+4*t}:{27+4*t}], v10 offset0:{8*t} offset1:{8*t+4}")
A("s_waitcnt lgkmcnt(0)")
mfma(56, 24, 16, None)
mfma(56, 28, 20, 56)
A("s_nop 7\ns_nop 1")
A("v_mul_f32 v56, v56, v62\nv_mul_f32 v57, v57, v63")
LB("L_f_nofb")
ts()
lds_spin("L_fs3", 12, O_STAGE, 3)
for t in range(4): tr_read(16 + 4 * t, 8, 0, t)
ts()
A("s_waitcnt vmcnt(0)")
poll_check("L_lchk", [68], 72, lgather)
A("v_mov_b32 v72, v70")
A("v_mov_b32 v73, v70")
for sh in (8, 4, 2, 1):
    A("s_nop 1")
    A(f"v_max_f32_dpp v73, v73, v73 row_ror:{sh} row_mask:0xf bank_mask:0xf")
A("v_sub_f32 v72, v72, v73\nv_mul_f32 v72, s69, v72\nv_exp_f32 v72, v72\ns_nop 0\nv_mul_f32 v72, v72, v68")
rowsum([72])
A("v_rcp_f32 v72, v72")
A("s_nop 1")
A("v_readlane_b32 s62, v72, 0\nv_readlane_b32 s63, v72, 16")
A("s_nop 1")
A("v_mul_f32 v60, s62, v60\nv_mul_f32 v61, s63, v61")
ts()
hbar()
for t in range(4):
    A(f"ds_read2_b64 v[{32+4*t}:{35+4*t}], v9 offset0:{8*t} offset1:{8*t+4}")
for t in range(4):
    A(f"s_waitcnt lgkmcnt({3-t})")
    mfma(48, 32 + 4 * t, 16 + 4 * t, None if t == 0 else 48)
exec_mask(0xffff, 0)
A("s_nop 6")
A("v_fma_f32 v64, v48, v60, v56\nv_fma_f32 v66, v49, v61, v57")
dry_end()
publish(64, 11, "s60", dual=False)
ts()
ts_dump()
LB("L_end")
A("s_endpgm")

L.append(f""".section .rodata,"a"
.p2align 6
.amdhsa_kernel {NAME}
  .amdhsa_next_free_vgpr 128
  .amdhsa_next_free_sgpr 102
  .amdhsa_accum_offset 128
  .amdhsa_group_segment_fixed_size 0
  .amdhsa_kernarg_size 104
  .amdhsa_user_sgpr_count 2
  .amdhsa_user_sgpr_kernarg_segment_ptr 1
  .amdhsa_system_sgpr_workgroup_id_x 1
.end_amdhsa_kernel""")
open(out, "w").write("\n".join(L) + "\n")
```

```python
import sys

OPT = dict(ts=0, kv_fl="nt", w_fl="nt", ka=4, w1e=1, w0p=1, vb=0, spin=400000, pst=0, dry=1, slp=0, pre=0, prew=0, dual=1, bper=8, prio=3, lsl=2, spre=0)
out = sys.argv[1]
for a in sys.argv[2:]:
    k, v = a.split("=")
    OPT[k] = int(v) if v.lstrip("-").isdigit() else v.replace("+", " ").replace("none", "")
TS = OPT["ts"]

NAME = "gated_mix__sliding_block_cached__swiglu_ffn__decode_kernel"
HEADER = open("gated_mix__sliding_block_cached__swiglu_ffn__decode.s.ref").read().split("; Override launch")[0]

L = []
def A(s):
    for l in s.split("\n"):
        L.append("    " + l.strip())
def LB(s):
    L.append(s + ":")
def C(s):
    L.append("    ; " + s)

VI = 0
WQI = 65536
GI = 81920
UI = 90112
WOI = 65536
WDI = 81920
KI = 98304
SM = 155648
PS = SM
QS = SM + 2048
OV = SM + 3072
HS = SM + 3584
QT = SM + 3840
MX = SM + 4352
LS = SM + 4480
GT = SM + 4608
CNT = SM + 4624
O_Q, O_M, O_P, O_STAGE, O_H, O_K7, O_V, O_I, O_VL, O_B1, O_B2, O_B3, O_W, O_G = 0, 4, 8, 12, 16, 20, 24, 28, 32, 40, 44, 48, 52, 56
LDS_BYTES = SM + 4864
WB = OPT.get('wb', 496) << 20
OBS = 2176
if OPT.get("compact", 1):
    QX = WB
    HX = WB + 0x20000
    H1 = WB + 0x58000
    MIR_ = 0xE0000
    H2 = WB + 0xE0000
    EPO = H1 + 2112
else:
    QX = WB + 0x10000
    HX = WB + 0x80000
    H1 = WB + 0x100000
    H2 = WB + 0x400000
    MIR_ = 0x800000
    EPO = 0
TSB = 0x800000

SCALE = 0x3DB504F3
LOG2E = 0x3FB8AA3B
NLOG2E = 0xBFB8AA3B
WF = OPT["w_fl"]

def srd(d, p, nbytes):
    A(f"s_mov_b32 s{d}, s{p}\ns_and_b32 s{d+1}, s{p+1}, 0xffff\ns_mov_b32 s{d+2}, {hex(nbytes)}\ns_mov_b32 s{d+3}, 0x20000")

ts_n = [0]
skip_n = [0]
def ts_reset():
    ts_n[0] = 1 if TS else 0
def ts():
    if not TS: return
    k = ts_n[0]; ts_n[0] += 1
    assert k < 16
    if TS == 3: return
    A(f"s_memrealtime s[72:73]\ns_waitcnt lgkmcnt(0)\nv_writelane_b32 v127, s72, {k}")
def ts_dump():
    if not TS or TS == 5: return
    A("s_mov_b64 exec, -1")
    if TS == 2:
        skip_n[0] += 1
        lb = f"L_sk{skip_n[0]}"
        A(f"s_cmp_lg_u32 s2, {OPT.get('dbgwg', 0)}\ns_cbranch_scc1 {lb}")
        A(f"s_cmp_lg_u32 s30, {OPT.get('dbgwave', 11)}\ns_cbranch_scc1 {lb}")
        srd(76, 26, 256)
        A("v_readlane_b32 s60, v127, 0\ns_nop 1\nv_subrev_u32 v127, s60, v127")
        A("v_lshlrev_b32 v3, 2, v0")
        A("s_mov_b32 exec_lo, 0xffff\ns_mov_b32 exec_hi, 0")
        A("buffer_store_dword v127, v3, s[76:79], 0 offen")
        LB(lb)
        return
    A("s_mul_i32 s60, s2, 12\ns_add_u32 s60, s60, s30\ns_lshl_b32 s60, s60, 6")
    A(f"s_add_u32 s60, s60, {hex(TSB)}")
    A("v_lshlrev_b32 v3, 2, v0")
    A("s_mov_b32 exec_lo, 0xffff\ns_mov_b32 exec_hi, 0")
    A("buffer_store_dword v127, v3, s[44:47], s60 offen")

def tags():
    A("s_add_u32 s58, s56, 0x01010101\ns_add_u32 s59, s57, 0x9e3779b9")
    A("s_and_b32 s88, s58, 0xffff\ns_and_b32 s89, s58, 0xffff0000")

def tagcheck(bases, acc, t0, t1):
    first = True
    for b in bases:
        A(f"v_xor_b32 v{t0}, s58, v{b+1}")
        A(f"v_xor_b32 v{t1}, s59, v{b+3}")
        if first:
            A(f"v_or_b32 v{acc}, v{t0}, v{t1}"); first = False
        else:
            A(f"v_or3_b32 v{acc}, v{acc}, v{t0}, v{t1}")

def tagcheck_dense(bases, acc, t0, t1):
    first = True
    for b in bases:
        A(f"v_perm_b32 v{t0}, v{b+1}, v{b}, s92")
        A(f"v_perm_b32 v{t1}, v{b+3}, v{b+2}, s93")
        A(f"v_xor_b32 v{t0}, s88, v{t0}")
        A(f"v_xor_b32 v{t1}, s89, v{t1}")
        if first:
            A(f"v_or_b32 v{acc}, v{t0}, v{t1}"); first = False
        else:
            A(f"v_or3_b32 v{acc}, v{acc}, v{t0}, v{t1}")

def tagcheck_16(bases, acc, t0, t1):
    for i in range(0, len(bases), 2):
        b0 = bases[i]
        A(f"v_perm_b32 v{t0}, v{b0+1}, v{b0}, s92")
        A(f"v_xor_b32 v{t0}, s88, v{t0}")
        if i + 1 < len(bases):
            b1 = bases[i + 1]
            A(f"v_perm_b32 v{t1}, v{b1+1}, v{b1}, s92")
            A(f"v_xor_b32 v{t1}, s88, v{t1}")
            if i == 0: A(f"v_or_b32 v{acc}, v{t0}, v{t1}")
            else: A(f"v_or3_b32 v{acc}, v{acc}, v{t0}, v{t1}")
        else:
            if i == 0: A(f"v_mov_b32 v{acc}, v{t0}")
            else: A(f"v_or_b32 v{acc}, v{acc}, v{t0}")

def stamp(dst, srcs, tagv):
    for i in range(4):
        A(f"v_perm_b32 v{dst+i}, v{srcs[i]}, v{tagv}, s{94+i}")

def consts():
    A("s_mov_b32 s92, 0x0c0c0400\ns_mov_b32 s93, 0x04000c0c")
    A("s_mov_b32 s94, 0x07060500\ns_mov_b32 s95, 0x07060501\ns_mov_b32 s96, 0x07060502\ns_mov_b32 s97, 0x07060503")

def exec_mask(lo, hi):
    A(f"s_and_b32 exec_lo, s90, {hex(lo)}" if lo != 0xffffffff else "s_mov_b32 exec_lo, s90")
    if hi is not None:
        A(f"s_and_b32 exec_hi, s91, {hex(hi)}" if hi else "s_mov_b32 exec_hi, 0")
def exec_all():
    A("s_mov_b64 exec, s[90:91]")
def memgrp(fn):
    skip_n[0] += 1
    lb = f"L_sk{skip_n[0]}"
    A(f"s_cbranch_execz {lb}")
    fn()
    LB(lb)
def hbar():
    memgrp(lambda: A("s_barrier"))
def dry_end():
    A("s_cbranch_execz L_end")

MIR = MIR_
def ws_srds():
    srd(44, 28, 0x20000000)
    A(f"s_add_u32 s80, s28, {hex(MIR)}\ns_addc_u32 s81, s29, 0\ns_and_b32 s81, s81, 0xffff\ns_mov_b32 s82, {hex(0x20000000-MIR)}\ns_mov_b32 s83, 0x20000")
    A("s_mov_b32 s74, 0")

def publish(data, voff, soff, off=0, dual=True):
    o = f" offset:{off}" if off else ""
    if dual and OPT["dual"]:
        A(f"buffer_store_dwordx4 v[{data}:{data+3}], v{voff}, s[44:47], {soff} offen{o}")
    A(f"buffer_store_dwordx4 v[{data}:{data+3}], v{voff}, s[80:83], {soff} offen{o} sc1")

def poll_check(label, bases, tmp, reissue, chk=tagcheck, grp=1, dual=True):
    dual = dual and OPT["dual"]
    LB(label)
    chk(bases, tmp, tmp + 1, tmp + 2)
    if grp >= 4:
        A(f"s_nop 1\nv_or_b32_dpp v{tmp}, v{tmp}, v{tmp} quad_perm:[1,0,3,2] row_mask:0xf bank_mask:0xf")
        A(f"s_nop 1\nv_or_b32_dpp v{tmp}, v{tmp}, v{tmp} quad_perm:[2,3,0,1] row_mask:0xf bank_mask:0xf")
    if grp >= 8:
        A(f"s_nop 1\nv_or_b32_dpp v{tmp}, v{tmp}, v{tmp} row_half_mirror row_mask:0xf bank_mask:0xf")
    A(f"v_cmp_ne_u32 vcc, 0, v{tmp}")
    A("s_nop 1")
    A(f"s_cbranch_vccz {label}_ok")
    if OPT.get("nopoll"): A(f"s_branch {label}_ok")
    A(f"s_sub_u32 s67, s67, 1\ns_cbranch_scc1 {label}_ok")
    A("s_mov_b64 exec, vcc")
    if OPT["slp"]: A(f"s_sleep {OPT['slp']}")
    if dual:
        A(f"s_add_u32 s74, s74, 1\ns_and_b32 s75, s74, {OPT['bper']-1}\ns_cbranch_scc0 {label}_b")
        reissue("s[44:47]")
        A("s_waitcnt vmcnt(0)")
        A(f"s_branch {label}")
        LB(label + "_b")
    reissue("s[80:83]")
    A("s_waitcnt vmcnt(0)")
    A(f"s_branch {label}")
    LB(label + "_ok")
    exec_all()

def xrow_multi(op, vs, ts_, steps=("v_permlane16_swap_b32", "v_permlane32_swap_b32")):
    for sw in steps:
        for v, t in zip(vs, ts_):
            A(f"v_mov_b32 v{t}, v{v}")
        if len(vs) < 2: A("s_nop 1")
        elif len(vs) < 3: A("s_nop 0")
        for v, t in zip(vs, ts_):
            A(f"{sw} v{v}, v{t}")
        A("s_nop 0")
        for v, t in zip(vs, ts_):
            A(f"{op} v{v}, v{v}, v{t}")

def xrow_t4(v):
    A(f"v_permlane16_swap_b32 v{v}, v{v+1}")
    A(f"v_permlane16_swap_b32 v{v+2}, v{v+3}")
    A("s_nop 0")
    A(f"v_add_f32 v{v}, v{v}, v{v+1}")
    A(f"v_add_f32 v{v+2}, v{v+2}, v{v+3}")
    A("s_nop 1")
    A(f"v_permlane32_swap_b32 v{v}, v{v+2}")
    A("s_nop 0")
    A(f"v_add_f32 v{v}, v{v}, v{v+2}")

def transpose8(raw, dst, pairs=(0, 1, 2, 3)):
    for v in pairs:
        for w in range(4):
            a = raw + 4 * (2 * v) + w
            b = raw + 4 * (2 * v + 1) + w
            A(f"v_perm_b32 v{dst + 4*(2*w) + v}, v{b}, v{a}, s64")
            A(f"v_perm_b32 v{dst + 4*(2*w+1) + v}, v{b}, v{a}, s65")

def bf16_round_pairs(vs, tmp):
    n = len(vs) // 2
    for i in range(n):
        A(f"v_cvt_pk_bf16_f32 v{tmp[i]}, v{vs[2*i]}, v{vs[2*i+1]}")
    for i in range(n):
        A(f"v_lshlrev_b32 v{vs[2*i]}, 16, v{tmp[i]}")
        A(f"v_and_b32 v{vs[2*i+1]}, 0xffff0000, v{tmp[i]}")

def lds_spin(label, addr_v, off, val):
    A(f"s_cbranch_execz {label}_x")
    LB(label)
    A(f"ds_read_b32 v15, v{addr_v} offset:{off}")
    A("s_waitcnt lgkmcnt(0)")
    A("v_readfirstlane_b32 s66, v15")
    A("s_sub_u32 s67, s67, 1")
    A(f"s_cbranch_scc1 {label}_x")
    if OPT.get("lsl") and label in ("L_ispin",): A(f"s_sleep {OPT['lsl']}")
    if OPT.get("ksl") and label in ("L_qspin", "L_mspin", "L_pspin1"):
        A(f"s_cmp_ge_u32 s66, {val}\ns_cbranch_scc1 {label}_x\ns_sleep {OPT['ksl']}")
    A(f"s_cmp_lt_u32 s66, {val}")
    A(f"s_cbranch_scc1 {label}")
    LB(label + "_x")

def lds_spin_data(label, off, val, reads):
    lds_spin(label, 12, off, val)
    reads()
    A("s_waitcnt lgkmcnt(0)")

def rowsum(vs, shifts=(8, 4, 2, 1)):
    for sh in shifts:
        if len(vs) < 3: A("s_nop 1")
        for v in vs:
            A(f"v_add_f32_dpp v{v}, v{v}, v{v} row_ror:{sh} row_mask:0xf bank_mask:0xf")

def dma_voff(dst, stride_sreg_or_shift, t0, t1):
    A(f"v_bfe_u32 v{t0}, v0, 1, 2\nv_bfe_u32 v{t1}, v0, 4, 2\nv_xor_b32 v{t0}, v{t0}, v{t1}")
    A(f"v_and_b32 v{t1}, 1, v0\nv_lshl_add_u32 v{t0}, v{t0}, 1, v{t1}\nv_lshlrev_b32 v{t0}, 4, v{t0}")
    A(f"v_lshrrev_b32 v{t1}, 3, v0")
    if isinstance(stride_sreg_or_shift, int):
        A(f"v_lshl_add_u32 v{dst}, v{t1}, {stride_sreg_or_shift}, v{t0}")
    else:
        A(f"v_mul_lo_u32 v{t1}, v{t1}, {stride_sreg_or_shift}\nv_add_u32 v{dst}, v{t1}, v{t0}")

def tr_addr(dst, q4, t0, t1, base):
    A(f"v_bfe_u32 v{t0}, v0, 3, 2")
    A(f"v_xor_b32 v{t0}, {q4}, v{t0}")
    A(f"v_lshlrev_b32 v{t0}, 5, v{t0}")
    A(f"v_and_b32 v{t1}, 3, v0\nv_lshl_add_u32 v{t0}, v{t1}, 3, v{t0}")
    A(f"v_lshrrev_b32 v{t1}, 2, v0\nv_lshl_add_u32 v{dst}, v{t1}, 7, v{t0}")
    A(f"v_add_u32 v{dst}, {base}, v{dst}")

def tr_read(dst, addr_v, off, t):
    A(f"ds_read_b64_tr_b16 v[{dst}:{dst+1}], v{addr_v} offset:{off + 4096*t}")
    A(f"ds_read_b64_tr_b16 v[{dst+2}:{dst+3}], v{addr_v} offset:{off + 4096*t + 2048}")

def lds_spin2(label, addr_v, off, val):
    A(f"s_cbranch_execz {label}_x")
    LB(label)
    A(f"ds_read_b64 v[14:15], v{addr_v} offset:{off}")
    A("s_waitcnt lgkmcnt(0)")
    A("v_min_u32 v15, v14, v15")
    A("s_sub_u32 s67, s67, 1")
    A("v_readfirstlane_b32 s66, v15")
    A(f"s_cbranch_scc1 {label}_x")
    A(f"s_cmp_lt_u32 s66, {val}")
    A(f"s_cbranch_scc1 {label}")
    LB(label + "_x")

def bump(off):
    exec_mask(1, 0)
    A(f"ds_add_u32 v12, v13 offset:{off}")
    exec_all()

def mfma(d, a, b, c):
    cs = "0" if c is None else f"v[{c}:{c+3}]"
    A(f"v_mfma_f32_16x16x32_bf16 v[{d}:{d+3}], v[{a}:{a+3}], v[{b}:{b+3}], {cs}")

def select4(xs):
    A(f"v_permlane16_swap_b32 v{xs[0]}, v{xs[1]}")
    A(f"v_permlane16_swap_b32 v{xs[2]}, v{xs[3]}")

NWAVES = 16 if OPT["dry"] else 12
L.append(HEADER.rstrip())
L.append(f"; @launch grid=(256,1,1) block=({NWAVES*64},1,1) lds={LDS_BYTES}")
L.append('.amdgcn_target "amdgcn-amd-amdhsa--gfx950"')
L.append(".text")
L.append(f".globl {NAME}\n.p2align 8\n.type {NAME},@function\n{NAME}:")
A("s_cmp_ge_u32 s2, 256\ns_cbranch_scc1 L_end")
if OPT.get("xorwg"): A(f"s_xor_b32 s2, s2, {OPT['xorwg']}")
A("s_load_dwordx16 s[4:19], s[0:1], 0")
A("s_load_dwordx8 s[20:27], s[0:1], 64")
A("s_load_dwordx2 s[28:29], s[0:1], 96")
if TS or OPT.get("diag"): A("s_memrealtime s[72:73]")
A("v_lshrrev_b32 v1, 6, v0")
A("v_and_b32 v0, 63, v0")
A("s_and_b32 s31, s2, 7")
A("v_readfirstlane_b32 s30, v1")
if OPT["dry"]:
    A("s_cmp_lt_u32 s30, 12\ns_cbranch_scc1 L_main")
    if OPT.get("cpf", 24):
        A("s_getpc_b64 s[60:61]")
        LB("L_pc")
        A(f"s_sub_u32 s62, s30, 12\ns_mul_i32 s62, s62, {OPT.get('cpf', 24)*128}")
        A(f"s_add_u32 s63, s62, {OPT.get('cpf', 24)*128}")
        LB("L_pf")
        A("s_load_dword s36, s[60:61], s62")
        A("s_add_u32 s62, s62, 128\ns_cmp_lt_u32 s62, s63\ns_cbranch_scc1 L_pf")
    A("s_branch L_helper")
    LB("L_main")
A("s_lshr_b32 s32, s2, 3")
A("s_lshr_b32 s33, s32, 4")
A("s_and_b32 s34, s32, 15")
A(f"s_mov_b32 s67, {OPT['spin']}")
A("s_mov_b64 s[90:91], -1")
A("v_and_b32 v2, 15, v0")
A("v_lshrrev_b32 v3, 4, v0")
A("s_lshr_b32 s52, s32, 3")
A("s_and_b32 s53, s32, 7")
A("s_lshl_b32 s54, s31, 2\ns_add_u32 s54, s54, s52")
A("s_lshl_b32 s50, s33, 3\ns_add_u32 s50, s50, s31\ns_lshl_b32 s50, s50, 23")
A("s_lshl_b32 s51, s34, 16\ns_add_u32 s50, s50, s51\ns_add_u32 s50, s50, 0x700000")
A(f"s_mul_i32 s51, s32, {OPT.get('rotm', 5)}\ns_add_u32 s51, s51, s31")
A("s_and_b32 s49, s54, 7\ns_cmp_lg_u32 s49, 7\ns_cselect_b32 s49, 1, 0")
A("s_lshr_b32 s55, s54, 3\ns_sub_u32 s55, s54, s55")
A("s_cmp_lt_u32 s30, 4\ns_cbranch_scc1 L_special")

def epoch_load():
    if EPO:
        A(f"s_mov_b32 s56, {hex(EPO)}\ns_load_dwordx2 s[56:57], s[28:29], s56")
    else:
        A("s_load_dwordx2 s[56:57], s[28:29], 0")
def fconsts():
    A(f"s_mov_b32 s68, {hex(SCALE)}\ns_mov_b32 s69, {hex(LOG2E)}\ns_mov_b32 s70, {hex(NLOG2E)}")
def ts0():
    if TS: A("v_writelane_b32 v127, s72, 0")

C("================= K / attention waves =================")
ts_reset()
A("s_sub_u32 s35, s30, 4")
A("s_lshl_b32 s62, s35, 1\ns_add_u32 s62, s62, s51")
A("s_add_u32 s63, s62, 1\ns_and_b32 s62, s62, 15\ns_and_b32 s63, s63, 15")
A("s_lshl_b32 s62, s62, 12\ns_lshl_b32 s63, s63, 12")
A("s_add_u32 s61, s50, s63\ns_add_u32 s60, s50, s62")
for u in range(4):
    A(f"v_add_u32 v{104+u}, {4*u}, v3\nv_xor_b32 v{104+u}, v{104+u}, v2\nv_lshlrev_b32 v{104+u}, 4, v{104+u}\nv_lshl_add_u32 v{104+u}, v3, 8, v{104+u}")
A(f"s_lshl_b32 s84, s35, 13\ns_add_u32 s84, s84, {KI}\ns_cmp_eq_u32 s35, 7\ns_cselect_b32 s84, {VI+57344}, s84")
A("s_add_u32 s85, s84, 4096")
dma_voff(112, 13, 114, 115)
A("s_movk_i32 s62, 3584\nv_mul_lo_u32 v113, v115, s62\nv_add_u32 v113, v113, v114")
A("s_lshl_b32 s62, s52, 20\ns_lshl_b32 s63, s31, 10\ns_add_u32 s62, s62, s63\ns_lshl_b32 s63, s53, 7\ns_add_u32 s62, s62, s63")
A("s_lshl_b32 s63, s35, 17\ns_add_u32 s62, s62, s63\ns_add_u32 s63, s62, 65536")
A(f"s_lshl_b32 s86, s35, 11\ns_add_u32 s86, s86, {WQI}")
A("s_lshl_b32 s87, s53, 3\ns_add_u32 s87, s87, s35\ns_mul_i32 s87, s87, 8*3584\ns_lshl_b32 s71, s55, 7\ns_add_u32 s87, s87, s71")
A(f"s_lshl_b32 s71, s35, 10\ns_add_u32 s71, s71, {GI}")
A("s_mov_b32 m0, s86")
A("s_waitcnt lgkmcnt(0)")
ts0()
srd(40, 10, 0x400000)
A(f"buffer_load_dwordx4 v112, s[40:43], s62 offen {WF} lds")
A("s_add_u32 m0, s86, 1024\ns_nop 0")
A(f"buffer_load_dwordx4 v112, s[40:43], s63 offen {WF} lds")
A("s_cmp_eq_u32 s49, 0\ns_cbranch_scc1 L_nogu")
srd(76, 16, 512 * 3584)
A("s_mov_b32 m0, s71")
srd(92, 18, 512 * 3584)
A(f"buffer_load_dwordx4 v113, s[76:79], s87 offen {WF} lds")
A(f"s_add_u32 m0, s71, {UI-GI}\ns_nop 0")
A(f"buffer_load_dwordx4 v113, s[92:95], s87 offen {WF} lds")
LB("L_nogu")
A("s_mov_b32 s86, s49")
if TS == 5: A("s_memrealtime s[72:73]\ns_waitcnt lgkmcnt(0)\nv_writelane_b32 v127, s72, 8")
srd(36, 6, 0x8000000)
KR, QR = 16, 80
KVF = OPT["kv_fl"]
def kload(i):
    t, u = i // 4, i % 4
    if u == 0 or i == OPT["ka"]: A(f"s_mov_b32 m0, s{84+t}\ns_nop 0")
    A(f"buffer_load_dwordx4 v{104+u}, s[36:39], s{60+t} offen offset:{u*1024} {KVF} lds")
def kread(t):
    for j in range(4):
        i = 4 * t + j
        A(f"ds_read_b128 v[{KR+4*i}:{KR+4*i+3}], v{108+j} offset:{4096*t}")
FA = "s[44:47]" if OPT["dual"] else "s[80:83]"
def qgather(sr=FA):
    A(f"buffer_load_dwordx4 v[{QR}:{QR+3}], v6, {sr}, s62 offen sc1")
KA, VB = OPT["ka"], OPT["vb"]
for i in range(KA): kload(i)
if TS == 5: A("s_memrealtime s[72:73]\ns_waitcnt lgkmcnt(0)\nv_writelane_b32 v127, s72, 9")
ws_srds()
epoch_load()
fconsts(); consts()
A("s_lshl_b32 s62, s31, 1\ns_add_u32 s62, s62, s33\ns_lshl_b32 s62, s62, 13")
A("s_lshl_b32 s63, s35, 8\ns_add_u32 s62, s62, s63")
A(f"s_add_u32 s62, s62, {hex(QX)}")
A("v_lshlrev_b32 v6, 11, v3\nv_lshl_add_u32 v6, v2, 4, v6")
A(f"v_mov_b32 v12, {CNT}\nv_mov_b32 v13, 1")
for j in range(4):
    A(f"v_add_u32 v{108+j}, {4*j}, v3\nv_xor_b32 v{108+j}, v{108+j}, v2\nv_lshlrev_b32 v{108+j}, 4, v{108+j}\nv_lshl_add_u32 v{108+j}, v2, 8, v{108+j}\nv_add_u32 v{108+j}, s84, v{108+j}")
A("v_and_b32 v14, 3, v2")
A(f"s_lshl_b32 s71, s35, 7\ns_add_u32 s71, s71, {QS}")
A("v_lshl_add_u32 v10, v2, 3, s71\nv_lshl_add_u32 v10, v3, 1, v10")
A(f"v_lshlrev_b32 v11, 8, v14\nv_lshl_add_u32 v11, v3, 4, v11\nv_add_u32 v11, {QS}, v11")
A(f"v_lshlrev_b32 v8, 5, v14\nv_add_u32 v8, {MX}, v8")
A("s_lshl_b32 s71, s35, 2\nv_add_u32 v9, s71, v8")
A(f"v_lshl_add_u32 v7, v3, 2, v14\nv_lshlrev_b32 v7, 4, v7\nv_add_u32 v7, {PS}, v7")
A("s_lshl_b32 s71, s35, 8\nv_add_u32 v5, s71, v7")
A("v_bfe_u32 v120, v0, 2, 3\nv_xor_b32 v120, s35, v120\nv_lshlrev_b32 v120, 5, v120")
A("v_and_b32 v121, 3, v0\nv_lshl_add_u32 v120, v121, 3, v120\nv_lshrrev_b32 v121, 2, v0\nv_lshl_add_u32 v120, v121, 8, v120")
A("v_lshlrev_b32 v121, 9, v14\nv_lshl_add_u32 v121, v3, 4, v121")
A(f"s_lshl_b32 s76, s31, 5\ns_add_u32 s49, s76, s32\ns_mul_i32 s49, s49, {OBS}\ns_add_u32 s49, s49, {hex(H1)}")
A("s_lshl_b32 s71, s35, 6\ns_add_u32 s48, s49, s71")
A(f"v_lshrrev_b32 v122, 3, v2\nv_lshl_add_u32 v122, v122, 4, v3\nv_mul_u32_u24 v122, {OBS}, v122")
A("v_and_b32 v123, 7, v2\nv_lshl_add_u32 v122, v123, 4, v122")
A(f"s_mul_i32 s76, s76, {OBS}\ns_add_u32 s76, s76, {hex(H1)}")
A("s_lshl_b32 s71, s52, 9\ns_add_u32 s76, s76, s71\ns_lshl_b32 s71, s35, 7\ns_add_u32 s76, s76, s71")
for i in range(1, 4): A(f"s_add_u32 s{76+i}, s76, {i*4*OBS}")
A(f"s_lshl_b32 s71, s35, 6\ns_add_u32 s71, s71, {OV}")
A("v_lshrrev_b32 v124, 3, v2\nv_lshlrev_b32 v124, 8, v124\nv_lshl_add_u32 v124, v123, 3, v124\nv_lshl_add_u32 v124, v3, 1, v124\nv_add_u32 v124, s71, v124")
A("s_waitcnt lgkmcnt(0)")
tags()
A("s_barrier")
if TS == 5: A("s_memrealtime s[72:73]\ns_waitcnt lgkmcnt(0)\nv_writelane_b32 v127, s72, 10")
A("s_cmp_eq_u32 s86, 0\ns_cbranch_scc1 L_nogu2")
A(f"s_waitcnt vmcnt({KA+2})")
bump(O_W)
A(f"s_waitcnt vmcnt({KA})")
bump(O_G)
A("s_branch L_gu3")
LB("L_nogu2")
A(f"s_waitcnt vmcnt({KA})")
bump(O_W)
LB("L_gu3")
lds_spin("L_b1", 12, O_B1, 1)
ts()
for i in range(KA, 8): kload(i)
bump(O_B3)
lds_spin("L_b3", 12, O_B3, 8)
ts()
qgather()
bump(O_B2)
VB2 = 0
ts()
if OPT.get("prio"): A(f"s_setprio {OPT['prio']}")
LB("L_d0")
if VB2:
    A("s_waitcnt vmcnt(1)")
    tagcheck_dense([QR], 88, 89, 90)
    A("v_cmp_ne_u32 vcc, 0, v88\ns_nop 1\ns_cbranch_vccz L_qchk_ok")
    A("s_waitcnt vmcnt(0)")
    for c in range(4): A(f"v_mov_b32 v{QR+c}, v{QR+4+c}")
    if TS: A("s_mov_b32 s74, 0x100")
else:
    A("s_waitcnt vmcnt(5)")
    kread(0)
    A("s_waitcnt vmcnt(1)")
    kread(1)
    A("s_cmp_lg_u32 s35, 7\ns_cbranch_scc1 L_nok7")
    A("s_waitcnt lgkmcnt(0)")
    bump(O_K7)
    LB("L_nok7")
    A("s_waitcnt vmcnt(0)")
poll_check("L_qchk", [QR], 88, qgather, tagcheck_dense, 4)
if TS: A("v_writelane_b32 v127, s74, 13")
ts()
for c in range(4): A(f"v_and_b32 v{QR+c}, 0xffffff00, v{QR+c}")
A("s_nop 0")
xrow_t4(QR)
A(f"v_cvt_pk_bf16_f32 v{QR}, v{QR}, v{QR}")
A(f"ds_write_b16 v10, v{QR}")
bump(O_Q)
def qreads():
    for j in range(4):
        A(f"ds_read_b128 v[{QR+4*j}:{QR+4*j+3}], v11 offset:{64*j}")
lds_spin_data("L_qspin", O_Q, 8, qreads)
for j in range(4):
    for t in range(2):
        k = KR + 4 * (4 * t + j)
        mfma(96 + 4 * t, k, QR + 4 * j, None if j == 0 else 96 + 4 * t)
A("s_nop 7\ns_nop 1")
S = list(range(96, 104))
bf16_round_pairs(S, [112, 113, 114, 115])
for v in S: A(f"v_mul_f32 v{v}, s68, v{v}")
bf16_round_pairs(S, [112, 113, 114, 115])
A("v_max3_f32 v116, v96, v97, v98\nv_max3_f32 v116, v116, v99, v100\nv_max3_f32 v116, v116, v101, v102\nv_max_f32 v116, v116, v103")
xrow_multi("v_max_f32", [116], [117])
exec_mask(0xf, 0)
A("ds_write_b32 v9, v116")
bump(O_M)
lds_spin_data("L_mspin", O_M, 8, lambda: A("ds_read_b128 v[104:107], v8\nds_read_b128 v[108:111], v8 offset:16"))
A("v_max3_f32 v116, v104, v105, v106\nv_max3_f32 v116, v116, v107, v108\nv_max3_f32 v116, v116, v109, v110\nv_max_f32 v116, v116, v111")
A("v_mul_f32 v117, s70, v116")
for v in S: A(f"v_fma_f32 v{v}, v{v}, s69, v117")
for v in S: A(f"v_exp_f32 v{v}, v{v}")
A("v_or_b32 v125, s88, v116")
for i in range(4): A(f"v_cvt_pk_bf16_f32 v{112+i}, v{96+2*i}, v{97+2*i}")
A("v_add_f32 v117, v96, v97\nv_add_f32 v118, v98, v99\nv_add_f32 v119, v100, v101\nv_add_f32 v104, v102, v103")
A("v_add_f32 v117, v117, v118\nv_add_f32 v119, v119, v104\nv_add_f32 v117, v117, v119")
exec_mask(0x000f000f, 0x000f000f)
A("ds_write_b128 v5, v[112:115]")
exec_all()
xrow_multi("v_add_f32", [117], [118])
exec_mask(0xf, 0)
A("ds_write_b32 v9, v117 offset:128")
bump(O_P)
PR, VO = 16, 48
def preads():
    A(f"ds_read_b64 v[118:119], v12 offset:{O_VL}")
    for k in range(8):
        A(f"ds_read_b128 v[{PR+4*k}:{PR+4*k+3}], v7 offset:{256*k}")
lds_spin_data("L_pspin1", O_P, 8, preads)
A("v_min_u32 v118, v118, v119")
A("s_nop 0")
A("v_readfirstlane_b32 s71, v118")
A("s_cmp_lg_u32 s35, 7\ns_cbranch_scc1 L_nol")
A("ds_read_b128 v[104:107], v8 offset:128\nds_read_b128 v[108:111], v8 offset:144")
A("v_lshlrev_b32 v10, 4, v2")
A("v_mov_b32 v97, s58\nv_mov_b32 v98, v116\nv_mov_b32 v99, s59")
A("s_waitcnt lgkmcnt(0)")
A("v_add_f32 v104, v104, v105\nv_add_f32 v106, v106, v107\nv_add_f32 v108, v108, v109\nv_add_f32 v110, v110, v111")
A("v_add_f32 v104, v104, v106\nv_add_f32 v108, v108, v110\nv_add_f32 v96, v104, v108")
exec_mask(0xf, 0)
memgrp(lambda: publish(96, 10, "s49", 2048))
exec_all()
LB("L_nol")
ts()
dry_end()
LB("L_d1")
def vstep(ks, first):
    for k in ks:
        A(f"ds_read_b64_tr_b16 v[{VO+4*k}:{VO+4*k+1}], v120 offset:{VI + 8192*k}")
        A(f"ds_read_b64_tr_b16 v[{VO+4*k+2}:{VO+4*k+3}], v120 offset:{VI + 8192*k + 4096}")
    for i, k in enumerate(ks):
        A(f"s_waitcnt lgkmcnt({2*(len(ks)-1-i)})")
        mfma(80, VO + 4 * k, PR + 4 * k, None if (first and i == 0) else 80)
A("s_cmp_lt_u32 s71, 7\ns_cbranch_scc1 L_vinc")
vstep([0, 1, 2, 3, 4, 5, 6], True)
A("s_cbranch_execnz L_vlast")
LB("L_vinc")
lds_spin2("L_v1", 12, O_VL, 4)
vstep([0, 1, 2, 3], True)
lds_spin2("L_v2", 12, O_VL, 6)
vstep([4, 5], False)
lds_spin2("L_v3", 12, O_VL, 7)
vstep([6], False)
LB("L_vlast")
hbar()
ts()
vstep([7], False)
exec_mask(0x000f000f, 0x000f000f)
A("s_nop 5")
stamp(84, [80, 81, 82, 83], 125)
memgrp(lambda: publish(84, 121, "s48"))
exec_all()
hbar()
ts()
A("s_cmp_ge_u32 s35, 4\ns_cbranch_scc1 L_kv_h2")
GR = 80
def h1gather(sr=FA):
    for i in range(4):
        A(f"buffer_load_dwordx4 v[{GR+4*i}:{GR+4*i+3}], v122, {sr}, s{76+i} offen sc1")
ts()
memgrp(h1gather)
A("s_waitcnt vmcnt(0)")
ts()
poll_check("L_h1chk", [GR + 4 * i for i in range(4)], 116, h1gather, tagcheck_16, 8)
ts()
for i in range(4): A(f"v_perm_b32 v{100+i}, v{GR+4*i+3}, v{GR+4*i+2}, s93")
A("v_max3_f32 v116, v100, v101, v102\nv_max_f32 v116, v116, v103")
xrow_multi("v_max_f32", [116], [117])
A("v_mul_f32 v117, s70, v116")
for i in range(4): A(f"v_fma_f32 v{100+i}, v{100+i}, s69, v117")
for i in range(4): A(f"v_exp_f32 v{100+i}, v{100+i}")
for c in range(16): A(f"v_and_b32 v{GR+c}, 0xffffff00, v{GR+c}")
for c in range(4): A(f"v_mul_f32 v{104+c}, v100, v{GR+c}")
for i in range(1, 4):
    for c in range(4): A(f"v_fmac_f32 v{104+c}, v{100+i}, v{GR+4*i+c}")
A("s_nop 0")
xrow_t4(104)
A("v_cvt_pk_bf16_f32 v104, v104, v104")
A("ds_write_b16 v124, v104")
A("s_waitcnt lgkmcnt(0)")
hbar()
ts()
if OPT["dry"]: A("s_cbranch_execz L_d2")
A("s_branch L_kv_done")
LB("L_kv_h2")
A("s_cmp_lg_u32 s35, 7\ns_cbranch_scc1 L_kv_bo")
A("s_cmp_ge_u32 s2, 128\ns_cbranch_scc1 L_kv_bo")
LB("L_d2")
if TS: ts_n[0] = 12
srd(48, 24, 2048)
A("s_lshl_b32 s60, s2, 11")
A(f"s_add_u32 s60, s60, {hex(H2)}")
A("v_lshlrev_b32 v5, 4, v0")
def h2gather(sr="s[80:83]"):
    A(f"buffer_load_dwordx4 v[16:19], v5, {sr}, s60 offen sc1")
    A(f"buffer_load_dwordx4 v[20:23], v5, {sr}, s60 offen offset:1024 sc1")
A("v_mov_b32 v8, 0")
A("s_lshl_b32 s62, s2, 3")
hbar()
if TS == 5: A("s_memrealtime s[72:73]\ns_waitcnt lgkmcnt(0)\nv_writelane_b32 v127, s72, 11")
memgrp(h2gather)
A("s_waitcnt vmcnt(0)")
poll_check("L_h2chk", [16, 20], 24, h2gather, dual=False)
ts()
A("v_add_f32 v16, v16, v20\nv_add_f32 v18, v18, v22")
rowsum([16, 18], shifts=(8, 4))
xrow_multi("v_add_f32", [16, 18], [17, 19])
A("s_nop 0")
for i, qp in enumerate(("[1,1,1,1]", "[2,2,2,2]", "[3,3,3,3]")):
    A(f"v_mov_b32_dpp v{24+i}, v16 quad_perm:{qp} row_mask:0xf bank_mask:0xf")
    A(f"v_mov_b32_dpp v{28+i}, v18 quad_perm:{qp} row_mask:0xf bank_mask:0xf")
A("v_cvt_pk_bf16_f32 v32, v16, v24\nv_cvt_pk_bf16_f32 v33, v25, v26")
A("v_cvt_pk_bf16_f32 v34, v18, v28\nv_cvt_pk_bf16_f32 v35, v29, v30")
exec_mask(1, 0)
if OPT["dry"]: A("s_cbranch_execz L_spre")
A("buffer_store_dwordx2 v[32:33], v8, s[48:51], s62 offen")
A("buffer_store_dwordx2 v[34:35], v8, s[48:51], s62 offen offset:1024")
if OPT.get("diag"):
    A(f"v_readlane_b32 s73, v127, {OPT['diag']}\nv_readlane_b32 s99, v127, {OPT.get('diag0', 0)}")
    A("s_memrealtime s[100:101]\ns_waitcnt lgkmcnt(0)")
    A(f"s_sub_u32 s73, s73, s99\ns_mul_i32 s73, s73, {OPT.get('diagm', 8)}\ns_add_u32 s73, s73, s100")
    LB("L_diag")
    A("s_memrealtime s[98:99]\ns_waitcnt lgkmcnt(0)\ns_sub_u32 s99, s98, s73\ns_cmp_lt_i32 s99, 0\ns_cbranch_scc1 L_diag")
A("s_cmp_lg_u32 s2, 0\ns_cbranch_scc1 L_kv_done")
A("v_mov_b32 v36, s58\nv_mov_b32 v37, s59")
A(f"s_mov_b32 s62, {hex(EPO)}")
A("buffer_store_dwordx2 v[36:37], v8, s[44:47], s62 offen sc1")
A("s_branch L_kv_done")
LB("L_kv_bo")
A("s_barrier")
LB("L_kv_done")
if TS:
    A("s_memrealtime s[72:73]\ns_waitcnt lgkmcnt(0)\nv_writelane_b32 v127, s72, 15")
ts_dump()
A("s_endpgm")

if OPT["dry"]:
    LB("L_helper")
    C("================= dry-run helpers: warm the instruction cache =================")
    A("s_barrier")
    for v in list(range(4, 16)) + list(range(104, 112)) + [120, 121, 122, 123, 124]: A(f"v_mov_b32 v{v}, 0")
    A("s_waitcnt lgkmcnt(0)")
    ws_srds()
    A("v_mov_b32 v2, 0\nv_mov_b32 v3, 0")
    A("s_mov_b32 s32, 0\ns_mov_b32 s52, 0\ns_mov_b32 s53, 0\ns_mov_b32 s54, 0\ns_mov_b32 s67, 0")
    A("s_mov_b64 s[90:91], 0\ns_mov_b64 exec, 0")
    A("s_mov_b32 s35, 7\ns_mov_b32 s48, 0\ns_mov_b32 s49, 1\ns_mov_b32 s60, 0\ns_mov_b32 s61, 0\ns_mov_b32 s62, 0\ns_mov_b32 s63, 0")
    A("s_cmp_eq_u32 s30, 12\ns_cbranch_scc1 L_d0")
    A("s_cmp_eq_u32 s30, 14\ns_cbranch_scc1 L_d5")
    A("s_cmp_eq_u32 s30, 15\ns_cbranch_scc1 L_d3")
    A("s_mov_b32 s35, 0\ns_mov_b32 s71, 8")
    A("s_branch L_d1")
    LB("L_spre")
    if OPT["spre"]:
        A(f"s_lshl_b32 s60, s31, 5\ns_add_u32 s60, s60, s32\ns_mul_i32 s60, s60, {OBS}\ns_add_u32 s60, s60, {hex(H1)}")
        A("s_add_u32 s62, s28, s60\ns_addc_u32 s63, s29, 0")
        if OPT["spre"] & 1:
            for i in range(17): A(f"s_load_dword s{4+(i%8)}, s[62:63], {128*i}")
        A(f"s_lshl_b32 s60, s2, 11\ns_add_u32 s60, s60, {hex(H2+MIR)}")
        A("s_add_u32 s62, s28, s60\ns_addc_u32 s63, s29, 0")
        if OPT["spre"] & 2:
            A("s_cmp_ge_u32 s2, 128\ns_cbranch_scc1 L_end")
            for i in range(16): A(f"s_load_dword s{4+(i%8)}, s[62:63], {128*i}")
    A("s_endpgm")

LB("L_special")
C("================= special waves =================")
ts_reset()
A("v_and_b32 v6, 1, v2\nv_lshlrev_b32 v6, 10, v6\nv_lshl_add_u32 v6, v3, 3, v6")
A("s_cmp_eq_u32 s30, 0\ns_cbranch_scc1 L_w0")
A("s_cmp_eq_u32 s30, 1\ns_cbranch_scc1 L_w1")
A("s_cmp_eq_u32 s30, 3\ns_cbranch_scc1 L_w3")
A("s_waitcnt lgkmcnt(0)")
ts0()
ws_srds()
epoch_load()
if OPT.get("tlbw", 0):
    A("v_mov_b32 v4, 0")
    A("s_mov_b32 exec_lo, 1\ns_mov_b32 exec_hi, 0")
    srd(36, 24, 2048)
    A("buffer_load_dword v16, v4, s[36:39], 0 offen")
    srd(40, 8, 0x8000000)
    A(f"buffer_load_dword v17, v4, s[40:43], s50 offen {KVF}")
    srd(76, 12, 0x400000)
    A("s_lshl_b32 s60, s54, 17")
    A(f"buffer_load_dword v18, v4, s[76:79], s60 offen {WF}")
    srd(84, 20, 1792 * 1024)
    A("s_lshl_b32 s60, s55, 16")
    A(f"buffer_load_dword v19, v4, s[84:87], s60 offen {WF}")
    A("s_mov_b64 exec, -1")
A("s_barrier")
if OPT["dry"]:
    for v in range(4, 16): A(f"v_mov_b32 v{v}, 0")
    A("s_mov_b64 exec, 0")
    A("s_branch L_d4")
LB("L_w2ret")
A("s_mov_b64 exec, -1")
fconsts(); consts()
A("s_waitcnt lgkmcnt(0)")
tags()
A("s_branch L_vload")

LB("L_w3")
A("v_lshlrev_b32 v5, 4, v0")
A(f"v_mov_b32 v4, {CNT}\nv_mov_b32 v8, 0\nv_mov_b32 v9, 0\nv_mov_b32 v10, 0\nv_mov_b32 v11, 0")
A("ds_write_b128 v4, v[8:11]")
A("ds_write_b128 v4, v[8:11] offset:16")
A("ds_write_b128 v4, v[8:11] offset:32")
A("ds_write_b128 v4, v[8:11] offset:48")
A("s_waitcnt lgkmcnt(0)")
ts0()
srd(36, 4, 2048)
srd(40, 22, 1024)
A("buffer_load_dwordx4 v[16:19], v5, s[36:39], 0 offen")
A("buffer_load_dwordx4 v[20:23], v5, s[36:39], 0 offen offset:1024")
A("buffer_load_dwordx4 v[24:27], v5, s[40:43], 0 offen")
A("s_barrier")
ws_srds()
epoch_load()
fconsts(); consts()
A("s_waitcnt vmcnt(0)")
for src, dst in ((24, 32), (16, 40), (20, 48)):
    for w in range(4):
        A(f"v_lshlrev_b32 v{dst+2*w}, 16, v{src+w}\nv_and_b32 v{dst+2*w+1}, 0xffff0000, v{src+w}")
for b in range(2):
    for e in range(8):
        A(f"v_mul_f32 v{40+8*b+e}, v{40+8*b+e}, v{32+e}")
bf16_round_pairs(list(range(40, 56)), list(range(16, 24)))
for b in range(2):
    o = 40 + 8 * b
    A(f"v_add_f32 v{o}, v{o}, v{o+1}\nv_add_f32 v{o+2}, v{o+2}, v{o+3}\nv_add_f32 v{o+4}, v{o+4}, v{o+5}\nv_add_f32 v{o+6}, v{o+6}, v{o+7}")
    A(f"v_add_f32 v{o}, v{o}, v{o+2}\nv_add_f32 v{o+4}, v{o+4}, v{o+6}\nv_add_f32 v{o}, v{o}, v{o+4}")
rowsum([40, 48])
xrow_multi("v_add_f32", [40, 48], [41, 49])
A("v_mov_b32 v41, v48")
bf16_round_pairs([40, 41], [16])
A("v_mul_f32 v40, s70, v40\nv_mul_f32 v41, s70, v41")
A("v_exp_f32 v40, v40\nv_exp_f32 v41, v41")
A("s_nop 0")
A("v_add_f32 v40, 1.0, v40\nv_add_f32 v41, 1.0, v41")
A("v_rcp_f32 v40, v40\nv_rcp_f32 v41, v41")
A("s_nop 0")
bf16_round_pairs([40, 41], [16])
A("v_sub_f32 v42, 1.0, v40\nv_sub_f32 v43, 1.0, v41")
bf16_round_pairs([42, 43], [16])
A(f"v_mov_b32 v4, {GT}")
A("ds_write_b128 v4, v[40:43]")
A("s_waitcnt lgkmcnt(0)")
tags()

LB("L_vload")
srd(40, 8, 0x8000000)
A("s_sub_u32 s35, s30, 2")
A("s_lshl_b32 s60, s35, 2\nv_add_u32 v4, s60, v3\nv_lshrrev_b32 v5, 1, v2\nv_xor_b32 v4, v4, v5")
A("v_and_b32 v5, 1, v2\nv_lshl_add_u32 v4, v4, 1, v5\nv_lshlrev_b32 v4, 4, v4\nv_lshl_add_u32 v4, v3, 8, v4")
A("s_lshl_b32 s61, s35, 10\ns_add_u32 s62, s50, s61")
A("s_and_b32 s60, s51, 15\ns_lshl_b32 s60, s60, 12")
A(f"v_mov_b32 v12, {CNT}\nv_mov_b32 v13, 1")
A(f"s_lshl_b32 s63, s35, 2\ns_add_u32 s63, s63, {CNT+O_VL}\nv_mov_b32 v11, s63")
A("v_mov_b32 v8, 4\nv_mov_b32 v9, 6\nv_mov_b32 v10, 8\nv_mov_b32 v7, 7")
def vblk(i):
    A(f"s_add_u32 s63, s62, s60\ns_add_u32 m0, s61, {VI + 4096*i}")
    A("s_add_u32 s60, s60, 4096\ns_and_b32 s60, s60, 0xffff")
    A(f"buffer_load_dwordx4 v4, s[40:43], s63 offen {KVF} lds")
    A(f"buffer_load_dwordx4 v4, s[40:43], s63 offen offset:2048 {KVF} lds")
lds_spin("L_b2", 12, O_B2, 8)
VB = 0
IB = OPT.get("ib", 16)
for i in range(2 * VB, 17):
    if VB2 and i == 2 * VB + VB2: A("s_barrier\ns_barrier")
    if i == max(IB, 2 * VB):
        A("s_mov_b32 exec_lo, 1\ns_mov_b32 exec_hi, 0")
        A(f"ds_add_u32 v12, v13 offset:{O_I}")
        A("s_mov_b64 exec, -1")
    if OPT.get("w1e") and i == OPT.get("hb", 6):
        A("s_mov_b32 exec_lo, 1\ns_mov_b32 exec_hi, 0")
        A(f"ds_add_u32 v12, v13 offset:{O_V}")
        A("s_mov_b64 exec, -1")
    if i == 14: lds_spin("L_k7spin", 12, O_K7, 1)
    if i < 16: vblk(i)
A("s_mov_b32 exec_lo, 1\ns_mov_b32 exec_hi, 0")
ts()
A("s_waitcnt vmcnt(16)")
A("ds_write_b32 v11, v8")
ts()
A("s_waitcnt vmcnt(8)")
A("ds_write_b32 v11, v9")
A("s_waitcnt vmcnt(4)")
A("ds_write_b32 v11, v7")
A("s_mov_b64 exec, -1")
A("s_waitcnt vmcnt(0)")
A("s_barrier")
ts()
A("s_branch L_final")

LB("L_w0")
ts_reset()
if OPT.get("w0p"): A("s_setprio 3")
A("s_lshl_b32 s61, s52, 8")
A("s_waitcnt lgkmcnt(0)")
ts0()
srd(36, 4, 2048)
XA, BB, AC = 16, 32, 96
for t in range(4):
    A(f"buffer_load_dwordx2 v[{XA+4*t}:{XA+4*t+1}], v6, s[36:39], s61 offen offset:{64*t}")
    A(f"buffer_load_dwordx2 v[{XA+4*t+2}:{XA+4*t+3}], v6, s[36:39], s61 offen offset:{64*t+32}")
A("s_barrier")
ws_srds()
epoch_load()
fconsts(); consts()
for q4 in range(4): tr_addr(8 + q4, q4, 12, 13, WQI)
A(f"v_lshlrev_b32 v12, 2, v0\nv_add_u32 v12, {QT}, v12\nv_and_b32 v13, 31, v0\nv_lshlrev_b32 v13, 4, v13\nv_add_u32 v13, {QT}, v13")
A("v_and_b32 v14, 1, v3\nv_lshlrev_b32 v14, 13, v14\nv_lshl_add_u32 v14, v2, 4, v14")
A("s_lshl_b32 s62, s31, 14\ns_lshl_b32 s63, s52, 11\ns_add_u32 s62, s62, s63\ns_lshl_b32 s63, s53, 8\ns_add_u32 s62, s62, s63")
A(f"s_add_u32 s62, s62, {hex(QX)}")
A("s_waitcnt lgkmcnt(0)")
tags()
A("v_mov_b32 v5, s58")
A(f"v_mov_b32 v4, {CNT}")
A("s_waitcnt vmcnt(0)")
lds_spin("L_wspin", 4, O_W, 8)
ts()
LB("L_d4")
seq = [(q4, t) for q4 in range(4) for t in range(4)]
D = 6
def issue(k):
    q4, t = seq[k]; tr_read(BB + 4 * k, 8 + q4, 0, t)
for k in range(D): issue(k)
for k in range(16):
    q4, t = seq[k]
    A(f"s_waitcnt lgkmcnt({2*(min(16,k+D)-k)-2})")
    mfma(AC + 4 * q4, XA + 4 * t, BB + 4 * k, None if t == 0 else AC + 4 * q4)
    if k + D < 16: issue(k + D)
A("s_nop 7\ns_nop 1")
for r in range(2): select4([AC + 4 * q + r for q in range(4)])
A("s_nop 0")
for r in range(2): A(f"v_permlane32_swap_b32 v{AC+r}, v{AC+8+r}")
A("s_nop 0")
A(f"ds_write_b32 v12, v{AC}\nds_write_b32 v12, v{AC+1} offset:256")
A("ds_read_b128 v[116:119], v13")
A("s_waitcnt lgkmcnt(0)")
stamp(112, [116, 117, 118, 119], 5)
A("s_mov_b32 exec_hi, 0")
A("s_cbranch_execz L_w2ret")
publish(112, 14, "s62")
A(f"v_mov_b32 v12, {CNT}\nv_mov_b32 v8, 1")
A(f"ds_write_b32 v12, v8 offset:{O_B1}")
A("s_mov_b64 exec, -1")
ts()
srd(36, 12, 0x400000)
srd(40, 20, 1792 * 1024)
dma_voff(4, 10, 8, 9)
if OPT.get("cshift"):
    A(f"s_add_u32 s63, s53, {OPT['cshift']}\ns_and_b32 s63, s63, 7\ns_lshl_b32 s63, s63, 7\ns_lshl_b32 s60, s54, 17\ns_add_u32 s60, s60, s63")
else:
  A("s_lshl_b32 s60, s54, 17\ns_lshl_b32 s63, s53, 7\ns_add_u32 s60, s60, s63")
A("s_lshl_b32 s61, s55, 16\ns_add_u32 s61, s61, s63")
A(f"v_mov_b32 v12, {CNT}\nv_mov_b32 v8, 1\nv_mov_b32 v9, 2\nv_mov_b32 v10, 3")
lds_spin("L_ispin", 12, O_I, 3)
ts()
A("s_cmp_eq_u32 s49, 0\ns_cbranch_scc1 L_w0_nowd")
for i in range(8):
    A(f"s_mov_b32 m0, {WDI+1024*i}")
    if i: A(f"s_add_u32 s61, s61, {8*1024}")
    else: A("s_nop 0")
    A(f"buffer_load_dwordx4 v4, s[40:43], s61 offen {WF} lds")
LB("L_w0_nowd")
for i in range(16):
    A(f"s_mov_b32 m0, {WOI+1024*i}")
    if i: A(f"s_add_u32 s60, s60, {8*1024}")
    else: A("s_nop 0")
    A(f"buffer_load_dwordx4 v4, s[36:39], s60 offen {WF} lds")
ts()
A("s_barrier\ns_barrier")
A("s_waitcnt vmcnt(16)")
A(f"ds_write_b32 v12, v8 offset:{O_STAGE}")
ts()
A("s_waitcnt vmcnt(8)")
A(f"ds_write_b32 v12, v9 offset:{O_STAGE}")
ts()
A("s_waitcnt vmcnt(0)")
A(f"ds_write_b32 v12, v10 offset:{O_STAGE}")
ts()
A("s_mov_b32 s75, 1")
A("s_branch L_final0")

LB("L_w1_idle")
A("s_waitcnt lgkmcnt(0)")
ts0()
ws_srds()
epoch_load()
A("s_barrier")
fconsts(); consts()
A("s_waitcnt lgkmcnt(0)")
tags()
A(f"v_mov_b32 v11, {CNT}\nv_mov_b32 v14, 1")
A("s_mov_b32 exec_lo, 1\ns_mov_b32 exec_hi, 0")
A(f"ds_add_u32 v11, v14 offset:{O_I}")
A("s_mov_b64 exec, -1")
A("s_barrier")
A("s_branch L_final")
LB("L_w1")
ts_reset()
A("s_cmp_eq_u32 s49, 0\ns_cbranch_scc1 L_w1_idle")
A("s_lshl_b32 s61, s53, 7")
A("s_waitcnt lgkmcnt(0)")
ts0()
srd(76, 4, 2048)
for t in range(2):
    A(f"buffer_load_dwordx2 v[{XA+4*t}:{XA+4*t+1}], v6, s[76:79], s61 offen offset:{64*t}")
    A(f"buffer_load_dwordx2 v[{XA+4*t+2}:{XA+4*t+3}], v6, s[76:79], s61 offen offset:{64*t+32}")
A("s_barrier")
ws_srds()
epoch_load()
fconsts(); consts()
for q4 in range(4): tr_addr(8 + q4, q4, 12, 13, GI)
A("v_lshlrev_b32 v5, 4, v0")
A("s_lshl_b32 s62, s55, 13")
A(f"s_add_u32 s62, s62, {hex(HX)}")
A("s_lshl_b32 s63, s53, 10\ns_add_u32 s63, s63, s62")
A("s_add_u32 s61, s62, 4096")
A(f"v_lshlrev_b32 v12, 1, v0\nv_add_u32 v12, {HS}, v12")
A(f"v_mov_b32 v13, {CNT+O_H}\nv_mov_b32 v14, 1")
A("s_waitcnt lgkmcnt(0)")
tags()
A("v_mov_b32 v4, s58")
A(f"v_mov_b32 v7, {CNT}")
A("s_waitcnt vmcnt(0)")
lds_spin("L_gspin", 7, O_G, 8)
ts()
LB("L_d5")
seq = [(mat, q4, t) for mat in range(2) for q4 in range(4) for t in range(2)]
BB1 = 24
AC1 = 88
def issue(k):
    mat, q4, t = seq[k]; tr_read(BB1 + 4 * k, 8 + q4, (UI - GI) if mat else 0, t)
for k in range(D): issue(k)
for k in range(16):
    mat, q4, t = seq[k]
    A(f"s_waitcnt lgkmcnt({2*(min(16,k+D)-k)-2})")
    acc = AC1 + 16 * mat + 4 * q4
    mfma(acc, XA + 4 * t, BB1 + 4 * k, None if t == 0 else acc)
    if k + D < 16: issue(k + D)
A("s_nop 7\ns_nop 1")
for mat in range(2):
    for r in range(2): select4([AC1 + 16 * mat + 4 * q + r for q in range(4)])
A("s_nop 0")
for mat in range(2):
    for r in range(2): A(f"v_permlane32_swap_b32 v{AC1+16*mat+r}, v{AC1+16*mat+8+r}")
A("s_nop 0")
stamp(120, [AC1, AC1 + 1, AC1 + 16, AC1 + 17], 4)
dry_end()
publish(120, 5, "s63")
ts()
HG = 16
def hgather(sr=FA):
    for rb in range(8):
        r = HG + 4 * rb
        A(f"buffer_load_dwordx4 v[{r}:{r+3}], v5, {sr}, s{62 - rb//4} offen offset:{(rb%4)*1024} sc1")
A(f"v_mov_b32 v11, {CNT}")
A("s_mov_b32 exec_lo, 1\ns_mov_b32 exec_hi, 0")
A(f"ds_add_u32 v11, v14 offset:{O_I}")
A("s_mov_b64 exec, -1")
lds_spin("L_hw", 11, O_V, 2)
hgather()
ts()
LB("L_d3")
A("s_waitcnt vmcnt(0)")
poll_check("L_hchk", [HG + 4 * i for i in range(8)], 96, hgather, tagcheck_dense, 4)
ts()
for c in range(32): A(f"v_and_b32 v{HG+c}, 0xffffff00, v{HG+c}")
for step in (16, 8, 4):
    for base in range(HG, HG + step, 4):
        for o in range(4):
            A(f"v_add_f32 v{base+o}, v{base+o}, v{base+step+o}")
bf16_round_pairs([16, 17, 18, 19], [24, 25])
A("v_mul_f32 v24, s70, v16\nv_mul_f32 v25, s70, v17")
A("v_exp_f32 v24, v24\nv_exp_f32 v25, v25")
A("s_nop 0")
A("v_add_f32 v24, 1.0, v24\nv_add_f32 v25, 1.0, v25")
A("v_rcp_f32 v24, v24\nv_rcp_f32 v25, v25")
A("s_nop 0")
A("v_mul_f32 v16, v16, v24\nv_mul_f32 v17, v17, v25")
bf16_round_pairs([16, 17], [24])
A("v_mul_f32 v16, v16, v18\nv_mul_f32 v17, v17, v19")
A("v_cvt_pk_bf16_f32 v24, v16, v17")
A("ds_write_b16 v12, v24")
A("ds_write_b16_d16_hi v12, v24 offset:128")
A("ds_write_b32 v13, v14")
ts()
hbar()

LB("L_final")
A("s_mov_b32 s75, 0")
LB("L_final0")
if TS: ts_n[0] = 8
tr_addr(8, "s30", 12, 13, WOI)
A(f"v_mov_b32 v12, {CNT}")
A(f"v_and_b32 v9, 1, v2\nv_lshlrev_b32 v10, 7, v9\nv_lshl_add_u32 v10, v3, 3, v10\nv_add_u32 v10, {HS}, v10")
A(f"v_lshlrev_b32 v9, 8, v9\nv_lshl_add_u32 v9, v3, 3, v9\nv_add_u32 v9, {OV}, v9")
A("v_lshrrev_b32 v11, 2, v2\nv_lshlrev_b32 v11, 11, v11\nv_and_b32 v13, 3, v2\nv_lshl_add_u32 v11, v13, 4, v11")
A("s_lshl_b32 s60, s53, 15\ns_lshl_b32 s61, s30, 13\ns_add_u32 s60, s60, s61\ns_lshl_b32 s61, s54, 6\ns_add_u32 s60, s60, s61")
A(f"s_add_u32 s60, s60, {hex(H2)}")
A(f"v_and_b32 v7, 31, v0\nv_mul_u32_u24 v7, {OBS}, v7")
A(f"s_mul_i32 s61, s31, {32*OBS}\ns_lshl_b32 s62, s52, 4\ns_add_u32 s61, s61, s62")
A(f"s_add_u32 s61, s61, {hex(H1+2048)}")
A(f"v_mov_b32 v13, {GT}")
A("ds_read_b128 v[60:63], v13")
A("v_mov_b32 v65, s58\nv_mov_b32 v67, s59")
A("v_mov_b32 v56, 0\nv_mov_b32 v57, 0")
A("s_cmp_eq_u32 s75, 1\ns_cbranch_scc1 L_nobp")
hbar()
LB("L_nobp")
def lgather(sr=FA):
    A(f"buffer_load_dwordx4 v[68:71], v7, {sr}, s61 offen sc1")
memgrp(lgather)
A("s_cmp_eq_u32 s49, 0\ns_cbranch_scc1 L_f_nofb")
lds_spin("L_fs1", 12, O_STAGE, 1)
for t in range(2): tr_read(16 + 4 * t, 8, WDI - WOI, t)
lds_spin("L_fs2", 12, O_H, 1)
for t in range(2):
    A(f"ds_read2_b64 v[{24+4*t}:{27+4*t}], v10 offset0:{8*t} offset1:{8*t+4}")
A("s_waitcnt lgkmcnt(0)")
mfma(56, 24, 16, None)
mfma(56, 28, 20, 56)
A("s_nop 7\ns_nop 1")
A("v_mul_f32 v56, v56, v62\nv_mul_f32 v57, v57, v63")
LB("L_f_nofb")
ts()
lds_spin("L_fs3", 12, O_STAGE, 3)
for t in range(4): tr_read(16 + 4 * t, 8, 0, t)
ts()
A("s_waitcnt vmcnt(0)")
poll_check("L_lchk", [68], 72, lgather)
A("v_mov_b32 v72, v70")
A("v_mov_b32 v73, v70")
for sh in (8, 4, 2, 1):
    A("s_nop 1")
    A(f"v_max_f32_dpp v73, v73, v73 row_ror:{sh} row_mask:0xf bank_mask:0xf")
A("v_sub_f32 v72, v72, v73\nv_mul_f32 v72, s69, v72\nv_exp_f32 v72, v72\ns_nop 0\nv_mul_f32 v72, v72, v68")
rowsum([72])
A("v_rcp_f32 v72, v72")
A("s_nop 1")
A("v_readlane_b32 s62, v72, 0\nv_readlane_b32 s63, v72, 16")
A("s_nop 1")
A("v_mul_f32 v60, s62, v60\nv_mul_f32 v61, s63, v61")
ts()
hbar()
for t in range(4):
    A(f"ds_read2_b64 v[{32+4*t}:{35+4*t}], v9 offset0:{8*t} offset1:{8*t+4}")
for t in range(4):
    A(f"s_waitcnt lgkmcnt({3-t})")
    mfma(48, 32 + 4 * t, 16 + 4 * t, None if t == 0 else 48)
exec_mask(0xffff, 0)
A("s_nop 6")
A("v_fma_f32 v64, v48, v60, v56\nv_fma_f32 v66, v49, v61, v57")
dry_end()
publish(64, 11, "s60", dual=False)
ts()
ts_dump()
LB("L_end")
A("s_endpgm")

L.append(f""".section .rodata,"a"
.p2align 6
.amdhsa_kernel {NAME}
  .amdhsa_next_free_vgpr 128
  .amdhsa_next_free_sgpr 102
  .amdhsa_accum_offset 128
  .amdhsa_group_segment_fixed_size 0
  .amdhsa_kernarg_size 104
  .amdhsa_user_sgpr_count 2
  .amdhsa_user_sgpr_kernarg_segment_ptr 1
  .amdhsa_system_sgpr_workgroup_id_x 1
.end_amdhsa_kernel""")
open(out, "w").write("\n".join(L) + "\n")
```

```python
import sys

OPT = dict(ts=0, kv_fl="nt", w_fl="nt", ka=4, w1e=1, w0p=1, vb=0, spin=400000, pst=0, dry=1, slp=0, pre=0, prew=0, dual=1, bper=8, prio=3, lsl=2, spre=0)
out = sys.argv[1]
for a in sys.argv[2:]:
    k, v = a.split("=")
    OPT[k] = int(v) if v.lstrip("-").isdigit() else v.replace("+", " ").replace("none", "")
TS = OPT["ts"]

NAME = "gated_mix__sliding_block_cached__swiglu_ffn__decode_kernel"
HEADER = open("gated_mix__sliding_block_cached__swiglu_ffn__decode.s.ref").read().split("; Override launch")[0]

L = []
def A(s):
    for l in s.split("\n"):
        L.append("    " + l.strip())
def LB(s):
    L.append(s + ":")
def C(s):
    L.append("    ; " + s)

VI = 0
WQI = 65536
GI = 81920
UI = 90112
WOI = 65536
WDI = 81920
KI = 98304
SM = 155648
PS = SM
QS = SM + 2048
OV = SM + 3072
HS = SM + 3584
QT = SM + 3840
MX = SM + 4352
LS = SM + 4480
GT = SM + 4608
CNT = SM + 4624
O_Q, O_M, O_P, O_STAGE, O_H, O_K7, O_V, O_I, O_VL, O_B1, O_B2, O_B3, O_W, O_G = 0, 4, 8, 12, 16, 20, 24, 28, 32, 40, 44, 48, 52, 56
XS = SM + 4864
LDS_BYTES = SM + 4864 + 2048
WB = OPT.get('wb', 496) << 20
OBS = 2176
if OPT.get("compact", 1):
    QX = WB
    HX = WB + 0x20000
    H1 = WB + 0x58000
    MIR_ = 0xE0000
    H2 = WB + 0xE0000
    EPO = H1 + 2112
else:
    QX = WB + 0x10000
    HX = WB + 0x80000
    H1 = WB + 0x100000
    H2 = WB + 0x400000
    MIR_ = 0x800000
    EPO = 0
TSB = 0x800000

SCALE = 0x3DB504F3
LOG2E = 0x3FB8AA3B
NLOG2E = 0xBFB8AA3B
WF = OPT["w_fl"]

def srd(d, p, nbytes):
    A(f"s_mov_b32 s{d}, s{p}\ns_and_b32 s{d+1}, s{p+1}, 0xffff\ns_mov_b32 s{d+2}, {hex(nbytes)}\ns_mov_b32 s{d+3}, 0x20000")

ts_n = [0]
skip_n = [0]
def ts_reset():
    ts_n[0] = 1 if TS else 0
def ts():
    if not TS: return
    k = ts_n[0]; ts_n[0] += 1
    assert k < 16
    if TS == 3: return
    if TS == 6 and k != 12: return
    A(f"s_memrealtime s[72:73]\ns_waitcnt lgkmcnt(0)\nv_writelane_b32 v127, s72, {k}")
def ts_dump():
    if not TS or TS in (5, 6): return
    A("s_mov_b64 exec, -1")
    if TS == 2:
        skip_n[0] += 1
        lb = f"L_sk{skip_n[0]}"
        A(f"s_cmp_lg_u32 s2, {OPT.get('dbgwg', 0)}\ns_cbranch_scc1 {lb}")
        A(f"s_cmp_lg_u32 s30, {OPT.get('dbgwave', 11)}\ns_cbranch_scc1 {lb}")
        srd(76, 26, 256)
        A("v_readlane_b32 s60, v127, 0\ns_nop 1\nv_subrev_u32 v127, s60, v127")
        A("v_lshlrev_b32 v3, 2, v0")
        A("s_mov_b32 exec_lo, 0xffff\ns_mov_b32 exec_hi, 0")
        A("buffer_store_dword v127, v3, s[76:79], 0 offen")
        LB(lb)
        return
    A("s_mul_i32 s60, s2, 12\ns_add_u32 s60, s60, s30\ns_lshl_b32 s60, s60, 6")
    A(f"s_add_u32 s60, s60, {hex(TSB)}")
    A("v_lshlrev_b32 v3, 2, v0")
    A("s_mov_b32 exec_lo, 0xffff\ns_mov_b32 exec_hi, 0")
    A("buffer_store_dword v127, v3, s[44:47], s60 offen")

def tags():
    A("s_add_u32 s58, s56, 0x01010101\ns_add_u32 s59, s57, 0x9e3779b9")
    A("s_and_b32 s88, s58, 0xffff\ns_and_b32 s89, s58, 0xffff0000")

def tagcheck(bases, acc, t0, t1):
    first = True
    for b in bases:
        A(f"v_xor_b32 v{t0}, s58, v{b+1}")
        A(f"v_xor_b32 v{t1}, s59, v{b+3}")
        if first:
            A(f"v_or_b32 v{acc}, v{t0}, v{t1}"); first = False
        else:
            A(f"v_or3_b32 v{acc}, v{acc}, v{t0}, v{t1}")

def tagcheck_dense(bases, acc, t0, t1):
    first = True
    for b in bases:
        A(f"v_perm_b32 v{t0}, v{b+1}, v{b}, s92")
        A(f"v_perm_b32 v{t1}, v{b+3}, v{b+2}, s93")
        A(f"v_xor_b32 v{t0}, s88, v{t0}")
        A(f"v_xor_b32 v{t1}, s89, v{t1}")
        if first:
            A(f"v_or_b32 v{acc}, v{t0}, v{t1}"); first = False
        else:
            A(f"v_or3_b32 v{acc}, v{acc}, v{t0}, v{t1}")

def tagcheck_16(bases, acc, t0, t1):
    for i in range(0, len(bases), 2):
        b0 = bases[i]
        A(f"v_perm_b32 v{t0}, v{b0+1}, v{b0}, s92")
        A(f"v_xor_b32 v{t0}, s88, v{t0}")
        if i + 1 < len(bases):
            b1 = bases[i + 1]
            A(f"v_perm_b32 v{t1}, v{b1+1}, v{b1}, s92")
            A(f"v_xor_b32 v{t1}, s88, v{t1}")
            if i == 0: A(f"v_or_b32 v{acc}, v{t0}, v{t1}")
            else: A(f"v_or3_b32 v{acc}, v{acc}, v{t0}, v{t1}")
        else:
            if i == 0: A(f"v_mov_b32 v{acc}, v{t0}")
            else: A(f"v_or_b32 v{acc}, v{acc}, v{t0}")

def stamp(dst, srcs, tagv):
    for i in range(4):
        A(f"v_perm_b32 v{dst+i}, v{srcs[i]}, v{tagv}, s{94+i}")

def consts():
    A("s_mov_b32 s92, 0x0c0c0400\ns_mov_b32 s93, 0x04000c0c")
    A("s_mov_b32 s94, 0x07060500\ns_mov_b32 s95, 0x07060501\ns_mov_b32 s96, 0x07060502\ns_mov_b32 s97, 0x07060503")

def exec_mask(lo, hi):
    A(f"s_and_b32 exec_lo, s90, {hex(lo)}" if lo != 0xffffffff else "s_mov_b32 exec_lo, s90")
    if hi is not None:
        A(f"s_and_b32 exec_hi, s91, {hex(hi)}" if hi else "s_mov_b32 exec_hi, 0")
def exec_all():
    A("s_mov_b64 exec, s[90:91]")
def memgrp(fn):
    skip_n[0] += 1
    lb = f"L_sk{skip_n[0]}"
    A(f"s_cbranch_execz {lb}")
    fn()
    LB(lb)
def hbar():
    memgrp(lambda: A("s_barrier"))
def dry_end():
    A("s_cbranch_execz L_end")

MIR = MIR_
def ws_srds():
    srd(44, 28, 0x20000000)
    A(f"s_add_u32 s80, s28, {hex(MIR)}\ns_addc_u32 s81, s29, 0\ns_and_b32 s81, s81, 0xffff\ns_mov_b32 s82, {hex(0x20000000-MIR)}\ns_mov_b32 s83, 0x20000")
    A("s_mov_b32 s74, 0")

def publish(data, voff, soff, off=0, dual=True):
    o = f" offset:{off}" if off else ""
    if dual and OPT["dual"]:
        A(f"buffer_store_dwordx4 v[{data}:{data+3}], v{voff}, s[44:47], {soff} offen{o}")
    A(f"buffer_store_dwordx4 v[{data}:{data+3}], v{voff}, s[80:83], {soff} offen{o} sc1")

def poll_check(label, bases, tmp, reissue, chk=tagcheck, grp=1, dual=True):
    dual = dual and OPT["dual"]
    LB(label)
    chk(bases, tmp, tmp + 1, tmp + 2)
    if grp >= 4:
        A(f"s_nop 1\nv_or_b32_dpp v{tmp}, v{tmp}, v{tmp} quad_perm:[1,0,3,2] row_mask:0xf bank_mask:0xf")
        A(f"s_nop 1\nv_or_b32_dpp v{tmp}, v{tmp}, v{tmp} quad_perm:[2,3,0,1] row_mask:0xf bank_mask:0xf")
    if grp >= 8:
        A(f"s_nop 1\nv_or_b32_dpp v{tmp}, v{tmp}, v{tmp} row_half_mirror row_mask:0xf bank_mask:0xf")
    A(f"v_cmp_ne_u32 vcc, 0, v{tmp}")
    A("s_nop 1")
    A(f"s_cbranch_vccz {label}_ok")
    if OPT.get("nopoll"): A(f"s_branch {label}_ok")
    A(f"s_sub_u32 s67, s67, 1\ns_cbranch_scc1 {label}_ok")
    A("s_mov_b64 exec, vcc")
    if OPT["slp"]: A(f"s_sleep {OPT['slp']}")
    if dual:
        A(f"s_add_u32 s74, s74, 1\ns_and_b32 s75, s74, {OPT['bper']-1}\ns_cbranch_scc0 {label}_b")
        reissue("s[44:47]")
        A("s_waitcnt vmcnt(0)")
        A(f"s_branch {label}")
        LB(label + "_b")
    reissue("s[80:83]")
    A("s_waitcnt vmcnt(0)")
    A(f"s_branch {label}")
    LB(label + "_ok")
    exec_all()

def xrow_multi(op, vs, ts_, steps=("v_permlane16_swap_b32", "v_permlane32_swap_b32")):
    for sw in steps:
        for v, t in zip(vs, ts_):
            A(f"v_mov_b32 v{t}, v{v}")
        if len(vs) < 2: A("s_nop 1")
        elif len(vs) < 3: A("s_nop 0")
        for v, t in zip(vs, ts_):
            A(f"{sw} v{v}, v{t}")
        A("s_nop 0")
        for v, t in zip(vs, ts_):
            A(f"{op} v{v}, v{v}, v{t}")

def xrow_t4(v):
    A(f"v_permlane16_swap_b32 v{v}, v{v+1}")
    A(f"v_permlane16_swap_b32 v{v+2}, v{v+3}")
    A("s_nop 0")
    A(f"v_add_f32 v{v}, v{v}, v{v+1}")
    A(f"v_add_f32 v{v+2}, v{v+2}, v{v+3}")
    A("s_nop 1")
    A(f"v_permlane32_swap_b32 v{v}, v{v+2}")
    A("s_nop 0")
    A(f"v_add_f32 v{v}, v{v}, v{v+2}")

def transpose8(raw, dst, pairs=(0, 1, 2, 3)):
    for v in pairs:
        for w in range(4):
            a = raw + 4 * (2 * v) + w
            b = raw + 4 * (2 * v + 1) + w
            A(f"v_perm_b32 v{dst + 4*(2*w) + v}, v{b}, v{a}, s64")
            A(f"v_perm_b32 v{dst + 4*(2*w+1) + v}, v{b}, v{a}, s65")

def bf16_round_pairs(vs, tmp):
    n = len(vs) // 2
    for i in range(n):
        A(f"v_cvt_pk_bf16_f32 v{tmp[i]}, v{vs[2*i]}, v{vs[2*i+1]}")
    for i in range(n):
        A(f"v_lshlrev_b32 v{vs[2*i]}, 16, v{tmp[i]}")
        A(f"v_and_b32 v{vs[2*i+1]}, 0xffff0000, v{tmp[i]}")

def lds_spin(label, addr_v, off, val):
    A(f"s_cbranch_execz {label}_x")
    LB(label)
    A(f"ds_read_b32 v15, v{addr_v} offset:{off}")
    A("s_waitcnt lgkmcnt(0)")
    A("v_readfirstlane_b32 s66, v15")
    A("s_sub_u32 s67, s67, 1")
    A(f"s_cbranch_scc1 {label}_x")
    if OPT.get("lsl") and label in ("L_ispin",): A(f"s_sleep {OPT['lsl']}")
    if OPT.get("ksl") and label in ("L_qspin", "L_mspin", "L_pspin1"):
        A(f"s_cmp_ge_u32 s66, {val}\ns_cbranch_scc1 {label}_x\ns_sleep {OPT['ksl']}")
    A(f"s_cmp_lt_u32 s66, {val}")
    A(f"s_cbranch_scc1 {label}")
    LB(label + "_x")

def lds_spin_data(label, off, val, reads):
    lds_spin(label, 12, off, val)
    reads()
    A("s_waitcnt lgkmcnt(0)")

def rowsum(vs, shifts=(8, 4, 2, 1)):
    for sh in shifts:
        if len(vs) < 3: A("s_nop 1")
        for v in vs:
            A(f"v_add_f32_dpp v{v}, v{v}, v{v} row_ror:{sh} row_mask:0xf bank_mask:0xf")

def dma_voff(dst, stride_sreg_or_shift, t0, t1):
    A(f"v_bfe_u32 v{t0}, v0, 1, 2\nv_bfe_u32 v{t1}, v0, 4, 2\nv_xor_b32 v{t0}, v{t0}, v{t1}")
    A(f"v_and_b32 v{t1}, 1, v0\nv_lshl_add_u32 v{t0}, v{t0}, 1, v{t1}\nv_lshlrev_b32 v{t0}, 4, v{t0}")
    A(f"v_lshrrev_b32 v{t1}, 3, v0")
    if isinstance(stride_sreg_or_shift, int):
        A(f"v_lshl_add_u32 v{dst}, v{t1}, {stride_sreg_or_shift}, v{t0}")
    else:
        A(f"v_mul_lo_u32 v{t1}, v{t1}, {stride_sreg_or_shift}\nv_add_u32 v{dst}, v{t1}, v{t0}")

def tr_addr(dst, q4, t0, t1, base):
    A(f"v_bfe_u32 v{t0}, v0, 3, 2")
    A(f"v_xor_b32 v{t0}, {q4}, v{t0}")
    A(f"v_lshlrev_b32 v{t0}, 5, v{t0}")
    A(f"v_and_b32 v{t1}, 3, v0\nv_lshl_add_u32 v{t0}, v{t1}, 3, v{t0}")
    A(f"v_lshrrev_b32 v{t1}, 2, v0\nv_lshl_add_u32 v{dst}, v{t1}, 7, v{t0}")
    A(f"v_add_u32 v{dst}, {base}, v{dst}")

def tr_read(dst, addr_v, off, t):
    A(f"ds_read_b64_tr_b16 v[{dst}:{dst+1}], v{addr_v} offset:{off + 4096*t}")
    A(f"ds_read_b64_tr_b16 v[{dst+2}:{dst+3}], v{addr_v} offset:{off + 4096*t + 2048}")

def lds_spin2(label, addr_v, off, val):
    A(f"s_cbranch_execz {label}_x")
    LB(label)
    A(f"ds_read_b64 v[14:15], v{addr_v} offset:{off}")
    A("s_waitcnt lgkmcnt(0)")
    A("v_min_u32 v15, v14, v15")
    A("s_sub_u32 s67, s67, 1")
    A("v_readfirstlane_b32 s66, v15")
    A(f"s_cbranch_scc1 {label}_x")
    A(f"s_cmp_lt_u32 s66, {val}")
    A(f"s_cbranch_scc1 {label}")
    LB(label + "_x")

def bump(off):
    exec_mask(1, 0)
    A(f"ds_add_u32 v12, v13 offset:{off}")
    exec_all()

def mfma(d, a, b, c):
    cs = "0" if c is None else f"v[{c}:{c+3}]"
    A(f"v_mfma_f32_16x16x32_bf16 v[{d}:{d+3}], v[{a}:{a+3}], v[{b}:{b+3}], {cs}")

def select4(xs):
    A(f"v_permlane16_swap_b32 v{xs[0]}, v{xs[1]}")
    A(f"v_permlane16_swap_b32 v{xs[2]}, v{xs[3]}")

NWAVES = 16 if OPT["dry"] else 12
L.append(HEADER.rstrip())
L.append(f"; @launch grid=(256,1,1) block=({NWAVES*64},1,1) lds={LDS_BYTES}")
L.append('.amdgcn_target "amdgcn-amd-amdhsa--gfx950"')
L.append(".text")
L.append(f".globl {NAME}\n.p2align 8\n.type {NAME},@function\n{NAME}:")
A("s_cmp_ge_u32 s2, 256\ns_cbranch_scc1 L_end")
if OPT.get("xorwg"): A(f"s_xor_b32 s2, s2, {OPT['xorwg']}")
A("v_lshrrev_b32 v1, 6, v0")
A("v_and_b32 v0, 63, v0")
A("s_and_b32 s31, s2, 7")
A("v_readfirstlane_b32 s30, v1")
A("s_nop 0")
A("s_cmp_lg_u32 s30, 2\ns_cbranch_scc1 L_noinit")
A(f"v_lshlrev_b32 v4, 2, v0\nv_add_u32 v4, {CNT}, v4\nv_mov_b32 v8, 0")
A("s_mov_b32 exec_lo, 0xffff\ns_mov_b32 exec_hi, 0")
A("ds_write_b32 v4, v8")
A("s_mov_b64 exec, -1")
A("s_waitcnt lgkmcnt(0)")
LB("L_noinit")
A("s_load_dwordx16 s[4:19], s[0:1], 0")
A("s_load_dwordx8 s[20:27], s[0:1], 64")
A("s_load_dwordx2 s[28:29], s[0:1], 96")
if TS or OPT.get("diag"): A("s_memrealtime s[72:73]")
A("s_barrier")
if OPT["dry"]:
    A("s_cmp_lt_u32 s30, 12\ns_cbranch_scc1 L_main")
    if OPT.get("cpf", 0):
        A("s_getpc_b64 s[60:61]")
        LB("L_pc")
        A(f"s_sub_u32 s62, s30, 12\ns_mul_i32 s62, s62, {OPT.get('cpf', 0)*128}")
        A(f"s_add_u32 s63, s62, {OPT.get('cpf', 0)*128}")
        LB("L_pf")
        A("s_load_dword s36, s[60:61], s62")
        A("s_add_u32 s62, s62, 128\ns_cmp_lt_u32 s62, s63\ns_cbranch_scc1 L_pf")
    A("s_branch L_helper")
    LB("L_main")
A("s_lshr_b32 s32, s2, 3")
A("s_lshr_b32 s33, s32, 4")
A("s_and_b32 s34, s32, 15")
A(f"s_mov_b32 s67, {OPT['spin']}")
A("s_mov_b64 s[90:91], -1")
A("v_and_b32 v2, 15, v0")
A("v_lshrrev_b32 v3, 4, v0")
A("s_lshr_b32 s52, s32, 3")
A("s_and_b32 s53, s32, 7")
A("s_lshl_b32 s54, s31, 2\ns_add_u32 s54, s54, s52")
A("s_lshl_b32 s50, s33, 3\ns_add_u32 s50, s50, s31\ns_lshl_b32 s50, s50, 23")
A("s_lshl_b32 s51, s34, 16\ns_add_u32 s50, s50, s51\ns_add_u32 s50, s50, 0x700000")
A(f"s_mul_i32 s51, s32, {OPT.get('rotm', 5)}\ns_add_u32 s51, s51, s31")
A("s_and_b32 s49, s54, 7\ns_cmp_lg_u32 s49, 7\ns_cselect_b32 s49, 1, 0")
A("s_lshr_b32 s55, s54, 3\ns_sub_u32 s55, s54, s55")
A("s_cmp_lt_u32 s30, 4\ns_cbranch_scc1 L_special")

def epoch_load():
    if EPO:
        A(f"s_mov_b32 s56, {hex(EPO)}\ns_load_dwordx2 s[56:57], s[28:29], s56")
    else:
        A("s_load_dwordx2 s[56:57], s[28:29], 0")
def fconsts():
    A(f"s_mov_b32 s68, {hex(SCALE)}\ns_mov_b32 s69, {hex(LOG2E)}\ns_mov_b32 s70, {hex(NLOG2E)}")
def ts0():
    if TS: A("v_writelane_b32 v127, s72, 0")

C("================= K / attention waves =================")
ts_reset()
A("s_sub_u32 s35, s30, 4")
A("s_lshl_b32 s62, s35, 1\ns_add_u32 s62, s62, s51")
A("s_add_u32 s63, s62, 1\ns_and_b32 s62, s62, 15\ns_and_b32 s63, s63, 15")
A("s_lshl_b32 s62, s62, 12\ns_lshl_b32 s63, s63, 12")
A("s_add_u32 s61, s50, s63\ns_add_u32 s60, s50, s62")
for u in range(4):
    A(f"v_add_u32 v{104+u}, {4*u}, v3\nv_xor_b32 v{104+u}, v{104+u}, v2\nv_lshlrev_b32 v{104+u}, 4, v{104+u}\nv_lshl_add_u32 v{104+u}, v3, 8, v{104+u}")
A(f"s_lshl_b32 s84, s35, 13\ns_add_u32 s84, s84, {KI}\ns_cmp_eq_u32 s35, 7\ns_cselect_b32 s84, {VI+57344}, s84")
A("s_add_u32 s85, s84, 4096")
dma_voff(112, 13, 114, 115)
A("s_movk_i32 s62, 3584\nv_mul_lo_u32 v113, v115, s62\nv_add_u32 v113, v113, v114")
A("s_lshl_b32 s62, s52, 20\ns_lshl_b32 s63, s31, 10\ns_add_u32 s62, s62, s63\ns_lshl_b32 s63, s53, 7\ns_add_u32 s62, s62, s63")
A("s_lshl_b32 s63, s35, 18\ns_add_u32 s62, s62, s63")
A(f"s_lshl_b32 s86, s35, 12\ns_add_u32 s86, s86, {WQI}")
A("s_lshl_b32 s87, s53, 2\ns_add_u32 s87, s87, s35\ns_mul_i32 s87, s87, 16*3584\ns_lshl_b32 s71, s55, 7\ns_add_u32 s87, s87, s71")
A(f"s_lshl_b32 s71, s35, 11\ns_add_u32 s71, s71, {GI}")
A("s_mov_b32 m0, s86")
A("s_cmp_lt_u32 s35, 4\ns_cselect_b32 s49, s49, 2")
A("s_waitcnt lgkmcnt(0)")
ts0()
A("s_cmp_eq_u32 s49, 2\ns_cbranch_scc1 L_nogu")
A("s_cmp_gt_u32 s35, 1\ns_cbranch_scc1 L_nox")
srd(76, 4, 2048)
A(f"s_lshl_b32 s63, s35, 10\ns_add_u32 m0, s63, {XS}\nv_lshlrev_b32 v114, 4, v0")
A("buffer_load_dwordx4 v114, s[76:79], s63 offen lds")
A("s_mov_b32 m0, s86")
LB("L_nox")
srd(40, 10, 0x400000)
for i in range(4):
    if i: A(f"s_add_u32 m0, s86, {1024*i}\ns_add_u32 s62, s62, 65536")
    A(f"buffer_load_dwordx4 v112, s[40:43], s62 offen {WF} lds")
A("s_cmp_eq_u32 s49, 0\ns_cbranch_scc1 L_nogu")
srd(76, 16, 512 * 3584)
A("s_mov_b32 m0, s71")
srd(92, 18, 512 * 3584)
for i in range(2):
    if i: A(f"s_add_u32 m0, s71, 1024\ns_add_u32 s87, s87, {8*3584}")
    A(f"buffer_load_dwordx4 v113, s[76:79], s87 offen {WF} lds")
    A(f"s_add_u32 m0, s71, {UI-GI+1024*i}\ns_nop 0")
    A(f"buffer_load_dwordx4 v113, s[92:95], s87 offen {WF} lds")
LB("L_nogu")
A("s_mov_b32 s86, s49")
if TS == 5: A("s_memrealtime s[72:73]\ns_waitcnt lgkmcnt(0)\nv_writelane_b32 v127, s72, 8")
srd(36, 6, 0x8000000)
KR, QR = 16, 80
KVF = OPT["kv_fl"]
def kload(i):
    t, u = i // 4, i % 4
    if u == 0: A(f"s_mov_b32 m0, s{84+t}\ns_nop 0")
    A(f"buffer_load_dwordx4 v{104+u}, s[36:39], s{60+t} offen offset:{u*1024} {KVF} lds")
def kread(t):
    for j in range(4):
        i = 4 * t + j
        A(f"ds_read_b128 v[{KR+4*i}:{KR+4*i+3}], v{108+j} offset:{4096*t}")
FA = "s[44:47]" if OPT["dual"] else "s[80:83]"
def qgather(sr=FA):
    A(f"buffer_load_dwordx4 v[{QR}:{QR+3}], v6, {sr}, s62 offen sc1")
KA, VB = OPT["ka"], OPT["vb"]
ws_srds()
epoch_load()
fconsts(); consts()
A("s_lshl_b32 s62, s31, 1\ns_add_u32 s62, s62, s33\ns_lshl_b32 s62, s62, 13")
A("s_lshl_b32 s63, s35, 8\ns_add_u32 s62, s62, s63")
A(f"s_add_u32 s62, s62, {hex(QX)}")
A("v_lshlrev_b32 v6, 11, v3\nv_lshl_add_u32 v6, v2, 4, v6")
A(f"v_mov_b32 v12, {CNT}\nv_mov_b32 v13, 1")
for j in range(4):
    A(f"v_add_u32 v{108+j}, {4*j}, v3\nv_xor_b32 v{108+j}, v{108+j}, v2\nv_lshlrev_b32 v{108+j}, 4, v{108+j}\nv_lshl_add_u32 v{108+j}, v2, 8, v{108+j}\nv_add_u32 v{108+j}, s84, v{108+j}")
KY = OPT.get("ky", 8)
A("s_cmp_lg_u32 s86, 2\ns_cbranch_scc1 L_old1")
for i in range(KY): kload(i)
if TS == 5: A("s_memrealtime s[72:73]\ns_waitcnt lgkmcnt(0)\nv_writelane_b32 v127, s72, 9")
LB("L_old1")
A("v_and_b32 v14, 3, v2")
A(f"s_lshl_b32 s71, s35, 7\ns_add_u32 s71, s71, {QS}")
A("v_lshl_add_u32 v10, v2, 3, s71\nv_lshl_add_u32 v10, v3, 1, v10")
A(f"v_lshlrev_b32 v11, 8, v14\nv_lshl_add_u32 v11, v3, 4, v11\nv_add_u32 v11, {QS}, v11")
A(f"v_lshlrev_b32 v8, 5, v14\nv_add_u32 v8, {MX}, v8")
A("s_lshl_b32 s71, s35, 2\nv_add_u32 v9, s71, v8")
A(f"v_lshl_add_u32 v7, v3, 2, v14\nv_lshlrev_b32 v7, 4, v7\nv_add_u32 v7, {PS}, v7")
A("s_lshl_b32 s71, s35, 8\nv_add_u32 v5, s71, v7")
A("v_bfe_u32 v120, v0, 2, 3\nv_xor_b32 v120, s35, v120\nv_lshlrev_b32 v120, 5, v120")
A("v_and_b32 v121, 3, v0\nv_lshl_add_u32 v120, v121, 3, v120\nv_lshrrev_b32 v121, 2, v0\nv_lshl_add_u32 v120, v121, 8, v120")
A("v_lshlrev_b32 v121, 9, v14\nv_lshl_add_u32 v121, v3, 4, v121")
A(f"s_lshl_b32 s76, s31, 5\ns_add_u32 s49, s76, s32\ns_mul_i32 s49, s49, {OBS}\ns_add_u32 s49, s49, {hex(H1)}")
A("s_lshl_b32 s71, s35, 6\ns_add_u32 s48, s49, s71")
A(f"v_lshrrev_b32 v122, 3, v2\nv_lshl_add_u32 v122, v122, 4, v3\nv_mul_u32_u24 v122, {OBS}, v122")
A("v_and_b32 v123, 7, v2\nv_lshl_add_u32 v122, v123, 4, v122")
A(f"s_mul_i32 s76, s76, {OBS}\ns_add_u32 s76, s76, {hex(H1)}")
A("s_lshl_b32 s71, s52, 9\ns_add_u32 s76, s76, s71\ns_lshl_b32 s71, s35, 7\ns_add_u32 s76, s76, s71")
for i in range(1, 4): A(f"s_add_u32 s{76+i}, s76, {i*4*OBS}")
A(f"s_lshl_b32 s71, s35, 6\ns_add_u32 s71, s71, {OV}")
A("v_lshrrev_b32 v124, 3, v2\nv_lshlrev_b32 v124, 8, v124\nv_lshl_add_u32 v124, v123, 3, v124\nv_lshl_add_u32 v124, v3, 1, v124\nv_add_u32 v124, s71, v124")
A("s_waitcnt lgkmcnt(0)")
tags()
if TS == 5: A("s_memrealtime s[72:73]\ns_waitcnt lgkmcnt(0)\nv_writelane_b32 v127, s72, 10")
A("s_cmp_eq_u32 s86, 2\ns_cbranch_scc1 L_young")
A("s_cmp_eq_u32 s86, 0\ns_cbranch_scc1 L_nogu2")
A("s_waitcnt vmcnt(4)")
bump(O_W)
A("s_waitcnt vmcnt(0)")
bump(O_G)
A("s_branch L_gu3")
LB("L_nogu2")
A("s_waitcnt vmcnt(0)")
bump(O_W)
LB("L_gu3")
lds_spin("L_b1", 12, O_B1, 1)
ts()
for i in range(8): kload(i)
if KY < 8:
    A("s_branch L_young2")
    LB("L_young")
    lds_spin("L_b1y", 12, O_B1, 1)
    if KY % 4: A(f"s_mov_b32 m0, s{84 + KY//4}\ns_nop 0")
    for i in range(KY, 8): kload(i)
    LB("L_young2")
else:
    LB("L_young")
bump(O_B3)
lds_spin("L_b3", 12, O_B3, 8)
ts()
qgather()
bump(O_B2)
VB2 = 0
ts()
if OPT.get("prio"): A(f"s_setprio {OPT['prio']}")
LB("L_d0")
if VB2:
    A("s_waitcnt vmcnt(1)")
    tagcheck_dense([QR], 88, 89, 90)
    A("v_cmp_ne_u32 vcc, 0, v88\ns_nop 1\ns_cbranch_vccz L_qchk_ok")
    A("s_waitcnt vmcnt(0)")
    for c in range(4): A(f"v_mov_b32 v{QR+c}, v{QR+4+c}")
    if TS: A("s_mov_b32 s74, 0x100")
else:
    A("s_waitcnt vmcnt(5)")
    kread(0)
    A("s_waitcnt vmcnt(1)")
    kread(1)
    A("s_cmp_lg_u32 s35, 7\ns_cbranch_scc1 L_nok7")
    A("s_waitcnt lgkmcnt(0)")
    bump(O_K7)
    LB("L_nok7")
    A("s_waitcnt vmcnt(0)")
poll_check("L_qchk", [QR], 88, qgather, tagcheck_dense, 4)
if TS: A("v_writelane_b32 v127, s74, 13")
ts()
for c in range(4): A(f"v_and_b32 v{QR+c}, 0xffffff00, v{QR+c}")
A("s_nop 0")
xrow_t4(QR)
A(f"v_cvt_pk_bf16_f32 v{QR}, v{QR}, v{QR}")
A(f"ds_write_b16 v10, v{QR}")
bump(O_Q)
def qreads():
    for j in range(4):
        A(f"ds_read_b128 v[{QR+4*j}:{QR+4*j+3}], v11 offset:{64*j}")
lds_spin_data("L_qspin", O_Q, 8, qreads)
for j in range(4):
    for t in range(2):
        k = KR + 4 * (4 * t + j)
        mfma(96 + 4 * t, k, QR + 4 * j, None if j == 0 else 96 + 4 * t)
A("s_nop 7\ns_nop 1")
S = list(range(96, 104))
bf16_round_pairs(S, [112, 113, 114, 115])
for v in S: A(f"v_mul_f32 v{v}, s68, v{v}")
bf16_round_pairs(S, [112, 113, 114, 115])
A("v_max3_f32 v116, v96, v97, v98\nv_max3_f32 v116, v116, v99, v100\nv_max3_f32 v116, v116, v101, v102\nv_max_f32 v116, v116, v103")
xrow_multi("v_max_f32", [116], [117])
exec_mask(0xf, 0)
A("ds_write_b32 v9, v116")
bump(O_M)
lds_spin_data("L_mspin", O_M, 8, lambda: A("ds_read_b128 v[104:107], v8\nds_read_b128 v[108:111], v8 offset:16"))
A("v_max3_f32 v116, v104, v105, v106\nv_max3_f32 v116, v116, v107, v108\nv_max3_f32 v116, v116, v109, v110\nv_max_f32 v116, v116, v111")
A("v_mul_f32 v117, s70, v116")
for v in S: A(f"v_fma_f32 v{v}, v{v}, s69, v117")
for v in S: A(f"v_exp_f32 v{v}, v{v}")
A("v_or_b32 v125, s88, v116")
for i in range(4): A(f"v_cvt_pk_bf16_f32 v{112+i}, v{96+2*i}, v{97+2*i}")
A("v_add_f32 v117, v96, v97\nv_add_f32 v118, v98, v99\nv_add_f32 v119, v100, v101\nv_add_f32 v104, v102, v103")
A("v_add_f32 v117, v117, v118\nv_add_f32 v119, v119, v104\nv_add_f32 v117, v117, v119")
exec_mask(0x000f000f, 0x000f000f)
A("ds_write_b128 v5, v[112:115]")
exec_all()
xrow_multi("v_add_f32", [117], [118])
exec_mask(0xf, 0)
A("ds_write_b32 v9, v117 offset:128")
bump(O_P)
PR, VO = 16, 48
def preads():
    A(f"ds_read_b64 v[118:119], v12 offset:{O_VL}")
    for k in range(8):
        A(f"ds_read_b128 v[{PR+4*k}:{PR+4*k+3}], v7 offset:{256*k}")
lds_spin_data("L_pspin1", O_P, 8, preads)
A("v_min_u32 v118, v118, v119")
A("s_nop 0")
A("v_readfirstlane_b32 s71, v118")
A("s_cmp_lg_u32 s35, 7\ns_cbranch_scc1 L_nol")
A("ds_read_b128 v[104:107], v8 offset:128\nds_read_b128 v[108:111], v8 offset:144")
A("v_lshlrev_b32 v10, 4, v2")
A("v_mov_b32 v97, s58\nv_mov_b32 v98, v116\nv_mov_b32 v99, s59")
A("s_waitcnt lgkmcnt(0)")
A("v_add_f32 v104, v104, v105\nv_add_f32 v106, v106, v107\nv_add_f32 v108, v108, v109\nv_add_f32 v110, v110, v111")
A("v_add_f32 v104, v104, v106\nv_add_f32 v108, v108, v110\nv_add_f32 v96, v104, v108")
exec_mask(0xf, 0)
memgrp(lambda: publish(96, 10, "s49", 2048))
exec_all()
LB("L_nol")
ts()
dry_end()
LB("L_d1")
def vstep(ks, first):
    for k in ks:
        A(f"ds_read_b64_tr_b16 v[{VO+4*k}:{VO+4*k+1}], v120 offset:{VI + 8192*k}")
        A(f"ds_read_b64_tr_b16 v[{VO+4*k+2}:{VO+4*k+3}], v120 offset:{VI + 8192*k + 4096}")
    for i, k in enumerate(ks):
        A(f"s_waitcnt lgkmcnt({2*(len(ks)-1-i)})")
        mfma(80, VO + 4 * k, PR + 4 * k, None if (first and i == 0) else 80)
A("s_cmp_lt_u32 s71, 7\ns_cbranch_scc1 L_vinc")
vstep([0, 1, 2, 3, 4, 5, 6], True)
A("s_cbranch_execnz L_vlast")
LB("L_vinc")
lds_spin2("L_v1", 12, O_VL, 4)
vstep([0, 1, 2, 3], True)
lds_spin2("L_v2", 12, O_VL, 6)
vstep([4, 5], False)
lds_spin2("L_v3", 12, O_VL, 7)
vstep([6], False)
LB("L_vlast")
hbar()
ts()
vstep([7], False)
exec_mask(0x000f000f, 0x000f000f)
A("s_nop 5")
stamp(84, [80, 81, 82, 83], 125)
memgrp(lambda: publish(84, 121, "s48"))
exec_all()
hbar()
ts()
A("s_cmp_ge_u32 s35, 4\ns_cbranch_scc1 L_kv_h2")
GR = 80
def h1gather(sr=FA):
    for i in range(4):
        A(f"buffer_load_dwordx4 v[{GR+4*i}:{GR+4*i+3}], v122, {sr}, s{76+i} offen sc1")
ts()
memgrp(h1gather)
A("s_waitcnt vmcnt(0)")
ts()
poll_check("L_h1chk", [GR + 4 * i for i in range(4)], 116, h1gather, tagcheck_16, 8)
ts()
for i in range(4): A(f"v_perm_b32 v{100+i}, v{GR+4*i+3}, v{GR+4*i+2}, s93")
A("v_max3_f32 v116, v100, v101, v102\nv_max_f32 v116, v116, v103")
xrow_multi("v_max_f32", [116], [117])
A("v_mul_f32 v117, s70, v116")
for i in range(4): A(f"v_fma_f32 v{100+i}, v{100+i}, s69, v117")
for i in range(4): A(f"v_exp_f32 v{100+i}, v{100+i}")
for c in range(16): A(f"v_and_b32 v{GR+c}, 0xffffff00, v{GR+c}")
for c in range(4): A(f"v_mul_f32 v{104+c}, v100, v{GR+c}")
for i in range(1, 4):
    for c in range(4): A(f"v_fmac_f32 v{104+c}, v{100+i}, v{GR+4*i+c}")
A("s_nop 0")
xrow_t4(104)
A("v_cvt_pk_bf16_f32 v104, v104, v104")
A("ds_write_b16 v124, v104")
A("s_waitcnt lgkmcnt(0)")
hbar()
ts()
if OPT["dry"]: A("s_cbranch_execz L_d2")
A("s_branch L_kv_done")
LB("L_kv_h2")
A("s_cmp_lg_u32 s35, 7\ns_cbranch_scc1 L_kv_bo")
A("s_cmp_ge_u32 s2, 128\ns_cbranch_scc1 L_kv_bo")
LB("L_d2")
if TS: ts_n[0] = 12
srd(48, 24, 2048)
A("s_lshl_b32 s60, s2, 11")
A(f"s_add_u32 s60, s60, {hex(H2)}")
A("v_lshlrev_b32 v5, 4, v0")
def h2gather(sr="s[80:83]"):
    A(f"buffer_load_dwordx4 v[16:19], v5, {sr}, s60 offen sc1")
    A(f"buffer_load_dwordx4 v[20:23], v5, {sr}, s60 offen offset:1024 sc1")
A("v_mov_b32 v8, 0")
A("s_lshl_b32 s62, s2, 3")
hbar()
if TS == 5: A("s_memrealtime s[72:73]\ns_waitcnt lgkmcnt(0)\nv_writelane_b32 v127, s72, 11")
memgrp(h2gather)
A("s_waitcnt vmcnt(0)")
poll_check("L_h2chk", [16, 20], 24, h2gather, dual=False)
ts()
A("v_add_f32 v16, v16, v20\nv_add_f32 v18, v18, v22")
rowsum([16, 18], shifts=(8, 4))
xrow_multi("v_add_f32", [16, 18], [17, 19])
A("s_nop 0")
for i, qp in enumerate(("[1,1,1,1]", "[2,2,2,2]", "[3,3,3,3]")):
    A(f"v_mov_b32_dpp v{24+i}, v16 quad_perm:{qp} row_mask:0xf bank_mask:0xf")
    A(f"v_mov_b32_dpp v{28+i}, v18 quad_perm:{qp} row_mask:0xf bank_mask:0xf")
A("v_cvt_pk_bf16_f32 v32, v16, v24\nv_cvt_pk_bf16_f32 v33, v25, v26")
A("v_cvt_pk_bf16_f32 v34, v18, v28\nv_cvt_pk_bf16_f32 v35, v29, v30")
exec_mask(1, 0)
if OPT["dry"]: A("s_cbranch_execz L_spre")
A("buffer_store_dwordx2 v[32:33], v8, s[48:51], s62 offen")
A("buffer_store_dwordx2 v[34:35], v8, s[48:51], s62 offen offset:1024")
if OPT.get("diag"):
    A(f"v_readlane_b32 s73, v127, {OPT['diag']}\nv_readlane_b32 s99, v127, {OPT.get('diag0', 0)}")
    A("s_memrealtime s[100:101]\ns_waitcnt lgkmcnt(0)")
    A(f"s_sub_u32 s73, s73, s99\ns_mul_i32 s73, s73, {OPT.get('diagm', 8)}\ns_add_u32 s73, s73, s100")
    LB("L_diag")
    A("s_memrealtime s[98:99]\ns_waitcnt lgkmcnt(0)\ns_sub_u32 s99, s98, s73\ns_cmp_lt_i32 s99, 0\ns_cbranch_scc1 L_diag")
A("s_cmp_lg_u32 s2, 0\ns_cbranch_scc1 L_kv_done")
A("v_mov_b32 v36, s58\nv_mov_b32 v37, s59")
A(f"s_mov_b32 s62, {hex(EPO)}")
A("buffer_store_dwordx2 v[36:37], v8, s[44:47], s62 offen sc1")
A("s_branch L_kv_done")
LB("L_kv_bo")
A("s_barrier")
LB("L_kv_done")
if TS:
    A("s_memrealtime s[72:73]\ns_waitcnt lgkmcnt(0)\nv_writelane_b32 v127, s72, 15")
ts_dump()
A("s_endpgm")

if OPT["dry"]:
    LB("L_helper")
    C("================= dry-run helpers: warm the instruction cache =================")
    for v in list(range(4, 16)) + list(range(104, 112)) + [120, 121, 122, 123, 124]: A(f"v_mov_b32 v{v}, 0")
    A("s_waitcnt lgkmcnt(0)")
    ws_srds()
    A("v_mov_b32 v2, 0\nv_mov_b32 v3, 0")
    A("s_mov_b32 s32, 0\ns_mov_b32 s52, 0\ns_mov_b32 s53, 0\ns_mov_b32 s54, 0\ns_mov_b32 s67, 0")
    A("s_mov_b64 s[90:91], 0\ns_mov_b64 exec, 0")
    A("s_mov_b32 s35, 7\ns_mov_b32 s48, 0\ns_mov_b32 s49, 1\ns_mov_b32 s60, 0\ns_mov_b32 s61, 0\ns_mov_b32 s62, 0\ns_mov_b32 s63, 0")
    A("s_cmp_eq_u32 s30, 12\ns_cbranch_scc1 L_d0")
    A("s_cmp_eq_u32 s30, 14\ns_cbranch_scc1 L_d5")
    A("s_cmp_eq_u32 s30, 15\ns_cbranch_scc1 L_d3")
    A("s_mov_b32 s35, 0\ns_mov_b32 s71, 8")
    A("s_branch L_d1")
    LB("L_spre")
    if OPT["spre"]:
        A(f"s_lshl_b32 s60, s31, 5\ns_add_u32 s60, s60, s32\ns_mul_i32 s60, s60, {OBS}\ns_add_u32 s60, s60, {hex(H1)}")
        A("s_add_u32 s62, s28, s60\ns_addc_u32 s63, s29, 0")
        if OPT["spre"] & 1:
            for i in range(17): A(f"s_load_dword s{4+(i%8)}, s[62:63], {128*i}")
        A(f"s_lshl_b32 s60, s2, 11\ns_add_u32 s60, s60, {hex(H2+MIR)}")
        A("s_add_u32 s62, s28, s60\ns_addc_u32 s63, s29, 0")
        if OPT["spre"] & 2:
            A("s_cmp_ge_u32 s2, 128\ns_cbranch_scc1 L_end")
            for i in range(16): A(f"s_load_dword s{4+(i%8)}, s[62:63], {128*i}")
    A("s_endpgm")

LB("L_special")
C("================= special waves =================")
ts_reset()
A("v_and_b32 v6, 1, v2\nv_lshlrev_b32 v6, 10, v6\nv_lshl_add_u32 v6, v3, 3, v6")
A("s_cmp_eq_u32 s30, 0\ns_cbranch_scc1 L_w0")
A("s_cmp_eq_u32 s30, 1\ns_cbranch_scc1 L_w1")
A("s_cmp_eq_u32 s30, 3\ns_cbranch_scc1 L_w3")
A("s_waitcnt lgkmcnt(0)")
ts0()
ws_srds()
epoch_load()
if OPT.get("tlbw", 0):
    A("v_mov_b32 v4, 0")
    A("s_mov_b32 exec_lo, 1\ns_mov_b32 exec_hi, 0")
    srd(36, 24, 2048)
    A("buffer_load_dword v16, v4, s[36:39], 0 offen")
    srd(40, 8, 0x8000000)
    A(f"buffer_load_dword v17, v4, s[40:43], s50 offen {KVF}")
    srd(76, 12, 0x400000)
    A("s_lshl_b32 s60, s54, 17")
    A(f"buffer_load_dword v18, v4, s[76:79], s60 offen {WF}")
    srd(84, 20, 1792 * 1024)
    A("s_lshl_b32 s60, s55, 16")
    A(f"buffer_load_dword v19, v4, s[84:87], s60 offen {WF}")
    A("s_mov_b64 exec, -1")
if OPT["dry"]:
    for v in range(4, 16): A(f"v_mov_b32 v{v}, 0")
    A("s_mov_b64 exec, 0")
    A("s_branch L_d4")
LB("L_w2ret")
A("s_mov_b64 exec, -1")
fconsts(); consts()
A("s_waitcnt lgkmcnt(0)")
tags()
A("s_branch L_vload")

LB("L_w3")
A("v_lshlrev_b32 v5, 4, v0")
A("s_waitcnt lgkmcnt(0)")
ts0()
srd(36, 4, 2048)
srd(40, 22, 1024)
A("buffer_load_dwordx4 v[16:19], v5, s[36:39], 0 offen")
A("buffer_load_dwordx4 v[20:23], v5, s[36:39], 0 offen offset:1024")
A("buffer_load_dwordx4 v[24:27], v5, s[40:43], 0 offen")
ws_srds()
epoch_load()
fconsts(); consts()
A("s_waitcnt vmcnt(0)")
for src, dst in ((24, 32), (16, 40), (20, 48)):
    for w in range(4):
        A(f"v_lshlrev_b32 v{dst+2*w}, 16, v{src+w}\nv_and_b32 v{dst+2*w+1}, 0xffff0000, v{src+w}")
for b in range(2):
    for e in range(8):
        A(f"v_mul_f32 v{40+8*b+e}, v{40+8*b+e}, v{32+e}")
bf16_round_pairs(list(range(40, 56)), list(range(16, 24)))
for b in range(2):
    o = 40 + 8 * b
    A(f"v_add_f32 v{o}, v{o}, v{o+1}\nv_add_f32 v{o+2}, v{o+2}, v{o+3}\nv_add_f32 v{o+4}, v{o+4}, v{o+5}\nv_add_f32 v{o+6}, v{o+6}, v{o+7}")
    A(f"v_add_f32 v{o}, v{o}, v{o+2}\nv_add_f32 v{o+4}, v{o+4}, v{o+6}\nv_add_f32 v{o}, v{o}, v{o+4}")
rowsum([40, 48])
xrow_multi("v_add_f32", [40, 48], [41, 49])
A("v_mov_b32 v41, v48")
bf16_round_pairs([40, 41], [16])
A("v_mul_f32 v40, s70, v40\nv_mul_f32 v41, s70, v41")
A("v_exp_f32 v40, v40\nv_exp_f32 v41, v41")
A("s_nop 0")
A("v_add_f32 v40, 1.0, v40\nv_add_f32 v41, 1.0, v41")
A("v_rcp_f32 v40, v40\nv_rcp_f32 v41, v41")
A("s_nop 0")
bf16_round_pairs([40, 41], [16])
A("v_sub_f32 v42, 1.0, v40\nv_sub_f32 v43, 1.0, v41")
bf16_round_pairs([42, 43], [16])
A(f"v_mov_b32 v4, {GT}")
A("ds_write_b128 v4, v[40:43]")
A("s_waitcnt lgkmcnt(0)")
tags()

LB("L_vload")
srd(40, 8, 0x8000000)
A("s_sub_u32 s35, s30, 2")
A("s_lshl_b32 s60, s35, 2\nv_add_u32 v4, s60, v3\nv_lshrrev_b32 v5, 1, v2\nv_xor_b32 v4, v4, v5")
A("v_and_b32 v5, 1, v2\nv_lshl_add_u32 v4, v4, 1, v5\nv_lshlrev_b32 v4, 4, v4\nv_lshl_add_u32 v4, v3, 8, v4")
A("s_lshl_b32 s61, s35, 10\ns_add_u32 s62, s50, s61")
A("s_and_b32 s60, s51, 15\ns_lshl_b32 s60, s60, 12")
A(f"v_mov_b32 v12, {CNT}\nv_mov_b32 v13, 1")
A(f"s_lshl_b32 s63, s35, 2\ns_add_u32 s63, s63, {CNT+O_VL}\nv_mov_b32 v11, s63")
A("v_mov_b32 v8, 4\nv_mov_b32 v9, 6\nv_mov_b32 v10, 8\nv_mov_b32 v7, 7")
def vblk(i):
    A(f"s_add_u32 s63, s62, s60\ns_add_u32 m0, s61, {VI + 4096*i}")
    A("s_add_u32 s60, s60, 4096\ns_and_b32 s60, s60, 0xffff")
    A(f"buffer_load_dwordx4 v4, s[40:43], s63 offen {KVF} lds")
    A(f"buffer_load_dwordx4 v4, s[40:43], s63 offen offset:2048 {KVF} lds")
lds_spin("L_b2", 12, O_B2, 8)
VB = 0
IB = OPT.get("ib", 16)
for i in range(2 * VB, 17):
    if VB2 and i == 2 * VB + VB2: A("s_barrier\ns_barrier")
    if i == max(IB, 2 * VB):
        A("s_mov_b32 exec_lo, 1\ns_mov_b32 exec_hi, 0")
        A(f"ds_add_u32 v12, v13 offset:{O_I}")
        A("s_mov_b64 exec, -1")
    if OPT.get("w1e") and i == OPT.get("hb", 6):
        A("s_mov_b32 exec_lo, 1\ns_mov_b32 exec_hi, 0")
        A(f"ds_add_u32 v12, v13 offset:{O_V}")
        A("s_mov_b64 exec, -1")
    if OPT.get("xb") and i == OPT["xb"]: lds_spin("L_xbspin", 12, O_Q, 8)
    if i == 14: lds_spin("L_k7spin", 12, O_K7, 1)
    if i < 16: vblk(i)
A("s_mov_b32 exec_lo, 1\ns_mov_b32 exec_hi, 0")
ts()
A("s_waitcnt vmcnt(16)")
A("ds_write_b32 v11, v8")
ts()
A("s_waitcnt vmcnt(8)")
A("ds_write_b32 v11, v9")
A("s_waitcnt vmcnt(4)")
A("ds_write_b32 v11, v7")
A("s_mov_b64 exec, -1")
A("s_waitcnt vmcnt(0)")
A("s_barrier")
ts()
A("s_branch L_final")

LB("L_w0")
ts_reset()
if OPT.get("w0p"): A("s_setprio 3")
A("s_lshl_b32 s61, s52, 8")
A("s_waitcnt lgkmcnt(0)")
ts0()
XA, BB, AC = 16, 32, 96
A(f"s_add_u32 s61, s61, {XS}\nv_add_u32 v6, s61, v6")
ws_srds()
epoch_load()
fconsts(); consts()
for q4 in range(4): tr_addr(8 + q4, q4, 12, 13, WQI)
A(f"v_lshlrev_b32 v12, 2, v0\nv_add_u32 v12, {QT}, v12\nv_and_b32 v13, 31, v0\nv_lshlrev_b32 v13, 4, v13\nv_add_u32 v13, {QT}, v13")
A("v_and_b32 v14, 1, v3\nv_lshlrev_b32 v14, 13, v14\nv_lshl_add_u32 v14, v2, 4, v14")
A("s_lshl_b32 s62, s31, 14\ns_lshl_b32 s63, s52, 11\ns_add_u32 s62, s62, s63\ns_lshl_b32 s63, s53, 8\ns_add_u32 s62, s62, s63")
A(f"s_add_u32 s62, s62, {hex(QX)}")
A("s_waitcnt lgkmcnt(0)")
tags()
A("v_mov_b32 v5, s58")
A(f"v_mov_b32 v4, {CNT}")
lds_spin("L_wspin", 4, O_W, 4)
ts()
LB("L_d4")
for t in range(4): A(f"ds_read2_b64 v[{XA+4*t}:{XA+4*t+3}], v6 offset0:{8*t} offset1:{8*t+4}")
seq = [(q4, t) for q4 in range(4) for t in range(4)]
D = 5
def issue(k):
    q4, t = seq[k]; tr_read(BB + 4 * k, 8 + q4, 0, t)
for k in range(D): issue(k)
for k in range(16):
    q4, t = seq[k]
    A(f"s_waitcnt lgkmcnt({2*(min(16,k+D)-k)-2})")
    mfma(AC + 4 * q4, XA + 4 * t, BB + 4 * k, None if t == 0 else AC + 4 * q4)
    if k + D < 16: issue(k + D)
A("s_nop 7\ns_nop 1")
for r in range(2): select4([AC + 4 * q + r for q in range(4)])
A("s_nop 0")
for r in range(2): A(f"v_permlane32_swap_b32 v{AC+r}, v{AC+8+r}")
A("s_nop 0")
A(f"ds_write_b32 v12, v{AC}\nds_write_b32 v12, v{AC+1} offset:256")
A("ds_read_b128 v[116:119], v13")
A("s_waitcnt lgkmcnt(0)")
stamp(112, [116, 117, 118, 119], 5)
A("s_mov_b32 exec_hi, 0")
A("s_cbranch_execz L_w2ret")
publish(112, 14, "s62")
A(f"v_mov_b32 v12, {CNT}\nv_mov_b32 v8, 1")
A(f"ds_write_b32 v12, v8 offset:{O_B1}")
A("s_mov_b64 exec, -1")
ts()
srd(36, 12, 0x400000)
srd(40, 20, 1792 * 1024)
dma_voff(4, 10, 8, 9)
if OPT.get("cshift"):
    A(f"s_add_u32 s63, s53, {OPT['cshift']}\ns_and_b32 s63, s63, 7\ns_lshl_b32 s63, s63, 7\ns_lshl_b32 s60, s54, 17\ns_add_u32 s60, s60, s63")
else:
  A("s_lshl_b32 s60, s54, 17\ns_lshl_b32 s63, s53, 7\ns_add_u32 s60, s60, s63")
A("s_lshl_b32 s61, s55, 16\ns_add_u32 s61, s61, s63")
A(f"v_mov_b32 v12, {CNT}\nv_mov_b32 v8, 1\nv_mov_b32 v9, 2\nv_mov_b32 v10, 3")
lds_spin("L_ispin", 12, O_I, 3)
ts()
A("s_cmp_eq_u32 s49, 0\ns_cbranch_scc1 L_w0_nowd")
for i in range(8):
    A(f"s_mov_b32 m0, {WDI+1024*i}")
    if i: A(f"s_add_u32 s61, s61, {8*1024}")
    else: A("s_nop 0")
    A(f"buffer_load_dwordx4 v4, s[40:43], s61 offen {WF} lds")
LB("L_w0_nowd")
for i in range(16):
    A(f"s_mov_b32 m0, {WOI+1024*i}")
    if i: A(f"s_add_u32 s60, s60, {8*1024}")
    else: A("s_nop 0")
    A(f"buffer_load_dwordx4 v4, s[36:39], s60 offen {WF} lds")
ts()
A("s_barrier\ns_barrier")
A("s_waitcnt vmcnt(16)")
A(f"ds_write_b32 v12, v8 offset:{O_STAGE}")
ts()
A("s_waitcnt vmcnt(8)")
A(f"ds_write_b32 v12, v9 offset:{O_STAGE}")
ts()
A("s_waitcnt vmcnt(0)")
A(f"ds_write_b32 v12, v10 offset:{O_STAGE}")
ts()
A("s_mov_b32 s75, 1")
A("s_branch L_final0")

LB("L_w1_idle")
A("s_waitcnt lgkmcnt(0)")
ts0()
ws_srds()
epoch_load()
fconsts(); consts()
A("s_waitcnt lgkmcnt(0)")
tags()
A(f"v_mov_b32 v11, {CNT}\nv_mov_b32 v14, 1")
A("s_mov_b32 exec_lo, 1\ns_mov_b32 exec_hi, 0")
A(f"ds_add_u32 v11, v14 offset:{O_I}")
A("s_mov_b64 exec, -1")
A("s_barrier")
A("s_branch L_final")
LB("L_w1")
ts_reset()
A("s_cmp_eq_u32 s49, 0\ns_cbranch_scc1 L_w1_idle")
A("s_lshl_b32 s61, s53, 7")
A("s_waitcnt lgkmcnt(0)")
ts0()
A(f"s_add_u32 s61, s61, {XS}\nv_add_u32 v6, s61, v6")
ws_srds()
epoch_load()
fconsts(); consts()
for q4 in range(4): tr_addr(8 + q4, q4, 12, 13, GI)
A("v_lshlrev_b32 v5, 4, v0")
A("s_lshl_b32 s62, s55, 13")
A(f"s_add_u32 s62, s62, {hex(HX)}")
A("s_lshl_b32 s63, s53, 10\ns_add_u32 s63, s63, s62")
A("s_add_u32 s61, s62, 4096")
A(f"v_lshlrev_b32 v12, 1, v0\nv_add_u32 v12, {HS}, v12")
A(f"v_mov_b32 v13, {CNT+O_H}\nv_mov_b32 v14, 1")
A("s_waitcnt lgkmcnt(0)")
tags()
A("v_mov_b32 v4, s58")
A(f"v_mov_b32 v7, {CNT}")
lds_spin("L_gspin", 7, O_G, 4)
ts()
LB("L_d5")
for t in range(2): A(f"ds_read2_b64 v[{XA+4*t}:{XA+4*t+3}], v6 offset0:{8*t} offset1:{8*t+4}")
seq = [(mat, q4, t) for mat in range(2) for q4 in range(4) for t in range(2)]
BB1 = 24
AC1 = 88
def issue(k):
    mat, q4, t = seq[k]; tr_read(BB1 + 4 * k, 8 + q4, (UI - GI) if mat else 0, t)
for k in range(D): issue(k)
for k in range(16):
    mat, q4, t = seq[k]
    A(f"s_waitcnt lgkmcnt({2*(min(16,k+D)-k)-2})")
    acc = AC1 + 16 * mat + 4 * q4
    mfma(acc, XA + 4 * t, BB1 + 4 * k, None if t == 0 else acc)
    if k + D < 16: issue(k + D)
A("s_nop 7\ns_nop 1")
for mat in range(2):
    for r in range(2): select4([AC1 + 16 * mat + 4 * q + r for q in range(4)])
A("s_nop 0")
for mat in range(2):
    for r in range(2): A(f"v_permlane32_swap_b32 v{AC1+16*mat+r}, v{AC1+16*mat+8+r}")
A("s_nop 0")
stamp(120, [AC1, AC1 + 1, AC1 + 16, AC1 + 17], 4)
dry_end()
publish(120, 5, "s63")
ts()
HG = 16
def hgather(sr=FA):
    for rb in range(8):
        r = HG + 4 * rb
        A(f"buffer_load_dwordx4 v[{r}:{r+3}], v5, {sr}, s{62 - rb//4} offen offset:{(rb%4)*1024} sc1")
A(f"v_mov_b32 v11, {CNT}")
A("s_mov_b32 exec_lo, 1\ns_mov_b32 exec_hi, 0")
A(f"ds_add_u32 v11, v14 offset:{O_I}")
A("s_mov_b64 exec, -1")
lds_spin("L_hw", 11, O_V, 2)
hgather()
ts()
LB("L_d3")
A("s_waitcnt vmcnt(0)")
poll_check("L_hchk", [HG + 4 * i for i in range(8)], 96, hgather, tagcheck_dense, 4)
ts()
for c in range(32): A(f"v_and_b32 v{HG+c}, 0xffffff00, v{HG+c}")
for step in (16, 8, 4):
    for base in range(HG, HG + step, 4):
        for o in range(4):
            A(f"v_add_f32 v{base+o}, v{base+o}, v{base+step+o}")
bf16_round_pairs([16, 17, 18, 19], [24, 25])
A("v_mul_f32 v24, s70, v16\nv_mul_f32 v25, s70, v17")
A("v_exp_f32 v24, v24\nv_exp_f32 v25, v25")
A("s_nop 0")
A("v_add_f32 v24, 1.0, v24\nv_add_f32 v25, 1.0, v25")
A("v_rcp_f32 v24, v24\nv_rcp_f32 v25, v25")
A("s_nop 0")
A("v_mul_f32 v16, v16, v24\nv_mul_f32 v17, v17, v25")
bf16_round_pairs([16, 17], [24])
A("v_mul_f32 v16, v16, v18\nv_mul_f32 v17, v17, v19")
A("v_cvt_pk_bf16_f32 v24, v16, v17")
A("ds_write_b16 v12, v24")
A("ds_write_b16_d16_hi v12, v24 offset:128")
A("ds_write_b32 v13, v14")
ts()
hbar()

LB("L_final")
A("s_mov_b32 s75, 0")
LB("L_final0")
if TS: ts_n[0] = 8
tr_addr(8, "s30", 12, 13, WOI)
A(f"v_mov_b32 v12, {CNT}")
A(f"v_and_b32 v9, 1, v2\nv_lshlrev_b32 v10, 7, v9\nv_lshl_add_u32 v10, v3, 3, v10\nv_add_u32 v10, {HS}, v10")
A(f"v_lshlrev_b32 v9, 8, v9\nv_lshl_add_u32 v9, v3, 3, v9\nv_add_u32 v9, {OV}, v9")
A("v_lshrrev_b32 v11, 2, v2\nv_lshlrev_b32 v11, 11, v11\nv_and_b32 v13, 3, v2\nv_lshl_add_u32 v11, v13, 4, v11")
A("s_lshl_b32 s60, s53, 15\ns_lshl_b32 s61, s30, 13\ns_add_u32 s60, s60, s61\ns_lshl_b32 s61, s54, 6\ns_add_u32 s60, s60, s61")
A(f"s_add_u32 s60, s60, {hex(H2)}")
A(f"v_and_b32 v7, 31, v0\nv_mul_u32_u24 v7, {OBS}, v7")
A(f"s_mul_i32 s61, s31, {32*OBS}\ns_lshl_b32 s62, s52, 4\ns_add_u32 s61, s61, s62")
A(f"s_add_u32 s61, s61, {hex(H1+2048)}")
A(f"v_mov_b32 v13, {GT}")
A("ds_read_b128 v[60:63], v13")
A("v_mov_b32 v65, s58\nv_mov_b32 v67, s59")
A("v_mov_b32 v56, 0\nv_mov_b32 v57, 0")
A("s_cmp_eq_u32 s75, 1\ns_cbranch_scc1 L_nobp")
hbar()
LB("L_nobp")
def lgather(sr=FA):
    A(f"buffer_load_dwordx4 v[68:71], v7, {sr}, s61 offen sc1")
memgrp(lgather)
A("s_cmp_eq_u32 s49, 0\ns_cbranch_scc1 L_f_nofb")
lds_spin("L_fs1", 12, O_STAGE, 1)
for t in range(2): tr_read(16 + 4 * t, 8, WDI - WOI, t)
lds_spin("L_fs2", 12, O_H, 1)
for t in range(2):
    A(f"ds_read2_b64 v[{24+4*t}:{27+4*t}], v10 offset0:{8*t} offset1:{8*t+4}")
A("s_waitcnt lgkmcnt(0)")
mfma(56, 24, 16, None)
mfma(56, 28, 20, 56)
A("s_nop 7\ns_nop 1")
A("v_mul_f32 v56, v56, v62\nv_mul_f32 v57, v57, v63")
LB("L_f_nofb")
ts()
lds_spin("L_fs3", 12, O_STAGE, 3)
for t in range(4): tr_read(16 + 4 * t, 8, 0, t)
ts()
A("s_waitcnt vmcnt(0)")
poll_check("L_lchk", [68], 72, lgather)
A("v_mov_b32 v72, v70")
A("v_mov_b32 v73, v70")
for sh in (8, 4, 2, 1):
    A("s_nop 1")
    A(f"v_max_f32_dpp v73, v73, v73 row_ror:{sh} row_mask:0xf bank_mask:0xf")
A("v_sub_f32 v72, v72, v73\nv_mul_f32 v72, s69, v72\nv_exp_f32 v72, v72\ns_nop 0\nv_mul_f32 v72, v72, v68")
rowsum([72])
A("v_rcp_f32 v72, v72")
A("s_nop 1")
A("v_readlane_b32 s62, v72, 0\nv_readlane_b32 s63, v72, 16")
A("s_nop 1")
A("v_mul_f32 v60, s62, v60\nv_mul_f32 v61, s63, v61")
ts()
hbar()
for t in range(4):
    A(f"ds_read2_b64 v[{32+4*t}:{35+4*t}], v9 offset0:{8*t} offset1:{8*t+4}")
for t in range(4):
    A(f"s_waitcnt lgkmcnt({3-t})")
    mfma(48, 32 + 4 * t, 16 + 4 * t, None if t == 0 else 48)
exec_mask(0xffff, 0)
A("s_nop 6")
A("v_fma_f32 v64, v48, v60, v56\nv_fma_f32 v66, v49, v61, v57")
dry_end()
publish(64, 11, "s60", dual=False)
ts()
ts_dump()
LB("L_end")
A("s_endpgm")

L.append(f""".section .rodata,"a"
.p2align 6
.amdhsa_kernel {NAME}
  .amdhsa_next_free_vgpr 128
  .amdhsa_next_free_sgpr 102
  .amdhsa_accum_offset 128
  .amdhsa_group_segment_fixed_size 0
  .amdhsa_kernarg_size 104
  .amdhsa_user_sgpr_count 2
  .amdhsa_user_sgpr_kernarg_segment_ptr 1
  .amdhsa_system_sgpr_workgroup_id_x 1
.end_amdhsa_kernel""")
open(out, "w").write("\n".join(L) + "\n")
```

```python
import sys

OPT = dict(ts=0, kv_fl="nt", w_fl="nt", ka=4, w1e=1, w0p=1, vb=0, spin=400000, pst=0, dry=0, xb=9, slp=0, pre=0, prew=0, dual=1, bper=8, prio=3, lsl=2, spre=0)
out = sys.argv[1]
for a in sys.argv[2:]:
    k, v = a.split("=")
    OPT[k] = int(v) if v.lstrip("-").isdigit() else v.replace("+", " ").replace("none", "")
TS = OPT["ts"]

NAME = "gated_mix__sliding_block_cached__swiglu_ffn__decode_kernel"
HEADER = open("gated_mix__sliding_block_cached__swiglu_ffn__decode.s.ref").read().split("; Override launch")[0]

L = []
def A(s):
    for l in s.split("\n"):
        L.append("    " + l.strip())
def LB(s):
    L.append(s + ":")
def C(s):
    L.append("    ; " + s)

VI = 0
WQI = 65536
GI = 81920
UI = 90112
WOI = 65536
WDI = 81920
KI = 98304
SM = 155648
PS = SM
QS = SM + 2048
OV = SM + 3072
HS = SM + 3584
QT = SM + 3840
MX = SM + 4352
LS = SM + 4480
GT = SM + 4608
CNT = SM + 4624
O_Q, O_M, O_P, O_STAGE, O_H, O_K7, O_V, O_I, O_VL, O_B1, O_B2, O_B3, O_W, O_G = 0, 4, 8, 12, 16, 20, 24, 28, 32, 40, 44, 48, 52, 56
XS = SM + 4864
LDS_BYTES = SM + 4864 + 2048
WB = OPT.get('wb', 496) << 20
OBS = 2176
if OPT.get("compact", 1):
    QX = WB
    HX = WB + 0x20000
    H1 = WB + 0x58000
    MIR_ = 0xE0000
    H2 = WB + 0xE0000
    EPO = H1 + 2112
else:
    QX = WB + 0x10000
    HX = WB + 0x80000
    H1 = WB + 0x100000
    H2 = WB + 0x400000
    MIR_ = 0x800000
    EPO = 0
TSB = 0x800000

SCALE = 0x3DB504F3
LOG2E = 0x3FB8AA3B
NLOG2E = 0xBFB8AA3B
WF = OPT["w_fl"]

def srd(d, p, nbytes):
    A(f"s_mov_b32 s{d}, s{p}\ns_and_b32 s{d+1}, s{p+1}, 0xffff\ns_mov_b32 s{d+2}, {hex(nbytes)}\ns_mov_b32 s{d+3}, 0x20000")

ts_n = [0]
skip_n = [0]
def ts_reset():
    ts_n[0] = 1 if TS else 0
def ts():
    if not TS: return
    k = ts_n[0]; ts_n[0] += 1
    assert k < 16
    if TS == 3: return
    if TS == 6 and k != 12: return
    A(f"s_memrealtime s[72:73]\ns_waitcnt lgkmcnt(0)\nv_writelane_b32 v127, s72, {k}")
def ts_dump():
    if not TS or TS in (5, 6): return
    A("s_mov_b64 exec, -1")
    if TS == 2:
        skip_n[0] += 1
        lb = f"L_sk{skip_n[0]}"
        A(f"s_cmp_lg_u32 s2, {OPT.get('dbgwg', 0)}\ns_cbranch_scc1 {lb}")
        A(f"s_cmp_lg_u32 s30, {OPT.get('dbgwave', 11)}\ns_cbranch_scc1 {lb}")
        srd(76, 26, 256)
        A("v_readlane_b32 s60, v127, 0\ns_nop 1\nv_subrev_u32 v127, s60, v127")
        A("v_lshlrev_b32 v3, 2, v0")
        A("s_mov_b32 exec_lo, 0xffff\ns_mov_b32 exec_hi, 0")
        A("buffer_store_dword v127, v3, s[76:79], 0 offen")
        LB(lb)
        return
    A("s_mul_i32 s60, s2, 12\ns_add_u32 s60, s60, s30\ns_lshl_b32 s60, s60, 6")
    A(f"s_add_u32 s60, s60, {hex(TSB)}")
    A("v_lshlrev_b32 v3, 2, v0")
    A("s_mov_b32 exec_lo, 0xffff\ns_mov_b32 exec_hi, 0")
    A("buffer_store_dword v127, v3, s[44:47], s60 offen")

def tags():
    A("s_add_u32 s58, s56, 0x01010101\ns_add_u32 s59, s57, 0x9e3779b9")
    A("s_and_b32 s88, s58, 0xffff\ns_and_b32 s89, s58, 0xffff0000")

def tagcheck(bases, acc, t0, t1):
    first = True
    for b in bases:
        A(f"v_xor_b32 v{t0}, s58, v{b+1}")
        A(f"v_xor_b32 v{t1}, s59, v{b+3}")
        if first:
            A(f"v_or_b32 v{acc}, v{t0}, v{t1}"); first = False
        else:
            A(f"v_or3_b32 v{acc}, v{acc}, v{t0}, v{t1}")

def tagcheck_dense(bases, acc, t0, t1):
    first = True
    for b in bases:
        A(f"v_perm_b32 v{t0}, v{b+1}, v{b}, s92")
        A(f"v_perm_b32 v{t1}, v{b+3}, v{b+2}, s93")
        A(f"v_xor_b32 v{t0}, s88, v{t0}")
        A(f"v_xor_b32 v{t1}, s89, v{t1}")
        if first:
            A(f"v_or_b32 v{acc}, v{t0}, v{t1}"); first = False
        else:
            A(f"v_or3_b32 v{acc}, v{acc}, v{t0}, v{t1}")

def tagcheck_16(bases, acc, t0, t1):
    for i in range(0, len(bases), 2):
        b0 = bases[i]
        A(f"v_perm_b32 v{t0}, v{b0+1}, v{b0}, s92")
        A(f"v_xor_b32 v{t0}, s88, v{t0}")
        if i + 1 < len(bases):
            b1 = bases[i + 1]
            A(f"v_perm_b32 v{t1}, v{b1+1}, v{b1}, s92")
            A(f"v_xor_b32 v{t1}, s88, v{t1}")
            if i == 0: A(f"v_or_b32 v{acc}, v{t0}, v{t1}")
            else: A(f"v_or3_b32 v{acc}, v{acc}, v{t0}, v{t1}")
        else:
            if i == 0: A(f"v_mov_b32 v{acc}, v{t0}")
            else: A(f"v_or_b32 v{acc}, v{acc}, v{t0}")

def stamp(dst, srcs, tagv):
    for i in range(4):
        A(f"v_perm_b32 v{dst+i}, v{srcs[i]}, v{tagv}, s{94+i}")

def consts():
    A("s_mov_b32 s92, 0x0c0c0400\ns_mov_b32 s93, 0x04000c0c")
    A("s_mov_b32 s94, 0x07060500\ns_mov_b32 s95, 0x07060501\ns_mov_b32 s96, 0x07060502\ns_mov_b32 s97, 0x07060503")

def exec_mask(lo, hi):
    if not OPT["dry"]:
        A(f"s_mov_b32 exec_lo, {hex(lo)}")
        if hi is not None: A(f"s_mov_b32 exec_hi, {hex(hi)}")
        return
    A(f"s_and_b32 exec_lo, s90, {hex(lo)}" if lo != 0xffffffff else "s_mov_b32 exec_lo, s90")
    if hi is not None:
        A(f"s_and_b32 exec_hi, s91, {hex(hi)}" if hi else "s_mov_b32 exec_hi, 0")
def exec_all():
    A("s_mov_b64 exec, s[90:91]" if OPT["dry"] else "s_mov_b64 exec, -1")
def memgrp(fn):
    if not OPT["dry"]:
        fn(); return
    skip_n[0] += 1
    lb = f"L_sk{skip_n[0]}"
    A(f"s_cbranch_execz {lb}")
    fn()
    LB(lb)
def hbar():
    memgrp(lambda: A("s_barrier"))
def dry_end():
    if OPT["dry"]: A("s_cbranch_execz L_end")

MIR = MIR_
def ws_srds():
    srd(44, 28, 0x20000000)
    A(f"s_add_u32 s80, s28, {hex(MIR)}\ns_addc_u32 s81, s29, 0\ns_and_b32 s81, s81, 0xffff\ns_mov_b32 s82, {hex(0x20000000-MIR)}\ns_mov_b32 s83, 0x20000")
    A("s_mov_b32 s74, 0")

def publish(data, voff, soff, off=0, dual=True):
    o = f" offset:{off}" if off else ""
    if dual and OPT["dual"]:
        A(f"buffer_store_dwordx4 v[{data}:{data+3}], v{voff}, s[44:47], {soff} offen{o}")
    A(f"buffer_store_dwordx4 v[{data}:{data+3}], v{voff}, s[80:83], {soff} offen{o} sc1")

def poll_check(label, bases, tmp, reissue, chk=tagcheck, grp=1, dual=True):
    dual = dual and OPT["dual"]
    LB(label)
    chk(bases, tmp, tmp + 1, tmp + 2)
    if grp >= 4:
        A(f"s_nop 1\nv_or_b32_dpp v{tmp}, v{tmp}, v{tmp} quad_perm:[1,0,3,2] row_mask:0xf bank_mask:0xf")
        A(f"s_nop 1\nv_or_b32_dpp v{tmp}, v{tmp}, v{tmp} quad_perm:[2,3,0,1] row_mask:0xf bank_mask:0xf")
    if grp >= 8:
        A(f"s_nop 1\nv_or_b32_dpp v{tmp}, v{tmp}, v{tmp} row_half_mirror row_mask:0xf bank_mask:0xf")
    A(f"v_cmp_ne_u32 vcc, 0, v{tmp}")
    A("s_nop 1")
    A(f"s_cbranch_vccz {label}_ok")
    if OPT.get("nopoll"): A(f"s_branch {label}_ok")
    A(f"s_sub_u32 s67, s67, 1\ns_cbranch_scc1 {label}_ok")
    A("s_mov_b64 exec, vcc")
    if OPT["slp"]: A(f"s_sleep {OPT['slp']}")
    if dual:
        A(f"s_add_u32 s74, s74, 1\ns_and_b32 s75, s74, {OPT['bper']-1}\ns_cbranch_scc0 {label}_b")
        reissue("s[44:47]")
        A("s_waitcnt vmcnt(0)")
        A(f"s_branch {label}")
        LB(label + "_b")
    reissue("s[80:83]")
    A("s_waitcnt vmcnt(0)")
    A(f"s_branch {label}")
    LB(label + "_ok")
    exec_all()

def xrow_multi(op, vs, ts_, steps=("v_permlane16_swap_b32", "v_permlane32_swap_b32")):
    for sw in steps:
        for v, t in zip(vs, ts_):
            A(f"v_mov_b32 v{t}, v{v}")
        if len(vs) < 2: A("s_nop 1")
        elif len(vs) < 3: A("s_nop 0")
        for v, t in zip(vs, ts_):
            A(f"{sw} v{v}, v{t}")
        A("s_nop 0")
        for v, t in zip(vs, ts_):
            A(f"{op} v{v}, v{v}, v{t}")

def xrow_t4(v):
    A(f"v_permlane16_swap_b32 v{v}, v{v+1}")
    A(f"v_permlane16_swap_b32 v{v+2}, v{v+3}")
    A("s_nop 0")
    A(f"v_add_f32 v{v}, v{v}, v{v+1}")
    A(f"v_add_f32 v{v+2}, v{v+2}, v{v+3}")
    A("s_nop 1")
    A(f"v_permlane32_swap_b32 v{v}, v{v+2}")
    A("s_nop 0")
    A(f"v_add_f32 v{v}, v{v}, v{v+2}")

def transpose8(raw, dst, pairs=(0, 1, 2, 3)):
    for v in pairs:
        for w in range(4):
            a = raw + 4 * (2 * v) + w
            b = raw + 4 * (2 * v + 1) + w
            A(f"v_perm_b32 v{dst + 4*(2*w) + v}, v{b}, v{a}, s64")
            A(f"v_perm_b32 v{dst + 4*(2*w+1) + v}, v{b}, v{a}, s65")

def bf16_round_pairs(vs, tmp):
    n = len(vs) // 2
    for i in range(n):
        A(f"v_cvt_pk_bf16_f32 v{tmp[i]}, v{vs[2*i]}, v{vs[2*i+1]}")
    for i in range(n):
        A(f"v_lshlrev_b32 v{vs[2*i]}, 16, v{tmp[i]}")
        A(f"v_and_b32 v{vs[2*i+1]}, 0xffff0000, v{tmp[i]}")

def lds_spin(label, addr_v, off, val):
    if OPT["dry"]: A(f"s_cbranch_execz {label}_x")
    LB(label)
    A(f"ds_read_b32 v15, v{addr_v} offset:{off}")
    A("s_waitcnt lgkmcnt(0)")
    A("v_readfirstlane_b32 s66, v15")
    A("s_sub_u32 s67, s67, 1")
    A(f"s_cbranch_scc1 {label}_x")
    if OPT.get("lsl") and label in ("L_ispin",): A(f"s_sleep {OPT['lsl']}")
    if OPT.get("ksl") and label in ("L_qspin", "L_mspin", "L_pspin1"):
        A(f"s_cmp_ge_u32 s66, {val}\ns_cbranch_scc1 {label}_x\ns_sleep {OPT['ksl']}")
    A(f"s_cmp_lt_u32 s66, {val}")
    A(f"s_cbranch_scc1 {label}")
    LB(label + "_x")

def lds_spin_data(label, off, val, reads):
    lds_spin(label, 12, off, val)
    reads()
    A("s_waitcnt lgkmcnt(0)")

def rowsum(vs, shifts=(8, 4, 2, 1)):
    for sh in shifts:
        if len(vs) < 3: A("s_nop 1")
        for v in vs:
            A(f"v_add_f32_dpp v{v}, v{v}, v{v} row_ror:{sh} row_mask:0xf bank_mask:0xf")

def dma_voff(dst, stride_sreg_or_shift, t0, t1):
    A(f"v_bfe_u32 v{t0}, v0, 1, 2\nv_bfe_u32 v{t1}, v0, 4, 2\nv_xor_b32 v{t0}, v{t0}, v{t1}")
    A(f"v_and_b32 v{t1}, 1, v0\nv_lshl_add_u32 v{t0}, v{t0}, 1, v{t1}\nv_lshlrev_b32 v{t0}, 4, v{t0}")
    A(f"v_lshrrev_b32 v{t1}, 3, v0")
    if isinstance(stride_sreg_or_shift, int):
        A(f"v_lshl_add_u32 v{dst}, v{t1}, {stride_sreg_or_shift}, v{t0}")
    else:
        A(f"v_mul_lo_u32 v{t1}, v{t1}, {stride_sreg_or_shift}\nv_add_u32 v{dst}, v{t1}, v{t0}")

def tr_addr(dst, q4, t0, t1, base):
    A(f"v_bfe_u32 v{t0}, v0, 3, 2")
    A(f"v_xor_b32 v{t0}, {q4}, v{t0}")
    A(f"v_lshlrev_b32 v{t0}, 5, v{t0}")
    A(f"v_and_b32 v{t1}, 3, v0\nv_lshl_add_u32 v{t0}, v{t1}, 3, v{t0}")
    A(f"v_lshrrev_b32 v{t1}, 2, v0\nv_lshl_add_u32 v{dst}, v{t1}, 7, v{t0}")
    A(f"v_add_u32 v{dst}, {base}, v{dst}")

def tr_read(dst, addr_v, off, t):
    A(f"ds_read_b64_tr_b16 v[{dst}:{dst+1}], v{addr_v} offset:{off + 4096*t}")
    A(f"ds_read_b64_tr_b16 v[{dst+2}:{dst+3}], v{addr_v} offset:{off + 4096*t + 2048}")

def lds_spin2(label, addr_v, off, val):
    if OPT["dry"]: A(f"s_cbranch_execz {label}_x")
    LB(label)
    A(f"ds_read_b64 v[14:15], v{addr_v} offset:{off}")
    A("s_waitcnt lgkmcnt(0)")
    A("v_min_u32 v15, v14, v15")
    A("s_sub_u32 s67, s67, 1")
    A("v_readfirstlane_b32 s66, v15")
    A(f"s_cbranch_scc1 {label}_x")
    A(f"s_cmp_lt_u32 s66, {val}")
    A(f"s_cbranch_scc1 {label}")
    LB(label + "_x")

def bump(off):
    exec_mask(1, 0)
    A(f"ds_add_u32 v12, v13 offset:{off}")
    exec_all()

def mfma(d, a, b, c):
    cs = "0" if c is None else f"v[{c}:{c+3}]"
    A(f"v_mfma_f32_16x16x32_bf16 v[{d}:{d+3}], v[{a}:{a+3}], v[{b}:{b+3}], {cs}")

def select4(xs):
    A(f"v_permlane16_swap_b32 v{xs[0]}, v{xs[1]}")
    A(f"v_permlane16_swap_b32 v{xs[2]}, v{xs[3]}")

NWAVES = 16 if OPT["dry"] else 12
L.append(HEADER.rstrip())
L.append(f"; @launch grid=(256,1,1) block=({NWAVES*64},1,1) lds={LDS_BYTES}")
L.append('.amdgcn_target "amdgcn-amd-amdhsa--gfx950"')
L.append(".text")
L.append(f".globl {NAME}\n.p2align 8\n.type {NAME},@function\n{NAME}:")
A("s_cmp_ge_u32 s2, 256\ns_cbranch_scc1 L_end")
if OPT.get("xorwg"): A(f"s_xor_b32 s2, s2, {OPT['xorwg']}")
A("v_lshrrev_b32 v1, 6, v0")
A("v_and_b32 v0, 63, v0")
A("s_and_b32 s31, s2, 7")
A("v_readfirstlane_b32 s30, v1")
A("s_nop 0")
A("s_cmp_lg_u32 s30, 2\ns_cbranch_scc1 L_noinit")
A(f"v_lshlrev_b32 v4, 2, v0\nv_add_u32 v4, {CNT}, v4\nv_mov_b32 v8, 0")
A("s_mov_b32 exec_lo, 0xffff\ns_mov_b32 exec_hi, 0")
A("ds_write_b32 v4, v8")
A("s_mov_b64 exec, -1")
A("s_waitcnt lgkmcnt(0)")
LB("L_noinit")
A("s_load_dwordx16 s[4:19], s[0:1], 0")
A("s_load_dwordx8 s[20:27], s[0:1], 64")
A("s_load_dwordx2 s[28:29], s[0:1], 96")
if TS or OPT.get("diag"): A("s_memrealtime s[72:73]")
A("s_barrier")
if OPT["dry"]:
    A("s_cmp_lt_u32 s30, 12\ns_cbranch_scc1 L_main")
    if OPT.get("cpf", 0):
        A("s_getpc_b64 s[60:61]")
        LB("L_pc")
        A(f"s_sub_u32 s62, s30, 12\ns_mul_i32 s62, s62, {OPT.get('cpf', 0)*128}")
        A(f"s_add_u32 s63, s62, {OPT.get('cpf', 0)*128}")
        LB("L_pf")
        A("s_load_dword s36, s[60:61], s62")
        A("s_add_u32 s62, s62, 128\ns_cmp_lt_u32 s62, s63\ns_cbranch_scc1 L_pf")
    A("s_branch L_helper")
    LB("L_main")
A("s_lshr_b32 s32, s2, 3")
A("s_lshr_b32 s33, s32, 4")
A("s_and_b32 s34, s32, 15")
A(f"s_mov_b32 s67, {OPT['spin']}")
if OPT["dry"]: A("s_mov_b64 s[90:91], -1")
A("v_and_b32 v2, 15, v0")
A("v_lshrrev_b32 v3, 4, v0")
A("s_lshr_b32 s52, s32, 3")
A("s_and_b32 s53, s32, 7")
A("s_lshl_b32 s54, s31, 2\ns_add_u32 s54, s54, s52")
A("s_lshl_b32 s50, s33, 3\ns_add_u32 s50, s50, s31\ns_lshl_b32 s50, s50, 23")
A("s_lshl_b32 s51, s34, 16\ns_add_u32 s50, s50, s51\ns_add_u32 s50, s50, 0x700000")
A(f"s_mul_i32 s51, s32, {OPT.get('rotm', 5)}\ns_add_u32 s51, s51, s31")
A("s_and_b32 s49, s54, 7\ns_cmp_lg_u32 s49, 7\ns_cselect_b32 s49, 1, 0")
A("s_lshr_b32 s55, s54, 3\ns_sub_u32 s55, s54, s55")
A("s_cmp_lt_u32 s30, 4\ns_cbranch_scc1 L_special")

def epoch_load():
    if EPO:
        A(f"s_mov_b32 s56, {hex(EPO)}\ns_load_dwordx2 s[56:57], s[28:29], s56")
    else:
        A("s_load_dwordx2 s[56:57], s[28:29], 0")
def fconsts():
    A(f"s_mov_b32 s68, {hex(SCALE)}\ns_mov_b32 s69, {hex(LOG2E)}\ns_mov_b32 s70, {hex(NLOG2E)}")
def ts0():
    if TS: A("v_writelane_b32 v127, s72, 0")

C("================= K / attention waves =================")
ts_reset()
A("s_sub_u32 s35, s30, 4")
A("s_lshl_b32 s62, s35, 1\ns_add_u32 s62, s62, s51")
A("s_add_u32 s63, s62, 1\ns_and_b32 s62, s62, 15\ns_and_b32 s63, s63, 15")
A("s_lshl_b32 s62, s62, 12\ns_lshl_b32 s63, s63, 12")
A("s_add_u32 s61, s50, s63\ns_add_u32 s60, s50, s62")
for u in range(4):
    A(f"v_add_u32 v{104+u}, {4*u}, v3\nv_xor_b32 v{104+u}, v{104+u}, v2\nv_lshlrev_b32 v{104+u}, 4, v{104+u}\nv_lshl_add_u32 v{104+u}, v3, 8, v{104+u}")
A(f"s_lshl_b32 s84, s35, 13\ns_add_u32 s84, s84, {KI}\ns_cmp_eq_u32 s35, 7\ns_cselect_b32 s84, {VI+57344}, s84")
A("s_add_u32 s85, s84, 4096")
dma_voff(112, 13, 114, 115)
A("s_movk_i32 s62, 3584\nv_mul_lo_u32 v113, v115, s62\nv_add_u32 v113, v113, v114")
A("s_lshl_b32 s62, s52, 20\ns_lshl_b32 s63, s31, 10\ns_add_u32 s62, s62, s63\ns_lshl_b32 s63, s53, 7\ns_add_u32 s62, s62, s63")
A("s_lshl_b32 s63, s35, 18\ns_add_u32 s62, s62, s63")
A(f"s_lshl_b32 s86, s35, 12\ns_add_u32 s86, s86, {WQI}")
A("s_lshl_b32 s87, s53, 2\ns_add_u32 s87, s87, s35\ns_mul_i32 s87, s87, 16*3584\ns_lshl_b32 s71, s55, 7\ns_add_u32 s87, s87, s71")
A(f"s_lshl_b32 s71, s35, 11\ns_add_u32 s71, s71, {GI}")
A("s_mov_b32 m0, s86")
A("s_cmp_lt_u32 s35, 4\ns_cselect_b32 s49, s49, 2")
A("s_waitcnt lgkmcnt(0)")
ts0()
A("s_cmp_eq_u32 s49, 2\ns_cbranch_scc1 L_nogu")
A("s_cmp_gt_u32 s35, 1\ns_cbranch_scc1 L_nox")
srd(76, 4, 2048)
A(f"s_lshl_b32 s63, s35, 10\ns_add_u32 m0, s63, {XS}\nv_lshlrev_b32 v114, 4, v0")
A("buffer_load_dwordx4 v114, s[76:79], s63 offen lds")
A("s_mov_b32 m0, s86")
LB("L_nox")
srd(40, 10, 0x400000)
for i in range(4):
    if i: A(f"s_add_u32 m0, s86, {1024*i}\ns_add_u32 s62, s62, 65536")
    A(f"buffer_load_dwordx4 v112, s[40:43], s62 offen {WF} lds")
A("s_cmp_eq_u32 s49, 0\ns_cbranch_scc1 L_nogu")
srd(76, 16, 512 * 3584)
A("s_mov_b32 m0, s71")
srd(92, 18, 512 * 3584)
for i in range(2):
    if i: A(f"s_add_u32 m0, s71, 1024\ns_add_u32 s87, s87, {8*3584}")
    A(f"buffer_load_dwordx4 v113, s[76:79], s87 offen {WF} lds")
    A(f"s_add_u32 m0, s71, {UI-GI+1024*i}\ns_nop 0")
    A(f"buffer_load_dwordx4 v113, s[92:95], s87 offen {WF} lds")
LB("L_nogu")
A("s_mov_b32 s86, s49")
if TS == 5: A("s_memrealtime s[72:73]\ns_waitcnt lgkmcnt(0)\nv_writelane_b32 v127, s72, 8")
srd(36, 6, 0x8000000)
KR, QR = 16, 80
KVF = OPT["kv_fl"]
def kload(i):
    t, u = i // 4, i % 4
    if u == 0: A(f"s_mov_b32 m0, s{84+t}\ns_nop 0")
    A(f"buffer_load_dwordx4 v{104+u}, s[36:39], s{60+t} offen offset:{u*1024} {KVF} lds")
def kread(t):
    for j in range(4):
        i = 4 * t + j
        A(f"ds_read_b128 v[{KR+4*i}:{KR+4*i+3}], v{108+j} offset:{4096*t}")
FA = "s[44:47]" if OPT["dual"] else "s[80:83]"
def qgather(sr=FA):
    A(f"buffer_load_dwordx4 v[{QR}:{QR+3}], v6, {sr}, s62 offen sc1")
KA, VB = OPT["ka"], OPT["vb"]
ws_srds()
epoch_load()
fconsts(); consts()
A("s_lshl_b32 s62, s31, 1\ns_add_u32 s62, s62, s33\ns_lshl_b32 s62, s62, 13")
A("s_lshl_b32 s63, s35, 8\ns_add_u32 s62, s62, s63")
A(f"s_add_u32 s62, s62, {hex(QX)}")
A("v_lshlrev_b32 v6, 11, v3\nv_lshl_add_u32 v6, v2, 4, v6")
A(f"v_mov_b32 v12, {CNT}\nv_mov_b32 v13, 1")
for j in range(4):
    A(f"v_add_u32 v{108+j}, {4*j}, v3\nv_xor_b32 v{108+j}, v{108+j}, v2\nv_lshlrev_b32 v{108+j}, 4, v{108+j}\nv_lshl_add_u32 v{108+j}, v2, 8, v{108+j}\nv_add_u32 v{108+j}, s84, v{108+j}")
KY = OPT.get("ky", 8)
A("s_cmp_lg_u32 s86, 2\ns_cbranch_scc1 L_old1")
for i in range(KY): kload(i)
if TS == 5: A("s_memrealtime s[72:73]\ns_waitcnt lgkmcnt(0)\nv_writelane_b32 v127, s72, 9")
LB("L_old1")
A("v_and_b32 v14, 3, v2")
A(f"s_lshl_b32 s71, s35, 7\ns_add_u32 s71, s71, {QS}")
A("v_lshl_add_u32 v10, v2, 3, s71\nv_lshl_add_u32 v10, v3, 1, v10")
A(f"v_lshlrev_b32 v11, 8, v14\nv_lshl_add_u32 v11, v3, 4, v11\nv_add_u32 v11, {QS}, v11")
A(f"v_lshlrev_b32 v8, 5, v14\nv_add_u32 v8, {MX}, v8")
A("s_lshl_b32 s71, s35, 2\nv_add_u32 v9, s71, v8")
A(f"v_lshl_add_u32 v7, v3, 2, v14\nv_lshlrev_b32 v7, 4, v7\nv_add_u32 v7, {PS}, v7")
A("s_lshl_b32 s71, s35, 8\nv_add_u32 v5, s71, v7")
A("v_bfe_u32 v120, v0, 2, 3\nv_xor_b32 v120, s35, v120\nv_lshlrev_b32 v120, 5, v120")
A("v_and_b32 v121, 3, v0\nv_lshl_add_u32 v120, v121, 3, v120\nv_lshrrev_b32 v121, 2, v0\nv_lshl_add_u32 v120, v121, 8, v120")
A("v_lshlrev_b32 v121, 9, v14\nv_lshl_add_u32 v121, v3, 4, v121")
A(f"s_lshl_b32 s76, s31, 5\ns_add_u32 s49, s76, s32\ns_mul_i32 s49, s49, {OBS}\ns_add_u32 s49, s49, {hex(H1)}")
A("s_lshl_b32 s71, s35, 6\ns_add_u32 s48, s49, s71")
A(f"v_lshrrev_b32 v122, 3, v2\nv_lshl_add_u32 v122, v122, 4, v3\nv_mul_u32_u24 v122, {OBS}, v122")
A("v_and_b32 v123, 7, v2\nv_lshl_add_u32 v122, v123, 4, v122")
A(f"s_mul_i32 s76, s76, {OBS}\ns_add_u32 s76, s76, {hex(H1)}")
A("s_lshl_b32 s71, s52, 9\ns_add_u32 s76, s76, s71\ns_lshl_b32 s71, s35, 7\ns_add_u32 s76, s76, s71")
for i in range(1, 4): A(f"s_add_u32 s{76+i}, s76, {i*4*OBS}")
A(f"s_lshl_b32 s71, s35, 6\ns_add_u32 s71, s71, {OV}")
A("v_lshrrev_b32 v124, 3, v2\nv_lshlrev_b32 v124, 8, v124\nv_lshl_add_u32 v124, v123, 3, v124\nv_lshl_add_u32 v124, v3, 1, v124\nv_add_u32 v124, s71, v124")
A("s_waitcnt lgkmcnt(0)")
tags()
if TS == 5: A("s_memrealtime s[72:73]\ns_waitcnt lgkmcnt(0)\nv_writelane_b32 v127, s72, 10")
A("s_cmp_eq_u32 s86, 2\ns_cbranch_scc1 L_young")
A("s_cmp_eq_u32 s86, 0\ns_cbranch_scc1 L_nogu2")
A("s_waitcnt vmcnt(4)")
bump(O_W)
A("s_waitcnt vmcnt(0)")
bump(O_G)
A("s_branch L_gu3")
LB("L_nogu2")
A("s_waitcnt vmcnt(0)")
bump(O_W)
LB("L_gu3")
lds_spin("L_b1", 12, O_B1, 1)
ts()
for i in range(8): kload(i)
if KY < 8:
    A("s_branch L_young2")
    LB("L_young")
    lds_spin("L_b1y", 12, O_B1, 1)
    if KY % 4: A(f"s_mov_b32 m0, s{84 + KY//4}\ns_nop 0")
    for i in range(KY, 8): kload(i)
    LB("L_young2")
else:
    LB("L_young")
bump(O_B3)
lds_spin("L_b3", 12, O_B3, 8)
ts()
qgather()
bump(O_B2)
VB2 = 0
ts()
if OPT.get("prio"): A(f"s_setprio {OPT['prio']}")
LB("L_d0")
if VB2:
    A("s_waitcnt vmcnt(1)")
    tagcheck_dense([QR], 88, 89, 90)
    A("v_cmp_ne_u32 vcc, 0, v88\ns_nop 1\ns_cbranch_vccz L_qchk_ok")
    A("s_waitcnt vmcnt(0)")
    for c in range(4): A(f"v_mov_b32 v{QR+c}, v{QR+4+c}")
    if TS: A("s_mov_b32 s74, 0x100")
else:
    A("s_waitcnt vmcnt(5)")
    kread(0)
    A("s_waitcnt vmcnt(1)")
    kread(1)
    A("s_cmp_lg_u32 s35, 7\ns_cbranch_scc1 L_nok7")
    A("s_waitcnt lgkmcnt(0)")
    bump(O_K7)
    LB("L_nok7")
    A("s_waitcnt vmcnt(0)")
poll_check("L_qchk", [QR], 88, qgather, tagcheck_dense, 4)
if TS: A("v_writelane_b32 v127, s74, 13")
ts()
for c in range(4): A(f"v_and_b32 v{QR+c}, 0xffffff00, v{QR+c}")
A("s_nop 0")
xrow_t4(QR)
A(f"v_cvt_pk_bf16_f32 v{QR}, v{QR}, v{QR}")
A(f"ds_write_b16 v10, v{QR}")
bump(O_Q)
def qreads():
    for j in range(4):
        A(f"ds_read_b128 v[{QR+4*j}:{QR+4*j+3}], v11 offset:{64*j}")
lds_spin_data("L_qspin", O_Q, 8, qreads)
for j in range(4):
    for t in range(2):
        k = KR + 4 * (4 * t + j)
        mfma(96 + 4 * t, k, QR + 4 * j, None if j == 0 else 96 + 4 * t)
A("s_nop 7\ns_nop 1")
S = list(range(96, 104))
bf16_round_pairs(S, [112, 113, 114, 115])
for v in S: A(f"v_mul_f32 v{v}, s68, v{v}")
bf16_round_pairs(S, [112, 113, 114, 115])
A("v_max3_f32 v116, v96, v97, v98\nv_max3_f32 v116, v116, v99, v100\nv_max3_f32 v116, v116, v101, v102\nv_max_f32 v116, v116, v103")
xrow_multi("v_max_f32", [116], [117])
exec_mask(0xf, 0)
A("ds_write_b32 v9, v116")
bump(O_M)
lds_spin_data("L_mspin", O_M, 8, lambda: A("ds_read_b128 v[104:107], v8\nds_read_b128 v[108:111], v8 offset:16"))
A("v_max3_f32 v116, v104, v105, v106\nv_max3_f32 v116, v116, v107, v108\nv_max3_f32 v116, v116, v109, v110\nv_max_f32 v116, v116, v111")
A("v_mul_f32 v117, s70, v116")
for v in S: A(f"v_fma_f32 v{v}, v{v}, s69, v117")
for v in S: A(f"v_exp_f32 v{v}, v{v}")
A("v_or_b32 v125, s88, v116")
for i in range(4): A(f"v_cvt_pk_bf16_f32 v{112+i}, v{96+2*i}, v{97+2*i}")
A("v_add_f32 v117, v96, v97\nv_add_f32 v118, v98, v99\nv_add_f32 v119, v100, v101\nv_add_f32 v104, v102, v103")
A("v_add_f32 v117, v117, v118\nv_add_f32 v119, v119, v104\nv_add_f32 v117, v117, v119")
exec_mask(0x000f000f, 0x000f000f)
A("ds_write_b128 v5, v[112:115]")
exec_all()
xrow_multi("v_add_f32", [117], [118])
exec_mask(0xf, 0)
A("ds_write_b32 v9, v117 offset:128")
bump(O_P)
PR, VO = 16, 48
def preads():
    A(f"ds_read_b64 v[118:119], v12 offset:{O_VL}")
    for k in range(8):
        A(f"ds_read_b128 v[{PR+4*k}:{PR+4*k+3}], v7 offset:{256*k}")
lds_spin_data("L_pspin1", O_P, 8, preads)
A("v_min_u32 v118, v118, v119")
A("s_nop 0")
A("v_readfirstlane_b32 s71, v118")
A("s_cmp_lg_u32 s35, 7\ns_cbranch_scc1 L_nol")
A("ds_read_b128 v[104:107], v8 offset:128\nds_read_b128 v[108:111], v8 offset:144")
A("v_lshlrev_b32 v10, 4, v2")
A("v_mov_b32 v97, s58\nv_mov_b32 v98, v116\nv_mov_b32 v99, s59")
A("s_waitcnt lgkmcnt(0)")
A("v_add_f32 v104, v104, v105\nv_add_f32 v106, v106, v107\nv_add_f32 v108, v108, v109\nv_add_f32 v110, v110, v111")
A("v_add_f32 v104, v104, v106\nv_add_f32 v108, v108, v110\nv_add_f32 v96, v104, v108")
exec_mask(0xf, 0)
memgrp(lambda: publish(96, 10, "s49", 2048))
exec_all()
LB("L_nol")
ts()
dry_end()
LB("L_d1")
def vstep(ks, first):
    for k in ks:
        A(f"ds_read_b64_tr_b16 v[{VO+4*k}:{VO+4*k+1}], v120 offset:{VI + 8192*k}")
        A(f"ds_read_b64_tr_b16 v[{VO+4*k+2}:{VO+4*k+3}], v120 offset:{VI + 8192*k + 4096}")
    for i, k in enumerate(ks):
        A(f"s_waitcnt lgkmcnt({2*(len(ks)-1-i)})")
        mfma(80, VO + 4 * k, PR + 4 * k, None if (first and i == 0) else 80)
A("s_cmp_lt_u32 s71, 7\ns_cbranch_scc1 L_vinc")
vstep([0, 1, 2, 3, 4, 5, 6], True)
A("s_cbranch_execnz L_vlast" if OPT["dry"] else "s_branch L_vlast")
LB("L_vinc")
lds_spin2("L_v1", 12, O_VL, 4)
vstep([0, 1, 2, 3], True)
lds_spin2("L_v2", 12, O_VL, 6)
vstep([4, 5], False)
lds_spin2("L_v3", 12, O_VL, 7)
vstep([6], False)
LB("L_vlast")
hbar()
ts()
vstep([7], False)
exec_mask(0x000f000f, 0x000f000f)
A("s_nop 5")
stamp(84, [80, 81, 82, 83], 125)
memgrp(lambda: publish(84, 121, "s48"))
exec_all()
hbar()
ts()
A("s_cmp_ge_u32 s35, 4\ns_cbranch_scc1 L_kv_h2")
GR = 80
def h1gather(sr=FA):
    for i in range(4):
        A(f"buffer_load_dwordx4 v[{GR+4*i}:{GR+4*i+3}], v122, {sr}, s{76+i} offen sc1")
ts()
memgrp(h1gather)
A("s_waitcnt vmcnt(0)")
ts()
poll_check("L_h1chk", [GR + 4 * i for i in range(4)], 116, h1gather, tagcheck_16, 8)
ts()
for i in range(4): A(f"v_perm_b32 v{100+i}, v{GR+4*i+3}, v{GR+4*i+2}, s93")
A("v_max3_f32 v116, v100, v101, v102\nv_max_f32 v116, v116, v103")
xrow_multi("v_max_f32", [116], [117])
A("v_mul_f32 v117, s70, v116")
for i in range(4): A(f"v_fma_f32 v{100+i}, v{100+i}, s69, v117")
for i in range(4): A(f"v_exp_f32 v{100+i}, v{100+i}")
for c in range(16): A(f"v_and_b32 v{GR+c}, 0xffffff00, v{GR+c}")
for c in range(4): A(f"v_mul_f32 v{104+c}, v100, v{GR+c}")
for i in range(1, 4):
    for c in range(4): A(f"v_fmac_f32 v{104+c}, v{100+i}, v{GR+4*i+c}")
A("s_nop 0")
xrow_t4(104)
A("v_cvt_pk_bf16_f32 v104, v104, v104")
A("ds_write_b16 v124, v104")
A("s_waitcnt lgkmcnt(0)")
hbar()
ts()
if OPT["dry"]: A("s_cbranch_execz L_d2")
A("s_branch L_kv_done")
LB("L_kv_h2")
A("s_cmp_lg_u32 s35, 7\ns_cbranch_scc1 L_kv_bo")
A("s_cmp_ge_u32 s2, 128\ns_cbranch_scc1 L_kv_bo")
LB("L_d2")
if TS: ts_n[0] = 12
srd(48, 24, 2048)
A("s_lshl_b32 s60, s2, 11")
A(f"s_add_u32 s60, s60, {hex(H2)}")
A("v_lshlrev_b32 v5, 4, v0")
def h2gather(sr="s[80:83]"):
    A(f"buffer_load_dwordx4 v[16:19], v5, {sr}, s60 offen sc1")
    A(f"buffer_load_dwordx4 v[20:23], v5, {sr}, s60 offen offset:1024 sc1")
A("v_mov_b32 v8, 0")
A("s_lshl_b32 s62, s2, 3")
hbar()
if TS == 5: A("s_memrealtime s[72:73]\ns_waitcnt lgkmcnt(0)\nv_writelane_b32 v127, s72, 11")
memgrp(h2gather)
A("s_waitcnt vmcnt(0)")
poll_check("L_h2chk", [16, 20], 24, h2gather, dual=False)
ts()
A("v_add_f32 v16, v16, v20\nv_add_f32 v18, v18, v22")
rowsum([16, 18], shifts=(8, 4))
xrow_multi("v_add_f32", [16, 18], [17, 19])
A("s_nop 0")
for i, qp in enumerate(("[1,1,1,1]", "[2,2,2,2]", "[3,3,3,3]")):
    A(f"v_mov_b32_dpp v{24+i}, v16 quad_perm:{qp} row_mask:0xf bank_mask:0xf")
    A(f"v_mov_b32_dpp v{28+i}, v18 quad_perm:{qp} row_mask:0xf bank_mask:0xf")
A("v_cvt_pk_bf16_f32 v32, v16, v24\nv_cvt_pk_bf16_f32 v33, v25, v26")
A("v_cvt_pk_bf16_f32 v34, v18, v28\nv_cvt_pk_bf16_f32 v35, v29, v30")
exec_mask(1, 0)
if OPT["dry"]: A("s_cbranch_execz L_spre")
A("buffer_store_dwordx2 v[32:33], v8, s[48:51], s62 offen")
A("buffer_store_dwordx2 v[34:35], v8, s[48:51], s62 offen offset:1024")
if OPT.get("diag"):
    A(f"v_readlane_b32 s73, v127, {OPT['diag']}\nv_readlane_b32 s99, v127, {OPT.get('diag0', 0)}")
    A("s_memrealtime s[100:101]\ns_waitcnt lgkmcnt(0)")
    A(f"s_sub_u32 s73, s73, s99\ns_mul_i32 s73, s73, {OPT.get('diagm', 8)}\ns_add_u32 s73, s73, s100")
    LB("L_diag")
    A("s_memrealtime s[98:99]\ns_waitcnt lgkmcnt(0)\ns_sub_u32 s99, s98, s73\ns_cmp_lt_i32 s99, 0\ns_cbranch_scc1 L_diag")
A("s_cmp_lg_u32 s2, 0\ns_cbranch_scc1 L_kv_done")
A("v_mov_b32 v36, s58\nv_mov_b32 v37, s59")
A(f"s_mov_b32 s62, {hex(EPO)}")
A("buffer_store_dwordx2 v[36:37], v8, s[44:47], s62 offen sc1")
A("s_branch L_kv_done")
LB("L_kv_bo")
A("s_barrier")
LB("L_kv_done")
if TS:
    A("s_memrealtime s[72:73]\ns_waitcnt lgkmcnt(0)\nv_writelane_b32 v127, s72, 15")
ts_dump()
A("s_endpgm")

if OPT["dry"]:
    LB("L_helper")
    C("================= dry-run helpers: warm the instruction cache =================")
    for v in list(range(4, 16)) + list(range(104, 112)) + [120, 121, 122, 123, 124]: A(f"v_mov_b32 v{v}, 0")
    A("s_waitcnt lgkmcnt(0)")
    ws_srds()
    A("v_mov_b32 v2, 0\nv_mov_b32 v3, 0")
    A("s_mov_b32 s32, 0\ns_mov_b32 s52, 0\ns_mov_b32 s53, 0\ns_mov_b32 s54, 0\ns_mov_b32 s67, 0")
    A("s_mov_b64 s[90:91], 0\ns_mov_b64 exec, 0")
    A("s_mov_b32 s35, 7\ns_mov_b32 s48, 0\ns_mov_b32 s49, 1\ns_mov_b32 s60, 0\ns_mov_b32 s61, 0\ns_mov_b32 s62, 0\ns_mov_b32 s63, 0")
    A("s_cmp_eq_u32 s30, 12\ns_cbranch_scc1 L_d0")
    A("s_cmp_eq_u32 s30, 14\ns_cbranch_scc1 L_d5")
    A("s_cmp_eq_u32 s30, 15\ns_cbranch_scc1 L_d3")
    A("s_mov_b32 s35, 0\ns_mov_b32 s71, 8")
    A("s_branch L_d1")
    LB("L_spre")
    if OPT["spre"]:
        A(f"s_lshl_b32 s60, s31, 5\ns_add_u32 s60, s60, s32\ns_mul_i32 s60, s60, {OBS}\ns_add_u32 s60, s60, {hex(H1)}")
        A("s_add_u32 s62, s28, s60\ns_addc_u32 s63, s29, 0")
        if OPT["spre"] & 1:
            for i in range(17): A(f"s_load_dword s{4+(i%8)}, s[62:63], {128*i}")
        A(f"s_lshl_b32 s60, s2, 11\ns_add_u32 s60, s60, {hex(H2+MIR)}")
        A("s_add_u32 s62, s28, s60\ns_addc_u32 s63, s29, 0")
        if OPT["spre"] & 2:
            A("s_cmp_ge_u32 s2, 128\ns_cbranch_scc1 L_end")
            for i in range(16): A(f"s_load_dword s{4+(i%8)}, s[62:63], {128*i}")
    A("s_endpgm")

LB("L_special")
C("================= special waves =================")
ts_reset()
A("v_and_b32 v6, 1, v2\nv_lshlrev_b32 v6, 10, v6\nv_lshl_add_u32 v6, v3, 3, v6")
A("s_cmp_eq_u32 s30, 0\ns_cbranch_scc1 L_w0")
A("s_cmp_eq_u32 s30, 1\ns_cbranch_scc1 L_w1")
A("s_cmp_eq_u32 s30, 3\ns_cbranch_scc1 L_w3")
A("s_waitcnt lgkmcnt(0)")
ts0()
ws_srds()
epoch_load()
if OPT.get("tlbw", 0):
    A("v_mov_b32 v4, 0")
    A("s_mov_b32 exec_lo, 1\ns_mov_b32 exec_hi, 0")
    srd(36, 24, 2048)
    A("buffer_load_dword v16, v4, s[36:39], 0 offen")
    srd(40, 8, 0x8000000)
    A(f"buffer_load_dword v17, v4, s[40:43], s50 offen {KVF}")
    srd(76, 12, 0x400000)
    A("s_lshl_b32 s60, s54, 17")
    A(f"buffer_load_dword v18, v4, s[76:79], s60 offen {WF}")
    srd(84, 20, 1792 * 1024)
    A("s_lshl_b32 s60, s55, 16")
    A(f"buffer_load_dword v19, v4, s[84:87], s60 offen {WF}")
    A("s_mov_b64 exec, -1")
if OPT["dry"]:
    for v in range(4, 16): A(f"v_mov_b32 v{v}, 0")
    A("s_mov_b64 exec, 0")
    A("s_branch L_d4")
LB("L_w2ret")
A("s_mov_b64 exec, -1")
fconsts(); consts()
A("s_waitcnt lgkmcnt(0)")
tags()
A("s_branch L_vload")

LB("L_w3")
A("v_lshlrev_b32 v5, 4, v0")
A("s_waitcnt lgkmcnt(0)")
ts0()
srd(36, 4, 2048)
srd(40, 22, 1024)
A("buffer_load_dwordx4 v[16:19], v5, s[36:39], 0 offen")
A("buffer_load_dwordx4 v[20:23], v5, s[36:39], 0 offen offset:1024")
A("buffer_load_dwordx4 v[24:27], v5, s[40:43], 0 offen")
ws_srds()
epoch_load()
fconsts(); consts()
A("s_waitcnt vmcnt(0)")
for src, dst in ((24, 32), (16, 40), (20, 48)):
    for w in range(4):
        A(f"v_lshlrev_b32 v{dst+2*w}, 16, v{src+w}\nv_and_b32 v{dst+2*w+1}, 0xffff0000, v{src+w}")
for b in range(2):
    for e in range(8):
        A(f"v_mul_f32 v{40+8*b+e}, v{40+8*b+e}, v{32+e}")
bf16_round_pairs(list(range(40, 56)), list(range(16, 24)))
for b in range(2):
    o = 40 + 8 * b
    A(f"v_add_f32 v{o}, v{o}, v{o+1}\nv_add_f32 v{o+2}, v{o+2}, v{o+3}\nv_add_f32 v{o+4}, v{o+4}, v{o+5}\nv_add_f32 v{o+6}, v{o+6}, v{o+7}")
    A(f"v_add_f32 v{o}, v{o}, v{o+2}\nv_add_f32 v{o+4}, v{o+4}, v{o+6}\nv_add_f32 v{o}, v{o}, v{o+4}")
rowsum([40, 48])
xrow_multi("v_add_f32", [40, 48], [41, 49])
A("v_mov_b32 v41, v48")
bf16_round_pairs([40, 41], [16])
A("v_mul_f32 v40, s70, v40\nv_mul_f32 v41, s70, v41")
A("v_exp_f32 v40, v40\nv_exp_f32 v41, v41")
A("s_nop 0")
A("v_add_f32 v40, 1.0, v40\nv_add_f32 v41, 1.0, v41")
A("v_rcp_f32 v40, v40\nv_rcp_f32 v41, v41")
A("s_nop 0")
bf16_round_pairs([40, 41], [16])
A("v_sub_f32 v42, 1.0, v40\nv_sub_f32 v43, 1.0, v41")
bf16_round_pairs([42, 43], [16])
A(f"v_mov_b32 v4, {GT}")
A("ds_write_b128 v4, v[40:43]")
A("s_waitcnt lgkmcnt(0)")
tags()

LB("L_vload")
srd(40, 8, 0x8000000)
A("s_sub_u32 s35, s30, 2")
A("s_lshl_b32 s60, s35, 2\nv_add_u32 v4, s60, v3\nv_lshrrev_b32 v5, 1, v2\nv_xor_b32 v4, v4, v5")
A("v_and_b32 v5, 1, v2\nv_lshl_add_u32 v4, v4, 1, v5\nv_lshlrev_b32 v4, 4, v4\nv_lshl_add_u32 v4, v3, 8, v4")
A("s_lshl_b32 s61, s35, 10\ns_add_u32 s62, s50, s61")
A("s_and_b32 s60, s51, 15\ns_lshl_b32 s60, s60, 12")
A(f"v_mov_b32 v12, {CNT}\nv_mov_b32 v13, 1")
A(f"s_lshl_b32 s63, s35, 2\ns_add_u32 s63, s63, {CNT+O_VL}\nv_mov_b32 v11, s63")
A("v_mov_b32 v8, 4\nv_mov_b32 v9, 6\nv_mov_b32 v10, 8\nv_mov_b32 v7, 7")
def vblk(i):
    A(f"s_add_u32 s63, s62, s60\ns_add_u32 m0, s61, {VI + 4096*i}")
    A("s_add_u32 s60, s60, 4096\ns_and_b32 s60, s60, 0xffff")
    A(f"buffer_load_dwordx4 v4, s[40:43], s63 offen {KVF} lds")
    A(f"buffer_load_dwordx4 v4, s[40:43], s63 offen offset:2048 {KVF} lds")
lds_spin("L_b2", 12, O_B2, 8)
VB = 0
IB = OPT.get("ib", 16)
for i in range(2 * VB, 17):
    if VB2 and i == 2 * VB + VB2: A("s_barrier\ns_barrier")
    if i == max(IB, 2 * VB):
        A("s_mov_b32 exec_lo, 1\ns_mov_b32 exec_hi, 0")
        A(f"ds_add_u32 v12, v13 offset:{O_I}")
        A("s_mov_b64 exec, -1")
    if OPT.get("w1e") and i == OPT.get("hb", 6):
        A("s_mov_b32 exec_lo, 1\ns_mov_b32 exec_hi, 0")
        A(f"ds_add_u32 v12, v13 offset:{O_V}")
        A("s_mov_b64 exec, -1")
    if OPT.get("xb") and i == OPT["xb"]: lds_spin("L_xbspin", 12, O_Q, 8)
    if i == 14: lds_spin("L_k7spin", 12, O_K7, 1)
    if i < 16: vblk(i)
A("s_mov_b32 exec_lo, 1\ns_mov_b32 exec_hi, 0")
ts()
A("s_waitcnt vmcnt(16)")
A("ds_write_b32 v11, v8")
ts()
A("s_waitcnt vmcnt(8)")
A("ds_write_b32 v11, v9")
A("s_waitcnt vmcnt(4)")
A("ds_write_b32 v11, v7")
A("s_mov_b64 exec, -1")
A("s_waitcnt vmcnt(0)")
A("s_barrier")
ts()
A("s_branch L_final")

LB("L_w0")
ts_reset()
if OPT.get("w0p"): A("s_setprio 3")
A("s_lshl_b32 s61, s52, 8")
A("s_waitcnt lgkmcnt(0)")
ts0()
XA, BB, AC = 16, 32, 96
A(f"s_add_u32 s61, s61, {XS}\nv_add_u32 v6, s61, v6")
ws_srds()
epoch_load()
fconsts(); consts()
for q4 in range(4): tr_addr(8 + q4, q4, 12, 13, WQI)
A(f"v_lshlrev_b32 v12, 2, v0\nv_add_u32 v12, {QT}, v12\nv_and_b32 v13, 31, v0\nv_lshlrev_b32 v13, 4, v13\nv_add_u32 v13, {QT}, v13")
A("v_and_b32 v14, 1, v3\nv_lshlrev_b32 v14, 13, v14\nv_lshl_add_u32 v14, v2, 4, v14")
A("s_lshl_b32 s62, s31, 14\ns_lshl_b32 s63, s52, 11\ns_add_u32 s62, s62, s63\ns_lshl_b32 s63, s53, 8\ns_add_u32 s62, s62, s63")
A(f"s_add_u32 s62, s62, {hex(QX)}")
A("s_waitcnt lgkmcnt(0)")
tags()
A("v_mov_b32 v5, s58")
A(f"v_mov_b32 v4, {CNT}")
lds_spin("L_wspin", 4, O_W, 4)
ts()
LB("L_d4")
for t in range(4): A(f"ds_read2_b64 v[{XA+4*t}:{XA+4*t+3}], v6 offset0:{8*t} offset1:{8*t+4}")
seq = [(q4, t) for q4 in range(4) for t in range(4)]
D = 5
def issue(k):
    q4, t = seq[k]; tr_read(BB + 4 * k, 8 + q4, 0, t)
for k in range(D): issue(k)
for k in range(16):
    q4, t = seq[k]
    A(f"s_waitcnt lgkmcnt({2*(min(16,k+D)-k)-2})")
    mfma(AC + 4 * q4, XA + 4 * t, BB + 4 * k, None if t == 0 else AC + 4 * q4)
    if k + D < 16: issue(k + D)
A("s_nop 7\ns_nop 1")
for r in range(2): select4([AC + 4 * q + r for q in range(4)])
A("s_nop 0")
for r in range(2): A(f"v_permlane32_swap_b32 v{AC+r}, v{AC+8+r}")
A("s_nop 0")
A(f"ds_write_b32 v12, v{AC}\nds_write_b32 v12, v{AC+1} offset:256")
A("ds_read_b128 v[116:119], v13")
A("s_waitcnt lgkmcnt(0)")
stamp(112, [116, 117, 118, 119], 5)
A("s_mov_b32 exec_hi, 0")
if OPT["dry"]: A("s_cbranch_execz L_w2ret")
publish(112, 14, "s62")
A(f"v_mov_b32 v12, {CNT}\nv_mov_b32 v8, 1")
A(f"ds_write_b32 v12, v8 offset:{O_B1}")
A("s_mov_b64 exec, -1")
ts()
srd(36, 12, 0x400000)
srd(40, 20, 1792 * 1024)
dma_voff(4, 10, 8, 9)
if OPT.get("cshift"):
    A(f"s_add_u32 s63, s53, {OPT['cshift']}\ns_and_b32 s63, s63, 7\ns_lshl_b32 s63, s63, 7\ns_lshl_b32 s60, s54, 17\ns_add_u32 s60, s60, s63")
else:
  A("s_lshl_b32 s60, s54, 17\ns_lshl_b32 s63, s53, 7\ns_add_u32 s60, s60, s63")
A("s_lshl_b32 s61, s55, 16\ns_add_u32 s61, s61, s63")
A(f"v_mov_b32 v12, {CNT}\nv_mov_b32 v8, 1\nv_mov_b32 v9, 2\nv_mov_b32 v10, 3")
lds_spin("L_ispin", 12, O_I, 3)
ts()
A("s_cmp_eq_u32 s49, 0\ns_cbranch_scc1 L_w0_nowd")
for i in range(8):
    A(f"s_mov_b32 m0, {WDI+1024*i}")
    if i: A(f"s_add_u32 s61, s61, {8*1024}")
    else: A("s_nop 0")
    A(f"buffer_load_dwordx4 v4, s[40:43], s61 offen {WF} lds")
LB("L_w0_nowd")
for i in range(16):
    A(f"s_mov_b32 m0, {WOI+1024*i}")
    if i: A(f"s_add_u32 s60, s60, {8*1024}")
    else: A("s_nop 0")
    A(f"buffer_load_dwordx4 v4, s[36:39], s60 offen {WF} lds")
ts()
A("s_barrier\ns_barrier")
A("s_waitcnt vmcnt(16)")
A(f"ds_write_b32 v12, v8 offset:{O_STAGE}")
ts()
A("s_waitcnt vmcnt(8)")
A(f"ds_write_b32 v12, v9 offset:{O_STAGE}")
ts()
A("s_waitcnt vmcnt(0)")
A(f"ds_write_b32 v12, v10 offset:{O_STAGE}")
ts()
A("s_mov_b32 s75, 1")
A("s_branch L_final0")

LB("L_w1_idle")
A("s_waitcnt lgkmcnt(0)")
ts0()
ws_srds()
epoch_load()
fconsts(); consts()
A("s_waitcnt lgkmcnt(0)")
tags()
A(f"v_mov_b32 v11, {CNT}\nv_mov_b32 v14, 1")
A("s_mov_b32 exec_lo, 1\ns_mov_b32 exec_hi, 0")
A(f"ds_add_u32 v11, v14 offset:{O_I}")
A("s_mov_b64 exec, -1")
A("s_barrier")
A("s_branch L_final")
LB("L_w1")
ts_reset()
A("s_cmp_eq_u32 s49, 0\ns_cbranch_scc1 L_w1_idle")
A("s_lshl_b32 s61, s53, 7")
A("s_waitcnt lgkmcnt(0)")
ts0()
A(f"s_add_u32 s61, s61, {XS}\nv_add_u32 v6, s61, v6")
ws_srds()
epoch_load()
fconsts(); consts()
for q4 in range(4): tr_addr(8 + q4, q4, 12, 13, GI)
A("v_lshlrev_b32 v5, 4, v0")
A("s_lshl_b32 s62, s55, 13")
A(f"s_add_u32 s62, s62, {hex(HX)}")
A("s_lshl_b32 s63, s53, 10\ns_add_u32 s63, s63, s62")
A("s_add_u32 s61, s62, 4096")
A(f"v_lshlrev_b32 v12, 1, v0\nv_add_u32 v12, {HS}, v12")
A(f"v_mov_b32 v13, {CNT+O_H}\nv_mov_b32 v14, 1")
A("s_waitcnt lgkmcnt(0)")
tags()
A("v_mov_b32 v4, s58")
A(f"v_mov_b32 v7, {CNT}")
lds_spin("L_gspin", 7, O_G, 4)
ts()
LB("L_d5")
for t in range(2): A(f"ds_read2_b64 v[{XA+4*t}:{XA+4*t+3}], v6 offset0:{8*t} offset1:{8*t+4}")
seq = [(mat, q4, t) for mat in range(2) for q4 in range(4) for t in range(2)]
BB1 = 24
AC1 = 88
def issue(k):
    mat, q4, t = seq[k]; tr_read(BB1 + 4 * k, 8 + q4, (UI - GI) if mat else 0, t)
for k in range(D): issue(k)
for k in range(16):
    mat, q4, t = seq[k]
    A(f"s_waitcnt lgkmcnt({2*(min(16,k+D)-k)-2})")
    acc = AC1 + 16 * mat + 4 * q4
    mfma(acc, XA + 4 * t, BB1 + 4 * k, None if t == 0 else acc)
    if k + D < 16: issue(k + D)
A("s_nop 7\ns_nop 1")
for mat in range(2):
    for r in range(2): select4([AC1 + 16 * mat + 4 * q + r for q in range(4)])
A("s_nop 0")
for mat in range(2):
    for r in range(2): A(f"v_permlane32_swap_b32 v{AC1+16*mat+r}, v{AC1+16*mat+8+r}")
A("s_nop 0")
stamp(120, [AC1, AC1 + 1, AC1 + 16, AC1 + 17], 4)
dry_end()
publish(120, 5, "s63")
ts()
HG = 16
def hgather(sr=FA):
    for rb in range(8):
        r = HG + 4 * rb
        A(f"buffer_load_dwordx4 v[{r}:{r+3}], v5, {sr}, s{62 - rb//4} offen offset:{(rb%4)*1024} sc1")
A(f"v_mov_b32 v11, {CNT}")
A("s_mov_b32 exec_lo, 1\ns_mov_b32 exec_hi, 0")
A(f"ds_add_u32 v11, v14 offset:{O_I}")
A("s_mov_b64 exec, -1")
lds_spin("L_hw", 11, O_V, 2)
hgather()
ts()
LB("L_d3")
A("s_waitcnt vmcnt(0)")
poll_check("L_hchk", [HG + 4 * i for i in range(8)], 96, hgather, tagcheck_dense, 4)
ts()
for c in range(32): A(f"v_and_b32 v{HG+c}, 0xffffff00, v{HG+c}")
for step in (16, 8, 4):
    for base in range(HG, HG + step, 4):
        for o in range(4):
            A(f"v_add_f32 v{base+o}, v{base+o}, v{base+step+o}")
bf16_round_pairs([16, 17, 18, 19], [24, 25])
A("v_mul_f32 v24, s70, v16\nv_mul_f32 v25, s70, v17")
A("v_exp_f32 v24, v24\nv_exp_f32 v25, v25")
A("s_nop 0")
A("v_add_f32 v24, 1.0, v24\nv_add_f32 v25, 1.0, v25")
A("v_rcp_f32 v24, v24\nv_rcp_f32 v25, v25")
A("s_nop 0")
A("v_mul_f32 v16, v16, v24\nv_mul_f32 v17, v17, v25")
bf16_round_pairs([16, 17], [24])
A("v_mul_f32 v16, v16, v18\nv_mul_f32 v17, v17, v19")
A("v_cvt_pk_bf16_f32 v24, v16, v17")
A("ds_write_b16 v12, v24")
A("ds_write_b16_d16_hi v12, v24 offset:128")
A("ds_write_b32 v13, v14")
ts()
hbar()

LB("L_final")
A("s_mov_b32 s75, 0")
LB("L_final0")
if TS: ts_n[0] = 8
tr_addr(8, "s30", 12, 13, WOI)
A(f"v_mov_b32 v12, {CNT}")
A(f"v_and_b32 v9, 1, v2\nv_lshlrev_b32 v10, 7, v9\nv_lshl_add_u32 v10, v3, 3, v10\nv_add_u32 v10, {HS}, v10")
A(f"v_lshlrev_b32 v9, 8, v9\nv_lshl_add_u32 v9, v3, 3, v9\nv_add_u32 v9, {OV}, v9")
A("v_lshrrev_b32 v11, 2, v2\nv_lshlrev_b32 v11, 11, v11\nv_and_b32 v13, 3, v2\nv_lshl_add_u32 v11, v13, 4, v11")
A("s_lshl_b32 s60, s53, 15\ns_lshl_b32 s61, s30, 13\ns_add_u32 s60, s60, s61\ns_lshl_b32 s61, s54, 6\ns_add_u32 s60, s60, s61")
A(f"s_add_u32 s60, s60, {hex(H2)}")
A(f"v_and_b32 v7, 31, v0\nv_mul_u32_u24 v7, {OBS}, v7")
A(f"s_mul_i32 s61, s31, {32*OBS}\ns_lshl_b32 s62, s52, 4\ns_add_u32 s61, s61, s62")
A(f"s_add_u32 s61, s61, {hex(H1+2048)}")
A(f"v_mov_b32 v13, {GT}")
A("ds_read_b128 v[60:63], v13")
A("v_mov_b32 v65, s58\nv_mov_b32 v67, s59")
A("v_mov_b32 v56, 0\nv_mov_b32 v57, 0")
A("s_cmp_eq_u32 s75, 1\ns_cbranch_scc1 L_nobp")
hbar()
LB("L_nobp")
def lgather(sr=FA):
    A(f"buffer_load_dwordx4 v[68:71], v7, {sr}, s61 offen sc1")
memgrp(lgather)
A("s_cmp_eq_u32 s49, 0\ns_cbranch_scc1 L_f_nofb")
lds_spin("L_fs1", 12, O_STAGE, 1)
for t in range(2): tr_read(16 + 4 * t, 8, WDI - WOI, t)
lds_spin("L_fs2", 12, O_H, 1)
for t in range(2):
    A(f"ds_read2_b64 v[{24+4*t}:{27+4*t}], v10 offset0:{8*t} offset1:{8*t+4}")
A("s_waitcnt lgkmcnt(0)")
mfma(56, 24, 16, None)
mfma(56, 28, 20, 56)
A("s_nop 7\ns_nop 1")
A("v_mul_f32 v56, v56, v62\nv_mul_f32 v57, v57, v63")
LB("L_f_nofb")
ts()
lds_spin("L_fs3", 12, O_STAGE, 3)
for t in range(4): tr_read(16 + 4 * t, 8, 0, t)
ts()
A("s_waitcnt vmcnt(0)")
poll_check("L_lchk", [68], 72, lgather)
A("v_mov_b32 v72, v70")
A("v_mov_b32 v73, v70")
for sh in (8, 4, 2, 1):
    A("s_nop 1")
    A(f"v_max_f32_dpp v73, v73, v73 row_ror:{sh} row_mask:0xf bank_mask:0xf")
A("v_sub_f32 v72, v72, v73\nv_mul_f32 v72, s69, v72\nv_exp_f32 v72, v72\ns_nop 0\nv_mul_f32 v72, v72, v68")
rowsum([72])
A("v_rcp_f32 v72, v72")
A("s_nop 1")
A("v_readlane_b32 s62, v72, 0\nv_readlane_b32 s63, v72, 16")
A("s_nop 1")
A("v_mul_f32 v60, s62, v60\nv_mul_f32 v61, s63, v61")
ts()
hbar()
for t in range(4):
    A(f"ds_read2_b64 v[{32+4*t}:{35+4*t}], v9 offset0:{8*t} offset1:{8*t+4}")
for t in range(4):
    A(f"s_waitcnt lgkmcnt({3-t})")
    mfma(48, 32 + 4 * t, 16 + 4 * t, None if t == 0 else 48)
exec_mask(0xffff, 0)
A("s_nop 6")
A("v_fma_f32 v64, v48, v60, v56\nv_fma_f32 v66, v49, v61, v57")
dry_end()
publish(64, 11, "s60", dual=False)
ts()
ts_dump()
LB("L_end")
A("s_endpgm")

L.append(f""".section .rodata,"a"
.p2align 6
.amdhsa_kernel {NAME}
  .amdhsa_next_free_vgpr 128
  .amdhsa_next_free_sgpr 102
  .amdhsa_accum_offset 128
  .amdhsa_group_segment_fixed_size 0
  .amdhsa_kernarg_size 104
  .amdhsa_user_sgpr_count 2
  .amdhsa_user_sgpr_kernarg_segment_ptr 1
  .amdhsa_system_sgpr_workgroup_id_x 1
.end_amdhsa_kernel""")
open(out, "w").write("\n".join(L) + "\n")
```

```python
import sys

OPT = dict(ts=0, kv_fl="nt", w_fl="nt", ka=4, w1e=1, w0p=1, vb=0, spin=400000, pst=0, dry=0, xb=9, slp=0, pre=0, prew=0, dual=1, bper=8, prio=3, lsl=2, spre=0)
out = sys.argv[1]
for a in sys.argv[2:]:
    k, v = a.split("=")
    OPT[k] = int(v) if v.lstrip("-").isdigit() else v.replace("+", " ").replace("none", "")
TS = OPT["ts"]

NAME = "gated_mix__sliding_block_cached__swiglu_ffn__decode_kernel"
HEADER = open("gated_mix__sliding_block_cached__swiglu_ffn__decode.s.ref").read().split("; Override launch")[0]

L = []
def A(s):
    for l in s.split("\n"):
        L.append("    " + l.strip())
def LB(s):
    L.append(s + ":")
def C(s):
    L.append("    ; " + s)

VI = 0
WQI = 65536
GI = 81920
UI = 90112
WOI = 65536
WDI = 81920
KI = 98304
SM = 155648
PS = SM
QS = SM + 2048
OV = SM + 3072
HS = SM + 3584
QT = SM + 3840
MX = SM + 4352
LS = SM + 4480
GT = SM + 4608
CNT = SM + 4624
O_Q, O_M, O_P, O_STAGE, O_H, O_K7, O_V, O_I, O_VL, O_B1, O_B2, O_B3, O_W, O_G = 0, 4, 8, 12, 16, 20, 24, 28, 32, 40, 44, 48, 52, 56
XS = SM + 4864
LDS_BYTES = SM + 4864 + 2048
WB = OPT.get('wb', 496) << 20
OBS = 2176
if OPT.get("compact", 1):
    QX = WB
    HX = WB + 0x20000
    H1 = WB + 0x58000
    MIR_ = 0xE0000
    H2 = WB + 0xE0000
    EPO = H1 + 2112
else:
    QX = WB + 0x10000
    HX = WB + 0x80000
    H1 = WB + 0x100000
    H2 = WB + 0x400000
    MIR_ = 0x800000
    EPO = 0
TSB = 0x800000

SCALE = 0x3DB504F3
LOG2E = 0x3FB8AA3B
NLOG2E = 0xBFB8AA3B
WF = OPT["w_fl"]

def srd(d, p, nbytes):
    A(f"s_mov_b32 s{d}, s{p}\ns_and_b32 s{d+1}, s{p+1}, 0xffff\ns_mov_b32 s{d+2}, {hex(nbytes)}\ns_mov_b32 s{d+3}, 0x20000")

ts_n = [0]
skip_n = [0]
def ts_reset():
    ts_n[0] = 1 if TS else 0
def ts():
    if not TS: return
    k = ts_n[0]; ts_n[0] += 1
    assert k < 16
    if TS == 3: return
    if TS == 6 and k != 12: return
    A(f"s_memrealtime s[72:73]\ns_waitcnt lgkmcnt(0)\nv_writelane_b32 v127, s72, {k}")
def ts_dump():
    if not TS or TS in (5, 6): return
    A("s_mov_b64 exec, -1")
    if TS == 2:
        skip_n[0] += 1
        lb = f"L_sk{skip_n[0]}"
        A(f"s_cmp_lg_u32 s2, {OPT.get('dbgwg', 0)}\ns_cbranch_scc1 {lb}")
        A(f"s_cmp_lg_u32 s30, {OPT.get('dbgwave', 11)}\ns_cbranch_scc1 {lb}")
        srd(76, 26, 256)
        A("v_readlane_b32 s60, v127, 0\ns_nop 1\nv_subrev_u32 v127, s60, v127")
        A("v_lshlrev_b32 v3, 2, v0")
        A("s_mov_b32 exec_lo, 0xffff\ns_mov_b32 exec_hi, 0")
        A("buffer_store_dword v127, v3, s[76:79], 0 offen")
        LB(lb)
        return
    A("s_mul_i32 s60, s2, 12\ns_add_u32 s60, s60, s30\ns_lshl_b32 s60, s60, 6")
    A(f"s_add_u32 s60, s60, {hex(TSB)}")
    A("v_lshlrev_b32 v3, 2, v0")
    A("s_mov_b32 exec_lo, 0xffff\ns_mov_b32 exec_hi, 0")
    A("buffer_store_dword v127, v3, s[44:47], s60 offen")

def tags():
    A("s_add_u32 s58, s56, 0x01010101\ns_add_u32 s59, s57, 0x9e3779b9")
    A("s_and_b32 s88, s58, 0xffff\ns_and_b32 s89, s58, 0xffff0000")

def tagcheck(bases, acc, t0, t1):
    first = True
    for b in bases:
        A(f"v_xor_b32 v{t0}, s58, v{b+1}")
        A(f"v_xor_b32 v{t1}, s59, v{b+3}")
        if first:
            A(f"v_or_b32 v{acc}, v{t0}, v{t1}"); first = False
        else:
            A(f"v_or3_b32 v{acc}, v{acc}, v{t0}, v{t1}")

def tagcheck_dense(bases, acc, t0, t1):
    first = True
    for b in bases:
        A(f"v_perm_b32 v{t0}, v{b+1}, v{b}, s92")
        A(f"v_perm_b32 v{t1}, v{b+3}, v{b+2}, s93")
        A(f"v_xor_b32 v{t0}, s88, v{t0}")
        A(f"v_xor_b32 v{t1}, s89, v{t1}")
        if first:
            A(f"v_or_b32 v{acc}, v{t0}, v{t1}"); first = False
        else:
            A(f"v_or3_b32 v{acc}, v{acc}, v{t0}, v{t1}")

def tagcheck_16(bases, acc, t0, t1):
    for i in range(0, len(bases), 2):
        b0 = bases[i]
        A(f"v_perm_b32 v{t0}, v{b0+1}, v{b0}, s92")
        A(f"v_xor_b32 v{t0}, s88, v{t0}")
        if i + 1 < len(bases):
            b1 = bases[i + 1]
            A(f"v_perm_b32 v{t1}, v{b1+1}, v{b1}, s92")
            A(f"v_xor_b32 v{t1}, s88, v{t1}")
            if i == 0: A(f"v_or_b32 v{acc}, v{t0}, v{t1}")
            else: A(f"v_or3_b32 v{acc}, v{acc}, v{t0}, v{t1}")
        else:
            if i == 0: A(f"v_mov_b32 v{acc}, v{t0}")
            else: A(f"v_or_b32 v{acc}, v{acc}, v{t0}")

def stamp(dst, srcs, tagv):
    for i in range(4):
        A(f"v_perm_b32 v{dst+i}, v{srcs[i]}, v{tagv}, s{94+i}")

def consts():
    A("s_mov_b32 s92, 0x0c0c0400\ns_mov_b32 s93, 0x04000c0c")
    A("s_mov_b32 s94, 0x07060500\ns_mov_b32 s95, 0x07060501\ns_mov_b32 s96, 0x07060502\ns_mov_b32 s97, 0x07060503")

def exec_mask(lo, hi):
    if not OPT["dry"]:
        A(f"s_mov_b32 exec_lo, {hex(lo)}")
        if hi is not None: A(f"s_mov_b32 exec_hi, {hex(hi)}")
        return
    A(f"s_and_b32 exec_lo, s90, {hex(lo)}" if lo != 0xffffffff else "s_mov_b32 exec_lo, s90")
    if hi is not None:
        A(f"s_and_b32 exec_hi, s91, {hex(hi)}" if hi else "s_mov_b32 exec_hi, 0")
def exec_all():
    A("s_mov_b64 exec, s[90:91]" if OPT["dry"] else "s_mov_b64 exec, -1")
def memgrp(fn):
    if not OPT["dry"]:
        fn(); return
    skip_n[0] += 1
    lb = f"L_sk{skip_n[0]}"
    A(f"s_cbranch_execz {lb}")
    fn()
    LB(lb)
def hbar():
    memgrp(lambda: A("s_barrier"))
def dry_end():
    if OPT["dry"]: A("s_cbranch_execz L_end")

MIR = MIR_
def ws_srds():
    srd(44, 28, 0x20000000)
    A(f"s_add_u32 s80, s28, {hex(MIR)}\ns_addc_u32 s81, s29, 0\ns_and_b32 s81, s81, 0xffff\ns_mov_b32 s82, {hex(0x20000000-MIR)}\ns_mov_b32 s83, 0x20000")
    A("s_mov_b32 s74, 0")

def publish(data, voff, soff, off=0, dual=True):
    o = f" offset:{off}" if off else ""
    if dual and OPT["dual"]:
        A(f"buffer_store_dwordx4 v[{data}:{data+3}], v{voff}, s[44:47], {soff} offen{o}")
    A(f"buffer_store_dwordx4 v[{data}:{data+3}], v{voff}, s[80:83], {soff} offen{o} sc1")

def poll_check(label, bases, tmp, reissue, chk=tagcheck, grp=1, dual=True):
    dual = dual and OPT["dual"]
    LB(label)
    chk(bases, tmp, tmp + 1, tmp + 2)
    if grp >= 4:
        A(f"s_nop 1\nv_or_b32_dpp v{tmp}, v{tmp}, v{tmp} quad_perm:[1,0,3,2] row_mask:0xf bank_mask:0xf")
        A(f"s_nop 1\nv_or_b32_dpp v{tmp}, v{tmp}, v{tmp} quad_perm:[2,3,0,1] row_mask:0xf bank_mask:0xf")
    if grp >= 8:
        A(f"s_nop 1\nv_or_b32_dpp v{tmp}, v{tmp}, v{tmp} row_half_mirror row_mask:0xf bank_mask:0xf")
    A(f"v_cmp_ne_u32 vcc, 0, v{tmp}")
    A("s_nop 1")
    A(f"s_cbranch_vccz {label}_ok")
    if OPT.get("nopoll"): A(f"s_branch {label}_ok")
    A(f"s_sub_u32 s67, s67, 1\ns_cbranch_scc1 {label}_ok")
    A("s_mov_b64 exec, vcc")
    if OPT["slp"]: A(f"s_sleep {OPT['slp']}")
    if dual:
        A(f"s_add_u32 s74, s74, 1\ns_and_b32 s75, s74, {OPT['bper']-1}\ns_cbranch_scc0 {label}_b")
        reissue("s[44:47]")
        A("s_waitcnt vmcnt(0)")
        A(f"s_branch {label}")
        LB(label + "_b")
    reissue("s[80:83]")
    A("s_waitcnt vmcnt(0)")
    A(f"s_branch {label}")
    LB(label + "_ok")
    exec_all()

def xrow_multi(op, vs, ts_, steps=("v_permlane16_swap_b32", "v_permlane32_swap_b32")):
    for sw in steps:
        for v, t in zip(vs, ts_):
            A(f"v_mov_b32 v{t}, v{v}")
        if len(vs) < 2: A("s_nop 1")
        elif len(vs) < 3: A("s_nop 0")
        for v, t in zip(vs, ts_):
            A(f"{sw} v{v}, v{t}")
        A("s_nop 0")
        for v, t in zip(vs, ts_):
            A(f"{op} v{v}, v{v}, v{t}")

def xrow_t4(v):
    A(f"v_permlane16_swap_b32 v{v}, v{v+1}")
    A(f"v_permlane16_swap_b32 v{v+2}, v{v+3}")
    A("s_nop 0")
    A(f"v_add_f32 v{v}, v{v}, v{v+1}")
    A(f"v_add_f32 v{v+2}, v{v+2}, v{v+3}")
    A("s_nop 1")
    A(f"v_permlane32_swap_b32 v{v}, v{v+2}")
    A("s_nop 0")
    A(f"v_add_f32 v{v}, v{v}, v{v+2}")

def transpose8(raw, dst, pairs=(0, 1, 2, 3)):
    for v in pairs:
        for w in range(4):
            a = raw + 4 * (2 * v) + w
            b = raw + 4 * (2 * v + 1) + w
            A(f"v_perm_b32 v{dst + 4*(2*w) + v}, v{b}, v{a}, s64")
            A(f"v_perm_b32 v{dst + 4*(2*w+1) + v}, v{b}, v{a}, s65")

def bf16_round_pairs(vs, tmp):
    n = len(vs) // 2
    for i in range(n):
        A(f"v_cvt_pk_bf16_f32 v{tmp[i]}, v{vs[2*i]}, v{vs[2*i+1]}")
    for i in range(n):
        A(f"v_lshlrev_b32 v{vs[2*i]}, 16, v{tmp[i]}")
        A(f"v_and_b32 v{vs[2*i+1]}, 0xffff0000, v{tmp[i]}")

def lds_spin(label, addr_v, off, val):
    if OPT["dry"]: A(f"s_cbranch_execz {label}_x")
    LB(label)
    A(f"ds_read_b32 v15, v{addr_v} offset:{off}")
    A("s_waitcnt lgkmcnt(0)")
    A("v_readfirstlane_b32 s66, v15")
    A("s_sub_u32 s67, s67, 1")
    A(f"s_cbranch_scc1 {label}_x")
    if OPT.get("lsl") and label in ("L_ispin",): A(f"s_sleep {OPT['lsl']}")
    if OPT.get("ksl") and label in ("L_qspin", "L_mspin", "L_pspin1"):
        A(f"s_cmp_ge_u32 s66, {val}\ns_cbranch_scc1 {label}_x\ns_sleep {OPT['ksl']}")
    A(f"s_cmp_lt_u32 s66, {val}")
    A(f"s_cbranch_scc1 {label}")
    LB(label + "_x")

def lds_spin_data(label, off, val, reads):
    lds_spin(label, 12, off, val)
    reads()
    A("s_waitcnt lgkmcnt(0)")

def rowsum(vs, shifts=(8, 4, 2, 1)):
    for sh in shifts:
        if len(vs) < 3: A("s_nop 1")
        for v in vs:
            A(f"v_add_f32_dpp v{v}, v{v}, v{v} row_ror:{sh} row_mask:0xf bank_mask:0xf")

def dma_voff(dst, stride_sreg_or_shift, t0, t1):
    A(f"v_bfe_u32 v{t0}, v0, 1, 2\nv_bfe_u32 v{t1}, v0, 4, 2\nv_xor_b32 v{t0}, v{t0}, v{t1}")
    A(f"v_and_b32 v{t1}, 1, v0\nv_lshl_add_u32 v{t0}, v{t0}, 1, v{t1}\nv_lshlrev_b32 v{t0}, 4, v{t0}")
    A(f"v_lshrrev_b32 v{t1}, 3, v0")
    if isinstance(stride_sreg_or_shift, int):
        A(f"v_lshl_add_u32 v{dst}, v{t1}, {stride_sreg_or_shift}, v{t0}")
    else:
        A(f"v_mul_lo_u32 v{t1}, v{t1}, {stride_sreg_or_shift}\nv_add_u32 v{dst}, v{t1}, v{t0}")

def tr_addr(dst, q4, t0, t1, base):
    A(f"v_bfe_u32 v{t0}, v0, 3, 2")
    A(f"v_xor_b32 v{t0}, {q4}, v{t0}")
    A(f"v_lshlrev_b32 v{t0}, 5, v{t0}")
    A(f"v_and_b32 v{t1}, 3, v0\nv_lshl_add_u32 v{t0}, v{t1}, 3, v{t0}")
    A(f"v_lshrrev_b32 v{t1}, 2, v0\nv_lshl_add_u32 v{dst}, v{t1}, 7, v{t0}")
    A(f"v_add_u32 v{dst}, {base}, v{dst}")

def tr_read(dst, addr_v, off, t):
    A(f"ds_read_b64_tr_b16 v[{dst}:{dst+1}], v{addr_v} offset:{off + 4096*t}")
    A(f"ds_read_b64_tr_b16 v[{dst+2}:{dst+3}], v{addr_v} offset:{off + 4096*t + 2048}")

def lds_spin2(label, addr_v, off, val):
    if OPT["dry"]: A(f"s_cbranch_execz {label}_x")
    LB(label)
    A(f"ds_read_b64 v[14:15], v{addr_v} offset:{off}")
    A("s_waitcnt lgkmcnt(0)")
    A("v_min_u32 v15, v14, v15")
    A("s_sub_u32 s67, s67, 1")
    A("v_readfirstlane_b32 s66, v15")
    A(f"s_cbranch_scc1 {label}_x")
    A(f"s_cmp_lt_u32 s66, {val}")
    A(f"s_cbranch_scc1 {label}")
    LB(label + "_x")

def bump(off):
    exec_mask(1, 0)
    A(f"ds_add_u32 v12, v13 offset:{off}")
    exec_all()

def mfma(d, a, b, c):
    cs = "0" if c is None else f"v[{c}:{c+3}]"
    A(f"v_mfma_f32_16x16x32_bf16 v[{d}:{d+3}], v[{a}:{a+3}], v[{b}:{b+3}], {cs}")

def select4(xs):
    A(f"v_permlane16_swap_b32 v{xs[0]}, v{xs[1]}")
    A(f"v_permlane16_swap_b32 v{xs[2]}, v{xs[3]}")

NWAVES = 16 if OPT["dry"] else 12
L.append(HEADER.rstrip())
L.append(f"; @launch grid=(256,1,1) block=({NWAVES*64},1,1) lds={LDS_BYTES}")
L.append('.amdgcn_target "amdgcn-amd-amdhsa--gfx950"')
L.append(".text")
L.append(f".globl {NAME}\n.p2align 8\n.type {NAME},@function\n{NAME}:")
A("s_cmp_ge_u32 s2, 256\ns_cbranch_scc1 L_end")
if OPT.get("xorwg"): A(f"s_xor_b32 s2, s2, {OPT['xorwg']}")
A("v_lshrrev_b32 v1, 6, v0")
A("v_and_b32 v0, 63, v0")
A("s_and_b32 s31, s2, 7")
A("v_readfirstlane_b32 s30, v1")
A("s_nop 0")
A("s_cmp_lg_u32 s30, 2\ns_cbranch_scc1 L_noinit")
A(f"v_lshlrev_b32 v4, 2, v0\nv_add_u32 v4, {CNT}, v4\nv_mov_b32 v8, 0")
A("s_mov_b32 exec_lo, 0xffff\ns_mov_b32 exec_hi, 0")
A("ds_write_b32 v4, v8")
A("s_mov_b64 exec, -1")
A("s_waitcnt lgkmcnt(0)")
LB("L_noinit")
A("s_load_dwordx16 s[4:19], s[0:1], 0")
A("s_load_dwordx8 s[20:27], s[0:1], 64")
A("s_load_dwordx2 s[28:29], s[0:1], 96")
if TS or OPT.get("diag"): A("s_memrealtime s[72:73]")
A("s_barrier")
if OPT["dry"]:
    A("s_cmp_lt_u32 s30, 12\ns_cbranch_scc1 L_main")
    if OPT.get("cpf", 0):
        A("s_getpc_b64 s[60:61]")
        LB("L_pc")
        A(f"s_sub_u32 s62, s30, 12\ns_mul_i32 s62, s62, {OPT.get('cpf', 0)*128}")
        A(f"s_add_u32 s63, s62, {OPT.get('cpf', 0)*128}")
        LB("L_pf")
        A("s_load_dword s36, s[60:61], s62")
        A("s_add_u32 s62, s62, 128\ns_cmp_lt_u32 s62, s63\ns_cbranch_scc1 L_pf")
    A("s_branch L_helper")
    LB("L_main")
A("s_lshr_b32 s32, s2, 3")
A("s_lshr_b32 s33, s32, 4")
A("s_and_b32 s34, s32, 15")
A(f"s_mov_b32 s67, {OPT['spin']}")
if OPT["dry"]: A("s_mov_b64 s[90:91], -1")
A("v_and_b32 v2, 15, v0")
A("v_lshrrev_b32 v3, 4, v0")
A("s_lshr_b32 s52, s32, 3")
A("s_and_b32 s53, s32, 7")
A("s_lshl_b32 s54, s31, 2\ns_add_u32 s54, s54, s52")
A("s_lshl_b32 s50, s33, 3\ns_add_u32 s50, s50, s31\ns_lshl_b32 s50, s50, 23")
A("s_lshl_b32 s51, s34, 16\ns_add_u32 s50, s50, s51\ns_add_u32 s50, s50, 0x700000")
A(f"s_mul_i32 s51, s32, {OPT.get('rotm', 5)}\ns_add_u32 s51, s51, s31")
A("s_and_b32 s49, s54, 7\ns_cmp_lg_u32 s49, 7\ns_cselect_b32 s49, 1, 0")
A("s_lshr_b32 s55, s54, 3\ns_sub_u32 s55, s54, s55")
A("s_cmp_lt_u32 s30, 4\ns_cbranch_scc1 L_special")

def epoch_load():
    if EPO:
        A(f"s_mov_b32 s56, {hex(EPO)}\ns_load_dwordx2 s[56:57], s[28:29], s56")
    else:
        A("s_load_dwordx2 s[56:57], s[28:29], 0")
def fconsts():
    A(f"s_mov_b32 s68, {hex(SCALE)}\ns_mov_b32 s69, {hex(LOG2E)}\ns_mov_b32 s70, {hex(NLOG2E)}")
def ts0():
    if TS: A("v_writelane_b32 v127, s72, 0")

C("================= K / attention waves =================")
ts_reset()
A("s_sub_u32 s35, s30, 4")
A("s_lshl_b32 s62, s35, 1\ns_add_u32 s62, s62, s51")
A("s_add_u32 s63, s62, 1\ns_and_b32 s62, s62, 15\ns_and_b32 s63, s63, 15")
A("s_lshl_b32 s62, s62, 12\ns_lshl_b32 s63, s63, 12")
A("s_add_u32 s61, s50, s63\ns_add_u32 s60, s50, s62")
for u in range(4):
    A(f"v_add_u32 v{104+u}, {4*u}, v3\nv_xor_b32 v{104+u}, v{104+u}, v2\nv_lshlrev_b32 v{104+u}, 4, v{104+u}\nv_lshl_add_u32 v{104+u}, v3, 8, v{104+u}")
A(f"s_lshl_b32 s84, s35, 13\ns_add_u32 s84, s84, {KI}\ns_cmp_eq_u32 s35, 7\ns_cselect_b32 s84, {VI+57344}, s84")
A("s_add_u32 s85, s84, 4096")
dma_voff(112, 13, 114, 115)
A("s_movk_i32 s62, 3584\nv_mul_lo_u32 v113, v115, s62\nv_add_u32 v113, v113, v114")
A("s_lshl_b32 s62, s52, 20\ns_lshl_b32 s63, s31, 10\ns_add_u32 s62, s62, s63\ns_lshl_b32 s63, s53, 7\ns_add_u32 s62, s62, s63")
A("s_lshl_b32 s63, s35, 18\ns_add_u32 s62, s62, s63")
A(f"s_lshl_b32 s86, s35, 12\ns_add_u32 s86, s86, {WQI}")
A("s_lshl_b32 s87, s53, 2\ns_add_u32 s87, s87, s35\ns_mul_i32 s87, s87, 16*3584\ns_lshl_b32 s71, s55, 7\ns_add_u32 s87, s87, s71")
A(f"s_lshl_b32 s71, s35, 11\ns_add_u32 s71, s71, {GI}")
A("s_mov_b32 m0, s86")
A("s_cmp_lt_u32 s35, 4\ns_cselect_b32 s49, s49, 2")
A("s_waitcnt lgkmcnt(0)")
ts0()
A("s_cmp_eq_u32 s49, 2\ns_cbranch_scc1 L_nogu")
A("s_cmp_gt_u32 s35, 1\ns_cbranch_scc1 L_nox")
srd(76, 4, 2048)
A(f"s_lshl_b32 s63, s35, 10\ns_add_u32 m0, s63, {XS}\nv_lshlrev_b32 v114, 4, v0")
A("buffer_load_dwordx4 v114, s[76:79], s63 offen lds")
A("s_mov_b32 m0, s86")
LB("L_nox")
srd(40, 10, 0x400000)
for i in range(4):
    if i: A(f"s_add_u32 m0, s86, {1024*i}\ns_add_u32 s62, s62, 65536")
    A(f"buffer_load_dwordx4 v112, s[40:43], s62 offen {WF} lds")
A("s_cmp_eq_u32 s49, 0\ns_cbranch_scc1 L_nogu")
srd(76, 16, 512 * 3584)
A("s_mov_b32 m0, s71")
srd(92, 18, 512 * 3584)
for i in range(2):
    if i: A(f"s_add_u32 m0, s71, 1024\ns_add_u32 s87, s87, {8*3584}")
    A(f"buffer_load_dwordx4 v113, s[76:79], s87 offen {WF} lds")
    A(f"s_add_u32 m0, s71, {UI-GI+1024*i}\ns_nop 0")
    A(f"buffer_load_dwordx4 v113, s[92:95], s87 offen {WF} lds")
LB("L_nogu")
A("s_mov_b32 s86, s49")
if TS == 5: A("s_memrealtime s[72:73]\ns_waitcnt lgkmcnt(0)\nv_writelane_b32 v127, s72, 8")
srd(36, 6, 0x8000000)
KR, QR = 16, 80
KVF = OPT["kv_fl"]
def kload(i):
    t, u = i // 4, i % 4
    if u == 0: A(f"s_mov_b32 m0, s{84+t}\ns_nop 0")
    A(f"buffer_load_dwordx4 v{104+u}, s[36:39], s{60+t} offen offset:{u*1024} {KVF} lds")
def kread(t):
    for j in range(4):
        i = 4 * t + j
        A(f"ds_read_b128 v[{KR+4*i}:{KR+4*i+3}], v{108+j} offset:{4096*t}")
FA = "s[44:47]" if OPT["dual"] else "s[80:83]"
def qgather(sr=FA):
    A(f"buffer_load_dwordx4 v[{QR}:{QR+3}], v6, {sr}, s62 offen sc1")
KA, VB = OPT["ka"], OPT["vb"]
ws_srds()
epoch_load()
fconsts(); consts()
A("s_lshl_b32 s62, s31, 1\ns_add_u32 s62, s62, s33\ns_lshl_b32 s62, s62, 13")
A("s_lshl_b32 s63, s35, 8\ns_add_u32 s62, s62, s63")
A(f"s_add_u32 s62, s62, {hex(QX)}")
A("v_lshlrev_b32 v6, 11, v3\nv_lshl_add_u32 v6, v2, 4, v6")
A(f"v_mov_b32 v12, {CNT}\nv_mov_b32 v13, 1")
for j in range(4):
    A(f"v_add_u32 v{108+j}, {4*j}, v3\nv_xor_b32 v{108+j}, v{108+j}, v2\nv_lshlrev_b32 v{108+j}, 4, v{108+j}\nv_lshl_add_u32 v{108+j}, v2, 8, v{108+j}\nv_add_u32 v{108+j}, s84, v{108+j}")
KY = OPT.get("ky", 8)
A("s_cmp_lg_u32 s86, 2\ns_cbranch_scc1 L_old1")
for i in range(KY): kload(i)
if TS == 5: A("s_memrealtime s[72:73]\ns_waitcnt lgkmcnt(0)\nv_writelane_b32 v127, s72, 9")
LB("L_old1")
A("v_and_b32 v14, 3, v2")
A(f"s_lshl_b32 s71, s35, 7\ns_add_u32 s71, s71, {QS}")
A("v_lshl_add_u32 v10, v2, 3, s71\nv_lshl_add_u32 v10, v3, 1, v10")
A(f"v_lshlrev_b32 v11, 8, v14\nv_lshl_add_u32 v11, v3, 4, v11\nv_add_u32 v11, {QS}, v11")
A(f"v_lshlrev_b32 v8, 5, v14\nv_add_u32 v8, {MX}, v8")
A("s_lshl_b32 s71, s35, 2\nv_add_u32 v9, s71, v8")
A(f"v_lshl_add_u32 v7, v3, 2, v14\nv_lshlrev_b32 v7, 4, v7\nv_add_u32 v7, {PS}, v7")
A("s_lshl_b32 s71, s35, 8\nv_add_u32 v5, s71, v7")
A("v_bfe_u32 v120, v0, 2, 3\nv_xor_b32 v120, s35, v120\nv_lshlrev_b32 v120, 5, v120")
A("v_and_b32 v121, 3, v0\nv_lshl_add_u32 v120, v121, 3, v120\nv_lshrrev_b32 v121, 2, v0\nv_lshl_add_u32 v120, v121, 8, v120")
A("v_lshlrev_b32 v121, 9, v14\nv_lshl_add_u32 v121, v3, 4, v121")
A(f"s_lshl_b32 s76, s31, 5\ns_add_u32 s49, s76, s32\ns_mul_i32 s49, s49, {OBS}\ns_add_u32 s49, s49, {hex(H1)}")
A("s_lshl_b32 s71, s35, 6\ns_add_u32 s48, s49, s71")
A(f"v_lshrrev_b32 v122, 3, v2\nv_lshl_add_u32 v122, v122, 4, v3\nv_mul_u32_u24 v122, {OBS}, v122")
A("v_and_b32 v123, 7, v2\nv_lshl_add_u32 v122, v123, 4, v122")
A(f"s_mul_i32 s76, s76, {OBS}\ns_add_u32 s76, s76, {hex(H1)}")
A("s_lshl_b32 s71, s52, 9\ns_add_u32 s76, s76, s71\ns_lshl_b32 s71, s35, 7\ns_add_u32 s76, s76, s71")
for i in range(1, 4): A(f"s_add_u32 s{76+i}, s76, {i*4*OBS}")
A(f"s_lshl_b32 s71, s35, 6\ns_add_u32 s71, s71, {OV}")
A("v_lshrrev_b32 v124, 3, v2\nv_lshlrev_b32 v124, 8, v124\nv_lshl_add_u32 v124, v123, 3, v124\nv_lshl_add_u32 v124, v3, 1, v124\nv_add_u32 v124, s71, v124")
A("s_waitcnt lgkmcnt(0)")
tags()
if TS == 5: A("s_memrealtime s[72:73]\ns_waitcnt lgkmcnt(0)\nv_writelane_b32 v127, s72, 10")
A("s_cmp_eq_u32 s86, 2\ns_cbranch_scc1 L_young")
A("s_cmp_eq_u32 s86, 0\ns_cbranch_scc1 L_nogu2")
A("s_waitcnt vmcnt(4)")
bump(O_W)
A("s_waitcnt vmcnt(0)")
bump(O_G)
A("s_branch L_gu3")
LB("L_nogu2")
A("s_waitcnt vmcnt(0)")
bump(O_W)
LB("L_gu3")
KO = OPT.get("ko", 0)
for i in range(KO): kload(i)
lds_spin("L_b1", 12, O_B1, 1)
ts()
if KO % 4: A(f"s_mov_b32 m0, s{84 + KO//4}\ns_nop 0")
for i in range(KO, 8): kload(i)
if KY < 8:
    A("s_branch L_young2")
    LB("L_young")
    lds_spin("L_b1y", 12, O_B1, 1)
    if KY % 4: A(f"s_mov_b32 m0, s{84 + KY//4}\ns_nop 0")
    for i in range(KY, 8): kload(i)
    LB("L_young2")
else:
    LB("L_young")
bump(O_B3)
lds_spin("L_b3", 12, O_B3, 8)
ts()
qgather()
bump(O_B2)
VB2 = 0
ts()
if OPT.get("prio"): A(f"s_setprio {OPT['prio']}")
LB("L_d0")
if VB2:
    A("s_waitcnt vmcnt(1)")
    tagcheck_dense([QR], 88, 89, 90)
    A("v_cmp_ne_u32 vcc, 0, v88\ns_nop 1\ns_cbranch_vccz L_qchk_ok")
    A("s_waitcnt vmcnt(0)")
    for c in range(4): A(f"v_mov_b32 v{QR+c}, v{QR+4+c}")
    if TS: A("s_mov_b32 s74, 0x100")
else:
    A("s_waitcnt vmcnt(5)")
    kread(0)
    A("s_waitcnt vmcnt(1)")
    kread(1)
    A("s_cmp_lg_u32 s35, 7\ns_cbranch_scc1 L_nok7")
    A("s_waitcnt lgkmcnt(0)")
    bump(O_K7)
    LB("L_nok7")
    A("s_waitcnt vmcnt(0)")
poll_check("L_qchk", [QR], 88, qgather, tagcheck_dense, 4)
if TS: A("v_writelane_b32 v127, s74, 13")
ts()
for c in range(4): A(f"v_and_b32 v{QR+c}, 0xffffff00, v{QR+c}")
A("s_nop 0")
xrow_t4(QR)
A(f"v_cvt_pk_bf16_f32 v{QR}, v{QR}, v{QR}")
A(f"ds_write_b16 v10, v{QR}")
bump(O_Q)
def qreads():
    for j in range(4):
        A(f"ds_read_b128 v[{QR+4*j}:{QR+4*j+3}], v11 offset:{64*j}")
lds_spin_data("L_qspin", O_Q, 8, qreads)
for j in range(4):
    for t in range(2):
        k = KR + 4 * (4 * t + j)
        mfma(96 + 4 * t, k, QR + 4 * j, None if j == 0 else 96 + 4 * t)
A("s_nop 7\ns_nop 1")
S = list(range(96, 104))
bf16_round_pairs(S, [112, 113, 114, 115])
for v in S: A(f"v_mul_f32 v{v}, s68, v{v}")
bf16_round_pairs(S, [112, 113, 114, 115])
A("v_max3_f32 v116, v96, v97, v98\nv_max3_f32 v116, v116, v99, v100\nv_max3_f32 v116, v116, v101, v102\nv_max_f32 v116, v116, v103")
xrow_multi("v_max_f32", [116], [117])
exec_mask(0xf, 0)
A("ds_write_b32 v9, v116")
bump(O_M)
lds_spin_data("L_mspin", O_M, 8, lambda: A("ds_read_b128 v[104:107], v8\nds_read_b128 v[108:111], v8 offset:16"))
A("v_max3_f32 v116, v104, v105, v106\nv_max3_f32 v116, v116, v107, v108\nv_max3_f32 v116, v116, v109, v110\nv_max_f32 v116, v116, v111")
A("v_mul_f32 v117, s70, v116")
for v in S: A(f"v_fma_f32 v{v}, v{v}, s69, v117")
for v in S: A(f"v_exp_f32 v{v}, v{v}")
A("v_or_b32 v125, s88, v116")
for i in range(4): A(f"v_cvt_pk_bf16_f32 v{112+i}, v{96+2*i}, v{97+2*i}")
A("v_add_f32 v117, v96, v97\nv_add_f32 v118, v98, v99\nv_add_f32 v119, v100, v101\nv_add_f32 v104, v102, v103")
A("v_add_f32 v117, v117, v118\nv_add_f32 v119, v119, v104\nv_add_f32 v117, v117, v119")
exec_mask(0x000f000f, 0x000f000f)
A("ds_write_b128 v5, v[112:115]")
exec_all()
xrow_multi("v_add_f32", [117], [118])
exec_mask(0xf, 0)
A("ds_write_b32 v9, v117 offset:128")
bump(O_P)
PR, VO = 16, 48
def preads():
    A(f"ds_read_b64 v[118:119], v12 offset:{O_VL}")
    for k in range(8):
        A(f"ds_read_b128 v[{PR+4*k}:{PR+4*k+3}], v7 offset:{256*k}")
lds_spin_data("L_pspin1", O_P, 8, preads)
A("v_min_u32 v118, v118, v119")
A("s_nop 0")
A("v_readfirstlane_b32 s71, v118")
A("s_cmp_lg_u32 s35, 7\ns_cbranch_scc1 L_nol")
A("ds_read_b128 v[104:107], v8 offset:128\nds_read_b128 v[108:111], v8 offset:144")
A("v_lshlrev_b32 v10, 4, v2")
A("v_mov_b32 v97, s58\nv_mov_b32 v98, v116\nv_mov_b32 v99, s59")
A("s_waitcnt lgkmcnt(0)")
A("v_add_f32 v104, v104, v105\nv_add_f32 v106, v106, v107\nv_add_f32 v108, v108, v109\nv_add_f32 v110, v110, v111")
A("v_add_f32 v104, v104, v106\nv_add_f32 v108, v108, v110\nv_add_f32 v96, v104, v108")
exec_mask(0xf, 0)
memgrp(lambda: publish(96, 10, "s49", 2048))
exec_all()
LB("L_nol")
ts()
dry_end()
LB("L_d1")
def vstep(ks, first):
    for k in ks:
        A(f"ds_read_b64_tr_b16 v[{VO+4*k}:{VO+4*k+1}], v120 offset:{VI + 8192*k}")
        A(f"ds_read_b64_tr_b16 v[{VO+4*k+2}:{VO+4*k+3}], v120 offset:{VI + 8192*k + 4096}")
    for i, k in enumerate(ks):
        A(f"s_waitcnt lgkmcnt({2*(len(ks)-1-i)})")
        mfma(80, VO + 4 * k, PR + 4 * k, None if (first and i == 0) else 80)
A("s_cmp_lt_u32 s71, 7\ns_cbranch_scc1 L_vinc")
vstep([0, 1, 2, 3, 4, 5, 6], True)
A("s_cbranch_execnz L_vlast" if OPT["dry"] else "s_branch L_vlast")
LB("L_vinc")
lds_spin2("L_v1", 12, O_VL, 4)
vstep([0, 1, 2, 3], True)
lds_spin2("L_v2", 12, O_VL, 6)
vstep([4, 5], False)
lds_spin2("L_v3", 12, O_VL, 7)
vstep([6], False)
LB("L_vlast")
hbar()
ts()
vstep([7], False)
exec_mask(0x000f000f, 0x000f000f)
A("s_nop 5")
stamp(84, [80, 81, 82, 83], 125)
memgrp(lambda: publish(84, 121, "s48"))
exec_all()
hbar()
ts()
A("s_cmp_ge_u32 s35, 4\ns_cbranch_scc1 L_kv_h2")
GR = 80
def h1gather(sr=FA):
    for i in range(4):
        A(f"buffer_load_dwordx4 v[{GR+4*i}:{GR+4*i+3}], v122, {sr}, s{76+i} offen sc1")
ts()
memgrp(h1gather)
A("s_waitcnt vmcnt(0)")
ts()
poll_check("L_h1chk", [GR + 4 * i for i in range(4)], 116, h1gather, tagcheck_16, 8)
ts()
for i in range(4): A(f"v_perm_b32 v{100+i}, v{GR+4*i+3}, v{GR+4*i+2}, s93")
A("v_max3_f32 v116, v100, v101, v102\nv_max_f32 v116, v116, v103")
xrow_multi("v_max_f32", [116], [117])
A("v_mul_f32 v117, s70, v116")
for i in range(4): A(f"v_fma_f32 v{100+i}, v{100+i}, s69, v117")
for i in range(4): A(f"v_exp_f32 v{100+i}, v{100+i}")
for c in range(16): A(f"v_and_b32 v{GR+c}, 0xffffff00, v{GR+c}")
for c in range(4): A(f"v_mul_f32 v{104+c}, v100, v{GR+c}")
for i in range(1, 4):
    for c in range(4): A(f"v_fmac_f32 v{104+c}, v{100+i}, v{GR+4*i+c}")
A("s_nop 0")
xrow_t4(104)
A("v_cvt_pk_bf16_f32 v104, v104, v104")
A("ds_write_b16 v124, v104")
A("s_waitcnt lgkmcnt(0)")
hbar()
ts()
if OPT["dry"]: A("s_cbranch_execz L_d2")
A("s_branch L_kv_done")
LB("L_kv_h2")
A("s_cmp_lg_u32 s35, 7\ns_cbranch_scc1 L_kv_bo")
A("s_cmp_ge_u32 s2, 128\ns_cbranch_scc1 L_kv_bo")
LB("L_d2")
if TS: ts_n[0] = 12
srd(48, 24, 2048)
A("s_lshl_b32 s60, s2, 11")
A(f"s_add_u32 s60, s60, {hex(H2)}")
A("v_lshlrev_b32 v5, 4, v0")
def h2gather(sr="s[80:83]"):
    A(f"buffer_load_dwordx4 v[16:19], v5, {sr}, s60 offen sc1")
    A(f"buffer_load_dwordx4 v[20:23], v5, {sr}, s60 offen offset:1024 sc1")
A("v_mov_b32 v8, 0")
A("s_lshl_b32 s62, s2, 3")
hbar()
if TS == 5: A("s_memrealtime s[72:73]\ns_waitcnt lgkmcnt(0)\nv_writelane_b32 v127, s72, 11")
memgrp(h2gather)
A("s_waitcnt vmcnt(0)")
poll_check("L_h2chk", [16, 20], 24, h2gather, dual=False)
ts()
A("v_add_f32 v16, v16, v20\nv_add_f32 v18, v18, v22")
rowsum([16, 18], shifts=(8, 4))
xrow_multi("v_add_f32", [16, 18], [17, 19])
A("s_nop 0")
for i, qp in enumerate(("[1,1,1,1]", "[2,2,2,2]", "[3,3,3,3]")):
    A(f"v_mov_b32_dpp v{24+i}, v16 quad_perm:{qp} row_mask:0xf bank_mask:0xf")
    A(f"v_mov_b32_dpp v{28+i}, v18 quad_perm:{qp} row_mask:0xf bank_mask:0xf")
A("v_cvt_pk_bf16_f32 v32, v16, v24\nv_cvt_pk_bf16_f32 v33, v25, v26")
A("v_cvt_pk_bf16_f32 v34, v18, v28\nv_cvt_pk_bf16_f32 v35, v29, v30")
exec_mask(1, 0)
if OPT["dry"]: A("s_cbranch_execz L_spre")
A("buffer_store_dwordx2 v[32:33], v8, s[48:51], s62 offen")
A("buffer_store_dwordx2 v[34:35], v8, s[48:51], s62 offen offset:1024")
if OPT.get("diag"):
    if OPT.get("diaghi"):
        A(f"s_cmp_lt_u32 s2, {OPT.get('diaglo', 0)}\ns_cbranch_scc1 L_diagx\ns_cmp_ge_u32 s2, {OPT['diaghi']}\ns_cbranch_scc1 L_diagx")
    A(f"v_readlane_b32 s73, v127, {OPT['diag']}\nv_readlane_b32 s99, v127, {OPT.get('diag0', 0)}")
    A("s_memrealtime s[100:101]\ns_waitcnt lgkmcnt(0)")
    A("s_sub_u32 s73, s73, s99")
    if OPT.get("diaginv"): A("s_min_u32 s73, s73, 1400\ns_sub_u32 s73, 1400, s73")
    A(f"s_mul_i32 s73, s73, {OPT.get('diagm', 8)}\ns_add_u32 s73, s73, s100")
    LB("L_diag")
    A("s_memrealtime s[98:99]\ns_waitcnt lgkmcnt(0)\ns_sub_u32 s99, s98, s73\ns_cmp_lt_i32 s99, 0\ns_cbranch_scc1 L_diag")
    LB("L_diagx")
A("s_cmp_lg_u32 s2, 0\ns_cbranch_scc1 L_kv_done")
A("v_mov_b32 v36, s58\nv_mov_b32 v37, s59")
A(f"s_mov_b32 s62, {hex(EPO)}")
A("buffer_store_dwordx2 v[36:37], v8, s[44:47], s62 offen sc1")
A("s_branch L_kv_done")
LB("L_kv_bo")
A("s_barrier")
LB("L_kv_done")
if TS:
    A("s_memrealtime s[72:73]\ns_waitcnt lgkmcnt(0)\nv_writelane_b32 v127, s72, 15")
ts_dump()
A("s_endpgm")

if OPT["dry"]:
    LB("L_helper")
    C("================= dry-run helpers: warm the instruction cache =================")
    for v in list(range(4, 16)) + list(range(104, 112)) + [120, 121, 122, 123, 124]: A(f"v_mov_b32 v{v}, 0")
    A("s_waitcnt lgkmcnt(0)")
    ws_srds()
    A("v_mov_b32 v2, 0\nv_mov_b32 v3, 0")
    A("s_mov_b32 s32, 0\ns_mov_b32 s52, 0\ns_mov_b32 s53, 0\ns_mov_b32 s54, 0\ns_mov_b32 s67, 0")
    A("s_mov_b64 s[90:91], 0\ns_mov_b64 exec, 0")
    A("s_mov_b32 s35, 7\ns_mov_b32 s48, 0\ns_mov_b32 s49, 1\ns_mov_b32 s60, 0\ns_mov_b32 s61, 0\ns_mov_b32 s62, 0\ns_mov_b32 s63, 0")
    A("s_cmp_eq_u32 s30, 12\ns_cbranch_scc1 L_d0")
    A("s_cmp_eq_u32 s30, 14\ns_cbranch_scc1 L_d5")
    A("s_cmp_eq_u32 s30, 15\ns_cbranch_scc1 L_d3")
    A("s_mov_b32 s35, 0\ns_mov_b32 s71, 8")
    A("s_branch L_d1")
    LB("L_spre")
    if OPT["spre"]:
        A(f"s_lshl_b32 s60, s31, 5\ns_add_u32 s60, s60, s32\ns_mul_i32 s60, s60, {OBS}\ns_add_u32 s60, s60, {hex(H1)}")
        A("s_add_u32 s62, s28, s60\ns_addc_u32 s63, s29, 0")
        if OPT["spre"] & 1:
            for i in range(17): A(f"s_load_dword s{4+(i%8)}, s[62:63], {128*i}")
        A(f"s_lshl_b32 s60, s2, 11\ns_add_u32 s60, s60, {hex(H2+MIR)}")
        A("s_add_u32 s62, s28, s60\ns_addc_u32 s63, s29, 0")
        if OPT["spre"] & 2:
            A("s_cmp_ge_u32 s2, 128\ns_cbranch_scc1 L_end")
            for i in range(16): A(f"s_load_dword s{4+(i%8)}, s[62:63], {128*i}")
    A("s_endpgm")

LB("L_special")
C("================= special waves =================")
ts_reset()
A("v_and_b32 v6, 1, v2\nv_lshlrev_b32 v6, 10, v6\nv_lshl_add_u32 v6, v3, 3, v6")
A("s_cmp_eq_u32 s30, 0\ns_cbranch_scc1 L_w0")
A("s_cmp_eq_u32 s30, 1\ns_cbranch_scc1 L_w1")
A("s_cmp_eq_u32 s30, 3\ns_cbranch_scc1 L_w3")
A("s_waitcnt lgkmcnt(0)")
ts0()
ws_srds()
epoch_load()
if OPT.get("tlbw", 0):
    A("v_mov_b32 v4, 0")
    A("s_mov_b32 exec_lo, 1\ns_mov_b32 exec_hi, 0")
    srd(36, 24, 2048)
    A("buffer_load_dword v16, v4, s[36:39], 0 offen")
    srd(40, 8, 0x8000000)
    A(f"buffer_load_dword v17, v4, s[40:43], s50 offen {KVF}")
    srd(76, 12, 0x400000)
    A("s_lshl_b32 s60, s54, 17")
    A(f"buffer_load_dword v18, v4, s[76:79], s60 offen {WF}")
    srd(84, 20, 1792 * 1024)
    A("s_lshl_b32 s60, s55, 16")
    A(f"buffer_load_dword v19, v4, s[84:87], s60 offen {WF}")
    A("s_mov_b64 exec, -1")
if OPT["dry"]:
    for v in range(4, 16): A(f"v_mov_b32 v{v}, 0")
    A("s_mov_b64 exec, 0")
    A("s_branch L_d4")
LB("L_w2ret")
A("s_mov_b64 exec, -1")
fconsts(); consts()
A("s_waitcnt lgkmcnt(0)")
tags()
A("s_branch L_vload")

LB("L_w3")
A("v_lshlrev_b32 v5, 4, v0")
A("s_waitcnt lgkmcnt(0)")
ts0()
srd(36, 4, 2048)
srd(40, 22, 1024)
A("buffer_load_dwordx4 v[16:19], v5, s[36:39], 0 offen")
A("buffer_load_dwordx4 v[20:23], v5, s[36:39], 0 offen offset:1024")
A("buffer_load_dwordx4 v[24:27], v5, s[40:43], 0 offen")
ws_srds()
epoch_load()
fconsts(); consts()
A("s_waitcnt vmcnt(0)")
for src, dst in ((24, 32), (16, 40), (20, 48)):
    for w in range(4):
        A(f"v_lshlrev_b32 v{dst+2*w}, 16, v{src+w}\nv_and_b32 v{dst+2*w+1}, 0xffff0000, v{src+w}")
for b in range(2):
    for e in range(8):
        A(f"v_mul_f32 v{40+8*b+e}, v{40+8*b+e}, v{32+e}")
bf16_round_pairs(list(range(40, 56)), list(range(16, 24)))
for b in range(2):
    o = 40 + 8 * b
    A(f"v_add_f32 v{o}, v{o}, v{o+1}\nv_add_f32 v{o+2}, v{o+2}, v{o+3}\nv_add_f32 v{o+4}, v{o+4}, v{o+5}\nv_add_f32 v{o+6}, v{o+6}, v{o+7}")
    A(f"v_add_f32 v{o}, v{o}, v{o+2}\nv_add_f32 v{o+4}, v{o+4}, v{o+6}\nv_add_f32 v{o}, v{o}, v{o+4}")
rowsum([40, 48])
xrow_multi("v_add_f32", [40, 48], [41, 49])
A("v_mov_b32 v41, v48")
bf16_round_pairs([40, 41], [16])
A("v_mul_f32 v40, s70, v40\nv_mul_f32 v41, s70, v41")
A("v_exp_f32 v40, v40\nv_exp_f32 v41, v41")
A("s_nop 0")
A("v_add_f32 v40, 1.0, v40\nv_add_f32 v41, 1.0, v41")
A("v_rcp_f32 v40, v40\nv_rcp_f32 v41, v41")
A("s_nop 0")
bf16_round_pairs([40, 41], [16])
A("v_sub_f32 v42, 1.0, v40\nv_sub_f32 v43, 1.0, v41")
bf16_round_pairs([42, 43], [16])
A(f"v_mov_b32 v4, {GT}")
A("ds_write_b128 v4, v[40:43]")
A("s_waitcnt lgkmcnt(0)")
tags()

LB("L_vload")
srd(40, 8, 0x8000000)
A("s_sub_u32 s35, s30, 2")
A("s_lshl_b32 s60, s35, 2\nv_add_u32 v4, s60, v3\nv_lshrrev_b32 v5, 1, v2\nv_xor_b32 v4, v4, v5")
A("v_and_b32 v5, 1, v2\nv_lshl_add_u32 v4, v4, 1, v5\nv_lshlrev_b32 v4, 4, v4\nv_lshl_add_u32 v4, v3, 8, v4")
A("s_lshl_b32 s61, s35, 10\ns_add_u32 s62, s50, s61")
A("s_and_b32 s60, s51, 15\ns_lshl_b32 s60, s60, 12")
A(f"v_mov_b32 v12, {CNT}\nv_mov_b32 v13, 1")
A(f"s_lshl_b32 s63, s35, 2\ns_add_u32 s63, s63, {CNT+O_VL}\nv_mov_b32 v11, s63")
A("v_mov_b32 v8, 4\nv_mov_b32 v9, 6\nv_mov_b32 v10, 8\nv_mov_b32 v7, 7")
def vblk(i):
    A(f"s_add_u32 s63, s62, s60\ns_add_u32 m0, s61, {VI + 4096*i}")
    A("s_add_u32 s60, s60, 4096\ns_and_b32 s60, s60, 0xffff")
    A(f"buffer_load_dwordx4 v4, s[40:43], s63 offen {KVF} lds")
    A(f"buffer_load_dwordx4 v4, s[40:43], s63 offen offset:2048 {KVF} lds")
lds_spin("L_b2", 12, O_B2, 8)
VB = 0
IB = OPT.get("ib", 16)
for i in range(2 * VB, 17):
    if VB2 and i == 2 * VB + VB2: A("s_barrier\ns_barrier")
    if i == max(IB, 2 * VB):
        A("s_mov_b32 exec_lo, 1\ns_mov_b32 exec_hi, 0")
        A(f"ds_add_u32 v12, v13 offset:{O_I}")
        A("s_mov_b64 exec, -1")
    if OPT.get("w1e") and i == OPT.get("hb", 6):
        A("s_mov_b32 exec_lo, 1\ns_mov_b32 exec_hi, 0")
        A(f"ds_add_u32 v12, v13 offset:{O_V}")
        A("s_mov_b64 exec, -1")
    if OPT.get("xb") and i == OPT["xb"]: lds_spin("L_xbspin", 12, O_Q, 8)
    if i == 14: lds_spin("L_k7spin", 12, O_K7, 1)
    if i < 16: vblk(i)
A("s_mov_b32 exec_lo, 1\ns_mov_b32 exec_hi, 0")
ts()
A("s_waitcnt vmcnt(16)")
A("ds_write_b32 v11, v8")
ts()
A("s_waitcnt vmcnt(8)")
A("ds_write_b32 v11, v9")
A("s_waitcnt vmcnt(4)")
A("ds_write_b32 v11, v7")
A("s_mov_b64 exec, -1")
A("s_waitcnt vmcnt(0)")
A("s_barrier")
ts()
A("s_branch L_final")

LB("L_w0")
ts_reset()
if OPT.get("w0p"): A("s_setprio 3")
A("s_lshl_b32 s61, s52, 8")
A("s_waitcnt lgkmcnt(0)")
ts0()
XA, BB, AC = 16, 32, 96
A(f"s_add_u32 s61, s61, {XS}\nv_add_u32 v6, s61, v6")
ws_srds()
epoch_load()
fconsts(); consts()
for q4 in range(4): tr_addr(8 + q4, q4, 12, 13, WQI)
A(f"v_lshlrev_b32 v12, 2, v0\nv_add_u32 v12, {QT}, v12\nv_and_b32 v13, 31, v0\nv_lshlrev_b32 v13, 4, v13\nv_add_u32 v13, {QT}, v13")
A("v_and_b32 v14, 1, v3\nv_lshlrev_b32 v14, 13, v14\nv_lshl_add_u32 v14, v2, 4, v14")
A("s_lshl_b32 s62, s31, 14\ns_lshl_b32 s63, s52, 11\ns_add_u32 s62, s62, s63\ns_lshl_b32 s63, s53, 8\ns_add_u32 s62, s62, s63")
A(f"s_add_u32 s62, s62, {hex(QX)}")
A("s_waitcnt lgkmcnt(0)")
tags()
A("v_mov_b32 v5, s58")
A(f"v_mov_b32 v4, {CNT}")
lds_spin("L_wspin", 4, O_W, 4)
ts()
LB("L_d4")
for t in range(4): A(f"ds_read2_b64 v[{XA+4*t}:{XA+4*t+3}], v6 offset0:{8*t} offset1:{8*t+4}")
seq = [(q4, t) for q4 in range(4) for t in range(4)]
D = 5
def issue(k):
    q4, t = seq[k]; tr_read(BB + 4 * k, 8 + q4, 0, t)
for k in range(D): issue(k)
for k in range(16):
    q4, t = seq[k]
    A(f"s_waitcnt lgkmcnt({2*(min(16,k+D)-k)-2})")
    mfma(AC + 4 * q4, XA + 4 * t, BB + 4 * k, None if t == 0 else AC + 4 * q4)
    if k + D < 16: issue(k + D)
A("s_nop 7\ns_nop 1")
for r in range(2): select4([AC + 4 * q + r for q in range(4)])
A("s_nop 0")
for r in range(2): A(f"v_permlane32_swap_b32 v{AC+r}, v{AC+8+r}")
A("s_nop 0")
A(f"ds_write_b32 v12, v{AC}\nds_write_b32 v12, v{AC+1} offset:256")
A("ds_read_b128 v[116:119], v13")
A("s_waitcnt lgkmcnt(0)")
stamp(112, [116, 117, 118, 119], 5)
A("s_mov_b32 exec_hi, 0")
if OPT["dry"]: A("s_cbranch_execz L_w2ret")
publish(112, 14, "s62")
A(f"v_mov_b32 v12, {CNT}\nv_mov_b32 v8, 1")
A(f"ds_write_b32 v12, v8 offset:{O_B1}")
A("s_mov_b64 exec, -1")
ts()
srd(36, 12, 0x400000)
srd(40, 20, 1792 * 1024)
dma_voff(4, 10, 8, 9)
if OPT.get("cshift"):
    A(f"s_add_u32 s63, s53, {OPT['cshift']}\ns_and_b32 s63, s63, 7\ns_lshl_b32 s63, s63, 7\ns_lshl_b32 s60, s54, 17\ns_add_u32 s60, s60, s63")
else:
  A("s_lshl_b32 s60, s54, 17\ns_lshl_b32 s63, s53, 7\ns_add_u32 s60, s60, s63")
A("s_lshl_b32 s61, s55, 16\ns_add_u32 s61, s61, s63")
A(f"v_mov_b32 v12, {CNT}\nv_mov_b32 v8, 1\nv_mov_b32 v9, 2\nv_mov_b32 v10, 3")
lds_spin("L_ispin", 12, O_I, 3)
ts()
A("s_cmp_eq_u32 s49, 0\ns_cbranch_scc1 L_w0_nowd")
for i in range(8):
    A(f"s_mov_b32 m0, {WDI+1024*i}")
    if i: A(f"s_add_u32 s61, s61, {8*1024}")
    else: A("s_nop 0")
    A(f"buffer_load_dwordx4 v4, s[40:43], s61 offen {WF} lds")
LB("L_w0_nowd")
for i in range(16):
    A(f"s_mov_b32 m0, {WOI+1024*i}")
    if i: A(f"s_add_u32 s60, s60, {8*1024}")
    else: A("s_nop 0")
    A(f"buffer_load_dwordx4 v4, s[36:39], s60 offen {WF} lds")
ts()
A("s_barrier\ns_barrier")
A("s_waitcnt vmcnt(16)")
A(f"ds_write_b32 v12, v8 offset:{O_STAGE}")
ts()
A("s_waitcnt vmcnt(8)")
A(f"ds_write_b32 v12, v9 offset:{O_STAGE}")
ts()
A("s_waitcnt vmcnt(0)")
A(f"ds_write_b32 v12, v10 offset:{O_STAGE}")
ts()
A("s_mov_b32 s75, 1")
A("s_branch L_final0")

LB("L_w1_idle")
A("s_waitcnt lgkmcnt(0)")
ts0()
ws_srds()
epoch_load()
fconsts(); consts()
A("s_waitcnt lgkmcnt(0)")
tags()
A(f"v_mov_b32 v11, {CNT}\nv_mov_b32 v14, 1")
A("s_mov_b32 exec_lo, 1\ns_mov_b32 exec_hi, 0")
A(f"ds_add_u32 v11, v14 offset:{O_I}")
A("s_mov_b64 exec, -1")
A("s_barrier")
A("s_branch L_final")
LB("L_w1")
ts_reset()
A("s_cmp_eq_u32 s49, 0\ns_cbranch_scc1 L_w1_idle")
A("s_lshl_b32 s61, s53, 7")
A("s_waitcnt lgkmcnt(0)")
ts0()
A(f"s_add_u32 s61, s61, {XS}\nv_add_u32 v6, s61, v6")
ws_srds()
epoch_load()
fconsts(); consts()
for q4 in range(4): tr_addr(8 + q4, q4, 12, 13, GI)
A("v_lshlrev_b32 v5, 4, v0")
A("s_lshl_b32 s62, s55, 13")
A(f"s_add_u32 s62, s62, {hex(HX)}")
A("s_lshl_b32 s63, s53, 10\ns_add_u32 s63, s63, s62")
A("s_add_u32 s61, s62, 4096")
A(f"v_lshlrev_b32 v12, 1, v0\nv_add_u32 v12, {HS}, v12")
A(f"v_mov_b32 v13, {CNT+O_H}\nv_mov_b32 v14, 1")
A("s_waitcnt lgkmcnt(0)")
tags()
A("v_mov_b32 v4, s58")
A(f"v_mov_b32 v7, {CNT}")
lds_spin("L_gspin", 7, O_G, 4)
ts()
LB("L_d5")
for t in range(2): A(f"ds_read2_b64 v[{XA+4*t}:{XA+4*t+3}], v6 offset0:{8*t} offset1:{8*t+4}")
seq = [(mat, q4, t) for mat in range(2) for q4 in range(4) for t in range(2)]
BB1 = 24
AC1 = 88
def issue(k):
    mat, q4, t = seq[k]; tr_read(BB1 + 4 * k, 8 + q4, (UI - GI) if mat else 0, t)
for k in range(D): issue(k)
for k in range(16):
    mat, q4, t = seq[k]
    A(f"s_waitcnt lgkmcnt({2*(min(16,k+D)-k)-2})")
    acc = AC1 + 16 * mat + 4 * q4
    mfma(acc, XA + 4 * t, BB1 + 4 * k, None if t == 0 else acc)
    if k + D < 16: issue(k + D)
A("s_nop 7\ns_nop 1")
for mat in range(2):
    for r in range(2): select4([AC1 + 16 * mat + 4 * q + r for q in range(4)])
A("s_nop 0")
for mat in range(2):
    for r in range(2): A(f"v_permlane32_swap_b32 v{AC1+16*mat+r}, v{AC1+16*mat+8+r}")
A("s_nop 0")
stamp(120, [AC1, AC1 + 1, AC1 + 16, AC1 + 17], 4)
dry_end()
publish(120, 5, "s63")
ts()
HG = 16
def hgather(sr=FA):
    for rb in range(8):
        r = HG + 4 * rb
        A(f"buffer_load_dwordx4 v[{r}:{r+3}], v5, {sr}, s{62 - rb//4} offen offset:{(rb%4)*1024} sc1")
A(f"v_mov_b32 v11, {CNT}")
A("s_mov_b32 exec_lo, 1\ns_mov_b32 exec_hi, 0")
A(f"ds_add_u32 v11, v14 offset:{O_I}")
A("s_mov_b64 exec, -1")
lds_spin("L_hw", 11, O_V, 2)
hgather()
ts()
LB("L_d3")
A("s_waitcnt vmcnt(0)")
poll_check("L_hchk", [HG + 4 * i for i in range(8)], 96, hgather, tagcheck_dense, 4)
ts()
for c in range(32): A(f"v_and_b32 v{HG+c}, 0xffffff00, v{HG+c}")
for step in (16, 8, 4):
    for base in range(HG, HG + step, 4):
        for o in range(4):
            A(f"v_add_f32 v{base+o}, v{base+o}, v{base+step+o}")
bf16_round_pairs([16, 17, 18, 19], [24, 25])
A("v_mul_f32 v24, s70, v16\nv_mul_f32 v25, s70, v17")
A("v_exp_f32 v24, v24\nv_exp_f32 v25, v25")
A("s_nop 0")
A("v_add_f32 v24, 1.0, v24\nv_add_f32 v25, 1.0, v25")
A("v_rcp_f32 v24, v24\nv_rcp_f32 v25, v25")
A("s_nop 0")
A("v_mul_f32 v16, v16, v24\nv_mul_f32 v17, v17, v25")
bf16_round_pairs([16, 17], [24])
A("v_mul_f32 v16, v16, v18\nv_mul_f32 v17, v17, v19")
A("v_cvt_pk_bf16_f32 v24, v16, v17")
A("ds_write_b16 v12, v24")
A("ds_write_b16_d16_hi v12, v24 offset:128")
A("ds_write_b32 v13, v14")
ts()
hbar()

LB("L_final")
A("s_mov_b32 s75, 0")
LB("L_final0")
if TS: ts_n[0] = 8
tr_addr(8, "s30", 12, 13, WOI)
A(f"v_mov_b32 v12, {CNT}")
A(f"v_and_b32 v9, 1, v2\nv_lshlrev_b32 v10, 7, v9\nv_lshl_add_u32 v10, v3, 3, v10\nv_add_u32 v10, {HS}, v10")
A(f"v_lshlrev_b32 v9, 8, v9\nv_lshl_add_u32 v9, v3, 3, v9\nv_add_u32 v9, {OV}, v9")
A("v_lshrrev_b32 v11, 2, v2\nv_lshlrev_b32 v11, 11, v11\nv_and_b32 v13, 3, v2\nv_lshl_add_u32 v11, v13, 4, v11")
A("s_lshl_b32 s60, s53, 15\ns_lshl_b32 s61, s30, 13\ns_add_u32 s60, s60, s61\ns_lshl_b32 s61, s54, 6\ns_add_u32 s60, s60, s61")
A(f"s_add_u32 s60, s60, {hex(H2)}")
A(f"v_and_b32 v7, 31, v0\nv_mul_u32_u24 v7, {OBS}, v7")
A(f"s_mul_i32 s61, s31, {32*OBS}\ns_lshl_b32 s62, s52, 4\ns_add_u32 s61, s61, s62")
A(f"s_add_u32 s61, s61, {hex(H1+2048)}")
A(f"v_mov_b32 v13, {GT}")
A("ds_read_b128 v[60:63], v13")
A("v_mov_b32 v65, s58\nv_mov_b32 v67, s59")
A("v_mov_b32 v56, 0\nv_mov_b32 v57, 0")
A("s_cmp_eq_u32 s75, 1\ns_cbranch_scc1 L_nobp")
hbar()
LB("L_nobp")
def lgather(sr=FA):
    A(f"buffer_load_dwordx4 v[68:71], v7, {sr}, s61 offen sc1")
memgrp(lgather)
A("s_cmp_eq_u32 s49, 0\ns_cbranch_scc1 L_f_nofb")
lds_spin("L_fs1", 12, O_STAGE, 1)
for t in range(2): tr_read(16 + 4 * t, 8, WDI - WOI, t)
lds_spin("L_fs2", 12, O_H, 1)
for t in range(2):
    A(f"ds_read2_b64 v[{24+4*t}:{27+4*t}], v10 offset0:{8*t} offset1:{8*t+4}")
A("s_waitcnt lgkmcnt(0)")
mfma(56, 24, 16, None)
mfma(56, 28, 20, 56)
A("s_nop 7\ns_nop 1")
A("v_mul_f32 v56, v56, v62\nv_mul_f32 v57, v57, v63")
LB("L_f_nofb")
ts()
lds_spin("L_fs3", 12, O_STAGE, 3)
for t in range(4): tr_read(16 + 4 * t, 8, 0, t)
ts()
A("s_waitcnt vmcnt(0)")
poll_check("L_lchk", [68], 72, lgather)
A("v_mov_b32 v72, v70")
A("v_mov_b32 v73, v70")
for sh in (8, 4, 2, 1):
    A("s_nop 1")
    A(f"v_max_f32_dpp v73, v73, v73 row_ror:{sh} row_mask:0xf bank_mask:0xf")
A("v_sub_f32 v72, v72, v73\nv_mul_f32 v72, s69, v72\nv_exp_f32 v72, v72\ns_nop 0\nv_mul_f32 v72, v72, v68")
rowsum([72])
A("v_rcp_f32 v72, v72")
A("s_nop 1")
A("v_readlane_b32 s62, v72, 0\nv_readlane_b32 s63, v72, 16")
A("s_nop 1")
A("v_mul_f32 v60, s62, v60\nv_mul_f32 v61, s63, v61")
ts()
hbar()
for t in range(4):
    A(f"ds_read2_b64 v[{32+4*t}:{35+4*t}], v9 offset0:{8*t} offset1:{8*t+4}")
for t in range(4):
    A(f"s_waitcnt lgkmcnt({3-t})")
    mfma(48, 32 + 4 * t, 16 + 4 * t, None if t == 0 else 48)
exec_mask(0xffff, 0)
A("s_nop 6")
A("v_fma_f32 v64, v48, v60, v56\nv_fma_f32 v66, v49, v61, v57")
dry_end()
publish(64, 11, "s60", dual=False)
ts()
ts_dump()
LB("L_end")
A("s_endpgm")

L.append(f""".section .rodata,"a"
.p2align 6
.amdhsa_kernel {NAME}
  .amdhsa_next_free_vgpr 128
  .amdhsa_next_free_sgpr 102
  .amdhsa_accum_offset 128
  .amdhsa_group_segment_fixed_size 0
  .amdhsa_kernarg_size 104
  .amdhsa_user_sgpr_count 2
  .amdhsa_user_sgpr_kernarg_segment_ptr 1
  .amdhsa_system_sgpr_workgroup_id_x 1
.end_amdhsa_kernel""")
open(out, "w").write("\n".join(L) + "\n")
```

```python
import sys

OPT = dict(ts=0, kv_fl="nt", w_fl="nt", ka=4, w1e=1, w0p=1, vb=0, spin=400000, pst=0, dry=0, xb=9, slp=0, pre=0, prew=0, dual=1, bper=8, prio=3, lsl=0, spre=0)
out = sys.argv[1]
for a in sys.argv[2:]:
    k, v = a.split("=")
    OPT[k] = int(v) if v.lstrip("-").isdigit() else v.replace("+", " ").replace("none", "")
TS = OPT["ts"]

NAME = "gated_mix__sliding_block_cached__swiglu_ffn__decode_kernel"
HEADER = open("gated_mix__sliding_block_cached__swiglu_ffn__decode.s.ref").read().split("; Override launch")[0]

L = []
def A(s):
    for l in s.split("\n"):
        L.append("    " + l.strip())
def LB(s):
    L.append(s + ":")
def C(s):
    L.append("    ; " + s)

VI = 0
WQI = 65536
GI = 81920
UI = 90112
WOI = 65536
WDI = 81920
KI = 98304
SM = 155648
PS = SM
QS = SM + 2048
OV = SM + 3072
HS = SM + 3584
QT = SM + 3840
MX = SM + 4352
LS = SM + 4480
GT = SM + 4608
CNT = SM + 4624
O_Q, O_M, O_P, O_STAGE, O_H, O_K7, O_V, O_I, O_VL, O_B1, O_B2, O_B3, O_W, O_G = 0, 4, 8, 12, 16, 20, 24, 28, 32, 40, 44, 48, 52, 56
XS = SM + 4864
LDS_BYTES = SM + 4864 + 2048
WB = OPT.get('wb', 496) << 20
OBS = 2176
if OPT.get("compact", 1):
    QX = WB
    HX = WB + 0x20000
    H1 = WB + 0x58000
    MIR_ = 0xE0000
    H2 = WB + 0xE0000
    EPO = H1 + 2112
else:
    QX = WB + 0x10000
    HX = WB + 0x80000
    H1 = WB + 0x100000
    H2 = WB + 0x400000
    MIR_ = 0x800000
    EPO = 0
TSB = 0x800000

SCALE = 0x3DB504F3
LOG2E = 0x3FB8AA3B
NLOG2E = 0xBFB8AA3B
WF = OPT["w_fl"]

def srd(d, p, nbytes):
    A(f"s_mov_b32 s{d}, s{p}\ns_and_b32 s{d+1}, s{p+1}, 0xffff\ns_mov_b32 s{d+2}, {hex(nbytes)}\ns_mov_b32 s{d+3}, 0x20000")

ts_n = [0]
skip_n = [0]
def ts_reset():
    ts_n[0] = 1 if TS else 0
def ts():
    if not TS: return
    k = ts_n[0]; ts_n[0] += 1
    assert k < 16
    if TS == 3: return
    if TS == 6 and k != 12: return
    A(f"s_memrealtime s[72:73]\ns_waitcnt lgkmcnt(0)\nv_writelane_b32 v127, s72, {k}")
def ts_dump():
    if not TS or TS in (5, 6): return
    A("s_mov_b64 exec, -1")
    if TS == 2:
        skip_n[0] += 1
        lb = f"L_sk{skip_n[0]}"
        A(f"s_cmp_lg_u32 s2, {OPT.get('dbgwg', 0)}\ns_cbranch_scc1 {lb}")
        A(f"s_cmp_lg_u32 s30, {OPT.get('dbgwave', 11)}\ns_cbranch_scc1 {lb}")
        srd(76, 26, 256)
        A("v_readlane_b32 s60, v127, 0\ns_nop 1\nv_subrev_u32 v127, s60, v127")
        A("v_lshlrev_b32 v3, 2, v0")
        A("s_mov_b32 exec_lo, 0xffff\ns_mov_b32 exec_hi, 0")
        A("buffer_store_dword v127, v3, s[76:79], 0 offen")
        LB(lb)
        return
    A("s_mul_i32 s60, s2, 12\ns_add_u32 s60, s60, s30\ns_lshl_b32 s60, s60, 6")
    A(f"s_add_u32 s60, s60, {hex(TSB)}")
    A("v_lshlrev_b32 v3, 2, v0")
    A("s_mov_b32 exec_lo, 0xffff\ns_mov_b32 exec_hi, 0")
    A("buffer_store_dword v127, v3, s[44:47], s60 offen")

def tags():
    A("s_add_u32 s58, s56, 0x01010101\ns_add_u32 s59, s57, 0x9e3779b9")
    A("s_and_b32 s88, s58, 0xffff\ns_and_b32 s89, s58, 0xffff0000")

def tagcheck(bases, acc, t0, t1):
    first = True
    for b in bases:
        A(f"v_xor_b32 v{t0}, s58, v{b+1}")
        A(f"v_xor_b32 v{t1}, s59, v{b+3}")
        if first:
            A(f"v_or_b32 v{acc}, v{t0}, v{t1}"); first = False
        else:
            A(f"v_or3_b32 v{acc}, v{acc}, v{t0}, v{t1}")

def tagcheck_dense(bases, acc, t0, t1):
    first = True
    for b in bases:
        A(f"v_perm_b32 v{t0}, v{b+1}, v{b}, s92")
        A(f"v_perm_b32 v{t1}, v{b+3}, v{b+2}, s93")
        A(f"v_xor_b32 v{t0}, s88, v{t0}")
        A(f"v_xor_b32 v{t1}, s89, v{t1}")
        if first:
            A(f"v_or_b32 v{acc}, v{t0}, v{t1}"); first = False
        else:
            A(f"v_or3_b32 v{acc}, v{acc}, v{t0}, v{t1}")

def tagcheck_16(bases, acc, t0, t1):
    for i in range(0, len(bases), 2):
        b0 = bases[i]
        A(f"v_perm_b32 v{t0}, v{b0+1}, v{b0}, s92")
        A(f"v_xor_b32 v{t0}, s88, v{t0}")
        if i + 1 < len(bases):
            b1 = bases[i + 1]
            A(f"v_perm_b32 v{t1}, v{b1+1}, v{b1}, s92")
            A(f"v_xor_b32 v{t1}, s88, v{t1}")
            if i == 0: A(f"v_or_b32 v{acc}, v{t0}, v{t1}")
            else: A(f"v_or3_b32 v{acc}, v{acc}, v{t0}, v{t1}")
        else:
            if i == 0: A(f"v_mov_b32 v{acc}, v{t0}")
            else: A(f"v_or_b32 v{acc}, v{acc}, v{t0}")

def stamp(dst, srcs, tagv):
    for i in range(4):
        A(f"v_perm_b32 v{dst+i}, v{srcs[i]}, v{tagv}, s{94+i}")

def consts():
    A("s_mov_b32 s92, 0x0c0c0400\ns_mov_b32 s93, 0x04000c0c")
    A("s_mov_b32 s94, 0x07060500\ns_mov_b32 s95, 0x07060501\ns_mov_b32 s96, 0x07060502\ns_mov_b32 s97, 0x07060503")

def exec_mask(lo, hi):
    if not OPT["dry"]:
        A(f"s_mov_b32 exec_lo, {hex(lo)}")
        if hi is not None: A(f"s_mov_b32 exec_hi, {hex(hi)}")
        return
    A(f"s_and_b32 exec_lo, s90, {hex(lo)}" if lo != 0xffffffff else "s_mov_b32 exec_lo, s90")
    if hi is not None:
        A(f"s_and_b32 exec_hi, s91, {hex(hi)}" if hi else "s_mov_b32 exec_hi, 0")
def exec_all():
    A("s_mov_b64 exec, s[90:91]" if OPT["dry"] else "s_mov_b64 exec, -1")
def memgrp(fn):
    if not OPT["dry"]:
        fn(); return
    skip_n[0] += 1
    lb = f"L_sk{skip_n[0]}"
    A(f"s_cbranch_execz {lb}")
    fn()
    LB(lb)
def hbar():
    memgrp(lambda: A("s_barrier"))
def dry_end():
    if OPT["dry"]: A("s_cbranch_execz L_end")

MIR = MIR_
def ws_srds():
    srd(44, 28, 0x20000000)
    A(f"s_add_u32 s80, s28, {hex(MIR)}\ns_addc_u32 s81, s29, 0\ns_and_b32 s81, s81, 0xffff\ns_mov_b32 s82, {hex(0x20000000-MIR)}\ns_mov_b32 s83, 0x20000")
    A("s_mov_b32 s74, 0")

def publish(data, voff, soff, off=0, dual=True):
    o = f" offset:{off}" if off else ""
    if dual and OPT["dual"]:
        A(f"buffer_store_dwordx4 v[{data}:{data+3}], v{voff}, s[44:47], {soff} offen{o}")
    A(f"buffer_store_dwordx4 v[{data}:{data+3}], v{voff}, s[80:83], {soff} offen{o} sc1")

def poll_check(label, bases, tmp, reissue, chk=tagcheck, grp=1, dual=True):
    dual = dual and OPT["dual"]
    LB(label)
    chk(bases, tmp, tmp + 1, tmp + 2)
    if grp >= 4:
        A(f"s_nop 1\nv_or_b32_dpp v{tmp}, v{tmp}, v{tmp} quad_perm:[1,0,3,2] row_mask:0xf bank_mask:0xf")
        A(f"s_nop 1\nv_or_b32_dpp v{tmp}, v{tmp}, v{tmp} quad_perm:[2,3,0,1] row_mask:0xf bank_mask:0xf")
    if grp >= 8:
        A(f"s_nop 1\nv_or_b32_dpp v{tmp}, v{tmp}, v{tmp} row_half_mirror row_mask:0xf bank_mask:0xf")
    A(f"v_cmp_ne_u32 vcc, 0, v{tmp}")
    A("s_nop 1")
    A(f"s_cbranch_vccz {label}_ok")
    if OPT.get("nopoll"): A(f"s_branch {label}_ok")
    A(f"s_sub_u32 s67, s67, 1\ns_cbranch_scc1 {label}_ok")
    A("s_mov_b64 exec, vcc")
    if OPT["slp"]: A(f"s_sleep {OPT['slp']}")
    if dual:
        A(f"s_add_u32 s74, s74, 1\ns_and_b32 s75, s74, {OPT['bper']-1}\ns_cbranch_scc0 {label}_b")
        reissue("s[44:47]")
        A("s_waitcnt vmcnt(0)")
        A(f"s_branch {label}")
        LB(label + "_b")
    reissue("s[80:83]")
    A("s_waitcnt vmcnt(0)")
    A(f"s_branch {label}")
    LB(label + "_ok")
    exec_all()

def xrow_multi(op, vs, ts_, steps=("v_permlane16_swap_b32", "v_permlane32_swap_b32")):
    for sw in steps:
        for v, t in zip(vs, ts_):
            A(f"v_mov_b32 v{t}, v{v}")
        if len(vs) < 2: A("s_nop 1")
        elif len(vs) < 3: A("s_nop 0")
        for v, t in zip(vs, ts_):
            A(f"{sw} v{v}, v{t}")
        A("s_nop 0")
        for v, t in zip(vs, ts_):
            A(f"{op} v{v}, v{v}, v{t}")

def xrow_t4(v):
    A(f"v_permlane16_swap_b32 v{v}, v{v+1}")
    A(f"v_permlane16_swap_b32 v{v+2}, v{v+3}")
    A("s_nop 0")
    A(f"v_add_f32 v{v}, v{v}, v{v+1}")
    A(f"v_add_f32 v{v+2}, v{v+2}, v{v+3}")
    A("s_nop 1")
    A(f"v_permlane32_swap_b32 v{v}, v{v+2}")
    A("s_nop 0")
    A(f"v_add_f32 v{v}, v{v}, v{v+2}")

def transpose8(raw, dst, pairs=(0, 1, 2, 3)):
    for v in pairs:
        for w in range(4):
            a = raw + 4 * (2 * v) + w
            b = raw + 4 * (2 * v + 1) + w
            A(f"v_perm_b32 v{dst + 4*(2*w) + v}, v{b}, v{a}, s64")
            A(f"v_perm_b32 v{dst + 4*(2*w+1) + v}, v{b}, v{a}, s65")

def bf16_round_pairs(vs, tmp):
    n = len(vs) // 2
    for i in range(n):
        A(f"v_cvt_pk_bf16_f32 v{tmp[i]}, v{vs[2*i]}, v{vs[2*i+1]}")
    for i in range(n):
        A(f"v_lshlrev_b32 v{vs[2*i]}, 16, v{tmp[i]}")
        A(f"v_and_b32 v{vs[2*i+1]}, 0xffff0000, v{tmp[i]}")

def lds_spin(label, addr_v, off, val):
    if OPT["dry"]: A(f"s_cbranch_execz {label}_x")
    LB(label)
    A(f"ds_read_b32 v15, v{addr_v} offset:{off}")
    A("s_waitcnt lgkmcnt(0)")
    A("v_readfirstlane_b32 s66, v15")
    A("s_sub_u32 s67, s67, 1")
    A(f"s_cbranch_scc1 {label}_x")
    if OPT.get("lsl") and label in ("L_ispin",): A(f"s_sleep {OPT['lsl']}")
    if OPT.get("ksl") and label in ("L_qspin", "L_mspin", "L_pspin1"):
        A(f"s_cmp_ge_u32 s66, {val}\ns_cbranch_scc1 {label}_x\ns_sleep {OPT['ksl']}")
    A(f"s_cmp_lt_u32 s66, {val}")
    A(f"s_cbranch_scc1 {label}")
    LB(label + "_x")

def lds_spin_data(label, off, val, reads):
    lds_spin(label, 12, off, val)
    reads()
    A("s_waitcnt lgkmcnt(0)")

def rowsum(vs, shifts=(8, 4, 2, 1)):
    for sh in shifts:
        if len(vs) < 3: A("s_nop 1")
        for v in vs:
            A(f"v_add_f32_dpp v{v}, v{v}, v{v} row_ror:{sh} row_mask:0xf bank_mask:0xf")

def dma_voff(dst, stride_sreg_or_shift, t0, t1):
    A(f"v_bfe_u32 v{t0}, v0, 1, 2\nv_bfe_u32 v{t1}, v0, 4, 2\nv_xor_b32 v{t0}, v{t0}, v{t1}")
    A(f"v_and_b32 v{t1}, 1, v0\nv_lshl_add_u32 v{t0}, v{t0}, 1, v{t1}\nv_lshlrev_b32 v{t0}, 4, v{t0}")
    A(f"v_lshrrev_b32 v{t1}, 3, v0")
    if isinstance(stride_sreg_or_shift, int):
        A(f"v_lshl_add_u32 v{dst}, v{t1}, {stride_sreg_or_shift}, v{t0}")
    else:
        A(f"v_mul_lo_u32 v{t1}, v{t1}, {stride_sreg_or_shift}\nv_add_u32 v{dst}, v{t1}, v{t0}")

def tr_addr(dst, q4, t0, t1, base):
    A(f"v_bfe_u32 v{t0}, v0, 3, 2")
    A(f"v_xor_b32 v{t0}, {q4}, v{t0}")
    A(f"v_lshlrev_b32 v{t0}, 5, v{t0}")
    A(f"v_and_b32 v{t1}, 3, v0\nv_lshl_add_u32 v{t0}, v{t1}, 3, v{t0}")
    A(f"v_lshrrev_b32 v{t1}, 2, v0\nv_lshl_add_u32 v{dst}, v{t1}, 7, v{t0}")
    A(f"v_add_u32 v{dst}, {base}, v{dst}")

def tr_read(dst, addr_v, off, t):
    A(f"ds_read_b64_tr_b16 v[{dst}:{dst+1}], v{addr_v} offset:{off + 4096*t}")
    A(f"ds_read_b64_tr_b16 v[{dst+2}:{dst+3}], v{addr_v} offset:{off + 4096*t + 2048}")

def lds_spin2(label, addr_v, off, val):
    if OPT["dry"]: A(f"s_cbranch_execz {label}_x")
    LB(label)
    A(f"ds_read_b64 v[14:15], v{addr_v} offset:{off}")
    A("s_waitcnt lgkmcnt(0)")
    A("v_min_u32 v15, v14, v15")
    A("s_sub_u32 s67, s67, 1")
    A("v_readfirstlane_b32 s66, v15")
    A(f"s_cbranch_scc1 {label}_x")
    A(f"s_cmp_lt_u32 s66, {val}")
    A(f"s_cbranch_scc1 {label}")
    LB(label + "_x")

def bump(off):
    exec_mask(1, 0)
    A(f"ds_add_u32 v12, v13 offset:{off}")
    exec_all()

def mfma(d, a, b, c):
    cs = "0" if c is None else f"v[{c}:{c+3}]"
    A(f"v_mfma_f32_16x16x32_bf16 v[{d}:{d+3}], v[{a}:{a+3}], v[{b}:{b+3}], {cs}")

def select4(xs):
    A(f"v_permlane16_swap_b32 v{xs[0]}, v{xs[1]}")
    A(f"v_permlane16_swap_b32 v{xs[2]}, v{xs[3]}")

NWAVES = 16 if OPT["dry"] else 12
L.append(HEADER.rstrip())
L.append(f"; @launch grid=(256,1,1) block=({NWAVES*64},1,1) lds={LDS_BYTES}")
L.append("""; Fused decode step, one launch, 256 workgroups (one per CU) x 12 waves.
;   share an L2) and a write-through copy that is visible under any placement.""")
L.append('.amdgcn_target "amdgcn-amd-amdhsa--gfx950"')
L.append(".text")
L.append(f".globl {NAME}\n.p2align 8\n.type {NAME},@function\n{NAME}:")
A("s_cmp_ge_u32 s2, 256\ns_cbranch_scc1 L_end")
if OPT.get("xorwg"): A(f"s_xor_b32 s2, s2, {OPT['xorwg']}")
if OPT.get("remap"): A("s_and_b32 s3, s2, 31\ns_lshl_b32 s3, s3, 3\ns_lshr_b32 s2, s2, 5\ns_or_b32 s2, s2, s3")
if OPT.get("late"):
    A("s_and_b32 s31, s2, 7\ns_cmp_lg_u32 s31, 3\ns_cbranch_scc1 L_nolate")
    A(f"s_memrealtime s[72:73]\ns_waitcnt lgkmcnt(0)\ns_add_u32 s74, s72, {OPT['late']}")
    LB("L_late")
    A("s_memrealtime s[72:73]\ns_waitcnt lgkmcnt(0)\ns_sub_u32 s75, s72, s74\ns_cmp_lt_i32 s75, 0\ns_cbranch_scc1 L_late")
    LB("L_nolate")
A("v_lshrrev_b32 v1, 6, v0")
A("v_and_b32 v0, 63, v0")
A("s_and_b32 s31, s2, 7")
A("v_readfirstlane_b32 s30, v1")
A("s_nop 0")
A("s_cmp_lg_u32 s30, 2\ns_cbranch_scc1 L_noinit")
A(f"v_lshlrev_b32 v4, 2, v0\nv_add_u32 v4, {CNT}, v4\nv_mov_b32 v8, 0")
A("s_mov_b32 exec_lo, 0xffff\ns_mov_b32 exec_hi, 0")
A("ds_write_b32 v4, v8")
A("s_mov_b64 exec, -1")
A("s_waitcnt lgkmcnt(0)")
LB("L_noinit")
A("s_load_dwordx16 s[4:19], s[0:1], 0")
A("s_load_dwordx8 s[20:27], s[0:1], 64")
A("s_load_dwordx2 s[28:29], s[0:1], 96")
if TS or OPT.get("diag"): A("s_memrealtime s[72:73]")
A("s_barrier")
if OPT["dry"]:
    A("s_cmp_lt_u32 s30, 12\ns_cbranch_scc1 L_main")
    if OPT.get("cpf", 0):
        A("s_getpc_b64 s[60:61]")
        LB("L_pc")
        A(f"s_sub_u32 s62, s30, 12\ns_mul_i32 s62, s62, {OPT.get('cpf', 0)*128}")
        A(f"s_add_u32 s63, s62, {OPT.get('cpf', 0)*128}")
        LB("L_pf")
        A("s_load_dword s36, s[60:61], s62")
        A("s_add_u32 s62, s62, 128\ns_cmp_lt_u32 s62, s63\ns_cbranch_scc1 L_pf")
    A("s_branch L_helper")
    LB("L_main")
A("s_lshr_b32 s32, s2, 3")
A("s_lshr_b32 s33, s32, 4")
A("s_and_b32 s34, s32, 15")
A(f"s_mov_b32 s67, {OPT['spin']}")
if OPT["dry"]: A("s_mov_b64 s[90:91], -1")
A("v_and_b32 v2, 15, v0")
A("v_lshrrev_b32 v3, 4, v0")
A("s_lshr_b32 s52, s32, 3")
A("s_and_b32 s53, s32, 7")
A("s_lshl_b32 s54, s31, 2\ns_add_u32 s54, s54, s52")
A("s_lshl_b32 s50, s33, 3\ns_add_u32 s50, s50, s31\ns_lshl_b32 s50, s50, 23")
A("s_lshl_b32 s51, s34, 16\ns_add_u32 s50, s50, s51\ns_add_u32 s50, s50, 0x700000")
A(f"s_mul_i32 s51, s32, {OPT.get('rotm', 5)}\ns_add_u32 s51, s51, s31")
A("s_and_b32 s49, s54, 7\ns_cmp_lg_u32 s49, 7\ns_cselect_b32 s49, 1, 0")
A("s_lshr_b32 s55, s54, 3\ns_sub_u32 s55, s54, s55")
A("s_cmp_lt_u32 s30, 4\ns_cbranch_scc1 L_special")

def epoch_load():
    if EPO:
        A(f"s_mov_b32 s56, {hex(EPO)}\ns_load_dwordx2 s[56:57], s[28:29], s56")
    else:
        A("s_load_dwordx2 s[56:57], s[28:29], 0")
def fconsts():
    A(f"s_mov_b32 s68, {hex(SCALE)}\ns_mov_b32 s69, {hex(LOG2E)}\ns_mov_b32 s70, {hex(NLOG2E)}")
def ts0():
    if TS: A("v_writelane_b32 v127, s72, 0")

C("================= K / attention waves =================")
ts_reset()
A("s_sub_u32 s35, s30, 4")
A("s_lshl_b32 s62, s35, 1\ns_add_u32 s62, s62, s51")
A("s_add_u32 s63, s62, 1\ns_and_b32 s62, s62, 15\ns_and_b32 s63, s63, 15")
A("s_lshl_b32 s62, s62, 12\ns_lshl_b32 s63, s63, 12")
A("s_add_u32 s61, s50, s63\ns_add_u32 s60, s50, s62")
for u in range(4):
    A(f"v_add_u32 v{104+u}, {4*u}, v3\nv_xor_b32 v{104+u}, v{104+u}, v2\nv_lshlrev_b32 v{104+u}, 4, v{104+u}\nv_lshl_add_u32 v{104+u}, v3, 8, v{104+u}")
A(f"s_lshl_b32 s84, s35, 13\ns_add_u32 s84, s84, {KI}\ns_cmp_eq_u32 s35, 7\ns_cselect_b32 s84, {VI+57344}, s84")
A("s_add_u32 s85, s84, 4096")
dma_voff(112, 13, 114, 115)
A("s_movk_i32 s62, 3584\nv_mul_lo_u32 v113, v115, s62\nv_add_u32 v113, v113, v114")
A("s_lshl_b32 s62, s52, 20\ns_lshl_b32 s63, s31, 10\ns_add_u32 s62, s62, s63\ns_lshl_b32 s63, s53, 7\ns_add_u32 s62, s62, s63")
A("s_lshl_b32 s63, s35, 18\ns_add_u32 s62, s62, s63")
A(f"s_lshl_b32 s86, s35, 12\ns_add_u32 s86, s86, {WQI}")
A("s_lshl_b32 s87, s53, 2\ns_add_u32 s87, s87, s35\ns_mul_i32 s87, s87, 16*3584\ns_lshl_b32 s71, s55, 7\ns_add_u32 s87, s87, s71")
A(f"s_lshl_b32 s71, s35, 11\ns_add_u32 s71, s71, {GI}")
A("s_mov_b32 m0, s86")
A("s_cmp_lt_u32 s35, 4\ns_cselect_b32 s49, s49, 2")
A("s_waitcnt lgkmcnt(0)")
ts0()
A("s_cmp_eq_u32 s49, 2\ns_cbranch_scc1 L_nogu")
A("s_cmp_gt_u32 s35, 1\ns_cbranch_scc1 L_nox")
srd(76, 4, 2048)
A(f"s_lshl_b32 s63, s35, 10\ns_add_u32 m0, s63, {XS}\nv_lshlrev_b32 v114, 4, v0")
A("buffer_load_dwordx4 v114, s[76:79], s63 offen lds")
A("s_mov_b32 m0, s86")
LB("L_nox")
srd(40, 10, 0x400000)
for i in range(4):
    if i: A(f"s_add_u32 m0, s86, {1024*i}\ns_add_u32 s62, s62, 65536")
    A(f"buffer_load_dwordx4 v112, s[40:43], s62 offen {WF} lds")
A("s_cmp_eq_u32 s49, 0\ns_cbranch_scc1 L_nogu")
srd(76, 16, 512 * 3584)
A("s_mov_b32 m0, s71")
srd(92, 18, 512 * 3584)
for i in range(2):
    if i: A(f"s_add_u32 m0, s71, 1024\ns_add_u32 s87, s87, {8*3584}")
    A(f"buffer_load_dwordx4 v113, s[76:79], s87 offen {WF} lds")
    A(f"s_add_u32 m0, s71, {UI-GI+1024*i}\ns_nop 0")
    A(f"buffer_load_dwordx4 v113, s[92:95], s87 offen {WF} lds")
LB("L_nogu")
A("s_mov_b32 s86, s49")
if TS == 5: A("s_memrealtime s[72:73]\ns_waitcnt lgkmcnt(0)\nv_writelane_b32 v127, s72, 8")
srd(36, 6, 0x8000000)
KR, QR = 16, 80
KVF = OPT["kv_fl"]
def kload(i):
    t, u = i // 4, i % 4
    if u == 0: A(f"s_mov_b32 m0, s{84+t}\ns_nop 0")
    A(f"buffer_load_dwordx4 v{104+u}, s[36:39], s{60+t} offen offset:{u*1024} {KVF} lds")
def kread(t):
    for j in range(4):
        i = 4 * t + j
        A(f"ds_read_b128 v[{KR+4*i}:{KR+4*i+3}], v{108+j} offset:{4096*t}")
FA = "s[44:47]" if OPT["dual"] else "s[80:83]"
def qgather(sr=FA):
    A(f"buffer_load_dwordx4 v[{QR}:{QR+3}], v6, {sr}, s62 offen sc1")
KA, VB = OPT["ka"], OPT["vb"]
ws_srds()
epoch_load()
fconsts(); consts()
A("s_lshl_b32 s62, s31, 1\ns_add_u32 s62, s62, s33\ns_lshl_b32 s62, s62, 13")
A("s_lshl_b32 s63, s35, 8\ns_add_u32 s62, s62, s63")
A(f"s_add_u32 s62, s62, {hex(QX)}")
A("v_lshlrev_b32 v6, 11, v3\nv_lshl_add_u32 v6, v2, 4, v6")
A(f"v_mov_b32 v12, {CNT}\nv_mov_b32 v13, 1")
for j in range(4):
    A(f"v_add_u32 v{108+j}, {4*j}, v3\nv_xor_b32 v{108+j}, v{108+j}, v2\nv_lshlrev_b32 v{108+j}, 4, v{108+j}\nv_lshl_add_u32 v{108+j}, v2, 8, v{108+j}\nv_add_u32 v{108+j}, s84, v{108+j}")
KY = OPT.get("ky", 8)
A("s_cmp_lg_u32 s86, 2\ns_cbranch_scc1 L_old1")
for i in range(KY): kload(i)
if TS == 5: A("s_memrealtime s[72:73]\ns_waitcnt lgkmcnt(0)\nv_writelane_b32 v127, s72, 9")
LB("L_old1")
A("v_and_b32 v14, 3, v2")
A(f"s_lshl_b32 s71, s35, 7\ns_add_u32 s71, s71, {QS}")
A("v_lshl_add_u32 v10, v2, 3, s71\nv_lshl_add_u32 v10, v3, 1, v10")
A(f"v_lshlrev_b32 v11, 8, v14\nv_lshl_add_u32 v11, v3, 4, v11\nv_add_u32 v11, {QS}, v11")
A(f"v_lshlrev_b32 v8, 5, v14\nv_add_u32 v8, {MX}, v8")
A("s_lshl_b32 s71, s35, 2\nv_add_u32 v9, s71, v8")
A(f"v_lshl_add_u32 v7, v3, 2, v14\nv_lshlrev_b32 v7, 4, v7\nv_add_u32 v7, {PS}, v7")
A("s_lshl_b32 s71, s35, 8\nv_add_u32 v5, s71, v7")
A("v_bfe_u32 v120, v0, 2, 3\nv_xor_b32 v120, s35, v120\nv_lshlrev_b32 v120, 5, v120")
A("v_and_b32 v121, 3, v0\nv_lshl_add_u32 v120, v121, 3, v120\nv_lshrrev_b32 v121, 2, v0\nv_lshl_add_u32 v120, v121, 8, v120")
A("v_lshlrev_b32 v121, 9, v14\nv_lshl_add_u32 v121, v3, 4, v121")
A(f"s_lshl_b32 s76, s31, 5\ns_add_u32 s49, s76, s32\ns_mul_i32 s49, s49, {OBS}\ns_add_u32 s49, s49, {hex(H1)}")
A("s_lshl_b32 s71, s35, 6\ns_add_u32 s48, s49, s71")
A(f"v_lshrrev_b32 v122, 3, v2\nv_lshl_add_u32 v122, v122, 4, v3\nv_mul_u32_u24 v122, {OBS}, v122")
A("v_and_b32 v123, 7, v2\nv_lshl_add_u32 v122, v123, 4, v122")
A(f"s_mul_i32 s76, s76, {OBS}\ns_add_u32 s76, s76, {hex(H1)}")
A("s_lshl_b32 s71, s52, 9\ns_add_u32 s76, s76, s71\ns_lshl_b32 s71, s35, 7\ns_add_u32 s76, s76, s71")
for i in range(1, 4): A(f"s_add_u32 s{76+i}, s76, {i*4*OBS}")
A(f"s_lshl_b32 s71, s35, 6\ns_add_u32 s71, s71, {OV}")
A("v_lshrrev_b32 v124, 3, v2\nv_lshlrev_b32 v124, 8, v124\nv_lshl_add_u32 v124, v123, 3, v124\nv_lshl_add_u32 v124, v3, 1, v124\nv_add_u32 v124, s71, v124")
A("s_waitcnt lgkmcnt(0)")
tags()
if TS == 5: A("s_memrealtime s[72:73]\ns_waitcnt lgkmcnt(0)\nv_writelane_b32 v127, s72, 10")
A("s_cmp_eq_u32 s86, 2\ns_cbranch_scc1 L_young")
A("s_cmp_eq_u32 s86, 0\ns_cbranch_scc1 L_nogu2")
A("s_waitcnt vmcnt(4)")
bump(O_W)
A("s_waitcnt vmcnt(0)")
bump(O_G)
A("s_branch L_gu3")
LB("L_nogu2")
A("s_waitcnt vmcnt(0)")
bump(O_W)
LB("L_gu3")
KO = OPT.get("ko", 0)
for i in range(KO): kload(i)
lds_spin("L_b1", 12, O_B1, 1)
ts()
if KO % 4: A(f"s_mov_b32 m0, s{84 + KO//4}\ns_nop 0")
for i in range(KO, 8): kload(i)
if KY < 8:
    A("s_branch L_young2")
    LB("L_young")
    lds_spin("L_b1y", 12, O_B1, 1)
    if KY % 4: A(f"s_mov_b32 m0, s{84 + KY//4}\ns_nop 0")
    for i in range(KY, 8): kload(i)
    LB("L_young2")
else:
    LB("L_young")
bump(O_B3)
lds_spin("L_b3", 12, O_B3, 8)
ts()
qgather()
bump(O_B2)
VB2 = 0
ts()
if OPT.get("prio"): A(f"s_setprio {OPT['prio']}")
LB("L_d0")
if VB2:
    A("s_waitcnt vmcnt(1)")
    tagcheck_dense([QR], 88, 89, 90)
    A("v_cmp_ne_u32 vcc, 0, v88\ns_nop 1\ns_cbranch_vccz L_qchk_ok")
    A("s_waitcnt vmcnt(0)")
    for c in range(4): A(f"v_mov_b32 v{QR+c}, v{QR+4+c}")
    if TS: A("s_mov_b32 s74, 0x100")
else:
    A("s_waitcnt vmcnt(5)")
    kread(0)
    A("s_waitcnt vmcnt(1)")
    kread(1)
    A("s_cmp_lg_u32 s35, 7\ns_cbranch_scc1 L_nok7")
    A("s_waitcnt lgkmcnt(0)")
    bump(O_K7)
    LB("L_nok7")
    A("s_waitcnt vmcnt(0)")
poll_check("L_qchk", [QR], 88, qgather, tagcheck_dense, 4)
if TS: A("v_writelane_b32 v127, s74, 13")
ts()
for c in range(4): A(f"v_and_b32 v{QR+c}, 0xffffff00, v{QR+c}")
A("s_nop 0")
xrow_t4(QR)
A(f"v_cvt_pk_bf16_f32 v{QR}, v{QR}, v{QR}")
A(f"ds_write_b16 v10, v{QR}")
bump(O_Q)
def qreads():
    for j in range(4):
        A(f"ds_read_b128 v[{QR+4*j}:{QR+4*j+3}], v11 offset:{64*j}")
lds_spin_data("L_qspin", O_Q, 8, qreads)
for j in range(4):
    for t in range(2):
        k = KR + 4 * (4 * t + j)
        mfma(96 + 4 * t, k, QR + 4 * j, None if j == 0 else 96 + 4 * t)
A("s_nop 7\ns_nop 1")
S = list(range(96, 104))
bf16_round_pairs(S, [112, 113, 114, 115])
for v in S: A(f"v_mul_f32 v{v}, s68, v{v}")
bf16_round_pairs(S, [112, 113, 114, 115])
A("v_max3_f32 v116, v96, v97, v98\nv_max3_f32 v116, v116, v99, v100\nv_max3_f32 v116, v116, v101, v102\nv_max_f32 v116, v116, v103")
xrow_multi("v_max_f32", [116], [117])
exec_mask(0xf, 0)
A("ds_write_b32 v9, v116")
bump(O_M)
lds_spin_data("L_mspin", O_M, 8, lambda: A("ds_read_b128 v[104:107], v8\nds_read_b128 v[108:111], v8 offset:16"))
A("v_max3_f32 v116, v104, v105, v106\nv_max3_f32 v116, v116, v107, v108\nv_max3_f32 v116, v116, v109, v110\nv_max_f32 v116, v116, v111")
A("v_mul_f32 v117, s70, v116")
for v in S: A(f"v_fma_f32 v{v}, v{v}, s69, v117")
for v in S: A(f"v_exp_f32 v{v}, v{v}")
A("v_or_b32 v125, s88, v116")
for i in range(4): A(f"v_cvt_pk_bf16_f32 v{112+i}, v{96+2*i}, v{97+2*i}")
A("v_add_f32 v117, v96, v97\nv_add_f32 v118, v98, v99\nv_add_f32 v119, v100, v101\nv_add_f32 v104, v102, v103")
A("v_add_f32 v117, v117, v118\nv_add_f32 v119, v119, v104\nv_add_f32 v117, v117, v119")
exec_mask(0x000f000f, 0x000f000f)
A("ds_write_b128 v5, v[112:115]")
exec_all()
xrow_multi("v_add_f32", [117], [118])
exec_mask(0xf, 0)
A("ds_write_b32 v9, v117 offset:128")
bump(O_P)
PR, VO = 16, 48
def preads():
    A(f"ds_read_b64 v[118:119], v12 offset:{O_VL}")
    for k in range(8):
        A(f"ds_read_b128 v[{PR+4*k}:{PR+4*k+3}], v7 offset:{256*k}")
lds_spin_data("L_pspin1", O_P, 8, preads)
A("v_min_u32 v118, v118, v119")
A("s_nop 0")
A("v_readfirstlane_b32 s71, v118")
A("s_cmp_lg_u32 s35, 7\ns_cbranch_scc1 L_nol")
A("ds_read_b128 v[104:107], v8 offset:128\nds_read_b128 v[108:111], v8 offset:144")
A("v_lshlrev_b32 v10, 4, v2")
A("v_mov_b32 v97, s58\nv_mov_b32 v98, v116\nv_mov_b32 v99, s59")
A("s_waitcnt lgkmcnt(0)")
A("v_add_f32 v104, v104, v105\nv_add_f32 v106, v106, v107\nv_add_f32 v108, v108, v109\nv_add_f32 v110, v110, v111")
A("v_add_f32 v104, v104, v106\nv_add_f32 v108, v108, v110\nv_add_f32 v96, v104, v108")
exec_mask(0xf, 0)
memgrp(lambda: publish(96, 10, "s49", 2048))
exec_all()
LB("L_nol")
ts()
dry_end()
LB("L_d1")
def vstep(ks, first):
    for k in ks:
        A(f"ds_read_b64_tr_b16 v[{VO+4*k}:{VO+4*k+1}], v120 offset:{VI + 8192*k}")
        A(f"ds_read_b64_tr_b16 v[{VO+4*k+2}:{VO+4*k+3}], v120 offset:{VI + 8192*k + 4096}")
    for i, k in enumerate(ks):
        A(f"s_waitcnt lgkmcnt({2*(len(ks)-1-i)})")
        mfma(80, VO + 4 * k, PR + 4 * k, None if (first and i == 0) else 80)
A("s_cmp_lt_u32 s71, 7\ns_cbranch_scc1 L_vinc")
vstep([0, 1, 2, 3, 4, 5, 6], True)
A("s_cbranch_execnz L_vlast" if OPT["dry"] else "s_branch L_vlast")
LB("L_vinc")
lds_spin2("L_v1", 12, O_VL, 4)
vstep([0, 1, 2, 3], True)
lds_spin2("L_v2", 12, O_VL, 6)
vstep([4, 5], False)
lds_spin2("L_v3", 12, O_VL, 7)
vstep([6], False)
LB("L_vlast")
hbar()
ts()
vstep([7], False)
exec_mask(0x000f000f, 0x000f000f)
A("s_nop 5")
stamp(84, [80, 81, 82, 83], 125)
memgrp(lambda: publish(84, 121, "s48"))
exec_all()
hbar()
ts()
A("s_cmp_ge_u32 s35, 4\ns_cbranch_scc1 L_kv_h2")
GR = 80
def h1gather(sr=FA):
    for i in range(4):
        A(f"buffer_load_dwordx4 v[{GR+4*i}:{GR+4*i+3}], v122, {sr}, s{76+i} offen sc1")
ts()
memgrp(h1gather)
A("s_waitcnt vmcnt(0)")
ts()
poll_check("L_h1chk", [GR + 4 * i for i in range(4)], 116, h1gather, tagcheck_16, 8)
ts()
for i in range(4): A(f"v_perm_b32 v{100+i}, v{GR+4*i+3}, v{GR+4*i+2}, s93")
A("v_max3_f32 v116, v100, v101, v102\nv_max_f32 v116, v116, v103")
xrow_multi("v_max_f32", [116], [117])
A("v_mul_f32 v117, s70, v116")
for i in range(4): A(f"v_fma_f32 v{100+i}, v{100+i}, s69, v117")
for i in range(4): A(f"v_exp_f32 v{100+i}, v{100+i}")
for c in range(16): A(f"v_and_b32 v{GR+c}, 0xffffff00, v{GR+c}")
for c in range(4): A(f"v_mul_f32 v{104+c}, v100, v{GR+c}")
for i in range(1, 4):
    for c in range(4): A(f"v_fmac_f32 v{104+c}, v{100+i}, v{GR+4*i+c}")
A("s_nop 0")
xrow_t4(104)
A("v_cvt_pk_bf16_f32 v104, v104, v104")
A("ds_write_b16 v124, v104")
A("s_waitcnt lgkmcnt(0)")
hbar()
ts()
if OPT["dry"]: A("s_cbranch_execz L_d2")
A("s_branch L_kv_done")
LB("L_kv_h2")
A("s_cmp_lg_u32 s35, 7\ns_cbranch_scc1 L_kv_bo")
A("s_cmp_ge_u32 s2, 128\ns_cbranch_scc1 L_kv_bo")
LB("L_d2")
if TS: ts_n[0] = 12
srd(48, 24, 2048)
A("s_lshl_b32 s60, s2, 11")
A(f"s_add_u32 s60, s60, {hex(H2)}")
A("v_lshlrev_b32 v5, 4, v0")
def h2gather(sr="s[80:83]"):
    A(f"buffer_load_dwordx4 v[16:19], v5, {sr}, s60 offen sc1")
    A(f"buffer_load_dwordx4 v[20:23], v5, {sr}, s60 offen offset:1024 sc1")
A("v_mov_b32 v8, 0")
A("s_lshl_b32 s62, s2, 3")
hbar()
if TS == 5: A("s_memrealtime s[72:73]\ns_waitcnt lgkmcnt(0)\nv_writelane_b32 v127, s72, 11")
memgrp(h2gather)
A("s_waitcnt vmcnt(0)")
poll_check("L_h2chk", [16, 20], 24, h2gather, dual=False)
ts()
A("v_add_f32 v16, v16, v20\nv_add_f32 v18, v18, v22")
rowsum([16, 18], shifts=(8, 4))
xrow_multi("v_add_f32", [16, 18], [17, 19])
A("s_nop 0")
for i, qp in enumerate(("[1,1,1,1]", "[2,2,2,2]", "[3,3,3,3]")):
    A(f"v_mov_b32_dpp v{24+i}, v16 quad_perm:{qp} row_mask:0xf bank_mask:0xf")
    A(f"v_mov_b32_dpp v{28+i}, v18 quad_perm:{qp} row_mask:0xf bank_mask:0xf")
A("v_cvt_pk_bf16_f32 v32, v16, v24\nv_cvt_pk_bf16_f32 v33, v25, v26")
A("v_cvt_pk_bf16_f32 v34, v18, v28\nv_cvt_pk_bf16_f32 v35, v29, v30")
exec_mask(1, 0)
if OPT["dry"]: A("s_cbranch_execz L_spre")
A("buffer_store_dwordx2 v[32:33], v8, s[48:51], s62 offen")
A("buffer_store_dwordx2 v[34:35], v8, s[48:51], s62 offen offset:1024")
if OPT.get("diag"):
    if OPT.get("diaghi"):
        A(f"s_cmp_lt_u32 s2, {OPT.get('diaglo', 0)}\ns_cbranch_scc1 L_diagx\ns_cmp_ge_u32 s2, {OPT['diaghi']}\ns_cbranch_scc1 L_diagx")
    if OPT.get("diaglate"):
        A("v_readlane_b32 s73, v127, 12\nv_readlane_b32 s99, v127, 0\ns_nop 3\ns_sub_u32 s73, s73, s99")
        A(f"s_cmp_ge_u32 s73, {OPT['diaglate']}\ns_cbranch_scc1 L_diagx")
    A(f"v_readlane_b32 s73, v127, {OPT['diag']}\nv_readlane_b32 s99, v127, {OPT.get('diag0', 0)}")
    A("s_memrealtime s[100:101]\ns_waitcnt lgkmcnt(0)")
    A("s_sub_u32 s73, s73, s99")
    if OPT.get("diaginv"): A("s_min_u32 s73, s73, 1400\ns_sub_u32 s73, 1400, s73")
    A(f"s_mul_i32 s73, s73, {OPT.get('diagm', 8)}\ns_add_u32 s73, s73, s100")
    LB("L_diag")
    A("s_memrealtime s[98:99]\ns_waitcnt lgkmcnt(0)\ns_sub_u32 s99, s98, s73\ns_cmp_lt_i32 s99, 0\ns_cbranch_scc1 L_diag")
    LB("L_diagx")
A("s_cmp_lg_u32 s2, 0\ns_cbranch_scc1 L_kv_done")
A("v_mov_b32 v36, s58\nv_mov_b32 v37, s59")
A(f"s_mov_b32 s62, {hex(EPO)}")
A("buffer_store_dwordx2 v[36:37], v8, s[44:47], s62 offen sc1")
A("s_branch L_kv_done")
LB("L_kv_bo")
A("s_barrier")
LB("L_kv_done")
if TS:
    A("s_memrealtime s[72:73]\ns_waitcnt lgkmcnt(0)\nv_writelane_b32 v127, s72, 15")
ts_dump()
A("s_endpgm")

if OPT["dry"]:
    LB("L_helper")
    C("================= dry-run helpers: warm the instruction cache =================")
    for v in list(range(4, 16)) + list(range(104, 112)) + [120, 121, 122, 123, 124]: A(f"v_mov_b32 v{v}, 0")
    A("s_waitcnt lgkmcnt(0)")
    ws_srds()
    A("v_mov_b32 v2, 0\nv_mov_b32 v3, 0")
    A("s_mov_b32 s32, 0\ns_mov_b32 s52, 0\ns_mov_b32 s53, 0\ns_mov_b32 s54, 0\ns_mov_b32 s67, 0")
    A("s_mov_b64 s[90:91], 0\ns_mov_b64 exec, 0")
    A("s_mov_b32 s35, 7\ns_mov_b32 s48, 0\ns_mov_b32 s49, 1\ns_mov_b32 s60, 0\ns_mov_b32 s61, 0\ns_mov_b32 s62, 0\ns_mov_b32 s63, 0")
    A("s_cmp_eq_u32 s30, 12\ns_cbranch_scc1 L_d0")
    A("s_cmp_eq_u32 s30, 14\ns_cbranch_scc1 L_d5")
    A("s_cmp_eq_u32 s30, 15\ns_cbranch_scc1 L_d3")
    A("s_mov_b32 s35, 0\ns_mov_b32 s71, 8")
    A("s_branch L_d1")
    LB("L_spre")
    if OPT["spre"]:
        A(f"s_lshl_b32 s60, s31, 5\ns_add_u32 s60, s60, s32\ns_mul_i32 s60, s60, {OBS}\ns_add_u32 s60, s60, {hex(H1)}")
        A("s_add_u32 s62, s28, s60\ns_addc_u32 s63, s29, 0")
        if OPT["spre"] & 1:
            for i in range(17): A(f"s_load_dword s{4+(i%8)}, s[62:63], {128*i}")
        A(f"s_lshl_b32 s60, s2, 11\ns_add_u32 s60, s60, {hex(H2+MIR)}")
        A("s_add_u32 s62, s28, s60\ns_addc_u32 s63, s29, 0")
        if OPT["spre"] & 2:
            A("s_cmp_ge_u32 s2, 128\ns_cbranch_scc1 L_end")
            for i in range(16): A(f"s_load_dword s{4+(i%8)}, s[62:63], {128*i}")
    A("s_endpgm")

LB("L_special")
C("================= special waves =================")
ts_reset()
A("v_and_b32 v6, 1, v2\nv_lshlrev_b32 v6, 10, v6\nv_lshl_add_u32 v6, v3, 3, v6")
A("s_cmp_eq_u32 s30, 0\ns_cbranch_scc1 L_w0")
A("s_cmp_eq_u32 s30, 1\ns_cbranch_scc1 L_w1")
A("s_cmp_eq_u32 s30, 3\ns_cbranch_scc1 L_w3")
A("s_waitcnt lgkmcnt(0)")
ts0()
ws_srds()
epoch_load()
if OPT.get("tlbw", 0):
    A("v_mov_b32 v4, 0")
    A("s_mov_b32 exec_lo, 1\ns_mov_b32 exec_hi, 0")
    srd(36, 24, 2048)
    A("buffer_load_dword v16, v4, s[36:39], 0 offen")
    srd(40, 8, 0x8000000)
    A(f"buffer_load_dword v17, v4, s[40:43], s50 offen {KVF}")
    srd(76, 12, 0x400000)
    A("s_lshl_b32 s60, s54, 17")
    A(f"buffer_load_dword v18, v4, s[76:79], s60 offen {WF}")
    srd(84, 20, 1792 * 1024)
    A("s_lshl_b32 s60, s55, 16")
    A(f"buffer_load_dword v19, v4, s[84:87], s60 offen {WF}")
    A("s_mov_b64 exec, -1")
if OPT["dry"]:
    for v in range(4, 16): A(f"v_mov_b32 v{v}, 0")
    A("s_mov_b64 exec, 0")
    A("s_branch L_d4")
LB("L_w2ret")
A("s_mov_b64 exec, -1")
fconsts(); consts()
A("s_waitcnt lgkmcnt(0)")
tags()
A("s_branch L_vload")

LB("L_w3")
A("v_lshlrev_b32 v5, 4, v0")
A("s_waitcnt lgkmcnt(0)")
ts0()
srd(36, 4, 2048)
srd(40, 22, 1024)
A("buffer_load_dwordx4 v[16:19], v5, s[36:39], 0 offen")
A("buffer_load_dwordx4 v[20:23], v5, s[36:39], 0 offen offset:1024")
A("buffer_load_dwordx4 v[24:27], v5, s[40:43], 0 offen")
ws_srds()
epoch_load()
fconsts(); consts()
A("s_waitcnt vmcnt(0)")
for src, dst in ((24, 32), (16, 40), (20, 48)):
    for w in range(4):
        A(f"v_lshlrev_b32 v{dst+2*w}, 16, v{src+w}\nv_and_b32 v{dst+2*w+1}, 0xffff0000, v{src+w}")
for b in range(2):
    for e in range(8):
        A(f"v_mul_f32 v{40+8*b+e}, v{40+8*b+e}, v{32+e}")
bf16_round_pairs(list(range(40, 56)), list(range(16, 24)))
for b in range(2):
    o = 40 + 8 * b
    A(f"v_add_f32 v{o}, v{o}, v{o+1}\nv_add_f32 v{o+2}, v{o+2}, v{o+3}\nv_add_f32 v{o+4}, v{o+4}, v{o+5}\nv_add_f32 v{o+6}, v{o+6}, v{o+7}")
    A(f"v_add_f32 v{o}, v{o}, v{o+2}\nv_add_f32 v{o+4}, v{o+4}, v{o+6}\nv_add_f32 v{o}, v{o}, v{o+4}")
rowsum([40, 48])
xrow_multi("v_add_f32", [40, 48], [41, 49])
A("v_mov_b32 v41, v48")
bf16_round_pairs([40, 41], [16])
A("v_mul_f32 v40, s70, v40\nv_mul_f32 v41, s70, v41")
A("v_exp_f32 v40, v40\nv_exp_f32 v41, v41")
A("s_nop 0")
A("v_add_f32 v40, 1.0, v40\nv_add_f32 v41, 1.0, v41")
A("v_rcp_f32 v40, v40\nv_rcp_f32 v41, v41")
A("s_nop 0")
bf16_round_pairs([40, 41], [16])
A("v_sub_f32 v42, 1.0, v40\nv_sub_f32 v43, 1.0, v41")
bf16_round_pairs([42, 43], [16])
A(f"v_mov_b32 v4, {GT}")
A("ds_write_b128 v4, v[40:43]")
A("s_waitcnt lgkmcnt(0)")
tags()

LB("L_vload")
srd(40, 8, 0x8000000)
A("s_sub_u32 s35, s30, 2")
A("s_lshl_b32 s60, s35, 2\nv_add_u32 v4, s60, v3\nv_lshrrev_b32 v5, 1, v2\nv_xor_b32 v4, v4, v5")
A("v_and_b32 v5, 1, v2\nv_lshl_add_u32 v4, v4, 1, v5\nv_lshlrev_b32 v4, 4, v4\nv_lshl_add_u32 v4, v3, 8, v4")
A("s_lshl_b32 s61, s35, 10\ns_add_u32 s62, s50, s61")
A("s_and_b32 s60, s51, 15\ns_lshl_b32 s60, s60, 12")
A(f"v_mov_b32 v12, {CNT}\nv_mov_b32 v13, 1")
A(f"s_lshl_b32 s63, s35, 2\ns_add_u32 s63, s63, {CNT+O_VL}\nv_mov_b32 v11, s63")
A("v_mov_b32 v8, 4\nv_mov_b32 v9, 6\nv_mov_b32 v10, 8\nv_mov_b32 v7, 7")
def vblk(i):
    A(f"s_add_u32 s63, s62, s60\ns_add_u32 m0, s61, {VI + 4096*i}")
    A("s_add_u32 s60, s60, 4096\ns_and_b32 s60, s60, 0xffff")
    A(f"buffer_load_dwordx4 v4, s[40:43], s63 offen {KVF} lds")
    A(f"buffer_load_dwordx4 v4, s[40:43], s63 offen offset:2048 {KVF} lds")
lds_spin("L_b2", 12, O_B2, 8)
VB = 0
IB = OPT.get("ib", 16)
for i in range(2 * VB, 17):
    if VB2 and i == 2 * VB + VB2: A("s_barrier\ns_barrier")
    if i == max(IB, 2 * VB):
        A("s_mov_b32 exec_lo, 1\ns_mov_b32 exec_hi, 0")
        A(f"ds_add_u32 v12, v13 offset:{O_I}")
        A("s_mov_b64 exec, -1")
    if OPT.get("w1e") and i == OPT.get("hb", 6):
        A("s_mov_b32 exec_lo, 1\ns_mov_b32 exec_hi, 0")
        A(f"ds_add_u32 v12, v13 offset:{O_V}")
        A("s_mov_b64 exec, -1")
    if OPT.get("xb") and i == OPT["xb"]: lds_spin("L_xbspin", 12, O_Q, 8)
    if i == 14: lds_spin("L_k7spin", 12, O_K7, 1)
    if i < 16: vblk(i)
A("s_mov_b32 exec_lo, 1\ns_mov_b32 exec_hi, 0")
ts()
A("s_waitcnt vmcnt(16)")
A("ds_write_b32 v11, v8")
ts()
A("s_waitcnt vmcnt(8)")
A("ds_write_b32 v11, v9")
A("s_waitcnt vmcnt(4)")
A("ds_write_b32 v11, v7")
A("s_mov_b64 exec, -1")
A("s_waitcnt vmcnt(0)")
A("s_barrier")
ts()
A("s_branch L_final")

LB("L_w0")
ts_reset()
if OPT.get("w0p"): A("s_setprio 3")
A("s_lshl_b32 s61, s52, 8")
A("s_waitcnt lgkmcnt(0)")
ts0()
XA, BB, AC = 16, 32, 96
A(f"s_add_u32 s61, s61, {XS}\nv_add_u32 v6, s61, v6")
ws_srds()
epoch_load()
fconsts(); consts()
for q4 in range(4): tr_addr(8 + q4, q4, 12, 13, WQI)
A(f"v_lshlrev_b32 v12, 2, v0\nv_add_u32 v12, {QT}, v12\nv_and_b32 v13, 31, v0\nv_lshlrev_b32 v13, 4, v13\nv_add_u32 v13, {QT}, v13")
A("v_and_b32 v14, 1, v3\nv_lshlrev_b32 v14, 13, v14\nv_lshl_add_u32 v14, v2, 4, v14")
A("s_lshl_b32 s62, s31, 14\ns_lshl_b32 s63, s52, 11\ns_add_u32 s62, s62, s63\ns_lshl_b32 s63, s53, 8\ns_add_u32 s62, s62, s63")
A(f"s_add_u32 s62, s62, {hex(QX)}")
A("s_waitcnt lgkmcnt(0)")
tags()
A("v_mov_b32 v5, s58")
A(f"v_mov_b32 v4, {CNT}")
lds_spin("L_wspin", 4, O_W, 4)
ts()
LB("L_d4")
for t in range(4): A(f"ds_read2_b64 v[{XA+4*t}:{XA+4*t+3}], v6 offset0:{8*t} offset1:{8*t+4}")
seq = [(q4, t) for q4 in range(4) for t in range(4)]
D = 5
def issue(k):
    q4, t = seq[k]; tr_read(BB + 4 * k, 8 + q4, 0, t)
for k in range(D): issue(k)
for k in range(16):
    q4, t = seq[k]
    A(f"s_waitcnt lgkmcnt({2*(min(16,k+D)-k)-2})")
    mfma(AC + 4 * q4, XA + 4 * t, BB + 4 * k, None if t == 0 else AC + 4 * q4)
    if k + D < 16: issue(k + D)
A("s_nop 7\ns_nop 1")
for r in range(2): select4([AC + 4 * q + r for q in range(4)])
A("s_nop 0")
for r in range(2): A(f"v_permlane32_swap_b32 v{AC+r}, v{AC+8+r}")
A("s_nop 0")
A(f"ds_write_b32 v12, v{AC}\nds_write_b32 v12, v{AC+1} offset:256")
A("ds_read_b128 v[116:119], v13")
A("s_waitcnt lgkmcnt(0)")
stamp(112, [116, 117, 118, 119], 5)
A("s_mov_b32 exec_hi, 0")
if OPT["dry"]: A("s_cbranch_execz L_w2ret")
publish(112, 14, "s62")
A(f"v_mov_b32 v12, {CNT}\nv_mov_b32 v8, 1")
A(f"ds_write_b32 v12, v8 offset:{O_B1}")
A("s_mov_b64 exec, -1")
ts()
srd(36, 12, 0x400000)
srd(40, 20, 1792 * 1024)
dma_voff(4, 10, 8, 9)
if OPT.get("cshift"):
    A(f"s_add_u32 s63, s53, {OPT['cshift']}\ns_and_b32 s63, s63, 7\ns_lshl_b32 s63, s63, 7\ns_lshl_b32 s60, s54, 17\ns_add_u32 s60, s60, s63")
else:
  A("s_lshl_b32 s60, s54, 17\ns_lshl_b32 s63, s53, 7\ns_add_u32 s60, s60, s63")
A("s_lshl_b32 s61, s55, 16\ns_add_u32 s61, s61, s63")
A(f"v_mov_b32 v12, {CNT}\nv_mov_b32 v8, 1\nv_mov_b32 v9, 2\nv_mov_b32 v10, 3")
lds_spin("L_ispin", 12, O_I, 3)
ts()
A("s_cmp_eq_u32 s49, 0\ns_cbranch_scc1 L_w0_nowd")
for i in range(8):
    A(f"s_mov_b32 m0, {WDI+1024*i}")
    if i: A(f"s_add_u32 s61, s61, {8*1024}")
    else: A("s_nop 0")
    A(f"buffer_load_dwordx4 v4, s[40:43], s61 offen {WF} lds")
LB("L_w0_nowd")
for i in range(16):
    A(f"s_mov_b32 m0, {WOI+1024*i}")
    if i: A(f"s_add_u32 s60, s60, {8*1024}")
    else: A("s_nop 0")
    A(f"buffer_load_dwordx4 v4, s[36:39], s60 offen {WF} lds")
ts()
A("s_barrier\ns_barrier")
A("s_waitcnt vmcnt(16)")
A(f"ds_write_b32 v12, v8 offset:{O_STAGE}")
ts()
A("s_waitcnt vmcnt(8)")
A(f"ds_write_b32 v12, v9 offset:{O_STAGE}")
ts()
A("s_waitcnt vmcnt(0)")
A(f"ds_write_b32 v12, v10 offset:{O_STAGE}")
ts()
A("s_mov_b32 s75, 1")
A("s_branch L_final0")

LB("L_w1_idle")
A("s_waitcnt lgkmcnt(0)")
ts0()
ws_srds()
epoch_load()
fconsts(); consts()
A("s_waitcnt lgkmcnt(0)")
tags()
A(f"v_mov_b32 v11, {CNT}\nv_mov_b32 v14, 1")
A("s_mov_b32 exec_lo, 1\ns_mov_b32 exec_hi, 0")
A(f"ds_add_u32 v11, v14 offset:{O_I}")
A("s_mov_b64 exec, -1")
A("s_barrier")
A("s_branch L_final")
LB("L_w1")
ts_reset()
A("s_cmp_eq_u32 s49, 0\ns_cbranch_scc1 L_w1_idle")
A("s_lshl_b32 s61, s53, 7")
A("s_waitcnt lgkmcnt(0)")
ts0()
A(f"s_add_u32 s61, s61, {XS}\nv_add_u32 v6, s61, v6")
ws_srds()
epoch_load()
fconsts(); consts()
for q4 in range(4): tr_addr(8 + q4, q4, 12, 13, GI)
A("v_lshlrev_b32 v5, 4, v0")
A("s_lshl_b32 s62, s55, 13")
A(f"s_add_u32 s62, s62, {hex(HX)}")
A("s_lshl_b32 s63, s53, 10\ns_add_u32 s63, s63, s62")
A("s_add_u32 s61, s62, 4096")
A(f"v_lshlrev_b32 v12, 1, v0\nv_add_u32 v12, {HS}, v12")
A(f"v_mov_b32 v13, {CNT+O_H}\nv_mov_b32 v14, 1")
A("s_waitcnt lgkmcnt(0)")
tags()
A("v_mov_b32 v4, s58")
A(f"v_mov_b32 v7, {CNT}")
lds_spin("L_gspin", 7, O_G, 4)
ts()
LB("L_d5")
for t in range(2): A(f"ds_read2_b64 v[{XA+4*t}:{XA+4*t+3}], v6 offset0:{8*t} offset1:{8*t+4}")
seq = [(mat, q4, t) for mat in range(2) for q4 in range(4) for t in range(2)]
BB1 = 24
AC1 = 88
def issue(k):
    mat, q4, t = seq[k]; tr_read(BB1 + 4 * k, 8 + q4, (UI - GI) if mat else 0, t)
for k in range(D): issue(k)
for k in range(16):
    mat, q4, t = seq[k]
    A(f"s_waitcnt lgkmcnt({2*(min(16,k+D)-k)-2})")
    acc = AC1 + 16 * mat + 4 * q4
    mfma(acc, XA + 4 * t, BB1 + 4 * k, None if t == 0 else acc)
    if k + D < 16: issue(k + D)
A("s_nop 7\ns_nop 1")
for mat in range(2):
    for r in range(2): select4([AC1 + 16 * mat + 4 * q + r for q in range(4)])
A("s_nop 0")
for mat in range(2):
    for r in range(2): A(f"v_permlane32_swap_b32 v{AC1+16*mat+r}, v{AC1+16*mat+8+r}")
A("s_nop 0")
stamp(120, [AC1, AC1 + 1, AC1 + 16, AC1 + 17], 4)
dry_end()
publish(120, 5, "s63")
ts()
HG = 16
def hgather(sr=FA):
    for rb in range(8):
        r = HG + 4 * rb
        A(f"buffer_load_dwordx4 v[{r}:{r+3}], v5, {sr}, s{62 - rb//4} offen offset:{(rb%4)*1024} sc1")
A(f"v_mov_b32 v11, {CNT}")
A("s_mov_b32 exec_lo, 1\ns_mov_b32 exec_hi, 0")
A(f"ds_add_u32 v11, v14 offset:{O_I}")
A("s_mov_b64 exec, -1")
lds_spin("L_hw", 11, O_V, 2)
hgather()
ts()
LB("L_d3")
A("s_waitcnt vmcnt(0)")
poll_check("L_hchk", [HG + 4 * i for i in range(8)], 96, hgather, tagcheck_dense, 4)
ts()
for c in range(32): A(f"v_and_b32 v{HG+c}, 0xffffff00, v{HG+c}")
for step in (16, 8, 4):
    for base in range(HG, HG + step, 4):
        for o in range(4):
            A(f"v_add_f32 v{base+o}, v{base+o}, v{base+step+o}")
bf16_round_pairs([16, 17, 18, 19], [24, 25])
A("v_mul_f32 v24, s70, v16\nv_mul_f32 v25, s70, v17")
A("v_exp_f32 v24, v24\nv_exp_f32 v25, v25")
A("s_nop 0")
A("v_add_f32 v24, 1.0, v24\nv_add_f32 v25, 1.0, v25")
A("v_rcp_f32 v24, v24\nv_rcp_f32 v25, v25")
A("s_nop 0")
A("v_mul_f32 v16, v16, v24\nv_mul_f32 v17, v17, v25")
bf16_round_pairs([16, 17], [24])
A("v_mul_f32 v16, v16, v18\nv_mul_f32 v17, v17, v19")
A("v_cvt_pk_bf16_f32 v24, v16, v17")
A("ds_write_b16 v12, v24")
A("ds_write_b16_d16_hi v12, v24 offset:128")
A("ds_write_b32 v13, v14")
ts()
hbar()

LB("L_final")
A("s_mov_b32 s75, 0")
LB("L_final0")
if TS: ts_n[0] = 8
tr_addr(8, "s30", 12, 13, WOI)
A(f"v_mov_b32 v12, {CNT}")
A(f"v_and_b32 v9, 1, v2\nv_lshlrev_b32 v10, 7, v9\nv_lshl_add_u32 v10, v3, 3, v10\nv_add_u32 v10, {HS}, v10")
A(f"v_lshlrev_b32 v9, 8, v9\nv_lshl_add_u32 v9, v3, 3, v9\nv_add_u32 v9, {OV}, v9")
A("v_lshrrev_b32 v11, 2, v2\nv_lshlrev_b32 v11, 11, v11\nv_and_b32 v13, 3, v2\nv_lshl_add_u32 v11, v13, 4, v11")
A("s_lshl_b32 s60, s53, 15\ns_lshl_b32 s61, s30, 13\ns_add_u32 s60, s60, s61\ns_lshl_b32 s61, s54, 6\ns_add_u32 s60, s60, s61")
A(f"s_add_u32 s60, s60, {hex(H2)}")
A(f"v_and_b32 v7, 31, v0\nv_mul_u32_u24 v7, {OBS}, v7")
A(f"s_mul_i32 s61, s31, {32*OBS}\ns_lshl_b32 s62, s52, 4\ns_add_u32 s61, s61, s62")
A(f"s_add_u32 s61, s61, {hex(H1+2048)}")
A(f"v_mov_b32 v13, {GT}")
A("ds_read_b128 v[60:63], v13")
A("v_mov_b32 v65, s58\nv_mov_b32 v67, s59")
A("v_mov_b32 v56, 0\nv_mov_b32 v57, 0")
A("s_cmp_eq_u32 s75, 1\ns_cbranch_scc1 L_nobp")
hbar()
LB("L_nobp")
def lgather(sr=FA):
    A(f"buffer_load_dwordx4 v[68:71], v7, {sr}, s61 offen sc1")
memgrp(lgather)
A("s_cmp_eq_u32 s49, 0\ns_cbranch_scc1 L_f_nofb")
lds_spin("L_fs1", 12, O_STAGE, 1)
for t in range(2): tr_read(16 + 4 * t, 8, WDI - WOI, t)
lds_spin("L_fs2", 12, O_H, 1)
for t in range(2):
    A(f"ds_read2_b64 v[{24+4*t}:{27+4*t}], v10 offset0:{8*t} offset1:{8*t+4}")
A("s_waitcnt lgkmcnt(0)")
mfma(56, 24, 16, None)
mfma(56, 28, 20, 56)
A("s_nop 7\ns_nop 1")
A("v_mul_f32 v56, v56, v62\nv_mul_f32 v57, v57, v63")
LB("L_f_nofb")
ts()
lds_spin("L_fs3", 12, O_STAGE, 3)
for t in range(4): tr_read(16 + 4 * t, 8, 0, t)
ts()
A("s_waitcnt vmcnt(0)")
poll_check("L_lchk", [68], 72, lgather)
A("v_mov_b32 v72, v70")
A("v_mov_b32 v73, v70")
for sh in (8, 4, 2, 1):
    A("s_nop 1")
    A(f"v_max_f32_dpp v73, v73, v73 row_ror:{sh} row_mask:0xf bank_mask:0xf")
A("v_sub_f32 v72, v72, v73\nv_mul_f32 v72, s69, v72\nv_exp_f32 v72, v72\ns_nop 0\nv_mul_f32 v72, v72, v68")
rowsum([72])
A("v_rcp_f32 v72, v72")
A("s_nop 1")
A("v_readlane_b32 s62, v72, 0\nv_readlane_b32 s63, v72, 16")
A("s_nop 1")
A("v_mul_f32 v60, s62, v60\nv_mul_f32 v61, s63, v61")
ts()
hbar()
for t in range(4):
    A(f"ds_read2_b64 v[{32+4*t}:{35+4*t}], v9 offset0:{8*t} offset1:{8*t+4}")
for t in range(4):
    A(f"s_waitcnt lgkmcnt({3-t})")
    mfma(48, 32 + 4 * t, 16 + 4 * t, None if t == 0 else 48)
exec_mask(0xffff, 0)
A("s_nop 6")
A("v_fma_f32 v64, v48, v60, v56\nv_fma_f32 v66, v49, v61, v57")
dry_end()
publish(64, 11, "s60", dual=False)
ts()
ts_dump()
LB("L_end")
A("s_endpgm")

L.append(f""".section .rodata,"a"
.p2align 6
.amdhsa_kernel {NAME}
  .amdhsa_next_free_vgpr 128
  .amdhsa_next_free_sgpr 102
  .amdhsa_accum_offset 128
  .amdhsa_group_segment_fixed_size 0
  .amdhsa_kernarg_size 104
  .amdhsa_user_sgpr_count 2
  .amdhsa_user_sgpr_kernarg_segment_ptr 1
  .amdhsa_system_sgpr_workgroup_id_x 1
.end_amdhsa_kernel""")
open(out, "w").write("\n".join(L) + "\n")
```

```python
import sys

OPT = dict(ts=0, kv_fl="nt", w_fl="nt", ka=4, w1e=1, w0p=1, vb=0, spin=400000, pst=0, dry=0, xb=9, slp=0, pre=0, prew=0, dual=1, bper=8, prio=3, lsl=0, spre=0)
out = sys.argv[1]
for a in sys.argv[2:]:
    k, v = a.split("=")
    OPT[k] = int(v) if v.lstrip("-").isdigit() else v.replace("+", " ").replace("none", "")
TS = OPT["ts"]

NAME = "gated_mix__sliding_block_cached__swiglu_ffn__decode_kernel"
HEADER = open("gated_mix__sliding_block_cached__swiglu_ffn__decode.s.ref").read().split("; Override launch")[0]

L = []
def A(s):
    for l in s.split("\n"):
        L.append("    " + l.strip())
def LB(s):
    L.append(s + ":")
def C(s):
    L.append("    ; " + s)

VI = 0
WQI = 65536
GI = 81920
UI = 90112
WOI = 65536
WDI = 81920
KI = 98304
SM = 155648
PS = SM
QS = SM + 2048
OV = SM + 3072
HS = SM + 3584
QT = SM + 3840
MX = SM + 4352
LS = SM + 4480
GT = SM + 4608
CNT = SM + 4624
O_Q, O_M, O_P, O_STAGE, O_H, O_K7, O_V, O_I, O_VL, O_B1, O_B2, O_B3, O_W, O_G = 0, 4, 8, 12, 16, 20, 24, 28, 32, 40, 44, 48, 52, 56
XS = SM + 4864
LDS_BYTES = SM + 4864 + 2048
WB = OPT.get('wb', 496) << 20
OBS = 2176
if OPT.get("compact", 1):
    QX = WB
    HX = WB + 0x20000
    H1 = WB + 0x58000
    MIR_ = 0xE0000
    H2 = WB + 0xE0000
    EPO = H1 + 2112
else:
    QX = WB + 0x10000
    HX = WB + 0x80000
    H1 = WB + 0x100000
    H2 = WB + 0x400000
    MIR_ = 0x800000
    EPO = 0
TSB = 0x800000

SCALE = 0x3DB504F3
LOG2E = 0x3FB8AA3B
NLOG2E = 0xBFB8AA3B
WF = OPT["w_fl"]

def srd(d, p, nbytes):
    A(f"s_mov_b32 s{d}, s{p}\ns_and_b32 s{d+1}, s{p+1}, 0xffff\ns_mov_b32 s{d+2}, {hex(nbytes)}\ns_mov_b32 s{d+3}, 0x20000")

ts_n = [0]
skip_n = [0]
def ts_reset():
    ts_n[0] = 1 if TS else 0
def ts():
    if not TS: return
    k = ts_n[0]; ts_n[0] += 1
    assert k < 16
    if TS == 3: return
    if TS == 6 and k != 12: return
    A(f"s_memrealtime s[72:73]\ns_waitcnt lgkmcnt(0)\nv_writelane_b32 v127, s72, {k}")
def ts_dump():
    if not TS or TS in (5, 6): return
    A("s_mov_b64 exec, -1")
    if TS == 2:
        skip_n[0] += 1
        lb = f"L_sk{skip_n[0]}"
        A(f"s_cmp_lg_u32 s2, {OPT.get('dbgwg', 0)}\ns_cbranch_scc1 {lb}")
        A(f"s_cmp_lg_u32 s30, {OPT.get('dbgwave', 11)}\ns_cbranch_scc1 {lb}")
        srd(76, 26, 256)
        A("v_readlane_b32 s60, v127, 0\ns_nop 1\nv_subrev_u32 v127, s60, v127")
        A("v_lshlrev_b32 v3, 2, v0")
        A("s_mov_b32 exec_lo, 0xffff\ns_mov_b32 exec_hi, 0")
        A("buffer_store_dword v127, v3, s[76:79], 0 offen")
        LB(lb)
        return
    A("s_mul_i32 s60, s2, 12\ns_add_u32 s60, s60, s30\ns_lshl_b32 s60, s60, 6")
    A(f"s_add_u32 s60, s60, {hex(TSB)}")
    A("v_lshlrev_b32 v3, 2, v0")
    A("s_mov_b32 exec_lo, 0xffff\ns_mov_b32 exec_hi, 0")
    A("buffer_store_dword v127, v3, s[44:47], s60 offen")

def tags():
    A("s_add_u32 s58, s56, 0x01010101\ns_add_u32 s59, s57, 0x9e3779b9")
    A("s_and_b32 s88, s58, 0xffff\ns_and_b32 s89, s58, 0xffff0000")

def tagcheck(bases, acc, t0, t1):
    first = True
    for b in bases:
        A(f"v_xor_b32 v{t0}, s58, v{b+1}")
        A(f"v_xor_b32 v{t1}, s59, v{b+3}")
        if first:
            A(f"v_or_b32 v{acc}, v{t0}, v{t1}"); first = False
        else:
            A(f"v_or3_b32 v{acc}, v{acc}, v{t0}, v{t1}")

def tagcheck_dense(bases, acc, t0, t1):
    first = True
    for b in bases:
        A(f"v_perm_b32 v{t0}, v{b+1}, v{b}, s92")
        A(f"v_perm_b32 v{t1}, v{b+3}, v{b+2}, s93")
        A(f"v_xor_b32 v{t0}, s88, v{t0}")
        A(f"v_xor_b32 v{t1}, s89, v{t1}")
        if first:
            A(f"v_or_b32 v{acc}, v{t0}, v{t1}"); first = False
        else:
            A(f"v_or3_b32 v{acc}, v{acc}, v{t0}, v{t1}")

def tagcheck_16(bases, acc, t0, t1):
    for i in range(0, len(bases), 2):
        b0 = bases[i]
        A(f"v_perm_b32 v{t0}, v{b0+1}, v{b0}, s92")
        A(f"v_xor_b32 v{t0}, s88, v{t0}")
        if i + 1 < len(bases):
            b1 = bases[i + 1]
            A(f"v_perm_b32 v{t1}, v{b1+1}, v{b1}, s92")
            A(f"v_xor_b32 v{t1}, s88, v{t1}")
            if i == 0: A(f"v_or_b32 v{acc}, v{t0}, v{t1}")
            else: A(f"v_or3_b32 v{acc}, v{acc}, v{t0}, v{t1}")
        else:
            if i == 0: A(f"v_mov_b32 v{acc}, v{t0}")
            else: A(f"v_or_b32 v{acc}, v{acc}, v{t0}")

def stamp(dst, srcs, tagv):
    for i in range(4):
        A(f"v_perm_b32 v{dst+i}, v{srcs[i]}, v{tagv}, s{94+i}")

def consts():
    A("s_mov_b32 s92, 0x0c0c0400\ns_mov_b32 s93, 0x04000c0c")
    A("s_mov_b32 s94, 0x07060500\ns_mov_b32 s95, 0x07060501\ns_mov_b32 s96, 0x07060502\ns_mov_b32 s97, 0x07060503")

def exec_mask(lo, hi):
    if not OPT["dry"]:
        A(f"s_mov_b32 exec_lo, {hex(lo)}")
        if hi is not None: A(f"s_mov_b32 exec_hi, {hex(hi)}")
        return
    A(f"s_and_b32 exec_lo, s90, {hex(lo)}" if lo != 0xffffffff else "s_mov_b32 exec_lo, s90")
    if hi is not None:
        A(f"s_and_b32 exec_hi, s91, {hex(hi)}" if hi else "s_mov_b32 exec_hi, 0")
def exec_all():
    A("s_mov_b64 exec, s[90:91]" if OPT["dry"] else "s_mov_b64 exec, -1")
def memgrp(fn):
    if not OPT["dry"]:
        fn(); return
    skip_n[0] += 1
    lb = f"L_sk{skip_n[0]}"
    A(f"s_cbranch_execz {lb}")
    fn()
    LB(lb)
def hbar():
    memgrp(lambda: A("s_barrier"))
def dry_end():
    if OPT["dry"]: A("s_cbranch_execz L_end")

MIR = MIR_
def ws_srds():
    srd(44, 28, 0x20000000)
    A(f"s_add_u32 s80, s28, {hex(MIR)}\ns_addc_u32 s81, s29, 0\ns_and_b32 s81, s81, 0xffff\ns_mov_b32 s82, {hex(0x20000000-MIR)}\ns_mov_b32 s83, 0x20000")
    A("s_mov_b32 s74, 0")

def publish(data, voff, soff, off=0, dual=True):
    o = f" offset:{off}" if off else ""
    if dual and OPT["dual"]:
        A(f"buffer_store_dwordx4 v[{data}:{data+3}], v{voff}, s[44:47], {soff} offen{o}")
    A(f"buffer_store_dwordx4 v[{data}:{data+3}], v{voff}, s[80:83], {soff} offen{o} sc1")

def poll_check(label, bases, tmp, reissue, chk=tagcheck, grp=1, dual=True):
    dual = dual and OPT["dual"]
    LB(label)
    chk(bases, tmp, tmp + 1, tmp + 2)
    if grp >= 4:
        A(f"s_nop 1\nv_or_b32_dpp v{tmp}, v{tmp}, v{tmp} quad_perm:[1,0,3,2] row_mask:0xf bank_mask:0xf")
        A(f"s_nop 1\nv_or_b32_dpp v{tmp}, v{tmp}, v{tmp} quad_perm:[2,3,0,1] row_mask:0xf bank_mask:0xf")
    if grp >= 8:
        A(f"s_nop 1\nv_or_b32_dpp v{tmp}, v{tmp}, v{tmp} row_half_mirror row_mask:0xf bank_mask:0xf")
    A(f"v_cmp_ne_u32 vcc, 0, v{tmp}")
    A("s_nop 1")
    A(f"s_cbranch_vccz {label}_ok")
    if OPT.get("nopoll"): A(f"s_branch {label}_ok")
    A(f"s_sub_u32 s67, s67, 1\ns_cbranch_scc1 {label}_ok")
    A("s_mov_b64 exec, vcc")
    if OPT["slp"]: A(f"s_sleep {OPT['slp']}")
    if dual:
        A(f"s_add_u32 s74, s74, 1\ns_and_b32 s75, s74, {OPT['bper']-1}\ns_cbranch_scc0 {label}_b")
        reissue("s[44:47]")
        A("s_waitcnt vmcnt(0)")
        A(f"s_branch {label}")
        LB(label + "_b")
    reissue("s[80:83]")
    A("s_waitcnt vmcnt(0)")
    A(f"s_branch {label}")
    LB(label + "_ok")
    exec_all()

def xrow_multi(op, vs, ts_, steps=("v_permlane16_swap_b32", "v_permlane32_swap_b32")):
    for sw in steps:
        for v, t in zip(vs, ts_):
            A(f"v_mov_b32 v{t}, v{v}")
        if len(vs) < 2: A("s_nop 1")
        elif len(vs) < 3: A("s_nop 0")
        for v, t in zip(vs, ts_):
            A(f"{sw} v{v}, v{t}")
        A("s_nop 0")
        for v, t in zip(vs, ts_):
            A(f"{op} v{v}, v{v}, v{t}")

def xrow_t4(v):
    A(f"v_permlane16_swap_b32 v{v}, v{v+1}")
    A(f"v_permlane16_swap_b32 v{v+2}, v{v+3}")
    A("s_nop 0")
    A(f"v_add_f32 v{v}, v{v}, v{v+1}")
    A(f"v_add_f32 v{v+2}, v{v+2}, v{v+3}")
    A("s_nop 1")
    A(f"v_permlane32_swap_b32 v{v}, v{v+2}")
    A("s_nop 0")
    A(f"v_add_f32 v{v}, v{v}, v{v+2}")

def transpose8(raw, dst, pairs=(0, 1, 2, 3)):
    for v in pairs:
        for w in range(4):
            a = raw + 4 * (2 * v) + w
            b = raw + 4 * (2 * v + 1) + w
            A(f"v_perm_b32 v{dst + 4*(2*w) + v}, v{b}, v{a}, s64")
            A(f"v_perm_b32 v{dst + 4*(2*w+1) + v}, v{b}, v{a}, s65")

def bf16_round_pairs(vs, tmp):
    n = len(vs) // 2
    for i in range(n):
        A(f"v_cvt_pk_bf16_f32 v{tmp[i]}, v{vs[2*i]}, v{vs[2*i+1]}")
    for i in range(n):
        A(f"v_lshlrev_b32 v{vs[2*i]}, 16, v{tmp[i]}")
        A(f"v_and_b32 v{vs[2*i+1]}, 0xffff0000, v{tmp[i]}")

def lds_spin(label, addr_v, off, val):
    if OPT["dry"]: A(f"s_cbranch_execz {label}_x")
    LB(label)
    A(f"ds_read_b32 v15, v{addr_v} offset:{off}")
    A("s_waitcnt lgkmcnt(0)")
    A("v_readfirstlane_b32 s66, v15")
    A("s_sub_u32 s67, s67, 1")
    A(f"s_cbranch_scc1 {label}_x")
    if OPT.get("lsl") and label in ("L_ispin",): A(f"s_sleep {OPT['lsl']}")
    if OPT.get("ksl") and label in ("L_qspin", "L_mspin", "L_pspin1"):
        A(f"s_cmp_ge_u32 s66, {val}\ns_cbranch_scc1 {label}_x\ns_sleep {OPT['ksl']}")
    A(f"s_cmp_lt_u32 s66, {val}")
    A(f"s_cbranch_scc1 {label}")
    LB(label + "_x")

def lds_spin_data(label, off, val, reads):
    lds_spin(label, 12, off, val)
    reads()
    A("s_waitcnt lgkmcnt(0)")

def rowsum(vs, shifts=(8, 4, 2, 1)):
    for sh in shifts:
        if len(vs) < 3: A("s_nop 1")
        for v in vs:
            A(f"v_add_f32_dpp v{v}, v{v}, v{v} row_ror:{sh} row_mask:0xf bank_mask:0xf")

def dma_voff(dst, stride_sreg_or_shift, t0, t1):
    A(f"v_bfe_u32 v{t0}, v0, 1, 2\nv_bfe_u32 v{t1}, v0, 4, 2\nv_xor_b32 v{t0}, v{t0}, v{t1}")
    A(f"v_and_b32 v{t1}, 1, v0\nv_lshl_add_u32 v{t0}, v{t0}, 1, v{t1}\nv_lshlrev_b32 v{t0}, 4, v{t0}")
    A(f"v_lshrrev_b32 v{t1}, 3, v0")
    if isinstance(stride_sreg_or_shift, int):
        A(f"v_lshl_add_u32 v{dst}, v{t1}, {stride_sreg_or_shift}, v{t0}")
    else:
        A(f"v_mul_lo_u32 v{t1}, v{t1}, {stride_sreg_or_shift}\nv_add_u32 v{dst}, v{t1}, v{t0}")

def tr_addr(dst, q4, t0, t1, base):
    A(f"v_bfe_u32 v{t0}, v0, 3, 2")
    A(f"v_xor_b32 v{t0}, {q4}, v{t0}")
    A(f"v_lshlrev_b32 v{t0}, 5, v{t0}")
    A(f"v_and_b32 v{t1}, 3, v0\nv_lshl_add_u32 v{t0}, v{t1}, 3, v{t0}")
    A(f"v_lshrrev_b32 v{t1}, 2, v0\nv_lshl_add_u32 v{dst}, v{t1}, 7, v{t0}")
    A(f"v_add_u32 v{dst}, {base}, v{dst}")

def tr_read(dst, addr_v, off, t):
    A(f"ds_read_b64_tr_b16 v[{dst}:{dst+1}], v{addr_v} offset:{off + 4096*t}")
    A(f"ds_read_b64_tr_b16 v[{dst+2}:{dst+3}], v{addr_v} offset:{off + 4096*t + 2048}")

def lds_spin2(label, addr_v, off, val):
    if OPT["dry"]: A(f"s_cbranch_execz {label}_x")
    LB(label)
    A(f"ds_read_b64 v[14:15], v{addr_v} offset:{off}")
    A("s_waitcnt lgkmcnt(0)")
    A("v_min_u32 v15, v14, v15")
    A("s_sub_u32 s67, s67, 1")
    A("v_readfirstlane_b32 s66, v15")
    A(f"s_cbranch_scc1 {label}_x")
    A(f"s_cmp_lt_u32 s66, {val}")
    A(f"s_cbranch_scc1 {label}")
    LB(label + "_x")

def bump(off):
    exec_mask(1, 0)
    A(f"ds_add_u32 v12, v13 offset:{off}")
    exec_all()

def mfma(d, a, b, c):
    cs = "0" if c is None else f"v[{c}:{c+3}]"
    A(f"v_mfma_f32_16x16x32_bf16 v[{d}:{d+3}], v[{a}:{a+3}], v[{b}:{b+3}], {cs}")

def select4(xs):
    A(f"v_permlane16_swap_b32 v{xs[0]}, v{xs[1]}")
    A(f"v_permlane16_swap_b32 v{xs[2]}, v{xs[3]}")

NWAVES = 16 if OPT["dry"] else 12
L.append(HEADER.rstrip())
L.append(f"; @launch grid=(256,1,1) block=({NWAVES*64},1,1) lds={LDS_BYTES}")
L.append("""; Fused decode step, one launch, 256 workgroups (one per CU) x 12 waves.
;   share an L2) and a write-through copy that is visible under any placement.""")
L.append('.amdgcn_target "amdgcn-amd-amdhsa--gfx950"')
L.append(".text")
L.append(f".globl {NAME}\n.p2align 8\n.type {NAME},@function\n{NAME}:")
A("s_cmp_ge_u32 s2, 256\ns_cbranch_scc1 L_end")
if OPT.get("xorwg"): A(f"s_xor_b32 s2, s2, {OPT['xorwg']}")
if OPT.get("remap"): A("s_and_b32 s3, s2, 31\ns_lshl_b32 s3, s3, 3\ns_lshr_b32 s2, s2, 5\ns_or_b32 s2, s2, s3")
if OPT.get("late"):
    A("s_and_b32 s31, s2, 7\ns_cmp_lg_u32 s31, 3\ns_cbranch_scc1 L_nolate")
    A(f"s_memrealtime s[72:73]\ns_waitcnt lgkmcnt(0)\ns_add_u32 s74, s72, {OPT['late']}")
    LB("L_late")
    A("s_memrealtime s[72:73]\ns_waitcnt lgkmcnt(0)\ns_sub_u32 s75, s72, s74\ns_cmp_lt_i32 s75, 0\ns_cbranch_scc1 L_late")
    LB("L_nolate")
A("v_lshrrev_b32 v1, 6, v0")
A("v_and_b32 v0, 63, v0")
A("s_and_b32 s31, s2, 7")
A("v_readfirstlane_b32 s30, v1")
A("s_nop 0")
A("s_cmp_lg_u32 s30, 2\ns_cbranch_scc1 L_noinit")
A(f"v_lshlrev_b32 v4, 2, v0\nv_add_u32 v4, {CNT}, v4\nv_mov_b32 v8, 0")
A("s_mov_b32 exec_lo, 0xffff\ns_mov_b32 exec_hi, 0")
A("ds_write_b32 v4, v8")
A("s_mov_b64 exec, -1")
A("s_waitcnt lgkmcnt(0)")
LB("L_noinit")
A("s_load_dwordx16 s[4:19], s[0:1], 0")
A("s_load_dwordx8 s[20:27], s[0:1], 64")
A("s_load_dwordx2 s[28:29], s[0:1], 96")
if TS or OPT.get("diag"): A("s_memrealtime s[72:73]")
A("s_barrier")
if OPT["dry"]:
    A("s_cmp_lt_u32 s30, 12\ns_cbranch_scc1 L_main")
    if OPT.get("cpf", 0):
        A("s_getpc_b64 s[60:61]")
        LB("L_pc")
        A(f"s_sub_u32 s62, s30, 12\ns_mul_i32 s62, s62, {OPT.get('cpf', 0)*128}")
        A(f"s_add_u32 s63, s62, {OPT.get('cpf', 0)*128}")
        LB("L_pf")
        A("s_load_dword s36, s[60:61], s62")
        A("s_add_u32 s62, s62, 128\ns_cmp_lt_u32 s62, s63\ns_cbranch_scc1 L_pf")
    A("s_branch L_helper")
    LB("L_main")
A("s_lshr_b32 s32, s2, 3")
A("s_lshr_b32 s33, s32, 4")
A("s_and_b32 s34, s32, 15")
A(f"s_mov_b32 s67, {OPT['spin']}")
if OPT["dry"]: A("s_mov_b64 s[90:91], -1")
A("v_and_b32 v2, 15, v0")
A("v_lshrrev_b32 v3, 4, v0")
A("s_lshr_b32 s52, s32, 3")
A("s_and_b32 s53, s32, 7")
A("s_lshl_b32 s54, s31, 2\ns_add_u32 s54, s54, s52")
A("s_lshl_b32 s50, s33, 3\ns_add_u32 s50, s50, s31\ns_lshl_b32 s50, s50, 23")
A("s_lshl_b32 s51, s34, 16\ns_add_u32 s50, s50, s51\ns_add_u32 s50, s50, 0x700000")
A(f"s_mul_i32 s51, s32, {OPT.get('rotm', 5)}\ns_add_u32 s51, s51, s31")
A("s_and_b32 s49, s54, 7\ns_cmp_lg_u32 s49, 7\ns_cselect_b32 s49, 1, 0")
A("s_lshr_b32 s55, s54, 3\ns_sub_u32 s55, s54, s55")
A("s_cmp_lt_u32 s30, 4\ns_cbranch_scc1 L_special")

def epoch_load():
    if EPO:
        A(f"s_mov_b32 s56, {hex(EPO)}\ns_load_dwordx2 s[56:57], s[28:29], s56")
    else:
        A("s_load_dwordx2 s[56:57], s[28:29], 0")
def fconsts():
    A(f"s_mov_b32 s68, {hex(SCALE)}\ns_mov_b32 s69, {hex(LOG2E)}\ns_mov_b32 s70, {hex(NLOG2E)}")
def ts0():
    if TS: A("v_writelane_b32 v127, s72, 0")

C("================= K / attention waves =================")
ts_reset()
A("s_sub_u32 s35, s30, 4")
A("s_lshl_b32 s62, s35, 1\ns_add_u32 s62, s62, s51")
A("s_add_u32 s63, s62, 1\ns_and_b32 s62, s62, 15\ns_and_b32 s63, s63, 15")
A("s_lshl_b32 s62, s62, 12\ns_lshl_b32 s63, s63, 12")
A("s_add_u32 s61, s50, s63\ns_add_u32 s60, s50, s62")
for u in range(4):
    A(f"v_add_u32 v{104+u}, {4*u}, v3\nv_xor_b32 v{104+u}, v{104+u}, v2\nv_lshlrev_b32 v{104+u}, 4, v{104+u}\nv_lshl_add_u32 v{104+u}, v3, 8, v{104+u}")
A(f"s_lshl_b32 s84, s35, 13\ns_add_u32 s84, s84, {KI}\ns_cmp_eq_u32 s35, 7\ns_cselect_b32 s84, {VI+57344}, s84")
A("s_add_u32 s85, s84, 4096")
dma_voff(112, 13, 114, 115)
A("s_movk_i32 s62, 3584\nv_mul_lo_u32 v113, v115, s62\nv_add_u32 v113, v113, v114")
A("s_lshl_b32 s62, s52, 20\ns_lshl_b32 s63, s31, 10\ns_add_u32 s62, s62, s63\ns_lshl_b32 s63, s53, 7\ns_add_u32 s62, s62, s63")
A("s_lshl_b32 s63, s35, 18\ns_add_u32 s62, s62, s63")
A(f"s_lshl_b32 s86, s35, 12\ns_add_u32 s86, s86, {WQI}")
A("s_lshl_b32 s87, s53, 2\ns_add_u32 s87, s87, s35\ns_mul_i32 s87, s87, 16*3584\ns_lshl_b32 s71, s55, 7\ns_add_u32 s87, s87, s71")
A(f"s_lshl_b32 s71, s35, 11\ns_add_u32 s71, s71, {GI}")
A("s_mov_b32 m0, s86")
A("s_cmp_lt_u32 s35, 4\ns_cselect_b32 s49, s49, 2")
A("s_waitcnt lgkmcnt(0)")
ts0()
A("s_cmp_eq_u32 s49, 2\ns_cbranch_scc1 L_nogu")
A("s_cmp_gt_u32 s35, 1\ns_cbranch_scc1 L_nox")
srd(76, 4, 2048)
A(f"s_lshl_b32 s63, s35, 10\ns_add_u32 m0, s63, {XS}\nv_lshlrev_b32 v114, 4, v0")
A("buffer_load_dwordx4 v114, s[76:79], s63 offen lds")
A("s_mov_b32 m0, s86")
LB("L_nox")
srd(40, 10, 0x400000)
for i in range(4):
    if i: A(f"s_add_u32 m0, s86, {1024*i}\ns_add_u32 s62, s62, 65536")
    A(f"buffer_load_dwordx4 v112, s[40:43], s62 offen {WF} lds")
A("s_cmp_eq_u32 s49, 0\ns_cbranch_scc1 L_nogu")
srd(76, 16, 512 * 3584)
A("s_mov_b32 m0, s71")
srd(92, 18, 512 * 3584)
for i in range(2):
    if i: A(f"s_add_u32 m0, s71, 1024\ns_add_u32 s87, s87, {8*3584}")
    A(f"buffer_load_dwordx4 v113, s[76:79], s87 offen {WF} lds")
    A(f"s_add_u32 m0, s71, {UI-GI+1024*i}\ns_nop 0")
    A(f"buffer_load_dwordx4 v113, s[92:95], s87 offen {WF} lds")
LB("L_nogu")
A("s_mov_b32 s86, s49")
if TS == 5: A("s_memrealtime s[72:73]\ns_waitcnt lgkmcnt(0)\nv_writelane_b32 v127, s72, 8")
srd(36, 6, 0x8000000)
KR, QR = 16, 80
KVF = OPT["kv_fl"]
def kload(i):
    t, u = i // 4, i % 4
    if u == 0: A(f"s_mov_b32 m0, s{84+t}\ns_nop 0")
    A(f"buffer_load_dwordx4 v{104+u}, s[36:39], s{60+t} offen offset:{u*1024} {KVF} lds")
def kread(t):
    for j in range(4):
        i = 4 * t + j
        A(f"ds_read_b128 v[{KR+4*i}:{KR+4*i+3}], v{108+j} offset:{4096*t}")
FA = "s[44:47]" if OPT["dual"] else "s[80:83]"
def qgather(sr=FA):
    A(f"buffer_load_dwordx4 v[{QR}:{QR+3}], v6, {sr}, s62 offen sc1")
KA, VB = OPT["ka"], OPT["vb"]
ws_srds()
epoch_load()
fconsts(); consts()
A("s_lshl_b32 s62, s31, 1\ns_add_u32 s62, s62, s33\ns_lshl_b32 s62, s62, 13")
A("s_lshl_b32 s63, s35, 8\ns_add_u32 s62, s62, s63")
A(f"s_add_u32 s62, s62, {hex(QX)}")
A("v_lshlrev_b32 v6, 11, v3\nv_lshl_add_u32 v6, v2, 4, v6")
A(f"v_mov_b32 v12, {CNT}\nv_mov_b32 v13, 1")
for j in range(4):
    A(f"v_add_u32 v{108+j}, {4*j}, v3\nv_xor_b32 v{108+j}, v{108+j}, v2\nv_lshlrev_b32 v{108+j}, 4, v{108+j}\nv_lshl_add_u32 v{108+j}, v2, 8, v{108+j}\nv_add_u32 v{108+j}, s84, v{108+j}")
KY = OPT.get("ky", 8)
A("s_cmp_lg_u32 s86, 2\ns_cbranch_scc1 L_old1")
if OPT.get("late2"):
    A("s_cmp_lg_u32 s31, 3\ns_cbranch_scc1 L_nla")
    A("v_readlane_b32 s74, v127, 0\ns_nop 3")
    A(f"s_add_u32 s74, s74, {OPT['late2']}")
    LB("L_la")
    A("s_memrealtime s[72:73]\ns_waitcnt lgkmcnt(0)\ns_sub_u32 s75, s72, s74\ns_cmp_lt_i32 s75, 0\ns_cbranch_scc1 L_la")
    A("s_mov_b32 s74, 0")
    LB("L_nla")
for i in range(KY): kload(i)
if TS == 5: A("s_memrealtime s[72:73]\ns_waitcnt lgkmcnt(0)\nv_writelane_b32 v127, s72, 9")
LB("L_old1")
A("v_and_b32 v14, 3, v2")
A(f"s_lshl_b32 s71, s35, 7\ns_add_u32 s71, s71, {QS}")
A("v_lshl_add_u32 v10, v2, 3, s71\nv_lshl_add_u32 v10, v3, 1, v10")
A(f"v_lshlrev_b32 v11, 8, v14\nv_lshl_add_u32 v11, v3, 4, v11\nv_add_u32 v11, {QS}, v11")
A(f"v_lshlrev_b32 v8, 5, v14\nv_add_u32 v8, {MX}, v8")
A("s_lshl_b32 s71, s35, 2\nv_add_u32 v9, s71, v8")
A(f"v_lshl_add_u32 v7, v3, 2, v14\nv_lshlrev_b32 v7, 4, v7\nv_add_u32 v7, {PS}, v7")
A("s_lshl_b32 s71, s35, 8\nv_add_u32 v5, s71, v7")
A("v_bfe_u32 v120, v0, 2, 3\nv_xor_b32 v120, s35, v120\nv_lshlrev_b32 v120, 5, v120")
A("v_and_b32 v121, 3, v0\nv_lshl_add_u32 v120, v121, 3, v120\nv_lshrrev_b32 v121, 2, v0\nv_lshl_add_u32 v120, v121, 8, v120")
A("v_lshlrev_b32 v121, 9, v14\nv_lshl_add_u32 v121, v3, 4, v121")
A(f"s_lshl_b32 s76, s31, 5\ns_add_u32 s49, s76, s32\ns_mul_i32 s49, s49, {OBS}\ns_add_u32 s49, s49, {hex(H1)}")
A("s_lshl_b32 s71, s35, 6\ns_add_u32 s48, s49, s71")
A(f"v_lshrrev_b32 v122, 3, v2\nv_lshl_add_u32 v122, v122, 4, v3\nv_mul_u32_u24 v122, {OBS}, v122")
A("v_and_b32 v123, 7, v2\nv_lshl_add_u32 v122, v123, 4, v122")
A(f"s_mul_i32 s76, s76, {OBS}\ns_add_u32 s76, s76, {hex(H1)}")
A("s_lshl_b32 s71, s52, 9\ns_add_u32 s76, s76, s71\ns_lshl_b32 s71, s35, 7\ns_add_u32 s76, s76, s71")
for i in range(1, 4): A(f"s_add_u32 s{76+i}, s76, {i*4*OBS}")
A(f"s_lshl_b32 s71, s35, 6\ns_add_u32 s71, s71, {OV}")
A("v_lshrrev_b32 v124, 3, v2\nv_lshlrev_b32 v124, 8, v124\nv_lshl_add_u32 v124, v123, 3, v124\nv_lshl_add_u32 v124, v3, 1, v124\nv_add_u32 v124, s71, v124")
A("s_waitcnt lgkmcnt(0)")
tags()
if TS == 5: A("s_memrealtime s[72:73]\ns_waitcnt lgkmcnt(0)\nv_writelane_b32 v127, s72, 10")
A("s_cmp_eq_u32 s86, 2\ns_cbranch_scc1 L_young")
A("s_cmp_eq_u32 s86, 0\ns_cbranch_scc1 L_nogu2")
A("s_waitcnt vmcnt(4)")
bump(O_W)
A("s_waitcnt vmcnt(0)")
bump(O_G)
A("s_branch L_gu3")
LB("L_nogu2")
A("s_waitcnt vmcnt(0)")
bump(O_W)
LB("L_gu3")
if OPT.get("late2"):
    A("s_cmp_lg_u32 s31, 3\ns_cbranch_scc1 L_nlb")
    A("v_readlane_b32 s74, v127, 0\ns_nop 3")
    A(f"s_add_u32 s74, s74, {OPT['late2']}")
    LB("L_lb")
    A("s_memrealtime s[72:73]\ns_waitcnt lgkmcnt(0)\ns_sub_u32 s75, s72, s74\ns_cmp_lt_i32 s75, 0\ns_cbranch_scc1 L_lb")
    A("s_mov_b32 s74, 0")
    LB("L_nlb")
KO = OPT.get("ko", 0)
for i in range(KO): kload(i)
lds_spin("L_b1", 12, O_B1, 1)
ts()
if KO % 4: A(f"s_mov_b32 m0, s{84 + KO//4}\ns_nop 0")
for i in range(KO, 8): kload(i)
if KY < 8:
    A("s_branch L_young2")
    LB("L_young")
    lds_spin("L_b1y", 12, O_B1, 1)
    if KY % 4: A(f"s_mov_b32 m0, s{84 + KY//4}\ns_nop 0")
    for i in range(KY, 8): kload(i)
    LB("L_young2")
else:
    LB("L_young")
bump(O_B3)
lds_spin("L_b3", 12, O_B3, 8)
ts()
qgather()
bump(O_B2)
VB2 = 0
ts()
if OPT.get("prio"): A(f"s_setprio {OPT['prio']}")
LB("L_d0")
if VB2:
    A("s_waitcnt vmcnt(1)")
    tagcheck_dense([QR], 88, 89, 90)
    A("v_cmp_ne_u32 vcc, 0, v88\ns_nop 1\ns_cbranch_vccz L_qchk_ok")
    A("s_waitcnt vmcnt(0)")
    for c in range(4): A(f"v_mov_b32 v{QR+c}, v{QR+4+c}")
    if TS: A("s_mov_b32 s74, 0x100")
else:
    A("s_waitcnt vmcnt(5)")
    kread(0)
    A("s_waitcnt vmcnt(1)")
    kread(1)
    A("s_cmp_lg_u32 s35, 7\ns_cbranch_scc1 L_nok7")
    A("s_waitcnt lgkmcnt(0)")
    bump(O_K7)
    LB("L_nok7")
    A("s_waitcnt vmcnt(0)")
poll_check("L_qchk", [QR], 88, qgather, tagcheck_dense, 4)
if TS: A("v_writelane_b32 v127, s74, 13")
ts()
for c in range(4): A(f"v_and_b32 v{QR+c}, 0xffffff00, v{QR+c}")
A("s_nop 0")
xrow_t4(QR)
A(f"v_cvt_pk_bf16_f32 v{QR}, v{QR}, v{QR}")
A(f"ds_write_b16 v10, v{QR}")
bump(O_Q)
def qreads():
    for j in range(4):
        A(f"ds_read_b128 v[{QR+4*j}:{QR+4*j+3}], v11 offset:{64*j}")
lds_spin_data("L_qspin", O_Q, 8, qreads)
for j in range(4):
    for t in range(2):
        k = KR + 4 * (4 * t + j)
        mfma(96 + 4 * t, k, QR + 4 * j, None if j == 0 else 96 + 4 * t)
A("s_nop 7\ns_nop 1")
S = list(range(96, 104))
bf16_round_pairs(S, [112, 113, 114, 115])
for v in S: A(f"v_mul_f32 v{v}, s68, v{v}")
bf16_round_pairs(S, [112, 113, 114, 115])
A("v_max3_f32 v116, v96, v97, v98\nv_max3_f32 v116, v116, v99, v100\nv_max3_f32 v116, v116, v101, v102\nv_max_f32 v116, v116, v103")
xrow_multi("v_max_f32", [116], [117])
exec_mask(0xf, 0)
A("ds_write_b32 v9, v116")
bump(O_M)
lds_spin_data("L_mspin", O_M, 8, lambda: A("ds_read_b128 v[104:107], v8\nds_read_b128 v[108:111], v8 offset:16"))
A("v_max3_f32 v116, v104, v105, v106\nv_max3_f32 v116, v116, v107, v108\nv_max3_f32 v116, v116, v109, v110\nv_max_f32 v116, v116, v111")
A("v_mul_f32 v117, s70, v116")
for v in S: A(f"v_fma_f32 v{v}, v{v}, s69, v117")
for v in S: A(f"v_exp_f32 v{v}, v{v}")
A("v_or_b32 v125, s88, v116")
for i in range(4): A(f"v_cvt_pk_bf16_f32 v{112+i}, v{96+2*i}, v{97+2*i}")
A("v_add_f32 v117, v96, v97\nv_add_f32 v118, v98, v99\nv_add_f32 v119, v100, v101\nv_add_f32 v104, v102, v103")
A("v_add_f32 v117, v117, v118\nv_add_f32 v119, v119, v104\nv_add_f32 v117, v117, v119")
exec_mask(0x000f000f, 0x000f000f)
A("ds_write_b128 v5, v[112:115]")
exec_all()
xrow_multi("v_add_f32", [117], [118])
exec_mask(0xf, 0)
A("ds_write_b32 v9, v117 offset:128")
bump(O_P)
PR, VO = 16, 48
def preads():
    A(f"ds_read_b64 v[118:119], v12 offset:{O_VL}")
    for k in range(8):
        A(f"ds_read_b128 v[{PR+4*k}:{PR+4*k+3}], v7 offset:{256*k}")
lds_spin_data("L_pspin1", O_P, 8, preads)
A("v_min_u32 v118, v118, v119")
A("s_nop 0")
A("v_readfirstlane_b32 s71, v118")
A("s_cmp_lg_u32 s35, 7\ns_cbranch_scc1 L_nol")
A("ds_read_b128 v[104:107], v8 offset:128\nds_read_b128 v[108:111], v8 offset:144")
A("v_lshlrev_b32 v10, 4, v2")
A("v_mov_b32 v97, s58\nv_mov_b32 v98, v116\nv_mov_b32 v99, s59")
A("s_waitcnt lgkmcnt(0)")
A("v_add_f32 v104, v104, v105\nv_add_f32 v106, v106, v107\nv_add_f32 v108, v108, v109\nv_add_f32 v110, v110, v111")
A("v_add_f32 v104, v104, v106\nv_add_f32 v108, v108, v110\nv_add_f32 v96, v104, v108")
exec_mask(0xf, 0)
memgrp(lambda: publish(96, 10, "s49", 2048))
exec_all()
LB("L_nol")
ts()
dry_end()
LB("L_d1")
def vstep(ks, first):
    for k in ks:
        A(f"ds_read_b64_tr_b16 v[{VO+4*k}:{VO+4*k+1}], v120 offset:{VI + 8192*k}")
        A(f"ds_read_b64_tr_b16 v[{VO+4*k+2}:{VO+4*k+3}], v120 offset:{VI + 8192*k + 4096}")
    for i, k in enumerate(ks):
        A(f"s_waitcnt lgkmcnt({2*(len(ks)-1-i)})")
        mfma(80, VO + 4 * k, PR + 4 * k, None if (first and i == 0) else 80)
A("s_cmp_lt_u32 s71, 7\ns_cbranch_scc1 L_vinc")
vstep([0, 1, 2, 3, 4, 5, 6], True)
A("s_cbranch_execnz L_vlast" if OPT["dry"] else "s_branch L_vlast")
LB("L_vinc")
lds_spin2("L_v1", 12, O_VL, 4)
vstep([0, 1, 2, 3], True)
lds_spin2("L_v2", 12, O_VL, 6)
vstep([4, 5], False)
lds_spin2("L_v3", 12, O_VL, 7)
vstep([6], False)
LB("L_vlast")
hbar()
ts()
vstep([7], False)
exec_mask(0x000f000f, 0x000f000f)
A("s_nop 5")
stamp(84, [80, 81, 82, 83], 125)
memgrp(lambda: publish(84, 121, "s48"))
exec_all()
hbar()
ts()
A("s_cmp_ge_u32 s35, 4\ns_cbranch_scc1 L_kv_h2")
GR = 80
def h1gather(sr=FA):
    for i in range(4):
        A(f"buffer_load_dwordx4 v[{GR+4*i}:{GR+4*i+3}], v122, {sr}, s{76+i} offen sc1")
ts()
memgrp(h1gather)
A("s_waitcnt vmcnt(0)")
ts()
poll_check("L_h1chk", [GR + 4 * i for i in range(4)], 116, h1gather, tagcheck_16, 8)
ts()
for i in range(4): A(f"v_perm_b32 v{100+i}, v{GR+4*i+3}, v{GR+4*i+2}, s93")
A("v_max3_f32 v116, v100, v101, v102\nv_max_f32 v116, v116, v103")
xrow_multi("v_max_f32", [116], [117])
A("v_mul_f32 v117, s70, v116")
for i in range(4): A(f"v_fma_f32 v{100+i}, v{100+i}, s69, v117")
for i in range(4): A(f"v_exp_f32 v{100+i}, v{100+i}")
for c in range(16): A(f"v_and_b32 v{GR+c}, 0xffffff00, v{GR+c}")
for c in range(4): A(f"v_mul_f32 v{104+c}, v100, v{GR+c}")
for i in range(1, 4):
    for c in range(4): A(f"v_fmac_f32 v{104+c}, v{100+i}, v{GR+4*i+c}")
A("s_nop 0")
xrow_t4(104)
A("v_cvt_pk_bf16_f32 v104, v104, v104")
A("ds_write_b16 v124, v104")
A("s_waitcnt lgkmcnt(0)")
hbar()
ts()
if OPT["dry"]: A("s_cbranch_execz L_d2")
A("s_branch L_kv_done")
LB("L_kv_h2")
A("s_cmp_lg_u32 s35, 7\ns_cbranch_scc1 L_kv_bo")
A("s_cmp_ge_u32 s2, 128\ns_cbranch_scc1 L_kv_bo")
LB("L_d2")
if TS: ts_n[0] = 12
srd(48, 24, 2048)
A("s_lshl_b32 s60, s2, 11")
A(f"s_add_u32 s60, s60, {hex(H2)}")
A("v_lshlrev_b32 v5, 4, v0")
def h2gather(sr="s[80:83]"):
    A(f"buffer_load_dwordx4 v[16:19], v5, {sr}, s60 offen sc1")
    A(f"buffer_load_dwordx4 v[20:23], v5, {sr}, s60 offen offset:1024 sc1")
A("v_mov_b32 v8, 0")
A("s_lshl_b32 s62, s2, 3")
hbar()
if TS == 5: A("s_memrealtime s[72:73]\ns_waitcnt lgkmcnt(0)\nv_writelane_b32 v127, s72, 11")
memgrp(h2gather)
A("s_waitcnt vmcnt(0)")
poll_check("L_h2chk", [16, 20], 24, h2gather, dual=False)
ts()
A("v_add_f32 v16, v16, v20\nv_add_f32 v18, v18, v22")
rowsum([16, 18], shifts=(8, 4))
xrow_multi("v_add_f32", [16, 18], [17, 19])
A("s_nop 0")
for i, qp in enumerate(("[1,1,1,1]", "[2,2,2,2]", "[3,3,3,3]")):
    A(f"v_mov_b32_dpp v{24+i}, v16 quad_perm:{qp} row_mask:0xf bank_mask:0xf")
    A(f"v_mov_b32_dpp v{28+i}, v18 quad_perm:{qp} row_mask:0xf bank_mask:0xf")
A("v_cvt_pk_bf16_f32 v32, v16, v24\nv_cvt_pk_bf16_f32 v33, v25, v26")
A("v_cvt_pk_bf16_f32 v34, v18, v28\nv_cvt_pk_bf16_f32 v35, v29, v30")
exec_mask(1, 0)
if OPT["dry"]: A("s_cbranch_execz L_spre")
A("buffer_store_dwordx2 v[32:33], v8, s[48:51], s62 offen")
A("buffer_store_dwordx2 v[34:35], v8, s[48:51], s62 offen offset:1024")
if OPT.get("diag"):
    if OPT.get("diaghi"):
        A(f"s_cmp_lt_u32 s2, {OPT.get('diaglo', 0)}\ns_cbranch_scc1 L_diagx\ns_cmp_ge_u32 s2, {OPT['diaghi']}\ns_cbranch_scc1 L_diagx")
    if OPT.get("diaglate"):
        A("v_readlane_b32 s73, v127, 12\nv_readlane_b32 s99, v127, 0\ns_nop 3\ns_sub_u32 s73, s73, s99")
        A(f"s_cmp_ge_u32 s73, {OPT['diaglate']}\ns_cbranch_scc1 L_diagx")
    A(f"v_readlane_b32 s73, v127, {OPT['diag']}\nv_readlane_b32 s99, v127, {OPT.get('diag0', 0)}")
    A("s_memrealtime s[100:101]\ns_waitcnt lgkmcnt(0)")
    A("s_sub_u32 s73, s73, s99")
    if OPT.get("diaginv"): A("s_min_u32 s73, s73, 1400\ns_sub_u32 s73, 1400, s73")
    A(f"s_mul_i32 s73, s73, {OPT.get('diagm', 8)}\ns_add_u32 s73, s73, s100")
    LB("L_diag")
    A("s_memrealtime s[98:99]\ns_waitcnt lgkmcnt(0)\ns_sub_u32 s99, s98, s73\ns_cmp_lt_i32 s99, 0\ns_cbranch_scc1 L_diag")
    LB("L_diagx")
A("s_cmp_lg_u32 s2, 0\ns_cbranch_scc1 L_kv_done")
A("v_mov_b32 v36, s58\nv_mov_b32 v37, s59")
A(f"s_mov_b32 s62, {hex(EPO)}")
A("buffer_store_dwordx2 v[36:37], v8, s[44:47], s62 offen sc1")
A("s_branch L_kv_done")
LB("L_kv_bo")
A("s_barrier")
LB("L_kv_done")
if TS:
    A("s_memrealtime s[72:73]\ns_waitcnt lgkmcnt(0)\nv_writelane_b32 v127, s72, 15")
ts_dump()
A("s_endpgm")

if OPT["dry"]:
    LB("L_helper")
    C("================= dry-run helpers: warm the instruction cache =================")
    for v in list(range(4, 16)) + list(range(104, 112)) + [120, 121, 122, 123, 124]: A(f"v_mov_b32 v{v}, 0")
    A("s_waitcnt lgkmcnt(0)")
    ws_srds()
    A("v_mov_b32 v2, 0\nv_mov_b32 v3, 0")
    A("s_mov_b32 s32, 0\ns_mov_b32 s52, 0\ns_mov_b32 s53, 0\ns_mov_b32 s54, 0\ns_mov_b32 s67, 0")
    A("s_mov_b64 s[90:91], 0\ns_mov_b64 exec, 0")
    A("s_mov_b32 s35, 7\ns_mov_b32 s48, 0\ns_mov_b32 s49, 1\ns_mov_b32 s60, 0\ns_mov_b32 s61, 0\ns_mov_b32 s62, 0\ns_mov_b32 s63, 0")
    A("s_cmp_eq_u32 s30, 12\ns_cbranch_scc1 L_d0")
    A("s_cmp_eq_u32 s30, 14\ns_cbranch_scc1 L_d5")
    A("s_cmp_eq_u32 s30, 15\ns_cbranch_scc1 L_d3")
    A("s_mov_b32 s35, 0\ns_mov_b32 s71, 8")
    A("s_branch L_d1")
    LB("L_spre")
    if OPT["spre"]:
        A(f"s_lshl_b32 s60, s31, 5\ns_add_u32 s60, s60, s32\ns_mul_i32 s60, s60, {OBS}\ns_add_u32 s60, s60, {hex(H1)}")
        A("s_add_u32 s62, s28, s60\ns_addc_u32 s63, s29, 0")
        if OPT["spre"] & 1:
            for i in range(17): A(f"s_load_dword s{4+(i%8)}, s[62:63], {128*i}")
        A(f"s_lshl_b32 s60, s2, 11\ns_add_u32 s60, s60, {hex(H2+MIR)}")
        A("s_add_u32 s62, s28, s60\ns_addc_u32 s63, s29, 0")
        if OPT["spre"] & 2:
            A("s_cmp_ge_u32 s2, 128\ns_cbranch_scc1 L_end")
            for i in range(16): A(f"s_load_dword s{4+(i%8)}, s[62:63], {128*i}")
    A("s_endpgm")

LB("L_special")
C("================= special waves =================")
ts_reset()
A("v_and_b32 v6, 1, v2\nv_lshlrev_b32 v6, 10, v6\nv_lshl_add_u32 v6, v3, 3, v6")
A("s_cmp_eq_u32 s30, 0\ns_cbranch_scc1 L_w0")
A("s_cmp_eq_u32 s30, 1\ns_cbranch_scc1 L_w1")
A("s_cmp_eq_u32 s30, 3\ns_cbranch_scc1 L_w3")
A("s_waitcnt lgkmcnt(0)")
ts0()
ws_srds()
epoch_load()
if OPT.get("tlbw", 0):
    A("v_mov_b32 v4, 0")
    A("s_mov_b32 exec_lo, 1\ns_mov_b32 exec_hi, 0")
    srd(36, 24, 2048)
    A("buffer_load_dword v16, v4, s[36:39], 0 offen")
    srd(40, 8, 0x8000000)
    A(f"buffer_load_dword v17, v4, s[40:43], s50 offen {KVF}")
    srd(76, 12, 0x400000)
    A("s_lshl_b32 s60, s54, 17")
    A(f"buffer_load_dword v18, v4, s[76:79], s60 offen {WF}")
    srd(84, 20, 1792 * 1024)
    A("s_lshl_b32 s60, s55, 16")
    A(f"buffer_load_dword v19, v4, s[84:87], s60 offen {WF}")
    A("s_mov_b64 exec, -1")
if OPT["dry"]:
    for v in range(4, 16): A(f"v_mov_b32 v{v}, 0")
    A("s_mov_b64 exec, 0")
    A("s_branch L_d4")
LB("L_w2ret")
A("s_mov_b64 exec, -1")
fconsts(); consts()
A("s_waitcnt lgkmcnt(0)")
tags()
A("s_branch L_vload")

LB("L_w3")
A("v_lshlrev_b32 v5, 4, v0")
A("s_waitcnt lgkmcnt(0)")
ts0()
srd(36, 4, 2048)
srd(40, 22, 1024)
A("buffer_load_dwordx4 v[16:19], v5, s[36:39], 0 offen")
A("buffer_load_dwordx4 v[20:23], v5, s[36:39], 0 offen offset:1024")
A("buffer_load_dwordx4 v[24:27], v5, s[40:43], 0 offen")
ws_srds()
epoch_load()
fconsts(); consts()
A("s_waitcnt vmcnt(0)")
for src, dst in ((24, 32), (16, 40), (20, 48)):
    for w in range(4):
        A(f"v_lshlrev_b32 v{dst+2*w}, 16, v{src+w}\nv_and_b32 v{dst+2*w+1}, 0xffff0000, v{src+w}")
for b in range(2):
    for e in range(8):
        A(f"v_mul_f32 v{40+8*b+e}, v{40+8*b+e}, v{32+e}")
bf16_round_pairs(list(range(40, 56)), list(range(16, 24)))
for b in range(2):
    o = 40 + 8 * b
    A(f"v_add_f32 v{o}, v{o}, v{o+1}\nv_add_f32 v{o+2}, v{o+2}, v{o+3}\nv_add_f32 v{o+4}, v{o+4}, v{o+5}\nv_add_f32 v{o+6}, v{o+6}, v{o+7}")
    A(f"v_add_f32 v{o}, v{o}, v{o+2}\nv_add_f32 v{o+4}, v{o+4}, v{o+6}\nv_add_f32 v{o}, v{o}, v{o+4}")
rowsum([40, 48])
xrow_multi("v_add_f32", [40, 48], [41, 49])
A("v_mov_b32 v41, v48")
bf16_round_pairs([40, 41], [16])
A("v_mul_f32 v40, s70, v40\nv_mul_f32 v41, s70, v41")
A("v_exp_f32 v40, v40\nv_exp_f32 v41, v41")
A("s_nop 0")
A("v_add_f32 v40, 1.0, v40\nv_add_f32 v41, 1.0, v41")
A("v_rcp_f32 v40, v40\nv_rcp_f32 v41, v41")
A("s_nop 0")
bf16_round_pairs([40, 41], [16])
A("v_sub_f32 v42, 1.0, v40\nv_sub_f32 v43, 1.0, v41")
bf16_round_pairs([42, 43], [16])
A(f"v_mov_b32 v4, {GT}")
A("ds_write_b128 v4, v[40:43]")
A("s_waitcnt lgkmcnt(0)")
tags()

LB("L_vload")
srd(40, 8, 0x8000000)
A("s_sub_u32 s35, s30, 2")
A("s_lshl_b32 s60, s35, 2\nv_add_u32 v4, s60, v3\nv_lshrrev_b32 v5, 1, v2\nv_xor_b32 v4, v4, v5")
A("v_and_b32 v5, 1, v2\nv_lshl_add_u32 v4, v4, 1, v5\nv_lshlrev_b32 v4, 4, v4\nv_lshl_add_u32 v4, v3, 8, v4")
A("s_lshl_b32 s61, s35, 10\ns_add_u32 s62, s50, s61")
A("s_and_b32 s60, s51, 15\ns_lshl_b32 s60, s60, 12")
A(f"v_mov_b32 v12, {CNT}\nv_mov_b32 v13, 1")
A(f"s_lshl_b32 s63, s35, 2\ns_add_u32 s63, s63, {CNT+O_VL}\nv_mov_b32 v11, s63")
A("v_mov_b32 v8, 4\nv_mov_b32 v9, 6\nv_mov_b32 v10, 8\nv_mov_b32 v7, 7")
def vblk(i):
    A(f"s_add_u32 s63, s62, s60\ns_add_u32 m0, s61, {VI + 4096*i}")
    A("s_add_u32 s60, s60, 4096\ns_and_b32 s60, s60, 0xffff")
    A(f"buffer_load_dwordx4 v4, s[40:43], s63 offen {KVF} lds")
    A(f"buffer_load_dwordx4 v4, s[40:43], s63 offen offset:2048 {KVF} lds")
lds_spin("L_b2", 12, O_B2, 8)
VB = 0
IB = OPT.get("ib", 16)
for i in range(2 * VB, 17):
    if VB2 and i == 2 * VB + VB2: A("s_barrier\ns_barrier")
    if i == max(IB, 2 * VB):
        A("s_mov_b32 exec_lo, 1\ns_mov_b32 exec_hi, 0")
        A(f"ds_add_u32 v12, v13 offset:{O_I}")
        A("s_mov_b64 exec, -1")
    if OPT.get("w1e") and i == OPT.get("hb", 6):
        A("s_mov_b32 exec_lo, 1\ns_mov_b32 exec_hi, 0")
        A(f"ds_add_u32 v12, v13 offset:{O_V}")
        A("s_mov_b64 exec, -1")
    if OPT.get("xb") and i == OPT["xb"]: lds_spin("L_xbspin", 12, O_Q, 8)
    if i == 14: lds_spin("L_k7spin", 12, O_K7, 1)
    if i < 16: vblk(i)
A("s_mov_b32 exec_lo, 1\ns_mov_b32 exec_hi, 0")
ts()
A("s_waitcnt vmcnt(16)")
A("ds_write_b32 v11, v8")
ts()
A("s_waitcnt vmcnt(8)")
A("ds_write_b32 v11, v9")
A("s_waitcnt vmcnt(4)")
A("ds_write_b32 v11, v7")
A("s_mov_b64 exec, -1")
A("s_waitcnt vmcnt(0)")
A("s_barrier")
ts()
A("s_branch L_final")

LB("L_w0")
ts_reset()
if OPT.get("w0p"): A("s_setprio 3")
A("s_lshl_b32 s61, s52, 8")
A("s_waitcnt lgkmcnt(0)")
ts0()
XA, BB, AC = 16, 32, 96
A(f"s_add_u32 s61, s61, {XS}\nv_add_u32 v6, s61, v6")
ws_srds()
epoch_load()
fconsts(); consts()
for q4 in range(4): tr_addr(8 + q4, q4, 12, 13, WQI)
A(f"v_lshlrev_b32 v12, 2, v0\nv_add_u32 v12, {QT}, v12\nv_and_b32 v13, 31, v0\nv_lshlrev_b32 v13, 4, v13\nv_add_u32 v13, {QT}, v13")
A("v_and_b32 v14, 1, v3\nv_lshlrev_b32 v14, 13, v14\nv_lshl_add_u32 v14, v2, 4, v14")
A("s_lshl_b32 s62, s31, 14\ns_lshl_b32 s63, s52, 11\ns_add_u32 s62, s62, s63\ns_lshl_b32 s63, s53, 8\ns_add_u32 s62, s62, s63")
A(f"s_add_u32 s62, s62, {hex(QX)}")
A("s_waitcnt lgkmcnt(0)")
tags()
A("v_mov_b32 v5, s58")
A(f"v_mov_b32 v4, {CNT}")
lds_spin("L_wspin", 4, O_W, 4)
ts()
LB("L_d4")
for t in range(4): A(f"ds_read2_b64 v[{XA+4*t}:{XA+4*t+3}], v6 offset0:{8*t} offset1:{8*t+4}")
seq = [(q4, t) for q4 in range(4) for t in range(4)]
D = 5
def issue(k):
    q4, t = seq[k]; tr_read(BB + 4 * k, 8 + q4, 0, t)
for k in range(D): issue(k)
for k in range(16):
    q4, t = seq[k]
    A(f"s_waitcnt lgkmcnt({2*(min(16,k+D)-k)-2})")
    mfma(AC + 4 * q4, XA + 4 * t, BB + 4 * k, None if t == 0 else AC + 4 * q4)
    if k + D < 16: issue(k + D)
A("s_nop 7\ns_nop 1")
for r in range(2): select4([AC + 4 * q + r for q in range(4)])
A("s_nop 0")
for r in range(2): A(f"v_permlane32_swap_b32 v{AC+r}, v{AC+8+r}")
A("s_nop 0")
A(f"ds_write_b32 v12, v{AC}\nds_write_b32 v12, v{AC+1} offset:256")
A("ds_read_b128 v[116:119], v13")
A("s_waitcnt lgkmcnt(0)")
stamp(112, [116, 117, 118, 119], 5)
A("s_mov_b32 exec_hi, 0")
if OPT["dry"]: A("s_cbranch_execz L_w2ret")
publish(112, 14, "s62")
A(f"v_mov_b32 v12, {CNT}\nv_mov_b32 v8, 1")
A(f"ds_write_b32 v12, v8 offset:{O_B1}")
if OPT.get("w0p"): A("s_setprio 0")
A("s_mov_b64 exec, -1")
ts()
srd(36, 12, 0x400000)
srd(40, 20, 1792 * 1024)
dma_voff(4, 10, 8, 9)
if OPT.get("cshift"):
    A(f"s_add_u32 s63, s53, {OPT['cshift']}\ns_and_b32 s63, s63, 7\ns_lshl_b32 s63, s63, 7\ns_lshl_b32 s60, s54, 17\ns_add_u32 s60, s60, s63")
else:
  A("s_lshl_b32 s60, s54, 17\ns_lshl_b32 s63, s53, 7\ns_add_u32 s60, s60, s63")
A("s_lshl_b32 s61, s55, 16\ns_add_u32 s61, s61, s63")
A(f"v_mov_b32 v12, {CNT}\nv_mov_b32 v8, 1\nv_mov_b32 v9, 2\nv_mov_b32 v10, 3")
lds_spin("L_ispin", 12, O_I, 3)
ts()
A("s_cmp_eq_u32 s49, 0\ns_cbranch_scc1 L_w0_nowd")
for i in range(8):
    A(f"s_mov_b32 m0, {WDI+1024*i}")
    if i: A(f"s_add_u32 s61, s61, {8*1024}")
    else: A("s_nop 0")
    A(f"buffer_load_dwordx4 v4, s[40:43], s61 offen {WF} lds")
LB("L_w0_nowd")
for i in range(16):
    A(f"s_mov_b32 m0, {WOI+1024*i}")
    if i: A(f"s_add_u32 s60, s60, {8*1024}")
    else: A("s_nop 0")
    A(f"buffer_load_dwordx4 v4, s[36:39], s60 offen {WF} lds")
ts()
A("s_barrier\ns_barrier")
A("s_waitcnt vmcnt(16)")
A(f"ds_write_b32 v12, v8 offset:{O_STAGE}")
ts()
A("s_waitcnt vmcnt(8)")
A(f"ds_write_b32 v12, v9 offset:{O_STAGE}")
ts()
A("s_waitcnt vmcnt(0)")
A(f"ds_write_b32 v12, v10 offset:{O_STAGE}")
ts()
A("s_mov_b32 s75, 1")
A("s_branch L_final0")

LB("L_w1_idle")
A("s_waitcnt lgkmcnt(0)")
ts0()
ws_srds()
epoch_load()
fconsts(); consts()
A("s_waitcnt lgkmcnt(0)")
tags()
A(f"v_mov_b32 v11, {CNT}\nv_mov_b32 v14, 1")
A("s_mov_b32 exec_lo, 1\ns_mov_b32 exec_hi, 0")
A(f"ds_add_u32 v11, v14 offset:{O_I}")
A("s_mov_b64 exec, -1")
A("s_barrier")
A("s_branch L_final")
LB("L_w1")
ts_reset()
A("s_cmp_eq_u32 s49, 0\ns_cbranch_scc1 L_w1_idle")
A("s_lshl_b32 s61, s53, 7")
A("s_waitcnt lgkmcnt(0)")
ts0()
A(f"s_add_u32 s61, s61, {XS}\nv_add_u32 v6, s61, v6")
ws_srds()
epoch_load()
fconsts(); consts()
for q4 in range(4): tr_addr(8 + q4, q4, 12, 13, GI)
A("v_lshlrev_b32 v5, 4, v0")
A("s_lshl_b32 s62, s55, 13")
A(f"s_add_u32 s62, s62, {hex(HX)}")
A("s_lshl_b32 s63, s53, 10\ns_add_u32 s63, s63, s62")
A("s_add_u32 s61, s62, 4096")
A(f"v_lshlrev_b32 v12, 1, v0\nv_add_u32 v12, {HS}, v12")
A(f"v_mov_b32 v13, {CNT+O_H}\nv_mov_b32 v14, 1")
A("s_waitcnt lgkmcnt(0)")
tags()
A("v_mov_b32 v4, s58")
A(f"v_mov_b32 v7, {CNT}")
lds_spin("L_gspin", 7, O_G, 4)
ts()
LB("L_d5")
for t in range(2): A(f"ds_read2_b64 v[{XA+4*t}:{XA+4*t+3}], v6 offset0:{8*t} offset1:{8*t+4}")
seq = [(mat, q4, t) for mat in range(2) for q4 in range(4) for t in range(2)]
BB1 = 24
AC1 = 88
def issue(k):
    mat, q4, t = seq[k]; tr_read(BB1 + 4 * k, 8 + q4, (UI - GI) if mat else 0, t)
for k in range(D): issue(k)
for k in range(16):
    mat, q4, t = seq[k]
    A(f"s_waitcnt lgkmcnt({2*(min(16,k+D)-k)-2})")
    acc = AC1 + 16 * mat + 4 * q4
    mfma(acc, XA + 4 * t, BB1 + 4 * k, None if t == 0 else acc)
    if k + D < 16: issue(k + D)
A("s_nop 7\ns_nop 1")
for mat in range(2):
    for r in range(2): select4([AC1 + 16 * mat + 4 * q + r for q in range(4)])
A("s_nop 0")
for mat in range(2):
    for r in range(2): A(f"v_permlane32_swap_b32 v{AC1+16*mat+r}, v{AC1+16*mat+8+r}")
A("s_nop 0")
stamp(120, [AC1, AC1 + 1, AC1 + 16, AC1 + 17], 4)
dry_end()
publish(120, 5, "s63")
ts()
HG = 16
def hgather(sr=FA):
    for rb in range(8):
        r = HG + 4 * rb
        A(f"buffer_load_dwordx4 v[{r}:{r+3}], v5, {sr}, s{62 - rb//4} offen offset:{(rb%4)*1024} sc1")
A(f"v_mov_b32 v11, {CNT}")
A("s_mov_b32 exec_lo, 1\ns_mov_b32 exec_hi, 0")
A(f"ds_add_u32 v11, v14 offset:{O_I}")
A("s_mov_b64 exec, -1")
lds_spin("L_hw", 11, O_V, 2)
hgather()
ts()
LB("L_d3")
A("s_waitcnt vmcnt(0)")
poll_check("L_hchk", [HG + 4 * i for i in range(8)], 96, hgather, tagcheck_dense, 4)
ts()
for c in range(32): A(f"v_and_b32 v{HG+c}, 0xffffff00, v{HG+c}")
for step in (16, 8, 4):
    for base in range(HG, HG + step, 4):
        for o in range(4):
            A(f"v_add_f32 v{base+o}, v{base+o}, v{base+step+o}")
bf16_round_pairs([16, 17, 18, 19], [24, 25])
A("v_mul_f32 v24, s70, v16\nv_mul_f32 v25, s70, v17")
A("v_exp_f32 v24, v24\nv_exp_f32 v25, v25")
A("s_nop 0")
A("v_add_f32 v24, 1.0, v24\nv_add_f32 v25, 1.0, v25")
A("v_rcp_f32 v24, v24\nv_rcp_f32 v25, v25")
A("s_nop 0")
A("v_mul_f32 v16, v16, v24\nv_mul_f32 v17, v17, v25")
bf16_round_pairs([16, 17], [24])
A("v_mul_f32 v16, v16, v18\nv_mul_f32 v17, v17, v19")
A("v_cvt_pk_bf16_f32 v24, v16, v17")
A("ds_write_b16 v12, v24")
A("ds_write_b16_d16_hi v12, v24 offset:128")
A("ds_write_b32 v13, v14")
ts()
hbar()

LB("L_final")
A("s_mov_b32 s75, 0")
LB("L_final0")
if TS: ts_n[0] = 8
tr_addr(8, "s30", 12, 13, WOI)
A(f"v_mov_b32 v12, {CNT}")
A(f"v_and_b32 v9, 1, v2\nv_lshlrev_b32 v10, 7, v9\nv_lshl_add_u32 v10, v3, 3, v10\nv_add_u32 v10, {HS}, v10")
A(f"v_lshlrev_b32 v9, 8, v9\nv_lshl_add_u32 v9, v3, 3, v9\nv_add_u32 v9, {OV}, v9")
A("v_lshrrev_b32 v11, 2, v2\nv_lshlrev_b32 v11, 11, v11\nv_and_b32 v13, 3, v2\nv_lshl_add_u32 v11, v13, 4, v11")
A("s_lshl_b32 s60, s53, 15\ns_lshl_b32 s61, s30, 13\ns_add_u32 s60, s60, s61\ns_lshl_b32 s61, s54, 6\ns_add_u32 s60, s60, s61")
A(f"s_add_u32 s60, s60, {hex(H2)}")
A(f"v_and_b32 v7, 31, v0\nv_mul_u32_u24 v7, {OBS}, v7")
A(f"s_mul_i32 s61, s31, {32*OBS}\ns_lshl_b32 s62, s52, 4\ns_add_u32 s61, s61, s62")
A(f"s_add_u32 s61, s61, {hex(H1+2048)}")
A(f"v_mov_b32 v13, {GT}")
A("ds_read_b128 v[60:63], v13")
A("v_mov_b32 v65, s58\nv_mov_b32 v67, s59")
A("v_mov_b32 v56, 0\nv_mov_b32 v57, 0")
A("s_cmp_eq_u32 s75, 1\ns_cbranch_scc1 L_nobp")
hbar()
LB("L_nobp")
def lgather(sr=FA):
    A(f"buffer_load_dwordx4 v[68:71], v7, {sr}, s61 offen sc1")
memgrp(lgather)
A("s_cmp_eq_u32 s49, 0\ns_cbranch_scc1 L_f_nofb")
lds_spin("L_fs1", 12, O_STAGE, 1)
for t in range(2): tr_read(16 + 4 * t, 8, WDI - WOI, t)
lds_spin("L_fs2", 12, O_H, 1)
for t in range(2):
    A(f"ds_read2_b64 v[{24+4*t}:{27+4*t}], v10 offset0:{8*t} offset1:{8*t+4}")
A("s_waitcnt lgkmcnt(0)")
mfma(56, 24, 16, None)
mfma(56, 28, 20, 56)
A("s_nop 7\ns_nop 1")
A("v_mul_f32 v56, v56, v62\nv_mul_f32 v57, v57, v63")
LB("L_f_nofb")
ts()
lds_spin("L_fs3", 12, O_STAGE, 3)
for t in range(4): tr_read(16 + 4 * t, 8, 0, t)
ts()
A("s_waitcnt vmcnt(0)")
poll_check("L_lchk", [68], 72, lgather)
A("v_mov_b32 v72, v70")
A("v_mov_b32 v73, v70")
for sh in (8, 4, 2, 1):
    A("s_nop 1")
    A(f"v_max_f32_dpp v73, v73, v73 row_ror:{sh} row_mask:0xf bank_mask:0xf")
A("v_sub_f32 v72, v72, v73\nv_mul_f32 v72, s69, v72\nv_exp_f32 v72, v72\ns_nop 0\nv_mul_f32 v72, v72, v68")
rowsum([72])
A("v_rcp_f32 v72, v72")
A("s_nop 1")
A("v_readlane_b32 s62, v72, 0\nv_readlane_b32 s63, v72, 16")
A("s_nop 1")
A("v_mul_f32 v60, s62, v60\nv_mul_f32 v61, s63, v61")
ts()
hbar()
for t in range(4):
    A(f"ds_read2_b64 v[{32+4*t}:{35+4*t}], v9 offset0:{8*t} offset1:{8*t+4}")
for t in range(4):
    A(f"s_waitcnt lgkmcnt({3-t})")
    mfma(48, 32 + 4 * t, 16 + 4 * t, None if t == 0 else 48)
exec_mask(0xffff, 0)
A("s_nop 6")
A("v_fma_f32 v64, v48, v60, v56\nv_fma_f32 v66, v49, v61, v57")
dry_end()
publish(64, 11, "s60", dual=False)
ts()
ts_dump()
LB("L_end")
A("s_endpgm")

L.append(f""".section .rodata,"a"
.p2align 6
.amdhsa_kernel {NAME}
  .amdhsa_next_free_vgpr 128
  .amdhsa_next_free_sgpr 102
  .amdhsa_accum_offset 128
  .amdhsa_group_segment_fixed_size 0
  .amdhsa_kernarg_size 104
  .amdhsa_user_sgpr_count 2
  .amdhsa_user_sgpr_kernarg_segment_ptr 1
  .amdhsa_system_sgpr_workgroup_id_x 1
.end_amdhsa_kernel""")
open(out, "w").write("\n".join(L) + "\n")
```

```python
import sys

OPT = dict(ts=0, kv_fl="nt", w_fl="nt", ka=4, w1e=1, w0p=1, vb=0, spin=400000, pst=0, dry=0, xb=9, slp=0, pre=0, prew=0, dual=1, bper=8, prio=3, lsl=0, spre=0)
out = sys.argv[1]
for a in sys.argv[2:]:
    k, v = a.split("=")
    OPT[k] = int(v) if v.lstrip("-").isdigit() else v.replace("+", " ").replace("none", "")
TS = OPT["ts"]

NAME = "gated_mix__sliding_block_cached__swiglu_ffn__decode_kernel"
HEADER = open("gated_mix__sliding_block_cached__swiglu_ffn__decode.s.ref").read().split("; Override launch")[0]

L = []
def A(s):
    for l in s.split("\n"):
        L.append("    " + l.strip())
def LB(s):
    L.append(s + ":")
def C(s):
    L.append("    ; " + s)

VI = 0
WQI = 65536
GI = 81920
UI = 90112
WOI = 65536
WDI = 81920
KI = 98304
SM = 155648
PS = SM
QS = SM + 2048
OV = SM + 3072
HS = SM + 3584
QT = SM + 3840
MX = SM + 4352
LS = SM + 4480
GT = SM + 4608
CNT = SM + 4624
O_Q, O_M, O_P, O_STAGE, O_H, O_K7, O_V, O_I, O_VL, O_B1, O_B2, O_B3, O_W, O_G = 0, 4, 8, 12, 16, 20, 24, 28, 32, 40, 44, 48, 52, 56
XS = SM + 4864
LDS_BYTES = SM + 4864 + 2048
WB = OPT.get('wb', 496) << 20
OBS = 2176
if OPT.get("compact", 1):
    QX = WB
    HX = WB + 0x20000
    H1 = WB + 0x58000
    MIR_ = 0xE0000
    H2 = WB + 0xE0000
    EPO = H1 + 2112
else:
    QX = WB + 0x10000
    HX = WB + 0x80000
    H1 = WB + 0x100000
    H2 = WB + 0x400000
    MIR_ = 0x800000
    EPO = 0
TSB = 0x800000

SCALE = 0x3DB504F3
LOG2E = 0x3FB8AA3B
NLOG2E = 0xBFB8AA3B
WF = OPT["w_fl"]

def srd(d, p, nbytes):
    A(f"s_mov_b32 s{d}, s{p}\ns_and_b32 s{d+1}, s{p+1}, 0xffff\ns_mov_b32 s{d+2}, {hex(nbytes)}\ns_mov_b32 s{d+3}, 0x20000")

ts_n = [0]
skip_n = [0]
def ts_reset():
    ts_n[0] = 1 if TS else 0
def ts():
    if not TS: return
    k = ts_n[0]; ts_n[0] += 1
    assert k < 16
    if TS == 3: return
    if TS == 6 and k != 12: return
    A(f"s_memrealtime s[72:73]\ns_waitcnt lgkmcnt(0)\nv_writelane_b32 v127, s72, {k}")
def ts_dump():
    if not TS or TS in (5, 6): return
    A("s_mov_b64 exec, -1")
    if TS == 2:
        skip_n[0] += 1
        lb = f"L_sk{skip_n[0]}"
        A(f"s_cmp_lg_u32 s2, {OPT.get('dbgwg', 0)}\ns_cbranch_scc1 {lb}")
        A(f"s_cmp_lg_u32 s30, {OPT.get('dbgwave', 11)}\ns_cbranch_scc1 {lb}")
        srd(76, 26, 256)
        A("v_readlane_b32 s60, v127, 0\ns_nop 1\nv_subrev_u32 v127, s60, v127")
        A("v_lshlrev_b32 v3, 2, v0")
        A("s_mov_b32 exec_lo, 0xffff\ns_mov_b32 exec_hi, 0")
        A("buffer_store_dword v127, v3, s[76:79], 0 offen")
        LB(lb)
        return
    A("s_mul_i32 s60, s2, 12\ns_add_u32 s60, s60, s30\ns_lshl_b32 s60, s60, 6")
    A(f"s_add_u32 s60, s60, {hex(TSB)}")
    A("v_lshlrev_b32 v3, 2, v0")
    A("s_mov_b32 exec_lo, 0xffff\ns_mov_b32 exec_hi, 0")
    A("buffer_store_dword v127, v3, s[44:47], s60 offen")

def tags():
    A("s_add_u32 s58, s56, 0x01010101\ns_add_u32 s59, s57, 0x9e3779b9")
    A("s_and_b32 s88, s58, 0xffff\ns_and_b32 s89, s58, 0xffff0000")

def tagcheck(bases, acc, t0, t1):
    first = True
    for b in bases:
        A(f"v_xor_b32 v{t0}, s58, v{b+1}")
        A(f"v_xor_b32 v{t1}, s59, v{b+3}")
        if first:
            A(f"v_or_b32 v{acc}, v{t0}, v{t1}"); first = False
        else:
            A(f"v_or3_b32 v{acc}, v{acc}, v{t0}, v{t1}")

def tagcheck_dense(bases, acc, t0, t1):
    first = True
    for b in bases:
        A(f"v_perm_b32 v{t0}, v{b+1}, v{b}, s92")
        A(f"v_perm_b32 v{t1}, v{b+3}, v{b+2}, s93")
        A(f"v_xor_b32 v{t0}, s88, v{t0}")
        A(f"v_xor_b32 v{t1}, s89, v{t1}")
        if first:
            A(f"v_or_b32 v{acc}, v{t0}, v{t1}"); first = False
        else:
            A(f"v_or3_b32 v{acc}, v{acc}, v{t0}, v{t1}")

def tagcheck_16(bases, acc, t0, t1):
    for i in range(0, len(bases), 2):
        b0 = bases[i]
        A(f"v_perm_b32 v{t0}, v{b0+1}, v{b0}, s92")
        A(f"v_xor_b32 v{t0}, s88, v{t0}")
        if i + 1 < len(bases):
            b1 = bases[i + 1]
            A(f"v_perm_b32 v{t1}, v{b1+1}, v{b1}, s92")
            A(f"v_xor_b32 v{t1}, s88, v{t1}")
            if i == 0: A(f"v_or_b32 v{acc}, v{t0}, v{t1}")
            else: A(f"v_or3_b32 v{acc}, v{acc}, v{t0}, v{t1}")
        else:
            if i == 0: A(f"v_mov_b32 v{acc}, v{t0}")
            else: A(f"v_or_b32 v{acc}, v{acc}, v{t0}")

def stamp(dst, srcs, tagv):
    for i in range(4):
        A(f"v_perm_b32 v{dst+i}, v{srcs[i]}, v{tagv}, s{94+i}")

def consts():
    A("s_mov_b32 s92, 0x0c0c0400\ns_mov_b32 s93, 0x04000c0c")
    A("s_mov_b32 s94, 0x07060500\ns_mov_b32 s95, 0x07060501\ns_mov_b32 s96, 0x07060502\ns_mov_b32 s97, 0x07060503")

def exec_mask(lo, hi):
    if not OPT["dry"]:
        A(f"s_mov_b32 exec_lo, {hex(lo)}")
        if hi is not None: A(f"s_mov_b32 exec_hi, {hex(hi)}")
        return
    A(f"s_and_b32 exec_lo, s90, {hex(lo)}" if lo != 0xffffffff else "s_mov_b32 exec_lo, s90")
    if hi is not None:
        A(f"s_and_b32 exec_hi, s91, {hex(hi)}" if hi else "s_mov_b32 exec_hi, 0")
def exec_all():
    A("s_mov_b64 exec, s[90:91]" if OPT["dry"] else "s_mov_b64 exec, -1")
def memgrp(fn):
    if not OPT["dry"]:
        fn(); return
    skip_n[0] += 1
    lb = f"L_sk{skip_n[0]}"
    A(f"s_cbranch_execz {lb}")
    fn()
    LB(lb)
def hbar():
    memgrp(lambda: A("s_barrier"))
def dry_end():
    if OPT["dry"]: A("s_cbranch_execz L_end")

MIR = MIR_
def ws_srds():
    srd(44, 28, 0x20000000)
    A(f"s_add_u32 s80, s28, {hex(MIR)}\ns_addc_u32 s81, s29, 0\ns_and_b32 s81, s81, 0xffff\ns_mov_b32 s82, {hex(0x20000000-MIR)}\ns_mov_b32 s83, 0x20000")
    A("s_mov_b32 s74, 0")

def publish(data, voff, soff, off=0, dual=True):
    o = f" offset:{off}" if off else ""
    if dual and OPT["dual"]:
        A(f"buffer_store_dwordx4 v[{data}:{data+3}], v{voff}, s[44:47], {soff} offen{o}")
    A(f"buffer_store_dwordx4 v[{data}:{data+3}], v{voff}, s[80:83], {soff} offen{o} sc1")

def poll_check(label, bases, tmp, reissue, chk=tagcheck, grp=1, dual=True):
    dual = dual and OPT["dual"]
    LB(label)
    chk(bases, tmp, tmp + 1, tmp + 2)
    if grp >= 4:
        A(f"s_nop 1\nv_or_b32_dpp v{tmp}, v{tmp}, v{tmp} quad_perm:[1,0,3,2] row_mask:0xf bank_mask:0xf")
        A(f"s_nop 1\nv_or_b32_dpp v{tmp}, v{tmp}, v{tmp} quad_perm:[2,3,0,1] row_mask:0xf bank_mask:0xf")
    if grp >= 8:
        A(f"s_nop 1\nv_or_b32_dpp v{tmp}, v{tmp}, v{tmp} row_half_mirror row_mask:0xf bank_mask:0xf")
    A(f"v_cmp_ne_u32 vcc, 0, v{tmp}")
    A("s_nop 1")
    A(f"s_cbranch_vccz {label}_ok")
    if OPT.get("nopoll"): A(f"s_branch {label}_ok")
    A(f"s_sub_u32 s67, s67, 1\ns_cbranch_scc1 {label}_ok")
    A("s_mov_b64 exec, vcc")
    if OPT["slp"]: A(f"s_sleep {OPT['slp']}")
    if dual:
        A(f"s_add_u32 s74, s74, 1\ns_and_b32 s75, s74, {OPT['bper']-1}\ns_cbranch_scc0 {label}_b")
        reissue("s[44:47]")
        A("s_waitcnt vmcnt(0)")
        A(f"s_branch {label}")
        LB(label + "_b")
    reissue("s[80:83]")
    A("s_waitcnt vmcnt(0)")
    A(f"s_branch {label}")
    LB(label + "_ok")
    exec_all()

def xrow_multi(op, vs, ts_, steps=("v_permlane16_swap_b32", "v_permlane32_swap_b32")):
    for sw in steps:
        for v, t in zip(vs, ts_):
            A(f"v_mov_b32 v{t}, v{v}")
        if len(vs) < 2: A("s_nop 1")
        elif len(vs) < 3: A("s_nop 0")
        for v, t in zip(vs, ts_):
            A(f"{sw} v{v}, v{t}")
        A("s_nop 0")
        for v, t in zip(vs, ts_):
            A(f"{op} v{v}, v{v}, v{t}")

def xrow_t4(v):
    A(f"v_permlane16_swap_b32 v{v}, v{v+1}")
    A(f"v_permlane16_swap_b32 v{v+2}, v{v+3}")
    A("s_nop 0")
    A(f"v_add_f32 v{v}, v{v}, v{v+1}")
    A(f"v_add_f32 v{v+2}, v{v+2}, v{v+3}")
    A("s_nop 1")
    A(f"v_permlane32_swap_b32 v{v}, v{v+2}")
    A("s_nop 0")
    A(f"v_add_f32 v{v}, v{v}, v{v+2}")

def transpose8(raw, dst, pairs=(0, 1, 2, 3)):
    for v in pairs:
        for w in range(4):
            a = raw + 4 * (2 * v) + w
            b = raw + 4 * (2 * v + 1) + w
            A(f"v_perm_b32 v{dst + 4*(2*w) + v}, v{b}, v{a}, s64")
            A(f"v_perm_b32 v{dst + 4*(2*w+1) + v}, v{b}, v{a}, s65")

def bf16_round_pairs(vs, tmp):
    n = len(vs) // 2
    for i in range(n):
        A(f"v_cvt_pk_bf16_f32 v{tmp[i]}, v{vs[2*i]}, v{vs[2*i+1]}")
    for i in range(n):
        A(f"v_lshlrev_b32 v{vs[2*i]}, 16, v{tmp[i]}")
        A(f"v_and_b32 v{vs[2*i+1]}, 0xffff0000, v{tmp[i]}")

def lds_spin(label, addr_v, off, val):
    if OPT["dry"]: A(f"s_cbranch_execz {label}_x")
    LB(label)
    A(f"ds_read_b32 v15, v{addr_v} offset:{off}")
    A("s_waitcnt lgkmcnt(0)")
    A("v_readfirstlane_b32 s66, v15")
    A("s_sub_u32 s67, s67, 1")
    A(f"s_cbranch_scc1 {label}_x")
    if OPT.get("lsl") and label in ("L_ispin",): A(f"s_sleep {OPT['lsl']}")
    if OPT.get("ksl") and label in ("L_qspin", "L_mspin", "L_pspin1"):
        A(f"s_cmp_ge_u32 s66, {val}\ns_cbranch_scc1 {label}_x\ns_sleep {OPT['ksl']}")
    A(f"s_cmp_lt_u32 s66, {val}")
    A(f"s_cbranch_scc1 {label}")
    LB(label + "_x")

def lds_spin_data(label, off, val, reads):
    lds_spin(label, 12, off, val)
    reads()
    A("s_waitcnt lgkmcnt(0)")

def rowsum(vs, shifts=(8, 4, 2, 1)):
    for sh in shifts:
        if len(vs) < 3: A("s_nop 1")
        for v in vs:
            A(f"v_add_f32_dpp v{v}, v{v}, v{v} row_ror:{sh} row_mask:0xf bank_mask:0xf")

def dma_voff(dst, stride_sreg_or_shift, t0, t1):
    A(f"v_bfe_u32 v{t0}, v0, 1, 2\nv_bfe_u32 v{t1}, v0, 4, 2\nv_xor_b32 v{t0}, v{t0}, v{t1}")
    A(f"v_and_b32 v{t1}, 1, v0\nv_lshl_add_u32 v{t0}, v{t0}, 1, v{t1}\nv_lshlrev_b32 v{t0}, 4, v{t0}")
    A(f"v_lshrrev_b32 v{t1}, 3, v0")
    if isinstance(stride_sreg_or_shift, int):
        A(f"v_lshl_add_u32 v{dst}, v{t1}, {stride_sreg_or_shift}, v{t0}")
    else:
        A(f"v_mul_lo_u32 v{t1}, v{t1}, {stride_sreg_or_shift}\nv_add_u32 v{dst}, v{t1}, v{t0}")

def tr_addr(dst, q4, t0, t1, base):
    A(f"v_bfe_u32 v{t0}, v0, 3, 2")
    A(f"v_xor_b32 v{t0}, {q4}, v{t0}")
    A(f"v_lshlrev_b32 v{t0}, 5, v{t0}")
    A(f"v_and_b32 v{t1}, 3, v0\nv_lshl_add_u32 v{t0}, v{t1}, 3, v{t0}")
    A(f"v_lshrrev_b32 v{t1}, 2, v0\nv_lshl_add_u32 v{dst}, v{t1}, 7, v{t0}")
    A(f"v_add_u32 v{dst}, {base}, v{dst}")

def tr_read(dst, addr_v, off, t):
    A(f"ds_read_b64_tr_b16 v[{dst}:{dst+1}], v{addr_v} offset:{off + 4096*t}")
    A(f"ds_read_b64_tr_b16 v[{dst+2}:{dst+3}], v{addr_v} offset:{off + 4096*t + 2048}")

def lds_spin2(label, addr_v, off, val):
    if OPT["dry"]: A(f"s_cbranch_execz {label}_x")
    LB(label)
    A(f"ds_read_b64 v[14:15], v{addr_v} offset:{off}")
    A("s_waitcnt lgkmcnt(0)")
    A("v_min_u32 v15, v14, v15")
    A("s_sub_u32 s67, s67, 1")
    A("v_readfirstlane_b32 s66, v15")
    A(f"s_cbranch_scc1 {label}_x")
    A(f"s_cmp_lt_u32 s66, {val}")
    A(f"s_cbranch_scc1 {label}")
    LB(label + "_x")

def bump(off):
    exec_mask(1, 0)
    A(f"ds_add_u32 v12, v13 offset:{off}")
    exec_all()

def mfma(d, a, b, c):
    cs = "0" if c is None else f"v[{c}:{c+3}]"
    A(f"v_mfma_f32_16x16x32_bf16 v[{d}:{d+3}], v[{a}:{a+3}], v[{b}:{b+3}], {cs}")

def select4(xs):
    A(f"v_permlane16_swap_b32 v{xs[0]}, v{xs[1]}")
    A(f"v_permlane16_swap_b32 v{xs[2]}, v{xs[3]}")

NWAVES = 16 if OPT["dry"] else 12
L.append(HEADER.rstrip())
L.append(f"; @launch grid=(256,1,1) block=({NWAVES*64},1,1) lds={LDS_BYTES}")
L.append("""; Fused decode step, one launch, 256 workgroups (one per CU) x 12 waves.
;   share an L2) and a write-through copy that is visible under any placement.""")
L.append('.amdgcn_target "amdgcn-amd-amdhsa--gfx950"')
L.append(".text")
L.append(f".globl {NAME}\n.p2align 8\n.type {NAME},@function\n{NAME}:")
A("s_cmp_ge_u32 s2, 256\ns_cbranch_scc1 L_end")
if OPT.get("xorwg"): A(f"s_xor_b32 s2, s2, {OPT['xorwg']}")
if OPT.get("remap"): A("s_and_b32 s3, s2, 31\ns_lshl_b32 s3, s3, 3\ns_lshr_b32 s2, s2, 5\ns_or_b32 s2, s2, s3")
if OPT.get("late"):
    A("s_and_b32 s31, s2, 7\ns_cmp_lg_u32 s31, 3\ns_cbranch_scc1 L_nolate")
    A(f"s_memrealtime s[72:73]\ns_waitcnt lgkmcnt(0)\ns_add_u32 s74, s72, {OPT['late']}")
    LB("L_late")
    A("s_memrealtime s[72:73]\ns_waitcnt lgkmcnt(0)\ns_sub_u32 s75, s72, s74\ns_cmp_lt_i32 s75, 0\ns_cbranch_scc1 L_late")
    LB("L_nolate")
A("v_lshrrev_b32 v1, 6, v0")
A("v_and_b32 v0, 63, v0")
A("s_and_b32 s31, s2, 7")
A("v_readfirstlane_b32 s30, v1")
A("s_nop 0")
A("s_cmp_lg_u32 s30, 2\ns_cbranch_scc1 L_noinit")
A(f"v_lshlrev_b32 v4, 2, v0\nv_add_u32 v4, {CNT}, v4\nv_mov_b32 v8, 0")
A("s_mov_b32 exec_lo, 0xffff\ns_mov_b32 exec_hi, 0")
A("ds_write_b32 v4, v8")
A("s_mov_b64 exec, -1")
A("s_waitcnt lgkmcnt(0)")
LB("L_noinit")
A("s_load_dwordx16 s[4:19], s[0:1], 0")
A("s_load_dwordx8 s[20:27], s[0:1], 64")
A("s_load_dwordx2 s[28:29], s[0:1], 96")
if TS or OPT.get("diag"): A("s_memrealtime s[72:73]")
A("s_barrier")
if OPT["dry"]:
    A("s_cmp_lt_u32 s30, 12\ns_cbranch_scc1 L_main")
    if OPT.get("cpf", 0):
        A("s_getpc_b64 s[60:61]")
        LB("L_pc")
        A(f"s_sub_u32 s62, s30, 12\ns_mul_i32 s62, s62, {OPT.get('cpf', 0)*128}")
        A(f"s_add_u32 s63, s62, {OPT.get('cpf', 0)*128}")
        LB("L_pf")
        A("s_load_dword s36, s[60:61], s62")
        A("s_add_u32 s62, s62, 128\ns_cmp_lt_u32 s62, s63\ns_cbranch_scc1 L_pf")
    A("s_branch L_helper")
    LB("L_main")
A("s_lshr_b32 s32, s2, 3")
A("s_lshr_b32 s33, s32, 4")
A("s_and_b32 s34, s32, 15")
A(f"s_mov_b32 s67, {OPT['spin']}")
if OPT["dry"]: A("s_mov_b64 s[90:91], -1")
A("v_and_b32 v2, 15, v0")
A("v_lshrrev_b32 v3, 4, v0")
A("s_lshr_b32 s52, s32, 3")
A("s_and_b32 s53, s32, 7")
A("s_lshl_b32 s54, s31, 2\ns_add_u32 s54, s54, s52")
A("s_lshl_b32 s50, s33, 3\ns_add_u32 s50, s50, s31\ns_lshl_b32 s50, s50, 23")
A("s_lshl_b32 s51, s34, 16\ns_add_u32 s50, s50, s51\ns_add_u32 s50, s50, 0x700000")
A(f"s_mul_i32 s51, s32, {OPT.get('rotm', 5)}\ns_add_u32 s51, s51, s31")
A("s_and_b32 s49, s54, 7\ns_cmp_lg_u32 s49, 7\ns_cselect_b32 s49, 1, 0")
A("s_lshr_b32 s55, s54, 3\ns_sub_u32 s55, s54, s55")
A("s_cmp_lt_u32 s30, 4\ns_cbranch_scc1 L_special")

def epoch_load():
    if EPO:
        A(f"s_mov_b32 s56, {hex(EPO)}\ns_load_dwordx2 s[56:57], s[28:29], s56")
    else:
        A("s_load_dwordx2 s[56:57], s[28:29], 0")
def fconsts():
    A(f"s_mov_b32 s68, {hex(SCALE)}\ns_mov_b32 s69, {hex(LOG2E)}\ns_mov_b32 s70, {hex(NLOG2E)}")
def ts0():
    if TS: A("v_writelane_b32 v127, s72, 0")

C("================= K / attention waves =================")
ts_reset()
A("s_sub_u32 s35, s30, 4")
A("s_lshl_b32 s62, s35, 1\ns_add_u32 s62, s62, s51")
A("s_add_u32 s63, s62, 1\ns_and_b32 s62, s62, 15\ns_and_b32 s63, s63, 15")
A("s_lshl_b32 s62, s62, 12\ns_lshl_b32 s63, s63, 12")
A("s_add_u32 s61, s50, s63\ns_add_u32 s60, s50, s62")
for u in range(4):
    A(f"v_add_u32 v{104+u}, {4*u}, v3\nv_xor_b32 v{104+u}, v{104+u}, v2\nv_lshlrev_b32 v{104+u}, 4, v{104+u}\nv_lshl_add_u32 v{104+u}, v3, 8, v{104+u}")
A(f"s_lshl_b32 s84, s35, 13\ns_add_u32 s84, s84, {KI}\ns_cmp_eq_u32 s35, 7\ns_cselect_b32 s84, {VI+57344}, s84")
A("s_add_u32 s85, s84, 4096")
dma_voff(112, 13, 114, 115)
A("s_movk_i32 s62, 3584\nv_mul_lo_u32 v113, v115, s62\nv_add_u32 v113, v113, v114")
A("s_lshl_b32 s62, s52, 20\ns_lshl_b32 s63, s31, 10\ns_add_u32 s62, s62, s63\ns_lshl_b32 s63, s53, 7\ns_add_u32 s62, s62, s63")
A("s_lshl_b32 s63, s35, 18\ns_add_u32 s62, s62, s63")
A(f"s_lshl_b32 s86, s35, 12\ns_add_u32 s86, s86, {WQI}")
A("s_lshl_b32 s87, s53, 2\ns_add_u32 s87, s87, s35\ns_mul_i32 s87, s87, 16*3584\ns_lshl_b32 s71, s55, 7\ns_add_u32 s87, s87, s71")
A(f"s_lshl_b32 s71, s35, 11\ns_add_u32 s71, s71, {GI}")
A("s_mov_b32 m0, s86")
A("s_cmp_lt_u32 s35, 4\ns_cselect_b32 s49, s49, 2")
A("s_waitcnt lgkmcnt(0)")
ts0()
A("s_cmp_eq_u32 s49, 2\ns_cbranch_scc1 L_nogu")
A("s_cmp_gt_u32 s35, 1\ns_cbranch_scc1 L_nox")
srd(76, 4, 2048)
A(f"s_lshl_b32 s63, s35, 10\ns_add_u32 m0, s63, {XS}\nv_lshlrev_b32 v114, 4, v0")
A("buffer_load_dwordx4 v114, s[76:79], s63 offen lds")
A("s_mov_b32 m0, s86")
LB("L_nox")
srd(40, 10, 0x400000)
for i in range(4):
    if i: A(f"s_add_u32 m0, s86, {1024*i}\ns_add_u32 s62, s62, 65536")
    A(f"buffer_load_dwordx4 v112, s[40:43], s62 offen {WF} lds")
A("s_cmp_eq_u32 s49, 0\ns_cbranch_scc1 L_nogu")
srd(76, 16, 512 * 3584)
A("s_mov_b32 m0, s71")
srd(92, 18, 512 * 3584)
for i in range(2):
    if i: A(f"s_add_u32 m0, s71, 1024\ns_add_u32 s87, s87, {8*3584}")
    A(f"buffer_load_dwordx4 v113, s[76:79], s87 offen {WF} lds")
    A(f"s_add_u32 m0, s71, {UI-GI+1024*i}\ns_nop 0")
    A(f"buffer_load_dwordx4 v113, s[92:95], s87 offen {WF} lds")
LB("L_nogu")
A("s_mov_b32 s86, s49")
if TS == 5: A("s_memrealtime s[72:73]\ns_waitcnt lgkmcnt(0)\nv_writelane_b32 v127, s72, 8")
srd(36, 6, 0x8000000)
KR, QR = 16, 80
KVF = OPT["kv_fl"]
def kload(i):
    t, u = i // 4, i % 4
    if u == 0: A(f"s_mov_b32 m0, s{84+t}\ns_nop 0")
    A(f"buffer_load_dwordx4 v{104+u}, s[36:39], s{60+t} offen offset:{u*1024} {KVF} lds")
def kread(t):
    for j in range(4):
        i = 4 * t + j
        A(f"ds_read_b128 v[{KR+4*i}:{KR+4*i+3}], v{108+j} offset:{4096*t}")
FA = "s[44:47]" if OPT["dual"] else "s[80:83]"
def qgather(sr=FA):
    A(f"buffer_load_dwordx4 v[{QR}:{QR+3}], v6, {sr}, s62 offen sc1")
KA, VB = OPT["ka"], OPT["vb"]
ws_srds()
epoch_load()
fconsts(); consts()
A("s_lshl_b32 s62, s31, 1\ns_add_u32 s62, s62, s33\ns_lshl_b32 s62, s62, 13")
A("s_lshl_b32 s63, s35, 8\ns_add_u32 s62, s62, s63")
A(f"s_add_u32 s62, s62, {hex(QX)}")
A("v_lshlrev_b32 v6, 11, v3\nv_lshl_add_u32 v6, v2, 4, v6")
A(f"v_mov_b32 v12, {CNT}\nv_mov_b32 v13, 1")
for j in range(4):
    A(f"v_add_u32 v{108+j}, {4*j}, v3\nv_xor_b32 v{108+j}, v{108+j}, v2\nv_lshlrev_b32 v{108+j}, 4, v{108+j}\nv_lshl_add_u32 v{108+j}, v2, 8, v{108+j}\nv_add_u32 v{108+j}, s84, v{108+j}")
KY = OPT.get("ky", 8)
A("s_cmp_lg_u32 s86, 2\ns_cbranch_scc1 L_old1")
if OPT.get("late2"):
    A("s_cmp_lg_u32 s31, 3\ns_cbranch_scc1 L_nla")
    A("v_readlane_b32 s74, v127, 0\ns_nop 3")
    A(f"s_add_u32 s74, s74, {OPT['late2']}")
    LB("L_la")
    A("s_memrealtime s[72:73]\ns_waitcnt lgkmcnt(0)\ns_sub_u32 s75, s72, s74\ns_cmp_lt_i32 s75, 0\ns_cbranch_scc1 L_la")
    A("s_mov_b32 s74, 0")
    LB("L_nla")
for i in range(KY): kload(i)
if TS == 5: A("s_memrealtime s[72:73]\ns_waitcnt lgkmcnt(0)\nv_writelane_b32 v127, s72, 9")
LB("L_old1")
A("v_and_b32 v14, 3, v2")
A(f"s_lshl_b32 s71, s35, 7\ns_add_u32 s71, s71, {QS}")
A("v_lshl_add_u32 v10, v2, 3, s71\nv_lshl_add_u32 v10, v3, 1, v10")
A(f"v_lshlrev_b32 v11, 8, v14\nv_lshl_add_u32 v11, v3, 4, v11\nv_add_u32 v11, {QS}, v11")
A(f"v_lshlrev_b32 v8, 5, v14\nv_add_u32 v8, {MX}, v8")
A("s_lshl_b32 s71, s35, 2\nv_add_u32 v9, s71, v8")
A(f"v_lshl_add_u32 v7, v3, 2, v14\nv_lshlrev_b32 v7, 4, v7\nv_add_u32 v7, {PS}, v7")
A("s_lshl_b32 s71, s35, 8\nv_add_u32 v5, s71, v7")
A("v_bfe_u32 v120, v0, 2, 3\nv_xor_b32 v120, s35, v120\nv_lshlrev_b32 v120, 5, v120")
A("v_and_b32 v121, 3, v0\nv_lshl_add_u32 v120, v121, 3, v120\nv_lshrrev_b32 v121, 2, v0\nv_lshl_add_u32 v120, v121, 8, v120")
A("v_lshlrev_b32 v121, 9, v14\nv_lshl_add_u32 v121, v3, 4, v121")
A(f"s_lshl_b32 s76, s31, 5\ns_add_u32 s49, s76, s32\ns_mul_i32 s49, s49, {OBS}\ns_add_u32 s49, s49, {hex(H1)}")
A("s_lshl_b32 s71, s35, 6\ns_add_u32 s48, s49, s71")
A(f"v_lshrrev_b32 v122, 3, v2\nv_lshl_add_u32 v122, v122, 4, v3\nv_mul_u32_u24 v122, {OBS}, v122")
A("v_and_b32 v123, 7, v2\nv_lshl_add_u32 v122, v123, 4, v122")
A(f"s_mul_i32 s76, s76, {OBS}\ns_add_u32 s76, s76, {hex(H1)}")
A("s_lshl_b32 s71, s52, 9\ns_add_u32 s76, s76, s71\ns_lshl_b32 s71, s35, 7\ns_add_u32 s76, s76, s71")
for i in range(1, 4): A(f"s_add_u32 s{76+i}, s76, {i*4*OBS}")
A(f"s_lshl_b32 s71, s35, 6\ns_add_u32 s71, s71, {OV}")
A("v_lshrrev_b32 v124, 3, v2\nv_lshlrev_b32 v124, 8, v124\nv_lshl_add_u32 v124, v123, 3, v124\nv_lshl_add_u32 v124, v3, 1, v124\nv_add_u32 v124, s71, v124")
A("s_waitcnt lgkmcnt(0)")
tags()
if TS == 5: A("s_memrealtime s[72:73]\ns_waitcnt lgkmcnt(0)\nv_writelane_b32 v127, s72, 10")
A("s_cmp_eq_u32 s86, 2\ns_cbranch_scc1 L_young")
A("s_cmp_eq_u32 s86, 0\ns_cbranch_scc1 L_nogu2")
A("s_waitcnt vmcnt(4)")
bump(O_W)
A("s_waitcnt vmcnt(0)")
bump(O_G)
A("s_branch L_gu3")
LB("L_nogu2")
A("s_waitcnt vmcnt(0)")
bump(O_W)
LB("L_gu3")
if OPT.get("late2"):
    A("s_cmp_lg_u32 s31, 3\ns_cbranch_scc1 L_nlb")
    A("v_readlane_b32 s74, v127, 0\ns_nop 3")
    A(f"s_add_u32 s74, s74, {OPT['late2']}")
    LB("L_lb")
    A("s_memrealtime s[72:73]\ns_waitcnt lgkmcnt(0)\ns_sub_u32 s75, s72, s74\ns_cmp_lt_i32 s75, 0\ns_cbranch_scc1 L_lb")
    A("s_mov_b32 s74, 0")
    LB("L_nlb")
KO = OPT.get("ko", 0)
for i in range(KO): kload(i)
lds_spin("L_b1", 12, O_B1, 1)
ts()
if KO % 4: A(f"s_mov_b32 m0, s{84 + KO//4}\ns_nop 0")
for i in range(KO, 8): kload(i)
if KY < 8:
    A("s_branch L_young2")
    LB("L_young")
    lds_spin("L_b1y", 12, O_B1, 1)
    if KY % 4: A(f"s_mov_b32 m0, s{84 + KY//4}\ns_nop 0")
    for i in range(KY, 8): kload(i)
    LB("L_young2")
else:
    LB("L_young")
bump(O_B3)
lds_spin("L_b3", 12, O_B3, 8)
ts()
qgather()
bump(O_B2)
VB2 = 0
ts()
if OPT.get("prio"): A(f"s_setprio {OPT['prio']}")
LB("L_d0")
if VB2:
    A("s_waitcnt vmcnt(1)")
    tagcheck_dense([QR], 88, 89, 90)
    A("v_cmp_ne_u32 vcc, 0, v88\ns_nop 1\ns_cbranch_vccz L_qchk_ok")
    A("s_waitcnt vmcnt(0)")
    for c in range(4): A(f"v_mov_b32 v{QR+c}, v{QR+4+c}")
    if TS: A("s_mov_b32 s74, 0x100")
else:
    A("s_waitcnt vmcnt(5)")
    kread(0)
    A("s_waitcnt vmcnt(1)")
    kread(1)
    A("s_cmp_lg_u32 s35, 7\ns_cbranch_scc1 L_nok7")
    A("s_waitcnt lgkmcnt(0)")
    bump(O_K7)
    LB("L_nok7")
    A("s_waitcnt vmcnt(0)")
poll_check("L_qchk", [QR], 88, qgather, tagcheck_dense, 4)
if TS: A("v_writelane_b32 v127, s74, 13")
ts()
for c in range(4): A(f"v_and_b32 v{QR+c}, 0xffffff00, v{QR+c}")
A("s_nop 0")
xrow_t4(QR)
A(f"v_cvt_pk_bf16_f32 v{QR}, v{QR}, v{QR}")
A(f"ds_write_b16 v10, v{QR}")
bump(O_Q)
def qreads():
    for j in range(4):
        A(f"ds_read_b128 v[{QR+4*j}:{QR+4*j+3}], v11 offset:{64*j}")
lds_spin_data("L_qspin", O_Q, 8, qreads)
for j in range(4):
    for t in range(2):
        k = KR + 4 * (4 * t + j)
        mfma(96 + 4 * t, k, QR + 4 * j, None if j == 0 else 96 + 4 * t)
A("s_nop 7\ns_nop 1")
S = list(range(96, 104))
bf16_round_pairs(S, [112, 113, 114, 115])
for v in S: A(f"v_mul_f32 v{v}, s68, v{v}")
bf16_round_pairs(S, [112, 113, 114, 115])
A("v_max3_f32 v116, v96, v97, v98\nv_max3_f32 v116, v116, v99, v100\nv_max3_f32 v116, v116, v101, v102\nv_max_f32 v116, v116, v103")
xrow_multi("v_max_f32", [116], [117])
for v in S: A(f"v_sub_f32 v{v}, v{v}, v116")
for v in S: A(f"v_mul_f32 v{v}, s69, v{v}")
for v in S: A(f"v_exp_f32 v{v}, v{v}")
A("s_nop 0")
for i in range(4): A(f"v_cvt_pk_bf16_f32 v{112+i}, v{96+2*i}, v{97+2*i}")
A("v_add_f32 v117, v96, v97\nv_add_f32 v118, v98, v99\nv_add_f32 v119, v100, v101\nv_add_f32 v104, v102, v103")
A("v_add_f32 v117, v117, v118\nv_add_f32 v119, v119, v104\nv_add_f32 v117, v117, v119")
exec_mask(0x000f000f, 0x000f000f)
A("ds_write_b128 v5, v[112:115]")
exec_all()
xrow_multi("v_add_f32", [117], [118])
exec_mask(0xf, 0)
A("ds_write2_b32 v9, v116, v117 offset0:0 offset1:32")
bump(O_P)
PR, VO = 16, 48
def preads():
    A(f"ds_read_b64 v[118:119], v12 offset:{O_VL}")
    A("ds_read_b128 v[104:107], v8\nds_read_b128 v[108:111], v8 offset:16")
    for k in range(8):
        A(f"ds_read_b128 v[{PR+4*k}:{PR+4*k+3}], v7 offset:{256*k}")
lds_spin_data("L_pspin1", O_P, 8, preads)
A("v_min_u32 v118, v118, v119")
A("v_max3_f32 v116, v104, v105, v106\nv_max3_f32 v116, v116, v107, v108\nv_max3_f32 v116, v116, v109, v110\nv_max_f32 v116, v116, v111")
A("v_readfirstlane_b32 s71, v118")
for k in range(8): A(f"v_sub_f32 v{104+k}, v{104+k}, v116")
for k in range(8): A(f"v_mul_f32 v{104+k}, s69, v{104+k}")
for k in range(8): A(f"v_exp_f32 v{104+k}, v{104+k}")
A("v_or_b32 v125, s88, v116")
A("s_cmp_lg_u32 s35, 7\ns_cbranch_scc1 L_nol")
A("ds_read_b128 v[80:83], v8 offset:128\nds_read_b128 v[84:87], v8 offset:144")
A("v_lshlrev_b32 v10, 4, v2")
A("v_mov_b32 v97, s58\nv_mov_b32 v98, v116\nv_mov_b32 v99, s59")
A("s_waitcnt lgkmcnt(0)")
A("v_mul_f32 v96, v104, v80")
for k in range(1, 8): A(f"v_fmac_f32 v96, v{104+k}, v{80+k}")
exec_mask(0xf, 0)
memgrp(lambda: publish(96, 10, "s49", 2048))
exec_all()
LB("L_nol")
ts()
dry_end()
LB("L_d1")
def vstep(ks, first):
    for k in ks:
        A(f"ds_read_b64_tr_b16 v[{VO+4*k}:{VO+4*k+1}], v120 offset:{VI + 8192*k}")
        A(f"ds_read_b64_tr_b16 v[{VO+4*k+2}:{VO+4*k+3}], v120 offset:{VI + 8192*k + 4096}")
    for i, k in enumerate(ks):
        A(f"s_waitcnt lgkmcnt({2*(len(ks)-1-i)})")
        mfma(128 + 4 * k, VO + 4 * k, PR + 4 * k, None)
A("s_cmp_lt_u32 s71, 7\ns_cbranch_scc1 L_vinc")
vstep([0, 1, 2, 3, 4, 5, 6], True)
A("s_cbranch_execnz L_vlast" if OPT["dry"] else "s_branch L_vlast")
LB("L_vinc")
lds_spin2("L_v1", 12, O_VL, 4)
vstep([0, 1, 2, 3], True)
lds_spin2("L_v2", 12, O_VL, 6)
vstep([4, 5], False)
lds_spin2("L_v3", 12, O_VL, 7)
vstep([6], False)
LB("L_vlast")
A("s_nop 3")
for c in range(4): A(f"v_mul_f32 v{80+c}, v104, v{128+c}")
for k in range(1, 7):
    for c in range(4): A(f"v_fmac_f32 v{80+c}, v{104+k}, v{128+4*k+c}")
hbar()
ts()
vstep([7], False)
exec_mask(0x000f000f, 0x000f000f)
A("s_nop 5")
for c in range(4): A(f"v_fmac_f32 v{80+c}, v111, v{156+c}")
stamp(84, [80, 81, 82, 83], 125)
memgrp(lambda: publish(84, 121, "s48"))
exec_all()
hbar()
ts()
A("s_cmp_ge_u32 s35, 4\ns_cbranch_scc1 L_kv_h2")
GR = 80
def h1gather(sr=FA):
    for i in range(4):
        A(f"buffer_load_dwordx4 v[{GR+4*i}:{GR+4*i+3}], v122, {sr}, s{76+i} offen sc1")
ts()
memgrp(h1gather)
A("s_waitcnt vmcnt(0)")
ts()
poll_check("L_h1chk", [GR + 4 * i for i in range(4)], 116, h1gather, tagcheck_16, 8)
ts()
for i in range(4): A(f"v_perm_b32 v{100+i}, v{GR+4*i+3}, v{GR+4*i+2}, s93")
A("v_max3_f32 v116, v100, v101, v102\nv_max_f32 v116, v116, v103")
xrow_multi("v_max_f32", [116], [117])
for i in range(4): A(f"v_sub_f32 v{100+i}, v{100+i}, v116")
for i in range(4): A(f"v_mul_f32 v{100+i}, s69, v{100+i}")
for i in range(4): A(f"v_exp_f32 v{100+i}, v{100+i}")
for c in range(16): A(f"v_and_b32 v{GR+c}, 0xffffff00, v{GR+c}")
for c in range(4): A(f"v_mul_f32 v{104+c}, v100, v{GR+c}")
for i in range(1, 4):
    for c in range(4): A(f"v_fmac_f32 v{104+c}, v{100+i}, v{GR+4*i+c}")
A("s_nop 0")
xrow_t4(104)
A("v_cvt_pk_bf16_f32 v104, v104, v104")
A("ds_write_b16 v124, v104")
A("s_waitcnt lgkmcnt(0)")
hbar()
ts()
if OPT["dry"]: A("s_cbranch_execz L_d2")
A("s_branch L_kv_done")
LB("L_kv_h2")
A("s_cmp_lg_u32 s35, 7\ns_cbranch_scc1 L_kv_bo")
A("s_cmp_ge_u32 s2, 128\ns_cbranch_scc1 L_kv_bo")
LB("L_d2")
if TS: ts_n[0] = 12
srd(48, 24, 2048)
A("s_lshl_b32 s60, s2, 11")
A(f"s_add_u32 s60, s60, {hex(H2)}")
A("v_lshlrev_b32 v5, 4, v0")
def h2gather(sr="s[80:83]"):
    A(f"buffer_load_dwordx4 v[16:19], v5, {sr}, s60 offen sc1")
    A(f"buffer_load_dwordx4 v[20:23], v5, {sr}, s60 offen offset:1024 sc1")
A("v_mov_b32 v8, 0")
A("s_lshl_b32 s62, s2, 3")
hbar()
if TS == 5: A("s_memrealtime s[72:73]\ns_waitcnt lgkmcnt(0)\nv_writelane_b32 v127, s72, 11")
memgrp(h2gather)
A("s_waitcnt vmcnt(0)")
poll_check("L_h2chk", [16, 20], 24, h2gather, dual=False)
ts()
A("v_add_f32 v16, v16, v20\nv_add_f32 v18, v18, v22")
rowsum([16, 18], shifts=(8, 4))
xrow_multi("v_add_f32", [16, 18], [17, 19])
A("s_nop 0")
for i, qp in enumerate(("[1,1,1,1]", "[2,2,2,2]", "[3,3,3,3]")):
    A(f"v_mov_b32_dpp v{24+i}, v16 quad_perm:{qp} row_mask:0xf bank_mask:0xf")
    A(f"v_mov_b32_dpp v{28+i}, v18 quad_perm:{qp} row_mask:0xf bank_mask:0xf")
A("v_cvt_pk_bf16_f32 v32, v16, v24\nv_cvt_pk_bf16_f32 v33, v25, v26")
A("v_cvt_pk_bf16_f32 v34, v18, v28\nv_cvt_pk_bf16_f32 v35, v29, v30")
exec_mask(1, 0)
if OPT["dry"]: A("s_cbranch_execz L_spre")
A("buffer_store_dwordx2 v[32:33], v8, s[48:51], s62 offen")
A("buffer_store_dwordx2 v[34:35], v8, s[48:51], s62 offen offset:1024")
if OPT.get("diag"):
    if OPT.get("diaghi"):
        A(f"s_cmp_lt_u32 s2, {OPT.get('diaglo', 0)}\ns_cbranch_scc1 L_diagx\ns_cmp_ge_u32 s2, {OPT['diaghi']}\ns_cbranch_scc1 L_diagx")
    if OPT.get("diaglate"):
        A("v_readlane_b32 s73, v127, 12\nv_readlane_b32 s99, v127, 0\ns_nop 3\ns_sub_u32 s73, s73, s99")
        A(f"s_cmp_ge_u32 s73, {OPT['diaglate']}\ns_cbranch_scc1 L_diagx")
    A(f"v_readlane_b32 s73, v127, {OPT['diag']}\nv_readlane_b32 s99, v127, {OPT.get('diag0', 0)}")
    A("s_memrealtime s[100:101]\ns_waitcnt lgkmcnt(0)")
    A("s_sub_u32 s73, s73, s99")
    if OPT.get("diaginv"): A("s_min_u32 s73, s73, 1400\ns_sub_u32 s73, 1400, s73")
    A(f"s_mul_i32 s73, s73, {OPT.get('diagm', 8)}\ns_add_u32 s73, s73, s100")
    LB("L_diag")
    A("s_memrealtime s[98:99]\ns_waitcnt lgkmcnt(0)\ns_sub_u32 s99, s98, s73\ns_cmp_lt_i32 s99, 0\ns_cbranch_scc1 L_diag")
    LB("L_diagx")
A("s_cmp_lg_u32 s2, 0\ns_cbranch_scc1 L_kv_done")
A("v_mov_b32 v36, s58\nv_mov_b32 v37, s59")
A(f"s_mov_b32 s62, {hex(EPO)}")
A("buffer_store_dwordx2 v[36:37], v8, s[44:47], s62 offen sc1")
A("s_branch L_kv_done")
LB("L_kv_bo")
A("s_barrier")
LB("L_kv_done")
if TS:
    A("s_memrealtime s[72:73]\ns_waitcnt lgkmcnt(0)\nv_writelane_b32 v127, s72, 15")
ts_dump()
A("s_endpgm")

if OPT["dry"]:
    LB("L_helper")
    C("================= dry-run helpers: warm the instruction cache =================")
    for v in list(range(4, 16)) + list(range(104, 112)) + [120, 121, 122, 123, 124]: A(f"v_mov_b32 v{v}, 0")
    A("s_waitcnt lgkmcnt(0)")
    ws_srds()
    A("v_mov_b32 v2, 0\nv_mov_b32 v3, 0")
    A("s_mov_b32 s32, 0\ns_mov_b32 s52, 0\ns_mov_b32 s53, 0\ns_mov_b32 s54, 0\ns_mov_b32 s67, 0")
    A("s_mov_b64 s[90:91], 0\ns_mov_b64 exec, 0")
    A("s_mov_b32 s35, 7\ns_mov_b32 s48, 0\ns_mov_b32 s49, 1\ns_mov_b32 s60, 0\ns_mov_b32 s61, 0\ns_mov_b32 s62, 0\ns_mov_b32 s63, 0")
    A("s_cmp_eq_u32 s30, 12\ns_cbranch_scc1 L_d0")
    A("s_cmp_eq_u32 s30, 14\ns_cbranch_scc1 L_d5")
    A("s_cmp_eq_u32 s30, 15\ns_cbranch_scc1 L_d3")
    A("s_mov_b32 s35, 0\ns_mov_b32 s71, 8")
    A("s_branch L_d1")
    LB("L_spre")
    if OPT["spre"]:
        A(f"s_lshl_b32 s60, s31, 5\ns_add_u32 s60, s60, s32\ns_mul_i32 s60, s60, {OBS}\ns_add_u32 s60, s60, {hex(H1)}")
        A("s_add_u32 s62, s28, s60\ns_addc_u32 s63, s29, 0")
        if OPT["spre"] & 1:
            for i in range(17): A(f"s_load_dword s{4+(i%8)}, s[62:63], {128*i}")
        A(f"s_lshl_b32 s60, s2, 11\ns_add_u32 s60, s60, {hex(H2+MIR)}")
        A("s_add_u32 s62, s28, s60\ns_addc_u32 s63, s29, 0")
        if OPT["spre"] & 2:
            A("s_cmp_ge_u32 s2, 128\ns_cbranch_scc1 L_end")
            for i in range(16): A(f"s_load_dword s{4+(i%8)}, s[62:63], {128*i}")
    A("s_endpgm")

LB("L_special")
C("================= special waves =================")
ts_reset()
A("v_and_b32 v6, 1, v2\nv_lshlrev_b32 v6, 10, v6\nv_lshl_add_u32 v6, v3, 3, v6")
A("s_cmp_eq_u32 s30, 0\ns_cbranch_scc1 L_w0")
A("s_cmp_eq_u32 s30, 1\ns_cbranch_scc1 L_w1")
A("s_cmp_eq_u32 s30, 3\ns_cbranch_scc1 L_w3")
A("s_waitcnt lgkmcnt(0)")
ts0()
ws_srds()
epoch_load()
if OPT.get("tlbw", 0):
    A("v_mov_b32 v4, 0")
    A("s_mov_b32 exec_lo, 1\ns_mov_b32 exec_hi, 0")
    srd(36, 24, 2048)
    A("buffer_load_dword v16, v4, s[36:39], 0 offen")
    srd(40, 8, 0x8000000)
    A(f"buffer_load_dword v17, v4, s[40:43], s50 offen {KVF}")
    srd(76, 12, 0x400000)
    A("s_lshl_b32 s60, s54, 17")
    A(f"buffer_load_dword v18, v4, s[76:79], s60 offen {WF}")
    srd(84, 20, 1792 * 1024)
    A("s_lshl_b32 s60, s55, 16")
    A(f"buffer_load_dword v19, v4, s[84:87], s60 offen {WF}")
    A("s_mov_b64 exec, -1")
if OPT["dry"]:
    for v in range(4, 16): A(f"v_mov_b32 v{v}, 0")
    A("s_mov_b64 exec, 0")
    A("s_branch L_d4")
LB("L_w2ret")
A("s_mov_b64 exec, -1")
fconsts(); consts()
A("s_waitcnt lgkmcnt(0)")
tags()
A("s_branch L_vload")

LB("L_w3")
A("v_lshlrev_b32 v5, 4, v0")
A("s_waitcnt lgkmcnt(0)")
ts0()
srd(36, 4, 2048)
srd(40, 22, 1024)
A("buffer_load_dwordx4 v[16:19], v5, s[36:39], 0 offen")
A("buffer_load_dwordx4 v[20:23], v5, s[36:39], 0 offen offset:1024")
A("buffer_load_dwordx4 v[24:27], v5, s[40:43], 0 offen")
ws_srds()
epoch_load()
fconsts(); consts()
A("s_waitcnt vmcnt(0)")
for src, dst in ((24, 32), (16, 40), (20, 48)):
    for w in range(4):
        A(f"v_lshlrev_b32 v{dst+2*w}, 16, v{src+w}\nv_and_b32 v{dst+2*w+1}, 0xffff0000, v{src+w}")
for b in range(2):
    for e in range(8):
        A(f"v_mul_f32 v{40+8*b+e}, v{40+8*b+e}, v{32+e}")
bf16_round_pairs(list(range(40, 56)), list(range(16, 24)))
for b in range(2):
    o = 40 + 8 * b
    A(f"v_add_f32 v{o}, v{o}, v{o+1}\nv_add_f32 v{o+2}, v{o+2}, v{o+3}\nv_add_f32 v{o+4}, v{o+4}, v{o+5}\nv_add_f32 v{o+6}, v{o+6}, v{o+7}")
    A(f"v_add_f32 v{o}, v{o}, v{o+2}\nv_add_f32 v{o+4}, v{o+4}, v{o+6}\nv_add_f32 v{o}, v{o}, v{o+4}")
rowsum([40, 48])
xrow_multi("v_add_f32", [40, 48], [41, 49])
A("v_mov_b32 v41, v48")
bf16_round_pairs([40, 41], [16])
A("v_mul_f32 v40, s70, v40\nv_mul_f32 v41, s70, v41")
A("v_exp_f32 v40, v40\nv_exp_f32 v41, v41")
A("s_nop 0")
A("v_add_f32 v40, 1.0, v40\nv_add_f32 v41, 1.0, v41")
A("v_rcp_f32 v40, v40\nv_rcp_f32 v41, v41")
A("s_nop 0")
bf16_round_pairs([40, 41], [16])
A("v_sub_f32 v42, 1.0, v40\nv_sub_f32 v43, 1.0, v41")
bf16_round_pairs([42, 43], [16])
A(f"v_mov_b32 v4, {GT}")
A("ds_write_b128 v4, v[40:43]")
A("s_waitcnt lgkmcnt(0)")
tags()

LB("L_vload")
srd(40, 8, 0x8000000)
A("s_sub_u32 s35, s30, 2")
A("s_lshl_b32 s60, s35, 2\nv_add_u32 v4, s60, v3\nv_lshrrev_b32 v5, 1, v2\nv_xor_b32 v4, v4, v5")
A("v_and_b32 v5, 1, v2\nv_lshl_add_u32 v4, v4, 1, v5\nv_lshlrev_b32 v4, 4, v4\nv_lshl_add_u32 v4, v3, 8, v4")
A("s_lshl_b32 s61, s35, 10\ns_add_u32 s62, s50, s61")
A("s_and_b32 s60, s51, 15\ns_lshl_b32 s60, s60, 12")
A(f"v_mov_b32 v12, {CNT}\nv_mov_b32 v13, 1")
A(f"s_lshl_b32 s63, s35, 2\ns_add_u32 s63, s63, {CNT+O_VL}\nv_mov_b32 v11, s63")
A("v_mov_b32 v8, 4\nv_mov_b32 v9, 6\nv_mov_b32 v10, 8\nv_mov_b32 v7, 7")
def vblk(i):
    A(f"s_add_u32 s63, s62, s60\ns_add_u32 m0, s61, {VI + 4096*i}")
    A("s_add_u32 s60, s60, 4096\ns_and_b32 s60, s60, 0xffff")
    A(f"buffer_load_dwordx4 v4, s[40:43], s63 offen {KVF} lds")
    A(f"buffer_load_dwordx4 v4, s[40:43], s63 offen offset:2048 {KVF} lds")
lds_spin("L_b2", 12, O_B2, 8)
VB = 0
IB = OPT.get("ib", 16)
for i in range(2 * VB, 17):
    if VB2 and i == 2 * VB + VB2: A("s_barrier\ns_barrier")
    if i == max(IB, 2 * VB):
        A("s_mov_b32 exec_lo, 1\ns_mov_b32 exec_hi, 0")
        A(f"ds_add_u32 v12, v13 offset:{O_I}")
        A("s_mov_b64 exec, -1")
    if OPT.get("w1e") and i == OPT.get("hb", 6):
        A("s_mov_b32 exec_lo, 1\ns_mov_b32 exec_hi, 0")
        A(f"ds_add_u32 v12, v13 offset:{O_V}")
        A("s_mov_b64 exec, -1")
    if OPT.get("xb") and i == OPT["xb"]: lds_spin("L_xbspin", 12, O_Q, 8)
    if i == 14: lds_spin("L_k7spin", 12, O_K7, 1)
    if i < 16: vblk(i)
A("s_mov_b32 exec_lo, 1\ns_mov_b32 exec_hi, 0")
ts()
A("s_waitcnt vmcnt(16)")
A("ds_write_b32 v11, v8")
ts()
A("s_waitcnt vmcnt(8)")
A("ds_write_b32 v11, v9")
A("s_waitcnt vmcnt(4)")
A("ds_write_b32 v11, v7")
A("s_mov_b64 exec, -1")
A("s_waitcnt vmcnt(0)")
A("s_barrier")
ts()
A("s_branch L_final")

LB("L_w0")
ts_reset()
if OPT.get("w0p"): A("s_setprio 3")
A("s_lshl_b32 s61, s52, 8")
A("s_waitcnt lgkmcnt(0)")
ts0()
XA, BB, AC = 16, 32, 96
A(f"s_add_u32 s61, s61, {XS}\nv_add_u32 v6, s61, v6")
ws_srds()
epoch_load()
fconsts(); consts()
for q4 in range(4): tr_addr(8 + q4, q4, 12, 13, WQI)
A(f"v_lshlrev_b32 v12, 2, v0\nv_add_u32 v12, {QT}, v12\nv_and_b32 v13, 31, v0\nv_lshlrev_b32 v13, 4, v13\nv_add_u32 v13, {QT}, v13")
A("v_and_b32 v14, 1, v3\nv_lshlrev_b32 v14, 13, v14\nv_lshl_add_u32 v14, v2, 4, v14")
A("s_lshl_b32 s62, s31, 14\ns_lshl_b32 s63, s52, 11\ns_add_u32 s62, s62, s63\ns_lshl_b32 s63, s53, 8\ns_add_u32 s62, s62, s63")
A(f"s_add_u32 s62, s62, {hex(QX)}")
A("s_waitcnt lgkmcnt(0)")
tags()
A("v_mov_b32 v5, s58")
A(f"v_mov_b32 v4, {CNT}")
lds_spin("L_wspin", 4, O_W, 4)
ts()
LB("L_d4")
for t in range(4): A(f"ds_read2_b64 v[{XA+4*t}:{XA+4*t+3}], v6 offset0:{8*t} offset1:{8*t+4}")
seq = [(q4, t) for q4 in range(4) for t in range(4)]
D = 5
def issue(k):
    q4, t = seq[k]; tr_read(BB + 4 * k, 8 + q4, 0, t)
for k in range(D): issue(k)
for k in range(16):
    q4, t = seq[k]
    A(f"s_waitcnt lgkmcnt({2*(min(16,k+D)-k)-2})")
    mfma(AC + 4 * q4, XA + 4 * t, BB + 4 * k, None if t == 0 else AC + 4 * q4)
    if k + D < 16: issue(k + D)
A("s_nop 7\ns_nop 1")
for r in range(2): select4([AC + 4 * q + r for q in range(4)])
A("s_nop 0")
for r in range(2): A(f"v_permlane32_swap_b32 v{AC+r}, v{AC+8+r}")
A("s_nop 0")
A(f"ds_write_b32 v12, v{AC}\nds_write_b32 v12, v{AC+1} offset:256")
A("ds_read_b128 v[116:119], v13")
A("s_waitcnt lgkmcnt(0)")
stamp(112, [116, 117, 118, 119], 5)
A("s_mov_b32 exec_hi, 0")
if OPT["dry"]: A("s_cbranch_execz L_w2ret")
publish(112, 14, "s62")
A(f"v_mov_b32 v12, {CNT}\nv_mov_b32 v8, 1")
A(f"ds_write_b32 v12, v8 offset:{O_B1}")
if OPT.get("w0p"): A("s_setprio 0")
A("s_mov_b64 exec, -1")
ts()
srd(36, 12, 0x400000)
srd(40, 20, 1792 * 1024)
dma_voff(4, 10, 8, 9)
if OPT.get("cshift"):
    A(f"s_add_u32 s63, s53, {OPT['cshift']}\ns_and_b32 s63, s63, 7\ns_lshl_b32 s63, s63, 7\ns_lshl_b32 s60, s54, 17\ns_add_u32 s60, s60, s63")
else:
  A("s_lshl_b32 s60, s54, 17\ns_lshl_b32 s63, s53, 7\ns_add_u32 s60, s60, s63")
A("s_lshl_b32 s61, s55, 16\ns_add_u32 s61, s61, s63")
A(f"v_mov_b32 v12, {CNT}\nv_mov_b32 v8, 1\nv_mov_b32 v9, 2\nv_mov_b32 v10, 3")
lds_spin("L_ispin", 12, O_I, 3)
ts()
A("s_cmp_eq_u32 s49, 0\ns_cbranch_scc1 L_w0_nowd")
for i in range(8):
    A(f"s_mov_b32 m0, {WDI+1024*i}")
    if i: A(f"s_add_u32 s61, s61, {8*1024}")
    else: A("s_nop 0")
    A(f"buffer_load_dwordx4 v4, s[40:43], s61 offen {WF} lds")
LB("L_w0_nowd")
for i in range(16):
    A(f"s_mov_b32 m0, {WOI+1024*i}")
    if i: A(f"s_add_u32 s60, s60, {8*1024}")
    else: A("s_nop 0")
    A(f"buffer_load_dwordx4 v4, s[36:39], s60 offen {WF} lds")
ts()
A("s_barrier\ns_barrier")
A("s_waitcnt vmcnt(16)")
A(f"ds_write_b32 v12, v8 offset:{O_STAGE}")
ts()
A("s_waitcnt vmcnt(8)")
A(f"ds_write_b32 v12, v9 offset:{O_STAGE}")
ts()
A("s_waitcnt vmcnt(0)")
A(f"ds_write_b32 v12, v10 offset:{O_STAGE}")
ts()
A("s_mov_b32 s75, 1")
A("s_branch L_final0")

LB("L_w1_idle")
A("s_waitcnt lgkmcnt(0)")
ts0()
ws_srds()
epoch_load()
fconsts(); consts()
A("s_waitcnt lgkmcnt(0)")
tags()
A(f"v_mov_b32 v11, {CNT}\nv_mov_b32 v14, 1")
A("s_mov_b32 exec_lo, 1\ns_mov_b32 exec_hi, 0")
A(f"ds_add_u32 v11, v14 offset:{O_I}")
A("s_mov_b64 exec, -1")
A("s_barrier")
A("s_branch L_final")
LB("L_w1")
ts_reset()
A("s_cmp_eq_u32 s49, 0\ns_cbranch_scc1 L_w1_idle")
A("s_lshl_b32 s61, s53, 7")
A("s_waitcnt lgkmcnt(0)")
ts0()
A(f"s_add_u32 s61, s61, {XS}\nv_add_u32 v6, s61, v6")
ws_srds()
epoch_load()
fconsts(); consts()
for q4 in range(4): tr_addr(8 + q4, q4, 12, 13, GI)
A("v_lshlrev_b32 v5, 4, v0")
A("s_lshl_b32 s62, s55, 13")
A(f"s_add_u32 s62, s62, {hex(HX)}")
A("s_lshl_b32 s63, s53, 10\ns_add_u32 s63, s63, s62")
A("s_add_u32 s61, s62, 4096")
A(f"v_lshlrev_b32 v12, 1, v0\nv_add_u32 v12, {HS}, v12")
A(f"v_mov_b32 v13, {CNT+O_H}\nv_mov_b32 v14, 1")
A("s_waitcnt lgkmcnt(0)")
tags()
A("v_mov_b32 v4, s58")
A(f"v_mov_b32 v7, {CNT}")
lds_spin("L_gspin", 7, O_G, 4)
ts()
LB("L_d5")
for t in range(2): A(f"ds_read2_b64 v[{XA+4*t}:{XA+4*t+3}], v6 offset0:{8*t} offset1:{8*t+4}")
seq = [(mat, q4, t) for mat in range(2) for q4 in range(4) for t in range(2)]
BB1 = 24
AC1 = 88
def issue(k):
    mat, q4, t = seq[k]; tr_read(BB1 + 4 * k, 8 + q4, (UI - GI) if mat else 0, t)
for k in range(D): issue(k)
for k in range(16):
    mat, q4, t = seq[k]
    A(f"s_waitcnt lgkmcnt({2*(min(16,k+D)-k)-2})")
    acc = AC1 + 16 * mat + 4 * q4
    mfma(acc, XA + 4 * t, BB1 + 4 * k, None if t == 0 else acc)
    if k + D < 16: issue(k + D)
A("s_nop 7\ns_nop 1")
for mat in range(2):
    for r in range(2): select4([AC1 + 16 * mat + 4 * q + r for q in range(4)])
A("s_nop 0")
for mat in range(2):
    for r in range(2): A(f"v_permlane32_swap_b32 v{AC1+16*mat+r}, v{AC1+16*mat+8+r}")
A("s_nop 0")
stamp(120, [AC1, AC1 + 1, AC1 + 16, AC1 + 17], 4)
dry_end()
publish(120, 5, "s63")
ts()
HG = 16
def hgather(sr=FA):
    for rb in range(8):
        r = HG + 4 * rb
        A(f"buffer_load_dwordx4 v[{r}:{r+3}], v5, {sr}, s{62 - rb//4} offen offset:{(rb%4)*1024} sc1")
A(f"v_mov_b32 v11, {CNT}")
A("s_mov_b32 exec_lo, 1\ns_mov_b32 exec_hi, 0")
A(f"ds_add_u32 v11, v14 offset:{O_I}")
A("s_mov_b64 exec, -1")
lds_spin("L_hw", 11, O_V, 2)
hgather()
ts()
LB("L_d3")
A("s_waitcnt vmcnt(0)")
poll_check("L_hchk", [HG + 4 * i for i in range(8)], 96, hgather, tagcheck_dense, 4)
ts()
for c in range(32): A(f"v_and_b32 v{HG+c}, 0xffffff00, v{HG+c}")
for step in (16, 8, 4):
    for base in range(HG, HG + step, 4):
        for o in range(4):
            A(f"v_add_f32 v{base+o}, v{base+o}, v{base+step+o}")
bf16_round_pairs([16, 17, 18, 19], [24, 25])
A("v_mul_f32 v24, s70, v16\nv_mul_f32 v25, s70, v17")
A("v_exp_f32 v24, v24\nv_exp_f32 v25, v25")
A("s_nop 0")
A("v_add_f32 v24, 1.0, v24\nv_add_f32 v25, 1.0, v25")
A("v_rcp_f32 v24, v24\nv_rcp_f32 v25, v25")
A("s_nop 0")
A("v_mul_f32 v16, v16, v24\nv_mul_f32 v17, v17, v25")
bf16_round_pairs([16, 17], [24])
A("v_mul_f32 v16, v16, v18\nv_mul_f32 v17, v17, v19")
A("v_cvt_pk_bf16_f32 v24, v16, v17")
A("ds_write_b16 v12, v24")
A("ds_write_b16_d16_hi v12, v24 offset:128")
A("ds_write_b32 v13, v14")
ts()
hbar()

LB("L_final")
A("s_mov_b32 s75, 0")
LB("L_final0")
if TS: ts_n[0] = 8
tr_addr(8, "s30", 12, 13, WOI)
A(f"v_mov_b32 v12, {CNT}")
A(f"v_and_b32 v9, 1, v2\nv_lshlrev_b32 v10, 7, v9\nv_lshl_add_u32 v10, v3, 3, v10\nv_add_u32 v10, {HS}, v10")
A(f"v_lshlrev_b32 v9, 8, v9\nv_lshl_add_u32 v9, v3, 3, v9\nv_add_u32 v9, {OV}, v9")
A("v_lshrrev_b32 v11, 2, v2\nv_lshlrev_b32 v11, 11, v11\nv_and_b32 v13, 3, v2\nv_lshl_add_u32 v11, v13, 4, v11")
A("s_lshl_b32 s60, s53, 15\ns_lshl_b32 s61, s30, 13\ns_add_u32 s60, s60, s61\ns_lshl_b32 s61, s54, 6\ns_add_u32 s60, s60, s61")
A(f"s_add_u32 s60, s60, {hex(H2)}")
A(f"v_and_b32 v7, 31, v0\nv_mul_u32_u24 v7, {OBS}, v7")
A(f"s_mul_i32 s61, s31, {32*OBS}\ns_lshl_b32 s62, s52, 4\ns_add_u32 s61, s61, s62")
A(f"s_add_u32 s61, s61, {hex(H1+2048)}")
A(f"v_mov_b32 v13, {GT}")
A("ds_read_b128 v[60:63], v13")
A("v_mov_b32 v65, s58\nv_mov_b32 v67, s59")
A("v_mov_b32 v56, 0\nv_mov_b32 v57, 0")
A("s_cmp_eq_u32 s75, 1\ns_cbranch_scc1 L_nobp")
hbar()
LB("L_nobp")
def lgather(sr=FA):
    A(f"buffer_load_dwordx4 v[68:71], v7, {sr}, s61 offen sc1")
memgrp(lgather)
A("s_cmp_eq_u32 s49, 0\ns_cbranch_scc1 L_f_nofb")
lds_spin("L_fs1", 12, O_STAGE, 1)
for t in range(2): tr_read(16 + 4 * t, 8, WDI - WOI, t)
lds_spin("L_fs2", 12, O_H, 1)
for t in range(2):
    A(f"ds_read2_b64 v[{24+4*t}:{27+4*t}], v10 offset0:{8*t} offset1:{8*t+4}")
A("s_waitcnt lgkmcnt(0)")
mfma(56, 24, 16, None)
mfma(56, 28, 20, 56)
A("s_nop 7\ns_nop 1")
A("v_mul_f32 v56, v56, v62\nv_mul_f32 v57, v57, v63")
LB("L_f_nofb")
ts()
lds_spin("L_fs3", 12, O_STAGE, 3)
for t in range(4): tr_read(16 + 4 * t, 8, 0, t)
ts()
A("s_waitcnt vmcnt(0)")
poll_check("L_lchk", [68], 72, lgather)
A("v_mov_b32 v72, v70")
A("v_mov_b32 v73, v70")
for sh in (8, 4, 2, 1):
    A("s_nop 1")
    A(f"v_max_f32_dpp v73, v73, v73 row_ror:{sh} row_mask:0xf bank_mask:0xf")
A("v_sub_f32 v72, v72, v73\nv_mul_f32 v72, s69, v72\nv_exp_f32 v72, v72\ns_nop 0\nv_mul_f32 v72, v72, v68")
rowsum([72])
A("v_rcp_f32 v72, v72")
A("s_nop 1")
A("v_readlane_b32 s62, v72, 0\nv_readlane_b32 s63, v72, 16")
A("s_nop 1")
A("v_mul_f32 v60, s62, v60\nv_mul_f32 v61, s63, v61")
ts()
hbar()
for t in range(4):
    A(f"ds_read2_b64 v[{32+4*t}:{35+4*t}], v9 offset0:{8*t} offset1:{8*t+4}")
for t in range(4):
    A(f"s_waitcnt lgkmcnt({3-t})")
    mfma(48, 32 + 4 * t, 16 + 4 * t, None if t == 0 else 48)
exec_mask(0xffff, 0)
A("s_nop 6")
A("v_fma_f32 v64, v48, v60, v56\nv_fma_f32 v66, v49, v61, v57")
dry_end()
publish(64, 11, "s60", dual=False)
ts()
ts_dump()
LB("L_end")
A("s_endpgm")

L.append(f""".section .rodata,"a"
.p2align 6
.amdhsa_kernel {NAME}
  .amdhsa_next_free_vgpr 160
  .amdhsa_next_free_sgpr 102
  .amdhsa_accum_offset 160
  .amdhsa_group_segment_fixed_size 0
  .amdhsa_kernarg_size 104
  .amdhsa_user_sgpr_count 2
  .amdhsa_user_sgpr_kernarg_segment_ptr 1
  .amdhsa_system_sgpr_workgroup_id_x 1
.end_amdhsa_kernel""")
open(out, "w").write("\n".join(L) + "\n")
```

```python
import sys

OPT = dict(ts=0, kv_fl="nt", w_fl="nt", ka=4, w1e=1, w0p=1, vb=0, spin=400000, pst=0, dry=0, xb=9, otouch=1, slp=0, pre=0, prew=0, dual=1, bper=8, prio=3, lsl=0, spre=0)
out = sys.argv[1]
for a in sys.argv[2:]:
    k, v = a.split("=")
    OPT[k] = int(v) if v.lstrip("-").isdigit() else v.replace("+", " ").replace("none", "")
TS = OPT["ts"]

NAME = "gated_mix__sliding_block_cached__swiglu_ffn__decode_kernel"
HEADER = open("gated_mix__sliding_block_cached__swiglu_ffn__decode.s.ref").read().split("; Override launch")[0]

L = []
def A(s):
    for l in s.split("\n"):
        L.append("    " + l.strip())
def LB(s):
    L.append(s + ":")
def C(s):
    L.append("    ; " + s)

VI = 0
WQI = 65536
GI = 81920
UI = 90112
WOI = 65536
WDI = 81920
KI = 98304
SM = 155648
PS = SM
QS = SM + 2048
OV = SM + 3072
HS = SM + 3584
QT = SM + 3840
MX = SM + 4352
LS = SM + 4480
GT = SM + 4608
CNT = SM + 4624
O_Q, O_M, O_P, O_STAGE, O_H, O_K7, O_V, O_I, O_VL, O_B1, O_B2, O_B3, O_W, O_G = 0, 4, 8, 12, 16, 20, 24, 28, 32, 40, 44, 48, 52, 56
XS = SM + 4864
LDS_BYTES = SM + 4864 + 2048
WB = OPT.get('wb', 496) << 20
OBS = 2176
if OPT.get("compact", 1):
    QX = WB
    HX = WB + 0x20000
    H1 = WB + 0x58000
    MIR_ = 0xE0000
    H2 = WB + 0xE0000
    EPO = H1 + 2112
else:
    QX = WB + 0x10000
    HX = WB + 0x80000
    H1 = WB + 0x100000
    H2 = WB + 0x400000
    MIR_ = 0x800000
    EPO = 0
TSB = 0x800000

SCALE = 0x3DB504F3
LOG2E = 0x3FB8AA3B
NLOG2E = 0xBFB8AA3B
WF = OPT["w_fl"]

def srd(d, p, nbytes):
    A(f"s_mov_b32 s{d}, s{p}\ns_and_b32 s{d+1}, s{p+1}, 0xffff\ns_mov_b32 s{d+2}, {hex(nbytes)}\ns_mov_b32 s{d+3}, 0x20000")

ts_n = [0]
skip_n = [0]
def ts_reset():
    ts_n[0] = 1 if TS else 0
def ts():
    if not TS: return
    k = ts_n[0]; ts_n[0] += 1
    assert k < 16
    if TS == 3: return
    if TS == 6 and k != 12: return
    A(f"s_memrealtime s[72:73]\ns_waitcnt lgkmcnt(0)\nv_writelane_b32 v127, s72, {k}")
def ts_dump():
    if not TS or TS in (5, 6): return
    A("s_mov_b64 exec, -1")
    if TS == 2:
        skip_n[0] += 1
        lb = f"L_sk{skip_n[0]}"
        A(f"s_cmp_lg_u32 s2, {OPT.get('dbgwg', 0)}\ns_cbranch_scc1 {lb}")
        A(f"s_cmp_lg_u32 s30, {OPT.get('dbgwave', 11)}\ns_cbranch_scc1 {lb}")
        srd(76, 26, 256)
        A("v_readlane_b32 s60, v127, 0\ns_nop 1\nv_subrev_u32 v127, s60, v127")
        A("v_lshlrev_b32 v3, 2, v0")
        A("s_mov_b32 exec_lo, 0xffff\ns_mov_b32 exec_hi, 0")
        A("buffer_store_dword v127, v3, s[76:79], 0 offen")
        LB(lb)
        return
    A("s_mul_i32 s60, s2, 12\ns_add_u32 s60, s60, s30\ns_lshl_b32 s60, s60, 6")
    A(f"s_add_u32 s60, s60, {hex(TSB)}")
    A("v_lshlrev_b32 v3, 2, v0")
    A("s_mov_b32 exec_lo, 0xffff\ns_mov_b32 exec_hi, 0")
    A("buffer_store_dword v127, v3, s[44:47], s60 offen")

def tags():
    A("s_add_u32 s58, s56, 0x01010101\ns_add_u32 s59, s57, 0x9e3779b9")
    A("s_and_b32 s88, s58, 0xffff\ns_and_b32 s89, s58, 0xffff0000")

def tagcheck(bases, acc, t0, t1):
    first = True
    for b in bases:
        A(f"v_xor_b32 v{t0}, s58, v{b+1}")
        A(f"v_xor_b32 v{t1}, s59, v{b+3}")
        if first:
            A(f"v_or_b32 v{acc}, v{t0}, v{t1}"); first = False
        else:
            A(f"v_or3_b32 v{acc}, v{acc}, v{t0}, v{t1}")

def tagcheck_dense(bases, acc, t0, t1):
    first = True
    for b in bases:
        A(f"v_perm_b32 v{t0}, v{b+1}, v{b}, s92")
        A(f"v_perm_b32 v{t1}, v{b+3}, v{b+2}, s93")
        A(f"v_xor_b32 v{t0}, s88, v{t0}")
        A(f"v_xor_b32 v{t1}, s89, v{t1}")
        if first:
            A(f"v_or_b32 v{acc}, v{t0}, v{t1}"); first = False
        else:
            A(f"v_or3_b32 v{acc}, v{acc}, v{t0}, v{t1}")

def tagcheck_16(bases, acc, t0, t1):
    for i in range(0, len(bases), 2):
        b0 = bases[i]
        A(f"v_perm_b32 v{t0}, v{b0+1}, v{b0}, s92")
        A(f"v_xor_b32 v{t0}, s88, v{t0}")
        if i + 1 < len(bases):
            b1 = bases[i + 1]
            A(f"v_perm_b32 v{t1}, v{b1+1}, v{b1}, s92")
            A(f"v_xor_b32 v{t1}, s88, v{t1}")
            if i == 0: A(f"v_or_b32 v{acc}, v{t0}, v{t1}")
            else: A(f"v_or3_b32 v{acc}, v{acc}, v{t0}, v{t1}")
        else:
            if i == 0: A(f"v_mov_b32 v{acc}, v{t0}")
            else: A(f"v_or_b32 v{acc}, v{acc}, v{t0}")

def stamp(dst, srcs, tagv):
    for i in range(4):
        A(f"v_perm_b32 v{dst+i}, v{srcs[i]}, v{tagv}, s{94+i}")

def consts():
    A("s_mov_b32 s92, 0x0c0c0400\ns_mov_b32 s93, 0x04000c0c")
    A("s_mov_b32 s94, 0x07060500\ns_mov_b32 s95, 0x07060501\ns_mov_b32 s96, 0x07060502\ns_mov_b32 s97, 0x07060503")

def exec_mask(lo, hi):
    if not OPT["dry"]:
        A(f"s_mov_b32 exec_lo, {hex(lo)}")
        if hi is not None: A(f"s_mov_b32 exec_hi, {hex(hi)}")
        return
    A(f"s_and_b32 exec_lo, s90, {hex(lo)}" if lo != 0xffffffff else "s_mov_b32 exec_lo, s90")
    if hi is not None:
        A(f"s_and_b32 exec_hi, s91, {hex(hi)}" if hi else "s_mov_b32 exec_hi, 0")
def exec_all():
    A("s_mov_b64 exec, s[90:91]" if OPT["dry"] else "s_mov_b64 exec, -1")
def memgrp(fn):
    if not OPT["dry"]:
        fn(); return
    skip_n[0] += 1
    lb = f"L_sk{skip_n[0]}"
    A(f"s_cbranch_execz {lb}")
    fn()
    LB(lb)
def hbar():
    memgrp(lambda: A("s_barrier"))
def dry_end():
    if OPT["dry"]: A("s_cbranch_execz L_end")

MIR = MIR_
def ws_srds():
    srd(44, 28, 0x20000000)
    A(f"s_add_u32 s80, s28, {hex(MIR)}\ns_addc_u32 s81, s29, 0\ns_and_b32 s81, s81, 0xffff\ns_mov_b32 s82, {hex(0x20000000-MIR)}\ns_mov_b32 s83, 0x20000")
    A("s_mov_b32 s74, 0")

def publish(data, voff, soff, off=0, dual=True):
    o = f" offset:{off}" if off else ""
    if dual and OPT["dual"]:
        A(f"buffer_store_dwordx4 v[{data}:{data+3}], v{voff}, s[44:47], {soff} offen{o} {OPT.get('a_fl', '')}")
    A(f"buffer_store_dwordx4 v[{data}:{data+3}], v{voff}, s[80:83], {soff} offen{o} sc1")

def poll_check(label, bases, tmp, reissue, chk=tagcheck, grp=1, dual=True):
    dual = dual and OPT["dual"]
    LB(label)
    chk(bases, tmp, tmp + 1, tmp + 2)
    if grp >= 4:
        A(f"s_nop 1\nv_or_b32_dpp v{tmp}, v{tmp}, v{tmp} quad_perm:[1,0,3,2] row_mask:0xf bank_mask:0xf")
        A(f"s_nop 1\nv_or_b32_dpp v{tmp}, v{tmp}, v{tmp} quad_perm:[2,3,0,1] row_mask:0xf bank_mask:0xf")
    if grp >= 8:
        A(f"s_nop 1\nv_or_b32_dpp v{tmp}, v{tmp}, v{tmp} row_half_mirror row_mask:0xf bank_mask:0xf")
    A(f"v_cmp_ne_u32 vcc, 0, v{tmp}")
    A("s_nop 1")
    A(f"s_cbranch_vccz {label}_ok")
    if OPT.get("nopoll"): A(f"s_branch {label}_ok")
    A(f"s_sub_u32 s67, s67, 1\ns_cbranch_scc1 {label}_ok")
    A("s_mov_b64 exec, vcc")
    if OPT["slp"]: A(f"s_sleep {OPT['slp']}")
    if dual:
        A(f"s_add_u32 s74, s74, 1\ns_and_b32 s75, s74, {OPT['bper']-1}\ns_cbranch_scc0 {label}_b")
        reissue("s[44:47]")
        A("s_waitcnt vmcnt(0)")
        A(f"s_branch {label}")
        LB(label + "_b")
    reissue("s[80:83]")
    A("s_waitcnt vmcnt(0)")
    A(f"s_branch {label}")
    LB(label + "_ok")
    exec_all()

def xrow_multi(op, vs, ts_, steps=("v_permlane16_swap_b32", "v_permlane32_swap_b32")):
    for sw in steps:
        for v, t in zip(vs, ts_):
            A(f"v_mov_b32 v{t}, v{v}")
        if len(vs) < 2: A("s_nop 1")
        elif len(vs) < 3: A("s_nop 0")
        for v, t in zip(vs, ts_):
            A(f"{sw} v{v}, v{t}")
        A("s_nop 0")
        for v, t in zip(vs, ts_):
            A(f"{op} v{v}, v{v}, v{t}")

def xrow_t4(v):
    A(f"v_permlane16_swap_b32 v{v}, v{v+1}")
    A(f"v_permlane16_swap_b32 v{v+2}, v{v+3}")
    A("s_nop 0")
    A(f"v_add_f32 v{v}, v{v}, v{v+1}")
    A(f"v_add_f32 v{v+2}, v{v+2}, v{v+3}")
    A("s_nop 1")
    A(f"v_permlane32_swap_b32 v{v}, v{v+2}")
    A("s_nop 0")
    A(f"v_add_f32 v{v}, v{v}, v{v+2}")

def transpose8(raw, dst, pairs=(0, 1, 2, 3)):
    for v in pairs:
        for w in range(4):
            a = raw + 4 * (2 * v) + w
            b = raw + 4 * (2 * v + 1) + w
            A(f"v_perm_b32 v{dst + 4*(2*w) + v}, v{b}, v{a}, s64")
            A(f"v_perm_b32 v{dst + 4*(2*w+1) + v}, v{b}, v{a}, s65")

def bf16_round_pairs(vs, tmp):
    n = len(vs) // 2
    for i in range(n):
        A(f"v_cvt_pk_bf16_f32 v{tmp[i]}, v{vs[2*i]}, v{vs[2*i+1]}")
    for i in range(n):
        A(f"v_lshlrev_b32 v{vs[2*i]}, 16, v{tmp[i]}")
        A(f"v_and_b32 v{vs[2*i+1]}, 0xffff0000, v{tmp[i]}")

def lds_spin(label, addr_v, off, val):
    if OPT["dry"]: A(f"s_cbranch_execz {label}_x")
    LB(label)
    A(f"ds_read_b32 v15, v{addr_v} offset:{off}")
    A("s_waitcnt lgkmcnt(0)")
    A("v_readfirstlane_b32 s66, v15")
    A("s_sub_u32 s67, s67, 1")
    A(f"s_cbranch_scc1 {label}_x")
    if OPT.get("lsl") and label in ("L_ispin",): A(f"s_sleep {OPT['lsl']}")
    if OPT.get("ksl") and label in ("L_qspin", "L_mspin", "L_pspin1"):
        A(f"s_cmp_ge_u32 s66, {val}\ns_cbranch_scc1 {label}_x\ns_sleep {OPT['ksl']}")
    A(f"s_cmp_lt_u32 s66, {val}")
    A(f"s_cbranch_scc1 {label}")
    LB(label + "_x")

def lds_spin_data(label, off, val, reads):
    lds_spin(label, 12, off, val)
    reads()
    A("s_waitcnt lgkmcnt(0)")

def rowsum(vs, shifts=(8, 4, 2, 1)):
    for sh in shifts:
        if len(vs) < 3: A("s_nop 1")
        for v in vs:
            A(f"v_add_f32_dpp v{v}, v{v}, v{v} row_ror:{sh} row_mask:0xf bank_mask:0xf")

def dma_voff(dst, stride_sreg_or_shift, t0, t1):
    A(f"v_bfe_u32 v{t0}, v0, 1, 2\nv_bfe_u32 v{t1}, v0, 4, 2\nv_xor_b32 v{t0}, v{t0}, v{t1}")
    A(f"v_and_b32 v{t1}, 1, v0\nv_lshl_add_u32 v{t0}, v{t0}, 1, v{t1}\nv_lshlrev_b32 v{t0}, 4, v{t0}")
    A(f"v_lshrrev_b32 v{t1}, 3, v0")
    if isinstance(stride_sreg_or_shift, int):
        A(f"v_lshl_add_u32 v{dst}, v{t1}, {stride_sreg_or_shift}, v{t0}")
    else:
        A(f"v_mul_lo_u32 v{t1}, v{t1}, {stride_sreg_or_shift}\nv_add_u32 v{dst}, v{t1}, v{t0}")

def tr_addr(dst, q4, t0, t1, base):
    A(f"v_bfe_u32 v{t0}, v0, 3, 2")
    A(f"v_xor_b32 v{t0}, {q4}, v{t0}")
    A(f"v_lshlrev_b32 v{t0}, 5, v{t0}")
    A(f"v_and_b32 v{t1}, 3, v0\nv_lshl_add_u32 v{t0}, v{t1}, 3, v{t0}")
    A(f"v_lshrrev_b32 v{t1}, 2, v0\nv_lshl_add_u32 v{dst}, v{t1}, 7, v{t0}")
    A(f"v_add_u32 v{dst}, {base}, v{dst}")

def tr_read(dst, addr_v, off, t):
    A(f"ds_read_b64_tr_b16 v[{dst}:{dst+1}], v{addr_v} offset:{off + 4096*t}")
    A(f"ds_read_b64_tr_b16 v[{dst+2}:{dst+3}], v{addr_v} offset:{off + 4096*t + 2048}")

def lds_spin2(label, addr_v, off, val):
    if OPT["dry"]: A(f"s_cbranch_execz {label}_x")
    LB(label)
    A(f"ds_read_b64 v[14:15], v{addr_v} offset:{off}")
    A("s_waitcnt lgkmcnt(0)")
    A("v_min_u32 v15, v14, v15")
    A("s_sub_u32 s67, s67, 1")
    A("v_readfirstlane_b32 s66, v15")
    A(f"s_cbranch_scc1 {label}_x")
    A(f"s_cmp_lt_u32 s66, {val}")
    A(f"s_cbranch_scc1 {label}")
    LB(label + "_x")

def bump(off):
    exec_mask(1, 0)
    A(f"ds_add_u32 v12, v13 offset:{off}")
    exec_all()

def mfma(d, a, b, c):
    cs = "0" if c is None else f"v[{c}:{c+3}]"
    A(f"v_mfma_f32_16x16x32_bf16 v[{d}:{d+3}], v[{a}:{a+3}], v[{b}:{b+3}], {cs}")

def select4(xs):
    A(f"v_permlane16_swap_b32 v{xs[0]}, v{xs[1]}")
    A(f"v_permlane16_swap_b32 v{xs[2]}, v{xs[3]}")

NWAVES = 16 if OPT["dry"] else 12
L.append(HEADER.rstrip())
L.append(f"; @launch grid=(256,1,1) block=({NWAVES*64},1,1) lds={LDS_BYTES}")
L.append("""; Fused decode step, one launch, 256 workgroups (one per CU) x 12 waves.
;   share an L2) and a write-through copy that is visible under any placement.""")
L.append('.amdgcn_target "amdgcn-amd-amdhsa--gfx950"')
L.append(".text")
L.append(f".globl {NAME}\n.p2align 8\n.type {NAME},@function\n{NAME}:")
A("s_cmp_ge_u32 s2, 256\ns_cbranch_scc1 L_end")
if OPT.get("xorwg"): A(f"s_xor_b32 s2, s2, {OPT['xorwg']}")
if OPT.get("remap"): A("s_and_b32 s3, s2, 31\ns_lshl_b32 s3, s3, 3\ns_lshr_b32 s2, s2, 5\ns_or_b32 s2, s2, s3")
if OPT.get("late"):
    A("s_and_b32 s31, s2, 7\ns_cmp_lg_u32 s31, 3\ns_cbranch_scc1 L_nolate")
    A(f"s_memrealtime s[72:73]\ns_waitcnt lgkmcnt(0)\ns_add_u32 s74, s72, {OPT['late']}")
    LB("L_late")
    A("s_memrealtime s[72:73]\ns_waitcnt lgkmcnt(0)\ns_sub_u32 s75, s72, s74\ns_cmp_lt_i32 s75, 0\ns_cbranch_scc1 L_late")
    LB("L_nolate")
A("v_lshrrev_b32 v1, 6, v0")
A("v_and_b32 v0, 63, v0")
A("s_and_b32 s31, s2, 7")
A("v_readfirstlane_b32 s30, v1")
A("s_nop 0")
A("s_cmp_lg_u32 s30, 2\ns_cbranch_scc1 L_noinit")
A(f"v_lshlrev_b32 v4, 2, v0\nv_add_u32 v4, {CNT}, v4\nv_mov_b32 v8, 0")
A("s_mov_b32 exec_lo, 0xffff\ns_mov_b32 exec_hi, 0")
A("ds_write_b32 v4, v8")
A("s_mov_b64 exec, -1")
A("s_waitcnt lgkmcnt(0)")
LB("L_noinit")
A("s_load_dwordx16 s[4:19], s[0:1], 0")
A("s_load_dwordx8 s[20:27], s[0:1], 64")
A("s_load_dwordx2 s[28:29], s[0:1], 96")
if TS or OPT.get("diag"): A("s_memrealtime s[72:73]")
A("s_barrier")
if OPT["dry"]:
    A("s_cmp_lt_u32 s30, 12\ns_cbranch_scc1 L_main")
    if OPT.get("cpf", 0):
        A("s_getpc_b64 s[60:61]")
        LB("L_pc")
        A(f"s_sub_u32 s62, s30, 12\ns_mul_i32 s62, s62, {OPT.get('cpf', 0)*128}")
        A(f"s_add_u32 s63, s62, {OPT.get('cpf', 0)*128}")
        LB("L_pf")
        A("s_load_dword s36, s[60:61], s62")
        A("s_add_u32 s62, s62, 128\ns_cmp_lt_u32 s62, s63\ns_cbranch_scc1 L_pf")
    A("s_branch L_helper")
    LB("L_main")
A("s_lshr_b32 s32, s2, 3")
A("s_lshr_b32 s33, s32, 4")
A("s_and_b32 s34, s32, 15")
A(f"s_mov_b32 s67, {OPT['spin']}")
if OPT["dry"]: A("s_mov_b64 s[90:91], -1")
A("v_and_b32 v2, 15, v0")
A("v_lshrrev_b32 v3, 4, v0")
A("s_lshr_b32 s52, s32, 3")
A("s_and_b32 s53, s32, 7")
A("s_lshl_b32 s54, s31, 2\ns_add_u32 s54, s54, s52")
A("s_lshl_b32 s50, s33, 3\ns_add_u32 s50, s50, s31\ns_lshl_b32 s50, s50, 23")
A("s_lshl_b32 s51, s34, 16\ns_add_u32 s50, s50, s51\ns_add_u32 s50, s50, 0x700000")
A(f"s_mul_i32 s51, s32, {OPT.get('rotm', 5)}\ns_add_u32 s51, s51, s31")
A("s_and_b32 s49, s54, 7\ns_cmp_lg_u32 s49, 7\ns_cselect_b32 s49, 1, 0")
A("s_lshr_b32 s55, s54, 3\ns_sub_u32 s55, s54, s55")
A("s_cmp_lt_u32 s30, 4\ns_cbranch_scc1 L_special")

def epoch_load():
    if EPO:
        A(f"s_mov_b32 s56, {hex(EPO)}\ns_load_dwordx2 s[56:57], s[28:29], s56")
    else:
        A("s_load_dwordx2 s[56:57], s[28:29], 0")
def fconsts():
    A(f"s_mov_b32 s68, {hex(SCALE)}\ns_mov_b32 s69, {hex(LOG2E)}\ns_mov_b32 s70, {hex(NLOG2E)}")
def ts0():
    if TS: A("v_writelane_b32 v127, s72, 0")

C("================= K / attention waves =================")
ts_reset()
A("s_sub_u32 s35, s30, 4")
A("s_lshl_b32 s62, s35, 1\ns_add_u32 s62, s62, s51")
A("s_add_u32 s63, s62, 1\ns_and_b32 s62, s62, 15\ns_and_b32 s63, s63, 15")
A("s_lshl_b32 s62, s62, 12\ns_lshl_b32 s63, s63, 12")
A("s_add_u32 s61, s50, s63\ns_add_u32 s60, s50, s62")
for u in range(4):
    A(f"v_add_u32 v{104+u}, {4*u}, v3\nv_xor_b32 v{104+u}, v{104+u}, v2\nv_lshlrev_b32 v{104+u}, 4, v{104+u}\nv_lshl_add_u32 v{104+u}, v3, 8, v{104+u}")
A(f"s_lshl_b32 s84, s35, 13\ns_add_u32 s84, s84, {KI}\ns_cmp_eq_u32 s35, 7\ns_cselect_b32 s84, {VI+57344}, s84")
A("s_add_u32 s85, s84, 4096")
dma_voff(112, 13, 114, 115)
A("s_movk_i32 s62, 3584\nv_mul_lo_u32 v113, v115, s62\nv_add_u32 v113, v113, v114")
A("s_lshl_b32 s62, s52, 20\ns_lshl_b32 s63, s31, 10\ns_add_u32 s62, s62, s63\ns_lshl_b32 s63, s53, 7\ns_add_u32 s62, s62, s63")
A("s_lshl_b32 s63, s35, 18\ns_add_u32 s62, s62, s63")
A(f"s_lshl_b32 s86, s35, 12\ns_add_u32 s86, s86, {WQI}")
A("s_lshl_b32 s87, s53, 2\ns_add_u32 s87, s87, s35\ns_mul_i32 s87, s87, 16*3584\ns_lshl_b32 s71, s55, 7\ns_add_u32 s87, s87, s71")
A(f"s_lshl_b32 s71, s35, 11\ns_add_u32 s71, s71, {GI}")
A("s_mov_b32 m0, s86")
A("s_cmp_lt_u32 s35, 4\ns_cselect_b32 s49, s49, 2")
A("s_waitcnt lgkmcnt(0)")
ts0()
A("s_cmp_eq_u32 s49, 2\ns_cbranch_scc1 L_nogu")
A("s_cmp_gt_u32 s35, 1\ns_cbranch_scc1 L_nox")
srd(76, 4, 2048)
A(f"s_lshl_b32 s63, s35, 10\ns_add_u32 m0, s63, {XS}\nv_lshlrev_b32 v114, 4, v0")
A("buffer_load_dwordx4 v114, s[76:79], s63 offen lds")
A("s_mov_b32 m0, s86")
LB("L_nox")
srd(40, 10, 0x400000)
for i in range(4):
    if i: A(f"s_add_u32 m0, s86, {1024*i}\ns_add_u32 s62, s62, 65536")
    A(f"buffer_load_dwordx4 v112, s[40:43], s62 offen {WF} lds")
A("s_cmp_eq_u32 s49, 0\ns_cbranch_scc1 L_nogu")
srd(76, 16, 512 * 3584)
A("s_mov_b32 m0, s71")
srd(92, 18, 512 * 3584)
for i in range(2):
    if i: A(f"s_add_u32 m0, s71, 1024\ns_add_u32 s87, s87, {8*3584}")
    A(f"buffer_load_dwordx4 v113, s[76:79], s87 offen {WF} lds")
    A(f"s_add_u32 m0, s71, {UI-GI+1024*i}\ns_nop 0")
    A(f"buffer_load_dwordx4 v113, s[92:95], s87 offen {WF} lds")
LB("L_nogu")
A("s_mov_b32 s86, s49")
if TS == 5: A("s_memrealtime s[72:73]\ns_waitcnt lgkmcnt(0)\nv_writelane_b32 v127, s72, 8")
srd(36, 6, 0x8000000)
KR, QR = 16, 80
KVF = OPT["kv_fl"]
def kload(i):
    t, u = i // 4, i % 4
    if u == 0: A(f"s_mov_b32 m0, s{84+t}\ns_nop 0")
    A(f"buffer_load_dwordx4 v{104+u}, s[36:39], s{60+t} offen offset:{u*1024} {KVF} lds")
def kread(t):
    for j in range(4):
        i = 4 * t + j
        A(f"ds_read_b128 v[{KR+4*i}:{KR+4*i+3}], v{108+j} offset:{4096*t}")
FA = "s[44:47]" if OPT["dual"] else "s[80:83]"
def qgather(sr=FA):
    A(f"buffer_load_dwordx4 v[{QR}:{QR+3}], v6, {sr}, s62 offen sc1")
KA, VB = OPT["ka"], OPT["vb"]
ws_srds()
epoch_load()
fconsts(); consts()
A("s_lshl_b32 s62, s31, 1\ns_add_u32 s62, s62, s33\ns_lshl_b32 s62, s62, 13")
A("s_lshl_b32 s63, s35, 8\ns_add_u32 s62, s62, s63")
A(f"s_add_u32 s62, s62, {hex(QX)}")
A("v_lshlrev_b32 v6, 11, v3\nv_lshl_add_u32 v6, v2, 4, v6")
A(f"v_mov_b32 v12, {CNT}\nv_mov_b32 v13, 1")
for j in range(4):
    A(f"v_add_u32 v{108+j}, {4*j}, v3\nv_xor_b32 v{108+j}, v{108+j}, v2\nv_lshlrev_b32 v{108+j}, 4, v{108+j}\nv_lshl_add_u32 v{108+j}, v2, 8, v{108+j}\nv_add_u32 v{108+j}, s84, v{108+j}")
KY = OPT.get("ky", 8)
A("s_cmp_lg_u32 s86, 2\ns_cbranch_scc1 L_old1")
if OPT.get("late2"):
    A("s_cmp_lg_u32 s31, 3\ns_cbranch_scc1 L_nla")
    A("v_readlane_b32 s74, v127, 0\ns_nop 3")
    A(f"s_add_u32 s74, s74, {OPT['late2']}")
    LB("L_la")
    A("s_memrealtime s[72:73]\ns_waitcnt lgkmcnt(0)\ns_sub_u32 s75, s72, s74\ns_cmp_lt_i32 s75, 0\ns_cbranch_scc1 L_la")
    A("s_mov_b32 s74, 0")
    LB("L_nla")
for i in range(KY): kload(i)
if TS == 5: A("s_memrealtime s[72:73]\ns_waitcnt lgkmcnt(0)\nv_writelane_b32 v127, s72, 9")
LB("L_old1")
A("v_and_b32 v14, 3, v2")
A(f"s_lshl_b32 s71, s35, 7\ns_add_u32 s71, s71, {QS}")
A("v_lshl_add_u32 v10, v2, 3, s71\nv_lshl_add_u32 v10, v3, 1, v10")
A(f"v_lshlrev_b32 v11, 8, v14\nv_lshl_add_u32 v11, v3, 4, v11\nv_add_u32 v11, {QS}, v11")
A(f"v_lshlrev_b32 v8, 5, v14\nv_add_u32 v8, {MX}, v8")
A("s_lshl_b32 s71, s35, 2\nv_add_u32 v9, s71, v8")
A(f"v_lshl_add_u32 v7, v3, 2, v14\nv_lshlrev_b32 v7, 4, v7\nv_add_u32 v7, {PS}, v7")
A("s_lshl_b32 s71, s35, 8\nv_add_u32 v5, s71, v7")
A("v_bfe_u32 v120, v0, 2, 3\nv_xor_b32 v120, s35, v120\nv_lshlrev_b32 v120, 5, v120")
A("v_and_b32 v121, 3, v0\nv_lshl_add_u32 v120, v121, 3, v120\nv_lshrrev_b32 v121, 2, v0\nv_lshl_add_u32 v120, v121, 8, v120")
A("v_lshlrev_b32 v121, 9, v14\nv_lshl_add_u32 v121, v3, 4, v121")
A(f"s_lshl_b32 s76, s31, 5\ns_add_u32 s49, s76, s32\ns_mul_i32 s49, s49, {OBS}\ns_add_u32 s49, s49, {hex(H1)}")
A("s_lshl_b32 s71, s35, 6\ns_add_u32 s48, s49, s71")
A(f"v_lshrrev_b32 v122, 3, v2\nv_lshl_add_u32 v122, v122, 4, v3\nv_mul_u32_u24 v122, {OBS}, v122")
A("v_and_b32 v123, 7, v2\nv_lshl_add_u32 v122, v123, 4, v122")
A(f"s_mul_i32 s76, s76, {OBS}\ns_add_u32 s76, s76, {hex(H1)}")
A("s_lshl_b32 s71, s52, 9\ns_add_u32 s76, s76, s71\ns_lshl_b32 s71, s35, 7\ns_add_u32 s76, s76, s71")
for i in range(1, 4): A(f"s_add_u32 s{76+i}, s76, {i*4*OBS}")
A(f"s_lshl_b32 s71, s35, 6\ns_add_u32 s71, s71, {OV}")
A("v_lshrrev_b32 v124, 3, v2\nv_lshlrev_b32 v124, 8, v124\nv_lshl_add_u32 v124, v123, 3, v124\nv_lshl_add_u32 v124, v3, 1, v124\nv_add_u32 v124, s71, v124")
A("s_waitcnt lgkmcnt(0)")
tags()
if TS == 5: A("s_memrealtime s[72:73]\ns_waitcnt lgkmcnt(0)\nv_writelane_b32 v127, s72, 10")
A("s_cmp_eq_u32 s86, 2\ns_cbranch_scc1 L_young")
A("s_cmp_eq_u32 s86, 0\ns_cbranch_scc1 L_nogu2")
A("s_waitcnt vmcnt(4)")
bump(O_W)
A("s_waitcnt vmcnt(0)")
bump(O_G)
A("s_branch L_gu3")
LB("L_nogu2")
A("s_waitcnt vmcnt(0)")
bump(O_W)
LB("L_gu3")
if OPT.get("late2"):
    A("s_cmp_lg_u32 s31, 3\ns_cbranch_scc1 L_nlb")
    A("v_readlane_b32 s74, v127, 0\ns_nop 3")
    A(f"s_add_u32 s74, s74, {OPT['late2']}")
    LB("L_lb")
    A("s_memrealtime s[72:73]\ns_waitcnt lgkmcnt(0)\ns_sub_u32 s75, s72, s74\ns_cmp_lt_i32 s75, 0\ns_cbranch_scc1 L_lb")
    A("s_mov_b32 s74, 0")
    LB("L_nlb")
KO = OPT.get("ko", 0)
for i in range(KO): kload(i)
lds_spin("L_b1", 12, O_B1, 1)
ts()
if KO % 4: A(f"s_mov_b32 m0, s{84 + KO//4}\ns_nop 0")
for i in range(KO, 8): kload(i)
if KY < 8:
    A("s_branch L_young2")
    LB("L_young")
    lds_spin("L_b1y", 12, O_B1, 1)
    if KY % 4: A(f"s_mov_b32 m0, s{84 + KY//4}\ns_nop 0")
    for i in range(KY, 8): kload(i)
    LB("L_young2")
else:
    LB("L_young")
bump(O_B3)
lds_spin("L_b3", 12, O_B3, 8)
ts()
qgather()
if OPT.get("otouch") == 2:
    A("s_cmp_lg_u32 s35, 7\ns_cbranch_scc1 L_not\ns_cmp_ge_u32 s2, 128\ns_cbranch_scc1 L_not")
    srd(40, 24, 2048)
    A("s_lshl_b32 s3, s31, 7\nv_lshlrev_b32 v112, 10, v3")
    A("s_mov_b32 exec_lo, 0x10001\ns_mov_b32 exec_hi, 0")
    A("buffer_load_dword v113, v112, s[40:43], s3 offen")
    A("s_mov_b64 exec, -1")
    LB("L_not")
bump(O_B2)
VB2 = 0
ts()
if OPT.get("prio"): A(f"s_setprio {OPT['prio']}")
LB("L_d0")
if VB2:
    A("s_waitcnt vmcnt(1)")
    tagcheck_dense([QR], 88, 89, 90)
    A("v_cmp_ne_u32 vcc, 0, v88\ns_nop 1\ns_cbranch_vccz L_qchk_ok")
    A("s_waitcnt vmcnt(0)")
    for c in range(4): A(f"v_mov_b32 v{QR+c}, v{QR+4+c}")
    if TS: A("s_mov_b32 s74, 0x100")
else:
    A("s_waitcnt vmcnt(5)")
    kread(0)
    A("s_waitcnt vmcnt(1)")
    kread(1)
    A("s_cmp_lg_u32 s35, 7\ns_cbranch_scc1 L_nok7")
    A("s_waitcnt lgkmcnt(0)")
    bump(O_K7)
    LB("L_nok7")
    A("s_waitcnt vmcnt(0)")
poll_check("L_qchk", [QR], 88, qgather, tagcheck_dense, 4)
if TS: A("v_writelane_b32 v127, s74, 13")
ts()
for c in range(4): A(f"v_and_b32 v{QR+c}, 0xffffff00, v{QR+c}")
A("s_nop 0")
xrow_t4(QR)
A(f"v_cvt_pk_bf16_f32 v{QR}, v{QR}, v{QR}")
A(f"ds_write_b16 v10, v{QR}")
bump(O_Q)
def qreads():
    for j in range(4):
        A(f"ds_read_b128 v[{QR+4*j}:{QR+4*j+3}], v11 offset:{64*j}")
lds_spin_data("L_qspin", O_Q, 8, qreads)
for j in range(4):
    for t in range(2):
        k = KR + 4 * (4 * t + j)
        mfma(96 + 4 * t, k, QR + 4 * j, None if j == 0 else 96 + 4 * t)
A("s_nop 7\ns_nop 1")
S = list(range(96, 104))
bf16_round_pairs(S, [112, 113, 114, 115])
for v in S: A(f"v_mul_f32 v{v}, s68, v{v}")
bf16_round_pairs(S, [112, 113, 114, 115])
A("v_max3_f32 v116, v96, v97, v98\nv_max3_f32 v116, v116, v99, v100\nv_max3_f32 v116, v116, v101, v102\nv_max_f32 v116, v116, v103")
xrow_multi("v_max_f32", [116], [117])
for v in S: A(f"v_sub_f32 v{v}, v{v}, v116")
for v in S: A(f"v_mul_f32 v{v}, s69, v{v}")
for v in S: A(f"v_exp_f32 v{v}, v{v}")
A("s_nop 0")
for i in range(4): A(f"v_cvt_pk_bf16_f32 v{112+i}, v{96+2*i}, v{97+2*i}")
A("v_add_f32 v117, v96, v97\nv_add_f32 v118, v98, v99\nv_add_f32 v119, v100, v101\nv_add_f32 v104, v102, v103")
A("v_add_f32 v117, v117, v118\nv_add_f32 v119, v119, v104\nv_add_f32 v117, v117, v119")
exec_mask(0x000f000f, 0x000f000f)
A("ds_write_b128 v5, v[112:115]")
exec_all()
xrow_multi("v_add_f32", [117], [118])
exec_mask(0xf, 0)
A("ds_write2_b32 v9, v116, v117 offset0:0 offset1:32")
bump(O_P)
PR, VO = 16, 48
def preads():
    A(f"ds_read_b64 v[118:119], v12 offset:{O_VL}")
    A("ds_read_b128 v[104:107], v8\nds_read_b128 v[108:111], v8 offset:16")
    for k in range(8):
        A(f"ds_read_b128 v[{PR+4*k}:{PR+4*k+3}], v7 offset:{256*k}")
lds_spin_data("L_pspin1", O_P, 8, preads)
A("v_min_u32 v118, v118, v119")
A("v_max3_f32 v116, v104, v105, v106\nv_max3_f32 v116, v116, v107, v108\nv_max3_f32 v116, v116, v109, v110\nv_max_f32 v116, v116, v111")
A("v_readfirstlane_b32 s71, v118")
for k in range(8): A(f"v_sub_f32 v{104+k}, v{104+k}, v116")
for k in range(8): A(f"v_mul_f32 v{104+k}, s69, v{104+k}")
for k in range(8): A(f"v_exp_f32 v{104+k}, v{104+k}")
A("v_or_b32 v125, s88, v116")
A("s_cmp_lg_u32 s35, 7\ns_cbranch_scc1 L_nol")
A("ds_read_b128 v[80:83], v8 offset:128\nds_read_b128 v[84:87], v8 offset:144")
A("v_lshlrev_b32 v10, 4, v2")
A("v_mov_b32 v97, s58\nv_mov_b32 v98, v116\nv_mov_b32 v99, s59")
A("s_waitcnt lgkmcnt(0)")
A("v_mul_f32 v96, v104, v80")
for k in range(1, 8): A(f"v_fmac_f32 v96, v{104+k}, v{80+k}")
exec_mask(0xf, 0)
memgrp(lambda: publish(96, 10, "s49", 2048))
exec_all()
LB("L_nol")
ts()
dry_end()
LB("L_d1")
def vstep(ks, first):
    for k in ks:
        A(f"ds_read_b64_tr_b16 v[{VO+4*k}:{VO+4*k+1}], v120 offset:{VI + 8192*k}")
        A(f"ds_read_b64_tr_b16 v[{VO+4*k+2}:{VO+4*k+3}], v120 offset:{VI + 8192*k + 4096}")
    for i, k in enumerate(ks):
        A(f"s_waitcnt lgkmcnt({2*(len(ks)-1-i)})")
        mfma(128 + 4 * k, VO + 4 * k, PR + 4 * k, None)
A("s_cmp_lt_u32 s71, 7\ns_cbranch_scc1 L_vinc")
vstep([0, 1, 2, 3, 4, 5, 6], True)
A("s_cbranch_execnz L_vlast" if OPT["dry"] else "s_branch L_vlast")
LB("L_vinc")
lds_spin2("L_v1", 12, O_VL, 4)
vstep([0, 1, 2, 3], True)
lds_spin2("L_v2", 12, O_VL, 6)
vstep([4, 5], False)
lds_spin2("L_v3", 12, O_VL, 7)
vstep([6], False)
LB("L_vlast")
A("s_nop 3")
for c in range(4): A(f"v_mul_f32 v{80+c}, v104, v{128+c}")
for k in range(1, 7):
    for c in range(4): A(f"v_fmac_f32 v{80+c}, v{104+k}, v{128+4*k+c}")
hbar()
ts()
vstep([7], False)
exec_mask(0x000f000f, 0x000f000f)
A("s_nop 5")
for c in range(4): A(f"v_fmac_f32 v{80+c}, v111, v{156+c}")
stamp(84, [80, 81, 82, 83], 125)
memgrp(lambda: publish(84, 121, "s48"))
exec_all()
hbar()
ts()
A("s_cmp_ge_u32 s35, 4\ns_cbranch_scc1 L_kv_h2")
GR = 80
def h1gather(sr=FA):
    for i in range(4):
        A(f"buffer_load_dwordx4 v[{GR+4*i}:{GR+4*i+3}], v122, {sr}, s{76+i} offen sc1")
ts()
memgrp(h1gather)
A("s_waitcnt vmcnt(0)")
ts()
poll_check("L_h1chk", [GR + 4 * i for i in range(4)], 116, h1gather, tagcheck_16, 8)
ts()
for i in range(4): A(f"v_perm_b32 v{100+i}, v{GR+4*i+3}, v{GR+4*i+2}, s93")
A("v_max3_f32 v116, v100, v101, v102\nv_max_f32 v116, v116, v103")
xrow_multi("v_max_f32", [116], [117])
for i in range(4): A(f"v_sub_f32 v{100+i}, v{100+i}, v116")
for i in range(4): A(f"v_mul_f32 v{100+i}, s69, v{100+i}")
for i in range(4): A(f"v_exp_f32 v{100+i}, v{100+i}")
for c in range(16): A(f"v_and_b32 v{GR+c}, 0xffffff00, v{GR+c}")
for c in range(4): A(f"v_mul_f32 v{104+c}, v100, v{GR+c}")
for i in range(1, 4):
    for c in range(4): A(f"v_fmac_f32 v{104+c}, v{100+i}, v{GR+4*i+c}")
A("s_nop 0")
xrow_t4(104)
A("v_cvt_pk_bf16_f32 v104, v104, v104")
A("ds_write_b16 v124, v104")
A("s_waitcnt lgkmcnt(0)")
hbar()
ts()
if OPT["dry"]: A("s_cbranch_execz L_d2")
A("s_branch L_kv_done")
LB("L_kv_h2")
A("s_cmp_lg_u32 s35, 7\ns_cbranch_scc1 L_kv_bo")
A("s_cmp_ge_u32 s2, 128\ns_cbranch_scc1 L_kv_bo")
LB("L_d2")
if TS: ts_n[0] = 12
srd(48, 24, 2048)
if OPT.get("sigma", 1):
    A("s_lshl_b32 s3, s31, 4\ns_or_b32 s3, s3, s32")
else:
    A("s_mov_b32 s3, s2")
A("s_lshl_b32 s60, s3, 11")
A(f"s_add_u32 s60, s60, {hex(H2)}")
A("v_lshlrev_b32 v5, 4, v0")
def h2gather(sr="s[80:83]"):
    A(f"buffer_load_dwordx4 v[16:19], v5, {sr}, s60 offen sc1")
    A(f"buffer_load_dwordx4 v[20:23], v5, {sr}, s60 offen offset:1024 sc1")
A("v_mov_b32 v8, 0")
A("s_lshl_b32 s62, s3, 3")
if OPT.get("otouch") == 1:
    A("buffer_load_dword v9, v8, s[48:51], s62 offen")
    A("buffer_load_dword v10, v8, s[48:51], s62 offen offset:1024")
hbar()
if TS == 5: A("s_memrealtime s[72:73]\ns_waitcnt lgkmcnt(0)\nv_writelane_b32 v127, s72, 11")
memgrp(h2gather)
A("s_waitcnt vmcnt(0)")
poll_check("L_h2chk", [16, 20], 24, h2gather, dual=False)
ts()
A("v_add_f32 v16, v16, v20\nv_add_f32 v18, v18, v22")
rowsum([16, 18], shifts=(8, 4))
xrow_multi("v_add_f32", [16, 18], [17, 19])
A("s_nop 0")
for i, qp in enumerate(("[1,1,1,1]", "[2,2,2,2]", "[3,3,3,3]")):
    A(f"v_mov_b32_dpp v{24+i}, v16 quad_perm:{qp} row_mask:0xf bank_mask:0xf")
    A(f"v_mov_b32_dpp v{28+i}, v18 quad_perm:{qp} row_mask:0xf bank_mask:0xf")
A("v_cvt_pk_bf16_f32 v32, v16, v24\nv_cvt_pk_bf16_f32 v33, v25, v26")
A("v_cvt_pk_bf16_f32 v34, v18, v28\nv_cvt_pk_bf16_f32 v35, v29, v30")
exec_mask(1, 0)
if OPT["dry"]: A("s_cbranch_execz L_spre")
A(f"buffer_store_dwordx2 v[32:33], v8, s[48:51], s62 offen {OPT.get('o_fl', '')}")
A(f"buffer_store_dwordx2 v[34:35], v8, s[48:51], s62 offen offset:1024 {OPT.get('o_fl', '')}")
if OPT.get("diag"):
    if OPT.get("diaghi"):
        A(f"s_cmp_lt_u32 s2, {OPT.get('diaglo', 0)}\ns_cbranch_scc1 L_diagx\ns_cmp_ge_u32 s2, {OPT['diaghi']}\ns_cbranch_scc1 L_diagx")
    if OPT.get("diaglate"):
        A("v_readlane_b32 s73, v127, 12\nv_readlane_b32 s99, v127, 0\ns_nop 3\ns_sub_u32 s73, s73, s99")
        A(f"s_cmp_ge_u32 s73, {OPT['diaglate']}\ns_cbranch_scc1 L_diagx")
    A(f"v_readlane_b32 s73, v127, {OPT['diag']}\nv_readlane_b32 s99, v127, {OPT.get('diag0', 0)}")
    A("s_memrealtime s[100:101]\ns_waitcnt lgkmcnt(0)")
    A("s_sub_u32 s73, s73, s99")
    if OPT.get("diaginv"): A("s_min_u32 s73, s73, 1400\ns_sub_u32 s73, 1400, s73")
    A(f"s_mul_i32 s73, s73, {OPT.get('diagm', 8)}\ns_add_u32 s73, s73, s100")
    LB("L_diag")
    A("s_memrealtime s[98:99]\ns_waitcnt lgkmcnt(0)\ns_sub_u32 s99, s98, s73\ns_cmp_lt_i32 s99, 0\ns_cbranch_scc1 L_diag")
    LB("L_diagx")
A("s_cmp_lg_u32 s2, 0\ns_cbranch_scc1 L_kv_done")
A("v_mov_b32 v36, s58\nv_mov_b32 v37, s59")
A(f"s_mov_b32 s62, {hex(EPO)}")
A(f"buffer_store_dwordx2 v[36:37], v8, s[44:47], s62 offen {OPT.get('epo_fl', 'sc1')}")
A("s_branch L_kv_done")
LB("L_kv_bo")
A("s_barrier")
LB("L_kv_done")
if TS:
    A("s_memrealtime s[72:73]\ns_waitcnt lgkmcnt(0)\nv_writelane_b32 v127, s72, 15")
ts_dump()
A("s_endpgm")

if OPT["dry"]:
    LB("L_helper")
    C("================= dry-run helpers: warm the instruction cache =================")
    for v in list(range(4, 16)) + list(range(104, 112)) + [120, 121, 122, 123, 124]: A(f"v_mov_b32 v{v}, 0")
    A("s_waitcnt lgkmcnt(0)")
    ws_srds()
    A("v_mov_b32 v2, 0\nv_mov_b32 v3, 0")
    A("s_mov_b32 s32, 0\ns_mov_b32 s52, 0\ns_mov_b32 s53, 0\ns_mov_b32 s54, 0\ns_mov_b32 s67, 0")
    A("s_mov_b64 s[90:91], 0\ns_mov_b64 exec, 0")
    A("s_mov_b32 s35, 7\ns_mov_b32 s48, 0\ns_mov_b32 s49, 1\ns_mov_b32 s60, 0\ns_mov_b32 s61, 0\ns_mov_b32 s62, 0\ns_mov_b32 s63, 0")
    A("s_cmp_eq_u32 s30, 12\ns_cbranch_scc1 L_d0")
    A("s_cmp_eq_u32 s30, 14\ns_cbranch_scc1 L_d5")
    A("s_cmp_eq_u32 s30, 15\ns_cbranch_scc1 L_d3")
    A("s_mov_b32 s35, 0\ns_mov_b32 s71, 8")
    A("s_branch L_d1")
    LB("L_spre")
    if OPT["spre"]:
        A(f"s_lshl_b32 s60, s31, 5\ns_add_u32 s60, s60, s32\ns_mul_i32 s60, s60, {OBS}\ns_add_u32 s60, s60, {hex(H1)}")
        A("s_add_u32 s62, s28, s60\ns_addc_u32 s63, s29, 0")
        if OPT["spre"] & 1:
            for i in range(17): A(f"s_load_dword s{4+(i%8)}, s[62:63], {128*i}")
        A(f"s_lshl_b32 s60, s2, 11\ns_add_u32 s60, s60, {hex(H2+MIR)}")
        A("s_add_u32 s62, s28, s60\ns_addc_u32 s63, s29, 0")
        if OPT["spre"] & 2:
            A("s_cmp_ge_u32 s2, 128\ns_cbranch_scc1 L_end")
            for i in range(16): A(f"s_load_dword s{4+(i%8)}, s[62:63], {128*i}")
    A("s_endpgm")

LB("L_special")
C("================= special waves =================")
ts_reset()
A("v_and_b32 v6, 1, v2\nv_lshlrev_b32 v6, 10, v6\nv_lshl_add_u32 v6, v3, 3, v6")
A("s_cmp_eq_u32 s30, 0\ns_cbranch_scc1 L_w0")
A("s_cmp_eq_u32 s30, 1\ns_cbranch_scc1 L_w1")
A("s_cmp_eq_u32 s30, 3\ns_cbranch_scc1 L_w3")
A("s_waitcnt lgkmcnt(0)")
ts0()
ws_srds()
epoch_load()
if OPT.get("tlbw", 0):
    A("v_mov_b32 v4, 0")
    A("s_mov_b32 exec_lo, 1\ns_mov_b32 exec_hi, 0")
    srd(36, 24, 2048)
    A("buffer_load_dword v16, v4, s[36:39], 0 offen")
    srd(40, 8, 0x8000000)
    A(f"buffer_load_dword v17, v4, s[40:43], s50 offen {KVF}")
    srd(76, 12, 0x400000)
    A("s_lshl_b32 s60, s54, 17")
    A(f"buffer_load_dword v18, v4, s[76:79], s60 offen {WF}")
    srd(84, 20, 1792 * 1024)
    A("s_lshl_b32 s60, s55, 16")
    A(f"buffer_load_dword v19, v4, s[84:87], s60 offen {WF}")
    A("s_mov_b64 exec, -1")
if OPT["dry"]:
    for v in range(4, 16): A(f"v_mov_b32 v{v}, 0")
    A("s_mov_b64 exec, 0")
    A("s_branch L_d4")
LB("L_w2ret")
A("s_mov_b64 exec, -1")
fconsts(); consts()
A("s_waitcnt lgkmcnt(0)")
tags()
A("s_branch L_vload")

LB("L_w3")
A("v_lshlrev_b32 v5, 4, v0")
A("s_waitcnt lgkmcnt(0)")
ts0()
srd(36, 4, 2048)
srd(40, 22, 1024)
A("buffer_load_dwordx4 v[16:19], v5, s[36:39], 0 offen")
A("buffer_load_dwordx4 v[20:23], v5, s[36:39], 0 offen offset:1024")
A("buffer_load_dwordx4 v[24:27], v5, s[40:43], 0 offen")
ws_srds()
epoch_load()
fconsts(); consts()
A("s_waitcnt vmcnt(0)")
for src, dst in ((24, 32), (16, 40), (20, 48)):
    for w in range(4):
        A(f"v_lshlrev_b32 v{dst+2*w}, 16, v{src+w}\nv_and_b32 v{dst+2*w+1}, 0xffff0000, v{src+w}")
for b in range(2):
    for e in range(8):
        A(f"v_mul_f32 v{40+8*b+e}, v{40+8*b+e}, v{32+e}")
bf16_round_pairs(list(range(40, 56)), list(range(16, 24)))
for b in range(2):
    o = 40 + 8 * b
    A(f"v_add_f32 v{o}, v{o}, v{o+1}\nv_add_f32 v{o+2}, v{o+2}, v{o+3}\nv_add_f32 v{o+4}, v{o+4}, v{o+5}\nv_add_f32 v{o+6}, v{o+6}, v{o+7}")
    A(f"v_add_f32 v{o}, v{o}, v{o+2}\nv_add_f32 v{o+4}, v{o+4}, v{o+6}\nv_add_f32 v{o}, v{o}, v{o+4}")
rowsum([40, 48])
xrow_multi("v_add_f32", [40, 48], [41, 49])
A("v_mov_b32 v41, v48")
bf16_round_pairs([40, 41], [16])
A("v_mul_f32 v40, s70, v40\nv_mul_f32 v41, s70, v41")
A("v_exp_f32 v40, v40\nv_exp_f32 v41, v41")
A("s_nop 0")
A("v_add_f32 v40, 1.0, v40\nv_add_f32 v41, 1.0, v41")
A("v_rcp_f32 v40, v40\nv_rcp_f32 v41, v41")
A("s_nop 0")
bf16_round_pairs([40, 41], [16])
A("v_sub_f32 v42, 1.0, v40\nv_sub_f32 v43, 1.0, v41")
bf16_round_pairs([42, 43], [16])
A(f"v_mov_b32 v4, {GT}")
A("ds_write_b128 v4, v[40:43]")
A("s_waitcnt lgkmcnt(0)")
tags()

LB("L_vload")
srd(40, 8, 0x8000000)
A("s_sub_u32 s35, s30, 2")
A("s_lshl_b32 s60, s35, 2\nv_add_u32 v4, s60, v3\nv_lshrrev_b32 v5, 1, v2\nv_xor_b32 v4, v4, v5")
A("v_and_b32 v5, 1, v2\nv_lshl_add_u32 v4, v4, 1, v5\nv_lshlrev_b32 v4, 4, v4\nv_lshl_add_u32 v4, v3, 8, v4")
A("s_lshl_b32 s61, s35, 10\ns_add_u32 s62, s50, s61")
A("s_and_b32 s60, s51, 15\ns_lshl_b32 s60, s60, 12")
A(f"v_mov_b32 v12, {CNT}\nv_mov_b32 v13, 1")
A(f"s_lshl_b32 s63, s35, 2\ns_add_u32 s63, s63, {CNT+O_VL}\nv_mov_b32 v11, s63")
A("v_mov_b32 v8, 4\nv_mov_b32 v9, 6\nv_mov_b32 v10, 8\nv_mov_b32 v7, 7")
def vblk(i):
    A(f"s_add_u32 s63, s62, s60\ns_add_u32 m0, s61, {VI + 4096*i}")
    A("s_add_u32 s60, s60, 4096\ns_and_b32 s60, s60, 0xffff")
    A(f"buffer_load_dwordx4 v4, s[40:43], s63 offen {KVF} lds")
    A(f"buffer_load_dwordx4 v4, s[40:43], s63 offen offset:2048 {KVF} lds")
lds_spin("L_b2", 12, O_B2, 8)
VB = 0
IB = OPT.get("ib", 16)
for i in range(2 * VB, 17):
    if VB2 and i == 2 * VB + VB2: A("s_barrier\ns_barrier")
    if i == max(IB, 2 * VB):
        A("s_mov_b32 exec_lo, 1\ns_mov_b32 exec_hi, 0")
        A(f"ds_add_u32 v12, v13 offset:{O_I}")
        A("s_mov_b64 exec, -1")
    if OPT.get("w1e") and i == OPT.get("hb", 6):
        A("s_mov_b32 exec_lo, 1\ns_mov_b32 exec_hi, 0")
        A(f"ds_add_u32 v12, v13 offset:{O_V}")
        A("s_mov_b64 exec, -1")
    if OPT.get("xb") and i == OPT["xb"]: lds_spin("L_xbspin", 12, O_Q, 8)
    if i == 14: lds_spin("L_k7spin", 12, O_K7, 1)
    if i < 16: vblk(i)
A("s_mov_b32 exec_lo, 1\ns_mov_b32 exec_hi, 0")
ts()
A("s_waitcnt vmcnt(16)")
A("ds_write_b32 v11, v8")
ts()
A("s_waitcnt vmcnt(8)")
A("ds_write_b32 v11, v9")
A("s_waitcnt vmcnt(4)")
A("ds_write_b32 v11, v7")
A("s_mov_b64 exec, -1")
A("s_waitcnt vmcnt(0)")
A("s_barrier")
ts()
A("s_branch L_final")

LB("L_w0")
ts_reset()
if OPT.get("w0p"): A("s_setprio 3")
A("s_lshl_b32 s61, s52, 8")
A("s_waitcnt lgkmcnt(0)")
ts0()
XA, BB, AC = 16, 32, 96
A(f"s_add_u32 s61, s61, {XS}\nv_add_u32 v6, s61, v6")
ws_srds()
epoch_load()
fconsts(); consts()
for q4 in range(4): tr_addr(8 + q4, q4, 12, 13, WQI)
A(f"v_lshlrev_b32 v12, 2, v0\nv_add_u32 v12, {QT}, v12\nv_and_b32 v13, 31, v0\nv_lshlrev_b32 v13, 4, v13\nv_add_u32 v13, {QT}, v13")
A("v_and_b32 v14, 1, v3\nv_lshlrev_b32 v14, 13, v14\nv_lshl_add_u32 v14, v2, 4, v14")
A("s_lshl_b32 s62, s31, 14\ns_lshl_b32 s63, s52, 11\ns_add_u32 s62, s62, s63\ns_lshl_b32 s63, s53, 8\ns_add_u32 s62, s62, s63")
A(f"s_add_u32 s62, s62, {hex(QX)}")
A("s_waitcnt lgkmcnt(0)")
tags()
A("v_mov_b32 v5, s58")
A(f"v_mov_b32 v4, {CNT}")
lds_spin("L_wspin", 4, O_W, 4)
ts()
LB("L_d4")
for t in range(4): A(f"ds_read2_b64 v[{XA+4*t}:{XA+4*t+3}], v6 offset0:{8*t} offset1:{8*t+4}")
seq = [(q4, t) for q4 in range(4) for t in range(4)]
D = 5
def issue(k):
    q4, t = seq[k]; tr_read(BB + 4 * k, 8 + q4, 0, t)
for k in range(D): issue(k)
for k in range(16):
    q4, t = seq[k]
    A(f"s_waitcnt lgkmcnt({2*(min(16,k+D)-k)-2})")
    mfma(AC + 4 * q4, XA + 4 * t, BB + 4 * k, None if t == 0 else AC + 4 * q4)
    if k + D < 16: issue(k + D)
A("s_nop 7\ns_nop 1")
for r in range(2): select4([AC + 4 * q + r for q in range(4)])
A("s_nop 0")
for r in range(2): A(f"v_permlane32_swap_b32 v{AC+r}, v{AC+8+r}")
A("s_nop 0")
A(f"ds_write_b32 v12, v{AC}\nds_write_b32 v12, v{AC+1} offset:256")
A("ds_read_b128 v[116:119], v13")
A("s_waitcnt lgkmcnt(0)")
stamp(112, [116, 117, 118, 119], 5)
A("s_mov_b32 exec_hi, 0")
if OPT["dry"]: A("s_cbranch_execz L_w2ret")
publish(112, 14, "s62")
A(f"v_mov_b32 v12, {CNT}\nv_mov_b32 v8, 1")
A(f"ds_write_b32 v12, v8 offset:{O_B1}")
if OPT.get("w0p"): A("s_setprio 0")
A("s_mov_b64 exec, -1")
ts()
srd(36, 12, 0x400000)
srd(40, 20, 1792 * 1024)
dma_voff(4, 10, 8, 9)
if OPT.get("cshift"):
    A(f"s_add_u32 s63, s53, {OPT['cshift']}\ns_and_b32 s63, s63, 7\ns_lshl_b32 s63, s63, 7\ns_lshl_b32 s60, s54, 17\ns_add_u32 s60, s60, s63")
else:
  A("s_lshl_b32 s60, s54, 17\ns_lshl_b32 s63, s53, 7\ns_add_u32 s60, s60, s63")
A("s_lshl_b32 s61, s55, 16\ns_add_u32 s61, s61, s63")
A(f"v_mov_b32 v12, {CNT}\nv_mov_b32 v8, 1\nv_mov_b32 v9, 2\nv_mov_b32 v10, 3")
lds_spin("L_ispin", 12, O_I, 3)
ts()
A("s_cmp_eq_u32 s49, 0\ns_cbranch_scc1 L_w0_nowd")
for i in range(8):
    A(f"s_mov_b32 m0, {WDI+1024*i}")
    if i: A(f"s_add_u32 s61, s61, {8*1024}")
    else: A("s_nop 0")
    A(f"buffer_load_dwordx4 v4, s[40:43], s61 offen {WF} lds")
LB("L_w0_nowd")
for i in range(16):
    A(f"s_mov_b32 m0, {WOI+1024*i}")
    if i: A(f"s_add_u32 s60, s60, {8*1024}")
    else: A("s_nop 0")
    A(f"buffer_load_dwordx4 v4, s[36:39], s60 offen {WF} lds")
ts()
A("s_barrier\ns_barrier")
A("s_waitcnt vmcnt(16)")
A(f"ds_write_b32 v12, v8 offset:{O_STAGE}")
ts()
A("s_waitcnt vmcnt(8)")
A(f"ds_write_b32 v12, v9 offset:{O_STAGE}")
ts()
A("s_waitcnt vmcnt(0)")
A(f"ds_write_b32 v12, v10 offset:{O_STAGE}")
ts()
A("s_mov_b32 s75, 1")
A("s_branch L_final0")

LB("L_w1_idle")
A("s_waitcnt lgkmcnt(0)")
ts0()
ws_srds()
epoch_load()
fconsts(); consts()
A("s_waitcnt lgkmcnt(0)")
tags()
A(f"v_mov_b32 v11, {CNT}\nv_mov_b32 v14, 1")
A("s_mov_b32 exec_lo, 1\ns_mov_b32 exec_hi, 0")
A(f"ds_add_u32 v11, v14 offset:{O_I}")
A("s_mov_b64 exec, -1")
A("s_barrier")
A("s_branch L_final")
LB("L_w1")
ts_reset()
A("s_cmp_eq_u32 s49, 0\ns_cbranch_scc1 L_w1_idle")
A("s_lshl_b32 s61, s53, 7")
A("s_waitcnt lgkmcnt(0)")
ts0()
A(f"s_add_u32 s61, s61, {XS}\nv_add_u32 v6, s61, v6")
ws_srds()
epoch_load()
fconsts(); consts()
for q4 in range(4): tr_addr(8 + q4, q4, 12, 13, GI)
A("v_lshlrev_b32 v5, 4, v0")
A("s_lshl_b32 s62, s55, 13")
A(f"s_add_u32 s62, s62, {hex(HX)}")
A("s_lshl_b32 s63, s53, 10\ns_add_u32 s63, s63, s62")
A("s_add_u32 s61, s62, 4096")
A(f"v_lshlrev_b32 v12, 1, v0\nv_add_u32 v12, {HS}, v12")
A(f"v_mov_b32 v13, {CNT+O_H}\nv_mov_b32 v14, 1")
A("s_waitcnt lgkmcnt(0)")
tags()
A("v_mov_b32 v4, s58")
A(f"v_mov_b32 v7, {CNT}")
lds_spin("L_gspin", 7, O_G, 4)
ts()
LB("L_d5")
for t in range(2): A(f"ds_read2_b64 v[{XA+4*t}:{XA+4*t+3}], v6 offset0:{8*t} offset1:{8*t+4}")
seq = [(mat, q4, t) for mat in range(2) for q4 in range(4) for t in range(2)]
BB1 = 24
AC1 = 88
def issue(k):
    mat, q4, t = seq[k]; tr_read(BB1 + 4 * k, 8 + q4, (UI - GI) if mat else 0, t)
for k in range(D): issue(k)
for k in range(16):
    mat, q4, t = seq[k]
    A(f"s_waitcnt lgkmcnt({2*(min(16,k+D)-k)-2})")
    acc = AC1 + 16 * mat + 4 * q4
    mfma(acc, XA + 4 * t, BB1 + 4 * k, None if t == 0 else acc)
    if k + D < 16: issue(k + D)
A("s_nop 7\ns_nop 1")
for mat in range(2):
    for r in range(2): select4([AC1 + 16 * mat + 4 * q + r for q in range(4)])
A("s_nop 0")
for mat in range(2):
    for r in range(2): A(f"v_permlane32_swap_b32 v{AC1+16*mat+r}, v{AC1+16*mat+8+r}")
A("s_nop 0")
stamp(120, [AC1, AC1 + 1, AC1 + 16, AC1 + 17], 4)
dry_end()
publish(120, 5, "s63")
ts()
HG = 16
def hgather(sr=FA):
    for rb in range(8):
        r = HG + 4 * rb
        A(f"buffer_load_dwordx4 v[{r}:{r+3}], v5, {sr}, s{62 - rb//4} offen offset:{(rb%4)*1024} sc1")
A(f"v_mov_b32 v11, {CNT}")
A("s_mov_b32 exec_lo, 1\ns_mov_b32 exec_hi, 0")
A(f"ds_add_u32 v11, v14 offset:{O_I}")
A("s_mov_b64 exec, -1")
lds_spin("L_hw", 11, O_V, 2)
hgather()
ts()
LB("L_d3")
A("s_waitcnt vmcnt(0)")
poll_check("L_hchk", [HG + 4 * i for i in range(8)], 96, hgather, tagcheck_dense, 4)
ts()
for c in range(32): A(f"v_and_b32 v{HG+c}, 0xffffff00, v{HG+c}")
for step in (16, 8, 4):
    for base in range(HG, HG + step, 4):
        for o in range(4):
            A(f"v_add_f32 v{base+o}, v{base+o}, v{base+step+o}")
bf16_round_pairs([16, 17, 18, 19], [24, 25])
A("v_mul_f32 v24, s70, v16\nv_mul_f32 v25, s70, v17")
A("v_exp_f32 v24, v24\nv_exp_f32 v25, v25")
A("s_nop 0")
A("v_add_f32 v24, 1.0, v24\nv_add_f32 v25, 1.0, v25")
A("v_rcp_f32 v24, v24\nv_rcp_f32 v25, v25")
A("s_nop 0")
A("v_mul_f32 v16, v16, v24\nv_mul_f32 v17, v17, v25")
bf16_round_pairs([16, 17], [24])
A("v_mul_f32 v16, v16, v18\nv_mul_f32 v17, v17, v19")
A("v_cvt_pk_bf16_f32 v24, v16, v17")
A("ds_write_b16 v12, v24")
A("ds_write_b16_d16_hi v12, v24 offset:128")
A("ds_write_b32 v13, v14")
ts()
hbar()

LB("L_final")
A("s_mov_b32 s75, 0")
LB("L_final0")
if TS: ts_n[0] = 8
tr_addr(8, "s30", 12, 13, WOI)
A(f"v_mov_b32 v12, {CNT}")
A(f"v_and_b32 v9, 1, v2\nv_lshlrev_b32 v10, 7, v9\nv_lshl_add_u32 v10, v3, 3, v10\nv_add_u32 v10, {HS}, v10")
A(f"v_lshlrev_b32 v9, 8, v9\nv_lshl_add_u32 v9, v3, 3, v9\nv_add_u32 v9, {OV}, v9")
A("v_lshrrev_b32 v11, 2, v2\nv_lshlrev_b32 v11, 11, v11\nv_and_b32 v13, 3, v2\nv_lshl_add_u32 v11, v13, 4, v11")
A("s_lshl_b32 s60, s53, 15\ns_lshl_b32 s61, s30, 13\ns_add_u32 s60, s60, s61\ns_lshl_b32 s61, s54, 6\ns_add_u32 s60, s60, s61")
A(f"s_add_u32 s60, s60, {hex(H2)}")
A(f"v_and_b32 v7, 31, v0\nv_mul_u32_u24 v7, {OBS}, v7")
A(f"s_mul_i32 s61, s31, {32*OBS}\ns_lshl_b32 s62, s52, 4\ns_add_u32 s61, s61, s62")
A(f"s_add_u32 s61, s61, {hex(H1+2048)}")
A(f"v_mov_b32 v13, {GT}")
A("ds_read_b128 v[60:63], v13")
A("v_mov_b32 v65, s58\nv_mov_b32 v67, s59")
A("v_mov_b32 v56, 0\nv_mov_b32 v57, 0")
A("s_cmp_eq_u32 s75, 1\ns_cbranch_scc1 L_nobp")
hbar()
LB("L_nobp")
def lgather(sr=FA):
    A(f"buffer_load_dwordx4 v[68:71], v7, {sr}, s61 offen sc1")
memgrp(lgather)
A("s_cmp_eq_u32 s49, 0\ns_cbranch_scc1 L_f_nofb")
lds_spin("L_fs1", 12, O_STAGE, 1)
for t in range(2): tr_read(16 + 4 * t, 8, WDI - WOI, t)
lds_spin("L_fs2", 12, O_H, 1)
for t in range(2):
    A(f"ds_read2_b64 v[{24+4*t}:{27+4*t}], v10 offset0:{8*t} offset1:{8*t+4}")
A("s_waitcnt lgkmcnt(0)")
mfma(56, 24, 16, None)
mfma(56, 28, 20, 56)
A("s_nop 7\ns_nop 1")
A("v_mul_f32 v56, v56, v62\nv_mul_f32 v57, v57, v63")
LB("L_f_nofb")
ts()
lds_spin("L_fs3", 12, O_STAGE, 3)
for t in range(4): tr_read(16 + 4 * t, 8, 0, t)
ts()
A("s_waitcnt vmcnt(0)")
poll_check("L_lchk", [68], 72, lgather)
A("v_mov_b32 v72, v70")
A("v_mov_b32 v73, v70")
for sh in (8, 4, 2, 1):
    A("s_nop 1")
    A(f"v_max_f32_dpp v73, v73, v73 row_ror:{sh} row_mask:0xf bank_mask:0xf")
A("v_sub_f32 v72, v72, v73\nv_mul_f32 v72, s69, v72\nv_exp_f32 v72, v72\ns_nop 0\nv_mul_f32 v72, v72, v68")
rowsum([72])
A("v_rcp_f32 v72, v72")
A("s_nop 1")
A("v_readlane_b32 s62, v72, 0\nv_readlane_b32 s63, v72, 16")
A("s_nop 1")
A("v_mul_f32 v60, s62, v60\nv_mul_f32 v61, s63, v61")
ts()
hbar()
for t in range(4):
    A(f"ds_read2_b64 v[{32+4*t}:{35+4*t}], v9 offset0:{8*t} offset1:{8*t+4}")
for t in range(4):
    A(f"s_waitcnt lgkmcnt({3-t})")
    mfma(48, 32 + 4 * t, 16 + 4 * t, None if t == 0 else 48)
exec_mask(0xffff, 0)
A("s_nop 6")
A("v_fma_f32 v64, v48, v60, v56\nv_fma_f32 v66, v49, v61, v57")
dry_end()
publish(64, 11, "s60", dual=False)
ts()
ts_dump()
LB("L_end")
A("s_endpgm")

L.append(f""".section .rodata,"a"
.p2align 6
.amdhsa_kernel {NAME}
  .amdhsa_next_free_vgpr 160
  .amdhsa_next_free_sgpr 102
  .amdhsa_accum_offset 160
  .amdhsa_group_segment_fixed_size 0
  .amdhsa_kernarg_size 104
  .amdhsa_user_sgpr_count 2
  .amdhsa_user_sgpr_kernarg_segment_ptr 1
  .amdhsa_system_sgpr_workgroup_id_x 1
.end_amdhsa_kernel""")
open(out, "w").write("\n".join(L) + "\n")
```

```python
import sys

OPT = dict(ts=0, kv_fl="nt", w_fl="nt", ka=4, w1e=1, w0p=1, vb=0, spin=400000, pst=0, dry=0, xb=9, otouch=1, slp=0, pre=0, prew=0, dual=1, bper=8, prio=3, lsl=0, spre=0)
out = sys.argv[1]
for a in sys.argv[2:]:
    k, v = a.split("=")
    OPT[k] = int(v) if v.lstrip("-").isdigit() else v.replace("+", " ").replace("none", "")
TS = OPT["ts"]

NAME = "gated_mix__sliding_block_cached__swiglu_ffn__decode_kernel"
HEADER = open("gated_mix__sliding_block_cached__swiglu_ffn__decode.s.ref").read().split("; Override launch")[0]

L = []
def A(s):
    for l in s.split("\n"):
        L.append("    " + l.strip())
def LB(s):
    L.append(s + ":")
def C(s):
    L.append("    ; " + s)

VI = 0
WQI = 65536
GI = 81920
UI = 90112
WOI = 65536
WDI = 81920
KI = 98304
SM = 155648
PS = SM
QS = SM + 2048
OV = SM + 3072
HS = SM + 3584
QT = SM + 3840
MX = SM + 4352
LS = SM + 4480
GT = SM + 4608
CNT = SM + 4624
O_Q, O_M, O_P, O_STAGE, O_H, O_K7, O_V, O_I, O_VL, O_B1, O_B2, O_B3, O_W, O_G = 0, 4, 8, 12, 16, 20, 24, 28, 32, 40, 44, 48, 52, 56
XS = SM + 4864
LDS_BYTES = SM + 4864 + 2048
WB = OPT.get('wb', 496) << 20
OBS = 2176
if OPT.get("compact", 1):
    QX = WB
    HX = WB + 0x20000
    H1 = WB + 0x58000
    MIR_ = 0xE0000
    H2 = WB + 0xE0000
    EPO = H1 + 2112
else:
    QX = WB + 0x10000
    HX = WB + 0x80000
    H1 = WB + 0x100000
    H2 = WB + 0x400000
    MIR_ = 0x800000
    EPO = 0
TSB = 0x800000

SCALE = 0x3DB504F3
LOG2E = 0x3FB8AA3B
NLOG2E = 0xBFB8AA3B
WF = OPT["w_fl"]

def srd(d, p, nbytes):
    A(f"s_mov_b32 s{d}, s{p}\ns_and_b32 s{d+1}, s{p+1}, 0xffff\ns_mov_b32 s{d+2}, {hex(nbytes)}\ns_mov_b32 s{d+3}, 0x20000")

ts_n = [0]
skip_n = [0]
def ts_reset():
    ts_n[0] = 1 if TS else 0
def ts():
    if not TS: return
    k = ts_n[0]; ts_n[0] += 1
    assert k < 16
    if TS == 3: return
    if TS == 6 and k != 12: return
    A(f"s_memrealtime s[72:73]\ns_waitcnt lgkmcnt(0)\nv_writelane_b32 v127, s72, {k}")
def ts_dump():
    if not TS or TS in (5, 6): return
    A("s_mov_b64 exec, -1")
    if TS == 2:
        skip_n[0] += 1
        lb = f"L_sk{skip_n[0]}"
        A(f"s_cmp_lg_u32 s2, {OPT.get('dbgwg', 0)}\ns_cbranch_scc1 {lb}")
        A(f"s_cmp_lg_u32 s30, {OPT.get('dbgwave', 11)}\ns_cbranch_scc1 {lb}")
        srd(76, 26, 256)
        A("v_readlane_b32 s60, v127, 0\ns_nop 1\nv_subrev_u32 v127, s60, v127")
        A("v_lshlrev_b32 v3, 2, v0")
        A("s_mov_b32 exec_lo, 0xffff\ns_mov_b32 exec_hi, 0")
        A("buffer_store_dword v127, v3, s[76:79], 0 offen")
        LB(lb)
        return
    A("s_mul_i32 s60, s2, 12\ns_add_u32 s60, s60, s30\ns_lshl_b32 s60, s60, 6")
    A(f"s_add_u32 s60, s60, {hex(TSB)}")
    A("v_lshlrev_b32 v3, 2, v0")
    A("s_mov_b32 exec_lo, 0xffff\ns_mov_b32 exec_hi, 0")
    A("buffer_store_dword v127, v3, s[44:47], s60 offen")

def tags():
    A("s_add_u32 s58, s56, 0x01010101\ns_add_u32 s59, s57, 0x9e3779b9")
    A("s_and_b32 s88, s58, 0xffff\ns_and_b32 s89, s58, 0xffff0000")

def tagcheck(bases, acc, t0, t1):
    first = True
    for b in bases:
        A(f"v_xor_b32 v{t0}, s58, v{b+1}")
        A(f"v_xor_b32 v{t1}, s59, v{b+3}")
        if first:
            A(f"v_or_b32 v{acc}, v{t0}, v{t1}"); first = False
        else:
            A(f"v_or3_b32 v{acc}, v{acc}, v{t0}, v{t1}")

def tagcheck_dense(bases, acc, t0, t1):
    first = True
    for b in bases:
        A(f"v_perm_b32 v{t0}, v{b+1}, v{b}, s92")
        A(f"v_perm_b32 v{t1}, v{b+3}, v{b+2}, s93")
        A(f"v_xor_b32 v{t0}, s88, v{t0}")
        A(f"v_xor_b32 v{t1}, s89, v{t1}")
        if first:
            A(f"v_or_b32 v{acc}, v{t0}, v{t1}"); first = False
        else:
            A(f"v_or3_b32 v{acc}, v{acc}, v{t0}, v{t1}")

def tagcheck_16(bases, acc, t0, t1):
    for i in range(0, len(bases), 2):
        b0 = bases[i]
        A(f"v_perm_b32 v{t0}, v{b0+1}, v{b0}, s92")
        A(f"v_xor_b32 v{t0}, s88, v{t0}")
        if i + 1 < len(bases):
            b1 = bases[i + 1]
            A(f"v_perm_b32 v{t1}, v{b1+1}, v{b1}, s92")
            A(f"v_xor_b32 v{t1}, s88, v{t1}")
            if i == 0: A(f"v_or_b32 v{acc}, v{t0}, v{t1}")
            else: A(f"v_or3_b32 v{acc}, v{acc}, v{t0}, v{t1}")
        else:
            if i == 0: A(f"v_mov_b32 v{acc}, v{t0}")
            else: A(f"v_or_b32 v{acc}, v{acc}, v{t0}")

def stamp(dst, srcs, tagv):
    for i in range(4):
        A(f"v_perm_b32 v{dst+i}, v{srcs[i]}, v{tagv}, s{94+i}")

def consts():
    A("s_mov_b32 s92, 0x0c0c0400\ns_mov_b32 s93, 0x04000c0c")
    A("s_mov_b32 s94, 0x07060500\ns_mov_b32 s95, 0x07060501\ns_mov_b32 s96, 0x07060502\ns_mov_b32 s97, 0x07060503")

def exec_mask(lo, hi):
    if not OPT["dry"]:
        A(f"s_mov_b32 exec_lo, {hex(lo)}")
        if hi is not None: A(f"s_mov_b32 exec_hi, {hex(hi)}")
        return
    A(f"s_and_b32 exec_lo, s90, {hex(lo)}" if lo != 0xffffffff else "s_mov_b32 exec_lo, s90")
    if hi is not None:
        A(f"s_and_b32 exec_hi, s91, {hex(hi)}" if hi else "s_mov_b32 exec_hi, 0")
def exec_all():
    A("s_mov_b64 exec, s[90:91]" if OPT["dry"] else "s_mov_b64 exec, -1")
def memgrp(fn):
    if not OPT["dry"]:
        fn(); return
    skip_n[0] += 1
    lb = f"L_sk{skip_n[0]}"
    A(f"s_cbranch_execz {lb}")
    fn()
    LB(lb)
def hbar():
    memgrp(lambda: A("s_barrier"))
def dry_end():
    if OPT["dry"]: A("s_cbranch_execz L_end")

MIR = MIR_
def ws_srds():
    srd(44, 28, 0x20000000)
    A(f"s_add_u32 s80, s28, {hex(MIR)}\ns_addc_u32 s81, s29, 0\ns_and_b32 s81, s81, 0xffff\ns_mov_b32 s82, {hex(0x20000000-MIR)}\ns_mov_b32 s83, 0x20000")
    A("s_mov_b32 s74, 0")

def publish(data, voff, soff, off=0, dual=True):
    o = f" offset:{off}" if off else ""
    if dual and OPT["dual"]:
        A(f"buffer_store_dwordx4 v[{data}:{data+3}], v{voff}, s[44:47], {soff} offen{o} {OPT.get('a_fl', '')}")
    A(f"buffer_store_dwordx4 v[{data}:{data+3}], v{voff}, s[80:83], {soff} offen{o} sc1")

def poll_check(label, bases, tmp, reissue, chk=tagcheck, grp=1, dual=True):
    dual = dual and OPT["dual"]
    LB(label)
    chk(bases, tmp, tmp + 1, tmp + 2)
    if grp >= 4:
        A(f"s_nop 1\nv_or_b32_dpp v{tmp}, v{tmp}, v{tmp} quad_perm:[1,0,3,2] row_mask:0xf bank_mask:0xf")
        A(f"s_nop 1\nv_or_b32_dpp v{tmp}, v{tmp}, v{tmp} quad_perm:[2,3,0,1] row_mask:0xf bank_mask:0xf")
    if grp >= 8:
        A(f"s_nop 1\nv_or_b32_dpp v{tmp}, v{tmp}, v{tmp} row_half_mirror row_mask:0xf bank_mask:0xf")
    A(f"v_cmp_ne_u32 vcc, 0, v{tmp}")
    A("s_nop 1")
    A(f"s_cbranch_vccz {label}_ok")
    if OPT.get("nopoll"): A(f"s_branch {label}_ok")
    A(f"s_sub_u32 s67, s67, 1\ns_cbranch_scc1 {label}_ok")
    A("s_mov_b64 exec, vcc")
    if OPT["slp"]: A(f"s_sleep {OPT['slp']}")
    if dual:
        A(f"s_add_u32 s74, s74, 1\ns_and_b32 s75, s74, {OPT['bper']-1}\ns_cbranch_scc0 {label}_b")
        reissue("s[44:47]")
        A("s_waitcnt vmcnt(0)")
        A(f"s_branch {label}")
        LB(label + "_b")
    reissue("s[80:83]")
    A("s_waitcnt vmcnt(0)")
    A(f"s_branch {label}")
    LB(label + "_ok")
    exec_all()

def xrow_multi(op, vs, ts_, steps=("v_permlane16_swap_b32", "v_permlane32_swap_b32")):
    for sw in steps:
        for v, t in zip(vs, ts_):
            A(f"v_mov_b32 v{t}, v{v}")
        if len(vs) < 2: A("s_nop 1")
        elif len(vs) < 3: A("s_nop 0")
        for v, t in zip(vs, ts_):
            A(f"{sw} v{v}, v{t}")
        A("s_nop 0")
        for v, t in zip(vs, ts_):
            A(f"{op} v{v}, v{v}, v{t}")

def xrow_t4(v):
    A(f"v_permlane16_swap_b32 v{v}, v{v+1}")
    A(f"v_permlane16_swap_b32 v{v+2}, v{v+3}")
    A("s_nop 0")
    A(f"v_add_f32 v{v}, v{v}, v{v+1}")
    A(f"v_add_f32 v{v+2}, v{v+2}, v{v+3}")
    A("s_nop 1")
    A(f"v_permlane32_swap_b32 v{v}, v{v+2}")
    A("s_nop 0")
    A(f"v_add_f32 v{v}, v{v}, v{v+2}")

def transpose8(raw, dst, pairs=(0, 1, 2, 3)):
    for v in pairs:
        for w in range(4):
            a = raw + 4 * (2 * v) + w
            b = raw + 4 * (2 * v + 1) + w
            A(f"v_perm_b32 v{dst + 4*(2*w) + v}, v{b}, v{a}, s64")
            A(f"v_perm_b32 v{dst + 4*(2*w+1) + v}, v{b}, v{a}, s65")

def bf16_round_pairs(vs, tmp):
    n = len(vs) // 2
    for i in range(n):
        A(f"v_cvt_pk_bf16_f32 v{tmp[i]}, v{vs[2*i]}, v{vs[2*i+1]}")
    for i in range(n):
        A(f"v_lshlrev_b32 v{vs[2*i]}, 16, v{tmp[i]}")
        A(f"v_and_b32 v{vs[2*i+1]}, 0xffff0000, v{tmp[i]}")

def lds_spin(label, addr_v, off, val):
    if OPT["dry"]: A(f"s_cbranch_execz {label}_x")
    LB(label)
    A(f"ds_read_b32 v15, v{addr_v} offset:{off}")
    A("s_waitcnt lgkmcnt(0)")
    A("v_readfirstlane_b32 s66, v15")
    A("s_sub_u32 s67, s67, 1")
    A(f"s_cbranch_scc1 {label}_x")
    if OPT.get("lsl") and label in ("L_ispin",): A(f"s_sleep {OPT['lsl']}")
    if OPT.get("ksl") and label in ("L_qspin", "L_mspin", "L_pspin1"):
        A(f"s_cmp_ge_u32 s66, {val}\ns_cbranch_scc1 {label}_x\ns_sleep {OPT['ksl']}")
    A(f"s_cmp_lt_u32 s66, {val}")
    A(f"s_cbranch_scc1 {label}")
    LB(label + "_x")

def lds_spin_data(label, off, val, reads):
    lds_spin(label, 12, off, val)
    reads()
    A("s_waitcnt lgkmcnt(0)")

def rowsum(vs, shifts=(8, 4, 2, 1)):
    for sh in shifts:
        if len(vs) < 3: A("s_nop 1")
        for v in vs:
            A(f"v_add_f32_dpp v{v}, v{v}, v{v} row_ror:{sh} row_mask:0xf bank_mask:0xf")

def dma_voff(dst, stride_sreg_or_shift, t0, t1):
    A(f"v_bfe_u32 v{t0}, v0, 1, 2\nv_bfe_u32 v{t1}, v0, 4, 2\nv_xor_b32 v{t0}, v{t0}, v{t1}")
    A(f"v_and_b32 v{t1}, 1, v0\nv_lshl_add_u32 v{t0}, v{t0}, 1, v{t1}\nv_lshlrev_b32 v{t0}, 4, v{t0}")
    A(f"v_lshrrev_b32 v{t1}, 3, v0")
    if isinstance(stride_sreg_or_shift, int):
        A(f"v_lshl_add_u32 v{dst}, v{t1}, {stride_sreg_or_shift}, v{t0}")
    else:
        A(f"v_mul_lo_u32 v{t1}, v{t1}, {stride_sreg_or_shift}\nv_add_u32 v{dst}, v{t1}, v{t0}")

def tr_addr(dst, q4, t0, t1, base):
    A(f"v_bfe_u32 v{t0}, v0, 3, 2")
    A(f"v_xor_b32 v{t0}, {q4}, v{t0}")
    A(f"v_lshlrev_b32 v{t0}, 5, v{t0}")
    A(f"v_and_b32 v{t1}, 3, v0\nv_lshl_add_u32 v{t0}, v{t1}, 3, v{t0}")
    A(f"v_lshrrev_b32 v{t1}, 2, v0\nv_lshl_add_u32 v{dst}, v{t1}, 7, v{t0}")
    A(f"v_add_u32 v{dst}, {base}, v{dst}")

def tr_read(dst, addr_v, off, t):
    A(f"ds_read_b64_tr_b16 v[{dst}:{dst+1}], v{addr_v} offset:{off + 4096*t}")
    A(f"ds_read_b64_tr_b16 v[{dst+2}:{dst+3}], v{addr_v} offset:{off + 4096*t + 2048}")

def lds_spin2(label, addr_v, off, val):
    if OPT["dry"]: A(f"s_cbranch_execz {label}_x")
    LB(label)
    A(f"ds_read_b64 v[14:15], v{addr_v} offset:{off}")
    A("s_waitcnt lgkmcnt(0)")
    A("v_min_u32 v15, v14, v15")
    A("s_sub_u32 s67, s67, 1")
    A("v_readfirstlane_b32 s66, v15")
    A(f"s_cbranch_scc1 {label}_x")
    A(f"s_cmp_lt_u32 s66, {val}")
    A(f"s_cbranch_scc1 {label}")
    LB(label + "_x")

def bump(off):
    exec_mask(1, 0)
    A(f"ds_add_u32 v12, v13 offset:{off}")
    exec_all()

def mfma(d, a, b, c):
    cs = "0" if c is None else f"v[{c}:{c+3}]"
    A(f"v_mfma_f32_16x16x32_bf16 v[{d}:{d+3}], v[{a}:{a+3}], v[{b}:{b+3}], {cs}")

def select4(xs):
    A(f"v_permlane16_swap_b32 v{xs[0]}, v{xs[1]}")
    A(f"v_permlane16_swap_b32 v{xs[2]}, v{xs[3]}")

NWAVES = 16 if OPT["dry"] else 12
L.append(HEADER.rstrip())
L.append(f"; @launch grid=(256,1,1) block=({NWAVES*64},1,1) lds={LDS_BYTES}")
L.append("""; Fused decode step, one launch, 256 workgroups (one per CU) x 12 waves.
;   share an L2) and a write-through copy that is visible under any placement.""")
L.append('.amdgcn_target "amdgcn-amd-amdhsa--gfx950"')
L.append(".text")
L.append(f".globl {NAME}\n.p2align 8\n.type {NAME},@function\n{NAME}:")
A("s_cmp_ge_u32 s2, 256\ns_cbranch_scc1 L_end")
if OPT.get("xorwg"): A(f"s_xor_b32 s2, s2, {OPT['xorwg']}")
if OPT.get("remap"): A("s_and_b32 s3, s2, 31\ns_lshl_b32 s3, s3, 3\ns_lshr_b32 s2, s2, 5\ns_or_b32 s2, s2, s3")
if OPT.get("late"):
    A("s_and_b32 s31, s2, 7\ns_cmp_lg_u32 s31, 3\ns_cbranch_scc1 L_nolate")
    A(f"s_memrealtime s[72:73]\ns_waitcnt lgkmcnt(0)\ns_add_u32 s74, s72, {OPT['late']}")
    LB("L_late")
    A("s_memrealtime s[72:73]\ns_waitcnt lgkmcnt(0)\ns_sub_u32 s75, s72, s74\ns_cmp_lt_i32 s75, 0\ns_cbranch_scc1 L_late")
    LB("L_nolate")
A("v_lshrrev_b32 v1, 6, v0")
A("v_and_b32 v0, 63, v0")
A("s_and_b32 s31, s2, 7")
A("v_readfirstlane_b32 s30, v1")
A("s_nop 0")
A("s_cmp_lg_u32 s30, 2\ns_cbranch_scc1 L_noinit")
A(f"v_lshlrev_b32 v4, 2, v0\nv_add_u32 v4, {CNT}, v4\nv_mov_b32 v8, 0")
A("s_mov_b32 exec_lo, 0xffff\ns_mov_b32 exec_hi, 0")
A("ds_write_b32 v4, v8")
A("s_mov_b64 exec, -1")
A("s_waitcnt lgkmcnt(0)")
LB("L_noinit")
A("s_load_dwordx16 s[4:19], s[0:1], 0")
A("s_load_dwordx8 s[20:27], s[0:1], 64")
A("s_load_dwordx2 s[28:29], s[0:1], 96")
if TS or OPT.get("diag"): A("s_memrealtime s[72:73]")
A("s_barrier")
if OPT["dry"]:
    A("s_cmp_lt_u32 s30, 12\ns_cbranch_scc1 L_main")
    if OPT.get("cpf", 0):
        A("s_getpc_b64 s[60:61]")
        LB("L_pc")
        A(f"s_sub_u32 s62, s30, 12\ns_mul_i32 s62, s62, {OPT.get('cpf', 0)*128}")
        A(f"s_add_u32 s63, s62, {OPT.get('cpf', 0)*128}")
        LB("L_pf")
        A("s_load_dword s36, s[60:61], s62")
        A("s_add_u32 s62, s62, 128\ns_cmp_lt_u32 s62, s63\ns_cbranch_scc1 L_pf")
    A("s_branch L_helper")
    LB("L_main")
A("s_lshr_b32 s32, s2, 3")
A("s_lshr_b32 s33, s32, 4")
A("s_and_b32 s34, s32, 15")
A(f"s_mov_b32 s67, {OPT['spin']}")
if OPT["dry"]: A("s_mov_b64 s[90:91], -1")
A("v_and_b32 v2, 15, v0")
A("v_lshrrev_b32 v3, 4, v0")
A("s_lshr_b32 s52, s32, 3")
A("s_and_b32 s53, s32, 7")
A("s_lshl_b32 s54, s31, 2\ns_add_u32 s54, s54, s52")
A("s_lshl_b32 s50, s33, 3\ns_add_u32 s50, s50, s31\ns_lshl_b32 s50, s50, 23")
A("s_lshl_b32 s51, s34, 16\ns_add_u32 s50, s50, s51\ns_add_u32 s50, s50, 0x700000")
A(f"s_mul_i32 s51, s32, {OPT.get('rotm', 5)}\ns_add_u32 s51, s51, s31")
A("s_and_b32 s49, s54, 7\ns_cmp_lg_u32 s49, 7\ns_cselect_b32 s49, 1, 0")
A("s_lshr_b32 s55, s54, 3\ns_sub_u32 s55, s54, s55")
A("s_cmp_lt_u32 s30, 4\ns_cbranch_scc1 L_special")

def epoch_load():
    if EPO:
        A(f"s_mov_b32 s56, {hex(EPO)}\ns_load_dwordx2 s[56:57], s[28:29], s56")
    else:
        A("s_load_dwordx2 s[56:57], s[28:29], 0")
def fconsts():
    A(f"s_mov_b32 s68, {hex(SCALE)}\ns_mov_b32 s69, {hex(LOG2E)}\ns_mov_b32 s70, {hex(NLOG2E)}")
def ts0():
    if TS: A("v_writelane_b32 v127, s72, 0")

C("================= K / attention waves =================")
ts_reset()
A("s_sub_u32 s35, s30, 4")
A("s_lshl_b32 s62, s35, 1\ns_add_u32 s62, s62, s51")
A("s_add_u32 s63, s62, 1\ns_and_b32 s62, s62, 15\ns_and_b32 s63, s63, 15")
A("s_lshl_b32 s62, s62, 12\ns_lshl_b32 s63, s63, 12")
A("s_add_u32 s61, s50, s63\ns_add_u32 s60, s50, s62")
for u in range(4):
    A(f"v_add_u32 v{104+u}, {4*u}, v3\nv_xor_b32 v{104+u}, v{104+u}, v2\nv_lshlrev_b32 v{104+u}, 4, v{104+u}\nv_lshl_add_u32 v{104+u}, v3, 8, v{104+u}")
A(f"s_lshl_b32 s84, s35, 13\ns_add_u32 s84, s84, {KI}\ns_cmp_eq_u32 s35, 7\ns_cselect_b32 s84, {VI+57344}, s84")
A("s_add_u32 s85, s84, 4096")
dma_voff(112, 13, 114, 115)
A("s_movk_i32 s62, 3584\nv_mul_lo_u32 v113, v115, s62\nv_add_u32 v113, v113, v114")
A("s_lshl_b32 s62, s52, 20\ns_lshl_b32 s63, s31, 10\ns_add_u32 s62, s62, s63\ns_lshl_b32 s63, s53, 7\ns_add_u32 s62, s62, s63")
A("s_lshl_b32 s63, s35, 18\ns_add_u32 s62, s62, s63")
A(f"s_lshl_b32 s86, s35, 12\ns_add_u32 s86, s86, {WQI}")
A("s_lshl_b32 s87, s53, 2\ns_add_u32 s87, s87, s35\ns_mul_i32 s87, s87, 16*3584\ns_lshl_b32 s71, s55, 7\ns_add_u32 s87, s87, s71")
A(f"s_lshl_b32 s71, s35, 11\ns_add_u32 s71, s71, {GI}")
A("s_mov_b32 m0, s86")
A("s_cmp_lt_u32 s35, 4\ns_cselect_b32 s49, s49, 2")
A("s_waitcnt lgkmcnt(0)")
ts0()
A("s_cmp_eq_u32 s49, 2\ns_cbranch_scc1 L_nogu")
A("s_cmp_gt_u32 s35, 1\ns_cbranch_scc1 L_nox")
srd(76, 4, 2048)
A(f"s_lshl_b32 s63, s35, 10\ns_add_u32 m0, s63, {XS}\nv_lshlrev_b32 v114, 4, v0")
A("buffer_load_dwordx4 v114, s[76:79], s63 offen lds")
A("s_mov_b32 m0, s86")
LB("L_nox")
srd(40, 10, 0x400000)
for i in range(4):
    if i: A(f"s_add_u32 m0, s86, {1024*i}\ns_add_u32 s62, s62, 65536")
    A(f"buffer_load_dwordx4 v112, s[40:43], s62 offen {WF} lds")
A("s_cmp_eq_u32 s49, 0\ns_cbranch_scc1 L_nogu")
srd(76, 16, 512 * 3584)
A("s_mov_b32 m0, s71")
srd(92, 18, 512 * 3584)
for i in range(2):
    if i: A(f"s_add_u32 m0, s71, 1024\ns_add_u32 s87, s87, {8*3584}")
    A(f"buffer_load_dwordx4 v113, s[76:79], s87 offen {WF} lds")
    A(f"s_add_u32 m0, s71, {UI-GI+1024*i}\ns_nop 0")
    A(f"buffer_load_dwordx4 v113, s[92:95], s87 offen {WF} lds")
LB("L_nogu")
A("s_mov_b32 s86, s49")
if TS == 5: A("s_memrealtime s[72:73]\ns_waitcnt lgkmcnt(0)\nv_writelane_b32 v127, s72, 8")
srd(36, 6, 0x8000000)
KR, QR = 16, 80
KVF = OPT["kv_fl"]
def kload(i):
    t, u = i // 4, i % 4
    if u == 0: A(f"s_mov_b32 m0, s{84+t}\ns_nop 0")
    A(f"buffer_load_dwordx4 v{104+u}, s[36:39], s{60+t} offen offset:{u*1024} {KVF} lds")
def kread(t):
    for j in range(4):
        i = 4 * t + j
        A(f"ds_read_b128 v[{KR+4*i}:{KR+4*i+3}], v{108+j} offset:{4096*t}")
FA = "s[44:47]" if OPT["dual"] else "s[80:83]"
def qgather(sr=FA):
    A(f"buffer_load_dwordx4 v[{QR}:{QR+3}], v6, {sr}, s62 offen sc1")
KA, VB = OPT["ka"], OPT["vb"]
ws_srds()
epoch_load()
fconsts(); consts()
A("s_lshl_b32 s62, s31, 1\ns_add_u32 s62, s62, s33\ns_lshl_b32 s62, s62, 13")
A("s_lshl_b32 s63, s35, 8\ns_add_u32 s62, s62, s63")
A(f"s_add_u32 s62, s62, {hex(QX)}")
A("v_lshlrev_b32 v6, 11, v3\nv_lshl_add_u32 v6, v2, 4, v6")
A(f"v_mov_b32 v12, {CNT}\nv_mov_b32 v13, 1")
for j in range(4):
    A(f"v_add_u32 v{108+j}, {4*j}, v3\nv_xor_b32 v{108+j}, v{108+j}, v2\nv_lshlrev_b32 v{108+j}, 4, v{108+j}\nv_lshl_add_u32 v{108+j}, v2, 8, v{108+j}\nv_add_u32 v{108+j}, s84, v{108+j}")
KY = OPT.get("ky", 8)
A("s_cmp_lg_u32 s86, 2\ns_cbranch_scc1 L_old1")
if OPT.get("late2"):
    A("s_cmp_lg_u32 s31, 3\ns_cbranch_scc1 L_nla")
    A("v_readlane_b32 s74, v127, 0\ns_nop 3")
    A(f"s_add_u32 s74, s74, {OPT['late2']}")
    LB("L_la")
    A("s_memrealtime s[72:73]\ns_waitcnt lgkmcnt(0)\ns_sub_u32 s75, s72, s74\ns_cmp_lt_i32 s75, 0\ns_cbranch_scc1 L_la")
    A("s_mov_b32 s74, 0")
    LB("L_nla")
for i in range(KY): kload(i)
if TS == 5: A("s_memrealtime s[72:73]\ns_waitcnt lgkmcnt(0)\nv_writelane_b32 v127, s72, 9")
LB("L_old1")
A("v_and_b32 v14, 3, v2")
A(f"s_lshl_b32 s71, s35, 7\ns_add_u32 s71, s71, {QS}")
A("v_lshl_add_u32 v10, v2, 3, s71\nv_lshl_add_u32 v10, v3, 1, v10")
A(f"v_lshlrev_b32 v11, 8, v14\nv_lshl_add_u32 v11, v3, 4, v11\nv_add_u32 v11, {QS}, v11")
A(f"v_lshlrev_b32 v8, 5, v14\nv_add_u32 v8, {MX}, v8")
A("s_lshl_b32 s71, s35, 2\nv_add_u32 v9, s71, v8")
A(f"v_lshl_add_u32 v7, v3, 2, v14\nv_lshlrev_b32 v7, 4, v7\nv_add_u32 v7, {PS}, v7")
A("s_lshl_b32 s71, s35, 8\nv_add_u32 v5, s71, v7")
A("v_bfe_u32 v120, v0, 2, 3\nv_xor_b32 v120, s35, v120\nv_lshlrev_b32 v120, 5, v120")
A("v_and_b32 v121, 3, v0\nv_lshl_add_u32 v120, v121, 3, v120\nv_lshrrev_b32 v121, 2, v0\nv_lshl_add_u32 v120, v121, 8, v120")
A("v_lshlrev_b32 v121, 9, v14\nv_lshl_add_u32 v121, v3, 4, v121")
A(f"s_lshl_b32 s76, s31, 5\ns_add_u32 s49, s76, s32\ns_mul_i32 s49, s49, {OBS}\ns_add_u32 s49, s49, {hex(H1)}")
A("s_lshl_b32 s71, s35, 6\ns_add_u32 s48, s49, s71")
A(f"v_lshrrev_b32 v122, 3, v2\nv_lshl_add_u32 v122, v122, 4, v3\nv_mul_u32_u24 v122, {OBS}, v122")
A("v_and_b32 v123, 7, v2\nv_lshl_add_u32 v122, v123, 4, v122")
A(f"s_mul_i32 s76, s76, {OBS}\ns_add_u32 s76, s76, {hex(H1)}")
A("s_lshl_b32 s71, s52, 9\ns_add_u32 s76, s76, s71\ns_lshl_b32 s71, s35, 7\ns_add_u32 s76, s76, s71")
for i in range(1, 4): A(f"s_add_u32 s{76+i}, s76, {i*4*OBS}")
A(f"s_lshl_b32 s71, s35, 6\ns_add_u32 s71, s71, {OV}")
A("v_lshrrev_b32 v124, 3, v2\nv_lshlrev_b32 v124, 8, v124\nv_lshl_add_u32 v124, v123, 3, v124\nv_lshl_add_u32 v124, v3, 1, v124\nv_add_u32 v124, s71, v124")
A("s_waitcnt lgkmcnt(0)")
tags()
if TS == 5: A("s_memrealtime s[72:73]\ns_waitcnt lgkmcnt(0)\nv_writelane_b32 v127, s72, 10")
A("s_cmp_eq_u32 s86, 2\ns_cbranch_scc1 L_young")
A("s_cmp_eq_u32 s86, 0\ns_cbranch_scc1 L_nogu2")
A("s_waitcnt vmcnt(4)")
bump(O_W)
A("s_waitcnt vmcnt(0)")
bump(O_G)
A("s_branch L_gu3")
LB("L_nogu2")
A("s_waitcnt vmcnt(0)")
bump(O_W)
LB("L_gu3")
if OPT.get("late2"):
    A("s_cmp_lg_u32 s31, 3\ns_cbranch_scc1 L_nlb")
    A("v_readlane_b32 s74, v127, 0\ns_nop 3")
    A(f"s_add_u32 s74, s74, {OPT['late2']}")
    LB("L_lb")
    A("s_memrealtime s[72:73]\ns_waitcnt lgkmcnt(0)\ns_sub_u32 s75, s72, s74\ns_cmp_lt_i32 s75, 0\ns_cbranch_scc1 L_lb")
    A("s_mov_b32 s74, 0")
    LB("L_nlb")
KO = OPT.get("ko", 0)
for i in range(KO): kload(i)
lds_spin("L_b1", 12, O_B1, 1)
ts()
if KO % 4: A(f"s_mov_b32 m0, s{84 + KO//4}\ns_nop 0")
for i in range(KO, 8): kload(i)
if KY < 8:
    A("s_branch L_young2")
    LB("L_young")
    lds_spin("L_b1y", 12, O_B1, 1)
    if KY % 4: A(f"s_mov_b32 m0, s{84 + KY//4}\ns_nop 0")
    for i in range(KY, 8): kload(i)
    LB("L_young2")
else:
    LB("L_young")
bump(O_B3)
lds_spin("L_b3", 12, O_B3, 8)
ts()
qgather()
if OPT.get("otouch") == 2:
    A("s_cmp_lg_u32 s35, 7\ns_cbranch_scc1 L_not\ns_cmp_ge_u32 s2, 128\ns_cbranch_scc1 L_not")
    srd(40, 24, 2048)
    A("s_lshl_b32 s3, s31, 7\nv_lshlrev_b32 v112, 10, v3")
    A("s_mov_b32 exec_lo, 0x10001\ns_mov_b32 exec_hi, 0")
    A("buffer_load_dword v113, v112, s[40:43], s3 offen")
    A("s_mov_b64 exec, -1")
    LB("L_not")
bump(O_B2)
VB2 = 0
ts()
if OPT.get("prio"): A(f"s_setprio {OPT['prio']}")
LB("L_d0")
if VB2:
    A("s_waitcnt vmcnt(1)")
    tagcheck_dense([QR], 88, 89, 90)
    A("v_cmp_ne_u32 vcc, 0, v88\ns_nop 1\ns_cbranch_vccz L_qchk_ok")
    A("s_waitcnt vmcnt(0)")
    for c in range(4): A(f"v_mov_b32 v{QR+c}, v{QR+4+c}")
    if TS: A("s_mov_b32 s74, 0x100")
else:
    A("s_waitcnt vmcnt(5)")
    kread(0)
    A("s_waitcnt vmcnt(1)")
    kread(1)
    A("s_cmp_lg_u32 s35, 7\ns_cbranch_scc1 L_nok7")
    A("s_waitcnt lgkmcnt(0)")
    bump(O_K7)
    LB("L_nok7")
    A("s_waitcnt vmcnt(0)")
poll_check("L_qchk", [QR], 88, qgather, tagcheck_dense, 4)
if TS: A("v_writelane_b32 v127, s74, 13")
ts()
for c in range(4): A(f"v_and_b32 v{QR+c}, 0xffffff00, v{QR+c}")
A("s_nop 0")
xrow_t4(QR)
A(f"v_cvt_pk_bf16_f32 v{QR}, v{QR}, v{QR}")
A(f"ds_write_b16 v10, v{QR}")
bump(O_Q)
def qreads():
    for j in range(4):
        A(f"ds_read_b128 v[{QR+4*j}:{QR+4*j+3}], v11 offset:{64*j}")
lds_spin_data("L_qspin", O_Q, 8, qreads)
for j in range(4):
    for t in range(2):
        k = KR + 4 * (4 * t + j)
        mfma(96 + 4 * t, k, QR + 4 * j, None if j == 0 else 96 + 4 * t)
A("s_nop 7\ns_nop 1")
S = list(range(96, 104))
bf16_round_pairs(S, [112, 113, 114, 115])
for v in S: A(f"v_mul_f32 v{v}, s68, v{v}")
bf16_round_pairs(S, [112, 113, 114, 115])
A("v_max3_f32 v116, v96, v97, v98\nv_max3_f32 v116, v116, v99, v100\nv_max3_f32 v116, v116, v101, v102\nv_max_f32 v116, v116, v103")
xrow_multi("v_max_f32", [116], [117])
for v in S: A(f"v_sub_f32 v{v}, v{v}, v116")
for v in S: A(f"v_mul_f32 v{v}, s69, v{v}")
for v in S: A(f"v_exp_f32 v{v}, v{v}")
A("s_nop 0")
for i in range(4): A(f"v_cvt_pk_bf16_f32 v{112+i}, v{96+2*i}, v{97+2*i}")
A("v_add_f32 v117, v96, v97\nv_add_f32 v118, v98, v99\nv_add_f32 v119, v100, v101\nv_add_f32 v104, v102, v103")
A("v_add_f32 v117, v117, v118\nv_add_f32 v119, v119, v104\nv_add_f32 v117, v117, v119")
exec_mask(0x000f000f, 0x000f000f)
A("ds_write_b128 v5, v[112:115]")
exec_all()
xrow_multi("v_add_f32", [117], [118])
exec_mask(0xf, 0)
A("ds_write2_b32 v9, v116, v117 offset0:0 offset1:32")
bump(O_P)
PR, VO = 16, 48
def preads():
    A(f"ds_read_b64 v[118:119], v12 offset:{O_VL}")
    A("ds_read_b128 v[104:107], v8\nds_read_b128 v[108:111], v8 offset:16")
    for k in range(8):
        A(f"ds_read_b128 v[{PR+4*k}:{PR+4*k+3}], v7 offset:{256*k}")
lds_spin_data("L_pspin1", O_P, 8, preads)
A("v_min_u32 v118, v118, v119")
A("v_max3_f32 v116, v104, v105, v106\nv_max3_f32 v116, v116, v107, v108\nv_max3_f32 v116, v116, v109, v110\nv_max_f32 v116, v116, v111")
A("v_readfirstlane_b32 s71, v118")
for k in range(8): A(f"v_sub_f32 v{104+k}, v{104+k}, v116")
for k in range(8): A(f"v_mul_f32 v{104+k}, s69, v{104+k}")
for k in range(8): A(f"v_exp_f32 v{104+k}, v{104+k}")
A("v_or_b32 v125, s88, v116")
A("s_cmp_lg_u32 s35, 7\ns_cbranch_scc1 L_nol")
A("ds_read_b128 v[80:83], v8 offset:128\nds_read_b128 v[84:87], v8 offset:144")
A("v_lshlrev_b32 v10, 4, v2")
A("v_mov_b32 v97, s58\nv_mov_b32 v98, v116\nv_mov_b32 v99, s59")
A("s_waitcnt lgkmcnt(0)")
A("v_mul_f32 v96, v104, v80")
for k in range(1, 8): A(f"v_fmac_f32 v96, v{104+k}, v{80+k}")
exec_mask(0xf, 0)
memgrp(lambda: publish(96, 10, "s49", 2048))
exec_all()
LB("L_nol")
ts()
dry_end()
LB("L_d1")
def vstep(ks, first):
    for k in ks:
        A(f"ds_read_b64_tr_b16 v[{VO+4*k}:{VO+4*k+1}], v120 offset:{VI + 8192*k}")
        A(f"ds_read_b64_tr_b16 v[{VO+4*k+2}:{VO+4*k+3}], v120 offset:{VI + 8192*k + 4096}")
    for i, k in enumerate(ks):
        A(f"s_waitcnt lgkmcnt({2*(len(ks)-1-i)})")
        mfma(128 + 4 * k, VO + 4 * k, PR + 4 * k, None)
A("s_cmp_lt_u32 s71, 7\ns_cbranch_scc1 L_vinc")
vstep([0, 1, 2, 3, 4, 5, 6], True)
A("s_cbranch_execnz L_vlast" if OPT["dry"] else "s_branch L_vlast")
LB("L_vinc")
lds_spin2("L_v1", 12, O_VL, 4)
vstep([0, 1, 2, 3], True)
lds_spin2("L_v2", 12, O_VL, 6)
vstep([4, 5], False)
lds_spin2("L_v3", 12, O_VL, 7)
vstep([6], False)
LB("L_vlast")
A("s_nop 3")
for c in range(4): A(f"v_mul_f32 v{80+c}, v104, v{128+c}")
for k in range(1, 7):
    for c in range(4): A(f"v_fmac_f32 v{80+c}, v{104+k}, v{128+4*k+c}")
hbar()
ts()
vstep([7], False)
exec_mask(0x000f000f, 0x000f000f)
A("s_nop 5")
for c in range(4): A(f"v_fmac_f32 v{80+c}, v111, v{156+c}")
stamp(84, [80, 81, 82, 83], 125)
memgrp(lambda: publish(84, 121, "s48"))
exec_all()
hbar()
ts()
A("s_cmp_ge_u32 s35, 4\ns_cbranch_scc1 L_kv_h2")
GR = 80
def h1gather(sr=FA):
    for i in range(4):
        A(f"buffer_load_dwordx4 v[{GR+4*i}:{GR+4*i+3}], v122, {sr}, s{76+i} offen sc1")
ts()
memgrp(h1gather)
A("s_waitcnt vmcnt(0)")
ts()
poll_check("L_h1chk", [GR + 4 * i for i in range(4)], 116, h1gather, tagcheck_16, 8)
ts()
for i in range(4): A(f"v_perm_b32 v{100+i}, v{GR+4*i+3}, v{GR+4*i+2}, s93")
A("v_max3_f32 v116, v100, v101, v102\nv_max_f32 v116, v116, v103")
xrow_multi("v_max_f32", [116], [117])
for i in range(4): A(f"v_sub_f32 v{100+i}, v{100+i}, v116")
for i in range(4): A(f"v_mul_f32 v{100+i}, s69, v{100+i}")
for i in range(4): A(f"v_exp_f32 v{100+i}, v{100+i}")
for c in range(16): A(f"v_and_b32 v{GR+c}, 0xffffff00, v{GR+c}")
for c in range(4): A(f"v_mul_f32 v{104+c}, v100, v{GR+c}")
for i in range(1, 4):
    for c in range(4): A(f"v_fmac_f32 v{104+c}, v{100+i}, v{GR+4*i+c}")
A("s_nop 0")
xrow_t4(104)
A("v_cvt_pk_bf16_f32 v104, v104, v104")
A("ds_write_b16 v124, v104")
A("s_waitcnt lgkmcnt(0)")
hbar()
ts()
if OPT["dry"]: A("s_cbranch_execz L_d2")
A("s_branch L_kv_done")
LB("L_kv_h2")
A("s_cmp_lg_u32 s35, 7\ns_cbranch_scc1 L_kv_bo")
A("s_cmp_ge_u32 s2, 128\ns_cbranch_scc1 L_kv_bo")
LB("L_d2")
if TS: ts_n[0] = 12
srd(48, 24, 2048)
if OPT.get("sigma", 1):
    A("s_lshl_b32 s3, s31, 4\ns_or_b32 s3, s3, s32")
else:
    A("s_mov_b32 s3, s2")
A("s_lshl_b32 s60, s3, 11")
A(f"s_add_u32 s60, s60, {hex(H2)}")
A("v_lshlrev_b32 v5, 4, v0")
def h2gather(sr="s[80:83]"):
    A(f"buffer_load_dwordx4 v[16:19], v5, {sr}, s60 offen sc1")
    A(f"buffer_load_dwordx4 v[20:23], v5, {sr}, s60 offen offset:1024 sc1")
A("v_mov_b32 v8, 0\nv_lshrrev_b32 v11, 5, v0\nv_lshlrev_b32 v11, 10, v11")
A("s_lshl_b32 s62, s3, 3")
if OPT.get("otouch") == 1:
    A("buffer_load_dword v9, v8, s[48:51], s62 offen")
    A("buffer_load_dword v10, v8, s[48:51], s62 offen offset:1024")
hbar()
if TS == 5: A("s_memrealtime s[72:73]\ns_waitcnt lgkmcnt(0)\nv_writelane_b32 v127, s72, 11")
memgrp(h2gather)
A("s_waitcnt vmcnt(0)")
poll_check("L_h2chk", [16, 20], 24, h2gather, dual=False)
ts()
A("v_add_f32 v16, v16, v20\nv_add_f32 v18, v18, v22")
A("s_nop 1")
A("v_permlane32_swap_b32 v16, v18")
A("s_nop 0")
A("v_add_f32 v16, v16, v18")
xrow_multi("v_add_f32", [16], [17], steps=("v_permlane16_swap_b32",))
rowsum([16], shifts=(8, 4))
A("s_nop 1")
for i, qp in enumerate(("[1,1,1,1]", "[2,2,2,2]", "[3,3,3,3]")):
    A(f"v_mov_b32_dpp v{24+i}, v16 quad_perm:{qp} row_mask:0xf bank_mask:0xf")
A("v_cvt_pk_bf16_f32 v32, v16, v24\nv_cvt_pk_bf16_f32 v33, v25, v26")
exec_mask(1, 1)
A(f"buffer_store_dwordx2 v[32:33], v11, s[48:51], s62 offen {OPT.get('o_fl', '')}")
A("s_mov_b32 exec_hi, 0")
if OPT.get("diag"):
    if OPT.get("diaghi"):
        A(f"s_cmp_lt_u32 s2, {OPT.get('diaglo', 0)}\ns_cbranch_scc1 L_diagx\ns_cmp_ge_u32 s2, {OPT['diaghi']}\ns_cbranch_scc1 L_diagx")
    if OPT.get("diaglate"):
        A("v_readlane_b32 s73, v127, 12\nv_readlane_b32 s99, v127, 0\ns_nop 3\ns_sub_u32 s73, s73, s99")
        A(f"s_cmp_ge_u32 s73, {OPT['diaglate']}\ns_cbranch_scc1 L_diagx")
    A(f"v_readlane_b32 s73, v127, {OPT['diag']}\nv_readlane_b32 s99, v127, {OPT.get('diag0', 0)}")
    A("s_memrealtime s[100:101]\ns_waitcnt lgkmcnt(0)")
    A("s_sub_u32 s73, s73, s99")
    if OPT.get("diaginv"): A("s_min_u32 s73, s73, 1400\ns_sub_u32 s73, 1400, s73")
    A(f"s_mul_i32 s73, s73, {OPT.get('diagm', 8)}\ns_add_u32 s73, s73, s100")
    LB("L_diag")
    A("s_memrealtime s[98:99]\ns_waitcnt lgkmcnt(0)\ns_sub_u32 s99, s98, s73\ns_cmp_lt_i32 s99, 0\ns_cbranch_scc1 L_diag")
    LB("L_diagx")
A("s_cmp_lg_u32 s2, 0\ns_cbranch_scc1 L_kv_done")
A("v_mov_b32 v36, s58\nv_mov_b32 v37, s59")
A(f"s_mov_b32 s62, {hex(EPO)}")
A(f"buffer_store_dwordx2 v[36:37], v8, s[44:47], s62 offen {OPT.get('epo_fl', 'sc1')}")
A("s_branch L_kv_done")
LB("L_kv_bo")
A("s_barrier")
LB("L_kv_done")
if TS:
    A("s_memrealtime s[72:73]\ns_waitcnt lgkmcnt(0)\nv_writelane_b32 v127, s72, 15")
ts_dump()
A("s_endpgm")

if OPT["dry"]:
    LB("L_helper")
    C("================= dry-run helpers: warm the instruction cache =================")
    for v in list(range(4, 16)) + list(range(104, 112)) + [120, 121, 122, 123, 124]: A(f"v_mov_b32 v{v}, 0")
    A("s_waitcnt lgkmcnt(0)")
    ws_srds()
    A("v_mov_b32 v2, 0\nv_mov_b32 v3, 0")
    A("s_mov_b32 s32, 0\ns_mov_b32 s52, 0\ns_mov_b32 s53, 0\ns_mov_b32 s54, 0\ns_mov_b32 s67, 0")
    A("s_mov_b64 s[90:91], 0\ns_mov_b64 exec, 0")
    A("s_mov_b32 s35, 7\ns_mov_b32 s48, 0\ns_mov_b32 s49, 1\ns_mov_b32 s60, 0\ns_mov_b32 s61, 0\ns_mov_b32 s62, 0\ns_mov_b32 s63, 0")
    A("s_cmp_eq_u32 s30, 12\ns_cbranch_scc1 L_d0")
    A("s_cmp_eq_u32 s30, 14\ns_cbranch_scc1 L_d5")
    A("s_cmp_eq_u32 s30, 15\ns_cbranch_scc1 L_d3")
    A("s_mov_b32 s35, 0\ns_mov_b32 s71, 8")
    A("s_branch L_d1")
    LB("L_spre")
    if OPT["spre"]:
        A(f"s_lshl_b32 s60, s31, 5\ns_add_u32 s60, s60, s32\ns_mul_i32 s60, s60, {OBS}\ns_add_u32 s60, s60, {hex(H1)}")
        A("s_add_u32 s62, s28, s60\ns_addc_u32 s63, s29, 0")
        if OPT["spre"] & 1:
            for i in range(17): A(f"s_load_dword s{4+(i%8)}, s[62:63], {128*i}")
        A(f"s_lshl_b32 s60, s2, 11\ns_add_u32 s60, s60, {hex(H2+MIR)}")
        A("s_add_u32 s62, s28, s60\ns_addc_u32 s63, s29, 0")
        if OPT["spre"] & 2:
            A("s_cmp_ge_u32 s2, 128\ns_cbranch_scc1 L_end")
            for i in range(16): A(f"s_load_dword s{4+(i%8)}, s[62:63], {128*i}")
    A("s_endpgm")

LB("L_special")
C("================= special waves =================")
ts_reset()
A("v_and_b32 v6, 1, v2\nv_lshlrev_b32 v6, 10, v6\nv_lshl_add_u32 v6, v3, 3, v6")
A("s_cmp_eq_u32 s30, 0\ns_cbranch_scc1 L_w0")
A("s_cmp_eq_u32 s30, 1\ns_cbranch_scc1 L_w1")
A("s_cmp_eq_u32 s30, 3\ns_cbranch_scc1 L_w3")
A("s_waitcnt lgkmcnt(0)")
ts0()
ws_srds()
epoch_load()
if OPT.get("tlbw", 0):
    A("v_mov_b32 v4, 0")
    A("s_mov_b32 exec_lo, 1\ns_mov_b32 exec_hi, 0")
    srd(36, 24, 2048)
    A("buffer_load_dword v16, v4, s[36:39], 0 offen")
    srd(40, 8, 0x8000000)
    A(f"buffer_load_dword v17, v4, s[40:43], s50 offen {KVF}")
    srd(76, 12, 0x400000)
    A("s_lshl_b32 s60, s54, 17")
    A(f"buffer_load_dword v18, v4, s[76:79], s60 offen {WF}")
    srd(84, 20, 1792 * 1024)
    A("s_lshl_b32 s60, s55, 16")
    A(f"buffer_load_dword v19, v4, s[84:87], s60 offen {WF}")
    A("s_mov_b64 exec, -1")
if OPT["dry"]:
    for v in range(4, 16): A(f"v_mov_b32 v{v}, 0")
    A("s_mov_b64 exec, 0")
    A("s_branch L_d4")
LB("L_w2ret")
A("s_mov_b64 exec, -1")
fconsts(); consts()
A("s_waitcnt lgkmcnt(0)")
tags()
A("s_branch L_vload")

LB("L_w3")
A("v_lshlrev_b32 v5, 4, v0")
A("s_waitcnt lgkmcnt(0)")
ts0()
srd(36, 4, 2048)
srd(40, 22, 1024)
A("buffer_load_dwordx4 v[16:19], v5, s[36:39], 0 offen")
A("buffer_load_dwordx4 v[20:23], v5, s[36:39], 0 offen offset:1024")
A("buffer_load_dwordx4 v[24:27], v5, s[40:43], 0 offen")
ws_srds()
epoch_load()
fconsts(); consts()
A("s_waitcnt vmcnt(0)")
for src, dst in ((24, 32), (16, 40), (20, 48)):
    for w in range(4):
        A(f"v_lshlrev_b32 v{dst+2*w}, 16, v{src+w}\nv_and_b32 v{dst+2*w+1}, 0xffff0000, v{src+w}")
for b in range(2):
    for e in range(8):
        A(f"v_mul_f32 v{40+8*b+e}, v{40+8*b+e}, v{32+e}")
bf16_round_pairs(list(range(40, 56)), list(range(16, 24)))
for b in range(2):
    o = 40 + 8 * b
    A(f"v_add_f32 v{o}, v{o}, v{o+1}\nv_add_f32 v{o+2}, v{o+2}, v{o+3}\nv_add_f32 v{o+4}, v{o+4}, v{o+5}\nv_add_f32 v{o+6}, v{o+6}, v{o+7}")
    A(f"v_add_f32 v{o}, v{o}, v{o+2}\nv_add_f32 v{o+4}, v{o+4}, v{o+6}\nv_add_f32 v{o}, v{o}, v{o+4}")
rowsum([40, 48])
xrow_multi("v_add_f32", [40, 48], [41, 49])
A("v_mov_b32 v41, v48")
bf16_round_pairs([40, 41], [16])
A("v_mul_f32 v40, s70, v40\nv_mul_f32 v41, s70, v41")
A("v_exp_f32 v40, v40\nv_exp_f32 v41, v41")
A("s_nop 0")
A("v_add_f32 v40, 1.0, v40\nv_add_f32 v41, 1.0, v41")
A("v_rcp_f32 v40, v40\nv_rcp_f32 v41, v41")
A("s_nop 0")
bf16_round_pairs([40, 41], [16])
A("v_sub_f32 v42, 1.0, v40\nv_sub_f32 v43, 1.0, v41")
bf16_round_pairs([42, 43], [16])
A(f"v_mov_b32 v4, {GT}")
A("ds_write_b128 v4, v[40:43]")
A("s_waitcnt lgkmcnt(0)")
tags()

LB("L_vload")
srd(40, 8, 0x8000000)
A("s_sub_u32 s35, s30, 2")
A("s_lshl_b32 s60, s35, 2\nv_add_u32 v4, s60, v3\nv_lshrrev_b32 v5, 1, v2\nv_xor_b32 v4, v4, v5")
A("v_and_b32 v5, 1, v2\nv_lshl_add_u32 v4, v4, 1, v5\nv_lshlrev_b32 v4, 4, v4\nv_lshl_add_u32 v4, v3, 8, v4")
A("s_lshl_b32 s61, s35, 10\ns_add_u32 s62, s50, s61")
A("s_and_b32 s60, s51, 15\ns_lshl_b32 s60, s60, 12")
A(f"v_mov_b32 v12, {CNT}\nv_mov_b32 v13, 1")
A(f"s_lshl_b32 s63, s35, 2\ns_add_u32 s63, s63, {CNT+O_VL}\nv_mov_b32 v11, s63")
A("v_mov_b32 v8, 4\nv_mov_b32 v9, 6\nv_mov_b32 v10, 8\nv_mov_b32 v7, 7")
def vblk(i):
    A(f"s_add_u32 s63, s62, s60\ns_add_u32 m0, s61, {VI + 4096*i}")
    A("s_add_u32 s60, s60, 4096\ns_and_b32 s60, s60, 0xffff")
    A(f"buffer_load_dwordx4 v4, s[40:43], s63 offen {KVF} lds")
    A(f"buffer_load_dwordx4 v4, s[40:43], s63 offen offset:2048 {KVF} lds")
lds_spin("L_b2", 12, O_B2, 8)
VB = 0
IB = OPT.get("ib", 16)
for i in range(2 * VB, 17):
    if VB2 and i == 2 * VB + VB2: A("s_barrier\ns_barrier")
    if i == max(IB, 2 * VB):
        A("s_mov_b32 exec_lo, 1\ns_mov_b32 exec_hi, 0")
        A(f"ds_add_u32 v12, v13 offset:{O_I}")
        A("s_mov_b64 exec, -1")
    if OPT.get("w1e") and i == OPT.get("hb", 6):
        A("s_mov_b32 exec_lo, 1\ns_mov_b32 exec_hi, 0")
        A(f"ds_add_u32 v12, v13 offset:{O_V}")
        A("s_mov_b64 exec, -1")
    if OPT.get("xb") and i == OPT["xb"]: lds_spin("L_xbspin", 12, O_Q, 8)
    if i == 14: lds_spin("L_k7spin", 12, O_K7, 1)
    if i < 16: vblk(i)
A("s_mov_b32 exec_lo, 1\ns_mov_b32 exec_hi, 0")
ts()
A("s_waitcnt vmcnt(16)")
A("ds_write_b32 v11, v8")
ts()
A("s_waitcnt vmcnt(8)")
A("ds_write_b32 v11, v9")
A("s_waitcnt vmcnt(4)")
A("ds_write_b32 v11, v7")
A("s_mov_b64 exec, -1")
A("s_waitcnt vmcnt(0)")
A("s_barrier")
ts()
A("s_branch L_final")

LB("L_w0")
ts_reset()
if OPT.get("w0p"): A("s_setprio 3")
A("s_lshl_b32 s61, s52, 8")
A("s_waitcnt lgkmcnt(0)")
ts0()
XA, BB, AC = 16, 32, 96
A(f"s_add_u32 s61, s61, {XS}\nv_add_u32 v6, s61, v6")
ws_srds()
epoch_load()
fconsts(); consts()
for q4 in range(4): tr_addr(8 + q4, q4, 12, 13, WQI)
A(f"v_lshlrev_b32 v12, 2, v0\nv_add_u32 v12, {QT}, v12\nv_and_b32 v13, 31, v0\nv_lshlrev_b32 v13, 4, v13\nv_add_u32 v13, {QT}, v13")
A("v_and_b32 v14, 1, v3\nv_lshlrev_b32 v14, 13, v14\nv_lshl_add_u32 v14, v2, 4, v14")
A("s_lshl_b32 s62, s31, 14\ns_lshl_b32 s63, s52, 11\ns_add_u32 s62, s62, s63\ns_lshl_b32 s63, s53, 8\ns_add_u32 s62, s62, s63")
A(f"s_add_u32 s62, s62, {hex(QX)}")
A("s_waitcnt lgkmcnt(0)")
tags()
A("v_mov_b32 v5, s58")
A(f"v_mov_b32 v4, {CNT}")
lds_spin("L_wspin", 4, O_W, 4)
ts()
LB("L_d4")
for t in range(4): A(f"ds_read2_b64 v[{XA+4*t}:{XA+4*t+3}], v6 offset0:{8*t} offset1:{8*t+4}")
seq = [(q4, t) for q4 in range(4) for t in range(4)]
D = 5
def issue(k):
    q4, t = seq[k]; tr_read(BB + 4 * k, 8 + q4, 0, t)
for k in range(D): issue(k)
for k in range(16):
    q4, t = seq[k]
    A(f"s_waitcnt lgkmcnt({2*(min(16,k+D)-k)-2})")
    mfma(AC + 4 * q4, XA + 4 * t, BB + 4 * k, None if t == 0 else AC + 4 * q4)
    if k + D < 16: issue(k + D)
A("s_nop 7\ns_nop 1")
for r in range(2): select4([AC + 4 * q + r for q in range(4)])
A("s_nop 0")
for r in range(2): A(f"v_permlane32_swap_b32 v{AC+r}, v{AC+8+r}")
A("s_nop 0")
A(f"ds_write_b32 v12, v{AC}\nds_write_b32 v12, v{AC+1} offset:256")
A("ds_read_b128 v[116:119], v13")
A("s_waitcnt lgkmcnt(0)")
stamp(112, [116, 117, 118, 119], 5)
A("s_mov_b32 exec_hi, 0")
if OPT["dry"]: A("s_cbranch_execz L_w2ret")
publish(112, 14, "s62")
A(f"v_mov_b32 v12, {CNT}\nv_mov_b32 v8, 1")
A(f"ds_write_b32 v12, v8 offset:{O_B1}")
if OPT.get("w0p"): A("s_setprio 0")
A("s_mov_b64 exec, -1")
ts()
srd(36, 12, 0x400000)
srd(40, 20, 1792 * 1024)
dma_voff(4, 10, 8, 9)
if OPT.get("cshift"):
    A(f"s_add_u32 s63, s53, {OPT['cshift']}\ns_and_b32 s63, s63, 7\ns_lshl_b32 s63, s63, 7\ns_lshl_b32 s60, s54, 17\ns_add_u32 s60, s60, s63")
else:
  A("s_lshl_b32 s60, s54, 17\ns_lshl_b32 s63, s53, 7\ns_add_u32 s60, s60, s63")
A("s_lshl_b32 s61, s55, 16\ns_add_u32 s61, s61, s63")
A(f"v_mov_b32 v12, {CNT}\nv_mov_b32 v8, 1\nv_mov_b32 v9, 2\nv_mov_b32 v10, 3")
lds_spin("L_ispin", 12, O_I, 3)
ts()
A("s_cmp_eq_u32 s49, 0\ns_cbranch_scc1 L_w0_nowd")
for i in range(8):
    A(f"s_mov_b32 m0, {WDI+1024*i}")
    if i: A(f"s_add_u32 s61, s61, {8*1024}")
    else: A("s_nop 0")
    A(f"buffer_load_dwordx4 v4, s[40:43], s61 offen {WF} lds")
LB("L_w0_nowd")
for i in range(16):
    A(f"s_mov_b32 m0, {WOI+1024*i}")
    if i: A(f"s_add_u32 s60, s60, {8*1024}")
    else: A("s_nop 0")
    A(f"buffer_load_dwordx4 v4, s[36:39], s60 offen {WF} lds")
ts()
A("s_barrier\ns_barrier")
A("s_waitcnt vmcnt(16)")
A(f"ds_write_b32 v12, v8 offset:{O_STAGE}")
ts()
A("s_waitcnt vmcnt(8)")
A(f"ds_write_b32 v12, v9 offset:{O_STAGE}")
ts()
A("s_waitcnt vmcnt(0)")
A(f"ds_write_b32 v12, v10 offset:{O_STAGE}")
ts()
A("s_mov_b32 s75, 1")
A("s_branch L_final0")

LB("L_w1_idle")
A("s_waitcnt lgkmcnt(0)")
ts0()
ws_srds()
epoch_load()
fconsts(); consts()
A("s_waitcnt lgkmcnt(0)")
tags()
A(f"v_mov_b32 v11, {CNT}\nv_mov_b32 v14, 1")
A("s_mov_b32 exec_lo, 1\ns_mov_b32 exec_hi, 0")
A(f"ds_add_u32 v11, v14 offset:{O_I}")
A("s_mov_b64 exec, -1")
A("s_barrier")
A("s_branch L_final")
LB("L_w1")
ts_reset()
A("s_cmp_eq_u32 s49, 0\ns_cbranch_scc1 L_w1_idle")
A("s_lshl_b32 s61, s53, 7")
A("s_waitcnt lgkmcnt(0)")
ts0()
A(f"s_add_u32 s61, s61, {XS}\nv_add_u32 v6, s61, v6")
ws_srds()
epoch_load()
fconsts(); consts()
for q4 in range(4): tr_addr(8 + q4, q4, 12, 13, GI)
A("v_lshlrev_b32 v5, 4, v0")
A("s_lshl_b32 s62, s55, 13")
A(f"s_add_u32 s62, s62, {hex(HX)}")
A("s_lshl_b32 s63, s53, 10\ns_add_u32 s63, s63, s62")
A("s_add_u32 s61, s62, 4096")
A(f"v_lshlrev_b32 v12, 1, v0\nv_add_u32 v12, {HS}, v12")
A(f"v_mov_b32 v13, {CNT+O_H}\nv_mov_b32 v14, 1")
A("s_waitcnt lgkmcnt(0)")
tags()
A("v_mov_b32 v4, s58")
A(f"v_mov_b32 v7, {CNT}")
lds_spin("L_gspin", 7, O_G, 4)
ts()
LB("L_d5")
for t in range(2): A(f"ds_read2_b64 v[{XA+4*t}:{XA+4*t+3}], v6 offset0:{8*t} offset1:{8*t+4}")
seq = [(mat, q4, t) for mat in range(2) for q4 in range(4) for t in range(2)]
BB1 = 24
AC1 = 88
def issue(k):
    mat, q4, t = seq[k]; tr_read(BB1 + 4 * k, 8 + q4, (UI - GI) if mat else 0, t)
for k in range(D): issue(k)
for k in range(16):
    mat, q4, t = seq[k]
    A(f"s_waitcnt lgkmcnt({2*(min(16,k+D)-k)-2})")
    acc = AC1 + 16 * mat + 4 * q4
    mfma(acc, XA + 4 * t, BB1 + 4 * k, None if t == 0 else acc)
    if k + D < 16: issue(k + D)
A("s_nop 7\ns_nop 1")
for mat in range(2):
    for r in range(2): select4([AC1 + 16 * mat + 4 * q + r for q in range(4)])
A("s_nop 0")
for mat in range(2):
    for r in range(2): A(f"v_permlane32_swap_b32 v{AC1+16*mat+r}, v{AC1+16*mat+8+r}")
A("s_nop 0")
stamp(120, [AC1, AC1 + 1, AC1 + 16, AC1 + 17], 4)
dry_end()
publish(120, 5, "s63")
ts()
HG = 16
def hgather(sr=FA):
    for rb in range(8):
        r = HG + 4 * rb
        A(f"buffer_load_dwordx4 v[{r}:{r+3}], v5, {sr}, s{62 - rb//4} offen offset:{(rb%4)*1024} sc1")
A(f"v_mov_b32 v11, {CNT}")
A("s_mov_b32 exec_lo, 1\ns_mov_b32 exec_hi, 0")
A(f"ds_add_u32 v11, v14 offset:{O_I}")
A("s_mov_b64 exec, -1")
lds_spin("L_hw", 11, O_V, 2)
hgather()
ts()
LB("L_d3")
A("s_waitcnt vmcnt(0)")
poll_check("L_hchk", [HG + 4 * i for i in range(8)], 96, hgather, tagcheck_dense, 4)
ts()
for c in range(32): A(f"v_and_b32 v{HG+c}, 0xffffff00, v{HG+c}")
for step in (16, 8, 4):
    for base in range(HG, HG + step, 4):
        for o in range(4):
            A(f"v_add_f32 v{base+o}, v{base+o}, v{base+step+o}")
bf16_round_pairs([16, 17, 18, 19], [24, 25])
A("v_mul_f32 v24, s70, v16\nv_mul_f32 v25, s70, v17")
A("v_exp_f32 v24, v24\nv_exp_f32 v25, v25")
A("s_nop 0")
A("v_add_f32 v24, 1.0, v24\nv_add_f32 v25, 1.0, v25")
A("v_rcp_f32 v24, v24\nv_rcp_f32 v25, v25")
A("s_nop 0")
A("v_mul_f32 v16, v16, v24\nv_mul_f32 v17, v17, v25")
bf16_round_pairs([16, 17], [24])
A("v_mul_f32 v16, v16, v18\nv_mul_f32 v17, v17, v19")
A("v_cvt_pk_bf16_f32 v24, v16, v17")
A("ds_write_b16 v12, v24")
A("ds_write_b16_d16_hi v12, v24 offset:128")
A("ds_write_b32 v13, v14")
ts()
hbar()

LB("L_final")
A("s_mov_b32 s75, 0")
LB("L_final0")
if TS: ts_n[0] = 8
tr_addr(8, "s30", 12, 13, WOI)
A(f"v_mov_b32 v12, {CNT}")
A(f"v_and_b32 v9, 1, v2\nv_lshlrev_b32 v10, 7, v9\nv_lshl_add_u32 v10, v3, 3, v10\nv_add_u32 v10, {HS}, v10")
A(f"v_lshlrev_b32 v9, 8, v9\nv_lshl_add_u32 v9, v3, 3, v9\nv_add_u32 v9, {OV}, v9")
A("v_lshrrev_b32 v11, 2, v2\nv_lshlrev_b32 v11, 11, v11\nv_and_b32 v13, 3, v2\nv_lshl_add_u32 v11, v13, 4, v11")
A("s_lshl_b32 s60, s53, 15\ns_lshl_b32 s61, s30, 13\ns_add_u32 s60, s60, s61\ns_lshl_b32 s61, s54, 6\ns_add_u32 s60, s60, s61")
A(f"s_add_u32 s60, s60, {hex(H2)}")
A(f"v_and_b32 v7, 31, v0\nv_mul_u32_u24 v7, {OBS}, v7")
A(f"s_mul_i32 s61, s31, {32*OBS}\ns_lshl_b32 s62, s52, 4\ns_add_u32 s61, s61, s62")
A(f"s_add_u32 s61, s61, {hex(H1+2048)}")
A(f"v_mov_b32 v13, {GT}")
A("ds_read_b128 v[60:63], v13")
A("v_mov_b32 v65, s58\nv_mov_b32 v67, s59")
A("v_mov_b32 v56, 0\nv_mov_b32 v57, 0")
A("s_cmp_eq_u32 s75, 1\ns_cbranch_scc1 L_nobp")
hbar()
LB("L_nobp")
def lgather(sr=FA):
    A(f"buffer_load_dwordx4 v[68:71], v7, {sr}, s61 offen sc1")
memgrp(lgather)
A("s_cmp_eq_u32 s49, 0\ns_cbranch_scc1 L_f_nofb")
lds_spin("L_fs1", 12, O_STAGE, 1)
for t in range(2): tr_read(16 + 4 * t, 8, WDI - WOI, t)
lds_spin("L_fs2", 12, O_H, 1)
for t in range(2):
    A(f"ds_read2_b64 v[{24+4*t}:{27+4*t}], v10 offset0:{8*t} offset1:{8*t+4}")
A("s_waitcnt lgkmcnt(0)")
mfma(56, 24, 16, None)
mfma(56, 28, 20, 56)
A("s_nop 7\ns_nop 1")
A("v_mul_f32 v56, v56, v62\nv_mul_f32 v57, v57, v63")
LB("L_f_nofb")
ts()
lds_spin("L_fs3", 12, O_STAGE, 3)
for t in range(4): tr_read(16 + 4 * t, 8, 0, t)
ts()
A("s_waitcnt vmcnt(0)")
poll_check("L_lchk", [68], 72, lgather)
A("v_mov_b32 v72, v70")
A("v_mov_b32 v73, v70")
for sh in (8, 4, 2, 1):
    A("s_nop 1")
    A(f"v_max_f32_dpp v73, v73, v73 row_ror:{sh} row_mask:0xf bank_mask:0xf")
A("v_sub_f32 v72, v72, v73\nv_mul_f32 v72, s69, v72\nv_exp_f32 v72, v72\ns_nop 0\nv_mul_f32 v72, v72, v68")
rowsum([72])
A("v_rcp_f32 v72, v72")
A("s_nop 1")
A("v_readlane_b32 s62, v72, 0\nv_readlane_b32 s63, v72, 16")
A("s_nop 1")
A("v_mul_f32 v60, s62, v60\nv_mul_f32 v61, s63, v61")
ts()
hbar()
for t in range(4):
    A(f"ds_read2_b64 v[{32+4*t}:{35+4*t}], v9 offset0:{8*t} offset1:{8*t+4}")
for t in range(4):
    A(f"s_waitcnt lgkmcnt({3-t})")
    mfma(48, 32 + 4 * t, 16 + 4 * t, None if t == 0 else 48)
exec_mask(0xffff, 0)
A("s_nop 6")
A("v_fma_f32 v64, v48, v60, v56\nv_fma_f32 v66, v49, v61, v57")
dry_end()
publish(64, 11, "s60", dual=False)
ts()
ts_dump()
LB("L_end")
A("s_endpgm")

L.append(f""".section .rodata,"a"
.p2align 6
.amdhsa_kernel {NAME}
  .amdhsa_next_free_vgpr 160
  .amdhsa_next_free_sgpr 102
  .amdhsa_accum_offset 160
  .amdhsa_group_segment_fixed_size 0
  .amdhsa_kernarg_size 104
  .amdhsa_user_sgpr_count 2
  .amdhsa_user_sgpr_kernarg_segment_ptr 1
  .amdhsa_system_sgpr_workgroup_id_x 1
.end_amdhsa_kernel""")
open(out, "w").write("\n".join(L) + "\n")
```
